```python
import torch

def _softmax(x, axis=-1):
    return torch.softmax(x, dim=axis)
def _gelu(x):
    return torch.nn.functional.gelu(x, approximate="tanh")
def _silu(x):
    return torch.nn.functional.silu(x)
def _sigmoid(x):
    return torch.sigmoid(x)
def _layernorm(x, axis=-1, eps=1e-5):
    m = x.mean(dim=axis, keepdim=True)
    v = x.var(dim=axis, keepdim=True, unbiased=False)
    return (x - m) / torch.sqrt(v + eps)
def _scatter_add(tgt, idx, src, axis=0):
    return tgt.clone().index_add_(axis, idx, src)
def _segment_sum(src, seg, n):
    out = torch.zeros((n,) + src.shape[1:], dtype=src.dtype)
    return out.index_add_(0, seg, src)
def _pad(x, pw):
    flat = tuple(v for pair in reversed(pw) for v in pair)
    return torch.nn.functional.pad(x, flat)

kernel_name = 'sequential_preLN__mha_block_cached__moe_arch_mod__decode'

def setup_inputs():

    _w = (lambda a: (lambda t: t.to(torch.bfloat16) if t.is_floating_point() else t)(torch.as_tensor(a)))
    def _A_setup():
        B, Sq, D = 1, 1, 640
        H, Sk, Dh = 32, 32768, 192
        return {
            "x": _w((lambda *s: torch.randn(*s, dtype=torch.bfloat16) * 0.05)(B, Sq, D)),
            "k_cache": _w((lambda *s: torch.randn(*s, dtype=torch.bfloat16) * 3.2)(B, H, Sk, Dh)),
            "v_cache": _w((lambda *s: torch.randn(*s, dtype=torch.bfloat16) * 0.4)(B, H, Sk, Dh)),
            "wq": _w((lambda *s: torch.randn(*s, dtype=torch.bfloat16) * 3.2)(D, H * Dh) * (D ** -0.5)),
            "wo": _w((lambda *s: torch.randn(*s, dtype=torch.bfloat16) * 0.4)(H * Dh, D) * ((H * Dh) ** -0.5)),
        }
    _A_in = _A_setup()

    def _B_setup():
        B, S, D, F, C = 1, 1, 640, 1536, 1
        return {
            "x": _w((lambda *s: torch.randn(*s, dtype=torch.bfloat16) * 0.05)(B, S, D)),
            "w_r": _w((lambda *s: torch.randn(*s, dtype=torch.bfloat16) * 0.05)(D)),
            "w_gate": _w((lambda *s: torch.randn(*s, dtype=torch.bfloat16) * 0.05)(D, F)),
            "w_up": _w((lambda *s: torch.randn(*s, dtype=torch.bfloat16) * 0.05)(D, F)),
            "w_down": _w((lambda *s: torch.randn(*s, dtype=torch.bfloat16) * 0.05)(F, D)),
        }
    _B_in = _B_setup()

    return {
        "A_x": _A_in["x"],
        "A_k_cache": _A_in["k_cache"],
        "A_v_cache": _A_in["v_cache"],
        "A_wq": _A_in["wq"],
        "A_wo": _A_in["wo"],
        "B_x": _B_in["x"],
        "B_w_r": _B_in["w_r"],
        "B_w_gate": _B_in["w_gate"],
        "B_w_up": _B_in["w_up"],
        "B_w_down": _B_in["w_down"],
    }

def reference(A_x, A_k_cache, A_v_cache, A_wq, A_wo, B_x, B_w_r, B_w_gate, B_w_up, B_w_down):
    def _A_ref(x, k_cache, v_cache, wq, wo):
        B, Sq, D = x.shape
        H, Dh = 32, 192
        q = (lambda x, *d: x.permute(*d))((x @ wq).reshape(B, Sq, H, Dh), 0, 2, 1, 3)
        scores = torch.einsum("bhqd,bhkd->bhqk", q, k_cache) * (Dh ** -0.5)
        p = _softmax(scores, axis=-1)
        o = torch.einsum("bhqk,bhkd->bhqd", p, v_cache)
        return (lambda x, *d: x.permute(*d))(o, 0, 2, 1, 3).reshape(B, Sq, H * Dh) @ wo

    def _B_ref(x, w_r, w_gate, w_up, w_down):
        B, S, D = x.shape
        C = 1
        r = x @ w_r
        idx = torch.argsort(-r, axis=-1)[:, :C]
        idx_e = (lambda x, n, axis: torch.repeat_interleave(x, n, dim=axis))(idx.reshape(B, C, 1), D, axis=2)
        x_sel = (lambda x, i, axis: torch.take_along_dim(x, i, dim=axis))(x, idx_e, axis=1)
        g = _silu(x_sel @ w_gate)
        u = x_sel @ w_up
        y = (g * u) @ w_down
        r_sel = _sigmoid((lambda x, i, axis: torch.take_along_dim(x, i, dim=axis))(r, idx, axis=1))
        y = y * r_sel.reshape(B, C, 1)
        b_off = (torch.arange(B) * S).reshape(B, 1)
        flat_idx = (idx + b_off).reshape(B * C)
        zero = (x * 0.0).reshape(B * S, D)
        upd = _scatter_add(zero, flat_idx, y.reshape(B * C, D), axis=0)
        return x + upd.reshape(B, S, D)

    x = A_x
    h = x + _A_ref(_layernorm(x, axis=-1), A_k_cache, A_v_cache, A_wq, A_wo)
    h2 = h + _B_ref(_layernorm(h, axis=-1), B_w_r, B_w_gate, B_w_up, B_w_down)
    return h2
```

```python
import re

REG_RE = re.compile(r'\b([vsa])\[(\d+):(\d+)\]|\b([vsa])(\d+)\b|\b(vcc|exec)\b')

def regs_of(tok):
    out = []
    for m in REG_RE.finditer(tok):
        if m.group(1):
            out += [(m.group(1), i) for i in range(int(m.group(2)), int(m.group(3)) + 1)]
        elif m.group(4):
            out.append((m.group(4), int(m.group(5))))
        else:
            out.append((m.group(6), 0))
    return out

TRANS = ('v_exp_f32', 'v_log_f32', 'v_rcp_f32', 'v_rsq_f32', 'v_sqrt_f32', 'v_sin_f32', 'v_cos_f32')

class Ins:
    def __init__(self, text):
        self.text = text
        t = text.split(';')[0].strip()
        self.is_label = t.endswith(':')
        self.is_dir = t.startswith('.')
        self.op = ''
        self.writes = set(); self.reads = set(); self.kind = 'other'
        if self.is_label or self.is_dir or not t:
            self.kind = 'label' if self.is_label else 'dir'
            return
        parts = t.split(None, 1)
        self.op = op = parts[0]
        rest = parts[1] if len(parts) > 1 else ''
        ops = []; depth = 0; cur = ''
        for ch in rest:
            if ch == '[': depth += 1
            if ch == ']': depth -= 1
            if ch == ',' and depth == 0:
                ops.append(cur.strip()); cur = ''
            else:
                cur += ch
        if cur.strip(): ops.append(cur.strip())
        self.mods = ''
        if ops:
            last = ops[-1]
            sp = last.split(None, 1)
            if len(sp) > 1:
                ops[-1] = sp[0]; self.mods = sp[1]
        self.ops = ops
        self.dpp = ('quad_perm' in t) or ('row_' in t)
        R = lambda toks: set(r for tk in toks for r in regs_of(tk))
        if op.startswith('v_mfma'):
            self.kind = 'mfma'
            self.D = R(ops[0:1]); self.Aop = R(ops[1:2]); self.Bop = R(ops[2:3]); self.C = R(ops[3:4])
            self.writes = set(self.D); self.reads = self.Aop | self.Bop | self.C
            self.passes = 2 if '4x4x4' in op else (8 if '32x32' in op else 4)
        elif op.startswith('v_'):
            self.kind = 'valu'
            if op.startswith('v_cmp'):
                self.writes = R(ops[0:1]); self.reads = R(ops[1:])
            elif op.startswith('v_permlane') and 'swap' in op:
                self.writes = R(ops[0:2]); self.reads = R(ops[0:2])
            elif op.startswith('v_add_co') or op.startswith('v_addc_co') or op.startswith('v_sub_co') or op.startswith('v_mad_u64'):
                self.writes = R(ops[0:2]); self.reads = R(ops[2:])
            else:
                self.writes = R(ops[0:1]); self.reads = R(ops[1:])
                if op.startswith(('v_fmac', 'v_dot2c', 'v_writelane')) or self.dpp:
                    self.reads |= R(ops[0:1])
            if op.startswith('v_cndmask') and len(ops) == 3:
                self.reads.add(('vcc', 0))
            self.trans = op.replace('_e32', '').replace('_e64', '') in TRANS
            self.dot = op.startswith('v_dot')
        elif op.startswith(('buffer_', 'global_')):
            self.kind = 'vmem'
            allr = R(ops)
            if 'load' in op and 'lds' not in self.mods:
                self.writes = R(ops[0:1]); self.reads = R(ops[1:])
            elif 'atomic' in op:
                self.reads = allr
                if 'sc0' in self.mods: self.writes = R(ops[0:1])
            elif op in ('buffer_inv', 'buffer_wbl2'):
                pass
            else:
                self.reads = allr
                self.wide_store = ('x4' in op or 'x3' in op)
                self.store_data = R(ops[0:1]) if op.startswith('buffer_') else R(ops[1:2])
        elif op.startswith('ds_'):
            self.kind = 'ds'
            if 'read' in op or 'bpermute' in op or 'permute' in op or 'swizzle' in op:
                self.writes = R(ops[0:1]); self.reads = R(ops[1:])
            else:
                self.reads = R(ops)
        elif op.startswith('s_'):
            if op == 's_nop':
                self.kind = 'nop'; self.n = int(ops[0], 0) + 1
            elif op.startswith(('s_branch', 's_cbranch', 's_endpgm', 's_setpc', 's_barrier')):
                self.kind = 'branch' if op != 's_barrier' else 'salu'
            elif op.startswith(('s_load', 's_memtime', 's_memrealtime', 's_atomic')):
                self.kind = 'smem'; self.writes = R(ops[0:1]); self.reads = R(ops[1:])
            elif op.startswith('s_waitcnt') or op == 's_sleep' or op == 's_setprio':
                self.kind = 'salu'
            elif op.startswith('s_cmp'):
                self.kind = 'salu'; self.reads = R(ops)
            else:
                self.kind = 'salu'; self.writes = R(ops[0:1]); self.reads = R(ops[1:])
                if 'saveexec' in op:
                    self.writes.add(('exec', 0))
        else:
            raise ValueError('unknown instruction: ' + text)

def vg(rs): return set(r for r in rs if r[0] in 'va' and r[0] != 'vcc' and len(r[0]) == 1)
def sg(rs): return set(r for r in rs if r[0] == 's' or r[0] == 'vcc')

def required(p, c):
    need = 0
    if p.kind == 'valu':
        pw = vg(p.writes); ps = sg(p.writes)
        if c.kind == 'valu':
            if c.dpp and pw & vg(c.reads): need = max(need, 2)
            if c.op.startswith('v_permlane') and pw & vg(c.reads): need = max(need, 2)
            if c.op.startswith(('v_readlane', 'v_readfirstlane')) and pw & vg(c.reads): need = max(need, 1)
            if ps & sg(c.reads):
                need = max(need, 4 if c.op.startswith(('v_readlane', 'v_writelane')) else 2)
            if getattr(p, 'trans', False) and pw & (vg(c.reads) | vg(c.writes)): need = max(need, 1)
            if getattr(p, 'dot', False) and pw & (vg(c.reads) | vg(c.writes)):
                same_c = (c.op == p.op and len(c.ops) >= 3 and not (pw & set(regs_of(c.ops[1]) + regs_of(c.ops[2]))))
                if not same_c: need = max(need, 3)
            if ('exec', 0) in p.writes and c.dpp: need = max(need, 5)
        if c.kind == 'mfma':
            if pw & c.reads: need = max(need, 3 if getattr(p, 'dot', False) else 2)
            if ('exec', 0) in p.writes: need = max(need, 4)
        if c.kind == 'vmem':
            if ps & sg(c.reads): need = max(need, 5)
            if getattr(p, 'dot', False) and pw & vg(c.reads): need = max(need, 3)
            if getattr(p, 'trans', False) and pw & vg(c.reads): need = max(need, 1)
        if c.kind == 'ds':
            if getattr(p, 'dot', False) and pw & vg(c.reads): need = max(need, 3)
            if getattr(p, 'trans', False) and pw & vg(c.reads): need = max(need, 1)
    elif p.kind == 'mfma':
        n = p.passes
        big = {2: 5, 4: 8, 8: 12, 16: 20}[n]
        if c.kind == 'mfma':
            if p.D & c.C:
                if p.D == c.C and c.passes == n: need = max(need, 2 if n == 2 else 0)
                else: need = max(need, {2: 4, 4: 6, 8: 10, 16: 18}[n])
            if p.D & (c.Aop | c.Bop): need = max(need, big)
            if (p.D & c.D) and not (p.D == c.D and p.D == c.C): need = max(need, big)
        elif c.kind in ('valu', 'vmem', 'ds'):
            if p.D & (vg(c.reads) | vg(c.writes)): need = max(need, big)
            if c.kind == 'valu' and p.C & vg(c.writes): need = max(need, {2: 1, 4: 3, 8: 7, 16: 15}[n])
    elif p.kind == 'vmem' and getattr(p, 'wide_store', False):
        if c.kind in ('valu', 'mfma') and p.store_data & vg(c.writes): need = max(need, 2)
        if c.kind in ('vmem', 'ds') and p.store_data & vg(c.writes): need = max(need, 1)
    return need

def max_window(p):
    if p.kind == 'valu':
        w = 0
        if vg(p.writes): w = 2
        if getattr(p, 'dot', False): w = 3
        if sg(p.writes): w = 5
        if ('exec', 0) in p.writes: w = 5
        return w
    if p.kind == 'mfma': return {2: 5, 4: 8, 8: 12, 16: 20}[p.passes]
    if p.kind == 'vmem' and getattr(p, 'wide_store', False): return 2
    return 0

class Asm:
    def __init__(self):
        self.lines = []
    def __call__(self, text):
        for ln in text.split('\n'):
            if ln.strip(): self.lines.append(ln.strip())
    def label(self, name): self.lines.append(name + ':')
    def text(self, hazard=True):
        ins = [Ins(l) for l in self.lines]
        out = []
        hist = []
        nops = 0
        def pad(n):
            nonlocal nops
            while n > 0:
                k = min(n, 16); out.append('  s_nop %d' % (k - 1)); n -= k; nops += k
        for i in ins:
            if i.kind == 'dir' :
                out.append(i.text); continue
            if i.kind == 'label' or i.kind == 'branch':
                need = 0
                for p, age in hist: need = max(need, max_window(p) - age)
                if need > 0: pad(need)
                hist = []
                out.append(i.text if i.kind == 'label' else '  ' + i.text)
                continue
            need = 0
            for p, age in hist: need = max(need, required(p, i) - age)
            if need > 0:
                pad(need); hist = [(p, a + need) for p, a in hist]
            out.append('  ' + i.text)
            step = i.n if i.kind == 'nop' else 1
            hist = [(p, a + step) for p, a in hist if a + step < 24]
            if i.kind in ('valu', 'mfma') or (i.kind == 'vmem' and getattr(i, 'wide_store', False)):
                hist.append((i, 0))
        self.nops = nops
        return '\n'.join(out) + '\n'
```

```python
import sys, json, struct
from asmlib import Asm

NAME = "sequential_preLN__mha_block_cached__moe_arch_mod__decode_kernel"
def f32hex(x): return "0x%08x" % struct.unpack("<I", struct.pack("<f", x))[0]

HB = 12582912
EPOCH = 0
QP = 0x1000
ML = 0x48000
OP = 0x60000
ZZ = 0x130000
HH = 0x180000
YY = 0x181000
WS_SIZE = 0x200000
L_XN = 0
L_Q = 5120
L_RED = 6656
L_SC = 16896
LDS_BYTES = 33280 + 512

def gen(H=32, PRE1=4, PRE2=2, lds=LDS_BYTES, dbg=0, pol="nt", spin=1 << 19, perturb=0.0):
    nph = 32 // H
    WPH = 256 // H
    NWH = WPH * 4
    G = 4096 // NWH
    NIT = G // 8
    STRIDE = NWH * 3072
    PRE = PRE1 + PRE2
    assert PRE <= 8 and NIT >= 2
    a = Asm()

    vL, vSA, vN = 1, 2, 3
    vM = [4, 5, 6, 7]; vA = 8
    vQ = 12
    vACC = 24
    vC, vMX, vP, vPN, vBC = 36, 37, 38, 39, 40
    T = list(range(41, 48))
    RING = 48
    W = 144
    vX = 204
    NV = 224
    def ring(slot, t): b = RING + slot * 12 + 4 * t; return f"v[{b}:{b+3}]"
    def vr(b, n): return f"v[{b}:{b+n-1}]"
    sW = 3
    pX, pK, pV, pWQ, pWO, pBX, pWR, pWG, pWU, pWD, pOUT, pDBG, pWS = [4 + 2 * i for i in range(13)]
    STR, WSR, TMP = 32, 36, 40
    sOff, sIt, sHead, sWI, sPh, sNon, sRole, sRI = 44, 45, 46, 47, 48, 49, 50, 51
    sSel = 52
    sSelG = 56
    sT0, sT1, sT2, sT3 = 57, 58, 59, 60
    sMask = 62
    sSlot, sJ, sWflag, sSpin = 78, 79, 80, 81
    sE = 82
    sBad = 84
    sU = 86
    def sp(b): return f"s[{b}:{b+1}]"
    def srd(b): return f"s[{b}:{b+3}]"

    USEFUL = "0xFF00FF0000FF00FF"

    def allreduce(op, v, t):
        for m in ("quad_perm:[1,0,3,2]", "quad_perm:[2,3,0,1]", "row_half_mirror", "row_mirror"):
            a(f"{op}_dpp v{v}, v{v}, v{v} {m} row_mask:0xf bank_mask:0xf")
        for sw in ("v_permlane16_swap_b32", "v_permlane32_swap_b32"):
            a(f"v_mov_b32 v{t}, v{v}")
            a(f"{sw} v{t}, v{v}")
            a(f"{op} v{v}, v{v}, v{t}")
    def rows_reduce(op, v, t):
        for sw in ("v_permlane16_swap_b32", "v_permlane32_swap_b32"):
            a(f"v_mov_b32 v{t}, v{v}")
            a(f"{sw} v{t}, v{v}")
            a(f"{op} v{v}, v{v}, v{t}")
    def set_exec(val):
        if isinstance(val, str) and val.startswith("0x") and len(val) > 10:
            a(f"s_mov_b32 exec_lo, 0x{val[-8:]}"); a(f"s_mov_b32 exec_hi, 0x{val[2:-8]}")
        else:
            a(f"s_mov_b64 exec, {val}")
    def a_operand(src):
        for r in range(4): a(f"v_and_b32 v{vA+r}, v{src}, v{vM[r]}")
    def tag4(b):
        for r in range(4): a(f"v_perm_b32 v{b+r}, v{b+r}, v{vN}, s{sSel+r}")
    def check4(b, t0, t1, first):
        a(f"v_perm_b32 v{t0}, v{b+1}, v{b}, s{sSelG}")
        a(f"v_perm_b32 v{t1}, v{b+3}, v{b+2}, s{sSelG}")
        a(f"v_lshl_or_b32 v{t0}, v{t1}, 16, v{t0}")
        a(f"v_cmp_ne_u32 vcc, v{t0}, v{vN}")
        if first: a(f"s_mov_b64 {sp(sBad)}, vcc")
        else: a(f"s_or_b64 {sp(sBad)}, {sp(sBad)}, vcc")
    lab = [0]
    def poll(issue, check):
        lab[0] += 1; n = lab[0]
        a(f"s_mov_b32 s{sSpin}, {spin}")
        a.label(f"L_poll{n}")
        issue()
        a("s_waitcnt vmcnt(0)")
        check()
        a(f"s_cmp_eq_u64 {sp(sBad)}, 0")
        a(f"s_cbranch_scc1 L_pollok{n}")
        a(f"s_sub_u32 s{sSpin}, s{sSpin}, 1")
        a(f"s_cmp_eq_u32 s{sSpin}, 0")
        a("s_cbranch_scc1 L_abort")
        a(f"s_branch L_poll{n}")
        a.label(f"L_pollok{n}")
    def rne(dst, src):
        a(f"v_cvt_pk_bf16_f32 v{dst}, v{src}, v{src}")
        a(f"v_lshlrev_b32 v{dst}, 16, v{dst}")

    def layernorm(val, tmp, pk):
        t0, t1, t2, t3, t4 = tmp
        a(f"v_add_f32 v{t0}, v{val}, v{val+1}")
        for i in range(2, 12): a(f"v_add_f32 v{t0}, v{t0}, v{val+i}")
        allreduce("v_add_f32", t0, t1)
        a(f"v_mul_f32 v{t0}, {f32hex(1.0/640)}, v{t0}")
        a(f"v_mov_b32 v{t2}, 0")
        for i in range(8):
            a(f"v_sub_f32 v{t1}, v{val+i}, v{t0}")
            a(f"v_fmac_f32 v{t2}, v{t1}, v{t1}")
        a(f"v_mov_b32 v{t3}, 0")
        for i in range(8, 12):
            a(f"v_sub_f32 v{t1}, v{val+i}, v{t0}")
            a(f"v_fmac_f32 v{t3}, v{t1}, v{t1}")
        a(f"v_cmp_gt_u32 vcc, 32, v{vL}")
        a(f"v_cndmask_b32 v{t3}, 0, v{t3}, vcc")
        a(f"v_add_f32 v{t2}, v{t2}, v{t3}")
        allreduce("v_add_f32", t2, t1)
        a(f"v_mul_f32 v{t2}, {f32hex(1.0/640)}, v{t2}")
        rne(t2, t2)
        a(f"v_add_f32 v{t2}, {f32hex(1e-5)}, v{t2}")
        rne(t2, t2)
        a(f"v_sqrt_f32 v{t3}, v{t2}")
        a(f"v_rcp_f32 v{t4}, v{t3}")
        a(f"v_fma_f32 v{t1}, -v{t3}, v{t3}, v{t2}")
        a(f"v_mul_f32 v{t4}, 0.5, v{t4}")
        a(f"v_fma_f32 v{t3}, v{t1}, v{t4}, v{t3}")
        rne(t3, t3)
        rne(t0, t0)
        a(f"v_rcp_f32 v{t4}, v{t3}")
        for i in range(0, 12, 2):
            a(f"v_sub_f32 v{val+i}, v{val+i}, v{t0}")
            a(f"v_sub_f32 v{val+i+1}, v{val+i+1}, v{t0}")
            a(f"v_cvt_pk_bf16_f32 v{t1}, v{val+i}, v{val+i+1}")
            a(f"v_lshlrev_b32 v{val+i}, 16, v{t1}")
            a(f"v_and_b32 v{val+i+1}, 0xffff0000, v{t1}")
            for k in (i, i + 1):
                a(f"v_mul_f32 v{t1}, v{val+k}, v{t4}")
                a(f"v_fma_f32 v{t2}, -v{t1}, v{t3}, v{val+k}")
                a(f"v_fma_f32 v{val+k}, v{t2}, v{t4}, v{t1}")
            a(f"v_cvt_pk_bf16_f32 v{pk + i//2}, v{val+i}, v{val+i+1}")
            a(f"v_lshlrev_b32 v{val+i}, 16, v{pk + i//2}")
            a(f"v_and_b32 v{val+i+1}, 0xffff0000, v{pk + i//2}")

    a.lines.append(f"; @launch grid=(256,1,1) block=(256,1,1) lds={lds}")
    a.lines.append('.amdgcn_target "amdgcn-amd-amdhsa--gfx950"')
    a.lines += [".text", f".globl {NAME}", ".p2align 8", f".type {NAME},@function"]
    a.label(NAME)
    a("s_cmp_ge_u32 s2, 256")
    a("s_cbranch_scc1 L_end")
    a("s_load_dwordx16 s[4:19], s[0:1], 0")
    a("s_load_dwordx8 s[20:27], s[0:1], 64")
    a("s_load_dwordx2 s[28:29], s[0:1], 96")
    a(f"s_getpc_b64 {sp(58)}")
    a.label("L_pc")
    a(f"v_and_b32 v{vL}, 63, v0")
    a(f"v_lshrrev_b32 v{T[0]}, 6, v0")
    a(f"v_lshlrev_b32 v{T[1]}, 6, v0")
    a(f"v_min_u32 v{T[1]}, L_codeend-L_pc-4, v{T[1]}")
    a(f"v_readfirstlane_b32 s{sW}, v{T[0]}")
    a(f"global_load_dword v{T[2]}, v{T[1]}, {sp(58)}")
    a(f"v_lshrrev_b32 v{T[0]}, 3, v{vL}")
    a(f"v_and_b32 v{T[3]}, 7, v{vL}")
    a(f"v_lshlrev_b32 v{T[4]}, 4, v{T[3]}")
    a(f"v_mul_u32_u24 v{vSA}, 384, v{T[0]}")
    a(f"v_add_u32 v{vSA}, v{vSA}, v{T[4]}")
    for r in range(4):
        a(f"v_mov_b32 v{vM[r]}, 0")
        a(f"v_mov_b32 v{T[5]}, 0xffff")
        a(f"v_cmp_eq_u32 vcc, {2*r}, v{T[3]}")
        a(f"v_cndmask_b32 v{vM[r]}, v{vM[r]}, v{T[5]}, vcc")
        a(f"v_mov_b32 v{T[5]}, 0xffff0000")
        a(f"v_cmp_eq_u32 vcc, {2*r+1}, v{T[3]}")
        a(f"v_cndmask_b32 v{vM[r]}, v{vM[r]}, v{T[5]}, vcc")
    a(f"s_and_b32 s{sSlot}, s2, {H-1}")
    a(f"s_lshr_b32 s{sJ}, s2, {H.bit_length()-1}")
    a(f"s_lshl_b32 s{sWI}, s{sJ}, 2")
    a(f"s_add_u32 s{sWI}, s{sWI}, s{sW}")
    a(f"s_mov_b32 s{sHead}, s{sSlot}")
    a(f"s_mov_b32 s{sPh}, 0")
    for g in range(8):
        m = 0x0101010101010101 << g
        a(f"s_mov_b32 s{sMask+2*g}, 0x{m & 0xffffffff:08x}")
        a(f"s_mov_b32 s{sMask+2*g+1}, 0x{m >> 32:08x}")
    for r in range(4): a(f"s_mov_b32 s{sSel+r}, 0x{0x07060500 | r:08x}")
    a(f"s_mov_b32 s{sSelG}, 0x0c0c0400")
    a("s_waitcnt lgkmcnt(0)")
    a(f"s_load_dword s{sNon}, {sp(pWS)}, {EPOCH}")
    a(f"s_mov_b32 s{WSR}, s{pWS}"); a(f"s_mov_b32 s{WSR+1}, s{pWS+1}"); a(f"s_mov_b32 s{WSR+2}, {WS_SIZE}"); a(f"s_mov_b32 s{WSR+3}, 0x20000")
    a(f"s_mov_b32 s{TMP}, s{pWQ}"); a(f"s_mov_b32 s{TMP+1}, s{pWQ+1}"); a(f"s_mov_b32 s{TMP+2}, 7864320"); a(f"s_mov_b32 s{TMP+3}, 0x20000")
    a(f"s_mul_i32 s{sT0}, s{sHead}, {HB}")
    a(f"s_add_u32 s{STR}, s{pK}, s{sT0}"); a(f"s_addc_u32 s{STR+1}, s{pK+1}, 0"); a(f"s_mov_b32 s{STR+2}, {HB}"); a(f"s_mov_b32 s{STR+3}, 0x20000")
    a(f"s_mul_i32 s{sOff}, s{sWI}, 3072")
    XQ = W + 36
    XV = W + 44
    XPK = vX
    a(f"v_lshlrev_b32 v{T[1]}, 3, v{vL}")
    a(f"v_add_u32 v{T[5]}, 1024, v{T[1]}")
    a(f"v_min_u32 v{T[5]}, 1272, v{T[5]}")
    a(f"global_load_dwordx2 {vr(XQ,2)}, v{T[1]}, {sp(pX)}")
    a(f"global_load_dwordx2 {vr(XQ+2,2)}, v{T[1]}, {sp(pX)} offset:512")
    a(f"global_load_dwordx2 {vr(XQ+4,2)}, v{T[5]}, {sp(pX)}")
    a(f"s_and_b32 s{sT0}, s2, 31"); a(f"s_lshr_b32 s{sT1}, s2, 5")
    a(f"v_mul_u32_u24 v{T[6]}, 12288, v{T[0]}")
    a(f"v_add_u32 v{T[6]}, v{T[6]}, v{T[4]}")
    a(f"s_mul_i32 s{sT2}, s{sT0}, 384")
    a(f"v_add_u32 v{T[6]}, s{sT2}, v{T[6]}")
    a(f"s_mul_i32 s{sT2}, s{sT1}, 10"); a(f"s_add_u32 s{sT2}, s{sT2}, s{sW}")
    vq = []
    vq += ["pf", "x0", "x1", "x2"]
    for k in range(3):
        a(f"s_mul_i32 s{sT3}, s{sT2}, {8*12288}")
        if k == 2:
            a(f"s_cmp_ge_u32 s{sW}, 2"); a(f"s_cselect_b32 s{sT3}, 7864320, s{sT3}")
        for t in range(3):
            a(f"buffer_load_dwordx4 {vr(W + 12*k + 4*t, 4)}, v{T[6]}, {srd(TMP)}, s{sT3} offen offset:{128*t}")
            vq.append(f"wq{k}")
        a(f"s_add_u32 s{sT2}, s{sT2}, 4")
    def issue(slot, name):
        for t in range(3):
            a(f"buffer_load_dwordx4 {ring(slot,t)}, v{vSA}, {srd(STR)}, s{sOff} offen offset:{128*t} {pol}")
            vq.append(name)
        a(f"s_add_u32 s{sOff}, s{sOff}, {STRIDE}")
    def wait_for(name):
        idx = max(i for i, n in enumerate(vq) if n == name)
        n = len(vq) - 1 - idx
        a(f"s_waitcnt vmcnt({min(n, 63)})")
        del vq[:idx + 1]
    for g in range(PRE1): issue(g, f"k{g}")
    a("s_waitcnt lgkmcnt(0)")
    a(f"s_add_u32 s{sNon}, s{sNon}, 0x9e3779b9")
    a(f"v_mov_b32 v{vN}, s{sNon}")
    wait_for("x2")
    for k in range(3):
        for h in range(2):
            a(f"v_lshlrev_b32 v{XV+4*k+2*h}, 16, v{XQ+2*k+h}")
            a(f"v_and_b32 v{XV+4*k+2*h+1}, 0xffff0000, v{XQ+2*k+h}")
    a(f"v_cmp_gt_u32 vcc, 32, v{vL}")
    for i in range(8, 12): a(f"v_cndmask_b32 v{XV+i}, 0, v{XV+i}, vcc")
    layernorm(XV, T[0:5], XPK)
    def write_xn(pk):
        a(f"s_mul_i32 s{sT0}, s{sW}, 1280")
        a(f"v_lshlrev_b32 v{T[0]}, 3, v{vL}")
        a(f"v_add_u32 v{T[0]}, s{sT0}, v{T[0]}")
        a(f"ds_write_b64 v{T[0]}, {vr(pk,2)} offset:{L_XN}")
        a(f"ds_write_b64 v{T[0]}, {vr(pk+2,2)} offset:{L_XN+512}")
        set_exec("0x00000000ffffffff")
        a(f"ds_write_b64 v{T[0]}, {vr(pk+4,2)} offset:{L_XN+1024}")
        set_exec(-1)
    write_xn(XPK)
    for i in range(12): a(f"v_mov_b32 v{vACC+i}, 0")
    a(f"s_lshr_b32 s{sT1}, s2, 5"); a(f"s_mul_i32 s{sT1}, s{sT1}, 80")
    a(f"s_lshl_b32 s{sT2}, s{sW}, 3"); a(f"s_add_u32 s{sT1}, s{sT1}, s{sT2}")
    a(f"s_mul_i32 s{sT0}, s{sW}, 1280")
    a(f"v_lshrrev_b32 v{T[0]}, 3, v{vL}")
    a(f"v_add_u32 v{T[0]}, s{sT1}, v{T[0]}")
    a(f"v_lshlrev_b32 v{T[0]}, 1, v{T[0]}")
    a(f"v_add_u32 v{T[0]}, s{sT0}, v{T[0]}")
    a("s_waitcnt lgkmcnt(0)")
    for k in range(3):
        if k == 2:
            a(f"s_cmp_ge_u32 s{sW}, 2"); a("s_cbranch_scc1 L_qskip")
        a(f"ds_read_u16 v{T[1]}, v{T[0]} offset:{L_XN + 64*k}")
        a("s_waitcnt lgkmcnt(0)")
        a(f"v_lshl_or_b32 v{T[1]}, v{T[1]}, 16, v{T[1]}")
        a_operand(T[1])
        if k < 2: wait_for(f"wq{k}")
        else: a(f"s_waitcnt vmcnt({3*PRE1})")
        for t in range(3):
            a(f"v_mfma_f32_16x16x32_bf16 {vr(vACC+4*t,4)}, {vr(vA,4)}, {vr(W+12*k+4*t,4)}, {vr(vACC+4*t,4)}")
    a.label("L_qskip")
    vq[:] = [n for n in vq if not n.startswith("wq")]
    vRA = vBC
    def red_addr():
        a(f"v_lshrrev_b32 v{T[0]}, 5, v{vL}")
        a(f"v_mul_u32_u24 v{vRA}, 768, v{T[0]}")
        a(f"v_and_b32 v{T[0]}, 7, v{vL}"); a(f"v_lshlrev_b32 v{T[0]}, 5, v{T[0]}"); a(f"v_add_u32 v{vRA}, v{vRA}, v{T[0]}")
        a(f"v_and_b32 v{T[0]}, 16, v{vL}"); a(f"v_add_u32 v{vRA}, v{vRA}, v{T[0]}")
        a(f"s_mul_i32 s{sT0}, s{sW}, 1536"); a(f"v_add_u32 v{vRA}, s{sT0}, v{vRA}")
    def red_write():
        set_exec(USEFUL)
        for t in range(3): a(f"ds_write_b128 v{vRA}, {vr(vACC+4*t,4)} offset:{L_RED + 256*t}")
        set_exec(-1)
    red_addr(); red_write()
    a("s_waitcnt lgkmcnt(0)"); a("s_barrier")
    for g in range(PRE1, PRE): issue(g, f"k{g}")
    a(f"s_cmp_lg_u32 s{sW}, 0"); a("s_cbranch_scc1 L_qwait")
    S3 = W
    a(f"v_mul_u32_u24 v{T[0]}, 12, v{vL}")
    for s in range(8):
        for i in range(3): a(f"ds_read_b32 v{S3+4*s+i}, v{T[0]} offset:{L_RED + 768*s + 4*i}")
        if s % 4 == 3: a("s_waitcnt lgkmcnt(0)")
    for s in range(1, 8):
        for i in range(3): a(f"v_add_f32 v{S3+i}, v{S3+i}, v{S3+4*s+i}")
    a(f"v_mov_b32 v{S3+3}, v{vN}")
    a(f"s_and_b32 s{sT0}, s2, 31"); a(f"s_lshr_b32 s{sT1}, s2, 5"); a(f"s_lshl_b32 s{sT0}, s{sT0}, 3"); a(f"s_add_u32 s{sT0}, s{sT0}, s{sT1}")
    a(f"s_lshl_b32 s{sT0}, s{sT0}, 10"); a(f"s_add_u32 s{sT0}, s{sT0}, {QP}")
    a(f"v_lshlrev_b32 v{T[1]}, 4, v{vL}")
    a(f"buffer_store_dwordx4 {vr(S3,4)}, v{T[1]}, {srd(WSR)}, s{sT0} offen sc1")
    for p in range(nph):
        a(f"s_add_u32 s{sT0}, s{sSlot}, {H*p}"); a(f"s_lshl_b32 s{sT0}, s{sT0}, 13"); a(f"s_add_u32 s{sT0}, s{sT0}, {QP}")
        def iss():
            for s in range(8):
                a(f"s_add_u32 s{sT1}, s{sT0}, {1024*s}")
                a(f"buffer_load_dwordx4 {vr(S3+4*s,4)}, v{T[1]}, {srd(WSR)}, s{sT1} offen sc1")
        def chk():
            for s in range(8):
                a(f"v_cmp_ne_u32 vcc, v{S3+4*s+3}, v{vN}")
                a(f"s_mov_b64 {sp(sBad)}, vcc" if s == 0 else f"s_or_b64 {sp(sBad)}, {sp(sBad)}, vcc")
        poll(iss, chk)
        for s in range(1, 8):
            for i in range(3): a(f"v_add_f32 v{S3+i}, v{S3+i}, v{S3+4*s+i}")
        a(f"v_cvt_pk_bf16_f32 v{S3}, v{S3}, v{S3+1}")
        a(f"v_cvt_pk_bf16_f32 v{S3+2}, v{S3+2}, v{S3+2}")
        a(f"v_mul_u32_u24 v{T[0]}, 6, v{vL}")
        a(f"ds_write_b16 v{T[0]}, v{S3} offset:{L_Q + 384*p}")
        a(f"ds_write_b16_d16_hi v{T[0]}, v{S3} offset:{L_Q + 384*p + 2}")
        a(f"ds_write_b16 v{T[0]}, v{S3+2} offset:{L_Q + 384*p + 4}")
    a("s_waitcnt lgkmcnt(0)")
    a.label("L_qwait")
    a("s_barrier")
    def load_q():
        a(f"v_and_b32 v{T[0]}, 7, v{vL}"); a(f"v_lshlrev_b32 v{T[0]}, 4, v{T[0]}")
        a(f"s_mul_i32 s{sT0}, s{sPh}, 384"); a(f"v_add_u32 v{T[0]}, s{sT0}, v{T[0]}")
        for t in range(3): a(f"ds_read_b128 {vr(vQ+4*t,4)}, v{T[0]} offset:{L_Q + 128*t}")
        a("s_waitcnt lgkmcnt(0)")
    load_q()
    if dbg:
        pass

    vSC = vPN
    vSC = T[6]
    def score_addr():
        a(f"v_lshlrev_b32 v{vSC}, 2, v{vL}")
        a(f"s_lshl_b32 s{sT0}, s{sW}, 12"); a(f"v_add_u32 v{vSC}, s{sT0}, v{vSC}")
    def kcompute(slot, g):
        b = RING + slot * 12
        a0, a1, a2 = T[0], T[1], T[2]
        for i in range(4):
            for t, acc in enumerate((a0, a1, a2)):
                src2 = "0" if i == 0 else f"v{acc}"
                a(f"v_dot2_f32_bf16 v{acc}, v{b+4*t+i}, v{vQ+4*t+i}, {src2}")
        a(f"v_add_f32 v{a0}, v{a0}, v{a1}")
        a(f"v_add_f32 v{a0}, v{a0}, v{a2}")
        for m in ("quad_perm:[1,0,3,2]", "quad_perm:[2,3,0,1]", "row_half_mirror"):
            a(f"v_add_f32_dpp v{a0}, v{a0}, v{a0} {m} row_mask:0xf bank_mask:0xf")
        a(f"v_cndmask_b32 v{vC}, v{vC}, v{a0}, {sp(sMask+2*g)}")
    SCALE = f32hex(192 ** -0.5)
    def kfinish():
        t = T[0]
        rne(t, vC)
        a(f"v_mul_f32 v{t}, {SCALE}, v{t}")
        rne(t, t)
        a(f"v_max_f32 v{vMX}, v{vMX}, v{t}")
        a(f"ds_write_b32 v{vSC}, v{t} offset:{L_SC}")
        a(f"v_add_u32 v{vSC}, 256, v{vSC}")
    score_addr()
    a(f"v_mov_b32 v{vMX}, 0xff800000")
    nx = PRE
    for g in range(8):
        wait_for(f"k{g}") if f"k{g}" in vq else None
        if g == 0:
            while nx < 8 and nx < PRE + 2:
                issue(nx % 8, f"k{nx}"); nx += 1
        while nx <= g + 2:
            issue(nx % 8, f"k{nx}"); nx += 1
        kcompute(g, g)
    kfinish()
    assert nx == 10
    a(f"s_mov_b32 s{sIt}, 1")
    def switch_to_V():
        a(f"s_cmp_eq_u32 s{sIt}, {NIT-1}")
        a(f"s_cbranch_scc0 L_nosw{lab[0]}")
        a(f"s_mul_i32 s{sT0}, s{sHead}, {HB}")
        a(f"s_add_u32 s{STR}, s{pV}, s{sT0}"); a(f"s_addc_u32 s{STR+1}, s{pV+1}, 0")
        a(f"s_mul_i32 s{sOff}, s{sWI}, 3072")
        a.label(f"L_nosw{lab[0]}"); lab[0] += 1
    def switch_to_nextK():
        a(f"s_cmp_eq_u32 s{sIt}, {NIT-1}")
        a(f"s_cbranch_scc0 L_nosw{lab[0]}")
        if nph > 1:
            a(f"s_add_u32 s{sT0}, s{sHead}, {H}")
            a(f"s_mul_i32 s{sT0}, s{sT0}, {HB}")
            a(f"s_add_u32 s{STR}, s{pK}, s{sT0}"); a(f"s_addc_u32 s{STR+1}, s{pK+1}, 0")
            a(f"s_mul_i32 s{sOff}, s{sWI}, 3072")
            a(f"s_cmp_eq_u32 s{sPh}, {nph-1}")
            a(f"s_cselect_b32 s{STR+2}, 0, {HB}")
            a(f"s_cselect_b32 s{STR}, s{pK}, s{STR}"); a(f"s_cselect_b32 s{STR+1}, s{pK+1}, s{STR+1}")
        else:
            a(f"s_mov_b32 s{STR+2}, 0")
        a.label(f"L_nosw{lab[0]}"); lab[0] += 1
    def steady_issue(slot):
        for t in range(3):
            a(f"buffer_load_dwordx4 {ring(slot,t)}, v{vSA}, {srd(STR)}, s{sOff} offen offset:{128*t} {pol}")
        a(f"s_add_u32 s{sOff}, s{sOff}, {STRIDE}")
    lab[0] += 100
    a.label("L_kloop")
    for g in range(8):
        a("s_waitcnt vmcnt(3)")
        if g == 6: switch_to_V()
        steady_issue((g + 2) % 8)
        kcompute(g, g)
    kfinish()
    a(f"s_add_u32 s{sIt}, s{sIt}, 1")
    a(f"s_cmp_lt_u32 s{sIt}, {NIT}")
    a("s_cbranch_scc1 L_kloop")

    WPHASE = nph - 1
    a(f"s_mov_b32 s{sWflag}, 0")
    a(f"s_cmp_lg_u32 s{sPh}, {WPHASE}"); a("s_cbranch_scc1 L_now")
    a(f"s_and_b32 s{sT0}, s2, 7"); a(f"s_lshr_b32 s{sT1}, s2, 3")
    a(f"s_cmp_lt_u32 s{sT1}, 16"); a("s_cbranch_scc1 L_wO")
    a(f"s_cmp_lt_u32 s{sT1}, 28"); a("s_cbranch_scc1 L_wF")
    a(f"s_sub_u32 s{sT1}, s{sT1}, 28"); a(f"s_lshl_b32 s{sT1}, s{sT1}, 3"); a(f"s_add_u32 s{sRI}, s{sT1}, s{sT0}")
    a(f"s_mov_b32 s{sRole}, 2")
    a("s_branch L_now")
    a.label("L_wO")
    a(f"s_lshl_b32 s{sT1}, s{sT1}, 3"); a(f"s_add_u32 s{sRI}, s{sT1}, s{sT0}")
    a(f"s_mov_b32 s{sRole}, 0")
    a(f"s_mul_i32 s{sT0}, s{sRI}, 48"); a(f"s_mul_i32 s{sT1}, s{sW}, 12"); a(f"s_add_u32 s{sT0}, s{sT0}, s{sT1}")
    a(f"v_lshrrev_b32 v{T[0]}, 4, v{vL}"); a(f"v_add_u32 v{T[0]}, s{sT0}, v{T[0]}")
    a(f"v_mul_u32_u24 v{T[0]}, 1280, v{T[0]}")
    a(f"v_and_b32 v{T[1]}, 15, v{vL}"); a(f"v_lshlrev_b32 v{T[1]}, 4, v{T[1]}"); a(f"v_add_u32 v{T[0]}, v{T[0]}, v{T[1]}")
    for gi in range(3):
        for cb in range(5):
            a(f"global_load_dwordx4 {vr(W + 4*(5*gi+cb), 4)}, v{T[0]}, {sp(pWO)} offset:{256*cb}")
        if gi < 2: a(f"v_add_u32 v{T[0]}, 5120, v{T[0]}")
    a(f"s_mov_b32 s{sWflag}, 1")
    a("s_branch L_now")
    a.label("L_wF")
    a(f"s_sub_u32 s{sT1}, s{sT1}, 16"); a(f"s_mul_i32 s{sT0}, s{sT0}, 12"); a(f"s_add_u32 s{sRI}, s{sT0}, s{sT1}")
    a(f"s_mov_b32 s{sRole}, 1")
    a(f"v_lshrrev_b32 v{T[0]}, 2, v{vL}"); a(f"s_mul_i32 s{sT0}, s{sW}, 160"); a(f"v_add_u32 v{T[0]}, s{sT0}, v{T[0]}")
    a(f"v_mul_u32_u24 v{T[0]}, 3072, v{T[0]}")
    a(f"v_and_b32 v{T[1]}, 1, v{vL}"); a(f"v_lshlrev_b32 v{T[1]}, 4, v{T[1]}"); a(f"v_add_u32 v{T[0]}, v{T[0]}, v{T[1]}")
    a(f"s_lshl_b32 s{sT0}, s{sRI}, 5"); a(f"v_add_u32 v{T[0]}, s{sT0}, v{T[0]}")
    a(f"v_mov_b32 v{T[2]}, s{pWG}"); a(f"v_mov_b32 v{T[3]}, s{pWG+1}")
    a(f"v_mov_b32 v{T[4]}, s{pWU}"); a(f"v_mov_b32 v{T[5]}, s{pWU+1}")
    a(f"v_and_b32 v{T[1]}, 2, v{vL}"); a(f"v_cmp_ne_u32 vcc, 0, v{T[1]}")
    a(f"v_cndmask_b32 v{T[2]}, v{T[2]}, v{T[4]}, vcc"); a(f"v_cndmask_b32 v{T[3]}, v{T[3]}, v{T[5]}, vcc")
    assert T[3] == 44
    a(f"v_add_co_u32 v44, vcc, v{T[2]}, v{T[0]}")
    a.lines.pop()
    a(f"v_mov_b32 v46, v{T[3]}")
    a(f"v_add_co_u32 v44, vcc, v{T[2]}, v{T[0]}")
    a(f"v_addc_co_u32 v45, vcc, 0, v46, vcc")
    for k in range(10):
        a(f"global_load_dwordx4 {vr(W + 4*k, 4)}, v[44:45], off")
        if k < 9:
            a(f"v_add_co_u32 v44, vcc, {16*3072}, v44"); a(f"v_addc_co_u32 v45, vcc, 0, v45, vcc")
    a(f"s_lshl_b32 s{sT0}, s{sRI}, 4"); a(f"s_lshl_b32 s{sT1}, s{sW}, 2"); a(f"s_add_u32 s{sT0}, s{sT0}, s{sT1}")
    a(f"v_lshrrev_b32 v{T[0]}, 4, v{vL}"); a(f"v_add_u32 v{T[0]}, s{sT0}, v{T[0]}")
    a(f"v_mul_u32_u24 v{T[0]}, 1280, v{T[0]}")
    a(f"v_and_b32 v{T[1]}, 15, v{vL}"); a(f"v_lshlrev_b32 v{T[1]}, 4, v{T[1]}"); a(f"v_add_u32 v{T[0]}, v{T[0]}, v{T[1]}")
    for cb in range(5):
        a(f"global_load_dwordx4 {vr(W + 40 + 4*cb, 4)}, v{T[0]}, {sp(pWD)} offset:{256*cb}")
    a(f"s_mov_b32 s{sWflag}, 1")
    a.label("L_now")
    allreduce("v_max_f32", vMX, T[0])
    score_addr()
    vLs = vC
    a(f"v_mov_b32 v{vLs}, 0")
    LOG2E = f32hex(1.4426950408889634)
    CH = 4
    for c0 in range(0, NIT, CH):
        ids = list(range(c0, min(NIT, c0 + CH)))
        for n in ids: a(f"ds_read_b32 v{T[n-c0]}, v{vSC} offset:{L_SC + 256*n}")
        a("s_waitcnt lgkmcnt(0)")
        for n in ids:
            t = T[n - c0]
            a(f"v_sub_f32 v{t}, v{t}, v{vMX}")
            a(f"v_mul_f32 v{t}, {LOG2E}, v{t}")
            a(f"v_exp_f32 v{t}, v{t}")
            a(f"v_add_f32 v{vLs}, v{vLs}, v{t}")
            a(f"v_cvt_pk_bf16_f32 v{t}, v{t}, v{t}")
            a(f"ds_write_b32 v{vSC}, v{t} offset:{L_SC + 256*n}")
    allreduce("v_add_f32", vLs, T[0])
    MLQ = vA
    a(f"v_mov_b32 v{MLQ}, v{vMX}"); a(f"v_mov_b32 v{MLQ+1}, v{vLs}"); a(f"v_mov_b32 v{MLQ+2}, 0"); a(f"v_mov_b32 v{MLQ+3}, 0")
    tag4(MLQ)
    a(f"s_lshl_b32 s{sT0}, s{sHead}, 11"); a(f"s_lshl_b32 s{sT1}, s{sWI}, 4"); a(f"s_add_u32 s{sT0}, s{sT0}, s{sT1}"); a(f"s_add_u32 s{sT0}, s{sT0}, {ML}")
    a(f"v_mov_b32 v{T[0]}, 0")
    set_exec(1)
    a(f"buffer_store_dwordx4 {vr(MLQ,4)}, v{T[0]}, {srd(WSR)}, s{sT0} offen sc1")
    set_exec(-1)
    for i in range(12): a(f"v_mov_b32 v{vACC+i}, 0")
    a("s_waitcnt lgkmcnt(0)")
    a(f"ds_read_b32 v{vPN}, v{vSC} offset:{L_SC}")
    def vcompute(slot, g):
        a(f"v_mov_b32_dpp v{vBC}, v{vP} row_newbcast:{g} row_mask:0xf bank_mask:0x3")
        a(f"v_mov_b32_dpp v{vBC}, v{vP} row_newbcast:{8+g} row_mask:0xf bank_mask:0xc")
        a_operand(vBC)
        for t in range(3):
            a(f"v_mfma_f32_16x16x32_bf16 {vr(vACC+4*t,4)}, {vr(vA,4)}, {ring(slot,t)}, {vr(vACC+4*t,4)}")
    def next_p():
        a("s_waitcnt lgkmcnt(0)")
        a(f"v_mov_b32 v{vP}, v{vPN}")
        a(f"v_add_u32 v{vSC}, 256, v{vSC}")
        a(f"ds_read_b32 v{vPN}, v{vSC} offset:{L_SC}")
    a(f"s_mov_b32 s{sIt}, 0")
    next_p()
    for g in range(8):
        if g < 2:
            a(f"s_cmp_eq_u32 s{sWflag}, 1"); a(f"s_cbranch_scc1 L_vw{g}")
            a("s_waitcnt vmcnt(3)" if g == 1 else "s_waitcnt vmcnt(4)")
            a.label(f"L_vw{g}")
            a(f"s_waitcnt vmcnt({3 + 15 + 1})")
        else:
            a("s_waitcnt vmcnt(3)")
        steady_issue((g + 2) % 8)
        vcompute(g, g)
    a(f"s_mov_b32 s{sIt}, 1")
    a.label("L_vloop")
    MLR = vX
    a(f"s_cmp_eq_u32 s{sIt}, {NIT-1}"); a("s_cbranch_scc0 L_vnoml")
    def ml_issue():
        a(f"s_lshl_b32 s{sT0}, s{sHead}, 11"); a(f"s_add_u32 s{sT0}, s{sT0}, {ML}")
        a(f"v_min_u32 v{T[1]}, {NWH-1}, v{vL}"); a(f"v_lshlrev_b32 v{T[1]}, 4, v{T[1]}")
        a(f"buffer_load_dwordx4 {vr(MLR,4)}, v{T[1]}, {srd(WSR)}, s{sT0} offen sc1")
        if NWH > 64:
            a(f"buffer_load_dwordx4 {vr(MLR+4,4)}, v{T[1]}, {srd(WSR)}, s{sT0} offen offset:1024 sc1")
    ml_issue()
    a(f"s_getpc_b64 {sp(58)}")
    a.label("L_pc2")
    a(f"v_lshlrev_b32 v{T[1]}, 6, v0")
    a(f"v_add_u32 v{T[1]}, L_tailstart-L_pc2, v{T[1]}")
    a(f"v_min_u32 v{T[1]}, L_codeend-L_pc2-4, v{T[1]}")
    a(f"global_load_dword v{T[2]}, v{T[1]}, {sp(58)}")
    a.label("L_vnoml")
    next_p()
    for g in range(8):
        a("s_waitcnt vmcnt(3)")
        if g == 6: switch_to_nextK()
        steady_issue((g + 2) % 8)
        vcompute(g, g)
    a(f"s_add_u32 s{sIt}, s{sIt}, 1")
    a(f"s_cmp_lt_u32 s{sIt}, {NIT}")
    a("s_cbranch_scc1 L_vloop")

    a.label("L_tailstart")
    def ml_check():
        check4(MLR, T[0], T[2], True)
        if NWH > 64: check4(MLR + 4, T[0], T[2], False)
    ml_check()
    a(f"s_cmp_eq_u64 {sp(sBad)}, 0"); a("s_cbranch_scc1 L_mlok")
    poll(ml_issue, ml_check)
    a.label("L_mlok")
    mm, ll = MLR, MLR + 1
    a(f"v_and_b32 v{mm}, 0xffffff00, v{mm}"); a(f"v_and_b32 v{ll}, 0xffffff00, v{ll}")
    if NWH > 64:
        a(f"v_and_b32 v{MLR+4}, 0xffffff00, v{MLR+4}"); a(f"v_and_b32 v{MLR+5}, 0xffffff00, v{MLR+5}")
        a(f"v_max_f32 v{T[0]}, v{mm}, v{MLR+4}")
    else:
        a(f"v_mov_b32 v{T[0]}, v{mm}")
    allreduce("v_max_f32", T[0], T[1])
    a(f"v_sub_f32 v{T[2]}, v{mm}, v{T[0]}"); a(f"v_mul_f32 v{T[2]}, {LOG2E}, v{T[2]}"); a(f"v_exp_f32 v{T[2]}, v{T[2]}")
    a(f"v_mul_f32 v{T[2]}, v{T[2]}, v{ll}")
    if NWH > 64:
        a(f"v_sub_f32 v{T[3]}, v{MLR+4}, v{T[0]}"); a(f"v_mul_f32 v{T[3]}, {LOG2E}, v{T[3]}"); a(f"v_exp_f32 v{T[3]}, v{T[3]}")
        a(f"v_fmac_f32 v{T[2]}, v{T[3]}, v{MLR+5}")
    elif NWH < 64:
        a(f"v_cmp_gt_u32 vcc, {NWH}, v{vL}"); a(f"v_cndmask_b32 v{T[2]}, 0, v{T[2]}, vcc")
    allreduce("v_add_f32", T[2], T[1])
    a(f"v_sub_f32 v{T[3]}, v{vMX}, v{T[0]}"); a(f"v_mul_f32 v{T[3]}, {LOG2E}, v{T[3]}"); a(f"v_exp_f32 v{T[3]}, v{T[3]}")
    a(f"v_rcp_f32 v{T[2]}, v{T[2]}")
    a(f"v_mul_f32 v{T[3]}, v{T[3]}, v{T[2]}")
    for i in range(12): a(f"v_mul_f32 v{vACC+i}, v{vACC+i}, v{T[3]}")
    red_addr(); red_write()
    a("s_waitcnt lgkmcnt(0)"); a("s_barrier")
    a(f"s_cmp_lg_u32 s{sW}, 0"); a("s_cbranch_scc1 L_pubdone")
    S4 = vX + 8
    a(f"v_lshlrev_b32 v{T[0]}, 4, v{vL}")
    set_exec("0x0000ffffffffffff")
    bufs = [vACC, vACC + 4, vACC + 8, vQ, vQ + 4, vQ + 8, MLR, MLR + 4]
    for s in range(8): a(f"ds_read_b128 {vr(bufs[s],4)}, v{T[0]} offset:{L_RED + 768*s}")
    a("s_waitcnt lgkmcnt(0)")
    for s in range(1, 8):
        for i in range(4): a(f"v_add_f32 v{vACC+i}, v{vACC+i}, v{bufs[s]+i}")
    tag4(vACC)
    a(f"v_mul_u32_u24 v{T[1]}, 43691, v{vL}"); a(f"v_lshrrev_b32 v{T[1]}, 19, v{T[1]}")
    a(f"v_mul_u32_u24 v{T[2]}, 12, v{T[1]}"); a(f"v_sub_u32 v{T[2]}, v{vL}, v{T[2]}")
    a(f"v_mul_u32_u24 v{T[1]}, {WPH*192}, v{T[1]}"); a(f"v_lshlrev_b32 v{T[2]}, 4, v{T[2]}"); a(f"v_add_u32 v{T[1]}, v{T[1]}, v{T[2]}")
    a(f"s_mul_i32 s{sT0}, s{sHead}, {4*WPH*192}"); a(f"s_mul_i32 s{sT1}, s{sJ}, 192"); a(f"s_add_u32 s{sT0}, s{sT0}, s{sT1}"); a(f"s_add_u32 s{sT0}, s{sT0}, {OP}")
    a(f"buffer_store_dwordx4 {vr(vACC,4)}, v{T[1]}, {srd(WSR)}, s{sT0} offen sc1")
    set_exec(-1)
    a.label("L_pubdone")
    if nph > 1:
        a(f"s_cmp_eq_u32 s{sPh}, {nph-1}"); a("s_cbranch_scc1 L_tail")
        a("s_barrier")
        a(f"s_add_u32 s{sPh}, s{sPh}, 1"); a(f"s_add_u32 s{sHead}, s{sHead}, {H}")
        load_q(); score_addr()
        a(f"v_mov_b32 v{vMX}, 0xff800000")
        a(f"s_mov_b32 s{sIt}, 0")
        a("s_branch L_kloop")
    a.label("L_tail")
    for g in range(8): pass
    a(f"s_cmp_eq_u32 s{sRole}, 1"); a("s_cbranch_scc1 L_roleF")
    a(f"s_cmp_eq_u32 s{sRole}, 2"); a("s_cbranch_scc1 L_roleR")

    def rowproj(ngroups, wbase, srcs, dstbase, nsrc):
        for i in range(20): a(f"v_mov_b32 v{vX+i}, 0")
        for gi in range(ngroups):
            a_operand(srcs[gi])
            for cb in range(5):
                a(f"v_mfma_f32_16x16x32_bf16 {vr(vX+4*cb,4)}, {vr(vA,4)}, {vr(wbase + 4*(5*gi+cb),4)}, {vr(vX+4*cb,4)}")
        a(f"v_lshrrev_b32 v{T[0]}, 5, v{vL}"); a(f"v_lshlrev_b32 v{T[0]}, 8, v{T[0]}")
        a(f"v_and_b32 v{T[1]}, 7, v{vL}"); a(f"v_lshlrev_b32 v{T[1]}, 5, v{T[1]}"); a(f"v_add_u32 v{T[0]}, v{T[0]}, v{T[1]}")
        a(f"v_and_b32 v{T[1]}, 16, v{vL}"); a(f"v_add_u32 v{T[0]}, v{T[0]}, v{T[1]}")
        a(f"s_mul_i32 s{sT0}, s{sW}, 2560"); a(f"v_add_u32 v{T[0]}, s{sT0}, v{T[0]}")
        a("s_barrier")
        set_exec(USEFUL)
        for cb in range(5): a(f"ds_write_b128 v{T[0]}, {vr(vX+4*cb,4)} offset:{L_RED + 512*cb}")
        set_exec(-1)
        a("s_waitcnt lgkmcnt(0)"); a("s_barrier")
        lab[0] += 1; n = lab[0]
        a(f"v_cmp_gt_u32 vcc, 160, v0"); a(f"s_and_saveexec_b64 {sp(sE)}, vcc"); a(f"s_cbranch_execz L_rpd{n}")
        a(f"v_lshlrev_b32 v{T[0]}, 4, v0")
        for s in range(4): a(f"ds_read_b128 {vr(vX+4*s,4)}, v{T[0]} offset:{L_RED + 2560*s}")
        a("s_waitcnt lgkmcnt(0)")
        for s in range(1, 4):
            for i in range(4): a(f"v_add_f32 v{vX+i}, v{vX+i}, v{vX+4*s+i}")
        tag4(vX)
        a(f"v_lshrrev_b32 v{T[1]}, 3, v0"); a(f"v_mul_u32_u24 v{T[1]}, {nsrc*128}, v{T[1]}")
        a(f"v_and_b32 v{T[2]}, 7, v0"); a(f"v_lshlrev_b32 v{T[2]}, 4, v{T[2]}"); a(f"v_add_u32 v{T[1]}, v{T[1]}, v{T[2]}")
        a(f"s_lshl_b32 s{sT0}, s{sRI}, 7"); a(f"s_add_u32 s{sT0}, s{sT0}, {dstbase}")
        a(f"buffer_store_dwordx4 {vr(vX,4)}, v{T[1]}, {srd(WSR)}, s{sT0} offen sc1")
        a.label(f"L_rpd{n}")
        a(f"s_mov_b64 exec, {sp(sE)}")

    RB = RING
    a("s_waitcnt vmcnt(0)")
    NL = WPH // 4
    a(f"s_lshr_b32 s{sT0}, s{sRI}, 2"); a(f"s_and_b32 s{sT1}, s{sRI}, 3")
    a(f"s_lshl_b32 s{sT0}, s{sT0}, 2"); a(f"s_add_u32 s{sT0}, s{sT0}, s{sT1}"); a(f"s_mul_i32 s{sT0}, s{sT0}, {WPH*192}"); a(f"s_add_u32 s{sU}, s{sT0}, {OP}")
    a(f"v_lshrrev_b32 v{T[3]}, 4, v{vL}"); a(f"v_mul_u32_u24 v{T[3]}, 192, v{T[3]}")
    a(f"v_and_b32 v{T[4]}, 15, v{vL}"); a(f"v_min_u32 v{T[4]}, 11, v{T[4]}"); a(f"v_lshlrev_b32 v{T[4]}, 4, v{T[4]}"); a(f"v_add_u32 v{T[3]}, v{T[3]}, v{T[4]}")
    def o_iss():
        for k in range(NL):
            a(f"s_add_u32 s{sT1}, s{sU}, {768*k}")
            a(f"buffer_load_dwordx4 {vr(RB+4*k,4)}, v{T[3]}, {srd(WSR)}, s{sT1} offen sc1")
    def o_chk():
        for k in range(NL): check4(RB + 4*k, T[0], T[1], k == 0)
    poll(o_iss, o_chk)
    for k in range(NL):
        for i in range(4): a(f"v_and_b32 v{RB+4*k+i}, 0xffffff00, v{RB+4*k+i}")
    for k in range(1, NL):
        for i in range(4): a(f"v_add_f32 v{RB+i}, v{RB+i}, v{RB+4*k+i}")
    for i in range(4): rows_reduce("v_add_f32", RB + i, T[0])
    for i in range(4): rne(RB + i, RB + i)
    a(f"v_lshrrev_b32 v{T[0]}, 4, v{vL}")
    a(f"v_mov_b32 v{T[1]}, v{RB}")
    for g in range(1, 4):
        a(f"v_cmp_eq_u32 vcc, {g}, v{T[0]}"); a(f"v_cndmask_b32 v{T[1]}, v{T[1]}, v{RB+g}, vcc")
    a(f"v_lshrrev_b32 v{T[2]}, 16, v{T[1]}"); a(f"v_or_b32 v{T[1]}, v{T[1]}, v{T[2]}")
    a(f"v_and_b32 v{T[0]}, 48, v{vL}"); a(f"s_mul_i32 s{sT0}, s{sW}, 3"); a(f"v_add_u32 v{T[0]}, s{sT0}, v{T[0]}"); a(f"v_lshlrev_b32 v{T[0]}, 2, v{T[0]}")
    for gi in range(3):
        a(f"ds_bpermute_b32 v{RB+8+gi}, v{T[0]}, v{T[1]}")
        a(f"v_add_u32 v{T[0]}, 4, v{T[0]}")
    a("s_waitcnt lgkmcnt(0)")
    rowproj(3, W, [RB+8, RB+9, RB+10], ZZ, 128)
    a("s_branch L_end")

    HV = RB
    HN = RB + 12
    HPK = RB + 24
    def gather_h():
        a(f"v_lshlrev_b32 v{T[3]}, 4, v{vL}")
        a(f"v_add_u32 v{T[4]}, 2048, v{T[3]}"); a(f"v_min_u32 v{T[4]}, 2544, v{T[4]}")
        a(f"s_mov_b32 s{sU}, {HH}")
        def iss():
            a(f"buffer_load_dwordx4 {vr(HV,4)}, v{T[3]}, {srd(WSR)}, s{sU} offen sc1")
            a(f"buffer_load_dwordx4 {vr(HV+4,4)}, v{T[3]}, {srd(WSR)}, s{sU} offen offset:1024 sc1")
            a(f"buffer_load_dwordx4 {vr(HV+8,4)}, v{T[4]}, {srd(WSR)}, s{sU} offen sc1")
        def chk():
            for k in range(3): check4(HV + 4*k, T[0], T[1], k == 0)
        poll(iss, chk)
        for i in range(12): a(f"v_and_b32 v{HV+i}, 0xffff0000, v{HV+i}")
        a(f"v_cmp_gt_u32 vcc, 32, v{vL}")
        for i in range(8, 12): a(f"v_cndmask_b32 v{HV+i}, 0, v{HV+i}, vcc")
        for i in range(12): a(f"v_mov_b32 v{HN+i}, v{HV+i}")
        layernorm(HN, T[0:5], HPK)

    a.label("L_roleF")
    a("s_waitcnt vmcnt(0)")
    gather_h()
    write_xn(HPK)
    FM0, FM1 = RB + 32, RB + 33
    a(f"v_and_b32 v{T[0]}, 3, v{vL}")
    a(f"v_mov_b32 v{FM0}, 0"); a(f"v_mov_b32 v{FM1}, 0")
    for i, (m, val) in enumerate(((FM0, "0xffff"), (FM0, "0xffff0000"), (FM1, "0xffff"), (FM1, "0xffff0000"))):
        a(f"v_mov_b32 v{T[1]}, {val}"); a(f"v_cmp_eq_u32 vcc, {i}, v{T[0]}"); a(f"v_cndmask_b32 v{m}, v{m}, v{T[1]}, vcc")
    a(f"v_lshrrev_b32 v{T[0]}, 2, v{vL}"); a(f"s_mul_i32 s{sT0}, s{sW}, 160"); a(f"v_add_u32 v{T[0]}, s{sT0}, v{T[0]}"); a(f"v_lshlrev_b32 v{T[0]}, 1, v{T[0]}")
    a(f"s_mul_i32 s{sT0}, s{sW}, 1280"); a(f"v_add_u32 v{T[0]}, s{sT0}, v{T[0]}")
    HR = RB + 36
    a("s_waitcnt lgkmcnt(0)")
    for k in range(10): a(f"ds_read_u16 v{HR+k}, v{T[0]} offset:{L_XN + 32*k}")
    DA, DB = RB + 48, RB + 52
    for i in range(8): a(f"v_mov_b32 v{DA+i}, 0")
    a("s_waitcnt lgkmcnt(0)")
    for k in range(10):
        a(f"v_lshl_or_b32 v{HR+k}, v{HR+k}, 16, v{HR+k}")
        a(f"v_and_b32 v{vA}, v{HR+k}, v{FM0}"); a(f"v_and_b32 v{vA+1}, v{HR+k}, v{FM1}")
        a(f"v_mfma_f32_4x4x4_16b_bf16 {vr(DA,4)}, {vr(vA,2)}, {vr(W+4*k,2)}, {vr(DA,4)}")
        a(f"v_mfma_f32_4x4x4_16b_bf16 {vr(DB,4)}, {vr(vA,2)}, {vr(W+4*k+2,2)}, {vr(DB,4)}")
    for i in range(8):
        a(f"v_add_f32_dpp v{DA+i}, v{DA+i}, v{DA+i} row_ror:4 row_mask:0xf bank_mask:0xf")
    for i in range(8):
        a(f"v_add_f32_dpp v{DA+i}, v{DA+i}, v{DA+i} row_ror:8 row_mask:0xf bank_mask:0xf")
    a(f"v_lshrrev_b32 v{T[0]}, 4, v{vL}"); a(f"s_lshl_b32 s{sT0}, s{sW}, 2"); a(f"v_add_u32 v{T[0]}, s{sT0}, v{T[0]}"); a(f"v_lshlrev_b32 v{T[0]}, 7, v{T[0]}")
    a(f"v_and_b32 v{T[1]}, 3, v{vL}"); a(f"v_lshlrev_b32 v{T[1]}, 5, v{T[1]}"); a(f"v_add_u32 v{T[0]}, v{T[0]}, v{T[1]}")
    a("s_barrier")
    set_exec("0x000f000f000f000f")
    a(f"ds_write_b128 v{T[0]}, {vr(DA,4)} offset:{L_RED}")
    a(f"ds_write_b128 v{T[0]}, {vr(DB,4)} offset:{L_RED+16}")
    set_exec(-1)
    a("s_waitcnt lgkmcnt(0)"); a("s_barrier")
    a(f"v_and_b32 v{T[0]}, 31, v{vL}"); a(f"v_lshlrev_b32 v{T[0]}, 2, v{T[0]}")
    a(f"v_lshrrev_b32 v{T[1]}, 5, v{vL}"); a(f"v_lshlrev_b32 v{T[1]}, 10, v{T[1]}"); a(f"v_add_u32 v{T[0]}, v{T[0]}, v{T[1]}")
    for s in range(8): a(f"ds_read_b32 v{HR+s}, v{T[0]} offset:{L_RED + 128*s}")
    a("s_waitcnt lgkmcnt(0)")
    for s in range(1, 8): a(f"v_add_f32 v{HR}, v{HR}, v{HR+s}")
    a(f"v_mov_b32 v{T[0]}, v{HR}"); a(f"v_permlane32_swap_b32 v{T[0]}, v{HR}"); a(f"v_add_f32 v{HR}, v{HR}, v{T[0]}")
    rne(HR, HR)
    a(f"v_mov_b32 v{T[0]}, v{HR}"); a(f"v_permlane16_swap_b32 v{T[0]}, v{HR}")
    a(f"v_mul_f32 v{T[1]}, {f32hex(-1.4426950408889634)}, v{T[0]}"); a(f"v_min_f32 v{T[1]}, 0x42fc0000, v{T[1]}"); a(f"v_exp_f32 v{T[1]}, v{T[1]}")
    a(f"v_add_f32 v{T[1]}, 1.0, v{T[1]}"); a(f"v_rcp_f32 v{T[2]}, v{T[1]}")
    a(f"v_mul_f32 v{T[3]}, v{T[0]}, v{T[2]}"); a(f"v_fma_f32 v{T[4]}, -v{T[3]}, v{T[1]}, v{T[0]}"); a(f"v_fma_f32 v{T[3]}, v{T[4]}, v{T[2]}, v{T[3]}")
    rne(T[3], T[3])
    a(f"v_mul_f32 v{T[3]}, v{T[3]}, v{HR}")
    a(f"v_cvt_pk_bf16_f32 v{T[3]}, v{T[3]}, v{T[3]}")
    a(f"v_lshrrev_b32 v{T[0]}, 4, v{vL}"); a(f"s_lshl_b32 s{sT0}, s{sW}, 2"); a(f"v_add_u32 v{T[0]}, s{sT0}, v{T[0]}"); a(f"v_lshlrev_b32 v{T[0]}, 2, v{T[0]}")
    a(f"ds_bpermute_b32 v{HR+1}, v{T[0]}, v{T[3]}")
    a("s_waitcnt lgkmcnt(0)")
    rowproj(1, W + 40, [HR+1], YY, 96)
    a("s_branch L_end")

    a.label("L_roleR")
    a(f"s_cmp_ge_u32 s{sRI}, 20"); a("s_cbranch_scc1 L_end")
    a("s_waitcnt vmcnt(0)")
    RS = RB + 40
    def reduce_parts(base, nsrc, nld):
        a(f"s_mul_i32 s{sU}, s{sRI}, {nsrc*128}"); a(f"s_add_u32 s{sU}, s{sU}, {base}")
        a(f"v_lshlrev_b32 v{T[3]}, 4, v0")
        def iss():
            for k in range(nld):
                a(f"s_add_u32 s{sT1}, s{sU}, {4096*k}")
                a(f"buffer_load_dwordx4 {vr(RS+4*k,4)}, v{T[3]}, {srd(WSR)}, s{sT1} offen sc1")
        def chk():
            for k in range(nld): check4(RS + 4*k, T[0], T[1], k == 0)
        poll(iss, chk)
        for k in range(nld):
            for i in range(4): a(f"v_and_b32 v{RS+4*k+i}, 0xffffff00, v{RS+4*k+i}")
        for k in range(1, nld):
            for i in range(4): a(f"v_add_f32 v{RS+i}, v{RS+i}, v{RS+4*k+i}")
        for i in range(4): a(f"v_add_f32_dpp v{RS+i}, v{RS+i}, v{RS+i} row_ror:8 row_mask:0xf bank_mask:0xf")
        for i in range(4): rows_reduce("v_add_f32", RS + i, T[0])
        a(f"v_and_b32 v{T[0]}, 7, v{vL}"); a(f"v_lshlrev_b32 v{T[0]}, 4, v{T[0]}")
        a(f"s_lshl_b32 s{sT0}, s{sW}, 7"); a(f"v_add_u32 v{T[1]}, s{sT0}, v{T[0]}")
        a("s_barrier")
        set_exec("0x00000000000000ff")
        a(f"ds_write_b128 v{T[1]}, {vr(RS,4)} offset:{L_RED}")
        set_exec(-1)
        a("s_waitcnt lgkmcnt(0)"); a("s_barrier")
        for s in range(4): a(f"ds_read_b128 {vr(RS+4*s,4)}, v{T[0]} offset:{L_RED + 128*s}")
        a("s_waitcnt lgkmcnt(0)")
        for s in range(1, 4):
            for i in range(4): a(f"v_add_f32 v{RS+i}, v{RS+i}, v{RS+4*s+i}")
    XS = RB + 60
    a(f"v_and_b32 v{T[0]}, 7, v{vL}"); a(f"v_lshlrev_b32 v{T[0]}, 3, v{T[0]}"); a(f"s_lshl_b32 s{sT0}, s{sRI}, 6"); a(f"v_add_u32 v{T[0]}, s{sT0}, v{T[0]}")
    a(f"global_load_dwordx2 {vr(XS+4,2)}, v{T[0]}, {sp(pX)}")
    WR = RB + 68
    a(f"v_lshlrev_b32 v{T[1]}, 3, v{vL}"); a(f"v_add_u32 v{T[2]}, 1024, v{T[1]}"); a(f"v_min_u32 v{T[2]}, 1272, v{T[2]}")
    a(f"global_load_dwordx2 {vr(WR,2)}, v{T[1]}, {sp(pWR)}")
    a(f"global_load_dwordx2 {vr(WR+2,2)}, v{T[1]}, {sp(pWR)} offset:512")
    a(f"global_load_dwordx2 {vr(WR+4,2)}, v{T[2]}, {sp(pWR)}")
    reduce_parts(ZZ, 128, 4)
    for h in range(2):
        a(f"v_lshlrev_b32 v{XS+2*h}, 16, v{XS+4+h}"); a(f"v_and_b32 v{XS+2*h+1}, 0xffff0000, v{XS+4+h}")
    for i in range(4):
        rne(RS + i, RS + i)
        a(f"v_add_f32 v{XS+i}, v{XS+i}, v{RS+i}")
        rne(XS + i, XS + i)
        a(f"v_mov_b32 v{RS+i}, v{XS+i}")
    tag4(RS)
    a(f"s_cmp_lg_u32 s{sW}, 0"); a("s_cbranch_scc1 L_rnopub")
    a(f"v_lshlrev_b32 v{T[0]}, 4, v{vL}"); a(f"s_lshl_b32 s{sT0}, s{sRI}, 7"); a(f"s_add_u32 s{sT0}, s{sT0}, {HH}")
    set_exec("0x00000000000000ff")
    a(f"buffer_store_dwordx4 {vr(RS,4)}, v{T[0]}, {srd(WSR)}, s{sT0} offen sc1")
    set_exec(-1)
    a.label("L_rnopub")
    gather_h()
    a(f"v_mov_b32 v{T[0]}, 0")
    for k in range(3):
        for h in range(2):
            a(f"v_lshlrev_b32 v{T[1]}, 16, v{WR+2*k+h}"); a(f"v_and_b32 v{T[2]}, 0xffff0000, v{WR+2*k+h}")
            if k == 2:
                a(f"v_cmp_gt_u32 vcc, 32, v{vL}"); a(f"v_cndmask_b32 v{T[1]}, 0, v{T[1]}, vcc"); a(f"v_cndmask_b32 v{T[2]}, 0, v{T[2]}, vcc")
            a(f"v_fmac_f32 v{T[0]}, v{T[1]}, v{HN+4*k+2*h}"); a(f"v_fmac_f32 v{T[0]}, v{T[2]}, v{HN+4*k+2*h+1}")
    allreduce("v_add_f32", T[0], T[1])
    rne(T[0], T[0])
    a(f"v_mul_f32 v{T[1]}, {f32hex(-1.4426950408889634)}, v{T[0]}"); a(f"v_min_f32 v{T[1]}, 0x42fc0000, v{T[1]}"); a(f"v_exp_f32 v{T[1]}, v{T[1]}")
    a(f"v_add_f32 v{T[1]}, 1.0, v{T[1]}"); a(f"v_rcp_f32 v{T[2]}, v{T[1]}")
    a(f"v_fma_f32 v{T[4]}, -v{T[2]}, v{T[1]}, 1.0"); a(f"v_fma_f32 v{T[2]}, v{T[4]}, v{T[2]}, v{T[2]}")
    SIG = RB + 76
    rne(SIG, T[2])
    HS = RB + 80
    a(f"s_lshl_b32 s{sT0}, s{sRI}, 3"); a(f"s_lshr_b32 s{sT1}, s{sT0}, 6"); a(f"s_and_b32 s{sT0}, s{sT0}, 63")
    a(f"v_and_b32 v{T[0]}, 7, v{vL}"); a(f"v_add_u32 v{T[0]}, s{sT0}, v{T[0]}"); a(f"v_lshlrev_b32 v{T[0]}, 2, v{T[0]}")
    for i in range(4): a(f"v_mov_b32 v{HS+i}, v{HN+i}")
    a(f"s_cmp_eq_u32 s{sT1}, 0"); a("s_cbranch_scc1 L_hs")
    for i in range(4): a(f"v_mov_b32 v{HS+i}, v{HN+4+i}")
    a(f"s_cmp_eq_u32 s{sT1}, 1"); a("s_cbranch_scc1 L_hs")
    for i in range(4): a(f"v_mov_b32 v{HS+i}, v{HN+8+i}")
    a.label("L_hs")
    for i in range(4): a(f"ds_bpermute_b32 v{HS+i}, v{T[0]}, v{HS+i}")
    a("s_waitcnt lgkmcnt(0)")
    reduce_parts(YY, 96, 3)
    for i in range(4):
        rne(RS + i, RS + i)
        a(f"v_mul_f32 v{RS+i}, v{RS+i}, v{SIG}"); rne(RS + i, RS + i)
        a(f"v_add_f32 v{RS+i}, v{RS+i}, v{HS+i}"); rne(RS + i, RS + i)
        a(f"v_add_f32 v{RS+i}, v{RS+i}, v{XS+i}")
    if perturb:
        a(f"v_add_f32 v{RS}, {f32hex(perturb)}, v{RS}")
    a(f"v_cvt_pk_bf16_f32 v{RS}, v{RS}, v{RS+1}"); a(f"v_cvt_pk_bf16_f32 v{RS+1}, v{RS+2}, v{RS+3}")
    a(f"s_cmp_lg_u32 s{sW}, 0"); a("s_cbranch_scc1 L_end")
    a(f"v_lshlrev_b32 v{T[0]}, 3, v{vL}"); a(f"s_lshl_b32 s{sT0}, s{sRI}, 6"); a(f"v_add_u32 v{T[0]}, s{sT0}, v{T[0]}")
    set_exec("0x00000000000000ff")
    a(f"global_store_dwordx2 v{T[0]}, {vr(RS,2)}, {sp(pOUT)}")
    a(f"s_cmp_lg_u32 s{sRI}, 0"); a("s_cbranch_scc1 L_end")
    set_exec(1)
    a(f"v_mov_b32 v{T[1]}, 0")
    a(f"buffer_store_dword v{vN}, v{T[1]}, {srd(WSR)}, 0 offen offset:{EPOCH}")
    a("s_branch L_end")
    a.label("L_abort")
    a.label("L_end")
    a("s_endpgm")
    a.label("L_codeend")
    body = a.text()
    tail = f""".section .rodata,"a"
.p2align 6
.amdhsa_kernel {NAME}
  .amdhsa_next_free_vgpr {NV}
  .amdhsa_next_free_sgpr 100
  .amdhsa_accum_offset {NV}
  .amdhsa_group_segment_fixed_size 0
  .amdhsa_kernarg_size 104
  .amdhsa_user_sgpr_count 2
  .amdhsa_user_sgpr_kernarg_segment_ptr 1
  .amdhsa_system_sgpr_workgroup_id_x 1
.end_amdhsa_kernel
"""
    lines = body.split('\n')
    return body + tail

if __name__ == "__main__":
    kw = json.loads(sys.argv[1]) if len(sys.argv) > 1 else {}
    sys.stdout.write(gen(**kw))
```

```python
import sys, json, struct
from asmlib import Asm

NAME = "sequential_preLN__mha_block_cached__moe_arch_mod__decode_kernel"
def f32hex(x): return "0x%08x" % struct.unpack("<I", struct.pack("<f", x))[0]

HB = 12582912
EPOCH = 0
QP = 0x1000
ML = 0x48000
OP = 0x60000
ZZ = 0x130000
HH = 0x180000
YY = 0x181000
WS_SIZE = 0x200000
L_XN = 0
L_Q = 5120
L_RED = 6656
L_RED2 = 12800
L_RED3 = 23040
L_SC = 25088
LDS_BYTES = 25088 + 16384 + 512
LOG2E = 1.4426950408889634

def gen(H=32, PK=13, lds=LDS_BYTES, dbg=0, pol="nt", spin=1 << 19, codepf=1):
    nph = 32 // H
    WPH = 256 // H
    NWH = WPH * 4
    G = 4096 // NWH
    NIT = G // 8
    STRIDE = NWH * 3072
    assert 2 <= PK <= 13 and NIT >= 4
    a = Asm()

    vL, vSA, vN = 1, 2, 3
    vM = [4, 5, 6, 7]; vA = 8
    vQ = 12
    vACC = 24
    vC, vMX, vP, vPN, vBC = 36, 37, 38, 39, 40
    T = list(range(41, 48))
    RING = 48
    W = 144
    vX = 204
    vLS, vAL, vRA, vOPA, WA, WB = 224, 225, 226, 227, 228, 230
    NV = 232
    vST = 232
    if dbg: NV = 240
    def ring(slot, t): b = RING + slot * 12 + 4 * t; return f"v[{b}:{b+3}]"
    def vr(b, n): return f"v[{b}:{b+n-1}]"
    sW = 3
    pX, pK, pV, pWQ, pWO, pBX, pWR, pWG, pWU, pWD, pOUT, pDBG, pWS = [4 + 2 * i for i in range(13)]
    STR, WSR, TMP = 32, 36, 40
    sOff, sIt, sHead, sWI, sPh, sNon, sRole, sRI = 44, 45, 46, 47, 48, 49, 50, 51
    sSel = 52
    sSelG = 56
    sT0, sT1, sT2, sT3 = 57, 58, 59, 60
    sInc = 61
    sMask = 62
    sSlot, sJ, sInc4, sSpin = 78, 79, 80, 81
    sE = 82
    sBad = 84
    sU, sU2 = 86, 87
    sRow = 90
    sPkSel = 96
    def sp(b): return f"s[{b}:{b+1}]"
    def srd(b): return f"s[{b}:{b+3}]"
    USEFUL = "0xFF00FF0000FF00FF"

    def stamp(k):
        if not dbg: return
        a("s_memrealtime s[88:89]"); a("s_waitcnt lgkmcnt(0)"); a(f"v_writelane_b32 v{vST}, s88, {k}")
    def dump_stamps(helper=False):
        if not dbg: return
        stamp(15)
        a("s_mov_b32 exec_lo, -1"); a("s_mov_b32 exec_hi, 0")
        if helper: a("s_add_u32 s88, s2, 1024")
        else: a(f"s_lshl_b32 s88, s2, 2"); a(f"s_add_u32 s88, s88, s{sW}")
        a("s_lshl_b32 s88, s88, 7"); a(f"s_add_u32 s88, s88, {WS_SIZE}")
        a(f"v_lshlrev_b32 v{vST+1}, 2, v{vL}")
        a(f"buffer_store_dword v{vST}, v{vST+1}, {srd(WSR)}, s88 offen")

    DPP4 = ("quad_perm:[1,0,3,2]", "quad_perm:[2,3,0,1]", "row_half_mirror", "row_mirror")
    def dpp(op, v, m): a(f"{op}_dpp v{v}, v{v}, v{v} {m} row_mask:0xf bank_mask:0xf")
    def swap_reduce(ops_vs, tmps, sw):
        for (op, v), t in zip(ops_vs, tmps): a(f"v_mov_b32 v{t}, v{v}")
        for (op, v), t in zip(ops_vs, tmps): a(f"{sw} v{t}, v{v}")
        for (op, v), t in zip(ops_vs, tmps): a(f"{op} v{v}, v{v}, v{t}")
    def allreduce_n(ops_vs, tmps):
        for m in DPP4:
            for op, v in ops_vs: dpp(op, v, m)
        swap_reduce(ops_vs, tmps, "v_permlane16_swap_b32")
        swap_reduce(ops_vs, tmps, "v_permlane32_swap_b32")
    def allreduce(op, v, t): allreduce_n([(op, v)], [t])
    def set_exec(val):
        if isinstance(val, str) and val.startswith("0x") and len(val) > 10:
            a(f"s_mov_b32 exec_lo, 0x{val[-8:]}"); a(f"s_mov_b32 exec_hi, 0x{val[2:-8]}")
        else:
            a(f"s_mov_b64 exec, {val}")
    def a_operand(src, dst=None):
        dst = vA if dst is None else dst
        for r in range(4): a(f"v_and_b32 v{dst+r}, v{src}, v{vM[r]}")
    def tag4(b):
        for r in range(4): a(f"v_perm_b32 v{b+r}, v{b+r}, v{vN}, s{sSel+r}")
    def check4(b, t0, t1, first):
        a(f"v_perm_b32 v{t0}, v{b+1}, v{b}, s{sSelG}")
        a(f"v_perm_b32 v{t1}, v{b+3}, v{b+2}, s{sSelG}")
        a(f"v_lshl_or_b32 v{t0}, v{t1}, 16, v{t0}")
        a(f"v_cmp_ne_u32 vcc, v{t0}, v{vN}")
        if first: a(f"s_mov_b64 {sp(sBad)}, vcc")
        else: a(f"s_or_b64 {sp(sBad)}, {sp(sBad)}, vcc")
    lab = [0]
    def newlab():
        lab[0] += 1; return lab[0]
    def poll(issue, check, pre=None, first_issued=False, first_wait=0):
        n = newlab()
        a(f"s_mov_b32 s{sSpin}, {spin}")
        if not first_issued: issue()
        if pre: pre()
        a(f"s_waitcnt vmcnt({first_wait})")
        a(f"s_branch L_pollchk{n}")
        a.label(f"L_poll{n}")
        a(f"s_sub_u32 s{sSpin}, s{sSpin}, 1")
        a(f"s_cmp_eq_u32 s{sSpin}, 0")
        a("s_cbranch_scc1 L_abort")
        issue()
        a("s_waitcnt vmcnt(0)")
        a.label(f"L_pollchk{n}")
        check()
        a(f"s_cmp_lg_u64 {sp(sBad)}, 0")
        a(f"s_cbranch_scc1 L_poll{n}")
    def rne(dst, src):
        a(f"v_cvt_pk_bf16_f32 v{dst}, v{src}, v{src}")
        a(f"v_lshlrev_b32 v{dst}, 16, v{dst}")
    def pkadd(d, x, y): a(f"v_pk_add_f32 {vr(d,2)}, {vr(x,2)}, {vr(y,2)}")
    def sum_quads(dst, srcs):
        for s in srcs:
            pkadd(dst, dst, s); pkadd(dst + 2, dst + 2, s + 2)

    def ln_consts(s1, s2, t):
        a(f"v_mul_f32 v{s1}, {f32hex(1.0/640)}, v{s1}")
        a(f"v_mul_f32 v{s2}, {f32hex(1.0/640)}, v{s2}")
        a(f"v_fma_f32 v{s2}, -v{s1}, v{s1}, v{s2}")
        a(f"v_max_f32 v{s2}, 0, v{s2}")
        rne(s2, s2)
        a(f"v_add_f32 v{s2}, {f32hex(1e-5)}, v{s2}")
        rne(s2, s2)
        rne(s1, s1)
        a(f"v_sqrt_f32 v{s2}, v{s2}")
        rne(s2, s2)

    def layernorm_full(val, pk, tmp, refine):
        t0, t1, t2, t3, t4 = tmp
        ONES = t4
        a(f"v_mov_b32 v{ONES}, 0x3f803f80")
        a(f"v_dot2_f32_bf16 v{t0}, v{pk}, v{ONES}, 0"); a(f"v_dot2_f32_bf16 v{t1}, v{pk}, v{pk}, 0")
        for i in range(1, 6):
            a(f"v_dot2_f32_bf16 v{t0}, v{pk+i}, v{ONES}, v{t0}"); a(f"v_dot2_f32_bf16 v{t1}, v{pk+i}, v{pk+i}, v{t1}")
        allreduce_n([("v_add_f32", t0), ("v_add_f32", t1)], [t2, t3])
        ln_consts(t0, t1, t2)
        a(f"v_rcp_f32 v{t4}, v{t1}")
        for i in range(0, 12, 2):
            a(f"v_sub_f32 v{val+i}, v{val+i}, v{t0}")
            a(f"v_sub_f32 v{val+i+1}, v{val+i+1}, v{t0}")
            a(f"v_cvt_pk_bf16_f32 v{t2}, v{val+i}, v{val+i+1}")
            a(f"v_lshlrev_b32 v{val+i}, 16, v{t2}")
            a(f"v_and_b32 v{val+i+1}, 0xffff0000, v{t2}")
            for k in (i, i + 1):
                if refine:
                    a(f"v_mul_f32 v{t2}, v{val+k}, v{t4}")
                    a(f"v_fma_f32 v{t3}, -v{t2}, v{t1}, v{val+k}")
                    a(f"v_fma_f32 v{val+k}, v{t3}, v{t4}, v{t2}")
                else:
                    a(f"v_mul_f32 v{val+k}, v{val+k}, v{t4}")
            a(f"v_cvt_pk_bf16_f32 v{pk + i//2}, v{val+i}, v{val+i+1}")
            a(f"v_lshlrev_b32 v{val+i}, 16, v{pk + i//2}")
            a(f"v_and_b32 v{val+i+1}, 0xffff0000, v{pk + i//2}")

    a.lines.append(f"; @launch grid=(256,1,1) block=(320,1,1) lds={lds}")
    a.lines.append('.amdgcn_target "amdgcn-amd-amdhsa--gfx950"')
    a.lines += [".text", f".globl {NAME}", ".p2align 8", f".type {NAME},@function"]
    a.label(NAME)
    a("s_cmp_ge_u32 s2, 256")
    a("s_cbranch_scc1 L_end")
    a("s_load_dwordx16 s[4:19], s[0:1], 0")
    a("s_load_dwordx8 s[20:27], s[0:1], 64")
    a("s_load_dwordx2 s[28:29], s[0:1], 96")
    a(f"v_and_b32 v{vL}, 63, v0")
    a(f"v_lshrrev_b32 v{T[0]}, 6, v0")
    a(f"v_lshrrev_b32 v{T[2]}, 3, v{vL}")
    a(f"v_readfirstlane_b32 s{sW}, v{T[0]}")
    a(f"v_and_b32 v{T[3]}, 7, v{vL}")
    a(f"v_lshlrev_b32 v{T[4]}, 4, v{T[3]}")
    def masks():
        for r in range(4):
            a(f"v_mov_b32 v{vM[r]}, 0")
            a(f"v_mov_b32 v{T[5]}, 0xffff")
            a(f"v_cmp_eq_u32 vcc, {2*r}, v{T[3]}")
            a(f"v_cndmask_b32 v{vM[r]}, v{vM[r]}, v{T[5]}, vcc")
            a(f"v_mov_b32 v{T[5]}, 0xffff0000")
            a(f"v_cmp_eq_u32 vcc, {2*r+1}, v{T[3]}")
            a(f"v_cndmask_b32 v{vM[r]}, v{vM[r]}, v{T[5]}, vcc")
    def ws_srd():
        a(f"s_mov_b32 s{WSR}, s{pWS}"); a(f"s_mov_b32 s{WSR+1}, s{pWS+1}"); a(f"s_mov_b32 s{WSR+2}, {WS_SIZE * (2 if dbg else 1)}"); a(f"s_mov_b32 s{WSR+3}, 0x20000")
    vq = []
    def wait_for(name):
        idx = max(i for i, n in enumerate(vq) if n == name)
        n = len(vq) - 1 - idx
        a(f"s_waitcnt vmcnt({min(n, 63)})")
        del vq[:idx + 1]
    def red_addr():
        a(f"v_lshrrev_b32 v{T[0]}, 5, v{vL}")
        a(f"v_mul_u32_u24 v{vRA}, 768, v{T[0]}")
        a(f"v_and_b32 v{T[0]}, 7, v{vL}"); a(f"v_lshlrev_b32 v{T[0]}, 5, v{T[0]}"); a(f"v_add_u32 v{vRA}, v{vRA}, v{T[0]}")
        a(f"v_and_b32 v{T[0]}, 16, v{vL}"); a(f"v_add_u32 v{vRA}, v{vRA}, v{T[0]}")
        a(f"s_mul_i32 s{sT0}, s{sW}, 1536"); a(f"v_add_u32 v{vRA}, s{sT0}, v{vRA}")
    def red_write():
        set_exec(USEFUL)
        for t in range(3): a(f"ds_write_b128 v{vRA}, {vr(vACC+4*t,4)} offset:{L_RED + 256*t}")
        set_exec(-1)
    a(f"s_cmp_lg_u32 s{sW}, 4"); a("s_cbranch_scc1 L_stream")
    a("s_setprio 3")

    WD = RING
    XQ = 168
    XV = 176
    XR = 188
    a(f"s_and_b32 s{sT0}, s2, 31"); a(f"s_lshr_b32 s{sT1}, s2, 5")
    a(f"v_mul_u32_u24 v{T[6]}, 12288, v{T[2]}")
    a(f"s_mul_i32 s{sT2}, s{sT0}, 384")
    a(f"v_add3_u32 v{T[6]}, v{T[6]}, v{T[4]}, s{sT2}")
    a(f"s_mul_i32 s{sT3}, s{sT1}, {80*12288}")
    a(f"v_lshlrev_b32 v{T[1]}, 3, v{vL}")
    a(f"v_add_u32 v{T[5]}, 1024, v{T[1]}")
    a(f"v_min_u32 v{T[5]}, 1272, v{T[5]}")
    a(f"s_mov_b32 s{TMP+2}, 7864320"); a(f"s_mov_b32 s{TMP+3}, 0x20000")
    a("s_waitcnt lgkmcnt(0)")
    a(f"s_mov_b32 s{TMP}, s{pWQ}"); a(f"s_mov_b32 s{TMP+1}, s{pWQ+1}")
    a(f"global_load_dwordx2 {vr(XQ,2)}, v{T[1]}, {sp(pX)}")
    a(f"global_load_dwordx2 {vr(XQ+2,2)}, v{T[1]}, {sp(pX)} offset:512")
    a(f"global_load_dwordx2 {vr(XQ+4,2)}, v{T[5]}, {sp(pX)}")
    vq += ["x0", "x1", "x2"]
    for k in range(10):
        for t in range(3):
            a(f"buffer_load_dwordx4 {vr(WD + 12*k + 4*t, 4)}, v{T[6]}, {srd(TMP)}, s{sT3} offen offset:{128*t}")
            vq.append(f"wq{k}")
        if k < 9: a(f"s_add_u32 s{sT3}, s{sT3}, {8*12288}")
    a("s_barrier")
    a(f"s_load_dword s{sNon}, {sp(pWS)}, {EPOCH}")
    if dbg: a(f"v_mov_b32 v{vST}, 0")
    stamp(0)
    masks()
    ws_srd()
    a(f"s_and_b32 s{sSlot}, s2, {H-1}")
    wait_for("x2")
    stamp(18)
    a(f"v_cmp_gt_u32 vcc, 32, v{vL}")
    a(f"v_cndmask_b32 v{XQ+4}, 0, v{XQ+4}, vcc"); a(f"v_cndmask_b32 v{XQ+5}, 0, v{XQ+5}, vcc")
    for k in range(6):
        a(f"v_lshlrev_b32 v{XV+2*k}, 16, v{XQ+k}")
        a(f"v_and_b32 v{XV+2*k+1}, 0xffff0000, v{XQ+k}")
    layernorm_full(XV, XQ, T[0:5], True)
    a(f"v_lshlrev_b32 v{T[0]}, 3, v{vL}")
    a(f"ds_write_b64 v{T[0]}, {vr(XQ,2)} offset:{L_XN}")
    a(f"ds_write_b64 v{T[0]}, {vr(XQ+2,2)} offset:{L_XN+512}")
    set_exec("0x00000000ffffffff")
    a(f"ds_write_b64 v{T[0]}, {vr(XQ+4,2)} offset:{L_XN+1024}")
    set_exec(-1)
    a(f"s_lshr_b32 s{sT1}, s2, 5"); a(f"s_mul_i32 s{sT1}, s{sT1}, 160")
    a(f"v_lshrrev_b32 v{T[0]}, 3, v{vL}"); a(f"v_lshlrev_b32 v{T[0]}, 1, v{T[0]}"); a(f"v_add_u32 v{T[0]}, s{sT1}, v{T[0]}")
    a("s_waitcnt lgkmcnt(0)")
    for k in range(10): a(f"ds_read_u16 v{XR+k}, v{T[0]} offset:{L_XN + 16*k}")
    for i in range(12): a(f"v_mov_b32 v{vACC+i}, 0")
    a("s_waitcnt lgkmcnt(0)")
    a(f"s_add_u32 s{sNon}, s{sNon}, 0x9e3779b9")
    a(f"v_mov_b32 v{vN}, s{sNon}")
    for k in range(10): a(f"v_lshl_or_b32 v{XR+k}, v{XR+k}, 16, v{XR+k}")
    stamp(1)
    for k in range(10):
        a_operand(XR + k)
        wait_for(f"wq{k}")
        for t in range(3):
            a(f"v_mfma_f32_16x16x32_bf16 {vr(vACC+4*t,4)}, {vr(vA,4)}, {vr(WD+12*k+4*t,4)}, {vr(vACC+4*t,4)}")
    a(f"v_lshrrev_b32 v{T[0]}, 5, v{vL}"); a(f"v_mul_u32_u24 v{vRA}, 768, v{T[0]}")
    a(f"v_and_b32 v{T[0]}, 7, v{vL}"); a(f"v_lshlrev_b32 v{T[0]}, 5, v{T[0]}"); a(f"v_add_u32 v{vRA}, v{vRA}, v{T[0]}")
    a(f"v_and_b32 v{T[0]}, 16, v{vL}"); a(f"v_add_u32 v{vRA}, v{vRA}, v{T[0]}")
    a(f"v_mul_u32_u24 v{T[0]}, 12, v{vL}")
    a(f"s_and_b32 s{sT0}, s2, 31"); a(f"s_lshr_b32 s{sT1}, s2, 5"); a(f"s_lshl_b32 s{sT0}, s{sT0}, 3"); a(f"s_add_u32 s{sT0}, s{sT0}, s{sT1}")
    a(f"s_lshl_b32 s{sT0}, s{sT0}, 10"); a(f"s_add_u32 s{sT0}, s{sT0}, {QP}")
    a(f"v_lshlrev_b32 v{T[1]}, 4, v{vL}")
    red_write()
    a("s_waitcnt lgkmcnt(0)")
    S3 = 200
    for s in range(2):
        for i in range(3): a(f"ds_read_b32 v{S3+4*s+i}, v{T[0]} offset:{L_RED + 768*s + 4*i}")
    a("s_waitcnt lgkmcnt(0)")
    pkadd(S3, S3, S3 + 4); a(f"v_add_f32 v{S3+2}, v{S3+2}, v{S3+6}")
    a(f"v_mov_b32 v{S3+3}, v{vN}")
    a(f"buffer_store_dwordx4 {vr(S3,4)}, v{T[1]}, {srd(WSR)}, s{sT0} offen sc1")
    stamp(21)
    S4 = RING
    for p in range(nph):
        a(f"s_add_u32 s{sU}, s{sSlot}, {H*p}"); a(f"s_lshl_b32 s{sU}, s{sU}, 13"); a(f"s_add_u32 s{sU}, s{sU}, {QP}")
        def iss():
            for s in range(8):
                a(f"s_add_u32 s{sT1}, s{sU}, {1024*s}")
                a(f"buffer_load_dwordx4 {vr(S4+4*s,4)}, v{T[1]}, {srd(WSR)}, s{sT1} offen sc1")
        def chk():
            for s in range(8):
                a(f"v_cmp_ne_u32 vcc, v{S4+4*s+3}, v{vN}")
                a(f"s_mov_b64 {sp(sBad)}, vcc" if s == 0 else f"s_or_b64 {sp(sBad)}, {sp(sBad)}, vcc")
        poll(iss, chk)
        if p == 0: stamp(22)
        for s in range(1, 8):
            pkadd(S4, S4, S4 + 4*s); a(f"v_add_f32 v{S4+2}, v{S4+2}, v{S4+4*s+2}")
        a(f"v_cvt_pk_bf16_f32 v{S4}, v{S4}, v{S4+1}")
        a(f"v_cvt_pk_bf16_f32 v{S4+2}, v{S4+2}, v{S4+2}")
        a(f"v_mul_u32_u24 v{T[0]}, 6, v{vL}")
        a(f"ds_write_b16 v{T[0]}, v{S4} offset:{L_Q + 384*p}")
        a(f"ds_write_b16_d16_hi v{T[0]}, v{S4} offset:{L_Q + 384*p + 2}")
        a(f"ds_write_b16 v{T[0]}, v{S4+2} offset:{L_Q + 384*p + 4}")
        a("s_waitcnt lgkmcnt(0)")
        if p == 0:
            a("s_barrier")
            if codepf:
                a(f"s_getpc_b64 {sp(58)}")
                a.label("L_pc")
                a(f"s_lshr_b32 s{sT3}, s2, 3"); a(f"s_lshl_b32 s{sT3}, s{sT3}, 9")
                a(f"v_and_b32 v{T[0]}, 7, v{vL}"); a(f"v_lshlrev_b32 v{T[0]}, 6, v{T[0]}"); a(f"v_add_u32 v{T[0]}, s{sT3}, v{T[0]}")
                a(f"v_add_u32 v{T[0]}, L_kcode-L_pc, v{T[0]}")
                a(f"v_min_u32 v{T[0]}, L_codeend-L_pc-4, v{T[0]}")
                a(f"global_load_dword v{vP}, v{T[0]}, {sp(58)}")
    dump_stamps(True)
    a("s_endpgm")

    a.label("L_stream")
    vq[:] = []
    a(f"v_mul_u32_u24 v{vSA}, 384, v{T[2]}")
    a(f"v_add_u32 v{vSA}, v{vSA}, v{T[4]}")
    a(f"s_and_b32 s{sSlot}, s2, {H-1}")
    a(f"s_lshr_b32 s{sJ}, s2, {H.bit_length()-1}")
    a(f"s_lshl_b32 s{sWI}, s{sJ}, 2")
    a(f"s_add_u32 s{sWI}, s{sWI}, s{sW}")
    a(f"s_mov_b32 s{sHead}, s{sSlot}")
    a(f"s_mov_b32 s{sPh}, 0")
    a(f"s_mul_i32 s{sT0}, s{sHead}, {HB}")
    a(f"s_mul_i32 s{sOff}, s{sWI}, 3072")
    a(f"s_mov_b32 s{STR+2}, {HB}"); a(f"s_mov_b32 s{STR+3}, 0x20000")
    a("s_waitcnt lgkmcnt(0)")
    a(f"s_add_u32 s{STR}, s{pK}, s{sT0}"); a(f"s_addc_u32 s{STR+1}, s{pK+1}, 0")
    a(f"s_load_dword s{sNon}, {sp(pWS)}, {EPOCH}")
    if dbg: a(f"v_mov_b32 v{vST}, 0")
    stamp(0)
    a(f"v_mov_b32 v{vOPA}, 0"); a(f"s_mov_b32 s{sU2}, {OP}")
    masks()
    a(f"s_mov_b32 s{sPh}, 0")
    for g in range(8):
        m = 0x0101010101010101 << g
        a(f"s_mov_b32 s{sMask+2*g}, 0x{m & 0xffffffff:08x}")
        a(f"s_mov_b32 s{sMask+2*g+1}, 0x{m >> 32:08x}")
    for r in range(4): a(f"s_mov_b32 s{sSel+r}, 0x{0x07060500 | r:08x}")
    a(f"s_mov_b32 s{sSelG}, 0x0c0c0400")
    a(f"s_mov_b32 s{sPkSel}, 0x07060302")
    for r in range(1, 4):
        m = 0xffff << (16 * r)
        a(f"s_mov_b32 s{sRow+2*(r-1)}, 0x{m & 0xffffffff:08x}"); a(f"s_mov_b32 s{sRow+2*(r-1)+1}, 0x{m >> 32:08x}")
    ws_srd()
    a(f"s_and_b32 s{sT0}, s2, 7"); a(f"s_lshr_b32 s{sT1}, s2, 3")
    a(f"s_lshl_b32 s{sT2}, s{sT1}, 3"); a(f"s_add_u32 s{sRI}, s{sT2}, s{sT0}"); a(f"s_mov_b32 s{sRole}, 0")
    a(f"s_cmp_lt_u32 s{sT1}, 16"); a("s_cbranch_scc1 L_roled")
    a(f"s_sub_u32 s{sT2}, s{sT1}, 16"); a(f"s_mul_i32 s{sT3}, s{sT0}, 12"); a(f"s_add_u32 s{sRI}, s{sT3}, s{sT2}"); a(f"s_mov_b32 s{sRole}, 1")
    a(f"s_cmp_lt_u32 s{sT1}, 28"); a("s_cbranch_scc1 L_roled")
    a(f"s_sub_u32 s{sT2}, s{sT1}, 28"); a(f"s_lshl_b32 s{sT2}, s{sT2}, 3"); a(f"s_add_u32 s{sRI}, s{sT2}, s{sT0}"); a(f"s_mov_b32 s{sRole}, 2")
    a.label("L_roled")
    def kslot(g):
        if g < 8: return RING + 12 * ((g + 5) % 8)
        if g < 13 and g < PK: return W + 12 * (g - 8)
        return RING + 12 * (g % 8)
    def issue(g):
        b = kslot(g)
        for t in range(3):
            a(f"buffer_load_dwordx4 {vr(b+4*t,4)}, v{vSA}, {srd(STR)}, s{sOff} offen offset:{128*t} {pol}")
            vq.append(f"k{g}")
        a(f"s_add_u32 s{sOff}, s{sOff}, {STRIDE}")
    a("s_barrier")
    for g in range(PK): issue(g)
    stamp(16)
    a("s_waitcnt lgkmcnt(0)")
    a(f"s_add_u32 s{sNon}, s{sNon}, 0x9e3779b9")
    a(f"v_mov_b32 v{vN}, s{sNon}")
    a("s_barrier")
    def load_q():
        a(f"v_and_b32 v{T[0]}, 7, v{vL}"); a(f"v_lshlrev_b32 v{T[0]}, 4, v{T[0]}")
        a(f"s_mul_i32 s{sT0}, s{sPh}, 384"); a(f"v_add_u32 v{T[0]}, s{sT0}, v{T[0]}")
        for t in range(3): a(f"ds_read_b128 {vr(vQ+4*t,4)}, v{T[0]} offset:{L_Q + 128*t}")
    load_q()

    a.label("L_kcode")
    vSC = T[6]
    def score_addr():
        a(f"v_lshlrev_b32 v{vSC}, 2, v{vL}")
        a(f"s_lshl_b32 s{sT0}, s{sW}, 12"); a(f"v_add_u32 v{vSC}, s{sT0}, v{vSC}")
    def kinit():
        score_addr()
        a(f"v_mov_b32 v{vMX}, 0xff800000"); a(f"v_mov_b32 v{vLS}, 0")
        a("s_waitcnt lgkmcnt(0)")
    def kcompute(b, g):
        a0, a1, a2 = T[0], T[1], T[2]
        for i in range(4):
            for t, acc in enumerate((a0, a1, a2)):
                src2 = "0" if i == 0 else f"v{acc}"
                a(f"v_dot2_f32_bf16 v{acc}, v{b+4*t+i}, v{vQ+4*t+i}, {src2}")
        a(f"v_add_f32 v{a0}, v{a0}, v{a1}")
        a(f"v_add_f32 v{a0}, v{a0}, v{a2}")
        for m in DPP4[:3]: dpp("v_add_f32", a0, m)
        a(f"v_cndmask_b32 v{vC}, v{vC}, v{a0}, {sp(sMask+2*g)}")
    SCALE = f32hex(192 ** -0.5)
    def kfinish():
        t, u, w_ = T[0], T[1], T[2]
        rne(t, vC)
        a(f"v_mul_f32 v{t}, {SCALE}, v{t}")
        rne(t, t)
        a(f"ds_write_b32 v{vSC}, v{t} offset:{L_SC}")
        a(f"v_add_u32 v{vSC}, 256, v{vSC}")
        a(f"v_max_f32 v{u}, v{vMX}, v{t}")
        a(f"v_sub_f32 v{w_}, v{vMX}, v{u}"); a(f"v_sub_f32 v{t}, v{t}, v{u}")
        a(f"v_mul_f32 v{w_}, {f32hex(LOG2E)}, v{w_}"); a(f"v_mul_f32 v{t}, {f32hex(LOG2E)}, v{t}")
        a(f"v_exp_f32 v{w_}, v{w_}"); a(f"v_exp_f32 v{t}, v{t}")
        a(f"v_mov_b32 v{vMX}, v{u}")
        a(f"v_fma_f32 v{vLS}, v{vLS}, v{w_}, v{t}")
    kinit()
    stamp(3)
    nx = PK
    for g in range(16):
        while nx <= g + 1:
            issue(nx); nx += 1
        wait_for(f"k{g}")
        while nx <= g + 2:
            issue(nx); nx += 1
        kcompute(kslot(g), g % 8)
        if g < 2 and nx < 16 and kslot(nx) == kslot(g):
            issue(nx); nx += 1
        if g % 8 == 7: kfinish()
    assert nx == 18, nx
    a(f"s_mov_b32 s{sIt}, 2")
    def switch_to_V():
        n = newlab()
        a(f"s_cmp_eq_u32 s{sIt}, {NIT-1}")
        a(f"s_cbranch_scc0 L_nosw{n}")
        a(f"s_mul_i32 s{sT0}, s{sHead}, {HB}")
        a(f"s_add_u32 s{STR}, s{pV}, s{sT0}"); a(f"s_addc_u32 s{STR+1}, s{pV+1}, 0")
        a(f"s_mul_i32 s{sOff}, s{sWI}, 3072")
        a.label(f"L_nosw{n}")
    def switch_to_nextK():
        n = newlab()
        a(f"s_cmp_eq_u32 s{sIt}, {NIT-1}")
        a(f"s_cbranch_scc0 L_nosw{n}")
        if nph > 1:
            a(f"s_add_u32 s{sT0}, s{sHead}, {H}")
            a(f"s_mul_i32 s{sT0}, s{sT0}, {HB}")
            a(f"s_add_u32 s{STR}, s{pK}, s{sT0}"); a(f"s_addc_u32 s{STR+1}, s{pK+1}, 0")
            a(f"s_mul_i32 s{sOff}, s{sWI}, 3072")
            a(f"s_cmp_eq_u32 s{sPh}, {nph-1}")
            a(f"s_cselect_b32 s{STR+2}, 0, {HB}")
            a(f"s_cselect_b32 s{STR}, s{pK}, s{STR}"); a(f"s_cselect_b32 s{STR+1}, s{pK+1}, s{STR+1}")
        else:
            a(f"s_mov_b32 s{STR+2}, 0")
        a.label(f"L_nosw{n}")
    def steady_issue(slot):
        for t in range(3):
            a(f"buffer_load_dwordx4 {ring(slot,t)}, v{vSA}, {srd(STR)}, s{sOff} offen offset:{128*t} {pol}")
        a(f"s_add_u32 s{sOff}, s{sOff}, {STRIDE}")
    a.label("L_kloop")
    for g in range(8):
        a("s_waitcnt vmcnt(3)")
        if g == 6: switch_to_V()
        steady_issue((g + 2) % 8)
        kcompute(RING + 12 * g, g)
    kfinish()
    a(f"s_add_u32 s{sIt}, s{sIt}, 1")
    a(f"s_cmp_lt_u32 s{sIt}, {NIT}")
    a("s_cbranch_scc1 L_kloop")
    stamp(4)

    a(f"v_mov_b32 v{T[2]}, v{vMX}")
    allreduce("v_max_f32", vMX, T[0])
    a(f"v_sub_f32 v{T[2]}, v{T[2]}, v{vMX}"); a(f"v_mul_f32 v{T[2]}, {f32hex(LOG2E)}, v{T[2]}"); a(f"v_exp_f32 v{T[2]}, v{T[2]}")
    a(f"v_mul_f32 v{vLS}, v{vLS}, v{T[2]}")
    allreduce("v_add_f32", vLS, T[0])
    MLQ = vA
    a(f"v_mov_b32 v{MLQ}, v{vMX}"); a(f"v_mov_b32 v{MLQ+1}, v{vLS}"); a(f"v_mov_b32 v{MLQ+2}, 0"); a(f"v_mov_b32 v{MLQ+3}, 0")
    tag4(MLQ)
    a(f"s_lshl_b32 s{sT0}, s{sHead}, 11"); a(f"s_lshl_b32 s{sT1}, s{sWI}, 4"); a(f"s_add_u32 s{sT0}, s{sT0}, s{sT1}"); a(f"s_add_u32 s{sT0}, s{sT0}, {ML}")
    a(f"v_mov_b32 v{T[0]}, 0")
    set_exec(1)
    a(f"buffer_store_dwordx4 {vr(MLQ,4)}, v{T[0]}, {srd(WSR)}, s{sT0} offen sc1")
    set_exec(-1)
    stamp(5)
    for i in range(12): a(f"v_mov_b32 v{vACC+i}, 0")
    score_addr()
    a("s_waitcnt lgkmcnt(0)")
    a(f"ds_read_b32 v{vPN}, v{vSC} offset:{L_SC}")
    def vcompute(slot, g):
        a(f"v_mov_b32_dpp v{vBC}, v{vP} row_newbcast:{g} row_mask:0xf bank_mask:0x3")
        a(f"v_mov_b32_dpp v{vBC}, v{vP} row_newbcast:{8+g} row_mask:0xf bank_mask:0xc")
        a_operand(vBC)
        for t in range(3):
            a(f"v_mfma_f32_16x16x32_bf16 {vr(vACC+4*t,4)}, {vr(vA,4)}, {ring(slot,t)}, {vr(vACC+4*t,4)}")
    def next_p():
        a("s_waitcnt lgkmcnt(0)")
        a(f"v_sub_f32 v{vP}, v{vPN}, v{vMX}")
        a(f"v_add_u32 v{vSC}, 256, v{vSC}")
        a(f"ds_read_b32 v{vPN}, v{vSC} offset:{L_SC}")
        a(f"v_mul_f32 v{vP}, {f32hex(LOG2E)}, v{vP}")
        a(f"v_exp_f32 v{vP}, v{vP}")
        a(f"v_cvt_pk_bf16_f32 v{vP}, v{vP}, v{vP}")
    a(f"s_mov_b32 s{sIt}, 0")
    if nph > 1:
        a(f"s_cmp_lg_u32 s{sPh}, {nph-1}"); a("s_cbranch_scc1 L_vloop")
    a(f"s_cmp_eq_u32 s{sRole}, 1"); a("s_cbranch_scc1 L_wF")
    a(f"s_cmp_eq_u32 s{sRole}, 2"); a("s_cbranch_scc1 L_wR")
    a(f"s_mul_i32 s{sT0}, s{sRI}, 48"); a(f"s_mul_i32 s{sT1}, s{sW}, 12"); a(f"s_add_u32 s{sT0}, s{sT0}, s{sT1}")
    a(f"v_lshrrev_b32 v{T[0]}, 4, v{vL}"); a(f"v_add_u32 v{T[0]}, s{sT0}, v{T[0]}")
    a(f"v_mul_u32_u24 v{T[0]}, 1280, v{T[0]}")
    a(f"v_and_b32 v{T[1]}, 15, v{vL}"); a(f"v_lshlrev_b32 v{T[1]}, 4, v{T[1]}"); a(f"v_add_u32 v{T[0]}, v{T[0]}, v{T[1]}")
    a(f"v_mov_b32 v{T[1]}, s{pWO+1}")
    a(f"v_add_co_u32 v{WA}, vcc, s{pWO}, v{T[0]}"); a(f"v_addc_co_u32 v{WA+1}, vcc, 0, v{T[1]}, vcc")
    a(f"v_add_co_u32 v{WB}, vcc, 10240, v{WA}"); a(f"v_addc_co_u32 v{WB+1}, vcc, 0, v{WA+1}, vcc")
    a(f"s_mov_b32 s{sInc}, 256"); a(f"s_mov_b32 s{sInc4}, 4096")
    a("s_branch L_wdone")
    a.label("L_wF")
    a(f"v_lshrrev_b32 v{T[0]}, 2, v{vL}"); a(f"s_mul_i32 s{sT0}, s{sW}, 160"); a(f"v_add_u32 v{T[0]}, s{sT0}, v{T[0]}")
    a(f"v_mul_u32_u24 v{T[0]}, 3072, v{T[0]}")
    a(f"v_and_b32 v{T[1]}, 1, v{vL}"); a(f"v_lshlrev_b32 v{T[1]}, 4, v{T[1]}"); a(f"v_add_u32 v{T[0]}, v{T[0]}, v{T[1]}")
    a(f"s_lshl_b32 s{sT0}, s{sRI}, 5"); a(f"v_add_u32 v{T[0]}, s{sT0}, v{T[0]}")
    a(f"v_mov_b32 v{T[2]}, s{pWG}"); a(f"v_mov_b32 v{T[3]}, s{pWG+1}")
    a(f"v_mov_b32 v{T[4]}, s{pWU}"); a(f"v_mov_b32 v{T[5]}, s{pWU+1}")
    a(f"v_and_b32 v{T[1]}, 2, v{vL}"); a(f"v_cmp_ne_u32 vcc, 0, v{T[1]}")
    a(f"v_cndmask_b32 v{T[2]}, v{T[2]}, v{T[4]}, vcc"); a(f"v_cndmask_b32 v{T[3]}, v{T[3]}, v{T[5]}, vcc")
    a(f"v_add_co_u32 v{WA}, vcc, v{T[2]}, v{T[0]}"); a(f"v_addc_co_u32 v{WA+1}, vcc, 0, v{T[3]}, vcc")
    a(f"s_lshl_b32 s{sT0}, s{sRI}, 4"); a(f"s_lshl_b32 s{sT1}, s{sW}, 2"); a(f"s_add_u32 s{sT0}, s{sT0}, s{sT1}")
    a(f"v_lshrrev_b32 v{T[0]}, 4, v{vL}"); a(f"v_add_u32 v{T[0]}, s{sT0}, v{T[0]}")
    a(f"v_mul_u32_u24 v{T[0]}, 1280, v{T[0]}")
    a(f"v_and_b32 v{T[1]}, 15, v{vL}"); a(f"v_lshlrev_b32 v{T[1]}, 4, v{T[1]}"); a(f"v_add_u32 v{T[0]}, v{T[0]}, v{T[1]}")
    a(f"v_mov_b32 v{T[1]}, s{pWD+1}")
    a(f"v_add_co_u32 v{WB}, vcc, s{pWD}, v{T[0]}"); a(f"v_addc_co_u32 v{WB+1}, vcc, 0, v{T[1]}, vcc")
    a(f"s_mov_b32 s{sInc}, {16*3072}"); a(f"s_mov_b32 s{sInc4}, {16*3072}")
    a("s_branch L_wdone")
    a.label("L_wR")
    a(f"v_mov_b32 v{WA}, s{pWO}"); a(f"v_mov_b32 v{WA+1}, s{pWO+1}"); a(f"v_mov_b32 v{WB}, s{pWO}"); a(f"v_mov_b32 v{WB+1}, s{pWO+1}")
    a(f"s_mov_b32 s{sInc}, 0"); a(f"s_mov_b32 s{sInc4}, 0")
    a.label("L_wdone")
    def wload(k):
        if k < 10:
            a(f"global_load_dwordx4 {vr(W + 4*k, 4)}, {vr(WA,2)}, off")
            if k < 9:
                a(f"v_add_co_u32 v{WA}, vcc, s{sInc4 if k == 4 else sInc}, v{WA}"); a(f"v_addc_co_u32 v{WA+1}, vcc, 0, v{WA+1}, vcc")
        else:
            a(f"global_load_dwordx4 {vr(W + 4*k, 4)}, {vr(WB,2)}, off offset:{256*(k-10)}")
        vq.append(f"w{k}")
    vq[:] = ["v0"] * 3 + ["v1"] * 3 + ["ml"]
    for it in range(2):
        next_p()
        for g in range(8):
            n = 8 * it + g
            wait_for(f"v{n}")
            steady_issue((g + 2) % 8); vq.extend([f"v{n+2}"] * 3)
            if n < 15: wload(n)
            vcompute(g, g)
    a(f"s_mov_b32 s{sIt}, 2")
    a.label("L_vloop")
    MLR = vX
    def ml_issue():
        a(f"s_lshl_b32 s{sT0}, s{sHead}, 11"); a(f"s_add_u32 s{sT0}, s{sT0}, {ML}")
        a(f"v_min_u32 v{T[1]}, {NWH-1}, v{vL}"); a(f"v_lshlrev_b32 v{T[1]}, 4, v{T[1]}")
        a(f"buffer_load_dwordx4 {vr(MLR,4)}, v{T[1]}, {srd(WSR)}, s{sT0} offen sc1")
        if NWH > 64:
            a(f"buffer_load_dwordx4 {vr(MLR+4,4)}, v{T[1]}, {srd(WSR)}, s{sT0} offen offset:1024 sc1")
    def ml_check():
        check4(MLR, T[0], T[2], True)
        if NWH > 64: check4(MLR + 4, T[0], T[2], False)
    a(f"s_cmp_eq_u32 s{sIt}, {NIT-2}"); a("s_cbranch_scc0 L_vh1")
    ml_issue()
    if codepf:
        a(f"s_getpc_b64 {sp(58)}")
        a.label("L_pc2")
        a(f"s_lshr_b32 s{sT3}, s2, 3"); a(f"s_lshl_b32 s{sT3}, s{sT3}, 9")
        a(f"v_and_b32 v{T[1]}, 7, v{vL}"); a(f"v_lshlrev_b32 v{T[1]}, 6, v{T[1]}"); a(f"v_add_u32 v{T[1]}, s{sT3}, v{T[1]}")
        a(f"v_add_u32 v{T[1]}, L_tailcode-L_pc2, v{T[1]}")
        a(f"v_min_u32 v{T[1]}, L_codeend-L_pc2-4, v{T[1]}")
        a(f"global_load_dword v{T[2]}, v{T[1]}, {sp(58)}")
    a.label("L_vh1")
    a(f"s_cmp_eq_u32 s{sIt}, {NIT-1}"); a("s_cbranch_scc0 L_vh2")
    a.label("L_tailcode")
    ml_check()
    a(f"s_cmp_eq_u64 {sp(sBad)}, 0"); a("s_cbranch_scc1 L_mlok")
    poll(ml_issue, ml_check)
    a.label("L_mlok")
    mm, ll = MLR, MLR + 1
    if NWH > 64: a(f"v_max_f32 v{T[0]}, v{mm}, v{MLR+4}")
    else: a(f"v_mov_b32 v{T[0]}, v{mm}")
    a(f"v_and_b32 v{T[0]}, 0xffffff00, v{T[0]}")
    allreduce("v_max_f32", T[0], T[1])
    a(f"v_and_b32 v{mm}, 0xffffff00, v{mm}")
    a(f"v_sub_f32 v{T[2]}, v{mm}, v{T[0]}"); a(f"v_mul_f32 v{T[2]}, {f32hex(LOG2E)}, v{T[2]}"); a(f"v_exp_f32 v{T[2]}, v{T[2]}")
    a(f"v_mul_f32 v{T[2]}, v{T[2]}, v{ll}")
    if NWH > 64:
        a(f"v_and_b32 v{MLR+4}, 0xffffff00, v{MLR+4}")
        a(f"v_sub_f32 v{T[3]}, v{MLR+4}, v{T[0]}"); a(f"v_mul_f32 v{T[3]}, {f32hex(LOG2E)}, v{T[3]}"); a(f"v_exp_f32 v{T[3]}, v{T[3]}")
        a(f"v_fmac_f32 v{T[2]}, v{T[3]}, v{MLR+5}")
    elif NWH < 64:
        a(f"v_cmp_gt_u32 vcc, {NWH}, v{vL}"); a(f"v_cndmask_b32 v{T[2]}, 0, v{T[2]}, vcc")
    allreduce("v_add_f32", T[2], T[1])
    a(f"v_sub_f32 v{T[3]}, v{vMX}, v{T[0]}"); a(f"v_mul_f32 v{T[3]}, {f32hex(LOG2E)}, v{T[3]}"); a(f"v_exp_f32 v{T[3]}, v{T[3]}")
    a(f"v_rcp_f32 v{T[2]}, v{T[2]}")
    a(f"v_mul_f32 v{vAL}, v{T[3]}, v{T[2]}")
    red_addr()
    a(f"v_mul_u32_u24 v{T[1]}, 43691, v{vL}"); a(f"v_lshrrev_b32 v{T[1]}, 19, v{T[1]}")
    a(f"v_mul_u32_u24 v{T[2]}, 12, v{T[1]}"); a(f"v_sub_u32 v{T[2]}, v{vL}, v{T[2]}")
    a(f"v_mul_u32_u24 v{T[1]}, {WPH*192}, v{T[1]}"); a(f"v_lshlrev_b32 v{T[2]}, 4, v{T[2]}"); a(f"v_add_u32 v{vOPA}, v{T[1]}, v{T[2]}")
    a(f"s_mul_i32 s{sT0}, s{sHead}, {4*WPH*192}"); a(f"s_mul_i32 s{sT1}, s{sJ}, 192"); a(f"s_add_u32 s{sT0}, s{sT0}, s{sT1}"); a(f"s_add_u32 s{sU2}, s{sT0}, {OP}")
    P = vQ
    if nph > 1:
        a(f"s_cmp_lg_u32 s{sPh}, {nph-1}"); a("s_cbranch_scc1 L_vh2")
    a(f"v_lshrrev_b32 v{T[0]}, 5, v{vL}"); a(f"v_lshlrev_b32 v{T[0]}, 8, v{T[0]}")
    a(f"v_and_b32 v{T[1]}, 7, v{vL}"); a(f"v_lshlrev_b32 v{T[1]}, 5, v{T[1]}"); a(f"v_add_u32 v{T[0]}, v{T[0]}, v{T[1]}")
    a(f"v_and_b32 v{T[1]}, 16, v{vL}"); a(f"v_add_u32 v{T[0]}, v{T[0]}, v{T[1]}")
    a(f"s_mul_i32 s{sT0}, s{sW}, 2560"); a(f"v_add_u32 v{P}, s{sT0}, v{T[0]}")
    a(f"s_mov_b32 s{sT0}, {128*128}"); a(f"s_cmp_eq_u32 s{sRole}, 1"); a(f"s_cselect_b32 s{sT0}, {96*128}, s{sT0}")
    a(f"v_lshrrev_b32 v{T[1]}, 3, v0"); a(f"v_mul_u32_u24 v{T[1]}, s{sT0}, v{T[1]}")
    a(f"v_and_b32 v{T[2]}, 7, v0"); a(f"v_lshlrev_b32 v{T[2]}, 4, v{T[2]}"); a(f"v_add_u32 v{P+1}, v{T[1]}, v{T[2]}")
    for i in range(20): a(f"v_mov_b32 v{vX+i}, 0")
    a.label("L_vh2")
    next_p()
    for g in range(8):
        a("s_waitcnt vmcnt(3)")
        if g == 6: switch_to_nextK()
        steady_issue((g + 2) % 8)
        vcompute(g, g)
    a(f"s_add_u32 s{sIt}, s{sIt}, 1")
    a(f"s_cmp_lt_u32 s{sIt}, {NIT}")
    a("s_cbranch_scc1 L_vloop")

    stamp(6)
    for i in range(12): a(f"v_mul_f32 v{vACC+i}, v{vACC+i}, v{vAL}")
    red_write()
    a("s_waitcnt lgkmcnt(0)"); a("s_barrier")
    a(f"s_cmp_lg_u32 s{sW}, 0"); a("s_cbranch_scc1 L_pubdone")
    SB = RING + 24
    a(f"v_lshlrev_b32 v{T[0]}, 4, v{vL}")
    set_exec("0x0000ffffffffffff")
    for s in range(8): a(f"ds_read_b128 {vr(SB+4*s,4)}, v{T[0]} offset:{L_RED + 768*s}")
    a("s_waitcnt lgkmcnt(4)")
    sum_quads(SB, [SB + 4, SB + 8, SB + 12])
    a("s_waitcnt lgkmcnt(0)")
    sum_quads(SB + 16, [SB + 20, SB + 24, SB + 28])
    sum_quads(SB, [SB + 16])
    tag4(SB)
    a(f"buffer_store_dwordx4 {vr(SB,4)}, v{vOPA}, {srd(WSR)}, s{sU2} offen sc1")
    set_exec(-1)
    a.label("L_pubdone")
    if nph > 1:
        a(f"s_cmp_eq_u32 s{sPh}, {nph-1}"); a("s_cbranch_scc1 L_tail")
        a("s_barrier")
        a(f"s_add_u32 s{sPh}, s{sPh}, 1"); a(f"s_add_u32 s{sHead}, s{sHead}, {H}")
        load_q(); kinit()
        a(f"s_mov_b32 s{sIt}, 0")
        a("s_branch L_kloop")
    a.label("L_tail")
    stamp(7)
    RB = RING + 60
    a(f"s_cmp_eq_u32 s{sRole}, 1"); a("s_cbranch_scc1 L_roleF")
    a(f"s_cmp_eq_u32 s{sRole}, 2"); a("s_cbranch_scc1 L_roleR")

    def rowproj(ngroups, wbase, srcs, dstbase):
        for gi in range(ngroups):
            a_operand(srcs[gi])
            for cb in range(5):
                a(f"v_mfma_f32_16x16x32_bf16 {vr(vX+4*cb,4)}, {vr(vA,4)}, {vr(wbase + 4*(5*gi+cb),4)}, {vr(vX+4*cb,4)}")
        set_exec(USEFUL)
        for cb in range(5): a(f"ds_write_b128 v{P}, {vr(vX+4*cb,4)} offset:{L_RED2 + 512*cb}")
        set_exec(-1)
        a(f"v_lshlrev_b32 v{T[0]}, 4, v0")
        a(f"s_lshl_b32 s{sT0}, s{sRI}, 7"); a(f"s_add_u32 s{sT0}, s{sT0}, {dstbase}")
        a("s_waitcnt lgkmcnt(0)"); a("s_barrier")
        n = newlab()
        a(f"v_cmp_gt_u32 vcc, 160, v0"); a(f"s_and_saveexec_b64 {sp(sE)}, vcc"); a(f"s_cbranch_execz L_rpd{n}")
        for s in range(4): a(f"ds_read_b128 {vr(vX+4*s,4)}, v{T[0]} offset:{L_RED2 + 2560*s}")
        a("s_waitcnt lgkmcnt(0)")
        sum_quads(vX, [vX + 4]); sum_quads(vX + 8, [vX + 12]); sum_quads(vX, [vX + 8])
        tag4(vX)
        a(f"buffer_store_dwordx4 {vr(vX,4)}, v{P+1}, {srd(WSR)}, s{sT0} offen sc1")
        a.label(f"L_rpd{n}")
        a(f"s_mov_b64 exec, {sp(sE)}")

    NL = 2 if WPH == 32 else 1
    a(f"s_lshr_b32 s{sT0}, s{sRI}, 2"); a(f"s_and_b32 s{sT1}, s{sRI}, 3")
    a(f"s_lshl_b32 s{sT0}, s{sT0}, 2"); a(f"s_add_u32 s{sT0}, s{sT0}, s{sT1}"); a(f"s_mul_i32 s{sT0}, s{sT0}, {WPH*192}"); a(f"s_add_u32 s{sU}, s{sT0}, {OP}")
    a(f"s_mul_i32 s{sT1}, s{sW}, 48"); a(f"s_add_u32 s{sU}, s{sU}, s{sT1}")
    a(f"v_lshrrev_b32 v{T[3]}, 2, v{vL}"); a(f"v_and_b32 v{T[3]}, {min(WPH,16)-1}, v{T[3]}"); a(f"v_mul_u32_u24 v{T[3]}, 192, v{T[3]}")
    a(f"v_and_b32 v{T[4]}, 3, v{vL}"); a(f"v_min_u32 v{T[4]}, 2, v{T[4]}"); a(f"v_lshlrev_b32 v{T[4]}, 4, v{T[4]}"); a(f"v_add_u32 v{T[3]}, v{T[3]}, v{T[4]}")
    def o_iss():
        for k in range(NL):
            a(f"buffer_load_dwordx4 {vr(RB+4*k,4)}, v{T[3]}, {srd(WSR)}, s{sU} offen offset:{3072*k} sc1")
    def o_chk():
        for k in range(NL): check4(RB + 4*k, T[0], T[1], k == 0)
    poll(o_iss, o_chk)
    stamp(8)
    if NL == 2: sum_quads(RB, [RB + 4])
    for m in ("row_ror:4", "row_ror:8"):
        for i in range(4): dpp("v_add_f32", RB + i, m)
    o4 = [("v_add_f32", RB + i) for i in range(4)]
    swap_reduce(o4, T[0:4], "v_permlane16_swap_b32")
    if WPH >= 16: swap_reduce(o4, T[0:4], "v_permlane32_swap_b32")
    for g in range(1, 4): a(f"v_cndmask_b32 v{RB}, v{RB}, v{RB+g}, {sp(sRow+2*(g-1))}")
    a(f"v_cvt_pk_bf16_f32 v{RB}, v{RB}, v{RB}")
    for gi in range(3): a(f"v_mov_b32_dpp v{RB+8+gi}, v{RB} quad_perm:[{gi},{gi},{gi},{gi}] row_mask:0xf bank_mask:0xf")
    rowproj(3, W, [RB+8, RB+9, RB+10], ZZ)
    dump_stamps()
    a("s_branch L_end")

    a.label("L_roleF")
    HQ = RB
    PK = RB + 16
    a(f"v_lshlrev_b32 v{T[3]}, 4, v{vL}")
    a(f"v_add_u32 v{T[4]}, 2048, v{T[3]}"); a(f"v_min_u32 v{T[4]}, 2544, v{T[4]}")
    a(f"v_min_u32 v{T[5]}, 39, v{vL}"); a(f"s_mul_i32 s{sT0}, s{sW}, 40"); a(f"v_add_u32 v{T[5]}, s{sT0}, v{T[5]}"); a(f"v_lshlrev_b32 v{T[5]}, 4, v{T[5]}")
    a(f"s_mov_b32 s{sU}, {HH}")
    def f_iss():
        a(f"buffer_load_dwordx4 {vr(HQ,4)}, v{T[3]}, {srd(WSR)}, s{sU} offen sc1")
        a(f"buffer_load_dwordx4 {vr(HQ+4,4)}, v{T[3]}, {srd(WSR)}, s{sU} offen offset:1024 sc1")
        a(f"buffer_load_dwordx4 {vr(HQ+8,4)}, v{T[4]}, {srd(WSR)}, s{sU} offen sc1")
        a(f"buffer_load_dwordx4 {vr(HQ+12,4)}, v{T[5]}, {srd(WSR)}, s{sU} offen sc1")
    def f_chk():
        for k in range(4): check4(HQ + 4*k, T[0], T[1], k == 0)
    FA = RING + 24
    FW = RB + 22
    DA = vACC
    def f_pre():
        a(f"s_lshl_b32 s{sT0}, s{sW}, 12"); a(f"s_add_u32 s{sT0}, s{sT0}, {L_SC}")
        a(f"v_lshlrev_b32 v{FW}, 6, v{vL}"); a(f"v_add_u32 v{FW}, s{sT0}, v{FW}")
        a(f"v_mov_b32 v{T[0]}, 0"); a(f"v_mov_b32 v{T[1]}, s{sT0}")
        a(f"ds_write_b32 v{T[1]}, v{T[0]} offset:2560")
        a(f"v_lshrrev_b32 v{FW+1}, 2, v{vL}"); a(f"v_lshlrev_b32 v{FW+1}, 4, v{FW+1}")
        a(f"v_and_b32 v{T[0]}, 3, v{vL}")
        a(f"v_mov_b32 v{T[1]}, 0x08000c04"); a(f"v_lshlrev_b32 v{T[0]}, 3, v{T[0]}"); a(f"v_lshrrev_b32 v{T[1]}, v{T[0]}, v{T[1]}"); a(f"v_and_b32 v{T[1]}, 0xff, v{T[1]}")
        a(f"v_add3_u32 v{FW+1}, v{FW+1}, v{T[1]}, s{sT0}")
        a(f"v_add_u32 v{FW+2}, 1024, v{FW+1}"); a(f"v_add_u32 v{FW+3}, 2048, v{FW+1}")
        a(f"v_lshrrev_b32 v{T[0]}, 4, v{vL}"); a(f"s_lshl_b32 s{sT0}, s{sW}, 2"); a(f"v_add_u32 v{T[0]}, s{sT0}, v{T[0]}"); a(f"v_lshlrev_b32 v{T[0]}, 7, v{T[0]}")
        a(f"v_and_b32 v{T[1]}, 3, v{vL}"); a(f"v_lshlrev_b32 v{T[1]}, 5, v{T[1]}"); a(f"v_add_u32 v{FW+4}, v{T[0]}, v{T[1]}")
        a(f"v_and_b32 v{T[0]}, 31, v{vL}"); a(f"v_lshlrev_b32 v{T[0]}, 2, v{T[0]}")
        a(f"v_lshrrev_b32 v{T[1]}, 5, v{vL}"); a(f"v_lshlrev_b32 v{T[1]}, 10, v{T[1]}"); a(f"v_add_u32 v{FW+5}, v{T[0]}, v{T[1]}")
        a(f"v_lshrrev_b32 v{T[0]}, 4, v{vL}"); a(f"s_lshl_b32 s{sT0}, s{sW}, 2"); a(f"v_add_u32 v{T[0]}, s{sT0}, v{T[0]}"); a(f"v_lshlrev_b32 v{FW+6}, 2, v{T[0]}")
        for i in range(8): a(f"v_mov_b32 v{DA+i}, 0")
        a(f"v_mov_b32 v{FW+7}, 0x3f803f80")
        a(f"v_cmp_gt_u32 {sp(sE)}, 32, v{vL}")
    poll(f_iss, f_chk, pre=f_pre)
    stamp(10)
    for k in range(3):
        a(f"v_perm_b32 v{PK+2*k}, v{HQ+4*k+1}, v{HQ+4*k}, s{sPkSel}"); a(f"v_perm_b32 v{PK+2*k+1}, v{HQ+4*k+3}, v{HQ+4*k+2}, s{sPkSel}")
    a(f"v_cndmask_b32 v{PK+4}, 0, v{PK+4}, {sp(sE)}"); a(f"v_cndmask_b32 v{PK+5}, 0, v{PK+5}, {sp(sE)}")
    t0, t1, t2, t3, t4 = T[0:5]
    a(f"v_dot2_f32_bf16 v{t0}, v{PK}, v{FW+7}, 0"); a(f"v_dot2_f32_bf16 v{t1}, v{PK}, v{PK}, 0")
    for i in range(1, 6):
        a(f"v_dot2_f32_bf16 v{t0}, v{PK+i}, v{FW+7}, v{t0}"); a(f"v_dot2_f32_bf16 v{t1}, v{PK+i}, v{PK+i}, v{t1}")
    for i in range(4): a(f"v_and_b32 v{HQ+12+i}, 0xffff0000, v{HQ+12+i}")
    allreduce_n([("v_add_f32", t0), ("v_add_f32", t1)], [t2, t3])
    ln_consts(t0, t1, t2)
    a(f"v_rcp_f32 v{t4}, v{t1}")
    O4 = HQ + 12
    for i in range(4): a(f"v_sub_f32 v{O4+i}, v{O4+i}, v{t0}")
    a(f"v_cvt_pk_bf16_f32 v{t2}, v{O4}, v{O4+1}"); a(f"v_cvt_pk_bf16_f32 v{t3}, v{O4+2}, v{O4+3}")
    a(f"v_lshlrev_b32 v{O4}, 16, v{t2}"); a(f"v_and_b32 v{O4+1}, 0xffff0000, v{t2}"); a(f"v_lshlrev_b32 v{O4+2}, 16, v{t3}"); a(f"v_and_b32 v{O4+3}, 0xffff0000, v{t3}")
    for i in range(4): a(f"v_mul_f32 v{O4+i}, v{O4+i}, v{t4}")
    a(f"v_cvt_pk_bf16_f32 v{t2}, v{O4}, v{O4+1}"); a(f"v_cvt_pk_bf16_f32 v{t3}, v{O4+2}, v{O4+3}")
    PR = FA
    for r_, (src, hi) in enumerate(((t2, 0), (t2, 1), (t3, 0), (t3, 1))):
        b = PR + 4 * r_
        a(f"v_mov_b32 v{b}, 0"); a(f"v_mov_b32 v{b+2}, 0")
        if hi:
            a(f"v_lshrrev_b32 v{b+1}, 16, v{src}"); a(f"v_and_b32 v{b+3}, 0xffff0000, v{src}")
        else:
            a(f"v_and_b32 v{b+1}, 0xffff, v{src}"); a(f"v_lshlrev_b32 v{b+3}, 16, v{src}")
    set_exec("0x000000ffffffffff")
    for r_ in range(4): a(f"ds_write_b128 v{FW}, {vr(PR+4*r_,4)} offset:{16*r_}")
    set_exec(-1)
    a("s_waitcnt lgkmcnt(0)")
    for k in range(10):
        base = FW + 1 + k // 4
        a(f"ds_read2_b32 {vr(FA+2*k,2)}, v{base} offset0:{(k%4)*64} offset1:{(k%4)*64+1}")
    DB = DA + 4
    for k in range(10):
        a(f"s_waitcnt lgkmcnt({9-k})")
        a(f"v_mfma_f32_4x4x4_16b_bf16 {vr(DA,4)}, {vr(FA+2*k,2)}, {vr(W+4*k,2)}, {vr(DA,4)}")
        a(f"v_mfma_f32_4x4x4_16b_bf16 {vr(DB,4)}, {vr(FA+2*k,2)}, {vr(W+4*k+2,2)}, {vr(DB,4)}")
    for m in ("row_ror:4", "row_ror:8"):
        for i in range(8): dpp("v_add_f32", DA + i, m)
    set_exec("0x000f000f000f000f")
    a(f"ds_write_b128 v{FW+4}, {vr(DA,4)} offset:{L_RED3}")
    a(f"ds_write_b128 v{FW+4}, {vr(DB,4)} offset:{L_RED3+16}")
    set_exec(-1)
    a("s_waitcnt lgkmcnt(0)"); a("s_barrier")
    HR = FA
    for s in range(8): a(f"ds_read_b32 v{HR+s}, v{FW+5} offset:{L_RED3 + 128*s}")
    a("s_waitcnt lgkmcnt(0)")
    for s in range(0, 8, 4): pkadd(HR + s, HR + s, HR + s + 2)
    pkadd(HR, HR, HR + 4)
    a(f"v_add_f32 v{HR}, v{HR}, v{HR+1}")
    a(f"v_mov_b32 v{T[0]}, v{HR}"); a(f"v_permlane32_swap_b32 v{T[0]}, v{HR}"); a(f"v_add_f32 v{HR}, v{HR}, v{T[0]}")
    rne(HR, HR)
    a(f"v_mov_b32 v{T[0]}, v{HR}"); a(f"v_permlane16_swap_b32 v{T[0]}, v{HR}")
    a(f"v_mul_f32 v{T[1]}, {f32hex(-LOG2E)}, v{T[0]}"); a(f"v_min_f32 v{T[1]}, 0x42fc0000, v{T[1]}"); a(f"v_exp_f32 v{T[1]}, v{T[1]}")
    a(f"v_add_f32 v{T[1]}, 1.0, v{T[1]}"); a(f"v_rcp_f32 v{T[2]}, v{T[1]}")
    a(f"v_mul_f32 v{T[3]}, v{T[0]}, v{T[2]}")
    rne(T[3], T[3])
    a(f"v_mul_f32 v{T[3]}, v{T[3]}, v{HR}")
    a(f"v_cvt_pk_bf16_f32 v{T[3]}, v{T[3]}, v{T[3]}")
    a(f"ds_bpermute_b32 v{HR+1}, v{FW+6}, v{T[3]}")
    a("s_waitcnt lgkmcnt(0)")
    stamp(11)
    rowproj(1, W + 40, [HR+1], YY)
    dump_stamps()
    a("s_branch L_end")

    a.label("L_roleR")
    a(f"s_cmp_ge_u32 s{sRI}, 20"); a("s_cbranch_scc1 L_fin")
    RS = RING + 24
    RS = RING + 40
    XS = RB
    WRr = RB + 8
    HV = RB + 16
    HPK = RB + 28
    HS = vQ + 4
    SIG = vQ + 8
    def reduce_parts(base, nsrc, nld, lds, pre=None):
        a(f"s_mul_i32 s{sU}, s{sRI}, {nsrc*128}"); a(f"s_add_u32 s{sU}, s{sU}, {base}")
        a(f"v_lshlrev_b32 v{T[3]}, 4, v0")
        def iss():
            for k in range(nld):
                a(f"s_add_u32 s{sT1}, s{sU}, {4096*k}")
                a(f"buffer_load_dwordx4 {vr(RS+4*k,4)}, v{T[3]}, {srd(WSR)}, s{sT1} offen sc1")
        def chk():
            for k in range(nld): check4(RS + 4*k, T[0], T[1], k == 0)
        def pre2():
            if pre: pre()
            a(f"v_and_b32 v{T[4]}, 7, v{vL}"); a(f"v_lshlrev_b32 v{T[4]}, 4, v{T[4]}")
            a(f"s_lshl_b32 s{sT0}, s{sW}, 7"); a(f"v_add_u32 v{T[5]}, s{sT0}, v{T[4]}")
        poll(iss, chk, pre=pre2)
        if nld == 4:
            sum_quads(RS, [RS + 4]); sum_quads(RS + 8, [RS + 12]); sum_quads(RS, [RS + 8])
        else:
            sum_quads(RS, [RS + 4, RS + 8])
        for i in range(4): dpp("v_add_f32", RS + i, "row_ror:8")
        o4 = [("v_add_f32", RS + i) for i in range(4)]
        swap_reduce(o4, [RS + 4 + i for i in range(4)], "v_permlane16_swap_b32")
        swap_reduce(o4, [RS + 4 + i for i in range(4)], "v_permlane32_swap_b32")
        set_exec("0x00000000000000ff")
        a(f"ds_write_b128 v{T[5]}, {vr(RS,4)} offset:{lds}")
        set_exec(-1)
        a("s_waitcnt lgkmcnt(0)"); a("s_barrier")
        for s in range(4): a(f"ds_read_b128 {vr(RS+4*s,4)}, v{T[4]} offset:{lds + 128*s}")
        a("s_waitcnt lgkmcnt(0)")
        sum_quads(RS, [RS + 4]); sum_quads(RS + 8, [RS + 12]); sum_quads(RS, [RS + 8])
    def r_pre1():
        a(f"v_and_b32 v{T[0]}, 7, v{vL}"); a(f"v_lshlrev_b32 v{T[0]}, 3, v{T[0]}"); a(f"s_lshl_b32 s{sT0}, s{sRI}, 6"); a(f"v_add_u32 v{T[0]}, s{sT0}, v{T[0]}")
        a(f"global_load_dwordx2 {vr(XS+4,2)}, v{T[0]}, {sp(pX)}")
        a(f"v_lshlrev_b32 v{T[1]}, 3, v{vL}"); a(f"v_add_u32 v{T[2]}, 1024, v{T[1]}"); a(f"v_min_u32 v{T[2]}, 1272, v{T[2]}")
        a(f"global_load_dwordx2 {vr(WRr,2)}, v{T[1]}, {sp(pWR)}")
        a(f"global_load_dwordx2 {vr(WRr+2,2)}, v{T[1]}, {sp(pWR)} offset:512")
        a(f"global_load_dwordx2 {vr(WRr+4,2)}, v{T[2]}, {sp(pWR)}")
        a(f"global_load_dword v{SIG}, v{T[0]}, {sp(pOUT)}")
    reduce_parts(ZZ, 128, 4, L_RED3, pre=r_pre1)
    stamp(9)
    for h in range(2):
        a(f"v_lshlrev_b32 v{XS+2*h}, 16, v{XS+4+h}"); a(f"v_and_b32 v{XS+2*h+1}, 0xffff0000, v{XS+4+h}")
    a(f"v_cvt_pk_bf16_f32 v{RS}, v{RS}, v{RS+1}"); a(f"v_cvt_pk_bf16_f32 v{RS+2}, v{RS+2}, v{RS+3}")
    a(f"v_and_b32 v{RS+1}, 0xffff0000, v{RS}"); a(f"v_lshlrev_b32 v{RS}, 16, v{RS}"); a(f"v_and_b32 v{RS+3}, 0xffff0000, v{RS+2}"); a(f"v_lshlrev_b32 v{RS+2}, 16, v{RS+2}")
    pkadd(XS, XS, RS); pkadd(XS + 2, XS + 2, RS + 2)
    a(f"v_cvt_pk_bf16_f32 v{RS}, v{XS}, v{XS+1}"); a(f"v_cvt_pk_bf16_f32 v{RS+2}, v{XS+2}, v{XS+3}")
    a(f"v_and_b32 v{XS+1}, 0xffff0000, v{RS}"); a(f"v_lshlrev_b32 v{XS}, 16, v{RS}"); a(f"v_and_b32 v{XS+3}, 0xffff0000, v{RS+2}"); a(f"v_lshlrev_b32 v{XS+2}, 16, v{RS+2}")
    for i in range(4): a(f"v_perm_b32 v{RS+i}, v{XS+i}, v{vN}, s{sSel+i}")
    a(f"s_cmp_lg_u32 s{sW}, 0"); a("s_cbranch_scc1 L_rnopub")
    a(f"v_lshlrev_b32 v{T[0]}, 4, v{vL}"); a(f"s_lshl_b32 s{sT0}, s{sRI}, 7"); a(f"s_add_u32 s{sT0}, s{sT0}, {HH}")
    set_exec("0x00000000000000ff")
    a(f"buffer_store_dwordx4 {vr(RS,4)}, v{T[0]}, {srd(WSR)}, s{sT0} offen sc1")
    set_exec(-1)
    a.label("L_rnopub")
    a(f"v_lshlrev_b32 v{T[3]}, 4, v{vL}")
    a(f"v_add_u32 v{T[4]}, 2048, v{T[3]}"); a(f"v_min_u32 v{T[4]}, 2544, v{T[4]}")
    a(f"s_mov_b32 s{sU}, {HH}")
    def r_iss():
        a(f"buffer_load_dwordx4 {vr(HV,4)}, v{T[3]}, {srd(WSR)}, s{sU} offen sc1")
        a(f"buffer_load_dwordx4 {vr(HV+4,4)}, v{T[3]}, {srd(WSR)}, s{sU} offen offset:1024 sc1")
        a(f"buffer_load_dwordx4 {vr(HV+8,4)}, v{T[4]}, {srd(WSR)}, s{sU} offen sc1")
    def r_chk():
        for k in range(3): check4(HV + 4*k, T[0], T[1], k == 0)
    poll(r_iss, r_chk)
    stamp(10)
    for i in range(12): a(f"v_and_b32 v{HV+i}, 0xffff0000, v{HV+i}")
    a(f"v_cmp_gt_u32 vcc, 32, v{vL}")
    for i in range(8, 12): a(f"v_cndmask_b32 v{HV+i}, 0, v{HV+i}, vcc")
    for k in range(6): a(f"v_perm_b32 v{HPK+k}, v{HV+2*k+1}, v{HV+2*k}, s{sPkSel}")
    layernorm_full(HV, HPK, T[0:5], False)
    a(f"v_cmp_gt_u32 vcc, 32, v{vL}")
    a(f"v_cndmask_b32 v{WRr+4}, 0, v{WRr+4}, vcc"); a(f"v_cndmask_b32 v{WRr+5}, 0, v{WRr+5}, vcc")
    a(f"v_dot2_f32_bf16 v{T[0]}, v{HPK}, v{WRr}, 0")
    for k in range(1, 6): a(f"v_dot2_f32_bf16 v{T[0]}, v{HPK+k}, v{WRr+k}, v{T[0]}")
    allreduce("v_add_f32", T[0], T[1])
    rne(T[0], T[0])
    a(f"v_mul_f32 v{T[1]}, {f32hex(-LOG2E)}, v{T[0]}"); a(f"v_min_f32 v{T[1]}, 0x42fc0000, v{T[1]}"); a(f"v_exp_f32 v{T[1]}, v{T[1]}")
    a(f"v_add_f32 v{T[1]}, 1.0, v{T[1]}"); a(f"v_rcp_f32 v{T[2]}, v{T[1]}")
    rne(SIG, T[2])
    a(f"s_lshl_b32 s{sT0}, s{sRI}, 3"); a(f"s_lshr_b32 s{sT1}, s{sT0}, 6"); a(f"s_and_b32 s{sT0}, s{sT0}, 63")
    a(f"v_and_b32 v{T[0]}, 7, v{vL}"); a(f"v_add_u32 v{T[0]}, s{sT0}, v{T[0]}"); a(f"v_lshlrev_b32 v{T[0]}, 2, v{T[0]}")
    for i in range(4): a(f"v_mov_b32 v{HS+i}, v{HV+i}")
    a(f"s_cmp_eq_u32 s{sT1}, 0"); a("s_cbranch_scc1 L_hs")
    for i in range(4): a(f"v_mov_b32 v{HS+i}, v{HV+4+i}")
    a(f"s_cmp_eq_u32 s{sT1}, 1"); a("s_cbranch_scc1 L_hs")
    for i in range(4): a(f"v_mov_b32 v{HS+i}, v{HV+8+i}")
    a.label("L_hs")
    for i in range(4): a(f"ds_bpermute_b32 v{HS+i}, v{T[0]}, v{HS+i}")
    a("s_waitcnt lgkmcnt(0)")
    stamp(11)
    def r_pre2():
        a(f"v_lshlrev_b32 v{SIG+1}, 3, v{vL}"); a(f"s_lshl_b32 s{sT0}, s{sRI}, 6"); a(f"v_add_u32 v{SIG+1}, s{sT0}, v{SIG+1}")
    reduce_parts(YY, 96, 3, L_RED2, pre=r_pre2)
    stamp(12)
    def rne4(b):
        a(f"v_cvt_pk_bf16_f32 v{b}, v{b}, v{b+1}"); a(f"v_cvt_pk_bf16_f32 v{b+2}, v{b+2}, v{b+3}")
        a(f"v_and_b32 v{b+1}, 0xffff0000, v{b}"); a(f"v_lshlrev_b32 v{b}, 16, v{b}"); a(f"v_and_b32 v{b+3}, 0xffff0000, v{b+2}"); a(f"v_lshlrev_b32 v{b+2}, 16, v{b+2}")
    rne4(RS)
    for i in range(4): a(f"v_mul_f32 v{RS+i}, v{RS+i}, v{SIG}")
    rne4(RS)
    pkadd(RS, RS, HS); pkadd(RS + 2, RS + 2, HS + 2)
    rne4(RS)
    pkadd(RS, RS, XS); pkadd(RS + 2, RS + 2, XS + 2)
    a(f"v_cvt_pk_bf16_f32 v{RS}, v{RS}, v{RS+1}"); a(f"v_cvt_pk_bf16_f32 v{RS+1}, v{RS+2}, v{RS+3}")
    a(f"s_cmp_lg_u32 s{sW}, 0"); a("s_cbranch_scc1 L_fin")
    set_exec("0x00000000000000ff")
    a(f"global_store_dwordx2 v{SIG+1}, {vr(RS,2)}, {sp(pOUT)}")
    a(f"s_cmp_lg_u32 s{sRI}, 0"); a("s_cbranch_scc1 L_fin")
    set_exec(1)
    a(f"v_mov_b32 v{T[1]}, 0")
    a(f"buffer_store_dword v{vN}, v{T[1]}, {srd(WSR)}, 0 offen offset:{EPOCH}")
    a.label("L_fin")
    dump_stamps()
    a.label("L_abort")
    a.label("L_end")
    a("s_endpgm")
    a.label("L_codeend")
    body = a.text()
    tail = f""".section .rodata,"a"
.p2align 6
.amdhsa_kernel {NAME}
  .amdhsa_next_free_vgpr {NV}
  .amdhsa_next_free_sgpr 100
  .amdhsa_accum_offset {NV}
  .amdhsa_group_segment_fixed_size 0
  .amdhsa_kernarg_size 104
  .amdhsa_user_sgpr_count 2
  .amdhsa_user_sgpr_kernarg_segment_ptr 1
  .amdhsa_system_sgpr_workgroup_id_x 1
.end_amdhsa_kernel
"""
    return body + tail

if __name__ == "__main__":
    kw = json.loads(sys.argv[1]) if len(sys.argv) > 1 else {}
    sys.stdout.write(gen(**kw))
```

```python
import sys, json, struct
from asmlib import Asm

NAME = "sequential_preLN__mha_block_cached__moe_arch_mod__decode_kernel"
def f32hex(x): return "0x%08x" % struct.unpack("<I", struct.pack("<f", x))[0]

HB = 12582912
EPOCH = 0
QP = 0x1000
ML = 0x48000
OP = 0x60000
ZZ = 0x130000
HH = 0x180000
YY = 0x181000
CLS = 0x1C0000
PROG = 0x1C1000
WS_SIZE = 0x200000
L_XN = 0
L_Q = 5120
L_RED = 6656
L_RED2 = 12800
L_RED3 = 23040
L_SC = 25088
L_CTL = 2048
LDS_BYTES = 25088 + 16384 + 512
LOG2E = 1.4426950408889634

def gen(H=32, PK=13, ctl=1, thr=24, local=1, pace=1, wpol="", qpol="", fpol=None, lds=LDS_BYTES, dbg=0, pol="nt", spin=1 << 19, codepf=1):
    nph = 32 // H
    WPH = 256 // H
    NWH = WPH * 4
    G = 4096 // NWH
    NIT = G // 8
    STRIDE = NWH * 3072
    assert 2 <= PK <= 13 and NIT >= 4
    a = Asm()

    vL, vSA, vN = 1, 2, 3
    vM = [4, 5, 6, 7]; vA = 8
    vQ = 12
    vACC = 24
    vC, vMX, vP, vPN, vBC = 36, 37, 38, 39, 40
    T = list(range(41, 48))
    RING = 48
    W = 144
    vX = 204
    vLS, vAL, vRA, vOPA, WA, WB = 224, 225, 226, 227, 228, 230
    vZ, vFL = 232, 233
    NV = 240
    vST = 240
    if dbg: NV = 248
    def ring(slot, t): b = RING + slot * 12 + 4 * t; return f"v[{b}:{b+3}]"
    def vr(b, n): return f"v[{b}:{b+n-1}]"
    sW = 3
    pX, pK, pV, pWQ, pWO, pBX, pWR, pWG, pWU, pWD, pOUT, pDBG, pWS = [4 + 2 * i for i in range(13)]
    STR, WSR, TMP = 32, 36, 40
    sOff, sIt, sHead, sWI, sPh, sNon, sRole, sRI = 44, 45, 46, 47, 48, 49, 50, 51
    sSel = 52
    sSelG = 56
    sT0, sT1, sT2, sT3 = 57, 58, 59, 60
    sInc = 61
    sMask = 62
    sSlot, sJ, sInc4, sSpin = 78, 79, 80, 81
    sE = 82
    sBad = 84
    sU, sU2 = 86, 87
    sRow = 90
    sLoc, sBst, sPrv, sGI, sOH = 30, 31, 97, 98, 99
    sPkSel = 96
    def sp(b): return f"s[{b}:{b+1}]"
    def srd(b): return f"s[{b}:{b+3}]"
    USEFUL = "0xFF00FF0000FF00FF"

    def stamp(k):
        if not dbg: return
        a("s_memrealtime s[88:89]"); a("s_waitcnt lgkmcnt(0)"); a(f"v_writelane_b32 v{vST}, s88, {k}")
    def dump_stamps(helper=False):
        if not dbg: return
        stamp(15)
        a("s_mov_b32 exec_lo, -1"); a("s_mov_b32 exec_hi, 0")
        if helper: a("s_add_u32 s88, s2, 1024")
        else: a(f"s_lshl_b32 s88, s2, 2"); a(f"s_add_u32 s88, s88, s{sW}")
        a("s_lshl_b32 s88, s88, 7"); a(f"s_add_u32 s88, s88, {WS_SIZE}")
        a(f"v_lshlrev_b32 v{vST+1}, 2, v{vL}")
        a(f"buffer_store_dword v{vST}, v{vST+1}, {srd(WSR)}, s88 offen")

    DPP4 = ("quad_perm:[1,0,3,2]", "quad_perm:[2,3,0,1]", "row_half_mirror", "row_mirror")
    def dpp(op, v, m): a(f"{op}_dpp v{v}, v{v}, v{v} {m} row_mask:0xf bank_mask:0xf")
    def swap_reduce(ops_vs, tmps, sw):
        for (op, v), t in zip(ops_vs, tmps): a(f"v_mov_b32 v{t}, v{v}")
        for (op, v), t in zip(ops_vs, tmps): a(f"{sw} v{t}, v{v}")
        for (op, v), t in zip(ops_vs, tmps): a(f"{op} v{v}, v{v}, v{t}")
    def allreduce_n(ops_vs, tmps):
        for m in DPP4:
            for op, v in ops_vs: dpp(op, v, m)
        swap_reduce(ops_vs, tmps, "v_permlane16_swap_b32")
        swap_reduce(ops_vs, tmps, "v_permlane32_swap_b32")
    def allreduce(op, v, t): allreduce_n([(op, v)], [t])
    def set_exec(val):
        if isinstance(val, str) and val.startswith("0x") and len(val) > 10:
            a(f"s_mov_b32 exec_lo, 0x{val[-8:]}"); a(f"s_mov_b32 exec_hi, 0x{val[2:-8]}")
        else:
            a(f"s_mov_b64 exec, {val}")
    def a_operand(src, dst=None):
        dst = vA if dst is None else dst
        for r in range(4): a(f"v_and_b32 v{dst+r}, v{src}, v{vM[r]}")
    def tag4(b):
        for r in range(4): a(f"v_perm_b32 v{b+r}, v{b+r}, v{vN}, s{sSel+r}")
    def check4(b, t0, t1, first):
        a(f"v_perm_b32 v{t0}, v{b+1}, v{b}, s{sSelG}")
        a(f"v_perm_b32 v{t1}, v{b+3}, v{b+2}, s{sSelG}")
        a(f"v_lshl_or_b32 v{t0}, v{t1}, 16, v{t0}")
        a(f"v_cmp_ne_u32 vcc, v{t0}, v{vN}")
        if first: a(f"s_mov_b64 {sp(sBad)}, vcc")
        else: a(f"s_or_b64 {sp(sBad)}, {sp(sBad)}, vcc")
    lab = [0]
    def newlab():
        lab[0] += 1; return lab[0]
    def poll(issue, check, pre=None, first_issued=False, first_wait=0):
        n = newlab()
        a(f"s_mov_b32 s{sSpin}, {spin}")
        if not first_issued: issue()
        if pre: pre()
        a(f"s_waitcnt vmcnt({first_wait})")
        a(f"s_branch L_pollchk{n}")
        a.label(f"L_poll{n}")
        a(f"s_sub_u32 s{sSpin}, s{sSpin}, 1")
        a(f"s_cmp_eq_u32 s{sSpin}, 0")
        a("s_cbranch_scc1 L_abort")
        issue()
        a("s_waitcnt vmcnt(0)")
        a.label(f"L_pollchk{n}")
        check()
        a(f"s_cmp_lg_u64 {sp(sBad)}, 0")
        a(f"s_cbranch_scc1 L_poll{n}")
    def pub_store(data, voff, soff):
        n = newlab()
        if local:
            a(f"s_cmp_eq_u32 s{sLoc}, 1"); a(f"s_cbranch_scc1 L_pl{n}")
        a(f"buffer_store_dwordx4 {data}, v{voff}, {srd(WSR)}, s{soff} offen sc1")
        if local:
            a(f"s_branch L_pd{n}")
            a.label(f"L_pl{n}")
            a(f"buffer_store_dwordx4 {data}, v{voff}, {srd(WSR)}, s{soff} offen")
            a.label(f"L_pd{n}")
    def rne(dst, src):
        a(f"v_cvt_pk_bf16_f32 v{dst}, v{src}, v{src}")
        a(f"v_lshlrev_b32 v{dst}, 16, v{dst}")
    def pkadd(d, x, y): a(f"v_pk_add_f32 {vr(d,2)}, {vr(x,2)}, {vr(y,2)}")
    def sum_quads(dst, srcs):
        for s in srcs:
            pkadd(dst, dst, s); pkadd(dst + 2, dst + 2, s + 2)

    def ln_consts(s1, s2, t):
        a(f"v_mul_f32 v{s1}, {f32hex(1.0/640)}, v{s1}")
        a(f"v_mul_f32 v{s2}, {f32hex(1.0/640)}, v{s2}")
        a(f"v_fma_f32 v{s2}, -v{s1}, v{s1}, v{s2}")
        a(f"v_max_f32 v{s2}, 0, v{s2}")
        rne(s2, s2)
        a(f"v_add_f32 v{s2}, {f32hex(1e-5)}, v{s2}")
        rne(s2, s2)
        rne(s1, s1)
        a(f"v_sqrt_f32 v{s2}, v{s2}")
        rne(s2, s2)

    def layernorm_full(val, pk, tmp, refine):
        t0, t1, t2, t3, t4 = tmp
        ONES = t4
        a(f"v_mov_b32 v{ONES}, 0x3f803f80")
        a(f"v_dot2_f32_bf16 v{t0}, v{pk}, v{ONES}, 0"); a(f"v_dot2_f32_bf16 v{t1}, v{pk}, v{pk}, 0")
        for i in range(1, 6):
            a(f"v_dot2_f32_bf16 v{t0}, v{pk+i}, v{ONES}, v{t0}"); a(f"v_dot2_f32_bf16 v{t1}, v{pk+i}, v{pk+i}, v{t1}")
        allreduce_n([("v_add_f32", t0), ("v_add_f32", t1)], [t2, t3])
        ln_consts(t0, t1, t2)
        a(f"v_rcp_f32 v{t4}, v{t1}")
        for i in range(0, 12, 2):
            a(f"v_sub_f32 v{val+i}, v{val+i}, v{t0}")
            a(f"v_sub_f32 v{val+i+1}, v{val+i+1}, v{t0}")
            a(f"v_cvt_pk_bf16_f32 v{t2}, v{val+i}, v{val+i+1}")
            a(f"v_lshlrev_b32 v{val+i}, 16, v{t2}")
            a(f"v_and_b32 v{val+i+1}, 0xffff0000, v{t2}")
            for k in (i, i + 1):
                if refine:
                    a(f"v_mul_f32 v{t2}, v{val+k}, v{t4}")
                    a(f"v_fma_f32 v{t3}, -v{t2}, v{t1}, v{val+k}")
                    a(f"v_fma_f32 v{val+k}, v{t3}, v{t4}, v{t2}")
                else:
                    a(f"v_mul_f32 v{val+k}, v{val+k}, v{t4}")
            a(f"v_cvt_pk_bf16_f32 v{pk + i//2}, v{val+i}, v{val+i+1}")
            a(f"v_lshlrev_b32 v{val+i}, 16, v{pk + i//2}")
            a(f"v_and_b32 v{val+i+1}, 0xffff0000, v{pk + i//2}")

    a.lines.append(f"; @launch grid=(256,1,1) block=(320,1,1) lds={lds}")
    a.lines.append('.amdgcn_target "amdgcn-amd-amdhsa--gfx950"')
    a.lines += [".text", f".globl {NAME}", ".p2align 8", f".type {NAME},@function"]
    a.label(NAME)
    a("s_cmp_ge_u32 s2, 256")
    a("s_cbranch_scc1 L_end")
    a("s_load_dwordx16 s[4:19], s[0:1], 0")
    a("s_load_dwordx8 s[20:27], s[0:1], 64")
    a("s_load_dwordx2 s[28:29], s[0:1], 96")
    a(f"v_and_b32 v{vL}, 63, v0")
    a(f"v_lshrrev_b32 v{T[0]}, 6, v0")
    a(f"v_lshrrev_b32 v{T[2]}, 3, v{vL}")
    a(f"v_readfirstlane_b32 s{sW}, v{T[0]}")
    a(f"v_and_b32 v{T[3]}, 7, v{vL}")
    a(f"v_lshlrev_b32 v{T[4]}, 4, v{T[3]}")
    def masks():
        for r in range(4):
            a(f"v_mov_b32 v{vM[r]}, 0")
            a(f"v_mov_b32 v{T[5]}, 0xffff")
            a(f"v_cmp_eq_u32 vcc, {2*r}, v{T[3]}")
            a(f"v_cndmask_b32 v{vM[r]}, v{vM[r]}, v{T[5]}, vcc")
            a(f"v_mov_b32 v{T[5]}, 0xffff0000")
            a(f"v_cmp_eq_u32 vcc, {2*r+1}, v{T[3]}")
            a(f"v_cndmask_b32 v{vM[r]}, v{vM[r]}, v{T[5]}, vcc")
    def ws_srd():
        a(f"s_mov_b32 s{WSR}, s{pWS}"); a(f"s_mov_b32 s{WSR+1}, s{pWS+1}"); a(f"s_mov_b32 s{WSR+2}, {WS_SIZE * (2 if dbg else 1)}"); a(f"s_mov_b32 s{WSR+3}, 0x20000")
    vq = []
    def wait_for(name):
        if name not in vq: return
        idx = max(i for i, n in enumerate(vq) if n == name)
        n = len(vq) - 1 - idx
        a(f"s_waitcnt vmcnt({min(n, 63)})")
        del vq[:idx + 1]
    def red_addr():
        a(f"v_lshrrev_b32 v{T[0]}, 5, v{vL}")
        a(f"v_mul_u32_u24 v{vRA}, 768, v{T[0]}")
        a(f"v_and_b32 v{T[0]}, 7, v{vL}"); a(f"v_lshlrev_b32 v{T[0]}, 5, v{T[0]}"); a(f"v_add_u32 v{vRA}, v{vRA}, v{T[0]}")
        a(f"v_and_b32 v{T[0]}, 16, v{vL}"); a(f"v_add_u32 v{vRA}, v{vRA}, v{T[0]}")
        a(f"s_mul_i32 s{sT0}, s{sW}, 1536"); a(f"v_add_u32 v{vRA}, s{sT0}, v{vRA}")
    def red_write():
        set_exec(USEFUL)
        for t in range(3): a(f"ds_write_b128 v{vRA}, {vr(vACC+4*t,4)} offset:{L_RED + 256*t}")
        set_exec(-1)
    a(f"s_cmp_lg_u32 s{sW}, 4"); a("s_cbranch_scc1 L_stream")
    a("s_setprio 3")

    WD = RING
    XQ = 168
    XV = 176
    XR = 188
    a(f"s_and_b32 s{sT0}, s2, 31"); a(f"s_lshr_b32 s{sT1}, s2, 5")
    a(f"v_mul_u32_u24 v{T[6]}, 12288, v{T[2]}")
    a(f"s_mul_i32 s{sT2}, s{sT0}, 384")
    a(f"v_add3_u32 v{T[6]}, v{T[6]}, v{T[4]}, s{sT2}")
    a(f"s_mul_i32 s{sT3}, s{sT1}, {80*12288}")
    a(f"v_lshlrev_b32 v{T[1]}, 3, v{vL}")
    a(f"v_add_u32 v{T[5]}, 1024, v{T[1]}")
    a(f"v_min_u32 v{T[5]}, 1272, v{T[5]}")
    a(f"s_mov_b32 s{TMP+2}, 7864320"); a(f"s_mov_b32 s{TMP+3}, 0x20000")
    a("s_waitcnt lgkmcnt(0)")
    a(f"s_mov_b32 s{TMP}, s{pWQ}"); a(f"s_mov_b32 s{TMP+1}, s{pWQ+1}")
    a(f"global_load_dwordx2 {vr(XQ,2)}, v{T[1]}, {sp(pX)}")
    a(f"global_load_dwordx2 {vr(XQ+2,2)}, v{T[1]}, {sp(pX)} offset:512")
    a(f"global_load_dwordx2 {vr(XQ+4,2)}, v{T[5]}, {sp(pX)}")
    vq += ["x0", "x1", "x2"]
    for k in range(10):
        for t in range(3):
            a(f"buffer_load_dwordx4 {vr(WD + 12*k + 4*t, 4)}, v{T[6]}, {srd(TMP)}, s{sT3} offen offset:{128*t} {qpol}")
            vq.append(f"wq{k}")
        if k < 9: a(f"s_add_u32 s{sT3}, s{sT3}, {8*12288}")
    a(f"v_mov_b32 v{vZ}, 0")
    for o in (0, 4, 8): a(f"ds_write_b32 v{vZ}, v{vZ} offset:{L_CTL + o}")
    a("s_waitcnt lgkmcnt(0)")
    a("s_barrier")
    a(f"s_load_dword s{sNon}, {sp(pWS)}, {EPOCH}")
    if dbg: a(f"v_mov_b32 v{vST}, 0")
    stamp(0)
    masks()
    ws_srd()
    a(f"s_and_b32 s{sSlot}, s2, {H-1}")
    wait_for("x2")
    stamp(18)
    CE = 198
    a("s_waitcnt lgkmcnt(0)")
    a(f"s_add_u32 s{sNon}, s{sNon}, 0x9e3779b9")
    a(f"v_mov_b32 v{vN}, s{sNon}")
    a(f"s_getreg_b32 s{sT0}, hwreg(HW_REG_XCC_ID, 0, 4)")
    a(f"s_and_b32 s{sT1}, s{sNon}, 0xfffffff0"); a(f"s_or_b32 s{sT0}, s{sT0}, s{sT1}")
    a(f"v_mov_b32 v{CE}, s{sT0}")
    a(f"s_and_b32 s{sU2}, s2, 7"); a(f"s_lshl_b32 s{sU2}, s{sU2}, 7")
    a(f"s_lshr_b32 s{sT1}, s2, 3"); a(f"s_lshl_b32 s{sT1}, s{sT1}, 2"); a(f"s_add_u32 s{sT1}, s{sT1}, s{sU2}"); a(f"s_add_u32 s{sT1}, s{sT1}, {CLS}")
    if local:
        set_exec(1)
        a(f"buffer_store_dword v{CE}, v{vZ}, {srd(WSR)}, s{sT1} offen")
        set_exec(-1)
        vq.append("cls_st")
    a(f"v_cmp_gt_u32 vcc, 32, v{vL}")
    a(f"v_cndmask_b32 v{XQ+4}, 0, v{XQ+4}, vcc"); a(f"v_cndmask_b32 v{XQ+5}, 0, v{XQ+5}, vcc")
    for k in range(6):
        a(f"v_lshlrev_b32 v{XV+2*k}, 16, v{XQ+k}")
        a(f"v_and_b32 v{XV+2*k+1}, 0xffff0000, v{XQ+k}")
    layernorm_full(XV, XQ, T[0:5], True)
    a(f"v_lshlrev_b32 v{T[0]}, 3, v{vL}")
    a(f"ds_write_b64 v{T[0]}, {vr(XQ,2)} offset:{L_XN}")
    a(f"ds_write_b64 v{T[0]}, {vr(XQ+2,2)} offset:{L_XN+512}")
    set_exec("0x00000000ffffffff")
    a(f"ds_write_b64 v{T[0]}, {vr(XQ+4,2)} offset:{L_XN+1024}")
    set_exec(-1)
    a(f"s_lshr_b32 s{sT1}, s2, 5"); a(f"s_mul_i32 s{sT1}, s{sT1}, 160")
    a(f"v_lshrrev_b32 v{T[0]}, 3, v{vL}"); a(f"v_lshlrev_b32 v{T[0]}, 1, v{T[0]}"); a(f"v_add_u32 v{T[0]}, s{sT1}, v{T[0]}")
    a("s_waitcnt lgkmcnt(0)")
    for k in range(10): a(f"ds_read_u16 v{XR+k}, v{T[0]} offset:{L_XN + 16*k}")
    for i in range(12): a(f"v_mov_b32 v{vACC+i}, 0")
    a("s_waitcnt lgkmcnt(0)")
    for k in range(10): a(f"v_lshl_or_b32 v{XR+k}, v{XR+k}, 16, v{XR+k}")
    stamp(1)
    def cls_issue():
        a(f"v_and_b32 v{T[5]}, 31, v{vL}"); a(f"v_lshlrev_b32 v{T[5]}, 2, v{T[5]}")
        a(f"s_add_u32 s{sT2}, s{sU2}, {CLS}")
        a(f"buffer_load_dword v{CE+1}, v{T[5]}, {srd(WSR)}, s{sT2} offen sc1")
    for k in range(10):
        a_operand(XR + k)
        if k == 8 and local:
            cls_issue(); vq.append("cls_ld")
        wait_for(f"wq{k}")
        for t in range(3):
            a(f"v_mfma_f32_16x16x32_bf16 {vr(vACC+4*t,4)}, {vr(vA,4)}, {vr(WD+12*k+4*t,4)}, {vr(vACC+4*t,4)}")
    a(f"v_lshrrev_b32 v{T[0]}, 5, v{vL}"); a(f"v_mul_u32_u24 v{vRA}, 768, v{T[0]}")
    a(f"v_and_b32 v{T[0]}, 7, v{vL}"); a(f"v_lshlrev_b32 v{T[0]}, 5, v{T[0]}"); a(f"v_add_u32 v{vRA}, v{vRA}, v{T[0]}")
    a(f"v_and_b32 v{T[0]}, 16, v{vL}"); a(f"v_add_u32 v{vRA}, v{vRA}, v{T[0]}")
    a(f"v_mul_u32_u24 v{T[0]}, 12, v{vL}")
    a(f"s_and_b32 s{sT0}, s2, 31"); a(f"s_lshr_b32 s{sT1}, s2, 5"); a(f"s_lshl_b32 s{sT0}, s{sT0}, 3"); a(f"s_add_u32 s{sT0}, s{sT0}, s{sT1}")
    a(f"s_lshl_b32 s{sT0}, s{sT0}, 10"); a(f"s_add_u32 s{sT0}, s{sT0}, {QP}")
    a(f"v_lshlrev_b32 v{T[1]}, 4, v{vL}")
    red_write()
    a("s_waitcnt lgkmcnt(0)")
    S3 = 200
    for s in range(2):
        for i in range(3): a(f"ds_read_b32 v{S3+4*s+i}, v{T[0]} offset:{L_RED + 768*s + 4*i}")
    a("s_waitcnt lgkmcnt(0)")
    pkadd(S3, S3, S3 + 4); a(f"v_add_f32 v{S3+2}, v{S3+2}, v{S3+6}")
    a(f"v_mov_b32 v{S3+3}, v{vN}")
    a(f"s_mov_b32 s{sLoc}, 0")
    if local:
        a(f"s_mov_b32 s{sSpin}, 8")
        a("s_waitcnt vmcnt(0)")
        a.label("L_clschk")
        a(f"v_cmp_ne_u32 vcc, v{CE+1}, v{CE}")
        a(f"s_cmp_eq_u64 vcc, 0"); a(f"s_cselect_b32 s{sLoc}, 1, 0"); a("s_cbranch_scc1 L_clsdone")
        a(f"s_sub_u32 s{sSpin}, s{sSpin}, 1"); a(f"s_cmp_eq_u32 s{sSpin}, 0"); a("s_cbranch_scc1 L_clsdone")
        cls_issue(); a("s_waitcnt vmcnt(0)"); a("s_branch L_clschk")
        a.label("L_clsdone")
    pub_store(vr(S3,4), T[1], sT0)
    a(f"v_mov_b32 v{T[2]}, s{sLoc}"); a(f"ds_write_b32 v{vZ}, v{T[2]} offset:{L_CTL + 8}")
    stamp(21)
    S4 = RING
    for p in range(nph):
        a(f"s_add_u32 s{sU}, s{sSlot}, {H*p}"); a(f"s_lshl_b32 s{sU}, s{sU}, 13"); a(f"s_add_u32 s{sU}, s{sU}, {QP}")
        def iss():
            for s in range(8):
                a(f"s_add_u32 s{sT1}, s{sU}, {1024*s}")
                a(f"buffer_load_dwordx4 {vr(S4+4*s,4)}, v{T[1]}, {srd(WSR)}, s{sT1} offen sc1")
        def chk():
            for s in range(8):
                a(f"v_cmp_ne_u32 vcc, v{S4+4*s+3}, v{vN}")
                a(f"s_mov_b64 {sp(sBad)}, vcc" if s == 0 else f"s_or_b64 {sp(sBad)}, {sp(sBad)}, vcc")
        poll(iss, chk)
        if p == 0: stamp(22)
        for s in range(1, 8):
            pkadd(S4, S4, S4 + 4*s); a(f"v_add_f32 v{S4+2}, v{S4+2}, v{S4+4*s+2}")
        a(f"v_cvt_pk_bf16_f32 v{S4}, v{S4}, v{S4+1}")
        a(f"v_cvt_pk_bf16_f32 v{S4+2}, v{S4+2}, v{S4+2}")
        a(f"v_mul_u32_u24 v{T[0]}, 6, v{vL}")
        a(f"ds_write_b16 v{T[0]}, v{S4} offset:{L_Q + 384*p}")
        a(f"ds_write_b16_d16_hi v{T[0]}, v{S4} offset:{L_Q + 384*p + 2}")
        a(f"ds_write_b16 v{T[0]}, v{S4+2} offset:{L_Q + 384*p + 4}")
        a("s_waitcnt lgkmcnt(0)")
        if p == 0:
            a("s_barrier")
            if codepf:
                a(f"s_getpc_b64 {sp(58)}")
                a.label("L_pc")
                a(f"s_lshr_b32 s{sT3}, s2, 3"); a(f"s_lshl_b32 s{sT3}, s{sT3}, 9")
                a(f"v_and_b32 v{T[0]}, 7, v{vL}"); a(f"v_lshlrev_b32 v{T[0]}, 6, v{T[0]}"); a(f"v_add_u32 v{T[0]}, s{sT3}, v{T[0]}")
                a(f"v_add_u32 v{T[0]}, L_kcode-L_pc, v{T[0]}")
                a(f"v_min_u32 v{T[0]}, L_codeend-L_pc-4, v{T[0]}")
                a(f"global_load_dword v{vP}, v{T[0]}, {sp(58)}")
    if ctl:
        NTOT = 2 * NIT * nph
        a(f"s_and_b32 s{sT0}, s{sNon}, 0xffffff00"); a(f"v_mov_b32 v{T[3]}, s{sT0}")
        a(f"s_add_u32 s{sU}, s{sU2}, {PROG}")
        a(f"v_and_b32 v{T[4]}, 31, v{vL}"); a(f"v_lshlrev_b32 v{T[4]}, 2, v{T[4]}")
        a(f"s_lshr_b32 s{sT1}, s2, 3"); a(f"s_lshl_b32 s{sT1}, s{sT1}, 2"); a(f"v_mov_b32 v{T[5]}, s{sT1}")
        a(f"s_mov_b32 s{sGI}, 0"); a(f"s_mov_b32 s{sSpin}, {1 << 22}")
        a.label("L_cspin")
        a("s_sleep 4")
        a(f"ds_read_b32 v{T[0]}, v{vZ} offset:{L_CTL}"); a("s_waitcnt lgkmcnt(0)"); a(f"v_readfirstlane_b32 s{sT0}, v{T[0]}")
        a(f"s_sub_u32 s{sSpin}, s{sSpin}, 1"); a(f"s_cmp_eq_u32 s{sSpin}, 0"); a("s_cbranch_scc1 L_cdone")
        a(f"s_cmp_eq_u32 s{sT0}, s{sGI}"); a("s_cbranch_scc1 L_cspin")
        a(f"s_mov_b32 s{sGI}, s{sT0}")
        a(f"buffer_load_dword v{T[1]}, v{T[4]}, {srd(WSR)}, s{sU} offen sc1")
        a(f"v_or_b32 v{T[2]}, s{sGI}, v{T[3]}")
        set_exec(1)
        a(f"buffer_store_dword v{T[2]}, v{T[5]}, {srd(WSR)}, s{sU} offen")
        set_exec(-1)
        a("s_waitcnt vmcnt(1)")
        a(f"v_xor_b32 v{T[1]}, v{T[1]}, v{T[3]}")
        a(f"v_cmp_le_u32 vcc, s{sGI}, v{T[1]}"); a(f"s_mov_b32 s{sT2}, vcc_lo")
        a(f"v_cmp_gt_u32 vcc, 256, v{T[1]}"); a(f"s_and_b32 s{sT2}, s{sT2}, vcc_lo")
        a(f"s_bcnt1_i32_b32 s{sT2}, s{sT2}")
        a(f"s_cmp_ge_u32 s{sT2}, {thr}"); a(f"s_cselect_b32 s{sT2}, 1, 0")
        a(f"v_mov_b32 v{T[0]}, s{sT2}"); a(f"ds_write_b32 v{vZ}, v{T[0]} offset:{L_CTL + 4}")
        a(f"s_cmp_lt_u32 s{sGI}, {NTOT - 2}"); a("s_cbranch_scc1 L_cspin")
        a.label("L_cdone")
        a("s_waitcnt lgkmcnt(0)")
    dump_stamps(True)
    a("s_endpgm")

    a.label("L_stream")
    vq[:] = []
    a(f"v_mul_u32_u24 v{vSA}, 384, v{T[2]}")
    a(f"v_add_u32 v{vSA}, v{vSA}, v{T[4]}")
    a(f"s_and_b32 s{sSlot}, s2, {H-1}")
    a(f"s_lshr_b32 s{sJ}, s2, {H.bit_length()-1}")
    a(f"s_lshl_b32 s{sWI}, s{sJ}, 2")
    a(f"s_add_u32 s{sWI}, s{sWI}, s{sW}")
    a(f"s_mov_b32 s{sHead}, s{sSlot}")
    a(f"s_mov_b32 s{sPh}, 0")
    a(f"s_mul_i32 s{sT0}, s{sHead}, {HB}")
    a(f"s_mul_i32 s{sOff}, s{sWI}, 3072")
    a(f"s_mov_b32 s{STR+2}, {HB}"); a(f"s_mov_b32 s{STR+3}, 0x20000")
    a("s_waitcnt lgkmcnt(0)")
    a(f"s_add_u32 s{STR}, s{pK}, s{sT0}"); a(f"s_addc_u32 s{STR+1}, s{pK+1}, 0")
    a(f"s_load_dword s{sNon}, {sp(pWS)}, {EPOCH}")
    if dbg: a(f"v_mov_b32 v{vST}, 0")
    stamp(0)
    a(f"v_mov_b32 v{vOPA}, 0"); a(f"s_mov_b32 s{sU2}, {OP}")
    masks()
    a(f"s_mov_b32 s{sPh}, 0")
    for g in range(8):
        m = 0x0101010101010101 << g
        a(f"s_mov_b32 s{sMask+2*g}, 0x{m & 0xffffffff:08x}")
        a(f"s_mov_b32 s{sMask+2*g+1}, 0x{m >> 32:08x}")
    for r in range(4): a(f"s_mov_b32 s{sSel+r}, 0x{0x07060500 | r:08x}")
    a(f"s_mov_b32 s{sSelG}, 0x0c0c0400")
    a(f"s_mov_b32 s{sPkSel}, 0x07060302")
    for r in range(1, 4):
        m = 0xffff << (16 * r)
        a(f"s_mov_b32 s{sRow+2*(r-1)}, 0x{m & 0xffffffff:08x}"); a(f"s_mov_b32 s{sRow+2*(r-1)+1}, 0x{m >> 32:08x}")
    ws_srd()
    a(f"s_and_b32 s{sT0}, s2, 7"); a(f"s_lshr_b32 s{sT1}, s2, 3")
    a(f"s_lshl_b32 s{sT2}, s{sT1}, 3"); a(f"s_add_u32 s{sRI}, s{sT2}, s{sT0}"); a(f"s_mov_b32 s{sRole}, 0")
    a(f"s_lshr_b32 s{sT2}, s{sT1}, 2"); a(f"s_lshl_b32 s{sT2}, s{sT2}, 3"); a(f"s_add_u32 s{sT2}, s{sT2}, s{sT0}"); a(f"s_lshl_b32 s{sT2}, s{sT2}, 2")
    a(f"s_and_b32 s{sT3}, s{sT1}, 3"); a(f"s_add_u32 s{sOH}, s{sT2}, s{sT3}")
    a(f"s_cmp_lt_u32 s{sT1}, 16"); a("s_cbranch_scc1 L_roled")
    a(f"s_sub_u32 s{sT2}, s{sT1}, 16"); a(f"s_mul_i32 s{sT3}, s{sT0}, 12"); a(f"s_add_u32 s{sRI}, s{sT3}, s{sT2}"); a(f"s_mov_b32 s{sRole}, 1")
    a(f"s_cmp_lt_u32 s{sT1}, 28"); a("s_cbranch_scc1 L_roled")
    a(f"s_sub_u32 s{sT2}, s{sT1}, 28"); a(f"s_lshl_b32 s{sT2}, s{sT2}, 3"); a(f"s_add_u32 s{sRI}, s{sT2}, s{sT0}"); a(f"s_mov_b32 s{sRole}, 2")
    a.label("L_roled")
    def kslot(g):
        if g < 8: return RING + 12 * ((g + 5) % 8)
        if g < 13 and g < PK: return W + 12 * (g - 8)
        return RING + 12 * (g % 8)
    def issue(g):
        b = kslot(g)
        for t in range(3):
            a(f"buffer_load_dwordx4 {vr(b+4*t,4)}, v{vSA}, {srd(STR)}, s{sOff} offen offset:{128*t} {pol}")
            vq.append(f"k{g}")
        a(f"s_add_u32 s{sOff}, s{sOff}, {STRIDE}")
    a(f"v_mov_b32 v{vZ}, 0"); a(f"v_mov_b32 v{vFL}, 0"); a(f"s_mov_b32 s{sGI}, 0"); a(f"s_mov_b32 s{sPrv}, 0")
    a("s_barrier")
    for g in range(PK):
        if pace and g >= 2: wait_for(f"k{g-2}")
        issue(g)
    stamp(16)
    a("s_waitcnt lgkmcnt(0)")
    a(f"s_add_u32 s{sNon}, s{sNon}, 0x9e3779b9")
    a(f"v_mov_b32 v{vN}, s{sNon}")
    a("s_barrier")
    a(f"ds_read_b32 v{T[1]}, v{vZ} offset:{L_CTL + 8}"); a("s_waitcnt lgkmcnt(0)"); a(f"v_readfirstlane_b32 s{sLoc}, v{T[1]}")
    def progress():
        if not ctl: return
        n = newlab()
        a(f"s_add_u32 s{sGI}, s{sGI}, 1")
        a(f"s_cmp_lg_u32 s{sW}, 0"); a(f"s_cbranch_scc1 L_pg{n}")
        a(f"v_mov_b32 v{T[5]}, s{sGI}"); a(f"ds_write_b32 v{vZ}, v{T[5]} offset:{L_CTL}")
        a.label(f"L_pg{n}")
    def flag_read():
        if ctl: a(f"ds_read_b32 v{vFL}, v{vZ} offset:{L_CTL + 4}")
    def load_q():
        a(f"v_and_b32 v{T[0]}, 7, v{vL}"); a(f"v_lshlrev_b32 v{T[0]}, 4, v{T[0]}")
        a(f"s_mul_i32 s{sT0}, s{sPh}, 384"); a(f"v_add_u32 v{T[0]}, s{sT0}, v{T[0]}")
        for t in range(3): a(f"ds_read_b128 {vr(vQ+4*t,4)}, v{T[0]} offset:{L_Q + 128*t}")
    load_q()

    a.label("L_kcode")
    vSC = T[6]
    def score_addr():
        a(f"v_lshlrev_b32 v{vSC}, 2, v{vL}")
        a(f"s_lshl_b32 s{sT0}, s{sW}, 12"); a(f"v_add_u32 v{vSC}, s{sT0}, v{vSC}")
    def kinit():
        score_addr()
        a(f"v_mov_b32 v{vMX}, 0xff800000"); a(f"v_mov_b32 v{vLS}, 0")
        a("s_waitcnt lgkmcnt(0)")
    def kcompute(b, g):
        a0, a1, a2 = T[0], T[1], T[2]
        for i in range(4):
            for t, acc in enumerate((a0, a1, a2)):
                src2 = "0" if i == 0 else f"v{acc}"
                a(f"v_dot2_f32_bf16 v{acc}, v{b+4*t+i}, v{vQ+4*t+i}, {src2}")
        a(f"v_add_f32 v{a0}, v{a0}, v{a1}")
        a(f"v_add_f32 v{a0}, v{a0}, v{a2}")
        for m in DPP4[:3]: dpp("v_add_f32", a0, m)
        a(f"v_cndmask_b32 v{vC}, v{vC}, v{a0}, {sp(sMask+2*g)}")
    SCALE = f32hex(192 ** -0.5)
    def kfinish():
        t, u, w_ = T[0], T[1], T[2]
        rne(t, vC)
        a(f"v_mul_f32 v{t}, {SCALE}, v{t}")
        rne(t, t)
        a(f"ds_write_b32 v{vSC}, v{t} offset:{L_SC}")
        a(f"v_add_u32 v{vSC}, 256, v{vSC}")
        a(f"v_max_f32 v{u}, v{vMX}, v{t}")
        a(f"v_sub_f32 v{w_}, v{vMX}, v{u}"); a(f"v_sub_f32 v{t}, v{t}, v{u}")
        a(f"v_mul_f32 v{w_}, {f32hex(LOG2E)}, v{w_}"); a(f"v_mul_f32 v{t}, {f32hex(LOG2E)}, v{t}")
        a(f"v_exp_f32 v{w_}, v{w_}"); a(f"v_exp_f32 v{t}, v{t}")
        a(f"v_mov_b32 v{vMX}, v{u}")
        a(f"v_fma_f32 v{vLS}, v{vLS}, v{w_}, v{t}")
    kinit()
    stamp(3)
    nx = PK
    for g in range(16):
        while nx <= g + 1:
            issue(nx); nx += 1
        wait_for(f"k{g}")
        while nx <= g + 2:
            issue(nx); nx += 1
        kcompute(kslot(g), g % 8)
        if g < 2 and nx < 16 and kslot(nx) == kslot(g):
            issue(nx); nx += 1
        if g % 8 == 7:
            kfinish(); progress()
    assert nx == 18, nx
    flag_read()
    a(f"s_mov_b32 s{sIt}, 2")
    def switch_to_V():
        n = newlab()
        a(f"s_cmp_eq_u32 s{sIt}, {NIT-1}")
        a(f"s_cbranch_scc0 L_nosw{n}")
        a(f"s_mul_i32 s{sT0}, s{sHead}, {HB}")
        a(f"s_add_u32 s{STR}, s{pV}, s{sT0}"); a(f"s_addc_u32 s{STR+1}, s{pV+1}, 0")
        a(f"s_mul_i32 s{sOff}, s{sWI}, 3072")
        a.label(f"L_nosw{n}")
    def switch_to_nextK():
        n = newlab()
        a(f"s_cmp_eq_u32 s{sIt}, {NIT-1}")
        a(f"s_cbranch_scc0 L_nosw{n}")
        if nph > 1:
            a(f"s_add_u32 s{sT0}, s{sHead}, {H}")
            a(f"s_mul_i32 s{sT0}, s{sT0}, {HB}")
            a(f"s_add_u32 s{STR}, s{pK}, s{sT0}"); a(f"s_addc_u32 s{STR+1}, s{pK+1}, 0")
            a(f"s_mul_i32 s{sOff}, s{sWI}, 3072")
            a(f"s_cmp_eq_u32 s{sPh}, {nph-1}")
            a(f"s_cselect_b32 s{STR+2}, 0, {HB}")
            a(f"s_cselect_b32 s{STR}, s{pK}, s{STR}"); a(f"s_cselect_b32 s{STR+1}, s{pK+1}, s{STR+1}")
        else:
            a(f"s_mov_b32 s{STR+2}, 0")
        a.label(f"L_nosw{n}")
    def steady_issue(slot):
        for t in range(3):
            a(f"buffer_load_dwordx4 {ring(slot,t)}, v{vSA}, {srd(STR)}, s{sOff} offen offset:{128*t} {pol}")
        a(f"s_add_u32 s{sOff}, s{sOff}, {STRIDE}")
    def controlled_loop(tag, compute, switch, mid):
        if ctl:
            a("s_waitcnt lgkmcnt(0)"); a(f"v_readfirstlane_b32 s{sBst}, v{vFL}")
            a(f"s_cmp_eq_u32 s{sIt}, {NIT-1}"); a(f"s_cselect_b32 s{sBst}, 0, s{sBst}")
            a(f"s_cmp_eq_u32 s{sBst}, 1"); a(f"s_cbranch_scc1 L_{tag}boost")
            a(f"s_cmp_eq_u32 s{sPrv}, 0"); a(f"s_cbranch_scc1 L_{tag}n0")
            a("s_waitcnt vmcnt(6)"); a(f"s_branch L_{tag}n1")
            a.label(f"L_{tag}n0")
        a("s_waitcnt vmcnt(3)"); steady_issue(2)
        if ctl: a.label(f"L_{tag}n1")
        compute(0)
        for g in range(1, 8):
            a("s_waitcnt vmcnt(3)")
            if g == 6: switch()
            steady_issue((g + 2) % 8)
            if g == 4: flag_read()
            compute(g)
        if ctl:
            a(f"s_mov_b32 s{sPrv}, 0"); a(f"s_branch L_{tag}next")
            a.label(f"L_{tag}boost")
            a(f"s_cmp_eq_u32 s{sPrv}, 0"); a(f"s_cbranch_scc0 L_{tag}b0")
            steady_issue(2)
            a.label(f"L_{tag}b0")
            for g in range(8):
                a("s_waitcnt vmcnt(6)")
                steady_issue((g + 3) % 8)
                if g == 4: flag_read()
                compute(g)
            a(f"s_mov_b32 s{sPrv}, 1")
            a.label(f"L_{tag}next")
    a.label("L_kloop")
    controlled_loop("k", lambda g: kcompute(RING + 12 * g, g), switch_to_V, None)
    kfinish(); progress()
    a(f"s_add_u32 s{sIt}, s{sIt}, 1")
    a(f"s_cmp_lt_u32 s{sIt}, {NIT}")
    a("s_cbranch_scc1 L_kloop")
    stamp(4)

    a(f"v_mov_b32 v{T[2]}, v{vMX}")
    allreduce("v_max_f32", vMX, T[0])
    a(f"v_sub_f32 v{T[2]}, v{T[2]}, v{vMX}"); a(f"v_mul_f32 v{T[2]}, {f32hex(LOG2E)}, v{T[2]}"); a(f"v_exp_f32 v{T[2]}, v{T[2]}")
    a(f"v_mul_f32 v{vLS}, v{vLS}, v{T[2]}")
    allreduce("v_add_f32", vLS, T[0])
    MLQ = vA
    a(f"v_mov_b32 v{MLQ}, v{vMX}"); a(f"v_mov_b32 v{MLQ+1}, v{vLS}"); a(f"v_mov_b32 v{MLQ+2}, 0"); a(f"v_mov_b32 v{MLQ+3}, 0")
    tag4(MLQ)
    a(f"s_lshl_b32 s{sT0}, s{sHead}, 11"); a(f"s_lshl_b32 s{sT1}, s{sWI}, 4"); a(f"s_add_u32 s{sT0}, s{sT0}, s{sT1}"); a(f"s_add_u32 s{sT0}, s{sT0}, {ML}")
    a(f"v_mov_b32 v{T[0]}, 0")
    set_exec(1)
    pub_store(vr(MLQ,4), T[0], sT0)
    set_exec(-1)
    stamp(5)
    for i in range(12): a(f"v_mov_b32 v{vACC+i}, 0")
    score_addr()
    a("s_waitcnt lgkmcnt(0)")
    a(f"ds_read_b32 v{vPN}, v{vSC} offset:{L_SC}")
    def vcompute(slot, g):
        a(f"v_mov_b32_dpp v{vBC}, v{vP} row_newbcast:{g} row_mask:0xf bank_mask:0x3")
        a(f"v_mov_b32_dpp v{vBC}, v{vP} row_newbcast:{8+g} row_mask:0xf bank_mask:0xc")
        a_operand(vBC)
        for t in range(3):
            a(f"v_mfma_f32_16x16x32_bf16 {vr(vACC+4*t,4)}, {vr(vA,4)}, {ring(slot,t)}, {vr(vACC+4*t,4)}")
    def next_p():
        a("s_waitcnt lgkmcnt(0)")
        a(f"v_sub_f32 v{vP}, v{vPN}, v{vMX}")
        a(f"v_add_u32 v{vSC}, 256, v{vSC}")
        a(f"ds_read_b32 v{vPN}, v{vSC} offset:{L_SC}")
        a(f"v_mul_f32 v{vP}, {f32hex(LOG2E)}, v{vP}")
        a(f"v_exp_f32 v{vP}, v{vP}")
        a(f"v_cvt_pk_bf16_f32 v{vP}, v{vP}, v{vP}")
    a(f"s_mov_b32 s{sIt}, 0")
    if nph > 1:
        a(f"s_cmp_lg_u32 s{sPh}, {nph-1}"); a("s_cbranch_scc1 L_vloop")
    a(f"s_cmp_eq_u32 s{sRole}, 1"); a("s_cbranch_scc1 L_wF")
    a(f"s_cmp_eq_u32 s{sRole}, 2"); a("s_cbranch_scc1 L_wR")
    a(f"s_mul_i32 s{sT0}, s{sOH}, 48"); a(f"s_mul_i32 s{sT1}, s{sW}, 12"); a(f"s_add_u32 s{sT0}, s{sT0}, s{sT1}")
    a(f"v_lshrrev_b32 v{T[0]}, 4, v{vL}"); a(f"v_add_u32 v{T[0]}, s{sT0}, v{T[0]}")
    a(f"v_mul_u32_u24 v{T[0]}, 1280, v{T[0]}")
    a(f"v_and_b32 v{T[1]}, 15, v{vL}"); a(f"v_lshlrev_b32 v{T[1]}, 4, v{T[1]}"); a(f"v_add_u32 v{T[0]}, v{T[0]}, v{T[1]}")
    a(f"v_mov_b32 v{T[1]}, s{pWO+1}")
    a(f"v_add_co_u32 v{WA}, vcc, s{pWO}, v{T[0]}"); a(f"v_addc_co_u32 v{WA+1}, vcc, 0, v{T[1]}, vcc")
    a(f"v_add_co_u32 v{WB}, vcc, 10240, v{WA}"); a(f"v_addc_co_u32 v{WB+1}, vcc, 0, v{WA+1}, vcc")
    a(f"s_mov_b32 s{sInc}, 256"); a(f"s_mov_b32 s{sInc4}, 4096")
    a("s_branch L_wdone")
    a.label("L_wF")
    a(f"v_lshrrev_b32 v{T[0]}, 2, v{vL}"); a(f"s_mul_i32 s{sT0}, s{sW}, 160"); a(f"v_add_u32 v{T[0]}, s{sT0}, v{T[0]}")
    a(f"v_mul_u32_u24 v{T[0]}, 3072, v{T[0]}")
    a(f"v_and_b32 v{T[1]}, 1, v{vL}"); a(f"v_lshlrev_b32 v{T[1]}, 4, v{T[1]}"); a(f"v_add_u32 v{T[0]}, v{T[0]}, v{T[1]}")
    a(f"s_lshl_b32 s{sT0}, s{sRI}, 5"); a(f"v_add_u32 v{T[0]}, s{sT0}, v{T[0]}")
    a(f"v_mov_b32 v{T[2]}, s{pWG}"); a(f"v_mov_b32 v{T[3]}, s{pWG+1}")
    a(f"v_mov_b32 v{T[4]}, s{pWU}"); a(f"v_mov_b32 v{T[5]}, s{pWU+1}")
    a(f"v_and_b32 v{T[1]}, 2, v{vL}"); a(f"v_cmp_ne_u32 vcc, 0, v{T[1]}")
    a(f"v_cndmask_b32 v{T[2]}, v{T[2]}, v{T[4]}, vcc"); a(f"v_cndmask_b32 v{T[3]}, v{T[3]}, v{T[5]}, vcc")
    a(f"v_add_co_u32 v{WA}, vcc, v{T[2]}, v{T[0]}"); a(f"v_addc_co_u32 v{WA+1}, vcc, 0, v{T[3]}, vcc")
    a(f"s_lshl_b32 s{sT0}, s{sRI}, 4"); a(f"s_lshl_b32 s{sT1}, s{sW}, 2"); a(f"s_add_u32 s{sT0}, s{sT0}, s{sT1}")
    a(f"v_lshrrev_b32 v{T[0]}, 4, v{vL}"); a(f"v_add_u32 v{T[0]}, s{sT0}, v{T[0]}")
    a(f"v_mul_u32_u24 v{T[0]}, 1280, v{T[0]}")
    a(f"v_and_b32 v{T[1]}, 15, v{vL}"); a(f"v_lshlrev_b32 v{T[1]}, 4, v{T[1]}"); a(f"v_add_u32 v{T[0]}, v{T[0]}, v{T[1]}")
    a(f"v_mov_b32 v{T[1]}, s{pWD+1}")
    a(f"v_add_co_u32 v{WB}, vcc, s{pWD}, v{T[0]}"); a(f"v_addc_co_u32 v{WB+1}, vcc, 0, v{T[1]}, vcc")
    a(f"s_mov_b32 s{sInc}, {16*3072}"); a(f"s_mov_b32 s{sInc4}, {16*3072}")
    a("s_branch L_wdone")
    a.label("L_wR")
    a(f"v_mov_b32 v{WA}, s{pWO}"); a(f"v_mov_b32 v{WA+1}, s{pWO+1}"); a(f"v_mov_b32 v{WB}, s{pWO}"); a(f"v_mov_b32 v{WB+1}, s{pWO+1}")
    a(f"s_mov_b32 s{sInc}, 0"); a(f"s_mov_b32 s{sInc4}, 0")
    a.label("L_wdone")
    def wload(k):
        if k < 10:
            a(f"global_load_dwordx4 {vr(W + 4*k, 4)}, {vr(WA,2)}, off {wpol}")
            if k < 9:
                a(f"v_add_co_u32 v{WA}, vcc, s{sInc4 if k == 4 else sInc}, v{WA}"); a(f"v_addc_co_u32 v{WA+1}, vcc, 0, v{WA+1}, vcc")
        else:
            a(f"global_load_dwordx4 {vr(W + 4*k, 4)}, {vr(WB,2)}, off offset:{256*(k-10)} {wpol}")
        vq.append(f"w{k}")
    vq[:] = ["v0"] * 3 + ["v1"] * 3 + ["ml"]
    for it in range(2):
        next_p()
        for g in range(8):
            n = 8 * it + g
            wait_for(f"v{n}")
            steady_issue((g + 2) % 8); vq.extend([f"v{n+2}"] * 3)
            if n < 15: wload(n)
            vcompute(g, g)
        progress()
    flag_read()
    a(f"s_mov_b32 s{sIt}, 2")
    a.label("L_vloop")
    MLR = vX
    def ml_issue():
        a(f"s_lshl_b32 s{sT0}, s{sHead}, 11"); a(f"s_add_u32 s{sT0}, s{sT0}, {ML}")
        a(f"v_min_u32 v{T[1]}, {NWH-1}, v{vL}"); a(f"v_lshlrev_b32 v{T[1]}, 4, v{T[1]}")
        a(f"buffer_load_dwordx4 {vr(MLR,4)}, v{T[1]}, {srd(WSR)}, s{sT0} offen sc1")
        if NWH > 64:
            a(f"buffer_load_dwordx4 {vr(MLR+4,4)}, v{T[1]}, {srd(WSR)}, s{sT0} offen offset:1024 sc1")
    def ml_check():
        check4(MLR, T[0], T[2], True)
        if NWH > 64: check4(MLR + 4, T[0], T[2], False)
    a(f"s_cmp_eq_u32 s{sIt}, {NIT-2}"); a("s_cbranch_scc0 L_vh1")
    ml_issue()
    if codepf:
        a(f"s_getpc_b64 {sp(58)}")
        a.label("L_pc2")
        a(f"s_lshr_b32 s{sT3}, s2, 3"); a(f"s_lshl_b32 s{sT3}, s{sT3}, 9")
        a(f"v_and_b32 v{T[1]}, 7, v{vL}"); a(f"v_lshlrev_b32 v{T[1]}, 6, v{T[1]}"); a(f"v_add_u32 v{T[1]}, s{sT3}, v{T[1]}")
        a(f"v_add_u32 v{T[1]}, L_tailcode-L_pc2, v{T[1]}")
        a(f"v_min_u32 v{T[1]}, L_codeend-L_pc2-4, v{T[1]}")
        a(f"global_load_dword v{T[2]}, v{T[1]}, {sp(58)}")
    a.label("L_vh1")
    a(f"s_cmp_eq_u32 s{sIt}, {NIT-1}"); a("s_cbranch_scc0 L_vh2")
    a.label("L_tailcode")
    ml_check()
    a(f"s_cmp_eq_u64 {sp(sBad)}, 0"); a("s_cbranch_scc1 L_mlok")
    poll(ml_issue, ml_check)
    a.label("L_mlok")
    mm, ll = MLR, MLR + 1
    if NWH > 64: a(f"v_max_f32 v{T[0]}, v{mm}, v{MLR+4}")
    else: a(f"v_mov_b32 v{T[0]}, v{mm}")
    a(f"v_and_b32 v{T[0]}, 0xffffff00, v{T[0]}")
    allreduce("v_max_f32", T[0], T[1])
    a(f"v_and_b32 v{mm}, 0xffffff00, v{mm}")
    a(f"v_sub_f32 v{T[2]}, v{mm}, v{T[0]}"); a(f"v_mul_f32 v{T[2]}, {f32hex(LOG2E)}, v{T[2]}"); a(f"v_exp_f32 v{T[2]}, v{T[2]}")
    a(f"v_mul_f32 v{T[2]}, v{T[2]}, v{ll}")
    if NWH > 64:
        a(f"v_and_b32 v{MLR+4}, 0xffffff00, v{MLR+4}")
        a(f"v_sub_f32 v{T[3]}, v{MLR+4}, v{T[0]}"); a(f"v_mul_f32 v{T[3]}, {f32hex(LOG2E)}, v{T[3]}"); a(f"v_exp_f32 v{T[3]}, v{T[3]}")
        a(f"v_fmac_f32 v{T[2]}, v{T[3]}, v{MLR+5}")
    elif NWH < 64:
        a(f"v_cmp_gt_u32 vcc, {NWH}, v{vL}"); a(f"v_cndmask_b32 v{T[2]}, 0, v{T[2]}, vcc")
    allreduce("v_add_f32", T[2], T[1])
    a(f"v_sub_f32 v{T[3]}, v{vMX}, v{T[0]}"); a(f"v_mul_f32 v{T[3]}, {f32hex(LOG2E)}, v{T[3]}"); a(f"v_exp_f32 v{T[3]}, v{T[3]}")
    a(f"v_rcp_f32 v{T[2]}, v{T[2]}")
    a(f"v_mul_f32 v{vAL}, v{T[3]}, v{T[2]}")
    red_addr()
    a(f"v_mul_u32_u24 v{T[1]}, 43691, v{vL}"); a(f"v_lshrrev_b32 v{T[1]}, 19, v{T[1]}")
    a(f"v_mul_u32_u24 v{T[2]}, 12, v{T[1]}"); a(f"v_sub_u32 v{T[2]}, v{vL}, v{T[2]}")
    a(f"v_mul_u32_u24 v{T[1]}, {WPH*192}, v{T[1]}"); a(f"v_lshlrev_b32 v{T[2]}, 4, v{T[2]}"); a(f"v_add_u32 v{vOPA}, v{T[1]}, v{T[2]}")
    a(f"s_mul_i32 s{sT0}, s{sHead}, {4*WPH*192}"); a(f"s_mul_i32 s{sT1}, s{sJ}, 192"); a(f"s_add_u32 s{sT0}, s{sT0}, s{sT1}"); a(f"s_add_u32 s{sU2}, s{sT0}, {OP}")
    P = vQ
    if nph > 1:
        a(f"s_cmp_lg_u32 s{sPh}, {nph-1}"); a("s_cbranch_scc1 L_vh2")
    a(f"v_lshrrev_b32 v{T[0]}, 5, v{vL}"); a(f"v_lshlrev_b32 v{T[0]}, 8, v{T[0]}")
    a(f"v_and_b32 v{T[1]}, 7, v{vL}"); a(f"v_lshlrev_b32 v{T[1]}, 5, v{T[1]}"); a(f"v_add_u32 v{T[0]}, v{T[0]}, v{T[1]}")
    a(f"v_and_b32 v{T[1]}, 16, v{vL}"); a(f"v_add_u32 v{T[0]}, v{T[0]}, v{T[1]}")
    a(f"s_mul_i32 s{sT0}, s{sW}, 2560"); a(f"v_add_u32 v{P}, s{sT0}, v{T[0]}")
    a(f"s_mov_b32 s{sT0}, {128*128}"); a(f"s_cmp_eq_u32 s{sRole}, 1"); a(f"s_cselect_b32 s{sT0}, {96*128}, s{sT0}")
    a(f"v_lshrrev_b32 v{T[1]}, 3, v0"); a(f"v_mul_u32_u24 v{T[1]}, s{sT0}, v{T[1]}")
    a(f"v_and_b32 v{T[2]}, 7, v0"); a(f"v_lshlrev_b32 v{T[2]}, 4, v{T[2]}"); a(f"v_add_u32 v{P+1}, v{T[1]}, v{T[2]}")
    for i in range(20): a(f"v_mov_b32 v{vX+i}, 0")
    a.label("L_vh2")
    next_p()
    controlled_loop("v", lambda g: vcompute(g, g), switch_to_nextK, None)
    progress()
    a(f"s_add_u32 s{sIt}, s{sIt}, 1")
    a(f"s_cmp_lt_u32 s{sIt}, {NIT}")
    a("s_cbranch_scc1 L_vloop")

    stamp(6)
    for i in range(12): a(f"v_mul_f32 v{vACC+i}, v{vACC+i}, v{vAL}")
    red_write()
    a("s_waitcnt lgkmcnt(0)"); a("s_barrier")
    a(f"s_cmp_lg_u32 s{sW}, 0"); a("s_cbranch_scc1 L_pubdone")
    SB = RING + 24
    a(f"v_lshlrev_b32 v{T[0]}, 4, v{vL}")
    set_exec("0x0000ffffffffffff")
    for s in range(8): a(f"ds_read_b128 {vr(SB+4*s,4)}, v{T[0]} offset:{L_RED + 768*s}")
    a("s_waitcnt lgkmcnt(4)")
    sum_quads(SB, [SB + 4, SB + 8, SB + 12])
    a("s_waitcnt lgkmcnt(0)")
    sum_quads(SB + 16, [SB + 20, SB + 24, SB + 28])
    sum_quads(SB, [SB + 16])
    tag4(SB)
    pub_store(vr(SB,4), vOPA, sU2)
    set_exec(-1)
    a.label("L_pubdone")
    if nph > 1:
        a(f"s_cmp_eq_u32 s{sPh}, {nph-1}"); a("s_cbranch_scc1 L_tail")
        a("s_barrier")
        a(f"s_add_u32 s{sPh}, s{sPh}, 1"); a(f"s_add_u32 s{sHead}, s{sHead}, {H}")
        load_q(); kinit()
        a(f"s_mov_b32 s{sIt}, 0")
        a("s_branch L_kloop")
    a.label("L_tail")
    stamp(7)
    RB = RING + 60
    a(f"s_cmp_eq_u32 s{sRole}, 1"); a("s_cbranch_scc1 L_roleF")
    a(f"s_cmp_eq_u32 s{sRole}, 2"); a("s_cbranch_scc1 L_roleR")

    def rowproj(ngroups, wbase, srcs, dstbase):
        for gi in range(ngroups):
            a_operand(srcs[gi])
            for cb in range(5):
                a(f"v_mfma_f32_16x16x32_bf16 {vr(vX+4*cb,4)}, {vr(vA,4)}, {vr(wbase + 4*(5*gi+cb),4)}, {vr(vX+4*cb,4)}")
        set_exec(USEFUL)
        for cb in range(5): a(f"ds_write_b128 v{P}, {vr(vX+4*cb,4)} offset:{L_RED2 + 512*cb}")
        set_exec(-1)
        a(f"v_lshlrev_b32 v{T[0]}, 4, v0")
        a(f"s_lshl_b32 s{sT0}, s{sRI}, 7"); a(f"s_add_u32 s{sT0}, s{sT0}, {dstbase}")
        a("s_waitcnt lgkmcnt(0)"); a("s_barrier")
        n = newlab()
        a(f"v_cmp_gt_u32 vcc, 160, v0"); a(f"s_and_saveexec_b64 {sp(sE)}, vcc"); a(f"s_cbranch_execz L_rpd{n}")
        for s in range(4): a(f"ds_read_b128 {vr(vX+4*s,4)}, v{T[0]} offset:{L_RED2 + 2560*s}")
        a("s_waitcnt lgkmcnt(0)")
        sum_quads(vX, [vX + 4]); sum_quads(vX + 8, [vX + 12]); sum_quads(vX, [vX + 8])
        tag4(vX)
        a(f"buffer_store_dwordx4 {vr(vX,4)}, v{P+1}, {srd(WSR)}, s{sT0} offen sc1")
        a.label(f"L_rpd{n}")
        a(f"s_mov_b64 exec, {sp(sE)}")

    NL = 2 if WPH == 32 else 1
    a(f"s_mul_i32 s{sT0}, s{sOH}, {WPH*192}"); a(f"s_add_u32 s{sU}, s{sT0}, {OP}")
    a(f"s_mul_i32 s{sT1}, s{sW}, 48"); a(f"s_add_u32 s{sU}, s{sU}, s{sT1}")
    a(f"v_lshrrev_b32 v{T[3]}, 2, v{vL}"); a(f"v_and_b32 v{T[3]}, {min(WPH,16)-1}, v{T[3]}"); a(f"v_mul_u32_u24 v{T[3]}, 192, v{T[3]}")
    a(f"v_and_b32 v{T[4]}, 3, v{vL}"); a(f"v_min_u32 v{T[4]}, 2, v{T[4]}"); a(f"v_lshlrev_b32 v{T[4]}, 4, v{T[4]}"); a(f"v_add_u32 v{T[3]}, v{T[3]}, v{T[4]}")
    def o_iss():
        for k in range(NL):
            a(f"buffer_load_dwordx4 {vr(RB+4*k,4)}, v{T[3]}, {srd(WSR)}, s{sU} offen offset:{3072*k} sc1")
    def o_chk():
        for k in range(NL): check4(RB + 4*k, T[0], T[1], k == 0)
    poll(o_iss, o_chk)
    stamp(8)
    if NL == 2: sum_quads(RB, [RB + 4])
    for m in ("row_ror:4", "row_ror:8"):
        for i in range(4): dpp("v_add_f32", RB + i, m)
    o4 = [("v_add_f32", RB + i) for i in range(4)]
    swap_reduce(o4, T[0:4], "v_permlane16_swap_b32")
    if WPH >= 16: swap_reduce(o4, T[0:4], "v_permlane32_swap_b32")
    for g in range(1, 4): a(f"v_cndmask_b32 v{RB}, v{RB}, v{RB+g}, {sp(sRow+2*(g-1))}")
    a(f"v_cvt_pk_bf16_f32 v{RB}, v{RB}, v{RB}")
    for gi in range(3): a(f"v_mov_b32_dpp v{RB+8+gi}, v{RB} quad_perm:[{gi},{gi},{gi},{gi}] row_mask:0xf bank_mask:0xf")
    rowproj(3, W, [RB+8, RB+9, RB+10], ZZ)
    dump_stamps()
    a("s_branch L_end")

    a.label("L_roleF")
    HQ = RB
    PK = RB + 16
    a(f"v_lshlrev_b32 v{T[3]}, 4, v{vL}")
    a(f"v_add_u32 v{T[4]}, 2048, v{T[3]}"); a(f"v_min_u32 v{T[4]}, 2544, v{T[4]}")
    a(f"v_min_u32 v{T[5]}, 39, v{vL}"); a(f"s_mul_i32 s{sT0}, s{sW}, 40"); a(f"v_add_u32 v{T[5]}, s{sT0}, v{T[5]}"); a(f"v_lshlrev_b32 v{T[5]}, 4, v{T[5]}")
    a(f"s_mov_b32 s{sU}, {HH}")
    def f_iss():
        a(f"buffer_load_dwordx4 {vr(HQ,4)}, v{T[3]}, {srd(WSR)}, s{sU} offen sc1")
        a(f"buffer_load_dwordx4 {vr(HQ+4,4)}, v{T[3]}, {srd(WSR)}, s{sU} offen offset:1024 sc1")
        a(f"buffer_load_dwordx4 {vr(HQ+8,4)}, v{T[4]}, {srd(WSR)}, s{sU} offen sc1")
        a(f"buffer_load_dwordx4 {vr(HQ+12,4)}, v{T[5]}, {srd(WSR)}, s{sU} offen sc1")
    def f_chk():
        for k in range(4): check4(HQ + 4*k, T[0], T[1], k == 0)
    FA = RING + 24
    FW = RB + 22
    DA = vACC
    def f_pre():
        a(f"s_lshl_b32 s{sT0}, s{sW}, 12"); a(f"s_add_u32 s{sT0}, s{sT0}, {L_SC}")
        a(f"v_lshlrev_b32 v{FW}, 6, v{vL}"); a(f"v_add_u32 v{FW}, s{sT0}, v{FW}")
        a(f"v_mov_b32 v{T[0]}, 0"); a(f"v_mov_b32 v{T[1]}, s{sT0}")
        a(f"ds_write_b32 v{T[1]}, v{T[0]} offset:2560")
        a(f"v_lshrrev_b32 v{FW+1}, 2, v{vL}"); a(f"v_lshlrev_b32 v{FW+1}, 4, v{FW+1}")
        a(f"v_and_b32 v{T[0]}, 3, v{vL}")
        a(f"v_mov_b32 v{T[1]}, 0x08000c04"); a(f"v_lshlrev_b32 v{T[0]}, 3, v{T[0]}"); a(f"v_lshrrev_b32 v{T[1]}, v{T[0]}, v{T[1]}"); a(f"v_and_b32 v{T[1]}, 0xff, v{T[1]}")
        a(f"v_add3_u32 v{FW+1}, v{FW+1}, v{T[1]}, s{sT0}")
        a(f"v_add_u32 v{FW+2}, 1024, v{FW+1}"); a(f"v_add_u32 v{FW+3}, 2048, v{FW+1}")
        a(f"v_lshrrev_b32 v{T[0]}, 4, v{vL}"); a(f"s_lshl_b32 s{sT0}, s{sW}, 2"); a(f"v_add_u32 v{T[0]}, s{sT0}, v{T[0]}"); a(f"v_lshlrev_b32 v{T[0]}, 7, v{T[0]}")
        a(f"v_and_b32 v{T[1]}, 3, v{vL}"); a(f"v_lshlrev_b32 v{T[1]}, 5, v{T[1]}"); a(f"v_add_u32 v{FW+4}, v{T[0]}, v{T[1]}")
        a(f"v_and_b32 v{T[0]}, 31, v{vL}"); a(f"v_lshlrev_b32 v{T[0]}, 2, v{T[0]}")
        a(f"v_lshrrev_b32 v{T[1]}, 5, v{vL}"); a(f"v_lshlrev_b32 v{T[1]}, 10, v{T[1]}"); a(f"v_add_u32 v{FW+5}, v{T[0]}, v{T[1]}")
        a(f"v_lshrrev_b32 v{T[0]}, 4, v{vL}"); a(f"s_lshl_b32 s{sT0}, s{sW}, 2"); a(f"v_add_u32 v{T[0]}, s{sT0}, v{T[0]}"); a(f"v_lshlrev_b32 v{FW+6}, 2, v{T[0]}")
        for i in range(8): a(f"v_mov_b32 v{DA+i}, 0")
        a(f"v_mov_b32 v{FW+7}, 0x3f803f80")
        a(f"v_cmp_gt_u32 {sp(sE)}, 32, v{vL}")
    poll(f_iss, f_chk, pre=f_pre)
    stamp(10)
    for k in range(3):
        a(f"v_perm_b32 v{PK+2*k}, v{HQ+4*k+1}, v{HQ+4*k}, s{sPkSel}"); a(f"v_perm_b32 v{PK+2*k+1}, v{HQ+4*k+3}, v{HQ+4*k+2}, s{sPkSel}")
    a(f"v_cndmask_b32 v{PK+4}, 0, v{PK+4}, {sp(sE)}"); a(f"v_cndmask_b32 v{PK+5}, 0, v{PK+5}, {sp(sE)}")
    t0, t1, t2, t3, t4 = T[0:5]
    a(f"v_dot2_f32_bf16 v{t0}, v{PK}, v{FW+7}, 0"); a(f"v_dot2_f32_bf16 v{t1}, v{PK}, v{PK}, 0")
    for i in range(1, 6):
        a(f"v_dot2_f32_bf16 v{t0}, v{PK+i}, v{FW+7}, v{t0}"); a(f"v_dot2_f32_bf16 v{t1}, v{PK+i}, v{PK+i}, v{t1}")
    for i in range(4): a(f"v_and_b32 v{HQ+12+i}, 0xffff0000, v{HQ+12+i}")
    allreduce_n([("v_add_f32", t0), ("v_add_f32", t1)], [t2, t3])
    ln_consts(t0, t1, t2)
    a(f"v_rcp_f32 v{t4}, v{t1}")
    O4 = HQ + 12
    for i in range(4): a(f"v_sub_f32 v{O4+i}, v{O4+i}, v{t0}")
    a(f"v_cvt_pk_bf16_f32 v{t2}, v{O4}, v{O4+1}"); a(f"v_cvt_pk_bf16_f32 v{t3}, v{O4+2}, v{O4+3}")
    a(f"v_lshlrev_b32 v{O4}, 16, v{t2}"); a(f"v_and_b32 v{O4+1}, 0xffff0000, v{t2}"); a(f"v_lshlrev_b32 v{O4+2}, 16, v{t3}"); a(f"v_and_b32 v{O4+3}, 0xffff0000, v{t3}")
    for i in range(4): a(f"v_mul_f32 v{O4+i}, v{O4+i}, v{t4}")
    a(f"v_cvt_pk_bf16_f32 v{t2}, v{O4}, v{O4+1}"); a(f"v_cvt_pk_bf16_f32 v{t3}, v{O4+2}, v{O4+3}")
    PR = FA
    for r_, (src, hi) in enumerate(((t2, 0), (t2, 1), (t3, 0), (t3, 1))):
        b = PR + 4 * r_
        a(f"v_mov_b32 v{b}, 0"); a(f"v_mov_b32 v{b+2}, 0")
        if hi:
            a(f"v_lshrrev_b32 v{b+1}, 16, v{src}"); a(f"v_and_b32 v{b+3}, 0xffff0000, v{src}")
        else:
            a(f"v_and_b32 v{b+1}, 0xffff, v{src}"); a(f"v_lshlrev_b32 v{b+3}, 16, v{src}")
    set_exec("0x000000ffffffffff")
    for r_ in range(4): a(f"ds_write_b128 v{FW}, {vr(PR+4*r_,4)} offset:{16*r_}")
    set_exec(-1)
    a("s_waitcnt lgkmcnt(0)")
    for k in range(10):
        base = FW + 1 + k // 4
        a(f"ds_read2_b32 {vr(FA+2*k,2)}, v{base} offset0:{(k%4)*64} offset1:{(k%4)*64+1}")
    DB = DA + 4
    for k in range(10):
        a(f"s_waitcnt lgkmcnt({9-k})")
        a(f"v_mfma_f32_4x4x4_16b_bf16 {vr(DA,4)}, {vr(FA+2*k,2)}, {vr(W+4*k,2)}, {vr(DA,4)}")
        a(f"v_mfma_f32_4x4x4_16b_bf16 {vr(DB,4)}, {vr(FA+2*k,2)}, {vr(W+4*k+2,2)}, {vr(DB,4)}")
    for m in ("row_ror:4", "row_ror:8"):
        for i in range(8): dpp("v_add_f32", DA + i, m)
    set_exec("0x000f000f000f000f")
    a(f"ds_write_b128 v{FW+4}, {vr(DA,4)} offset:{L_RED3}")
    a(f"ds_write_b128 v{FW+4}, {vr(DB,4)} offset:{L_RED3+16}")
    set_exec(-1)
    a("s_waitcnt lgkmcnt(0)"); a("s_barrier")
    HR = FA
    for s in range(8): a(f"ds_read_b32 v{HR+s}, v{FW+5} offset:{L_RED3 + 128*s}")
    a("s_waitcnt lgkmcnt(0)")
    for s in range(0, 8, 4): pkadd(HR + s, HR + s, HR + s + 2)
    pkadd(HR, HR, HR + 4)
    a(f"v_add_f32 v{HR}, v{HR}, v{HR+1}")
    a(f"v_mov_b32 v{T[0]}, v{HR}"); a(f"v_permlane32_swap_b32 v{T[0]}, v{HR}"); a(f"v_add_f32 v{HR}, v{HR}, v{T[0]}")
    rne(HR, HR)
    a(f"v_mov_b32 v{T[0]}, v{HR}"); a(f"v_permlane16_swap_b32 v{T[0]}, v{HR}")
    a(f"v_mul_f32 v{T[1]}, {f32hex(-LOG2E)}, v{T[0]}"); a(f"v_min_f32 v{T[1]}, 0x42fc0000, v{T[1]}"); a(f"v_exp_f32 v{T[1]}, v{T[1]}")
    a(f"v_add_f32 v{T[1]}, 1.0, v{T[1]}"); a(f"v_rcp_f32 v{T[2]}, v{T[1]}")
    a(f"v_mul_f32 v{T[3]}, v{T[0]}, v{T[2]}")
    rne(T[3], T[3])
    a(f"v_mul_f32 v{T[3]}, v{T[3]}, v{HR}")
    a(f"v_cvt_pk_bf16_f32 v{T[3]}, v{T[3]}, v{T[3]}")
    a(f"ds_bpermute_b32 v{HR+1}, v{FW+6}, v{T[3]}")
    a("s_waitcnt lgkmcnt(0)")
    stamp(11)
    rowproj(1, W + 40, [HR+1], YY)
    dump_stamps()
    a("s_branch L_end")

    a.label("L_roleR")
    a(f"s_cmp_ge_u32 s{sRI}, 20"); a("s_cbranch_scc1 L_fin")
    RS = RING + 24
    RS = RING + 40
    XS = RB
    WRr = RB + 8
    HV = RB + 16
    HPK = RB + 28
    HS = vQ + 4
    SIG = vQ + 8
    def reduce_parts(base, nsrc, nld, lds, pre=None):
        a(f"s_mul_i32 s{sU}, s{sRI}, {nsrc*128}"); a(f"s_add_u32 s{sU}, s{sU}, {base}")
        a(f"v_lshlrev_b32 v{T[3]}, 4, v0")
        def iss():
            for k in range(nld):
                a(f"s_add_u32 s{sT1}, s{sU}, {4096*k}")
                a(f"buffer_load_dwordx4 {vr(RS+4*k,4)}, v{T[3]}, {srd(WSR)}, s{sT1} offen sc1")
        def chk():
            for k in range(nld): check4(RS + 4*k, T[0], T[1], k == 0)
        def pre2():
            if pre: pre()
            a(f"v_and_b32 v{T[4]}, 7, v{vL}"); a(f"v_lshlrev_b32 v{T[4]}, 4, v{T[4]}")
            a(f"s_lshl_b32 s{sT0}, s{sW}, 7"); a(f"v_add_u32 v{T[5]}, s{sT0}, v{T[4]}")
        poll(iss, chk, pre=pre2)
        if nld == 4:
            sum_quads(RS, [RS + 4]); sum_quads(RS + 8, [RS + 12]); sum_quads(RS, [RS + 8])
        else:
            sum_quads(RS, [RS + 4, RS + 8])
        for i in range(4): dpp("v_add_f32", RS + i, "row_ror:8")
        o4 = [("v_add_f32", RS + i) for i in range(4)]
        swap_reduce(o4, [RS + 4 + i for i in range(4)], "v_permlane16_swap_b32")
        swap_reduce(o4, [RS + 4 + i for i in range(4)], "v_permlane32_swap_b32")
        set_exec("0x00000000000000ff")
        a(f"ds_write_b128 v{T[5]}, {vr(RS,4)} offset:{lds}")
        set_exec(-1)
        a("s_waitcnt lgkmcnt(0)"); a("s_barrier")
        for s in range(4): a(f"ds_read_b128 {vr(RS+4*s,4)}, v{T[4]} offset:{lds + 128*s}")
        a("s_waitcnt lgkmcnt(0)")
        sum_quads(RS, [RS + 4]); sum_quads(RS + 8, [RS + 12]); sum_quads(RS, [RS + 8])
    def r_pre1():
        a(f"v_and_b32 v{T[0]}, 7, v{vL}"); a(f"v_lshlrev_b32 v{T[0]}, 3, v{T[0]}"); a(f"s_lshl_b32 s{sT0}, s{sRI}, 6"); a(f"v_add_u32 v{T[0]}, s{sT0}, v{T[0]}")
        a(f"global_load_dwordx2 {vr(XS+4,2)}, v{T[0]}, {sp(pX)}")
        a(f"v_lshlrev_b32 v{T[1]}, 3, v{vL}"); a(f"v_add_u32 v{T[2]}, 1024, v{T[1]}"); a(f"v_min_u32 v{T[2]}, 1272, v{T[2]}")
        a(f"global_load_dwordx2 {vr(WRr,2)}, v{T[1]}, {sp(pWR)}")
        a(f"global_load_dwordx2 {vr(WRr+2,2)}, v{T[1]}, {sp(pWR)} offset:512")
        a(f"global_load_dwordx2 {vr(WRr+4,2)}, v{T[2]}, {sp(pWR)}")
        a(f"global_load_dword v{SIG}, v{T[0]}, {sp(pOUT)}")
    reduce_parts(ZZ, 128, 4, L_RED3, pre=r_pre1)
    stamp(9)
    for h in range(2):
        a(f"v_lshlrev_b32 v{XS+2*h}, 16, v{XS+4+h}"); a(f"v_and_b32 v{XS+2*h+1}, 0xffff0000, v{XS+4+h}")
    a(f"v_cvt_pk_bf16_f32 v{RS}, v{RS}, v{RS+1}"); a(f"v_cvt_pk_bf16_f32 v{RS+2}, v{RS+2}, v{RS+3}")
    a(f"v_and_b32 v{RS+1}, 0xffff0000, v{RS}"); a(f"v_lshlrev_b32 v{RS}, 16, v{RS}"); a(f"v_and_b32 v{RS+3}, 0xffff0000, v{RS+2}"); a(f"v_lshlrev_b32 v{RS+2}, 16, v{RS+2}")
    pkadd(XS, XS, RS); pkadd(XS + 2, XS + 2, RS + 2)
    a(f"v_cvt_pk_bf16_f32 v{RS}, v{XS}, v{XS+1}"); a(f"v_cvt_pk_bf16_f32 v{RS+2}, v{XS+2}, v{XS+3}")
    a(f"v_and_b32 v{XS+1}, 0xffff0000, v{RS}"); a(f"v_lshlrev_b32 v{XS}, 16, v{RS}"); a(f"v_and_b32 v{XS+3}, 0xffff0000, v{RS+2}"); a(f"v_lshlrev_b32 v{XS+2}, 16, v{RS+2}")
    for i in range(4): a(f"v_perm_b32 v{RS+i}, v{XS+i}, v{vN}, s{sSel+i}")
    a(f"s_cmp_lg_u32 s{sW}, 0"); a("s_cbranch_scc1 L_rnopub")
    a(f"v_lshlrev_b32 v{T[0]}, 4, v{vL}"); a(f"s_lshl_b32 s{sT0}, s{sRI}, 7"); a(f"s_add_u32 s{sT0}, s{sT0}, {HH}")
    set_exec("0x00000000000000ff")
    a(f"buffer_store_dwordx4 {vr(RS,4)}, v{T[0]}, {srd(WSR)}, s{sT0} offen sc1")
    set_exec(-1)
    a.label("L_rnopub")
    a(f"v_lshlrev_b32 v{T[3]}, 4, v{vL}")
    a(f"v_add_u32 v{T[4]}, 2048, v{T[3]}"); a(f"v_min_u32 v{T[4]}, 2544, v{T[4]}")
    a(f"s_mov_b32 s{sU}, {HH}")
    def r_iss():
        a(f"buffer_load_dwordx4 {vr(HV,4)}, v{T[3]}, {srd(WSR)}, s{sU} offen sc1")
        a(f"buffer_load_dwordx4 {vr(HV+4,4)}, v{T[3]}, {srd(WSR)}, s{sU} offen offset:1024 sc1")
        a(f"buffer_load_dwordx4 {vr(HV+8,4)}, v{T[4]}, {srd(WSR)}, s{sU} offen sc1")
    def r_chk():
        for k in range(3): check4(HV + 4*k, T[0], T[1], k == 0)
    poll(r_iss, r_chk)
    stamp(10)
    for i in range(12): a(f"v_and_b32 v{HV+i}, 0xffff0000, v{HV+i}")
    a(f"v_cmp_gt_u32 vcc, 32, v{vL}")
    for i in range(8, 12): a(f"v_cndmask_b32 v{HV+i}, 0, v{HV+i}, vcc")
    for k in range(6): a(f"v_perm_b32 v{HPK+k}, v{HV+2*k+1}, v{HV+2*k}, s{sPkSel}")
    layernorm_full(HV, HPK, T[0:5], False)
    a(f"v_cmp_gt_u32 vcc, 32, v{vL}")
    a(f"v_cndmask_b32 v{WRr+4}, 0, v{WRr+4}, vcc"); a(f"v_cndmask_b32 v{WRr+5}, 0, v{WRr+5}, vcc")
    a(f"v_dot2_f32_bf16 v{T[0]}, v{HPK}, v{WRr}, 0")
    for k in range(1, 6): a(f"v_dot2_f32_bf16 v{T[0]}, v{HPK+k}, v{WRr+k}, v{T[0]}")
    allreduce("v_add_f32", T[0], T[1])
    rne(T[0], T[0])
    a(f"v_mul_f32 v{T[1]}, {f32hex(-LOG2E)}, v{T[0]}"); a(f"v_min_f32 v{T[1]}, 0x42fc0000, v{T[1]}"); a(f"v_exp_f32 v{T[1]}, v{T[1]}")
    a(f"v_add_f32 v{T[1]}, 1.0, v{T[1]}"); a(f"v_rcp_f32 v{T[2]}, v{T[1]}")
    rne(SIG, T[2])
    a(f"s_lshl_b32 s{sT0}, s{sRI}, 3"); a(f"s_lshr_b32 s{sT1}, s{sT0}, 6"); a(f"s_and_b32 s{sT0}, s{sT0}, 63")
    a(f"v_and_b32 v{T[0]}, 7, v{vL}"); a(f"v_add_u32 v{T[0]}, s{sT0}, v{T[0]}"); a(f"v_lshlrev_b32 v{T[0]}, 2, v{T[0]}")
    for i in range(4): a(f"v_mov_b32 v{HS+i}, v{HV+i}")
    a(f"s_cmp_eq_u32 s{sT1}, 0"); a("s_cbranch_scc1 L_hs")
    for i in range(4): a(f"v_mov_b32 v{HS+i}, v{HV+4+i}")
    a(f"s_cmp_eq_u32 s{sT1}, 1"); a("s_cbranch_scc1 L_hs")
    for i in range(4): a(f"v_mov_b32 v{HS+i}, v{HV+8+i}")
    a.label("L_hs")
    for i in range(4): a(f"ds_bpermute_b32 v{HS+i}, v{T[0]}, v{HS+i}")
    a("s_waitcnt lgkmcnt(0)")
    stamp(11)
    def r_pre2():
        a(f"v_lshlrev_b32 v{SIG+1}, 3, v{vL}"); a(f"s_lshl_b32 s{sT0}, s{sRI}, 6"); a(f"v_add_u32 v{SIG+1}, s{sT0}, v{SIG+1}")
    reduce_parts(YY, 96, 3, L_RED2, pre=r_pre2)
    stamp(12)
    def rne4(b):
        a(f"v_cvt_pk_bf16_f32 v{b}, v{b}, v{b+1}"); a(f"v_cvt_pk_bf16_f32 v{b+2}, v{b+2}, v{b+3}")
        a(f"v_and_b32 v{b+1}, 0xffff0000, v{b}"); a(f"v_lshlrev_b32 v{b}, 16, v{b}"); a(f"v_and_b32 v{b+3}, 0xffff0000, v{b+2}"); a(f"v_lshlrev_b32 v{b+2}, 16, v{b+2}")
    rne4(RS)
    for i in range(4): a(f"v_mul_f32 v{RS+i}, v{RS+i}, v{SIG}")
    rne4(RS)
    pkadd(RS, RS, HS); pkadd(RS + 2, RS + 2, HS + 2)
    rne4(RS)
    pkadd(RS, RS, XS); pkadd(RS + 2, RS + 2, XS + 2)
    a(f"v_cvt_pk_bf16_f32 v{RS}, v{RS}, v{RS+1}"); a(f"v_cvt_pk_bf16_f32 v{RS+1}, v{RS+2}, v{RS+3}")
    a(f"s_cmp_lg_u32 s{sW}, 0"); a("s_cbranch_scc1 L_fin")
    set_exec("0x00000000000000ff")
    a(f"global_store_dwordx2 v{SIG+1}, {vr(RS,2)}, {sp(pOUT)}")
    a(f"s_cmp_lg_u32 s{sRI}, 0"); a("s_cbranch_scc1 L_fin")
    set_exec(1)
    a(f"v_mov_b32 v{T[1]}, 0")
    a(f"buffer_store_dword v{vN}, v{T[1]}, {srd(WSR)}, 0 offen offset:{EPOCH}")
    a.label("L_fin")
    dump_stamps()
    a.label("L_abort")
    a.label("L_end")
    a("s_endpgm")
    a.label("L_codeend")
    body = a.text()
    tail = f""".section .rodata,"a"
.p2align 6
.amdhsa_kernel {NAME}
  .amdhsa_next_free_vgpr {NV}
  .amdhsa_next_free_sgpr 100
  .amdhsa_accum_offset {NV}
  .amdhsa_group_segment_fixed_size 0
  .amdhsa_kernarg_size 104
  .amdhsa_user_sgpr_count 2
  .amdhsa_user_sgpr_kernarg_segment_ptr 1
  .amdhsa_system_sgpr_workgroup_id_x 1
.end_amdhsa_kernel
"""
    return body + tail

if __name__ == "__main__":
    kw = json.loads(sys.argv[1]) if len(sys.argv) > 1 else {}
    sys.stdout.write(gen(**kw))
```

```python
import sys, json, struct
from asmlib import Asm

NAME = "sequential_preLN__mha_block_cached__moe_arch_mod__decode_kernel"
def f32hex(x): return "0x%08x" % struct.unpack("<I", struct.pack("<f", x))[0]

HB = 12582912
EPOCH = 0
QP = 0x1000
ML = 0x48000
OP = 0x60000
ZZ = 0x130000
HH = 0x180000
YY = 0x181000
CLS = 0x1C0000
PROG = 0x1C1000
WS_SIZE = 0x200000
L_XN = 0
L_Q = 5120
L_RED = 6656
L_RED2 = 12800
L_RED3 = 23040
L_SC = 25088
L_CTL = 2048
L_REDH = 25088 + 16384 + 512
LDS_BYTES = 25088 + 16384 + 512 + 6144
LOG2E = 1.4426950408889634

def gen(H=32, PK=13, ctl=1, thr=27, local=1, pace=1, wpol="nt", qpol="nt", lds=LDS_BYTES, dbg=0, pol="nt", spin=1 << 19, codepf=1):
    nph = 32 // H
    WPH = 256 // H
    NWH = WPH * 4
    G = 4096 // NWH
    NIT = G // 8
    STRIDE = NWH * 3072
    assert 2 <= PK <= 13 and NIT >= 4
    a = Asm()

    vL, vSA, vN = 1, 2, 3
    vM = [4, 5, 6, 7]; vA = 8
    vQ = 12
    vACC = 24
    vC, vMX, vP, vPN, vBC = 36, 37, 38, 39, 40
    T = list(range(41, 48))
    RING = 48
    W = 144
    vX = 204
    vLS, vAL, vRA, vOPA, WA, WB = 224, 225, 226, 227, 228, 230
    vZ, vFL = 232, 233
    NV = 240
    vST = 240
    if dbg: NV = 248
    def ring(slot, t): b = RING + slot * 12 + 4 * t; return f"v[{b}:{b+3}]"
    def vr(b, n): return f"v[{b}:{b+n-1}]"
    sW = 3
    pX, pK, pV, pWQ, pWO, pBX, pWR, pWG, pWU, pWD, pOUT, pDBG, pWS = [4 + 2 * i for i in range(13)]
    STR, WSR, TMP = 32, 36, 40
    sOff, sIt, sHead, sWI, sPh, sNon, sRole, sRI = 44, 45, 46, 47, 48, 49, 50, 51
    sSel = 52
    sSelG = 56
    sT0, sT1, sT2, sT3 = 57, 58, 59, 60
    sInc = 61
    sMask = 62
    sSlot, sJ, sInc4, sSpin = 78, 79, 80, 81
    sE = 82
    sBad = 84
    sU, sU2 = 86, 87
    sRow = 90
    sLoc, sBst, sPrv, sGI, sOH = 30, 31, 97, 98, 99
    sPkSel = 96
    def sp(b): return f"s[{b}:{b+1}]"
    def srd(b): return f"s[{b}:{b+3}]"
    USEFUL = "0xFF00FF0000FF00FF"

    def stamp(k):
        if not dbg: return
        a("s_memrealtime s[88:89]"); a("s_waitcnt lgkmcnt(0)"); a(f"v_writelane_b32 v{vST}, s88, {k}")
    def dump_stamps(helper=False):
        if not dbg: return
        stamp(15)
        a("s_mov_b32 exec_lo, -1"); a("s_mov_b32 exec_hi, 0")
        if helper: a("s_add_u32 s88, s2, 1024")
        else: a(f"s_lshl_b32 s88, s2, 2"); a(f"s_add_u32 s88, s88, s{sW}")
        a("s_lshl_b32 s88, s88, 7"); a(f"s_add_u32 s88, s88, {WS_SIZE}")
        a(f"v_lshlrev_b32 v{vST+1}, 2, v{vL}")
        a(f"buffer_store_dword v{vST}, v{vST+1}, {srd(WSR)}, s88 offen")

    DPP4 = ("quad_perm:[1,0,3,2]", "quad_perm:[2,3,0,1]", "row_half_mirror", "row_mirror")
    def dpp(op, v, m): a(f"{op}_dpp v{v}, v{v}, v{v} {m} row_mask:0xf bank_mask:0xf")
    def swap_reduce(ops_vs, tmps, sw):
        for (op, v), t in zip(ops_vs, tmps): a(f"v_mov_b32 v{t}, v{v}")
        for (op, v), t in zip(ops_vs, tmps): a(f"{sw} v{t}, v{v}")
        for (op, v), t in zip(ops_vs, tmps): a(f"{op} v{v}, v{v}, v{t}")
    def allreduce_n(ops_vs, tmps):
        for m in DPP4:
            for op, v in ops_vs: dpp(op, v, m)
        swap_reduce(ops_vs, tmps, "v_permlane16_swap_b32")
        swap_reduce(ops_vs, tmps, "v_permlane32_swap_b32")
    def allreduce(op, v, t): allreduce_n([(op, v)], [t])
    def set_exec(val):
        if isinstance(val, str) and val.startswith("0x") and len(val) > 10:
            a(f"s_mov_b32 exec_lo, 0x{val[-8:]}"); a(f"s_mov_b32 exec_hi, 0x{val[2:-8]}")
        else:
            a(f"s_mov_b64 exec, {val}")
    def a_operand(src, dst=None):
        dst = vA if dst is None else dst
        for r in range(4): a(f"v_and_b32 v{dst+r}, v{src}, v{vM[r]}")
    def tag4(b):
        for r in range(4): a(f"v_perm_b32 v{b+r}, v{b+r}, v{vN}, s{sSel+r}")
    def check4(b, t0, t1, first):
        a(f"v_perm_b32 v{t0}, v{b+1}, v{b}, s{sSelG}")
        a(f"v_perm_b32 v{t1}, v{b+3}, v{b+2}, s{sSelG}")
        a(f"v_lshl_or_b32 v{t0}, v{t1}, 16, v{t0}")
        a(f"v_cmp_ne_u32 vcc, v{t0}, v{vN}")
        if first: a(f"s_mov_b64 {sp(sBad)}, vcc")
        else: a(f"s_or_b64 {sp(sBad)}, {sp(sBad)}, vcc")
    lab = [0]
    def newlab():
        lab[0] += 1; return lab[0]
    def poll(issue, check, pre=None, first_issued=False, first_wait=0):
        n = newlab()
        a(f"s_mov_b32 s{sSpin}, {spin}")
        if not first_issued: issue()
        if pre: pre()
        a(f"s_waitcnt vmcnt({first_wait})")
        a(f"s_branch L_pollchk{n}")
        a.label(f"L_poll{n}")
        a(f"s_sub_u32 s{sSpin}, s{sSpin}, 1")
        a(f"s_cmp_eq_u32 s{sSpin}, 0")
        a("s_cbranch_scc1 L_abort")
        issue()
        a("s_waitcnt vmcnt(0)")
        a.label(f"L_pollchk{n}")
        check()
        a(f"s_cmp_lg_u64 {sp(sBad)}, 0")
        a(f"s_cbranch_scc1 L_poll{n}")
    def pub_store(data, voff, soff):
        n = newlab()
        if local:
            a(f"s_cmp_eq_u32 s{sLoc}, 1"); a(f"s_cbranch_scc1 L_pl{n}")
        a(f"buffer_store_dwordx4 {data}, v{voff}, {srd(WSR)}, s{soff} offen sc1")
        if local:
            a(f"s_branch L_pd{n}")
            a.label(f"L_pl{n}")
            a(f"buffer_store_dwordx4 {data}, v{voff}, {srd(WSR)}, s{soff} offen")
            a.label(f"L_pd{n}")
    def rne(dst, src):
        a(f"v_cvt_pk_bf16_f32 v{dst}, v{src}, v{src}")
        a(f"v_lshlrev_b32 v{dst}, 16, v{dst}")
    def pkadd(d, x, y): a(f"v_pk_add_f32 {vr(d,2)}, {vr(x,2)}, {vr(y,2)}")
    def sum_quads(dst, srcs):
        for s in srcs:
            pkadd(dst, dst, s); pkadd(dst + 2, dst + 2, s + 2)

    def ln_consts(s1, s2, t):
        a(f"v_mul_f32 v{s1}, {f32hex(1.0/640)}, v{s1}")
        a(f"v_mul_f32 v{s2}, {f32hex(1.0/640)}, v{s2}")
        a(f"v_fma_f32 v{s2}, -v{s1}, v{s1}, v{s2}")
        a(f"v_max_f32 v{s2}, 0, v{s2}")
        rne(s2, s2)
        a(f"v_add_f32 v{s2}, {f32hex(1e-5)}, v{s2}")
        rne(s2, s2)
        rne(s1, s1)
        a(f"v_sqrt_f32 v{s2}, v{s2}")
        rne(s2, s2)

    def layernorm_full(val, pk, tmp, refine):
        t0, t1, t2, t3, t4 = tmp
        ONES = t4
        a(f"v_mov_b32 v{ONES}, 0x3f803f80")
        a(f"v_dot2_f32_bf16 v{t0}, v{pk}, v{ONES}, 0"); a(f"v_dot2_f32_bf16 v{t1}, v{pk}, v{pk}, 0")
        for i in range(1, 6):
            a(f"v_dot2_f32_bf16 v{t0}, v{pk+i}, v{ONES}, v{t0}"); a(f"v_dot2_f32_bf16 v{t1}, v{pk+i}, v{pk+i}, v{t1}")
        allreduce_n([("v_add_f32", t0), ("v_add_f32", t1)], [t2, t3])
        ln_consts(t0, t1, t2)
        a(f"v_rcp_f32 v{t4}, v{t1}")
        for i in range(0, 12, 2):
            a(f"v_sub_f32 v{val+i}, v{val+i}, v{t0}")
            a(f"v_sub_f32 v{val+i+1}, v{val+i+1}, v{t0}")
            a(f"v_cvt_pk_bf16_f32 v{t2}, v{val+i}, v{val+i+1}")
            a(f"v_lshlrev_b32 v{val+i}, 16, v{t2}")
            a(f"v_and_b32 v{val+i+1}, 0xffff0000, v{t2}")
            for k in (i, i + 1):
                if refine:
                    a(f"v_mul_f32 v{t2}, v{val+k}, v{t4}")
                    a(f"v_fma_f32 v{t3}, -v{t2}, v{t1}, v{val+k}")
                    a(f"v_fma_f32 v{val+k}, v{t3}, v{t4}, v{t2}")
                else:
                    a(f"v_mul_f32 v{val+k}, v{val+k}, v{t4}")
            a(f"v_cvt_pk_bf16_f32 v{pk + i//2}, v{val+i}, v{val+i+1}")
            a(f"v_lshlrev_b32 v{val+i}, 16, v{pk + i//2}")
            a(f"v_and_b32 v{val+i+1}, 0xffff0000, v{pk + i//2}")

    a.lines.append(f"; @launch grid=(256,1,1) block=(320,1,1) lds={lds}")
    a.lines.append('.amdgcn_target "amdgcn-amd-amdhsa--gfx950"')
    a.lines += [".text", f".globl {NAME}", ".p2align 8", f".type {NAME},@function"]
    a.label(NAME)
    a("s_cmp_ge_u32 s2, 256")
    a("s_cbranch_scc1 L_end")
    a("s_load_dwordx16 s[4:19], s[0:1], 0")
    a("s_load_dwordx8 s[20:27], s[0:1], 64")
    a("s_load_dwordx2 s[28:29], s[0:1], 96")
    a(f"v_and_b32 v{vL}, 63, v0")
    a(f"v_lshrrev_b32 v{T[0]}, 6, v0")
    a(f"v_lshrrev_b32 v{T[2]}, 3, v{vL}")
    a(f"v_readfirstlane_b32 s{sW}, v{T[0]}")
    a(f"v_and_b32 v{T[3]}, 7, v{vL}")
    a(f"v_lshlrev_b32 v{T[4]}, 4, v{T[3]}")
    def masks():
        for r in range(4):
            a(f"v_mov_b32 v{vM[r]}, 0")
            a(f"v_mov_b32 v{T[5]}, 0xffff")
            a(f"v_cmp_eq_u32 vcc, {2*r}, v{T[3]}")
            a(f"v_cndmask_b32 v{vM[r]}, v{vM[r]}, v{T[5]}, vcc")
            a(f"v_mov_b32 v{T[5]}, 0xffff0000")
            a(f"v_cmp_eq_u32 vcc, {2*r+1}, v{T[3]}")
            a(f"v_cndmask_b32 v{vM[r]}, v{vM[r]}, v{T[5]}, vcc")
    def ws_srd():
        a(f"s_mov_b32 s{WSR}, s{pWS}"); a(f"s_mov_b32 s{WSR+1}, s{pWS+1}"); a(f"s_mov_b32 s{WSR+2}, {WS_SIZE * (2 if dbg else 1)}"); a(f"s_mov_b32 s{WSR+3}, 0x20000")
    vq = []
    def wait_for(name):
        if name not in vq: return
        idx = max(i for i, n in enumerate(vq) if n == name)
        n = len(vq) - 1 - idx
        a(f"s_waitcnt vmcnt({min(n, 63)})")
        del vq[:idx + 1]
    def red_addr():
        a(f"v_lshrrev_b32 v{T[0]}, 5, v{vL}")
        a(f"v_mul_u32_u24 v{vRA}, 768, v{T[0]}")
        a(f"v_and_b32 v{T[0]}, 7, v{vL}"); a(f"v_lshlrev_b32 v{T[0]}, 5, v{T[0]}"); a(f"v_add_u32 v{vRA}, v{vRA}, v{T[0]}")
        a(f"v_and_b32 v{T[0]}, 16, v{vL}"); a(f"v_add_u32 v{vRA}, v{vRA}, v{T[0]}")
        a(f"s_mul_i32 s{sT0}, s{sW}, 1536"); a(f"v_add_u32 v{vRA}, s{sT0}, v{vRA}")
    def red_write():
        set_exec(USEFUL)
        for t in range(3): a(f"ds_write_b128 v{vRA}, {vr(vACC+4*t,4)} offset:{L_RED + 256*t}")
        set_exec(-1)
    a(f"s_cmp_lg_u32 s{sW}, 4"); a("s_cbranch_scc1 L_stream")
    a("s_setprio 3")

    WD = RING
    XQ = 168
    XV = 176
    XR = 188
    a(f"s_and_b32 s{sT0}, s2, 31"); a(f"s_lshr_b32 s{sT1}, s2, 5")
    a(f"v_mul_u32_u24 v{T[6]}, 12288, v{T[2]}")
    a(f"s_mul_i32 s{sT2}, s{sT0}, 384")
    a(f"v_add3_u32 v{T[6]}, v{T[6]}, v{T[4]}, s{sT2}")
    a(f"s_mul_i32 s{sT3}, s{sT1}, {80*12288}")
    a(f"v_lshlrev_b32 v{T[1]}, 3, v{vL}")
    a(f"v_add_u32 v{T[5]}, 1024, v{T[1]}")
    a(f"v_min_u32 v{T[5]}, 1272, v{T[5]}")
    a(f"s_mov_b32 s{TMP+2}, 7864320"); a(f"s_mov_b32 s{TMP+3}, 0x20000")
    a("s_waitcnt lgkmcnt(0)")
    a(f"s_mov_b32 s{TMP}, s{pWQ}"); a(f"s_mov_b32 s{TMP+1}, s{pWQ+1}")
    a(f"global_load_dwordx2 {vr(XQ,2)}, v{T[1]}, {sp(pX)}")
    a(f"global_load_dwordx2 {vr(XQ+2,2)}, v{T[1]}, {sp(pX)} offset:512")
    a(f"global_load_dwordx2 {vr(XQ+4,2)}, v{T[5]}, {sp(pX)}")
    vq += ["x0", "x1", "x2"]
    for k in range(10):
        for t in range(3):
            a(f"buffer_load_dwordx4 {vr(WD + 12*k + 4*t, 4)}, v{T[6]}, {srd(TMP)}, s{sT3} offen offset:{128*t} {qpol}")
            vq.append(f"wq{k}")
        if k < 9: a(f"s_add_u32 s{sT3}, s{sT3}, {8*12288}")
    a(f"v_mov_b32 v{vZ}, 0")
    for o in range(0, 36, 4): a(f"ds_write_b32 v{vZ}, v{vZ} offset:{L_CTL + o}")
    a("s_waitcnt lgkmcnt(0)")
    a("s_barrier")
    a(f"s_load_dword s{sNon}, {sp(pWS)}, {EPOCH}")
    if dbg: a(f"v_mov_b32 v{vST}, 0")
    stamp(0)
    masks()
    ws_srd()
    a(f"s_and_b32 s{sSlot}, s2, {H-1}")
    wait_for("x2")
    stamp(18)
    CE = 198
    a("s_waitcnt lgkmcnt(0)")
    a(f"s_add_u32 s{sNon}, s{sNon}, 0x9e3779b9")
    a(f"v_mov_b32 v{vN}, s{sNon}")
    a(f"s_getreg_b32 s{sT0}, hwreg(HW_REG_XCC_ID, 0, 4)")
    a(f"s_and_b32 s{sT1}, s{sNon}, 0xfffffff0"); a(f"s_or_b32 s{sT0}, s{sT0}, s{sT1}")
    a(f"v_mov_b32 v{CE}, s{sT0}")
    a(f"s_and_b32 s{sU2}, s2, 7"); a(f"s_lshl_b32 s{sU2}, s{sU2}, 7")
    a(f"s_lshr_b32 s{sT1}, s2, 3"); a(f"s_lshl_b32 s{sT1}, s{sT1}, 2"); a(f"s_add_u32 s{sT1}, s{sT1}, s{sU2}"); a(f"s_add_u32 s{sT1}, s{sT1}, {CLS}")
    if local:
        set_exec(1)
        a(f"buffer_store_dword v{CE}, v{vZ}, {srd(WSR)}, s{sT1} offen")
        set_exec(-1)
        vq.append("cls_st")
    a(f"v_cmp_gt_u32 vcc, 32, v{vL}")
    a(f"v_cndmask_b32 v{XQ+4}, 0, v{XQ+4}, vcc"); a(f"v_cndmask_b32 v{XQ+5}, 0, v{XQ+5}, vcc")
    for k in range(6):
        a(f"v_lshlrev_b32 v{XV+2*k}, 16, v{XQ+k}")
        a(f"v_and_b32 v{XV+2*k+1}, 0xffff0000, v{XQ+k}")
    layernorm_full(XV, XQ, T[0:5], True)
    a(f"v_lshlrev_b32 v{T[0]}, 3, v{vL}")
    a(f"ds_write_b64 v{T[0]}, {vr(XQ,2)} offset:{L_XN}")
    a(f"ds_write_b64 v{T[0]}, {vr(XQ+2,2)} offset:{L_XN+512}")
    set_exec("0x00000000ffffffff")
    a(f"ds_write_b64 v{T[0]}, {vr(XQ+4,2)} offset:{L_XN+1024}")
    set_exec(-1)
    a(f"s_lshr_b32 s{sT1}, s2, 5"); a(f"s_mul_i32 s{sT1}, s{sT1}, 160")
    a(f"v_lshrrev_b32 v{T[0]}, 3, v{vL}"); a(f"v_lshlrev_b32 v{T[0]}, 1, v{T[0]}"); a(f"v_add_u32 v{T[0]}, s{sT1}, v{T[0]}")
    a("s_waitcnt lgkmcnt(0)")
    for k in range(10): a(f"ds_read_u16 v{XR+k}, v{T[0]} offset:{L_XN + 16*k}")
    for i in range(12): a(f"v_mov_b32 v{vACC+i}, 0")
    a("s_waitcnt lgkmcnt(0)")
    for k in range(10): a(f"v_lshl_or_b32 v{XR+k}, v{XR+k}, 16, v{XR+k}")
    stamp(1)
    def cls_issue():
        a(f"v_and_b32 v{T[5]}, 31, v{vL}"); a(f"v_lshlrev_b32 v{T[5]}, 2, v{T[5]}")
        a(f"s_add_u32 s{sT2}, s{sU2}, {CLS}")
        a(f"buffer_load_dword v{CE+1}, v{T[5]}, {srd(WSR)}, s{sT2} offen sc1")
    for k in range(10):
        a_operand(XR + k)
        if k == 8 and local:
            cls_issue(); vq.append("cls_ld")
        wait_for(f"wq{k}")
        for t in range(3):
            a(f"v_mfma_f32_16x16x32_bf16 {vr(vACC+4*t,4)}, {vr(vA,4)}, {vr(WD+12*k+4*t,4)}, {vr(vACC+4*t,4)}")
    a(f"v_lshrrev_b32 v{T[0]}, 5, v{vL}"); a(f"v_mul_u32_u24 v{vRA}, 768, v{T[0]}")
    a(f"v_and_b32 v{T[0]}, 7, v{vL}"); a(f"v_lshlrev_b32 v{T[0]}, 5, v{T[0]}"); a(f"v_add_u32 v{vRA}, v{vRA}, v{T[0]}")
    a(f"v_and_b32 v{T[0]}, 16, v{vL}"); a(f"v_add_u32 v{vRA}, v{vRA}, v{T[0]}")
    a(f"v_mul_u32_u24 v{T[0]}, 12, v{vL}")
    a(f"s_and_b32 s{sT0}, s2, 31"); a(f"s_lshr_b32 s{sT1}, s2, 5"); a(f"s_lshl_b32 s{sT0}, s{sT0}, 3"); a(f"s_add_u32 s{sT0}, s{sT0}, s{sT1}")
    a(f"s_lshl_b32 s{sT0}, s{sT0}, 10"); a(f"s_add_u32 s{sT0}, s{sT0}, {QP}")
    a(f"v_lshlrev_b32 v{T[1]}, 4, v{vL}")
    red_write()
    a("s_waitcnt lgkmcnt(0)")
    S3 = 200
    for s in range(2):
        for i in range(3): a(f"ds_read_b32 v{S3+4*s+i}, v{T[0]} offset:{L_RED + 768*s + 4*i}")
    a("s_waitcnt lgkmcnt(0)")
    pkadd(S3, S3, S3 + 4); a(f"v_add_f32 v{S3+2}, v{S3+2}, v{S3+6}")
    a(f"v_mov_b32 v{S3+3}, v{vN}")
    a(f"s_mov_b32 s{sLoc}, 0")
    if local:
        a(f"s_mov_b32 s{sSpin}, 8")
        a("s_waitcnt vmcnt(0)")
        a.label("L_clschk")
        a(f"v_cmp_ne_u32 vcc, v{CE+1}, v{CE}")
        a(f"s_cmp_eq_u64 vcc, 0"); a(f"s_cselect_b32 s{sLoc}, 1, 0"); a("s_cbranch_scc1 L_clsdone")
        a(f"s_sub_u32 s{sSpin}, s{sSpin}, 1"); a(f"s_cmp_eq_u32 s{sSpin}, 0"); a("s_cbranch_scc1 L_clsdone")
        cls_issue(); a("s_waitcnt vmcnt(0)"); a("s_branch L_clschk")
        a.label("L_clsdone")
    pub_store(vr(S3,4), T[1], sT0)
    a(f"v_mov_b32 v{T[2]}, s{sLoc}"); a(f"ds_write_b32 v{vZ}, v{T[2]} offset:{L_CTL + 8}")
    stamp(21)
    S4 = RING
    for p in range(nph):
        a(f"s_add_u32 s{sU}, s{sSlot}, {H*p}"); a(f"s_lshl_b32 s{sU}, s{sU}, 13"); a(f"s_add_u32 s{sU}, s{sU}, {QP}")
        def iss():
            for s in range(8):
                a(f"s_add_u32 s{sT1}, s{sU}, {1024*s}")
                a(f"buffer_load_dwordx4 {vr(S4+4*s,4)}, v{T[1]}, {srd(WSR)}, s{sT1} offen sc1")
        def chk():
            for s in range(8):
                a(f"v_cmp_ne_u32 vcc, v{S4+4*s+3}, v{vN}")
                a(f"s_mov_b64 {sp(sBad)}, vcc" if s == 0 else f"s_or_b64 {sp(sBad)}, {sp(sBad)}, vcc")
        poll(iss, chk)
        if p == 0: stamp(22)
        for s in range(1, 8):
            pkadd(S4, S4, S4 + 4*s); a(f"v_add_f32 v{S4+2}, v{S4+2}, v{S4+4*s+2}")
        a(f"v_cvt_pk_bf16_f32 v{S4}, v{S4}, v{S4+1}")
        a(f"v_cvt_pk_bf16_f32 v{S4+2}, v{S4+2}, v{S4+2}")
        a(f"v_mul_u32_u24 v{T[0]}, 6, v{vL}")
        a(f"ds_write_b16 v{T[0]}, v{S4} offset:{L_Q + 384*p}")
        a(f"ds_write_b16_d16_hi v{T[0]}, v{S4} offset:{L_Q + 384*p + 2}")
        a(f"ds_write_b16 v{T[0]}, v{S4+2} offset:{L_Q + 384*p + 4}")
        a("s_waitcnt lgkmcnt(0)")
        if nph > 1:
            a(f"v_mov_b32 v{T[0]}, {p+1}"); a(f"ds_write_b32 v{vZ}, v{T[0]} offset:{L_CTL + 32}"); a("s_waitcnt lgkmcnt(0)")
        if p == 0:
            a("s_barrier")
            if codepf:
                a(f"s_getpc_b64 {sp(58)}")
                a.label("L_pc")
                a(f"s_lshr_b32 s{sT3}, s2, 3"); a(f"s_lshl_b32 s{sT3}, s{sT3}, 9")
                a(f"v_and_b32 v{T[0]}, 7, v{vL}"); a(f"v_lshlrev_b32 v{T[0]}, 6, v{T[0]}"); a(f"v_add_u32 v{T[0]}, s{sT3}, v{T[0]}")
                a(f"v_add_u32 v{T[0]}, L_kcode-L_pc, v{T[0]}")
                a(f"v_min_u32 v{T[0]}, L_codeend-L_pc-4, v{T[0]}")
                a(f"global_load_dword v{vP}, v{T[0]}, {sp(58)}")
    if ctl or nph > 1:
        NTOT = 2 * NIT * nph
        sPub = sPh
        HBUF = RING
        a(f"s_and_b32 s{sT0}, s{sNon}, 0xffffff00"); a(f"v_mov_b32 v{T[3]}, s{sT0}")
        a(f"s_add_u32 s{sU}, s{sU2}, {PROG}")
        a(f"v_and_b32 v{T[4]}, 31, v{vL}"); a(f"v_lshlrev_b32 v{T[4]}, 2, v{T[4]}")
        a(f"s_lshr_b32 s{sT1}, s2, 3"); a(f"s_lshl_b32 s{sT1}, s{sT1}, 2"); a(f"v_mov_b32 v{T[5]}, s{sT1}")
        a(f"s_mov_b32 s{sGI}, 0"); a(f"s_mov_b32 s{sSpin}, {1 << 22}"); a(f"s_mov_b32 s{sPub}, 0")
        if nph > 1:
            for r in range(4): a(f"s_mov_b32 s{sSel+r}, 0x{0x07060500 | r:08x}")
            a(f"s_lshr_b32 s{sJ}, s2, {H.bit_length()-1}")
            a(f"v_mul_u32_u24 v{T[1]}, 43691, v{vL}"); a(f"v_lshrrev_b32 v{T[1]}, 19, v{T[1]}")
            a(f"v_mul_u32_u24 v{T[2]}, 12, v{T[1]}"); a(f"v_sub_u32 v{T[2]}, v{vL}, v{T[2]}")
            a(f"v_mul_u32_u24 v{T[1]}, {WPH*192}, v{T[1]}"); a(f"v_lshlrev_b32 v{T[2]}, 4, v{T[2]}"); a(f"v_add_u32 v{vOPA}, v{T[1]}, v{T[2]}")
            a(f"v_lshlrev_b32 v{vRA}, 4, v{vL}")
        a.label("L_cspin")
        a("s_sleep 4")
        a(f"ds_read_b32 v{T[0]}, v{vZ} offset:{L_CTL}")
        if nph > 1: a(f"ds_read_b128 {vr(vA,4)}, v{vZ} offset:{L_CTL + 16}")
        a("s_waitcnt lgkmcnt(0)"); a(f"v_readfirstlane_b32 s{sT0}, v{T[0]}")
        a(f"s_sub_u32 s{sSpin}, s{sSpin}, 1"); a(f"s_cmp_eq_u32 s{sSpin}, 0"); a("s_cbranch_scc1 L_cdone")
        if nph > 1:
            a(f"v_min_u32 v{vA}, v{vA}, v{vA+1}"); a(f"v_min_u32 v{vA+2}, v{vA+2}, v{vA+3}"); a(f"v_min_u32 v{vA}, v{vA}, v{vA+2}")
            a(f"v_readfirstlane_b32 s{sT1}, v{vA}")
            a(f"s_cmp_gt_u32 s{sT1}, s{sPub}"); a("s_cbranch_scc0 L_cnopub")
            set_exec("0x0000ffffffffffff")
            for s_ in range(8): a(f"ds_read_b128 {vr(HBUF+4*s_,4)}, v{vRA} offset:{L_REDH + 768*s_}")
            a("s_waitcnt lgkmcnt(0)")
            a(f"s_add_u32 s{sT1}, s{sPub}, 1"); a(f"v_mov_b32 v{T[1]}, s{sT1}"); a(f"ds_write_b32 v{vZ}, v{T[1]} offset:{L_CTL + 12}")
            sum_quads(HBUF, [HBUF + 4*k for k in range(1, 8)])
            tag4(HBUF)
            a(f"s_mul_i32 s{sT2}, s{sPub}, {H}"); a(f"s_add_u32 s{sT2}, s{sT2}, s{sSlot}")
            a(f"s_mul_i32 s{sT2}, s{sT2}, {4*WPH*192}"); a(f"s_mul_i32 s{sT3}, s{sJ}, 192"); a(f"s_add_u32 s{sT2}, s{sT2}, s{sT3}"); a(f"s_add_u32 s{sT2}, s{sT2}, {OP}")
            pub_store(vr(HBUF,4), vOPA, sT2)
            set_exec(-1)
            a(f"s_mov_b32 s{sPub}, s{sT1}")
            a.label("L_cnopub")
        if ctl:
            a(f"s_cmp_eq_u32 s{sT0}, s{sGI}"); a("s_cbranch_scc1 L_cchk")
            a(f"s_mov_b32 s{sGI}, s{sT0}")
            a(f"buffer_load_dword v{T[1]}, v{T[4]}, {srd(WSR)}, s{sU} offen sc1")
            a(f"v_or_b32 v{T[2]}, s{sGI}, v{T[3]}")
            set_exec(1)
            a(f"buffer_store_dword v{T[2]}, v{T[5]}, {srd(WSR)}, s{sU} offen")
            set_exec(-1)
            a("s_waitcnt vmcnt(1)")
            a(f"v_xor_b32 v{T[1]}, v{T[1]}, v{T[3]}")
            a(f"v_cmp_le_u32 vcc, s{sGI}, v{T[1]}"); a(f"s_mov_b32 s{sT2}, vcc_lo")
            a(f"v_cmp_gt_u32 vcc, 256, v{T[1]}"); a(f"s_and_b32 s{sT2}, s{sT2}, vcc_lo")
            a(f"s_bcnt1_i32_b32 s{sT2}, s{sT2}")
            a(f"s_cmp_ge_u32 s{sT2}, {thr}"); a(f"s_cselect_b32 s{sT2}, 1, 0")
            a(f"v_mov_b32 v{T[0]}, s{sT2}"); a(f"ds_write_b32 v{vZ}, v{T[0]} offset:{L_CTL + 4}")
            a.label("L_cchk")
            a(f"s_cmp_lt_u32 s{sGI}, {NTOT - 2}"); a("s_cbranch_scc1 L_cspin")
        if nph > 1:
            a(f"s_cmp_lt_u32 s{sPub}, {nph - 1}"); a("s_cbranch_scc1 L_cspin")
        a.label("L_cdone")
        a("s_waitcnt vmcnt(0) lgkmcnt(0)")
    dump_stamps(True)
    a("s_endpgm")

    a.label("L_stream")
    vq[:] = []
    a(f"v_mul_u32_u24 v{vSA}, 384, v{T[2]}")
    a(f"v_add_u32 v{vSA}, v{vSA}, v{T[4]}")
    a(f"s_and_b32 s{sSlot}, s2, {H-1}")
    a(f"s_lshr_b32 s{sJ}, s2, {H.bit_length()-1}")
    a(f"s_lshl_b32 s{sWI}, s{sJ}, 2")
    a(f"s_add_u32 s{sWI}, s{sWI}, s{sW}")
    a(f"s_mov_b32 s{sHead}, s{sSlot}")
    a(f"s_mov_b32 s{sPh}, 0")
    a(f"s_mul_i32 s{sT0}, s{sHead}, {HB}")
    a(f"s_mul_i32 s{sOff}, s{sWI}, 3072")
    a(f"s_mov_b32 s{STR+2}, {HB}"); a(f"s_mov_b32 s{STR+3}, 0x20000")
    a("s_waitcnt lgkmcnt(0)")
    a(f"s_add_u32 s{STR}, s{pK}, s{sT0}"); a(f"s_addc_u32 s{STR+1}, s{pK+1}, 0")
    a(f"s_load_dword s{sNon}, {sp(pWS)}, {EPOCH}")
    if dbg: a(f"v_mov_b32 v{vST}, 0")
    stamp(0)
    a(f"v_mov_b32 v{vOPA}, 0"); a(f"s_mov_b32 s{sU2}, {OP}")
    masks()
    a(f"s_mov_b32 s{sPh}, 0")
    for g in range(8):
        m = 0x0101010101010101 << g
        a(f"s_mov_b32 s{sMask+2*g}, 0x{m & 0xffffffff:08x}")
        a(f"s_mov_b32 s{sMask+2*g+1}, 0x{m >> 32:08x}")
    for r in range(4): a(f"s_mov_b32 s{sSel+r}, 0x{0x07060500 | r:08x}")
    a(f"s_mov_b32 s{sSelG}, 0x0c0c0400")
    a(f"s_mov_b32 s{sPkSel}, 0x07060302")
    for r in range(1, 4):
        m = 0xffff << (16 * r)
        a(f"s_mov_b32 s{sRow+2*(r-1)}, 0x{m & 0xffffffff:08x}"); a(f"s_mov_b32 s{sRow+2*(r-1)+1}, 0x{m >> 32:08x}")
    ws_srd()
    a(f"s_and_b32 s{sT0}, s2, 7"); a(f"s_lshr_b32 s{sT1}, s2, 3")
    a(f"s_lshl_b32 s{sT2}, s{sT1}, 3"); a(f"s_add_u32 s{sRI}, s{sT2}, s{sT0}"); a(f"s_mov_b32 s{sRole}, 0")
    a(f"s_lshr_b32 s{sT2}, s{sT1}, 2"); a(f"s_lshl_b32 s{sT2}, s{sT2}, 3"); a(f"s_add_u32 s{sT2}, s{sT2}, s{sT0}"); a(f"s_lshl_b32 s{sT2}, s{sT2}, 2")
    a(f"s_and_b32 s{sT3}, s{sT1}, 3"); a(f"s_add_u32 s{sOH}, s{sT2}, s{sT3}")
    a(f"s_cmp_lt_u32 s{sT1}, 16"); a("s_cbranch_scc1 L_roled")
    a(f"s_sub_u32 s{sT2}, s{sT1}, 16"); a(f"s_mul_i32 s{sT3}, s{sT0}, 12"); a(f"s_add_u32 s{sRI}, s{sT3}, s{sT2}"); a(f"s_mov_b32 s{sRole}, 1")
    a(f"s_cmp_lt_u32 s{sT1}, 28"); a("s_cbranch_scc1 L_roled")
    a(f"s_sub_u32 s{sT2}, s{sT1}, 28"); a(f"s_lshl_b32 s{sT2}, s{sT2}, 3"); a(f"s_add_u32 s{sRI}, s{sT2}, s{sT0}"); a(f"s_mov_b32 s{sRole}, 2")
    a.label("L_roled")
    def kslot(g):
        if g < 8: return RING + 12 * ((g + 5) % 8)
        if g < 13 and g < PK: return W + 12 * (g - 8)
        return RING + 12 * (g % 8)
    def issue(g):
        b = kslot(g)
        for t in range(3):
            a(f"buffer_load_dwordx4 {vr(b+4*t,4)}, v{vSA}, {srd(STR)}, s{sOff} offen offset:{128*t} {pol}")
            vq.append(f"k{g}")
        a(f"s_add_u32 s{sOff}, s{sOff}, {STRIDE}")
    a(f"v_mov_b32 v{vZ}, 0"); a(f"v_mov_b32 v{vFL}, 0"); a(f"s_mov_b32 s{sGI}, 0"); a(f"s_mov_b32 s{sPrv}, 0")
    a("s_barrier")
    for g in range(PK):
        if pace and g >= 2: wait_for(f"k{g-2}")
        issue(g)
    stamp(16)
    a("s_waitcnt lgkmcnt(0)")
    a(f"s_add_u32 s{sNon}, s{sNon}, 0x9e3779b9")
    a(f"v_mov_b32 v{vN}, s{sNon}")
    a("s_barrier")
    a(f"ds_read_b32 v{T[1]}, v{vZ} offset:{L_CTL + 8}"); a("s_waitcnt lgkmcnt(0)"); a(f"v_readfirstlane_b32 s{sLoc}, v{T[1]}")
    def progress():
        if not ctl: return
        n = newlab()
        a(f"s_add_u32 s{sGI}, s{sGI}, 1")
        a(f"s_cmp_lg_u32 s{sW}, 0"); a(f"s_cbranch_scc1 L_pg{n}")
        a(f"v_mov_b32 v{T[5]}, s{sGI}"); a(f"ds_write_b32 v{vZ}, v{T[5]} offset:{L_CTL}")
        a.label(f"L_pg{n}")
    def flag_read():
        if ctl: a(f"ds_read_b32 v{vFL}, v{vZ} offset:{L_CTL + 4}")
    def load_q():
        a(f"v_and_b32 v{T[0]}, 7, v{vL}"); a(f"v_lshlrev_b32 v{T[0]}, 4, v{T[0]}")
        a(f"s_mul_i32 s{sT0}, s{sPh}, 384"); a(f"v_add_u32 v{T[0]}, s{sT0}, v{T[0]}")
        for t in range(3): a(f"ds_read_b128 {vr(vQ+4*t,4)}, v{T[0]} offset:{L_Q + 128*t}")
    load_q()

    a.label("L_kcode")
    vSC = T[6]
    def score_addr():
        a(f"v_lshlrev_b32 v{vSC}, 2, v{vL}")
        a(f"s_lshl_b32 s{sT0}, s{sW}, 12"); a(f"v_add_u32 v{vSC}, s{sT0}, v{vSC}")
    def kinit():
        score_addr()
        a(f"v_mov_b32 v{vMX}, 0xff800000"); a(f"v_mov_b32 v{vLS}, 0")
        a("s_waitcnt lgkmcnt(0)")
    def kcompute(b, g):
        a0, a1, a2 = T[0], T[1], T[2]
        for i in range(4):
            for t, acc in enumerate((a0, a1, a2)):
                src2 = "0" if i == 0 else f"v{acc}"
                a(f"v_dot2_f32_bf16 v{acc}, v{b+4*t+i}, v{vQ+4*t+i}, {src2}")
        a(f"v_add_f32 v{a0}, v{a0}, v{a1}")
        a(f"v_add_f32 v{a0}, v{a0}, v{a2}")
        for m in DPP4[:3]: dpp("v_add_f32", a0, m)
        a(f"v_cndmask_b32 v{vC}, v{vC}, v{a0}, {sp(sMask+2*g)}")
    SCALE = f32hex(192 ** -0.5)
    def kfinish():
        t, u, w_ = T[0], T[1], T[2]
        rne(t, vC)
        a(f"v_mul_f32 v{t}, {SCALE}, v{t}")
        rne(t, t)
        a(f"ds_write_b32 v{vSC}, v{t} offset:{L_SC}")
        a(f"v_add_u32 v{vSC}, 256, v{vSC}")
        a(f"v_max_f32 v{u}, v{vMX}, v{t}")
        a(f"v_sub_f32 v{w_}, v{vMX}, v{u}"); a(f"v_sub_f32 v{t}, v{t}, v{u}")
        a(f"v_mul_f32 v{w_}, {f32hex(LOG2E)}, v{w_}"); a(f"v_mul_f32 v{t}, {f32hex(LOG2E)}, v{t}")
        a(f"v_exp_f32 v{w_}, v{w_}"); a(f"v_exp_f32 v{t}, v{t}")
        a(f"v_mov_b32 v{vMX}, v{u}")
        a(f"v_fma_f32 v{vLS}, v{vLS}, v{w_}, v{t}")
    kinit()
    stamp(3)
    nx = PK
    for g in range(16):
        while nx <= g + 1:
            issue(nx); nx += 1
        wait_for(f"k{g}")
        while nx <= g + 2:
            issue(nx); nx += 1
        kcompute(kslot(g), g % 8)
        if g < 2 and nx < 16 and kslot(nx) == kslot(g):
            issue(nx); nx += 1
        if g % 8 == 7:
            kfinish(); progress()
    assert nx == 18, nx
    flag_read()
    a(f"s_mov_b32 s{sIt}, 2")
    def switch_to_V():
        n = newlab()
        a(f"s_cmp_eq_u32 s{sIt}, {NIT-1}")
        a(f"s_cbranch_scc0 L_nosw{n}")
        a(f"s_mul_i32 s{sT0}, s{sHead}, {HB}")
        a(f"s_add_u32 s{STR}, s{pV}, s{sT0}"); a(f"s_addc_u32 s{STR+1}, s{pV+1}, 0")
        a(f"s_mul_i32 s{sOff}, s{sWI}, 3072")
        a.label(f"L_nosw{n}")
    def switch_to_nextK():
        n = newlab()
        a(f"s_cmp_eq_u32 s{sIt}, {NIT-1}")
        a(f"s_cbranch_scc0 L_nosw{n}")
        if nph > 1:
            a(f"s_add_u32 s{sT0}, s{sHead}, {H}")
            a(f"s_mul_i32 s{sT0}, s{sT0}, {HB}")
            a(f"s_add_u32 s{STR}, s{pK}, s{sT0}"); a(f"s_addc_u32 s{STR+1}, s{pK+1}, 0")
            a(f"s_mul_i32 s{sOff}, s{sWI}, 3072")
            a(f"s_cmp_eq_u32 s{sPh}, {nph-1}")
            a(f"s_cselect_b32 s{STR+2}, 0, {HB}")
            a(f"s_cselect_b32 s{STR}, s{pK}, s{STR}"); a(f"s_cselect_b32 s{STR+1}, s{pK+1}, s{STR+1}")
        else:
            a(f"s_mov_b32 s{STR+2}, 0")
        a.label(f"L_nosw{n}")
    def steady_issue(slot):
        for t in range(3):
            a(f"buffer_load_dwordx4 {ring(slot,t)}, v{vSA}, {srd(STR)}, s{sOff} offen offset:{128*t} {pol}")
        a(f"s_add_u32 s{sOff}, s{sOff}, {STRIDE}")
    def controlled_loop(tag, compute, switch, mid):
        if ctl:
            a("s_waitcnt lgkmcnt(0)"); a(f"v_readfirstlane_b32 s{sBst}, v{vFL}")
            a(f"s_cmp_eq_u32 s{sIt}, {NIT-1}"); a(f"s_cselect_b32 s{sBst}, 0, s{sBst}")
            a(f"s_cmp_eq_u32 s{sBst}, 1"); a(f"s_cbranch_scc1 L_{tag}boost")
            a(f"s_cmp_eq_u32 s{sPrv}, 0"); a(f"s_cbranch_scc1 L_{tag}n0")
            a("s_waitcnt vmcnt(6)"); a(f"s_branch L_{tag}n1")
            a.label(f"L_{tag}n0")
        a("s_waitcnt vmcnt(3)"); steady_issue(2)
        if ctl: a.label(f"L_{tag}n1")
        compute(0)
        for g in range(1, 8):
            a("s_waitcnt vmcnt(3)")
            if g == 6: switch()
            steady_issue((g + 2) % 8)
            if g == 4: flag_read()
            compute(g)
        if ctl:
            a(f"s_mov_b32 s{sPrv}, 0"); a(f"s_branch L_{tag}next")
            a.label(f"L_{tag}boost")
            a(f"s_cmp_eq_u32 s{sPrv}, 0"); a(f"s_cbranch_scc0 L_{tag}b0")
            steady_issue(2)
            a.label(f"L_{tag}b0")
            for g in range(8):
                a("s_waitcnt vmcnt(6)")
                steady_issue((g + 3) % 8)
                if g == 4: flag_read()
                compute(g)
            a(f"s_mov_b32 s{sPrv}, 1")
            a.label(f"L_{tag}next")
    a.label("L_kloop")
    controlled_loop("k", lambda g: kcompute(RING + 12 * g, g), switch_to_V, None)
    kfinish(); progress()
    a(f"s_add_u32 s{sIt}, s{sIt}, 1")
    a(f"s_cmp_lt_u32 s{sIt}, {NIT}")
    a("s_cbranch_scc1 L_kloop")
    stamp(4)

    a(f"v_mov_b32 v{T[2]}, v{vMX}")
    allreduce("v_max_f32", vMX, T[0])
    a(f"v_sub_f32 v{T[2]}, v{T[2]}, v{vMX}"); a(f"v_mul_f32 v{T[2]}, {f32hex(LOG2E)}, v{T[2]}"); a(f"v_exp_f32 v{T[2]}, v{T[2]}")
    a(f"v_mul_f32 v{vLS}, v{vLS}, v{T[2]}")
    allreduce("v_add_f32", vLS, T[0])
    MLQ = vA
    a(f"v_mov_b32 v{MLQ}, v{vMX}"); a(f"v_mov_b32 v{MLQ+1}, v{vLS}"); a(f"v_mov_b32 v{MLQ+2}, 0"); a(f"v_mov_b32 v{MLQ+3}, 0")
    tag4(MLQ)
    a(f"s_lshl_b32 s{sT0}, s{sHead}, 11"); a(f"s_lshl_b32 s{sT1}, s{sWI}, 4"); a(f"s_add_u32 s{sT0}, s{sT0}, s{sT1}"); a(f"s_add_u32 s{sT0}, s{sT0}, {ML}")
    a(f"v_mov_b32 v{T[0]}, 0")
    set_exec(1)
    pub_store(vr(MLQ,4), T[0], sT0)
    set_exec(-1)
    stamp(5)
    for i in range(12): a(f"v_mov_b32 v{vACC+i}, 0")
    score_addr()
    a("s_waitcnt lgkmcnt(0)")
    a(f"ds_read_b32 v{vPN}, v{vSC} offset:{L_SC}")
    def vcompute(slot, g):
        a(f"v_mov_b32_dpp v{vBC}, v{vP} row_newbcast:{g} row_mask:0xf bank_mask:0x3")
        a(f"v_mov_b32_dpp v{vBC}, v{vP} row_newbcast:{8+g} row_mask:0xf bank_mask:0xc")
        a_operand(vBC)
        for t in range(3):
            a(f"v_mfma_f32_16x16x32_bf16 {vr(vACC+4*t,4)}, {vr(vA,4)}, {ring(slot,t)}, {vr(vACC+4*t,4)}")
    def next_p():
        a("s_waitcnt lgkmcnt(0)")
        a(f"v_sub_f32 v{vP}, v{vPN}, v{vMX}")
        a(f"v_add_u32 v{vSC}, 256, v{vSC}")
        a(f"ds_read_b32 v{vPN}, v{vSC} offset:{L_SC}")
        a(f"v_mul_f32 v{vP}, {f32hex(LOG2E)}, v{vP}")
        a(f"v_exp_f32 v{vP}, v{vP}")
        a(f"v_cvt_pk_bf16_f32 v{vP}, v{vP}, v{vP}")
    a(f"s_mov_b32 s{sIt}, 0")
    if nph > 1:
        a(f"s_cmp_lg_u32 s{sPh}, {nph-1}"); a("s_cbranch_scc1 L_vloop")
    a(f"s_cmp_eq_u32 s{sRole}, 1"); a("s_cbranch_scc1 L_wF")
    a(f"s_cmp_eq_u32 s{sRole}, 2"); a("s_cbranch_scc1 L_wR")
    a(f"s_mul_i32 s{sT0}, s{sOH}, 48"); a(f"s_mul_i32 s{sT1}, s{sW}, 12"); a(f"s_add_u32 s{sT0}, s{sT0}, s{sT1}")
    a(f"v_lshrrev_b32 v{T[0]}, 4, v{vL}"); a(f"v_add_u32 v{T[0]}, s{sT0}, v{T[0]}")
    a(f"v_mul_u32_u24 v{T[0]}, 1280, v{T[0]}")
    a(f"v_and_b32 v{T[1]}, 15, v{vL}"); a(f"v_lshlrev_b32 v{T[1]}, 4, v{T[1]}"); a(f"v_add_u32 v{T[0]}, v{T[0]}, v{T[1]}")
    a(f"v_mov_b32 v{T[1]}, s{pWO+1}")
    a(f"v_add_co_u32 v{WA}, vcc, s{pWO}, v{T[0]}"); a(f"v_addc_co_u32 v{WA+1}, vcc, 0, v{T[1]}, vcc")
    a(f"v_add_co_u32 v{WB}, vcc, 10240, v{WA}"); a(f"v_addc_co_u32 v{WB+1}, vcc, 0, v{WA+1}, vcc")
    a(f"s_mov_b32 s{sInc}, 256"); a(f"s_mov_b32 s{sInc4}, 4096")
    a("s_branch L_wdone")
    a.label("L_wF")
    a(f"v_lshrrev_b32 v{T[0]}, 2, v{vL}"); a(f"s_mul_i32 s{sT0}, s{sW}, 160"); a(f"v_add_u32 v{T[0]}, s{sT0}, v{T[0]}")
    a(f"v_mul_u32_u24 v{T[0]}, 3072, v{T[0]}")
    a(f"v_and_b32 v{T[1]}, 1, v{vL}"); a(f"v_lshlrev_b32 v{T[1]}, 4, v{T[1]}"); a(f"v_add_u32 v{T[0]}, v{T[0]}, v{T[1]}")
    a(f"s_lshl_b32 s{sT0}, s{sRI}, 5"); a(f"v_add_u32 v{T[0]}, s{sT0}, v{T[0]}")
    a(f"v_mov_b32 v{T[2]}, s{pWG}"); a(f"v_mov_b32 v{T[3]}, s{pWG+1}")
    a(f"v_mov_b32 v{T[4]}, s{pWU}"); a(f"v_mov_b32 v{T[5]}, s{pWU+1}")
    a(f"v_and_b32 v{T[1]}, 2, v{vL}"); a(f"v_cmp_ne_u32 vcc, 0, v{T[1]}")
    a(f"v_cndmask_b32 v{T[2]}, v{T[2]}, v{T[4]}, vcc"); a(f"v_cndmask_b32 v{T[3]}, v{T[3]}, v{T[5]}, vcc")
    a(f"v_add_co_u32 v{WA}, vcc, v{T[2]}, v{T[0]}"); a(f"v_addc_co_u32 v{WA+1}, vcc, 0, v{T[3]}, vcc")
    a(f"s_lshl_b32 s{sT0}, s{sRI}, 4"); a(f"s_lshl_b32 s{sT1}, s{sW}, 2"); a(f"s_add_u32 s{sT0}, s{sT0}, s{sT1}")
    a(f"v_lshrrev_b32 v{T[0]}, 4, v{vL}"); a(f"v_add_u32 v{T[0]}, s{sT0}, v{T[0]}")
    a(f"v_mul_u32_u24 v{T[0]}, 1280, v{T[0]}")
    a(f"v_and_b32 v{T[1]}, 15, v{vL}"); a(f"v_lshlrev_b32 v{T[1]}, 4, v{T[1]}"); a(f"v_add_u32 v{T[0]}, v{T[0]}, v{T[1]}")
    a(f"v_mov_b32 v{T[1]}, s{pWD+1}")
    a(f"v_add_co_u32 v{WB}, vcc, s{pWD}, v{T[0]}"); a(f"v_addc_co_u32 v{WB+1}, vcc, 0, v{T[1]}, vcc")
    a(f"s_mov_b32 s{sInc}, {16*3072}"); a(f"s_mov_b32 s{sInc4}, {16*3072}")
    a("s_branch L_wdone")
    a.label("L_wR")
    a(f"v_mov_b32 v{WA}, s{pWO}"); a(f"v_mov_b32 v{WA+1}, s{pWO+1}"); a(f"v_mov_b32 v{WB}, s{pWO}"); a(f"v_mov_b32 v{WB+1}, s{pWO+1}")
    a(f"s_mov_b32 s{sInc}, 0"); a(f"s_mov_b32 s{sInc4}, 0")
    a.label("L_wdone")
    def wload(k):
        if k < 10:
            a(f"global_load_dwordx4 {vr(W + 4*k, 4)}, {vr(WA,2)}, off {wpol}")
            if k < 9:
                a(f"v_add_co_u32 v{WA}, vcc, s{sInc4 if k == 4 else sInc}, v{WA}"); a(f"v_addc_co_u32 v{WA+1}, vcc, 0, v{WA+1}, vcc")
        else:
            a(f"global_load_dwordx4 {vr(W + 4*k, 4)}, {vr(WB,2)}, off offset:{256*(k-10)} {wpol}")
        vq.append(f"w{k}")
    vq[:] = ["v0"] * 3 + ["v1"] * 3 + ["ml"]
    for it in range(2):
        next_p()
        for g in range(8):
            n = 8 * it + g
            wait_for(f"v{n}")
            steady_issue((g + 2) % 8); vq.extend([f"v{n+2}"] * 3)
            if n < 15: wload(n)
            vcompute(g, g)
        progress()
    flag_read()
    a(f"s_mov_b32 s{sIt}, 2")
    a.label("L_vloop")
    MLR = vX
    def ml_issue():
        a(f"s_lshl_b32 s{sT0}, s{sHead}, 11"); a(f"s_add_u32 s{sT0}, s{sT0}, {ML}")
        a(f"v_min_u32 v{T[1]}, {NWH-1}, v{vL}"); a(f"v_lshlrev_b32 v{T[1]}, 4, v{T[1]}")
        a(f"buffer_load_dwordx4 {vr(MLR,4)}, v{T[1]}, {srd(WSR)}, s{sT0} offen sc1")
        if NWH > 64:
            a(f"buffer_load_dwordx4 {vr(MLR+4,4)}, v{T[1]}, {srd(WSR)}, s{sT0} offen offset:1024 sc1")
    def ml_check():
        check4(MLR, T[0], T[2], True)
        if NWH > 64: check4(MLR + 4, T[0], T[2], False)
    a(f"s_cmp_eq_u32 s{sIt}, {NIT-2}"); a("s_cbranch_scc0 L_vh1")
    ml_issue()
    if codepf:
        a(f"s_getpc_b64 {sp(58)}")
        a.label("L_pc2")
        a(f"s_lshr_b32 s{sT3}, s2, 3"); a(f"s_lshl_b32 s{sT3}, s{sT3}, 9")
        a(f"v_and_b32 v{T[1]}, 7, v{vL}"); a(f"v_lshlrev_b32 v{T[1]}, 6, v{T[1]}"); a(f"v_add_u32 v{T[1]}, s{sT3}, v{T[1]}")
        a(f"v_add_u32 v{T[1]}, L_tailcode-L_pc2, v{T[1]}")
        a(f"v_min_u32 v{T[1]}, L_codeend-L_pc2-4, v{T[1]}")
        a(f"global_load_dword v{T[2]}, v{T[1]}, {sp(58)}")
    a.label("L_vh1")
    a(f"s_cmp_eq_u32 s{sIt}, {NIT-1}"); a("s_cbranch_scc0 L_vh2")
    a.label("L_tailcode")
    ml_check()
    a(f"s_cmp_eq_u64 {sp(sBad)}, 0"); a("s_cbranch_scc1 L_mlok")
    poll(ml_issue, ml_check)
    a.label("L_mlok")
    mm, ll = MLR, MLR + 1
    if NWH > 64: a(f"v_max_f32 v{T[0]}, v{mm}, v{MLR+4}")
    else: a(f"v_mov_b32 v{T[0]}, v{mm}")
    a(f"v_and_b32 v{T[0]}, 0xffffff00, v{T[0]}")
    allreduce("v_max_f32", T[0], T[1])
    a(f"v_and_b32 v{mm}, 0xffffff00, v{mm}")
    a(f"v_sub_f32 v{T[2]}, v{mm}, v{T[0]}"); a(f"v_mul_f32 v{T[2]}, {f32hex(LOG2E)}, v{T[2]}"); a(f"v_exp_f32 v{T[2]}, v{T[2]}")
    a(f"v_mul_f32 v{T[2]}, v{T[2]}, v{ll}")
    if NWH > 64:
        a(f"v_and_b32 v{MLR+4}, 0xffffff00, v{MLR+4}")
        a(f"v_sub_f32 v{T[3]}, v{MLR+4}, v{T[0]}"); a(f"v_mul_f32 v{T[3]}, {f32hex(LOG2E)}, v{T[3]}"); a(f"v_exp_f32 v{T[3]}, v{T[3]}")
        a(f"v_fmac_f32 v{T[2]}, v{T[3]}, v{MLR+5}")
    elif NWH < 64:
        a(f"v_cmp_gt_u32 vcc, {NWH}, v{vL}"); a(f"v_cndmask_b32 v{T[2]}, 0, v{T[2]}, vcc")
    allreduce("v_add_f32", T[2], T[1])
    a(f"v_sub_f32 v{T[3]}, v{vMX}, v{T[0]}"); a(f"v_mul_f32 v{T[3]}, {f32hex(LOG2E)}, v{T[3]}"); a(f"v_exp_f32 v{T[3]}, v{T[3]}")
    a(f"v_rcp_f32 v{T[2]}, v{T[2]}")
    a(f"v_mul_f32 v{vAL}, v{T[3]}, v{T[2]}")
    red_addr()
    a(f"v_mul_u32_u24 v{T[1]}, 43691, v{vL}"); a(f"v_lshrrev_b32 v{T[1]}, 19, v{T[1]}")
    a(f"v_mul_u32_u24 v{T[2]}, 12, v{T[1]}"); a(f"v_sub_u32 v{T[2]}, v{vL}, v{T[2]}")
    a(f"v_mul_u32_u24 v{T[1]}, {WPH*192}, v{T[1]}"); a(f"v_lshlrev_b32 v{T[2]}, 4, v{T[2]}"); a(f"v_add_u32 v{vOPA}, v{T[1]}, v{T[2]}")
    a(f"s_mul_i32 s{sT0}, s{sHead}, {4*WPH*192}"); a(f"s_mul_i32 s{sT1}, s{sJ}, 192"); a(f"s_add_u32 s{sT0}, s{sT0}, s{sT1}"); a(f"s_add_u32 s{sU2}, s{sT0}, {OP}")
    P = vQ
    if nph > 1:
        a(f"s_cmp_lg_u32 s{sPh}, {nph-1}"); a("s_cbranch_scc1 L_vh2")
    a(f"v_lshrrev_b32 v{T[0]}, 5, v{vL}"); a(f"v_lshlrev_b32 v{T[0]}, 8, v{T[0]}")
    a(f"v_and_b32 v{T[1]}, 7, v{vL}"); a(f"v_lshlrev_b32 v{T[1]}, 5, v{T[1]}"); a(f"v_add_u32 v{T[0]}, v{T[0]}, v{T[1]}")
    a(f"v_and_b32 v{T[1]}, 16, v{vL}"); a(f"v_add_u32 v{T[0]}, v{T[0]}, v{T[1]}")
    a(f"s_mul_i32 s{sT0}, s{sW}, 2560"); a(f"v_add_u32 v{P}, s{sT0}, v{T[0]}")
    a(f"s_mov_b32 s{sT0}, {128*128}"); a(f"s_cmp_eq_u32 s{sRole}, 1"); a(f"s_cselect_b32 s{sT0}, {96*128}, s{sT0}")
    a(f"v_lshrrev_b32 v{T[1]}, 3, v0"); a(f"v_mul_u32_u24 v{T[1]}, s{sT0}, v{T[1]}")
    a(f"v_and_b32 v{T[2]}, 7, v0"); a(f"v_lshlrev_b32 v{T[2]}, 4, v{T[2]}"); a(f"v_add_u32 v{P+1}, v{T[1]}, v{T[2]}")
    for i in range(20): a(f"v_mov_b32 v{vX+i}, 0")
    a.label("L_vh2")
    next_p()
    controlled_loop("v", lambda g: vcompute(g, g), switch_to_nextK, None)
    progress()
    a(f"s_add_u32 s{sIt}, s{sIt}, 1")
    a(f"s_cmp_lt_u32 s{sIt}, {NIT}")
    a("s_cbranch_scc1 L_vloop")

    stamp(6)
    for i in range(12): a(f"v_mul_f32 v{vACC+i}, v{vACC+i}, v{vAL}")
    if nph > 1:
        a(f"s_cmp_eq_u32 s{sPh}, {nph-1}"); a("s_cbranch_scc1 L_lastphase")
        def lds_wait_ge(off, sreg):
            n = newlab()
            a(f"s_mov_b32 s{sSpin}, {spin}")
            a.label(f"L_lw{n}")
            a(f"ds_read_b32 v{T[1]}, v{vZ} offset:{L_CTL + off}"); a("s_waitcnt lgkmcnt(0)"); a(f"v_readfirstlane_b32 s{sT0}, v{T[1]}")
            a(f"s_cmp_ge_u32 s{sT0}, s{sreg}"); a(f"s_cbranch_scc1 L_lk{n}")
            a(f"s_sub_u32 s{sSpin}, s{sSpin}, 1"); a(f"s_cmp_eq_u32 s{sSpin}, 0"); a("s_cbranch_scc1 L_abort")
            a(f"s_branch L_lw{n}")
            a.label(f"L_lk{n}")
        lds_wait_ge(12, sPh)
        set_exec(USEFUL)
        for t in range(3): a(f"ds_write_b128 v{vRA}, {vr(vACC+4*t,4)} offset:{L_REDH + 256*t}")
        set_exec(-1)
        a(f"s_add_u32 s{sPh}, s{sPh}, 1"); a(f"s_add_u32 s{sHead}, s{sHead}, {H}")
        a(f"s_lshl_b32 s{sT1}, s{sW}, 2"); a(f"v_mov_b32 v{T[2]}, s{sT1}"); a(f"v_mov_b32 v{T[3]}, s{sPh}")
        a("s_waitcnt lgkmcnt(0)")
        a(f"ds_write_b32 v{T[2]}, v{T[3]} offset:{L_CTL + 16}")
        a(f"s_add_u32 s{sT2}, s{sPh}, 1")
        lds_wait_ge(32, sT2)
        load_q(); kinit()
        a(f"s_mov_b32 s{sIt}, 0")
        a("s_branch L_kloop")
        a.label("L_lastphase")
    red_write()
    a("s_waitcnt lgkmcnt(0)"); a("s_barrier")
    a(f"s_cmp_lg_u32 s{sW}, 0"); a("s_cbranch_scc1 L_pubdone")
    SB = RING + 24
    a(f"v_lshlrev_b32 v{T[0]}, 4, v{vL}")
    set_exec("0x0000ffffffffffff")
    for s in range(8): a(f"ds_read_b128 {vr(SB+4*s,4)}, v{T[0]} offset:{L_RED + 768*s}")
    a("s_waitcnt lgkmcnt(4)")
    sum_quads(SB, [SB + 4, SB + 8, SB + 12])
    a("s_waitcnt lgkmcnt(0)")
    sum_quads(SB + 16, [SB + 20, SB + 24, SB + 28])
    sum_quads(SB, [SB + 16])
    tag4(SB)
    pub_store(vr(SB,4), vOPA, sU2)
    set_exec(-1)
    a.label("L_pubdone")
    a.label("L_tail")
    stamp(7)
    RB = RING + 60
    a(f"s_cmp_eq_u32 s{sRole}, 1"); a("s_cbranch_scc1 L_roleF")
    a(f"s_cmp_eq_u32 s{sRole}, 2"); a("s_cbranch_scc1 L_roleR")

    def rowproj(ngroups, wbase, srcs, dstbase):
        for gi in range(ngroups):
            a_operand(srcs[gi])
            for cb in range(5):
                a(f"v_mfma_f32_16x16x32_bf16 {vr(vX+4*cb,4)}, {vr(vA,4)}, {vr(wbase + 4*(5*gi+cb),4)}, {vr(vX+4*cb,4)}")
        set_exec(USEFUL)
        for cb in range(5): a(f"ds_write_b128 v{P}, {vr(vX+4*cb,4)} offset:{L_RED2 + 512*cb}")
        set_exec(-1)
        a(f"v_lshlrev_b32 v{T[0]}, 4, v0")
        a(f"s_lshl_b32 s{sT0}, s{sRI}, 7"); a(f"s_add_u32 s{sT0}, s{sT0}, {dstbase}")
        a("s_waitcnt lgkmcnt(0)"); a("s_barrier")
        n = newlab()
        a(f"v_cmp_gt_u32 vcc, 160, v0"); a(f"s_and_saveexec_b64 {sp(sE)}, vcc"); a(f"s_cbranch_execz L_rpd{n}")
        for s in range(4): a(f"ds_read_b128 {vr(vX+4*s,4)}, v{T[0]} offset:{L_RED2 + 2560*s}")
        a("s_waitcnt lgkmcnt(0)")
        sum_quads(vX, [vX + 4]); sum_quads(vX + 8, [vX + 12]); sum_quads(vX, [vX + 8])
        tag4(vX)
        a(f"buffer_store_dwordx4 {vr(vX,4)}, v{P+1}, {srd(WSR)}, s{sT0} offen sc1")
        a.label(f"L_rpd{n}")
        a(f"s_mov_b64 exec, {sp(sE)}")

    NL = 2 if WPH == 32 else 1
    a(f"s_mul_i32 s{sT0}, s{sOH}, {WPH*192}"); a(f"s_add_u32 s{sU}, s{sT0}, {OP}")
    a(f"s_mul_i32 s{sT1}, s{sW}, 48"); a(f"s_add_u32 s{sU}, s{sU}, s{sT1}")
    a(f"v_lshrrev_b32 v{T[3]}, 2, v{vL}"); a(f"v_and_b32 v{T[3]}, {min(WPH,16)-1}, v{T[3]}"); a(f"v_mul_u32_u24 v{T[3]}, 192, v{T[3]}")
    a(f"v_and_b32 v{T[4]}, 3, v{vL}"); a(f"v_min_u32 v{T[4]}, 2, v{T[4]}"); a(f"v_lshlrev_b32 v{T[4]}, 4, v{T[4]}"); a(f"v_add_u32 v{T[3]}, v{T[3]}, v{T[4]}")
    def o_iss():
        for k in range(NL):
            a(f"buffer_load_dwordx4 {vr(RB+4*k,4)}, v{T[3]}, {srd(WSR)}, s{sU} offen offset:{3072*k} sc1")
    def o_chk():
        for k in range(NL): check4(RB + 4*k, T[0], T[1], k == 0)
    poll(o_iss, o_chk)
    stamp(8)
    if NL == 2: sum_quads(RB, [RB + 4])
    for m in ("row_ror:4", "row_ror:8"):
        for i in range(4): dpp("v_add_f32", RB + i, m)
    o4 = [("v_add_f32", RB + i) for i in range(4)]
    swap_reduce(o4, T[0:4], "v_permlane16_swap_b32")
    if WPH >= 16: swap_reduce(o4, T[0:4], "v_permlane32_swap_b32")
    for g in range(1, 4): a(f"v_cndmask_b32 v{RB}, v{RB}, v{RB+g}, {sp(sRow+2*(g-1))}")
    a(f"v_cvt_pk_bf16_f32 v{RB}, v{RB}, v{RB}")
    for gi in range(3): a(f"v_mov_b32_dpp v{RB+8+gi}, v{RB} quad_perm:[{gi},{gi},{gi},{gi}] row_mask:0xf bank_mask:0xf")
    rowproj(3, W, [RB+8, RB+9, RB+10], ZZ)
    dump_stamps()
    a("s_branch L_end")

    a.label("L_roleF")
    HQ = RB
    PK = RB + 16
    a(f"v_lshlrev_b32 v{T[3]}, 4, v{vL}")
    a(f"v_add_u32 v{T[4]}, 2048, v{T[3]}"); a(f"v_min_u32 v{T[4]}, 2544, v{T[4]}")
    a(f"v_min_u32 v{T[5]}, 39, v{vL}"); a(f"s_mul_i32 s{sT0}, s{sW}, 40"); a(f"v_add_u32 v{T[5]}, s{sT0}, v{T[5]}"); a(f"v_lshlrev_b32 v{T[5]}, 4, v{T[5]}")
    a(f"s_mov_b32 s{sU}, {HH}")
    def f_iss():
        a(f"buffer_load_dwordx4 {vr(HQ,4)}, v{T[3]}, {srd(WSR)}, s{sU} offen sc1")
        a(f"buffer_load_dwordx4 {vr(HQ+4,4)}, v{T[3]}, {srd(WSR)}, s{sU} offen offset:1024 sc1")
        a(f"buffer_load_dwordx4 {vr(HQ+8,4)}, v{T[4]}, {srd(WSR)}, s{sU} offen sc1")
        a(f"buffer_load_dwordx4 {vr(HQ+12,4)}, v{T[5]}, {srd(WSR)}, s{sU} offen sc1")
    def f_chk():
        for k in range(4): check4(HQ + 4*k, T[0], T[1], k == 0)
    FA = RING + 24
    FW = RB + 22
    DA = vACC
    def f_pre():
        a(f"s_lshl_b32 s{sT0}, s{sW}, 12"); a(f"s_add_u32 s{sT0}, s{sT0}, {L_SC}")
        a(f"v_lshlrev_b32 v{FW}, 6, v{vL}"); a(f"v_add_u32 v{FW}, s{sT0}, v{FW}")
        a(f"v_mov_b32 v{T[0]}, 0"); a(f"v_mov_b32 v{T[1]}, s{sT0}")
        a(f"ds_write_b32 v{T[1]}, v{T[0]} offset:2560")
        a(f"v_lshrrev_b32 v{FW+1}, 2, v{vL}"); a(f"v_lshlrev_b32 v{FW+1}, 4, v{FW+1}")
        a(f"v_and_b32 v{T[0]}, 3, v{vL}")
        a(f"v_mov_b32 v{T[1]}, 0x08000c04"); a(f"v_lshlrev_b32 v{T[0]}, 3, v{T[0]}"); a(f"v_lshrrev_b32 v{T[1]}, v{T[0]}, v{T[1]}"); a(f"v_and_b32 v{T[1]}, 0xff, v{T[1]}")
        a(f"v_add3_u32 v{FW+1}, v{FW+1}, v{T[1]}, s{sT0}")
        a(f"v_add_u32 v{FW+2}, 1024, v{FW+1}"); a(f"v_add_u32 v{FW+3}, 2048, v{FW+1}")
        a(f"v_lshrrev_b32 v{T[0]}, 4, v{vL}"); a(f"s_lshl_b32 s{sT0}, s{sW}, 2"); a(f"v_add_u32 v{T[0]}, s{sT0}, v{T[0]}"); a(f"v_lshlrev_b32 v{T[0]}, 7, v{T[0]}")
        a(f"v_and_b32 v{T[1]}, 3, v{vL}"); a(f"v_lshlrev_b32 v{T[1]}, 5, v{T[1]}"); a(f"v_add_u32 v{FW+4}, v{T[0]}, v{T[1]}")
        a(f"v_and_b32 v{T[0]}, 31, v{vL}"); a(f"v_lshlrev_b32 v{T[0]}, 2, v{T[0]}")
        a(f"v_lshrrev_b32 v{T[1]}, 5, v{vL}"); a(f"v_lshlrev_b32 v{T[1]}, 10, v{T[1]}"); a(f"v_add_u32 v{FW+5}, v{T[0]}, v{T[1]}")
        a(f"v_lshrrev_b32 v{T[0]}, 4, v{vL}"); a(f"s_lshl_b32 s{sT0}, s{sW}, 2"); a(f"v_add_u32 v{T[0]}, s{sT0}, v{T[0]}"); a(f"v_lshlrev_b32 v{FW+6}, 2, v{T[0]}")
        for i in range(8): a(f"v_mov_b32 v{DA+i}, 0")
        a(f"v_mov_b32 v{FW+7}, 0x3f803f80")
        a(f"v_cmp_gt_u32 {sp(sE)}, 32, v{vL}")
    poll(f_iss, f_chk, pre=f_pre)
    stamp(10)
    for k in range(3):
        a(f"v_perm_b32 v{PK+2*k}, v{HQ+4*k+1}, v{HQ+4*k}, s{sPkSel}"); a(f"v_perm_b32 v{PK+2*k+1}, v{HQ+4*k+3}, v{HQ+4*k+2}, s{sPkSel}")
    a(f"v_cndmask_b32 v{PK+4}, 0, v{PK+4}, {sp(sE)}"); a(f"v_cndmask_b32 v{PK+5}, 0, v{PK+5}, {sp(sE)}")
    t0, t1, t2, t3, t4 = T[0:5]
    a(f"v_dot2_f32_bf16 v{t0}, v{PK}, v{FW+7}, 0"); a(f"v_dot2_f32_bf16 v{t1}, v{PK}, v{PK}, 0")
    for i in range(1, 6):
        a(f"v_dot2_f32_bf16 v{t0}, v{PK+i}, v{FW+7}, v{t0}"); a(f"v_dot2_f32_bf16 v{t1}, v{PK+i}, v{PK+i}, v{t1}")
    for i in range(4): a(f"v_and_b32 v{HQ+12+i}, 0xffff0000, v{HQ+12+i}")
    allreduce_n([("v_add_f32", t0), ("v_add_f32", t1)], [t2, t3])
    ln_consts(t0, t1, t2)
    a(f"v_rcp_f32 v{t4}, v{t1}")
    O4 = HQ + 12
    for i in range(4): a(f"v_sub_f32 v{O4+i}, v{O4+i}, v{t0}")
    a(f"v_cvt_pk_bf16_f32 v{t2}, v{O4}, v{O4+1}"); a(f"v_cvt_pk_bf16_f32 v{t3}, v{O4+2}, v{O4+3}")
    a(f"v_lshlrev_b32 v{O4}, 16, v{t2}"); a(f"v_and_b32 v{O4+1}, 0xffff0000, v{t2}"); a(f"v_lshlrev_b32 v{O4+2}, 16, v{t3}"); a(f"v_and_b32 v{O4+3}, 0xffff0000, v{t3}")
    for i in range(4): a(f"v_mul_f32 v{O4+i}, v{O4+i}, v{t4}")
    a(f"v_cvt_pk_bf16_f32 v{t2}, v{O4}, v{O4+1}"); a(f"v_cvt_pk_bf16_f32 v{t3}, v{O4+2}, v{O4+3}")
    PR = FA
    for r_, (src, hi) in enumerate(((t2, 0), (t2, 1), (t3, 0), (t3, 1))):
        b = PR + 4 * r_
        a(f"v_mov_b32 v{b}, 0"); a(f"v_mov_b32 v{b+2}, 0")
        if hi:
            a(f"v_lshrrev_b32 v{b+1}, 16, v{src}"); a(f"v_and_b32 v{b+3}, 0xffff0000, v{src}")
        else:
            a(f"v_and_b32 v{b+1}, 0xffff, v{src}"); a(f"v_lshlrev_b32 v{b+3}, 16, v{src}")
    set_exec("0x000000ffffffffff")
    for r_ in range(4): a(f"ds_write_b128 v{FW}, {vr(PR+4*r_,4)} offset:{16*r_}")
    set_exec(-1)
    a("s_waitcnt lgkmcnt(0)")
    for k in range(10):
        base = FW + 1 + k // 4
        a(f"ds_read2_b32 {vr(FA+2*k,2)}, v{base} offset0:{(k%4)*64} offset1:{(k%4)*64+1}")
    DB = DA + 4
    for k in range(10):
        a(f"s_waitcnt lgkmcnt({9-k})")
        a(f"v_mfma_f32_4x4x4_16b_bf16 {vr(DA,4)}, {vr(FA+2*k,2)}, {vr(W+4*k,2)}, {vr(DA,4)}")
        a(f"v_mfma_f32_4x4x4_16b_bf16 {vr(DB,4)}, {vr(FA+2*k,2)}, {vr(W+4*k+2,2)}, {vr(DB,4)}")
    for m in ("row_ror:4", "row_ror:8"):
        for i in range(8): dpp("v_add_f32", DA + i, m)
    set_exec("0x000f000f000f000f")
    a(f"ds_write_b128 v{FW+4}, {vr(DA,4)} offset:{L_RED3}")
    a(f"ds_write_b128 v{FW+4}, {vr(DB,4)} offset:{L_RED3+16}")
    set_exec(-1)
    a("s_waitcnt lgkmcnt(0)"); a("s_barrier")
    HR = FA
    for s in range(8): a(f"ds_read_b32 v{HR+s}, v{FW+5} offset:{L_RED3 + 128*s}")
    a("s_waitcnt lgkmcnt(0)")
    for s in range(0, 8, 4): pkadd(HR + s, HR + s, HR + s + 2)
    pkadd(HR, HR, HR + 4)
    a(f"v_add_f32 v{HR}, v{HR}, v{HR+1}")
    a(f"v_mov_b32 v{T[0]}, v{HR}"); a(f"v_permlane32_swap_b32 v{T[0]}, v{HR}"); a(f"v_add_f32 v{HR}, v{HR}, v{T[0]}")
    rne(HR, HR)
    a(f"v_mov_b32 v{T[0]}, v{HR}"); a(f"v_permlane16_swap_b32 v{T[0]}, v{HR}")
    a(f"v_mul_f32 v{T[1]}, {f32hex(-LOG2E)}, v{T[0]}"); a(f"v_min_f32 v{T[1]}, 0x42fc0000, v{T[1]}"); a(f"v_exp_f32 v{T[1]}, v{T[1]}")
    a(f"v_add_f32 v{T[1]}, 1.0, v{T[1]}"); a(f"v_rcp_f32 v{T[2]}, v{T[1]}")
    a(f"v_mul_f32 v{T[3]}, v{T[0]}, v{T[2]}")
    rne(T[3], T[3])
    a(f"v_mul_f32 v{T[3]}, v{T[3]}, v{HR}")
    a(f"v_cvt_pk_bf16_f32 v{T[3]}, v{T[3]}, v{T[3]}")
    a(f"ds_bpermute_b32 v{HR+1}, v{FW+6}, v{T[3]}")
    a("s_waitcnt lgkmcnt(0)")
    stamp(11)
    rowproj(1, W + 40, [HR+1], YY)
    dump_stamps()
    a("s_branch L_end")

    a.label("L_roleR")
    a(f"s_cmp_ge_u32 s{sRI}, 20"); a("s_cbranch_scc1 L_fin")
    RS = RING + 24
    RS = RING + 40
    XS = RB
    WRr = RB + 8
    HV = RB + 16
    HPK = RB + 28
    HS = vQ + 4
    SIG = vQ + 8
    def reduce_parts(base, nsrc, nld, lds, pre=None):
        a(f"s_mul_i32 s{sU}, s{sRI}, {nsrc*128}"); a(f"s_add_u32 s{sU}, s{sU}, {base}")
        a(f"v_lshlrev_b32 v{T[3]}, 4, v0")
        def iss():
            for k in range(nld):
                a(f"s_add_u32 s{sT1}, s{sU}, {4096*k}")
                a(f"buffer_load_dwordx4 {vr(RS+4*k,4)}, v{T[3]}, {srd(WSR)}, s{sT1} offen sc1")
        def chk():
            for k in range(nld): check4(RS + 4*k, T[0], T[1], k == 0)
        def pre2():
            if pre: pre()
            a(f"v_and_b32 v{T[4]}, 7, v{vL}"); a(f"v_lshlrev_b32 v{T[4]}, 4, v{T[4]}")
            a(f"s_lshl_b32 s{sT0}, s{sW}, 7"); a(f"v_add_u32 v{T[5]}, s{sT0}, v{T[4]}")
        poll(iss, chk, pre=pre2)
        if nld == 4:
            sum_quads(RS, [RS + 4]); sum_quads(RS + 8, [RS + 12]); sum_quads(RS, [RS + 8])
        else:
            sum_quads(RS, [RS + 4, RS + 8])
        for i in range(4): dpp("v_add_f32", RS + i, "row_ror:8")
        o4 = [("v_add_f32", RS + i) for i in range(4)]
        swap_reduce(o4, [RS + 4 + i for i in range(4)], "v_permlane16_swap_b32")
        swap_reduce(o4, [RS + 4 + i for i in range(4)], "v_permlane32_swap_b32")
        set_exec("0x00000000000000ff")
        a(f"ds_write_b128 v{T[5]}, {vr(RS,4)} offset:{lds}")
        set_exec(-1)
        a("s_waitcnt lgkmcnt(0)"); a("s_barrier")
        for s in range(4): a(f"ds_read_b128 {vr(RS+4*s,4)}, v{T[4]} offset:{lds + 128*s}")
        a("s_waitcnt lgkmcnt(0)")
        sum_quads(RS, [RS + 4]); sum_quads(RS + 8, [RS + 12]); sum_quads(RS, [RS + 8])
    def r_pre1():
        a(f"v_and_b32 v{T[0]}, 7, v{vL}"); a(f"v_lshlrev_b32 v{T[0]}, 3, v{T[0]}"); a(f"s_lshl_b32 s{sT0}, s{sRI}, 6"); a(f"v_add_u32 v{T[0]}, s{sT0}, v{T[0]}")
        a(f"global_load_dwordx2 {vr(XS+4,2)}, v{T[0]}, {sp(pX)}")
        a(f"v_lshlrev_b32 v{T[1]}, 3, v{vL}"); a(f"v_add_u32 v{T[2]}, 1024, v{T[1]}"); a(f"v_min_u32 v{T[2]}, 1272, v{T[2]}")
        a(f"global_load_dwordx2 {vr(WRr,2)}, v{T[1]}, {sp(pWR)}")
        a(f"global_load_dwordx2 {vr(WRr+2,2)}, v{T[1]}, {sp(pWR)} offset:512")
        a(f"global_load_dwordx2 {vr(WRr+4,2)}, v{T[2]}, {sp(pWR)}")
        a(f"global_load_dword v{SIG}, v{T[0]}, {sp(pOUT)}")
    reduce_parts(ZZ, 128, 4, L_RED3, pre=r_pre1)
    stamp(9)
    for h in range(2):
        a(f"v_lshlrev_b32 v{XS+2*h}, 16, v{XS+4+h}"); a(f"v_and_b32 v{XS+2*h+1}, 0xffff0000, v{XS+4+h}")
    a(f"v_cvt_pk_bf16_f32 v{RS}, v{RS}, v{RS+1}"); a(f"v_cvt_pk_bf16_f32 v{RS+2}, v{RS+2}, v{RS+3}")
    a(f"v_and_b32 v{RS+1}, 0xffff0000, v{RS}"); a(f"v_lshlrev_b32 v{RS}, 16, v{RS}"); a(f"v_and_b32 v{RS+3}, 0xffff0000, v{RS+2}"); a(f"v_lshlrev_b32 v{RS+2}, 16, v{RS+2}")
    pkadd(XS, XS, RS); pkadd(XS + 2, XS + 2, RS + 2)
    a(f"v_cvt_pk_bf16_f32 v{RS}, v{XS}, v{XS+1}"); a(f"v_cvt_pk_bf16_f32 v{RS+2}, v{XS+2}, v{XS+3}")
    a(f"v_and_b32 v{XS+1}, 0xffff0000, v{RS}"); a(f"v_lshlrev_b32 v{XS}, 16, v{RS}"); a(f"v_and_b32 v{XS+3}, 0xffff0000, v{RS+2}"); a(f"v_lshlrev_b32 v{XS+2}, 16, v{RS+2}")
    for i in range(4): a(f"v_perm_b32 v{RS+i}, v{XS+i}, v{vN}, s{sSel+i}")
    a(f"s_cmp_lg_u32 s{sW}, 0"); a("s_cbranch_scc1 L_rnopub")
    a(f"v_lshlrev_b32 v{T[0]}, 4, v{vL}"); a(f"s_lshl_b32 s{sT0}, s{sRI}, 7"); a(f"s_add_u32 s{sT0}, s{sT0}, {HH}")
    set_exec("0x00000000000000ff")
    a(f"buffer_store_dwordx4 {vr(RS,4)}, v{T[0]}, {srd(WSR)}, s{sT0} offen sc1")
    set_exec(-1)
    a.label("L_rnopub")
    a(f"v_lshlrev_b32 v{T[3]}, 4, v{vL}")
    a(f"v_add_u32 v{T[4]}, 2048, v{T[3]}"); a(f"v_min_u32 v{T[4]}, 2544, v{T[4]}")
    a(f"s_mov_b32 s{sU}, {HH}")
    def r_iss():
        a(f"buffer_load_dwordx4 {vr(HV,4)}, v{T[3]}, {srd(WSR)}, s{sU} offen sc1")
        a(f"buffer_load_dwordx4 {vr(HV+4,4)}, v{T[3]}, {srd(WSR)}, s{sU} offen offset:1024 sc1")
        a(f"buffer_load_dwordx4 {vr(HV+8,4)}, v{T[4]}, {srd(WSR)}, s{sU} offen sc1")
    def r_chk():
        for k in range(3): check4(HV + 4*k, T[0], T[1], k == 0)
    poll(r_iss, r_chk)
    stamp(10)
    for i in range(12): a(f"v_and_b32 v{HV+i}, 0xffff0000, v{HV+i}")
    a(f"v_cmp_gt_u32 vcc, 32, v{vL}")
    for i in range(8, 12): a(f"v_cndmask_b32 v{HV+i}, 0, v{HV+i}, vcc")
    for k in range(6): a(f"v_perm_b32 v{HPK+k}, v{HV+2*k+1}, v{HV+2*k}, s{sPkSel}")
    layernorm_full(HV, HPK, T[0:5], False)
    a(f"v_cmp_gt_u32 vcc, 32, v{vL}")
    a(f"v_cndmask_b32 v{WRr+4}, 0, v{WRr+4}, vcc"); a(f"v_cndmask_b32 v{WRr+5}, 0, v{WRr+5}, vcc")
    a(f"v_dot2_f32_bf16 v{T[0]}, v{HPK}, v{WRr}, 0")
    for k in range(1, 6): a(f"v_dot2_f32_bf16 v{T[0]}, v{HPK+k}, v{WRr+k}, v{T[0]}")
    allreduce("v_add_f32", T[0], T[1])
    rne(T[0], T[0])
    a(f"v_mul_f32 v{T[1]}, {f32hex(-LOG2E)}, v{T[0]}"); a(f"v_min_f32 v{T[1]}, 0x42fc0000, v{T[1]}"); a(f"v_exp_f32 v{T[1]}, v{T[1]}")
    a(f"v_add_f32 v{T[1]}, 1.0, v{T[1]}"); a(f"v_rcp_f32 v{T[2]}, v{T[1]}")
    rne(SIG, T[2])
    a(f"s_lshl_b32 s{sT0}, s{sRI}, 3"); a(f"s_lshr_b32 s{sT1}, s{sT0}, 6"); a(f"s_and_b32 s{sT0}, s{sT0}, 63")
    a(f"v_and_b32 v{T[0]}, 7, v{vL}"); a(f"v_add_u32 v{T[0]}, s{sT0}, v{T[0]}"); a(f"v_lshlrev_b32 v{T[0]}, 2, v{T[0]}")
    for i in range(4): a(f"v_mov_b32 v{HS+i}, v{HV+i}")
    a(f"s_cmp_eq_u32 s{sT1}, 0"); a("s_cbranch_scc1 L_hs")
    for i in range(4): a(f"v_mov_b32 v{HS+i}, v{HV+4+i}")
    a(f"s_cmp_eq_u32 s{sT1}, 1"); a("s_cbranch_scc1 L_hs")
    for i in range(4): a(f"v_mov_b32 v{HS+i}, v{HV+8+i}")
    a.label("L_hs")
    for i in range(4): a(f"ds_bpermute_b32 v{HS+i}, v{T[0]}, v{HS+i}")
    a("s_waitcnt lgkmcnt(0)")
    stamp(11)
    def r_pre2():
        a(f"v_lshlrev_b32 v{SIG+1}, 3, v{vL}"); a(f"s_lshl_b32 s{sT0}, s{sRI}, 6"); a(f"v_add_u32 v{SIG+1}, s{sT0}, v{SIG+1}")
    reduce_parts(YY, 96, 3, L_RED2, pre=r_pre2)
    stamp(12)
    def rne4(b):
        a(f"v_cvt_pk_bf16_f32 v{b}, v{b}, v{b+1}"); a(f"v_cvt_pk_bf16_f32 v{b+2}, v{b+2}, v{b+3}")
        a(f"v_and_b32 v{b+1}, 0xffff0000, v{b}"); a(f"v_lshlrev_b32 v{b}, 16, v{b}"); a(f"v_and_b32 v{b+3}, 0xffff0000, v{b+2}"); a(f"v_lshlrev_b32 v{b+2}, 16, v{b+2}")
    rne4(RS)
    for i in range(4): a(f"v_mul_f32 v{RS+i}, v{RS+i}, v{SIG}")
    rne4(RS)
    pkadd(RS, RS, HS); pkadd(RS + 2, RS + 2, HS + 2)
    rne4(RS)
    pkadd(RS, RS, XS); pkadd(RS + 2, RS + 2, XS + 2)
    a(f"v_cvt_pk_bf16_f32 v{RS}, v{RS}, v{RS+1}"); a(f"v_cvt_pk_bf16_f32 v{RS+1}, v{RS+2}, v{RS+3}")
    a(f"s_cmp_lg_u32 s{sW}, 0"); a("s_cbranch_scc1 L_fin")
    set_exec("0x00000000000000ff")
    a(f"global_store_dwordx2 v{SIG+1}, {vr(RS,2)}, {sp(pOUT)}")
    a(f"s_cmp_lg_u32 s{sRI}, 0"); a("s_cbranch_scc1 L_fin")
    set_exec(1)
    a(f"v_mov_b32 v{T[1]}, 0")
    a(f"buffer_store_dword v{vN}, v{T[1]}, {srd(WSR)}, 0 offen offset:{EPOCH}")
    a.label("L_fin")
    dump_stamps()
    a.label("L_abort")
    a.label("L_end")
    a("s_endpgm")
    a.label("L_codeend")
    body = a.text()
    tail = f""".section .rodata,"a"
.p2align 6
.amdhsa_kernel {NAME}
  .amdhsa_next_free_vgpr {NV}
  .amdhsa_next_free_sgpr 100
  .amdhsa_accum_offset {NV}
  .amdhsa_group_segment_fixed_size 0
  .amdhsa_kernarg_size 104
  .amdhsa_user_sgpr_count 2
  .amdhsa_user_sgpr_kernarg_segment_ptr 1
  .amdhsa_system_sgpr_workgroup_id_x 1
.end_amdhsa_kernel
"""
    return body + tail

if __name__ == "__main__":
    kw = json.loads(sys.argv[1]) if len(sys.argv) > 1 else {}
    sys.stdout.write(gen(**kw))
```

```python
import sys, json, struct
from asmlib import Asm

NAME = "sequential_preLN__mha_block_cached__moe_arch_mod__decode_kernel"
def f32hex(x): return "0x%08x" % struct.unpack("<I", struct.pack("<f", x))[0]

HB = 12582912
EPOCH = 0
QP = 0x1000
ML = 0x48000
OP = 0x60000
ZZ = 0x130000
HH = 0x1D0000
YY = 0x181000
CLS = 0x1C0000
PROG = 0x1C1000
WS_SIZE = 0x200000
L_XN = 0
L_Q = 5120
L_RED = 6656
L_RED2 = 12800
L_RED3 = 23040
L_SC = 25088
L_STAT = 2304
L_CTL = 2048
L_REDH = 25088 + 16384 + 512
LDS_BYTES = 25088 + 16384 + 512 + 6144
LOG2E = 1.4426950408889634

def gen(H=32, PK=13, ctl=1, thr=27, local=1, pace=1, wpol="nt", qpol="nt", stage1=64, lds=LDS_BYTES, dbg=0, pol="nt", spin=1 << 19, codepf=1):
    nph = 32 // H
    WPH = 256 // H
    NWH = WPH * 4
    G = 4096 // NWH
    NIT = G // 8
    STRIDE = NWH * 3072
    assert 2 <= PK <= 13 and NIT >= 4
    a = Asm()

    vL, vSA, vN = 1, 2, 3
    vM = [4, 5, 6, 7]; vA = 8
    vQ = 12
    vACC = 24
    vC, vMX, vP, vPN, vBC = 36, 37, 38, 39, 40
    T = list(range(41, 48))
    RING = 48
    W = 144
    vX = 204
    vLS, vAL, vRA, vOPA, WA, WB = 224, 225, 226, 227, 228, 230
    vZ, vFL = 232, 233
    NV = 240
    vST = 240
    if dbg: NV = 248
    def ring(slot, t): b = RING + slot * 12 + 4 * t; return f"v[{b}:{b+3}]"
    def vr(b, n): return f"v[{b}:{b+n-1}]"
    sW = 3
    pX, pK, pV, pWQ, pWO, pBX, pWR, pWG, pWU, pWD, pOUT, pDBG, pWS = [4 + 2 * i for i in range(13)]
    STR, WSR, TMP = 32, 36, 40
    sOff, sIt, sHead, sWI, sPh, sNon, sRole, sRI = 44, 45, 46, 47, 48, 49, 50, 51
    sSel = 52
    sSelG = 56
    sT0, sT1, sT2, sT3 = 57, 58, 59, 60
    sInc = 61
    sMask = 62
    sSlot, sJ, sInc4, sSpin = 78, 79, 80, 81
    sE = 82
    sBad = 84
    sU, sU2 = 86, 87
    sRow = 90
    sLoc, sBst, sPrv, sGI, sOH = 30, 31, 97, 98, 99
    sPkSel = 96
    def sp(b): return f"s[{b}:{b+1}]"
    def srd(b): return f"s[{b}:{b+3}]"
    USEFUL = "0xFF00FF0000FF00FF"

    def stamp(k):
        if not dbg: return
        a("s_memrealtime s[88:89]"); a("s_waitcnt lgkmcnt(0)"); a(f"v_writelane_b32 v{vST}, s88, {k}")
    def dump_stamps(helper=False):
        if not dbg: return
        stamp(15)
        a("s_mov_b32 exec_lo, -1"); a("s_mov_b32 exec_hi, 0")
        if helper: a("s_add_u32 s88, s2, 1024")
        else: a(f"s_lshl_b32 s88, s2, 2"); a(f"s_add_u32 s88, s88, s{sW}")
        a("s_lshl_b32 s88, s88, 7"); a(f"s_add_u32 s88, s88, {WS_SIZE}")
        a(f"v_lshlrev_b32 v{vST+1}, 2, v{vL}")
        a(f"buffer_store_dword v{vST}, v{vST+1}, {srd(WSR)}, s88 offen")

    DPP4 = ("quad_perm:[1,0,3,2]", "quad_perm:[2,3,0,1]", "row_half_mirror", "row_mirror")
    def dpp(op, v, m): a(f"{op}_dpp v{v}, v{v}, v{v} {m} row_mask:0xf bank_mask:0xf")
    def swap_reduce(ops_vs, tmps, sw):
        for (op, v), t in zip(ops_vs, tmps): a(f"v_mov_b32 v{t}, v{v}")
        for (op, v), t in zip(ops_vs, tmps): a(f"{sw} v{t}, v{v}")
        for (op, v), t in zip(ops_vs, tmps): a(f"{op} v{v}, v{v}, v{t}")
    def allreduce_n(ops_vs, tmps):
        for m in DPP4:
            for op, v in ops_vs: dpp(op, v, m)
        swap_reduce(ops_vs, tmps, "v_permlane16_swap_b32")
        swap_reduce(ops_vs, tmps, "v_permlane32_swap_b32")
    def allreduce(op, v, t): allreduce_n([(op, v)], [t])
    def set_exec(val):
        if isinstance(val, str) and val.startswith("0x") and len(val) > 10:
            a(f"s_mov_b32 exec_lo, 0x{val[-8:]}"); a(f"s_mov_b32 exec_hi, 0x{val[2:-8]}")
        else:
            a(f"s_mov_b64 exec, {val}")
    def a_operand(src, dst=None):
        dst = vA if dst is None else dst
        for r in range(4): a(f"v_and_b32 v{dst+r}, v{src}, v{vM[r]}")
    def tag4(b):
        for r in range(4): a(f"v_perm_b32 v{b+r}, v{b+r}, v{vN}, s{sSel+r}")
    def check4(b, t0, t1, first):
        a(f"v_perm_b32 v{t0}, v{b+1}, v{b}, s{sSelG}")
        a(f"v_perm_b32 v{t1}, v{b+3}, v{b+2}, s{sSelG}")
        a(f"v_lshl_or_b32 v{t0}, v{t1}, 16, v{t0}")
        a(f"v_cmp_ne_u32 vcc, v{t0}, v{vN}")
        if first: a(f"s_mov_b64 {sp(sBad)}, vcc")
        else: a(f"s_or_b64 {sp(sBad)}, {sp(sBad)}, vcc")
    lab = [0]
    def newlab():
        lab[0] += 1; return lab[0]
    def poll(issue, check, pre=None, first_issued=False, first_wait=0):
        n = newlab()
        a(f"s_mov_b32 s{sSpin}, {spin}")
        if not first_issued: issue()
        if pre: pre()
        a(f"s_waitcnt vmcnt({first_wait})")
        a(f"s_branch L_pollchk{n}")
        a.label(f"L_poll{n}")
        a(f"s_sub_u32 s{sSpin}, s{sSpin}, 1")
        a(f"s_cmp_eq_u32 s{sSpin}, 0")
        a("s_cbranch_scc1 L_abort")
        issue()
        a("s_waitcnt vmcnt(0)")
        a.label(f"L_pollchk{n}")
        check()
        a(f"s_cmp_lg_u64 {sp(sBad)}, 0")
        a(f"s_cbranch_scc1 L_poll{n}")
    def pub_store(data, voff, soff):
        n = newlab()
        if local:
            a(f"s_cmp_eq_u32 s{sLoc}, 1"); a(f"s_cbranch_scc1 L_pl{n}")
        a(f"buffer_store_dwordx4 {data}, v{voff}, {srd(WSR)}, s{soff} offen sc1")
        if local:
            a(f"s_branch L_pd{n}")
            a.label(f"L_pl{n}")
            a(f"buffer_store_dwordx4 {data}, v{voff}, {srd(WSR)}, s{soff} offen")
            a.label(f"L_pd{n}")
    def rne(dst, src):
        a(f"v_cvt_pk_bf16_f32 v{dst}, v{src}, v{src}")
        a(f"v_lshlrev_b32 v{dst}, 16, v{dst}")
    def pkadd(d, x, y): a(f"v_pk_add_f32 {vr(d,2)}, {vr(x,2)}, {vr(y,2)}")
    def sum_quads(dst, srcs):
        for s in srcs:
            pkadd(dst, dst, s); pkadd(dst + 2, dst + 2, s + 2)

    def ln_consts(s1, s2, t):
        a(f"v_mul_f32 v{s1}, {f32hex(1.0/640)}, v{s1}")
        a(f"v_mul_f32 v{s2}, {f32hex(1.0/640)}, v{s2}")
        a(f"v_fma_f32 v{s2}, -v{s1}, v{s1}, v{s2}")
        a(f"v_max_f32 v{s2}, 0, v{s2}")
        rne(s2, s2)
        a(f"v_add_f32 v{s2}, {f32hex(1e-5)}, v{s2}")
        rne(s2, s2)
        rne(s1, s1)
        a(f"v_sqrt_f32 v{s2}, v{s2}")
        rne(s2, s2)

    def layernorm_full(val, pk, tmp, refine):
        t0, t1, t2, t3, t4 = tmp
        ONES = t4
        a(f"v_mov_b32 v{ONES}, 0x3f803f80")
        a(f"v_dot2_f32_bf16 v{t0}, v{pk}, v{ONES}, 0"); a(f"v_dot2_f32_bf16 v{t1}, v{pk}, v{pk}, 0")
        for i in range(1, 6):
            a(f"v_dot2_f32_bf16 v{t0}, v{pk+i}, v{ONES}, v{t0}"); a(f"v_dot2_f32_bf16 v{t1}, v{pk+i}, v{pk+i}, v{t1}")
        allreduce_n([("v_add_f32", t0), ("v_add_f32", t1)], [t2, t3])
        ln_consts(t0, t1, t2)
        a(f"v_rcp_f32 v{t4}, v{t1}")
        for i in range(0, 12, 2):
            a(f"v_sub_f32 v{val+i}, v{val+i}, v{t0}")
            a(f"v_sub_f32 v{val+i+1}, v{val+i+1}, v{t0}")
            a(f"v_cvt_pk_bf16_f32 v{t2}, v{val+i}, v{val+i+1}")
            a(f"v_lshlrev_b32 v{val+i}, 16, v{t2}")
            a(f"v_and_b32 v{val+i+1}, 0xffff0000, v{t2}")
            for k in (i, i + 1):
                if refine:
                    a(f"v_mul_f32 v{t2}, v{val+k}, v{t4}")
                    a(f"v_fma_f32 v{t3}, -v{t2}, v{t1}, v{val+k}")
                    a(f"v_fma_f32 v{val+k}, v{t3}, v{t4}, v{t2}")
                else:
                    a(f"v_mul_f32 v{val+k}, v{val+k}, v{t4}")
            a(f"v_cvt_pk_bf16_f32 v{pk + i//2}, v{val+i}, v{val+i+1}")
            a(f"v_lshlrev_b32 v{val+i}, 16, v{pk + i//2}")
            a(f"v_and_b32 v{val+i+1}, 0xffff0000, v{pk + i//2}")

    a.lines.append(f"; @launch grid=(256,1,1) block=(320,1,1) lds={lds}")
    a.lines.append('.amdgcn_target "amdgcn-amd-amdhsa--gfx950"')
    a.lines += [".text", f".globl {NAME}", ".p2align 8", f".type {NAME},@function"]
    a.label(NAME)
    a("s_cmp_ge_u32 s2, 256")
    a("s_cbranch_scc1 L_end")
    a("s_load_dwordx16 s[4:19], s[0:1], 0")
    a("s_load_dwordx8 s[20:27], s[0:1], 64")
    a("s_load_dwordx2 s[28:29], s[0:1], 96")
    a(f"v_and_b32 v{vL}, 63, v0")
    a(f"v_lshrrev_b32 v{T[0]}, 6, v0")
    a(f"v_lshrrev_b32 v{T[2]}, 3, v{vL}")
    a(f"v_readfirstlane_b32 s{sW}, v{T[0]}")
    a(f"v_and_b32 v{T[3]}, 7, v{vL}")
    a(f"v_lshlrev_b32 v{T[4]}, 4, v{T[3]}")
    def masks():
        for r in range(4):
            a(f"v_mov_b32 v{vM[r]}, 0")
            a(f"v_mov_b32 v{T[5]}, 0xffff")
            a(f"v_cmp_eq_u32 vcc, {2*r}, v{T[3]}")
            a(f"v_cndmask_b32 v{vM[r]}, v{vM[r]}, v{T[5]}, vcc")
            a(f"v_mov_b32 v{T[5]}, 0xffff0000")
            a(f"v_cmp_eq_u32 vcc, {2*r+1}, v{T[3]}")
            a(f"v_cndmask_b32 v{vM[r]}, v{vM[r]}, v{T[5]}, vcc")
    def ws_srd():
        a(f"s_mov_b32 s{WSR}, s{pWS}"); a(f"s_mov_b32 s{WSR+1}, s{pWS+1}"); a(f"s_mov_b32 s{WSR+2}, {WS_SIZE * (2 if dbg else 1)}"); a(f"s_mov_b32 s{WSR+3}, 0x20000")
    vq = []
    def wait_for(name):
        if name not in vq: return
        idx = max(i for i, n in enumerate(vq) if n == name)
        n = len(vq) - 1 - idx
        a(f"s_waitcnt vmcnt({min(n, 63)})")
        del vq[:idx + 1]
    def red_addr():
        a(f"v_lshrrev_b32 v{T[0]}, 5, v{vL}")
        a(f"v_mul_u32_u24 v{vRA}, 768, v{T[0]}")
        a(f"v_and_b32 v{T[0]}, 7, v{vL}"); a(f"v_lshlrev_b32 v{T[0]}, 5, v{T[0]}"); a(f"v_add_u32 v{vRA}, v{vRA}, v{T[0]}")
        a(f"v_and_b32 v{T[0]}, 16, v{vL}"); a(f"v_add_u32 v{vRA}, v{vRA}, v{T[0]}")
        a(f"s_mul_i32 s{sT0}, s{sW}, 1536"); a(f"v_add_u32 v{vRA}, s{sT0}, v{vRA}")
    def red_write():
        set_exec(USEFUL)
        for t in range(3): a(f"ds_write_b128 v{vRA}, {vr(vACC+4*t,4)} offset:{L_RED + 256*t}")
        set_exec(-1)
    a(f"s_cmp_lg_u32 s{sW}, 4"); a("s_cbranch_scc1 L_stream")
    a("s_setprio 3")

    WD = RING
    XQ = 168
    XV = 176
    XR = 188
    a(f"s_and_b32 s{sT0}, s2, 31"); a(f"s_lshr_b32 s{sT1}, s2, 5")
    a(f"v_mul_u32_u24 v{T[6]}, 12288, v{T[2]}")
    a(f"s_mul_i32 s{sT2}, s{sT0}, 384")
    a(f"v_add3_u32 v{T[6]}, v{T[6]}, v{T[4]}, s{sT2}")
    a(f"s_mul_i32 s{sT3}, s{sT1}, {80*12288}")
    a(f"v_lshlrev_b32 v{T[1]}, 3, v{vL}")
    a(f"v_add_u32 v{T[5]}, 1024, v{T[1]}")
    a(f"v_min_u32 v{T[5]}, 1272, v{T[5]}")
    a(f"s_mov_b32 s{TMP+2}, 7864320"); a(f"s_mov_b32 s{TMP+3}, 0x20000")
    a("s_waitcnt lgkmcnt(0)")
    a(f"s_mov_b32 s{TMP}, s{pWQ}"); a(f"s_mov_b32 s{TMP+1}, s{pWQ+1}")
    a(f"global_load_dwordx2 {vr(XQ,2)}, v{T[1]}, {sp(pX)}")
    a(f"global_load_dwordx2 {vr(XQ+2,2)}, v{T[1]}, {sp(pX)} offset:512")
    a(f"global_load_dwordx2 {vr(XQ+4,2)}, v{T[5]}, {sp(pX)}")
    vq += ["x0", "x1", "x2"]
    for k in range(10):
        for t in range(3):
            a(f"buffer_load_dwordx4 {vr(WD + 12*k + 4*t, 4)}, v{T[6]}, {srd(TMP)}, s{sT3} offen offset:{128*t} {qpol}")
            vq.append(f"wq{k}")
        if k < 9: a(f"s_add_u32 s{sT3}, s{sT3}, {8*12288}")
    a(f"v_mov_b32 v{vZ}, 0")
    for o in range(0, 36, 4): a(f"ds_write_b32 v{vZ}, v{vZ} offset:{L_CTL + o}")
    a("s_waitcnt lgkmcnt(0)")
    a("s_barrier")
    a(f"s_load_dword s{sNon}, {sp(pWS)}, {EPOCH}")
    if dbg: a(f"v_mov_b32 v{vST}, 0")
    stamp(0)
    masks()
    ws_srd()
    a(f"s_and_b32 s{sSlot}, s2, {H-1}")
    wait_for("x2")
    stamp(18)
    CE = 198
    a("s_waitcnt lgkmcnt(0)")
    a(f"s_add_u32 s{sNon}, s{sNon}, 0x9e3779b9")
    a(f"v_mov_b32 v{vN}, s{sNon}")
    a(f"s_getreg_b32 s{sT0}, hwreg(HW_REG_XCC_ID, 0, 4)")
    a(f"s_and_b32 s{sT1}, s{sNon}, 0xfffffff0"); a(f"s_or_b32 s{sT0}, s{sT0}, s{sT1}")
    a(f"v_mov_b32 v{CE}, s{sT0}")
    a(f"s_and_b32 s{sU2}, s2, 7"); a(f"s_lshl_b32 s{sU2}, s{sU2}, 7")
    a(f"s_lshr_b32 s{sT1}, s2, 3"); a(f"s_lshl_b32 s{sT1}, s{sT1}, 2"); a(f"s_add_u32 s{sT1}, s{sT1}, s{sU2}"); a(f"s_add_u32 s{sT1}, s{sT1}, {CLS}")
    if local:
        set_exec(1)
        a(f"buffer_store_dword v{CE}, v{vZ}, {srd(WSR)}, s{sT1} offen")
        set_exec(-1)
        vq.append("cls_st")
    a(f"v_cmp_gt_u32 vcc, 32, v{vL}")
    a(f"v_cndmask_b32 v{XQ+4}, 0, v{XQ+4}, vcc"); a(f"v_cndmask_b32 v{XQ+5}, 0, v{XQ+5}, vcc")
    for k in range(6):
        a(f"v_lshlrev_b32 v{XV+2*k}, 16, v{XQ+k}")
        a(f"v_and_b32 v{XV+2*k+1}, 0xffff0000, v{XQ+k}")
    layernorm_full(XV, XQ, T[0:5], True)
    a(f"v_lshlrev_b32 v{T[0]}, 3, v{vL}")
    a(f"ds_write_b64 v{T[0]}, {vr(XQ,2)} offset:{L_XN}")
    a(f"ds_write_b64 v{T[0]}, {vr(XQ+2,2)} offset:{L_XN+512}")
    set_exec("0x00000000ffffffff")
    a(f"ds_write_b64 v{T[0]}, {vr(XQ+4,2)} offset:{L_XN+1024}")
    set_exec(-1)
    a(f"s_lshr_b32 s{sT1}, s2, 5"); a(f"s_mul_i32 s{sT1}, s{sT1}, 160")
    a(f"v_lshrrev_b32 v{T[0]}, 3, v{vL}"); a(f"v_lshlrev_b32 v{T[0]}, 1, v{T[0]}"); a(f"v_add_u32 v{T[0]}, s{sT1}, v{T[0]}")
    a("s_waitcnt lgkmcnt(0)")
    for k in range(10): a(f"ds_read_u16 v{XR+k}, v{T[0]} offset:{L_XN + 16*k}")
    for i in range(12): a(f"v_mov_b32 v{vACC+i}, 0")
    a("s_waitcnt lgkmcnt(0)")
    for k in range(10): a(f"v_lshl_or_b32 v{XR+k}, v{XR+k}, 16, v{XR+k}")
    stamp(1)
    def cls_issue():
        a(f"v_and_b32 v{T[5]}, 31, v{vL}"); a(f"v_lshlrev_b32 v{T[5]}, 2, v{T[5]}")
        a(f"s_add_u32 s{sT2}, s{sU2}, {CLS}")
        a(f"buffer_load_dword v{CE+1}, v{T[5]}, {srd(WSR)}, s{sT2} offen sc1")
    for k in range(10):
        a_operand(XR + k)
        if k == 8 and local:
            cls_issue(); vq.append("cls_ld")
        wait_for(f"wq{k}")
        for t in range(3):
            a(f"v_mfma_f32_16x16x32_bf16 {vr(vACC+4*t,4)}, {vr(vA,4)}, {vr(WD+12*k+4*t,4)}, {vr(vACC+4*t,4)}")
    a(f"v_lshrrev_b32 v{T[0]}, 5, v{vL}"); a(f"v_mul_u32_u24 v{vRA}, 768, v{T[0]}")
    a(f"v_and_b32 v{T[0]}, 7, v{vL}"); a(f"v_lshlrev_b32 v{T[0]}, 5, v{T[0]}"); a(f"v_add_u32 v{vRA}, v{vRA}, v{T[0]}")
    a(f"v_and_b32 v{T[0]}, 16, v{vL}"); a(f"v_add_u32 v{vRA}, v{vRA}, v{T[0]}")
    a(f"v_mul_u32_u24 v{T[0]}, 12, v{vL}")
    a(f"s_and_b32 s{sT0}, s2, 31"); a(f"s_lshr_b32 s{sT1}, s2, 5"); a(f"s_lshl_b32 s{sT0}, s{sT0}, 3"); a(f"s_add_u32 s{sT0}, s{sT0}, s{sT1}")
    a(f"s_lshl_b32 s{sT0}, s{sT0}, 10"); a(f"s_add_u32 s{sT0}, s{sT0}, {QP}")
    a(f"v_lshlrev_b32 v{T[1]}, 4, v{vL}")
    red_write()
    a("s_waitcnt lgkmcnt(0)")
    S3 = 200
    for s in range(2):
        for i in range(3): a(f"ds_read_b32 v{S3+4*s+i}, v{T[0]} offset:{L_RED + 768*s + 4*i}")
    a("s_waitcnt lgkmcnt(0)")
    pkadd(S3, S3, S3 + 4); a(f"v_add_f32 v{S3+2}, v{S3+2}, v{S3+6}")
    a(f"v_mov_b32 v{S3+3}, v{vN}")
    a(f"s_mov_b32 s{sLoc}, 0")
    if local:
        a(f"s_mov_b32 s{sSpin}, 8")
        a("s_waitcnt vmcnt(0)")
        a.label("L_clschk")
        a(f"v_cmp_ne_u32 vcc, v{CE+1}, v{CE}")
        a(f"s_cmp_eq_u64 vcc, 0"); a(f"s_cselect_b32 s{sLoc}, 1, 0"); a("s_cbranch_scc1 L_clsdone")
        a(f"s_sub_u32 s{sSpin}, s{sSpin}, 1"); a(f"s_cmp_eq_u32 s{sSpin}, 0"); a("s_cbranch_scc1 L_clsdone")
        cls_issue(); a("s_waitcnt vmcnt(0)"); a("s_branch L_clschk")
        a.label("L_clsdone")
    pub_store(vr(S3,4), T[1], sT0)
    a(f"v_mov_b32 v{T[2]}, s{sLoc}"); a(f"ds_write_b32 v{vZ}, v{T[2]} offset:{L_CTL + 8}")
    stamp(21)
    S4 = RING
    for p in range(nph):
        a(f"s_add_u32 s{sU}, s{sSlot}, {H*p}"); a(f"s_lshl_b32 s{sU}, s{sU}, 13"); a(f"s_add_u32 s{sU}, s{sU}, {QP}")
        def iss():
            for s in range(8):
                a(f"s_add_u32 s{sT1}, s{sU}, {1024*s}")
                a(f"buffer_load_dwordx4 {vr(S4+4*s,4)}, v{T[1]}, {srd(WSR)}, s{sT1} offen sc1")
        def chk():
            for s in range(8):
                a(f"v_cmp_ne_u32 vcc, v{S4+4*s+3}, v{vN}")
                a(f"s_mov_b64 {sp(sBad)}, vcc" if s == 0 else f"s_or_b64 {sp(sBad)}, {sp(sBad)}, vcc")
        poll(iss, chk)
        if p == 0: stamp(22)
        for s in range(1, 8):
            pkadd(S4, S4, S4 + 4*s); a(f"v_add_f32 v{S4+2}, v{S4+2}, v{S4+4*s+2}")
        a(f"v_cvt_pk_bf16_f32 v{S4}, v{S4}, v{S4+1}")
        a(f"v_cvt_pk_bf16_f32 v{S4+2}, v{S4+2}, v{S4+2}")
        a(f"v_mul_u32_u24 v{T[0]}, 6, v{vL}")
        a(f"ds_write_b16 v{T[0]}, v{S4} offset:{L_Q + 384*p}")
        a(f"ds_write_b16_d16_hi v{T[0]}, v{S4} offset:{L_Q + 384*p + 2}")
        a(f"ds_write_b16 v{T[0]}, v{S4+2} offset:{L_Q + 384*p + 4}")
        a("s_waitcnt lgkmcnt(0)")
        if nph > 1:
            a(f"v_mov_b32 v{T[0]}, {p+1}"); a(f"ds_write_b32 v{vZ}, v{T[0]} offset:{L_CTL + 32}"); a("s_waitcnt lgkmcnt(0)")
        if p == 0:
            a("s_barrier")
            if codepf:
                a(f"s_getpc_b64 {sp(58)}")
                a.label("L_pc")
                a(f"s_lshr_b32 s{sT3}, s2, 3"); a(f"s_lshl_b32 s{sT3}, s{sT3}, 9")
                a(f"v_and_b32 v{T[0]}, 7, v{vL}"); a(f"v_lshlrev_b32 v{T[0]}, 6, v{T[0]}"); a(f"v_add_u32 v{T[0]}, s{sT3}, v{T[0]}")
                a(f"v_add_u32 v{T[0]}, L_kcode-L_pc, v{T[0]}")
                a(f"v_min_u32 v{T[0]}, L_codeend-L_pc-4, v{T[0]}")
                a(f"global_load_dword v{vP}, v{T[0]}, {sp(58)}")
    if ctl or nph > 1:
        NTOT = 2 * NIT * nph
        sPub = sPh
        HBUF = RING
        a(f"s_and_b32 s{sT0}, s{sNon}, 0xffffff00"); a(f"v_mov_b32 v{T[3]}, s{sT0}")
        a(f"s_add_u32 s{sU}, s{sU2}, {PROG}")
        a(f"v_and_b32 v{T[4]}, 31, v{vL}"); a(f"v_lshlrev_b32 v{T[4]}, 2, v{T[4]}")
        a(f"s_lshr_b32 s{sT1}, s2, 3"); a(f"s_lshl_b32 s{sT1}, s{sT1}, 2"); a(f"v_mov_b32 v{T[5]}, s{sT1}")
        a(f"s_mov_b32 s{sGI}, 0"); a(f"s_mov_b32 s{sSpin}, {1 << 22}"); a(f"s_mov_b32 s{sPub}, 0")
        if nph > 1:
            for r in range(4): a(f"s_mov_b32 s{sSel+r}, 0x{0x07060500 | r:08x}")
            a(f"s_lshr_b32 s{sJ}, s2, {H.bit_length()-1}")
            a(f"v_mul_u32_u24 v{T[1]}, 43691, v{vL}"); a(f"v_lshrrev_b32 v{T[1]}, 19, v{T[1]}")
            a(f"v_mul_u32_u24 v{T[2]}, 12, v{T[1]}"); a(f"v_sub_u32 v{T[2]}, v{vL}, v{T[2]}")
            a(f"v_mul_u32_u24 v{T[1]}, {WPH*192}, v{T[1]}"); a(f"v_lshlrev_b32 v{T[2]}, 4, v{T[2]}"); a(f"v_add_u32 v{vOPA}, v{T[1]}, v{T[2]}")
            a(f"v_lshlrev_b32 v{vRA}, 4, v{vL}")
        a.label("L_cspin")
        a("s_sleep 4")
        a(f"ds_read_b32 v{T[0]}, v{vZ} offset:{L_CTL}")
        if nph > 1: a(f"ds_read_b128 {vr(vA,4)}, v{vZ} offset:{L_CTL + 16}")
        a("s_waitcnt lgkmcnt(0)"); a(f"v_readfirstlane_b32 s{sT0}, v{T[0]}")
        a(f"s_sub_u32 s{sSpin}, s{sSpin}, 1"); a(f"s_cmp_eq_u32 s{sSpin}, 0"); a("s_cbranch_scc1 L_cdone")
        if nph > 1:
            a(f"v_min_u32 v{vA}, v{vA}, v{vA+1}"); a(f"v_min_u32 v{vA+2}, v{vA+2}, v{vA+3}"); a(f"v_min_u32 v{vA}, v{vA}, v{vA+2}")
            a(f"v_readfirstlane_b32 s{sT1}, v{vA}")
            a(f"s_cmp_gt_u32 s{sT1}, s{sPub}"); a("s_cbranch_scc0 L_cnopub")
            set_exec("0x0000ffffffffffff")
            for s_ in range(8): a(f"ds_read_b128 {vr(HBUF+4*s_,4)}, v{vRA} offset:{L_REDH + 768*s_}")
            a("s_waitcnt lgkmcnt(0)")
            a(f"s_add_u32 s{sT1}, s{sPub}, 1"); a(f"v_mov_b32 v{T[1]}, s{sT1}"); a(f"ds_write_b32 v{vZ}, v{T[1]} offset:{L_CTL + 12}")
            sum_quads(HBUF, [HBUF + 4*k for k in range(1, 8)])
            tag4(HBUF)
            a(f"s_mul_i32 s{sT2}, s{sPub}, {H}"); a(f"s_add_u32 s{sT2}, s{sT2}, s{sSlot}")
            a(f"s_mul_i32 s{sT2}, s{sT2}, {4*WPH*192}"); a(f"s_mul_i32 s{sT3}, s{sJ}, 192"); a(f"s_add_u32 s{sT2}, s{sT2}, s{sT3}"); a(f"s_add_u32 s{sT2}, s{sT2}, {OP}")
            pub_store(vr(HBUF,4), vOPA, sT2)
            set_exec(-1)
            a(f"s_mov_b32 s{sPub}, s{sT1}")
            a.label("L_cnopub")
        if ctl:
            a(f"s_cmp_eq_u32 s{sT0}, s{sGI}"); a("s_cbranch_scc1 L_cchk")
            a(f"s_mov_b32 s{sGI}, s{sT0}")
            a(f"buffer_load_dword v{T[1]}, v{T[4]}, {srd(WSR)}, s{sU} offen sc1")
            a(f"v_or_b32 v{T[2]}, s{sGI}, v{T[3]}")
            set_exec(1)
            a(f"buffer_store_dword v{T[2]}, v{T[5]}, {srd(WSR)}, s{sU} offen")
            set_exec(-1)
            a("s_waitcnt vmcnt(1)")
            a(f"v_xor_b32 v{T[1]}, v{T[1]}, v{T[3]}")
            a(f"v_cmp_le_u32 vcc, s{sGI}, v{T[1]}"); a(f"s_mov_b32 s{sT2}, vcc_lo")
            a(f"v_cmp_gt_u32 vcc, 256, v{T[1]}"); a(f"s_and_b32 s{sT2}, s{sT2}, vcc_lo")
            a(f"s_bcnt1_i32_b32 s{sT2}, s{sT2}")
            a(f"s_cmp_ge_u32 s{sT2}, {thr}"); a(f"s_cselect_b32 s{sT2}, 1, 0")
            a(f"v_mov_b32 v{T[0]}, s{sT2}"); a(f"ds_write_b32 v{vZ}, v{T[0]} offset:{L_CTL + 4}")
            a.label("L_cchk")
            a(f"s_cmp_lt_u32 s{sGI}, {NTOT - 2}"); a("s_cbranch_scc1 L_cspin")
        if nph > 1:
            a(f"s_cmp_lt_u32 s{sPub}, {nph - 1}"); a("s_cbranch_scc1 L_cspin")
        a.label("L_cdone")
        a("s_waitcnt vmcnt(0) lgkmcnt(0)")
    dump_stamps(True)
    a("s_endpgm")

    a.label("L_stream")
    vq[:] = []
    a(f"v_mul_u32_u24 v{vSA}, 384, v{T[2]}")
    a(f"v_add_u32 v{vSA}, v{vSA}, v{T[4]}")
    a(f"s_and_b32 s{sSlot}, s2, {H-1}")
    a(f"s_lshr_b32 s{sJ}, s2, {H.bit_length()-1}")
    a(f"s_lshl_b32 s{sWI}, s{sJ}, 2")
    a(f"s_add_u32 s{sWI}, s{sWI}, s{sW}")
    a(f"s_mov_b32 s{sHead}, s{sSlot}")
    a(f"s_mov_b32 s{sPh}, 0")
    a(f"s_mul_i32 s{sT0}, s{sHead}, {HB}")
    a(f"s_mul_i32 s{sOff}, s{sWI}, 3072")
    a(f"s_mov_b32 s{STR+2}, {HB}"); a(f"s_mov_b32 s{STR+3}, 0x20000")
    a("s_waitcnt lgkmcnt(0)")
    a(f"s_add_u32 s{STR}, s{pK}, s{sT0}"); a(f"s_addc_u32 s{STR+1}, s{pK+1}, 0")
    a(f"s_load_dword s{sNon}, {sp(pWS)}, {EPOCH}")
    if dbg: a(f"v_mov_b32 v{vST}, 0")
    stamp(0)
    a(f"v_mov_b32 v{vOPA}, 0"); a(f"s_mov_b32 s{sU2}, {OP}")
    masks()
    a(f"s_mov_b32 s{sPh}, 0")
    for g in range(8):
        m = 0x0101010101010101 << g
        a(f"s_mov_b32 s{sMask+2*g}, 0x{m & 0xffffffff:08x}")
        a(f"s_mov_b32 s{sMask+2*g+1}, 0x{m >> 32:08x}")
    for r in range(4): a(f"s_mov_b32 s{sSel+r}, 0x{0x07060500 | r:08x}")
    a(f"s_mov_b32 s{sSelG}, 0x0c0c0400")
    a(f"s_mov_b32 s{sPkSel}, 0x07060302")
    for r in range(1, 4):
        m = 0xffff << (16 * r)
        a(f"s_mov_b32 s{sRow+2*(r-1)}, 0x{m & 0xffffffff:08x}"); a(f"s_mov_b32 s{sRow+2*(r-1)+1}, 0x{m >> 32:08x}")
    ws_srd()
    a(f"s_and_b32 s{sT0}, s2, 7"); a(f"s_lshr_b32 s{sT1}, s2, 3")
    a(f"s_lshl_b32 s{sT2}, s{sT1}, 3"); a(f"s_add_u32 s{sRI}, s{sT2}, s{sT0}"); a(f"s_mov_b32 s{sRole}, 0")
    a(f"s_lshr_b32 s{sT2}, s{sT1}, 2"); a(f"s_lshl_b32 s{sT2}, s{sT2}, 3"); a(f"s_add_u32 s{sT2}, s{sT2}, s{sT0}"); a(f"s_lshl_b32 s{sT2}, s{sT2}, 2")
    a(f"s_and_b32 s{sT3}, s{sT1}, 3"); a(f"s_add_u32 s{sOH}, s{sT2}, s{sT3}")
    a(f"s_cmp_lt_u32 s{sT1}, 16"); a("s_cbranch_scc1 L_roled")
    a(f"s_sub_u32 s{sT2}, s{sT1}, 16"); a(f"s_mul_i32 s{sT3}, s{sT0}, 12"); a(f"s_add_u32 s{sRI}, s{sT3}, s{sT2}"); a(f"s_mov_b32 s{sRole}, 1")
    a(f"s_cmp_lt_u32 s{sT1}, 28"); a("s_cbranch_scc1 L_roled")
    a(f"s_sub_u32 s{sT2}, s{sT1}, 28"); a(f"s_lshl_b32 s{sT2}, s{sT2}, 3"); a(f"s_add_u32 s{sRI}, s{sT2}, s{sT0}"); a(f"s_mov_b32 s{sRole}, 2")
    a.label("L_roled")
    def kslot(g):
        if g < 8: return RING + 12 * ((g + 5) % 8)
        if g < 13 and g < PK: return W + 12 * (g - 8)
        return RING + 12 * (g % 8)
    def issue(g):
        b = kslot(g)
        for t in range(3):
            a(f"buffer_load_dwordx4 {vr(b+4*t,4)}, v{vSA}, {srd(STR)}, s{sOff} offen offset:{128*t} {pol}")
            vq.append(f"k{g}")
        a(f"s_add_u32 s{sOff}, s{sOff}, {STRIDE}")
    a(f"v_mov_b32 v{vZ}, 0"); a(f"v_mov_b32 v{vFL}, 0"); a(f"s_mov_b32 s{sGI}, 0"); a(f"s_mov_b32 s{sPrv}, 0")
    a("s_barrier")
    for g in range(PK):
        if pace and g >= 2: wait_for(f"k{g-2}")
        issue(g)
    stamp(16)
    a("s_waitcnt lgkmcnt(0)")
    a(f"s_add_u32 s{sNon}, s{sNon}, 0x9e3779b9")
    a(f"v_mov_b32 v{vN}, s{sNon}")
    a("s_barrier")
    a(f"ds_read_b32 v{T[1]}, v{vZ} offset:{L_CTL + 8}"); a("s_waitcnt lgkmcnt(0)"); a(f"v_readfirstlane_b32 s{sLoc}, v{T[1]}")
    def progress():
        if not ctl: return
        n = newlab()
        a(f"s_add_u32 s{sGI}, s{sGI}, 1")
        a(f"s_cmp_lg_u32 s{sW}, 0"); a(f"s_cbranch_scc1 L_pg{n}")
        a(f"v_mov_b32 v{T[5]}, s{sGI}"); a(f"ds_write_b32 v{vZ}, v{T[5]} offset:{L_CTL}")
        a.label(f"L_pg{n}")
    def flag_read():
        if ctl: a(f"ds_read_b32 v{vFL}, v{vZ} offset:{L_CTL + 4}")
    def load_q():
        a(f"v_and_b32 v{T[0]}, 7, v{vL}"); a(f"v_lshlrev_b32 v{T[0]}, 4, v{T[0]}")
        a(f"s_mul_i32 s{sT0}, s{sPh}, 384"); a(f"v_add_u32 v{T[0]}, s{sT0}, v{T[0]}")
        for t in range(3): a(f"ds_read_b128 {vr(vQ+4*t,4)}, v{T[0]} offset:{L_Q + 128*t}")
    load_q()

    a.label("L_kcode")
    vSC = T[6]
    def score_addr():
        a(f"v_lshlrev_b32 v{vSC}, 2, v{vL}")
        a(f"s_lshl_b32 s{sT0}, s{sW}, 12"); a(f"v_add_u32 v{vSC}, s{sT0}, v{vSC}")
    def kinit():
        score_addr()
        a(f"v_mov_b32 v{vMX}, 0xff800000"); a(f"v_mov_b32 v{vLS}, 0")
        a("s_waitcnt lgkmcnt(0)")
    def kcompute(b, g):
        a0, a1, a2 = T[0], T[1], T[2]
        for i in range(4):
            for t, acc in enumerate((a0, a1, a2)):
                src2 = "0" if i == 0 else f"v{acc}"
                a(f"v_dot2_f32_bf16 v{acc}, v{b+4*t+i}, v{vQ+4*t+i}, {src2}")
        a(f"v_add_f32 v{a0}, v{a0}, v{a1}")
        a(f"v_add_f32 v{a0}, v{a0}, v{a2}")
        for m in DPP4[:3]: dpp("v_add_f32", a0, m)
        a(f"v_cndmask_b32 v{vC}, v{vC}, v{a0}, {sp(sMask+2*g)}")
    SCALE = f32hex(192 ** -0.5)
    def kfinish():
        t, u, w_ = T[0], T[1], T[2]
        rne(t, vC)
        a(f"v_mul_f32 v{t}, {SCALE}, v{t}")
        rne(t, t)
        a(f"ds_write_b32 v{vSC}, v{t} offset:{L_SC}")
        a(f"v_add_u32 v{vSC}, 256, v{vSC}")
        a(f"v_max_f32 v{u}, v{vMX}, v{t}")
        a(f"v_sub_f32 v{w_}, v{vMX}, v{u}"); a(f"v_sub_f32 v{t}, v{t}, v{u}")
        a(f"v_mul_f32 v{w_}, {f32hex(LOG2E)}, v{w_}"); a(f"v_mul_f32 v{t}, {f32hex(LOG2E)}, v{t}")
        a(f"v_exp_f32 v{w_}, v{w_}"); a(f"v_exp_f32 v{t}, v{t}")
        a(f"v_mov_b32 v{vMX}, v{u}")
        a(f"v_fma_f32 v{vLS}, v{vLS}, v{w_}, v{t}")
    kinit()
    stamp(3)
    nx = PK
    for g in range(16):
        while nx <= g + 1:
            issue(nx); nx += 1
        wait_for(f"k{g}")
        while nx <= g + 2:
            issue(nx); nx += 1
        kcompute(kslot(g), g % 8)
        if g < 2 and nx < 16 and kslot(nx) == kslot(g):
            issue(nx); nx += 1
        if g % 8 == 7:
            kfinish(); progress()
    assert nx == 18, nx
    flag_read()
    a(f"s_mov_b32 s{sIt}, 2")
    def switch_to_V():
        n = newlab()
        a(f"s_cmp_eq_u32 s{sIt}, {NIT-1}")
        a(f"s_cbranch_scc0 L_nosw{n}")
        a(f"s_mul_i32 s{sT0}, s{sHead}, {HB}")
        a(f"s_add_u32 s{STR}, s{pV}, s{sT0}"); a(f"s_addc_u32 s{STR+1}, s{pV+1}, 0")
        a(f"s_mul_i32 s{sOff}, s{sWI}, 3072")
        a.label(f"L_nosw{n}")
    def switch_to_nextK():
        n = newlab()
        a(f"s_cmp_eq_u32 s{sIt}, {NIT-1}")
        a(f"s_cbranch_scc0 L_nosw{n}")
        if nph > 1:
            a(f"s_add_u32 s{sT0}, s{sHead}, {H}")
            a(f"s_mul_i32 s{sT0}, s{sT0}, {HB}")
            a(f"s_add_u32 s{STR}, s{pK}, s{sT0}"); a(f"s_addc_u32 s{STR+1}, s{pK+1}, 0")
            a(f"s_mul_i32 s{sOff}, s{sWI}, 3072")
            a(f"s_cmp_eq_u32 s{sPh}, {nph-1}")
            a(f"s_cselect_b32 s{STR+2}, 0, {HB}")
            a(f"s_cselect_b32 s{STR}, s{pK}, s{STR}"); a(f"s_cselect_b32 s{STR+1}, s{pK+1}, s{STR+1}")
        else:
            a(f"s_mov_b32 s{STR+2}, 0")
        a.label(f"L_nosw{n}")
    def steady_issue(slot):
        for t in range(3):
            a(f"buffer_load_dwordx4 {ring(slot,t)}, v{vSA}, {srd(STR)}, s{sOff} offen offset:{128*t} {pol}")
        a(f"s_add_u32 s{sOff}, s{sOff}, {STRIDE}")
    def controlled_loop(tag, compute, switch, mid):
        if ctl:
            a("s_waitcnt lgkmcnt(0)"); a(f"v_readfirstlane_b32 s{sBst}, v{vFL}")
            a(f"s_cmp_eq_u32 s{sIt}, {NIT-1}"); a(f"s_cselect_b32 s{sBst}, 0, s{sBst}")
            a(f"s_cmp_eq_u32 s{sBst}, 1"); a(f"s_cbranch_scc1 L_{tag}boost")
            a(f"s_cmp_eq_u32 s{sPrv}, 0"); a(f"s_cbranch_scc1 L_{tag}n0")
            a("s_waitcnt vmcnt(6)"); a(f"s_branch L_{tag}n1")
            a.label(f"L_{tag}n0")
        a("s_waitcnt vmcnt(3)"); steady_issue(2)
        if ctl: a.label(f"L_{tag}n1")
        compute(0)
        for g in range(1, 8):
            a("s_waitcnt vmcnt(3)")
            if g == 6: switch()
            steady_issue((g + 2) % 8)
            if g == 4: flag_read()
            compute(g)
        if ctl:
            a(f"s_mov_b32 s{sPrv}, 0"); a(f"s_branch L_{tag}next")
            a.label(f"L_{tag}boost")
            a(f"s_cmp_eq_u32 s{sPrv}, 0"); a(f"s_cbranch_scc0 L_{tag}b0")
            steady_issue(2)
            a.label(f"L_{tag}b0")
            for g in range(8):
                a("s_waitcnt vmcnt(6)")
                steady_issue((g + 3) % 8)
                if g == 4: flag_read()
                compute(g)
            a(f"s_mov_b32 s{sPrv}, 1")
            a.label(f"L_{tag}next")
    a.label("L_kloop")
    controlled_loop("k", lambda g: kcompute(RING + 12 * g, g), switch_to_V, None)
    kfinish(); progress()
    a(f"s_add_u32 s{sIt}, s{sIt}, 1")
    a(f"s_cmp_lt_u32 s{sIt}, {NIT}")
    a("s_cbranch_scc1 L_kloop")
    stamp(4)

    a(f"v_mov_b32 v{T[2]}, v{vMX}")
    allreduce("v_max_f32", vMX, T[0])
    a(f"v_sub_f32 v{T[2]}, v{T[2]}, v{vMX}"); a(f"v_mul_f32 v{T[2]}, {f32hex(LOG2E)}, v{T[2]}"); a(f"v_exp_f32 v{T[2]}, v{T[2]}")
    a(f"v_mul_f32 v{vLS}, v{vLS}, v{T[2]}")
    allreduce("v_add_f32", vLS, T[0])
    MLQ = vA
    a(f"v_mov_b32 v{MLQ}, v{vMX}"); a(f"v_mov_b32 v{MLQ+1}, v{vLS}"); a(f"v_mov_b32 v{MLQ+2}, 0"); a(f"v_mov_b32 v{MLQ+3}, 0")
    tag4(MLQ)
    a(f"s_lshl_b32 s{sT0}, s{sHead}, 11"); a(f"s_lshl_b32 s{sT1}, s{sWI}, 4"); a(f"s_add_u32 s{sT0}, s{sT0}, s{sT1}"); a(f"s_add_u32 s{sT0}, s{sT0}, {ML}")
    a(f"v_mov_b32 v{T[0]}, 0")
    set_exec(1)
    pub_store(vr(MLQ,4), T[0], sT0)
    set_exec(-1)
    stamp(5)
    for i in range(12): a(f"v_mov_b32 v{vACC+i}, 0")
    score_addr()
    a("s_waitcnt lgkmcnt(0)")
    a(f"ds_read_b32 v{vPN}, v{vSC} offset:{L_SC}")
    def vcompute(slot, g):
        a(f"v_mov_b32_dpp v{vBC}, v{vP} row_newbcast:{g} row_mask:0xf bank_mask:0x3")
        a(f"v_mov_b32_dpp v{vBC}, v{vP} row_newbcast:{8+g} row_mask:0xf bank_mask:0xc")
        a_operand(vBC)
        for t in range(3):
            a(f"v_mfma_f32_16x16x32_bf16 {vr(vACC+4*t,4)}, {vr(vA,4)}, {ring(slot,t)}, {vr(vACC+4*t,4)}")
    def next_p():
        a("s_waitcnt lgkmcnt(0)")
        a(f"v_sub_f32 v{vP}, v{vPN}, v{vMX}")
        a(f"v_add_u32 v{vSC}, 256, v{vSC}")
        a(f"ds_read_b32 v{vPN}, v{vSC} offset:{L_SC}")
        a(f"v_mul_f32 v{vP}, {f32hex(LOG2E)}, v{vP}")
        a(f"v_exp_f32 v{vP}, v{vP}")
        a(f"v_cvt_pk_bf16_f32 v{vP}, v{vP}, v{vP}")
    a(f"s_mov_b32 s{sIt}, 0")
    if nph > 1:
        a(f"s_cmp_lg_u32 s{sPh}, {nph-1}"); a("s_cbranch_scc1 L_vloop")
    a(f"s_cmp_eq_u32 s{sRole}, 1"); a("s_cbranch_scc1 L_wF")
    a(f"s_cmp_eq_u32 s{sRole}, 2"); a("s_cbranch_scc1 L_wR")
    a(f"s_mul_i32 s{sT0}, s{sOH}, 48"); a(f"s_mul_i32 s{sT1}, s{sW}, 12"); a(f"s_add_u32 s{sT0}, s{sT0}, s{sT1}")
    a(f"v_lshrrev_b32 v{T[0]}, 4, v{vL}"); a(f"v_add_u32 v{T[0]}, s{sT0}, v{T[0]}")
    a(f"v_mul_u32_u24 v{T[0]}, 1280, v{T[0]}")
    a(f"v_and_b32 v{T[1]}, 15, v{vL}"); a(f"v_lshlrev_b32 v{T[1]}, 4, v{T[1]}"); a(f"v_add_u32 v{T[0]}, v{T[0]}, v{T[1]}")
    a(f"v_mov_b32 v{T[1]}, s{pWO+1}")
    a(f"v_add_co_u32 v{WA}, vcc, s{pWO}, v{T[0]}"); a(f"v_addc_co_u32 v{WA+1}, vcc, 0, v{T[1]}, vcc")
    a(f"v_add_co_u32 v{WB}, vcc, 10240, v{WA}"); a(f"v_addc_co_u32 v{WB+1}, vcc, 0, v{WA+1}, vcc")
    a(f"s_mov_b32 s{sInc}, 256"); a(f"s_mov_b32 s{sInc4}, 4096")
    a("s_branch L_wdone")
    a.label("L_wF")
    a(f"v_lshrrev_b32 v{T[0]}, 2, v{vL}"); a(f"s_mul_i32 s{sT0}, s{sW}, 160"); a(f"v_add_u32 v{T[0]}, s{sT0}, v{T[0]}")
    a(f"v_mul_u32_u24 v{T[0]}, 3072, v{T[0]}")
    a(f"v_and_b32 v{T[1]}, 1, v{vL}"); a(f"v_lshlrev_b32 v{T[1]}, 4, v{T[1]}"); a(f"v_add_u32 v{T[0]}, v{T[0]}, v{T[1]}")
    a(f"s_lshl_b32 s{sT0}, s{sRI}, 5"); a(f"v_add_u32 v{T[0]}, s{sT0}, v{T[0]}")
    a(f"v_mov_b32 v{T[2]}, s{pWG}"); a(f"v_mov_b32 v{T[3]}, s{pWG+1}")
    a(f"v_mov_b32 v{T[4]}, s{pWU}"); a(f"v_mov_b32 v{T[5]}, s{pWU+1}")
    a(f"v_and_b32 v{T[1]}, 2, v{vL}"); a(f"v_cmp_ne_u32 vcc, 0, v{T[1]}")
    a(f"v_cndmask_b32 v{T[2]}, v{T[2]}, v{T[4]}, vcc"); a(f"v_cndmask_b32 v{T[3]}, v{T[3]}, v{T[5]}, vcc")
    a(f"v_add_co_u32 v{WA}, vcc, v{T[2]}, v{T[0]}"); a(f"v_addc_co_u32 v{WA+1}, vcc, 0, v{T[3]}, vcc")
    a(f"s_lshl_b32 s{sT0}, s{sRI}, 4"); a(f"s_lshl_b32 s{sT1}, s{sW}, 2"); a(f"s_add_u32 s{sT0}, s{sT0}, s{sT1}")
    a(f"v_lshrrev_b32 v{T[0]}, 4, v{vL}"); a(f"v_add_u32 v{T[0]}, s{sT0}, v{T[0]}")
    a(f"v_mul_u32_u24 v{T[0]}, 1280, v{T[0]}")
    a(f"v_and_b32 v{T[1]}, 15, v{vL}"); a(f"v_lshlrev_b32 v{T[1]}, 4, v{T[1]}"); a(f"v_add_u32 v{T[0]}, v{T[0]}, v{T[1]}")
    a(f"v_mov_b32 v{T[1]}, s{pWD+1}")
    a(f"v_add_co_u32 v{WB}, vcc, s{pWD}, v{T[0]}"); a(f"v_addc_co_u32 v{WB+1}, vcc, 0, v{T[1]}, vcc")
    a(f"s_mov_b32 s{sInc}, {16*3072}"); a(f"s_mov_b32 s{sInc4}, {16*3072}")
    a("s_branch L_wdone")
    a.label("L_wR")
    a(f"v_mov_b32 v{WA}, s{pWO}"); a(f"v_mov_b32 v{WA+1}, s{pWO+1}"); a(f"v_mov_b32 v{WB}, s{pWO}"); a(f"v_mov_b32 v{WB+1}, s{pWO+1}")
    a(f"s_mov_b32 s{sInc}, 0"); a(f"s_mov_b32 s{sInc4}, 0")
    a.label("L_wdone")
    def wload(k):
        if k < 10:
            a(f"global_load_dwordx4 {vr(W + 4*k, 4)}, {vr(WA,2)}, off {wpol}")
            if k < 9:
                a(f"v_add_co_u32 v{WA}, vcc, s{sInc4 if k == 4 else sInc}, v{WA}"); a(f"v_addc_co_u32 v{WA+1}, vcc, 0, v{WA+1}, vcc")
        else:
            a(f"global_load_dwordx4 {vr(W + 4*k, 4)}, {vr(WB,2)}, off offset:{256*(k-10)} {wpol}")
        vq.append(f"w{k}")
    vq[:] = ["v0"] * 3 + ["v1"] * 3 + ["ml"]
    for it in range(2):
        next_p()
        for g in range(8):
            n = 8 * it + g
            wait_for(f"v{n}")
            steady_issue((g + 2) % 8); vq.extend([f"v{n+2}"] * 3)
            if n < 15: wload(n)
            vcompute(g, g)
        progress()
    flag_read()
    a(f"s_mov_b32 s{sIt}, 2")
    a.label("L_vloop")
    MLR = vX
    def ml_issue():
        a(f"s_lshl_b32 s{sT0}, s{sHead}, 11"); a(f"s_add_u32 s{sT0}, s{sT0}, {ML}")
        a(f"v_min_u32 v{T[1]}, {NWH-1}, v{vL}"); a(f"v_lshlrev_b32 v{T[1]}, 4, v{T[1]}")
        a(f"buffer_load_dwordx4 {vr(MLR,4)}, v{T[1]}, {srd(WSR)}, s{sT0} offen sc1")
        if NWH > 64:
            a(f"buffer_load_dwordx4 {vr(MLR+4,4)}, v{T[1]}, {srd(WSR)}, s{sT0} offen offset:1024 sc1")
    def ml_check():
        check4(MLR, T[0], T[2], True)
        if NWH > 64: check4(MLR + 4, T[0], T[2], False)
    a(f"s_cmp_eq_u32 s{sIt}, {NIT-2}"); a("s_cbranch_scc0 L_vh1")
    ml_issue()
    if codepf:
        a(f"s_getpc_b64 {sp(58)}")
        a.label("L_pc2")
        a(f"s_lshr_b32 s{sT3}, s2, 3"); a(f"s_lshl_b32 s{sT3}, s{sT3}, 9")
        a(f"v_and_b32 v{T[1]}, 7, v{vL}"); a(f"v_lshlrev_b32 v{T[1]}, 6, v{T[1]}"); a(f"v_add_u32 v{T[1]}, s{sT3}, v{T[1]}")
        a(f"v_add_u32 v{T[1]}, L_tailcode-L_pc2, v{T[1]}")
        a(f"v_min_u32 v{T[1]}, L_codeend-L_pc2-4, v{T[1]}")
        a(f"global_load_dword v{T[2]}, v{T[1]}, {sp(58)}")
    a.label("L_vh1")
    a(f"s_cmp_eq_u32 s{sIt}, {NIT-1}"); a("s_cbranch_scc0 L_vh2")
    a.label("L_tailcode")
    ml_check()
    a(f"s_cmp_eq_u64 {sp(sBad)}, 0"); a("s_cbranch_scc1 L_mlok")
    poll(ml_issue, ml_check)
    a.label("L_mlok")
    mm, ll = MLR, MLR + 1
    if NWH > 64: a(f"v_max_f32 v{T[0]}, v{mm}, v{MLR+4}")
    else: a(f"v_mov_b32 v{T[0]}, v{mm}")
    a(f"v_and_b32 v{T[0]}, 0xffffff00, v{T[0]}")
    allreduce("v_max_f32", T[0], T[1])
    a(f"v_and_b32 v{mm}, 0xffffff00, v{mm}")
    a(f"v_sub_f32 v{T[2]}, v{mm}, v{T[0]}"); a(f"v_mul_f32 v{T[2]}, {f32hex(LOG2E)}, v{T[2]}"); a(f"v_exp_f32 v{T[2]}, v{T[2]}")
    a(f"v_mul_f32 v{T[2]}, v{T[2]}, v{ll}")
    if NWH > 64:
        a(f"v_and_b32 v{MLR+4}, 0xffffff00, v{MLR+4}")
        a(f"v_sub_f32 v{T[3]}, v{MLR+4}, v{T[0]}"); a(f"v_mul_f32 v{T[3]}, {f32hex(LOG2E)}, v{T[3]}"); a(f"v_exp_f32 v{T[3]}, v{T[3]}")
        a(f"v_fmac_f32 v{T[2]}, v{T[3]}, v{MLR+5}")
    elif NWH < 64:
        a(f"v_cmp_gt_u32 vcc, {NWH}, v{vL}"); a(f"v_cndmask_b32 v{T[2]}, 0, v{T[2]}, vcc")
    allreduce("v_add_f32", T[2], T[1])
    a(f"v_sub_f32 v{T[3]}, v{vMX}, v{T[0]}"); a(f"v_mul_f32 v{T[3]}, {f32hex(LOG2E)}, v{T[3]}"); a(f"v_exp_f32 v{T[3]}, v{T[3]}")
    a(f"v_rcp_f32 v{T[2]}, v{T[2]}")
    a(f"v_mul_f32 v{vAL}, v{T[3]}, v{T[2]}")
    red_addr()
    a(f"v_mul_u32_u24 v{T[1]}, 43691, v{vL}"); a(f"v_lshrrev_b32 v{T[1]}, 19, v{T[1]}")
    a(f"v_mul_u32_u24 v{T[2]}, 12, v{T[1]}"); a(f"v_sub_u32 v{T[2]}, v{vL}, v{T[2]}")
    a(f"v_mul_u32_u24 v{T[1]}, {WPH*192}, v{T[1]}"); a(f"v_lshlrev_b32 v{T[2]}, 4, v{T[2]}"); a(f"v_add_u32 v{vOPA}, v{T[1]}, v{T[2]}")
    a(f"s_mul_i32 s{sT0}, s{sHead}, {4*WPH*192}"); a(f"s_mul_i32 s{sT1}, s{sJ}, 192"); a(f"s_add_u32 s{sT0}, s{sT0}, s{sT1}"); a(f"s_add_u32 s{sU2}, s{sT0}, {OP}")
    P = vQ
    if nph > 1:
        a(f"s_cmp_lg_u32 s{sPh}, {nph-1}"); a("s_cbranch_scc1 L_vh2")
    a(f"v_lshrrev_b32 v{T[0]}, 5, v{vL}"); a(f"v_lshlrev_b32 v{T[0]}, 8, v{T[0]}")
    a(f"v_and_b32 v{T[1]}, 7, v{vL}"); a(f"v_lshlrev_b32 v{T[1]}, 5, v{T[1]}"); a(f"v_add_u32 v{T[0]}, v{T[0]}, v{T[1]}")
    a(f"v_and_b32 v{T[1]}, 16, v{vL}"); a(f"v_add_u32 v{T[0]}, v{T[0]}, v{T[1]}")
    a(f"s_mul_i32 s{sT0}, s{sW}, 2560"); a(f"v_add_u32 v{P}, s{sT0}, v{T[0]}")
    a(f"s_mov_b32 s{sT0}, {128*128}"); a(f"s_cmp_eq_u32 s{sRole}, 1"); a(f"s_cselect_b32 s{sT0}, {96*128}, s{sT0}")
    a(f"v_lshrrev_b32 v{T[1]}, 3, v0"); a(f"v_mul_u32_u24 v{T[1]}, s{sT0}, v{T[1]}")
    a(f"v_and_b32 v{T[2]}, 7, v0"); a(f"v_lshlrev_b32 v{T[2]}, 4, v{T[2]}"); a(f"v_add_u32 v{P+1}, v{T[1]}, v{T[2]}")
    for i in range(20): a(f"v_mov_b32 v{vX+i}, 0")
    a.label("L_vh2")
    next_p()
    controlled_loop("v", lambda g: vcompute(g, g), switch_to_nextK, None)
    progress()
    a(f"s_add_u32 s{sIt}, s{sIt}, 1")
    a(f"s_cmp_lt_u32 s{sIt}, {NIT}")
    a("s_cbranch_scc1 L_vloop")

    stamp(6)
    for i in range(12): a(f"v_mul_f32 v{vACC+i}, v{vACC+i}, v{vAL}")
    if nph > 1:
        a(f"s_cmp_eq_u32 s{sPh}, {nph-1}"); a("s_cbranch_scc1 L_lastphase")
        def lds_wait_ge(off, sreg):
            n = newlab()
            a(f"s_mov_b32 s{sSpin}, {spin}")
            a.label(f"L_lw{n}")
            a(f"ds_read_b32 v{T[1]}, v{vZ} offset:{L_CTL + off}"); a("s_waitcnt lgkmcnt(0)"); a(f"v_readfirstlane_b32 s{sT0}, v{T[1]}")
            a(f"s_cmp_ge_u32 s{sT0}, s{sreg}"); a(f"s_cbranch_scc1 L_lk{n}")
            a(f"s_sub_u32 s{sSpin}, s{sSpin}, 1"); a(f"s_cmp_eq_u32 s{sSpin}, 0"); a("s_cbranch_scc1 L_abort")
            a(f"s_branch L_lw{n}")
            a.label(f"L_lk{n}")
        lds_wait_ge(12, sPh)
        set_exec(USEFUL)
        for t in range(3): a(f"ds_write_b128 v{vRA}, {vr(vACC+4*t,4)} offset:{L_REDH + 256*t}")
        set_exec(-1)
        a(f"s_add_u32 s{sPh}, s{sPh}, 1"); a(f"s_add_u32 s{sHead}, s{sHead}, {H}")
        a(f"s_lshl_b32 s{sT1}, s{sW}, 2"); a(f"v_mov_b32 v{T[2]}, s{sT1}"); a(f"v_mov_b32 v{T[3]}, s{sPh}")
        a("s_waitcnt lgkmcnt(0)")
        a(f"ds_write_b32 v{T[2]}, v{T[3]} offset:{L_CTL + 16}")
        a(f"s_add_u32 s{sT2}, s{sPh}, 1")
        lds_wait_ge(32, sT2)
        load_q(); kinit()
        a(f"s_mov_b32 s{sIt}, 0")
        a("s_branch L_kloop")
        a.label("L_lastphase")
    red_write()
    a("s_waitcnt lgkmcnt(0)"); a("s_barrier")
    a(f"s_cmp_lg_u32 s{sW}, 0"); a("s_cbranch_scc1 L_pubdone")
    SB = RING + 24
    a(f"v_lshlrev_b32 v{T[0]}, 4, v{vL}")
    set_exec("0x0000ffffffffffff")
    for s in range(8): a(f"ds_read_b128 {vr(SB+4*s,4)}, v{T[0]} offset:{L_RED + 768*s}")
    a("s_waitcnt lgkmcnt(4)")
    sum_quads(SB, [SB + 4, SB + 8, SB + 12])
    a("s_waitcnt lgkmcnt(0)")
    sum_quads(SB + 16, [SB + 20, SB + 24, SB + 28])
    sum_quads(SB, [SB + 16])
    tag4(SB)
    pub_store(vr(SB,4), vOPA, sU2)
    if stage1:
        a(f"s_and_b32 s{sT0}, s{sNon}, 0xffffff00"); a(f"s_or_b32 s{sT0}, s{sT0}, 255"); a(f"v_mov_b32 v{T[1]}, s{sT0}")
        a(f"s_and_b32 s{sT0}, s2, 7"); a(f"s_lshl_b32 s{sT0}, s{sT0}, 7"); a(f"s_lshr_b32 s{sT1}, s2, 3"); a(f"s_lshl_b32 s{sT1}, s{sT1}, 2")
        a(f"s_add_u32 s{sT0}, s{sT0}, s{sT1}"); a(f"s_add_u32 s{sT0}, s{sT0}, {PROG}")
        set_exec(1)
        a(f"buffer_store_dword v{T[1]}, v{vZ}, {srd(WSR)}, s{sT0} offen")
    set_exec(-1)
    a.label("L_pubdone")
    def class_wait():
        if not stage1: return
        n = newlab()
        a(f"s_and_b32 s{sT0}, s{sNon}, 0xffffff00"); a(f"s_or_b32 s{sT0}, s{sT0}, 255"); a(f"v_mov_b32 v{T[1]}, s{sT0}")
        a(f"s_and_b32 s{sT0}, s2, 7"); a(f"s_lshl_b32 s{sT0}, s{sT0}, 7"); a(f"s_add_u32 s{sT0}, s{sT0}, {PROG}")
        a(f"v_and_b32 v{T[0]}, 31, v{vL}"); a(f"v_lshlrev_b32 v{T[0]}, 2, v{T[0]}")
        a(f"s_mov_b32 s{sSpin}, {stage1}")
        a.label(f"L_cw{n}")
        a(f"buffer_load_dword v{T[2]}, v{T[0]}, {srd(WSR)}, s{sT0} offen sc1")
        a(f"s_sub_u32 s{sSpin}, s{sSpin}, 1"); a(f"s_cmp_eq_u32 s{sSpin}, 0"); a(f"s_cbranch_scc1 L_cwd{n}")
        a("s_waitcnt vmcnt(0)")
        a(f"v_cmp_ne_u32 vcc, v{T[2]}, v{T[1]}"); a("s_cbranch_vccnz L_cw%d" % n)
        a.label(f"L_cwd{n}")
        a("s_waitcnt vmcnt(0)")
    a.label("L_tail")
    stamp(7)
    RB = RING + 60
    a(f"s_cmp_eq_u32 s{sRole}, 1"); a("s_cbranch_scc1 L_roleF")
    a(f"s_cmp_eq_u32 s{sRole}, 2"); a("s_cbranch_scc1 L_roleR")

    def rowproj(ngroups, wbase, srcs, dstbase):
        for gi in range(ngroups):
            a_operand(srcs[gi])
            for cb in range(5):
                a(f"v_mfma_f32_16x16x32_bf16 {vr(vX+4*cb,4)}, {vr(vA,4)}, {vr(wbase + 4*(5*gi+cb),4)}, {vr(vX+4*cb,4)}")
        set_exec(USEFUL)
        for cb in range(5): a(f"ds_write_b128 v{P}, {vr(vX+4*cb,4)} offset:{L_RED2 + 512*cb}")
        set_exec(-1)
        a(f"v_lshlrev_b32 v{T[0]}, 4, v0")
        a(f"s_lshl_b32 s{sT0}, s{sRI}, 7"); a(f"s_add_u32 s{sT0}, s{sT0}, {dstbase}")
        a("s_waitcnt lgkmcnt(0)"); a("s_barrier")
        n = newlab()
        a(f"v_cmp_gt_u32 vcc, 160, v0"); a(f"s_and_saveexec_b64 {sp(sE)}, vcc"); a(f"s_cbranch_execz L_rpd{n}")
        for s in range(4): a(f"ds_read_b128 {vr(vX+4*s,4)}, v{T[0]} offset:{L_RED2 + 2560*s}")
        a("s_waitcnt lgkmcnt(0)")
        sum_quads(vX, [vX + 4]); sum_quads(vX + 8, [vX + 12]); sum_quads(vX, [vX + 8])
        tag4(vX)
        a(f"buffer_store_dwordx4 {vr(vX,4)}, v{P+1}, {srd(WSR)}, s{sT0} offen sc1")
        a.label(f"L_rpd{n}")
        a(f"s_mov_b64 exec, {sp(sE)}")

    NL = 2 if WPH == 32 else 1
    a(f"s_mul_i32 s{sT0}, s{sOH}, {WPH*192}"); a(f"s_add_u32 s{sU}, s{sT0}, {OP}")
    a(f"s_mul_i32 s{sT1}, s{sW}, 48"); a(f"s_add_u32 s{sU}, s{sU}, s{sT1}")
    a(f"v_lshrrev_b32 v{T[3]}, 2, v{vL}"); a(f"v_and_b32 v{T[3]}, {min(WPH,16)-1}, v{T[3]}"); a(f"v_mul_u32_u24 v{T[3]}, 192, v{T[3]}")
    a(f"v_and_b32 v{T[4]}, 3, v{vL}"); a(f"v_min_u32 v{T[4]}, 2, v{T[4]}"); a(f"v_lshlrev_b32 v{T[4]}, 4, v{T[4]}"); a(f"v_add_u32 v{T[3]}, v{T[3]}, v{T[4]}")
    def o_iss():
        for k in range(NL):
            a(f"buffer_load_dwordx4 {vr(RB+4*k,4)}, v{T[3]}, {srd(WSR)}, s{sU} offen offset:{3072*k} sc1")
    def o_chk():
        for k in range(NL): check4(RB + 4*k, T[0], T[1], k == 0)
    poll(o_iss, o_chk)
    stamp(8)
    if NL == 2: sum_quads(RB, [RB + 4])
    for m in ("row_ror:4", "row_ror:8"):
        for i in range(4): dpp("v_add_f32", RB + i, m)
    o4 = [("v_add_f32", RB + i) for i in range(4)]
    swap_reduce(o4, T[0:4], "v_permlane16_swap_b32")
    if WPH >= 16: swap_reduce(o4, T[0:4], "v_permlane32_swap_b32")
    for g in range(1, 4): a(f"v_cndmask_b32 v{RB}, v{RB}, v{RB+g}, {sp(sRow+2*(g-1))}")
    a(f"v_cvt_pk_bf16_f32 v{RB}, v{RB}, v{RB}")
    for gi in range(3): a(f"v_mov_b32_dpp v{RB+8+gi}, v{RB} quad_perm:[{gi},{gi},{gi},{gi}] row_mask:0xf bank_mask:0xf")
    rowproj(3, W, [RB+8, RB+9, RB+10], ZZ)
    dump_stamps()
    a("s_branch L_end")

    a.label("L_roleF")
    HQ = RB
    PK = RB + 16
    class_wait()
    a(f"v_min_u32 v{T[5]}, 39, v{vL}"); a(f"s_mul_i32 s{sT0}, s{sW}, 40"); a(f"v_add_u32 v{T[5]}, s{sT0}, v{T[5]}"); a(f"v_lshlrev_b32 v{T[5]}, 4, v{T[5]}")
    a(f"s_and_b32 s{sU}, s2, 7"); a(f"s_lshl_b32 s{sU}, s{sU}, 12"); a(f"s_add_u32 s{sU}, s{sU}, {HH}")
    def f_iss():
        a(f"buffer_load_dwordx4 {vr(HQ,4)}, v{T[5]}, {srd(WSR)}, s{sU} offen sc1")
    def f_chk():
        check4(HQ, T[0], T[1], True)
    FA = RING + 24
    FW = RB + 22
    DA = vACC
    def f_pre():
        a(f"s_lshl_b32 s{sT0}, s{sW}, 12"); a(f"s_add_u32 s{sT0}, s{sT0}, {L_SC}")
        a(f"v_lshlrev_b32 v{FW}, 6, v{vL}"); a(f"v_add_u32 v{FW}, s{sT0}, v{FW}")
        a(f"v_mov_b32 v{T[0]}, 0"); a(f"v_mov_b32 v{T[1]}, s{sT0}")
        a(f"ds_write_b32 v{T[1]}, v{T[0]} offset:2560")
        a(f"v_lshrrev_b32 v{FW+1}, 2, v{vL}"); a(f"v_lshlrev_b32 v{FW+1}, 4, v{FW+1}")
        a(f"v_and_b32 v{T[0]}, 3, v{vL}")
        a(f"v_mov_b32 v{T[1]}, 0x08000c04"); a(f"v_lshlrev_b32 v{T[0]}, 3, v{T[0]}"); a(f"v_lshrrev_b32 v{T[1]}, v{T[0]}, v{T[1]}"); a(f"v_and_b32 v{T[1]}, 0xff, v{T[1]}")
        a(f"v_add3_u32 v{FW+1}, v{FW+1}, v{T[1]}, s{sT0}")
        a(f"v_add_u32 v{FW+2}, 1024, v{FW+1}"); a(f"v_add_u32 v{FW+3}, 2048, v{FW+1}")
        a(f"v_lshrrev_b32 v{T[0]}, 4, v{vL}"); a(f"s_lshl_b32 s{sT0}, s{sW}, 2"); a(f"v_add_u32 v{T[0]}, s{sT0}, v{T[0]}"); a(f"v_lshlrev_b32 v{T[0]}, 7, v{T[0]}")
        a(f"v_and_b32 v{T[1]}, 3, v{vL}"); a(f"v_lshlrev_b32 v{T[1]}, 5, v{T[1]}"); a(f"v_add_u32 v{FW+4}, v{T[0]}, v{T[1]}")
        a(f"v_and_b32 v{T[0]}, 31, v{vL}"); a(f"v_lshlrev_b32 v{T[0]}, 2, v{T[0]}")
        a(f"v_lshrrev_b32 v{T[1]}, 5, v{vL}"); a(f"v_lshlrev_b32 v{T[1]}, 10, v{T[1]}"); a(f"v_add_u32 v{FW+5}, v{T[0]}, v{T[1]}")
        a(f"v_lshrrev_b32 v{T[0]}, 4, v{vL}"); a(f"s_lshl_b32 s{sT0}, s{sW}, 2"); a(f"v_add_u32 v{T[0]}, s{sT0}, v{T[0]}"); a(f"v_lshlrev_b32 v{FW+6}, 2, v{T[0]}")
        for i in range(8): a(f"v_mov_b32 v{DA+i}, 0")
        a(f"v_mov_b32 v{FW+7}, 0x3f803f80")
        a(f"v_cmp_gt_u32 {sp(sE)}, 40, v{vL}")
        a(f"s_lshl_b32 s{sT0}, s{sW}, 3"); a(f"v_mov_b32 v{PK+2}, s{sT0}")
    poll(f_iss, f_chk, pre=f_pre)
    stamp(10)
    a(f"v_perm_b32 v{PK}, v{HQ+1}, v{HQ}, s{sPkSel}"); a(f"v_perm_b32 v{PK+1}, v{HQ+3}, v{HQ+2}, s{sPkSel}")
    a(f"v_cndmask_b32 v{PK}, 0, v{PK}, {sp(sE)}"); a(f"v_cndmask_b32 v{PK+1}, 0, v{PK+1}, {sp(sE)}")
    t0, t1, t2, t3, t4 = T[0:5]
    a(f"v_dot2_f32_bf16 v{t0}, v{PK}, v{FW+7}, 0"); a(f"v_dot2_f32_bf16 v{t1}, v{PK}, v{PK}, 0")
    a(f"v_dot2_f32_bf16 v{t0}, v{PK+1}, v{FW+7}, v{t0}"); a(f"v_dot2_f32_bf16 v{t1}, v{PK+1}, v{PK+1}, v{t1}")
    for i in range(4): a(f"v_and_b32 v{HQ+12+i}, 0xffff0000, v{HQ+i}")
    assert t1 == t0 + 1 and t0 % 2 == 1
    allreduce_n([("v_add_f32", t0), ("v_add_f32", t1)], [t2, t3])
    a(f"v_mov_b32 v{HQ+4}, v{t0}"); a(f"v_mov_b32 v{HQ+5}, v{t1}")
    set_exec(1)
    a(f"ds_write_b64 v{PK+2}, {vr(HQ+4,2)} offset:{L_STAT}")
    set_exec(-1)
    a("s_waitcnt lgkmcnt(0)"); a("s_barrier")
    a(f"ds_read_b128 {vr(HQ+4,4)}, v{vZ} offset:{L_STAT}"); a(f"ds_read_b128 {vr(HQ+8,4)}, v{vZ} offset:{L_STAT+16}")
    a("s_waitcnt lgkmcnt(0)")
    pkadd(HQ + 4, HQ + 4, HQ + 6); pkadd(HQ + 8, HQ + 8, HQ + 10); pkadd(HQ + 4, HQ + 4, HQ + 8)
    a(f"v_mov_b32 v{t0}, v{HQ+4}"); a(f"v_mov_b32 v{t1}, v{HQ+5}")
    ln_consts(t0, t1, t2)
    a(f"v_rcp_f32 v{t4}, v{t1}")
    O4 = HQ + 12
    for i in range(4): a(f"v_sub_f32 v{O4+i}, v{O4+i}, v{t0}")
    a(f"v_cvt_pk_bf16_f32 v{t2}, v{O4}, v{O4+1}"); a(f"v_cvt_pk_bf16_f32 v{t3}, v{O4+2}, v{O4+3}")
    a(f"v_lshlrev_b32 v{O4}, 16, v{t2}"); a(f"v_and_b32 v{O4+1}, 0xffff0000, v{t2}"); a(f"v_lshlrev_b32 v{O4+2}, 16, v{t3}"); a(f"v_and_b32 v{O4+3}, 0xffff0000, v{t3}")
    for i in range(4): a(f"v_mul_f32 v{O4+i}, v{O4+i}, v{t4}")
    a(f"v_cvt_pk_bf16_f32 v{t2}, v{O4}, v{O4+1}"); a(f"v_cvt_pk_bf16_f32 v{t3}, v{O4+2}, v{O4+3}")
    PR = FA
    for r_, (src, hi) in enumerate(((t2, 0), (t2, 1), (t3, 0), (t3, 1))):
        b = PR + 4 * r_
        a(f"v_mov_b32 v{b}, 0"); a(f"v_mov_b32 v{b+2}, 0")
        if hi:
            a(f"v_lshrrev_b32 v{b+1}, 16, v{src}"); a(f"v_and_b32 v{b+3}, 0xffff0000, v{src}")
        else:
            a(f"v_and_b32 v{b+1}, 0xffff, v{src}"); a(f"v_lshlrev_b32 v{b+3}, 16, v{src}")
    set_exec("0x000000ffffffffff")
    for r_ in range(4): a(f"ds_write_b128 v{FW}, {vr(PR+4*r_,4)} offset:{16*r_}")
    set_exec(-1)
    a("s_waitcnt lgkmcnt(0)")
    for k in range(10):
        base = FW + 1 + k // 4
        a(f"ds_read2_b32 {vr(FA+2*k,2)}, v{base} offset0:{(k%4)*64} offset1:{(k%4)*64+1}")
    DB = DA + 4
    for k in range(10):
        a(f"s_waitcnt lgkmcnt({9-k})")
        a(f"v_mfma_f32_4x4x4_16b_bf16 {vr(DA,4)}, {vr(FA+2*k,2)}, {vr(W+4*k,2)}, {vr(DA,4)}")
        a(f"v_mfma_f32_4x4x4_16b_bf16 {vr(DB,4)}, {vr(FA+2*k,2)}, {vr(W+4*k+2,2)}, {vr(DB,4)}")
    for m in ("row_ror:4", "row_ror:8"):
        for i in range(8): dpp("v_add_f32", DA + i, m)
    set_exec("0x000f000f000f000f")
    a(f"ds_write_b128 v{FW+4}, {vr(DA,4)} offset:{L_RED3}")
    a(f"ds_write_b128 v{FW+4}, {vr(DB,4)} offset:{L_RED3+16}")
    set_exec(-1)
    a("s_waitcnt lgkmcnt(0)"); a("s_barrier")
    HR = FA
    for s in range(8): a(f"ds_read_b32 v{HR+s}, v{FW+5} offset:{L_RED3 + 128*s}")
    a("s_waitcnt lgkmcnt(0)")
    for s in range(0, 8, 4): pkadd(HR + s, HR + s, HR + s + 2)
    pkadd(HR, HR, HR + 4)
    a(f"v_add_f32 v{HR}, v{HR}, v{HR+1}")
    a(f"v_mov_b32 v{T[0]}, v{HR}"); a(f"v_permlane32_swap_b32 v{T[0]}, v{HR}"); a(f"v_add_f32 v{HR}, v{HR}, v{T[0]}")
    rne(HR, HR)
    a(f"v_mov_b32 v{T[0]}, v{HR}"); a(f"v_permlane16_swap_b32 v{T[0]}, v{HR}")
    a(f"v_mul_f32 v{T[1]}, {f32hex(-LOG2E)}, v{T[0]}"); a(f"v_min_f32 v{T[1]}, 0x42fc0000, v{T[1]}"); a(f"v_exp_f32 v{T[1]}, v{T[1]}")
    a(f"v_add_f32 v{T[1]}, 1.0, v{T[1]}"); a(f"v_rcp_f32 v{T[2]}, v{T[1]}")
    a(f"v_mul_f32 v{T[3]}, v{T[0]}, v{T[2]}")
    rne(T[3], T[3])
    a(f"v_mul_f32 v{T[3]}, v{T[3]}, v{HR}")
    a(f"v_cvt_pk_bf16_f32 v{T[3]}, v{T[3]}, v{T[3]}")
    a(f"ds_bpermute_b32 v{HR+1}, v{FW+6}, v{T[3]}")
    a("s_waitcnt lgkmcnt(0)")
    stamp(11)
    rowproj(1, W + 40, [HR+1], YY)
    dump_stamps()
    a("s_branch L_end")

    a.label("L_roleR")
    a(f"s_cmp_ge_u32 s{sRI}, 20"); a("s_cbranch_scc1 L_fin")
    RS = RING + 24
    RS = RING + 40
    XS = RB
    WRr = RB + 8
    HV = RB + 16
    HPK = RB + 28
    HS = vQ + 4
    SIG = vQ + 8
    def reduce_parts(base, nsrc, nld, lds, pre=None):
        a(f"s_mul_i32 s{sU}, s{sRI}, {nsrc*128}"); a(f"s_add_u32 s{sU}, s{sU}, {base}")
        a(f"v_lshlrev_b32 v{T[3]}, 4, v0")
        def iss():
            for k in range(nld):
                a(f"s_add_u32 s{sT1}, s{sU}, {4096*k}")
                a(f"buffer_load_dwordx4 {vr(RS+4*k,4)}, v{T[3]}, {srd(WSR)}, s{sT1} offen sc1")
        def chk():
            for k in range(nld): check4(RS + 4*k, T[0], T[1], k == 0)
        def pre2():
            if pre: pre()
            a(f"v_and_b32 v{T[4]}, 7, v{vL}"); a(f"v_lshlrev_b32 v{T[4]}, 4, v{T[4]}")
            a(f"s_lshl_b32 s{sT0}, s{sW}, 7"); a(f"v_add_u32 v{T[5]}, s{sT0}, v{T[4]}")
        poll(iss, chk, pre=pre2)
        if nld == 4:
            sum_quads(RS, [RS + 4]); sum_quads(RS + 8, [RS + 12]); sum_quads(RS, [RS + 8])
        else:
            sum_quads(RS, [RS + 4, RS + 8])
        for i in range(4): dpp("v_add_f32", RS + i, "row_ror:8")
        o4 = [("v_add_f32", RS + i) for i in range(4)]
        swap_reduce(o4, [RS + 4 + i for i in range(4)], "v_permlane16_swap_b32")
        swap_reduce(o4, [RS + 4 + i for i in range(4)], "v_permlane32_swap_b32")
        set_exec("0x00000000000000ff")
        a(f"ds_write_b128 v{T[5]}, {vr(RS,4)} offset:{lds}")
        set_exec(-1)
        a("s_waitcnt lgkmcnt(0)"); a("s_barrier")
        for s in range(4): a(f"ds_read_b128 {vr(RS+4*s,4)}, v{T[4]} offset:{lds + 128*s}")
        a("s_waitcnt lgkmcnt(0)")
        sum_quads(RS, [RS + 4]); sum_quads(RS + 8, [RS + 12]); sum_quads(RS, [RS + 8])
    def r_pre1():
        a(f"v_and_b32 v{T[0]}, 7, v{vL}"); a(f"v_lshlrev_b32 v{T[0]}, 3, v{T[0]}"); a(f"s_lshl_b32 s{sT0}, s{sRI}, 6"); a(f"v_add_u32 v{T[0]}, s{sT0}, v{T[0]}")
        a(f"global_load_dwordx2 {vr(XS+4,2)}, v{T[0]}, {sp(pX)}")
        a(f"v_lshlrev_b32 v{T[1]}, 3, v{vL}"); a(f"v_add_u32 v{T[2]}, 1024, v{T[1]}"); a(f"v_min_u32 v{T[2]}, 1272, v{T[2]}")
        a(f"global_load_dwordx2 {vr(WRr,2)}, v{T[1]}, {sp(pWR)}")
        a(f"global_load_dwordx2 {vr(WRr+2,2)}, v{T[1]}, {sp(pWR)} offset:512")
        a(f"global_load_dwordx2 {vr(WRr+4,2)}, v{T[2]}, {sp(pWR)}")
        a(f"v_lshrrev_b32 v{SIG+2}, 3, v{vL}"); a(f"v_lshlrev_b32 v{SIG+2}, 12, v{SIG+2}")
        a(f"v_and_b32 v{SIG+3}, 7, v{vL}"); a(f"v_lshlrev_b32 v{SIG+3}, 4, v{SIG+3}"); a(f"v_add_u32 v{SIG+2}, v{SIG+2}, v{SIG+3}")
        a(f"s_lshl_b32 s{sU2}, s{sRI}, 7"); a(f"s_add_u32 s{sU2}, s{sU2}, {HH}")
        a(f"global_load_dword v{SIG}, v{T[0]}, {sp(pOUT)}")
    class_wait()
    reduce_parts(ZZ, 128, 4, L_RED3, pre=r_pre1)
    stamp(9)
    for h in range(2):
        a(f"v_lshlrev_b32 v{XS+2*h}, 16, v{XS+4+h}"); a(f"v_and_b32 v{XS+2*h+1}, 0xffff0000, v{XS+4+h}")
    a(f"v_cvt_pk_bf16_f32 v{RS}, v{RS}, v{RS+1}"); a(f"v_cvt_pk_bf16_f32 v{RS+2}, v{RS+2}, v{RS+3}")
    a(f"v_and_b32 v{RS+1}, 0xffff0000, v{RS}"); a(f"v_lshlrev_b32 v{RS}, 16, v{RS}"); a(f"v_and_b32 v{RS+3}, 0xffff0000, v{RS+2}"); a(f"v_lshlrev_b32 v{RS+2}, 16, v{RS+2}")
    pkadd(XS, XS, RS); pkadd(XS + 2, XS + 2, RS + 2)
    a(f"v_cvt_pk_bf16_f32 v{RS}, v{XS}, v{XS+1}"); a(f"v_cvt_pk_bf16_f32 v{RS+2}, v{XS+2}, v{XS+3}")
    a(f"v_and_b32 v{XS+1}, 0xffff0000, v{RS}"); a(f"v_lshlrev_b32 v{XS}, 16, v{RS}"); a(f"v_and_b32 v{XS+3}, 0xffff0000, v{RS+2}"); a(f"v_lshlrev_b32 v{XS+2}, 16, v{RS+2}")
    for i in range(4): a(f"v_perm_b32 v{RS+i}, v{XS+i}, v{vN}, s{sSel+i}")
    a(f"s_cmp_lg_u32 s{sW}, 0"); a("s_cbranch_scc1 L_rnopub")
    a(f"buffer_store_dwordx4 {vr(RS,4)}, v{SIG+2}, {srd(WSR)}, s{sU2} offen sc1")
    a.label("L_rnopub")
    a(f"v_lshlrev_b32 v{T[3]}, 4, v{vL}")
    a(f"v_add_u32 v{T[4]}, 2048, v{T[3]}"); a(f"v_min_u32 v{T[4]}, 2544, v{T[4]}")
    a(f"s_and_b32 s{sU}, s2, 7"); a(f"s_lshl_b32 s{sU}, s{sU}, 12"); a(f"s_add_u32 s{sU}, s{sU}, {HH}")
    def r_iss():
        a(f"buffer_load_dwordx4 {vr(HV,4)}, v{T[3]}, {srd(WSR)}, s{sU} offen sc1")
        a(f"buffer_load_dwordx4 {vr(HV+4,4)}, v{T[3]}, {srd(WSR)}, s{sU} offen offset:1024 sc1")
        a(f"buffer_load_dwordx4 {vr(HV+8,4)}, v{T[4]}, {srd(WSR)}, s{sU} offen sc1")
    def r_chk():
        for k in range(3): check4(HV + 4*k, T[0], T[1], k == 0)
    poll(r_iss, r_chk)
    stamp(10)
    for i in range(12): a(f"v_and_b32 v{HV+i}, 0xffff0000, v{HV+i}")
    a(f"v_cmp_gt_u32 vcc, 32, v{vL}")
    for i in range(8, 12): a(f"v_cndmask_b32 v{HV+i}, 0, v{HV+i}, vcc")
    for k in range(6): a(f"v_perm_b32 v{HPK+k}, v{HV+2*k+1}, v{HV+2*k}, s{sPkSel}")
    layernorm_full(HV, HPK, T[0:5], False)
    a(f"v_cmp_gt_u32 vcc, 32, v{vL}")
    a(f"v_cndmask_b32 v{WRr+4}, 0, v{WRr+4}, vcc"); a(f"v_cndmask_b32 v{WRr+5}, 0, v{WRr+5}, vcc")
    a(f"v_dot2_f32_bf16 v{T[0]}, v{HPK}, v{WRr}, 0")
    for k in range(1, 6): a(f"v_dot2_f32_bf16 v{T[0]}, v{HPK+k}, v{WRr+k}, v{T[0]}")
    allreduce("v_add_f32", T[0], T[1])
    rne(T[0], T[0])
    a(f"v_mul_f32 v{T[1]}, {f32hex(-LOG2E)}, v{T[0]}"); a(f"v_min_f32 v{T[1]}, 0x42fc0000, v{T[1]}"); a(f"v_exp_f32 v{T[1]}, v{T[1]}")
    a(f"v_add_f32 v{T[1]}, 1.0, v{T[1]}"); a(f"v_rcp_f32 v{T[2]}, v{T[1]}")
    rne(SIG, T[2])
    a(f"s_lshl_b32 s{sT0}, s{sRI}, 3"); a(f"s_lshr_b32 s{sT1}, s{sT0}, 6"); a(f"s_and_b32 s{sT0}, s{sT0}, 63")
    a(f"v_and_b32 v{T[0]}, 7, v{vL}"); a(f"v_add_u32 v{T[0]}, s{sT0}, v{T[0]}"); a(f"v_lshlrev_b32 v{T[0]}, 2, v{T[0]}")
    for i in range(4): a(f"v_mov_b32 v{HS+i}, v{HV+i}")
    a(f"s_cmp_eq_u32 s{sT1}, 0"); a("s_cbranch_scc1 L_hs")
    for i in range(4): a(f"v_mov_b32 v{HS+i}, v{HV+4+i}")
    a(f"s_cmp_eq_u32 s{sT1}, 1"); a("s_cbranch_scc1 L_hs")
    for i in range(4): a(f"v_mov_b32 v{HS+i}, v{HV+8+i}")
    a.label("L_hs")
    for i in range(4): a(f"ds_bpermute_b32 v{HS+i}, v{T[0]}, v{HS+i}")
    a("s_waitcnt lgkmcnt(0)")
    stamp(11)
    def r_pre2():
        a(f"v_lshlrev_b32 v{SIG+1}, 3, v{vL}"); a(f"s_lshl_b32 s{sT0}, s{sRI}, 6"); a(f"v_add_u32 v{SIG+1}, s{sT0}, v{SIG+1}")
    reduce_parts(YY, 96, 3, L_RED2, pre=r_pre2)
    stamp(12)
    def rne4(b):
        a(f"v_cvt_pk_bf16_f32 v{b}, v{b}, v{b+1}"); a(f"v_cvt_pk_bf16_f32 v{b+2}, v{b+2}, v{b+3}")
        a(f"v_and_b32 v{b+1}, 0xffff0000, v{b}"); a(f"v_lshlrev_b32 v{b}, 16, v{b}"); a(f"v_and_b32 v{b+3}, 0xffff0000, v{b+2}"); a(f"v_lshlrev_b32 v{b+2}, 16, v{b+2}")
    rne4(RS)
    for i in range(4): a(f"v_mul_f32 v{RS+i}, v{RS+i}, v{SIG}")
    rne4(RS)
    pkadd(RS, RS, HS); pkadd(RS + 2, RS + 2, HS + 2)
    rne4(RS)
    pkadd(RS, RS, XS); pkadd(RS + 2, RS + 2, XS + 2)
    a(f"v_cvt_pk_bf16_f32 v{RS}, v{RS}, v{RS+1}"); a(f"v_cvt_pk_bf16_f32 v{RS+1}, v{RS+2}, v{RS+3}")
    a(f"s_cmp_lg_u32 s{sW}, 0"); a("s_cbranch_scc1 L_fin")
    set_exec("0x00000000000000ff")
    a(f"global_store_dwordx2 v{SIG+1}, {vr(RS,2)}, {sp(pOUT)}")
    a(f"s_cmp_lg_u32 s{sRI}, 0"); a("s_cbranch_scc1 L_fin")
    set_exec(1)
    a(f"v_mov_b32 v{T[1]}, 0")
    a(f"buffer_store_dword v{vN}, v{T[1]}, {srd(WSR)}, 0 offen offset:{EPOCH}")
    a.label("L_fin")
    dump_stamps()
    a.label("L_abort")
    a.label("L_end")
    a("s_endpgm")
    a.label("L_codeend")
    body = a.text()
    tail = f""".section .rodata,"a"
.p2align 6
.amdhsa_kernel {NAME}
  .amdhsa_next_free_vgpr {NV}
  .amdhsa_next_free_sgpr 100
  .amdhsa_accum_offset {NV}
  .amdhsa_group_segment_fixed_size 0
  .amdhsa_kernarg_size 104
  .amdhsa_user_sgpr_count 2
  .amdhsa_user_sgpr_kernarg_segment_ptr 1
  .amdhsa_system_sgpr_workgroup_id_x 1
.end_amdhsa_kernel
"""
    return body + tail

if __name__ == "__main__":
    kw = json.loads(sys.argv[1]) if len(sys.argv) > 1 else {}
    sys.stdout.write(gen(**kw))
```

```python
import sys, json, struct
from asmlib import Asm

NAME = "sequential_preLN__mha_block_cached__moe_arch_mod__decode_kernel"
def f32hex(x): return "0x%08x" % struct.unpack("<I", struct.pack("<f", x))[0]

HB = 12582912
EPOCH = 0
QP = 0x1000
ML = 0x48000
OP = 0x60000
ZZ = 0x130000
HH = 0x1D0000
YY = 0x181000
CLS = 0x1C0000
PROG = 0x1C1000
WS_SIZE = 0x200000
L_XN = 0
L_Q = 5120
L_RED = 6656
L_RED2 = 12800
L_RED3 = 23040
L_SC = 25088
L_STAT = 2304
L_CTL = 2048
L_REDH = 25088 + 16384 + 512
LDS_BYTES = 25088 + 16384 + 512 + 6144
LOG2E = 1.4426950408889634

def gen(H=32, PK=13, ctl=1, thr=27, local=1, pace=1, wpol="nt", qpol="nt", stage1=64, lds=LDS_BYTES, dbg=0, pol="nt", spin=1 << 19, codepf=1):
    nph = 32 // H
    WPH = 256 // H
    NWH = WPH * 4
    G = 4096 // NWH
    NIT = G // 8
    STRIDE = NWH * 3072
    assert 2 <= PK <= 13 and NIT >= 4
    a = Asm()

    vL, vSA, vN = 1, 2, 3
    vM = [4, 5, 6, 7]; vA = 8
    vQ = 12
    vACC = 24
    vC, vMX, vP, vPN, vBC = 36, 37, 38, 39, 40
    T = list(range(41, 48))
    RING = 48
    W = 144
    vX = 204
    vLS, vAL, vRA, vOPA, WA, WB = 224, 225, 226, 227, 228, 230
    vZ, vFL = 232, 233
    NV = 240
    vST = 240
    if dbg: NV = 248
    def ring(slot, t): b = RING + slot * 12 + 4 * t; return f"v[{b}:{b+3}]"
    def vr(b, n): return f"v[{b}:{b+n-1}]"
    sW = 3
    pX, pK, pV, pWQ, pWO, pBX, pWR, pWG, pWU, pWD, pOUT, pDBG, pWS = [4 + 2 * i for i in range(13)]
    STR, WSR, TMP = 32, 36, 40
    sOff, sIt, sHead, sWI, sPh, sNon, sRole, sRI = 44, 45, 46, 47, 48, 49, 50, 51
    sSel = 52
    sSelG = 56
    sT0, sT1, sT2, sT3 = 57, 58, 59, 60
    sInc = 61
    sMask = 62
    sSlot, sJ, sInc4, sSpin = 78, 79, 80, 81
    sE = 82
    sBad = 84
    sU, sU2 = 86, 87
    sRow = 90
    sLoc, sBst, sPrv, sGI, sOH = 30, 31, 97, 98, 99
    sPkSel = 96
    def sp(b): return f"s[{b}:{b+1}]"
    def srd(b): return f"s[{b}:{b+3}]"
    USEFUL = "0xFF00FF0000FF00FF"

    def stamp(k):
        if not dbg: return
        if dbg == 3 and k not in (0, 3, 4, 6, 7, 9, 10, 12, 15): return
        a("s_memrealtime s[88:89]"); a("s_waitcnt lgkmcnt(0)"); a(f"v_writelane_b32 v{vST}, s88, {k}")
    def dump_stamps(helper=False):
        if not dbg: return
        if dbg == 3:
            if helper: return
            n = newlab()
            stamp(15)
            a(f"s_cmp_lg_u32 s{sW}, 0"); a(f"s_cbranch_scc1 L_ds{n}")
            a("s_mov_b64 exec, -1")
            a(f"s_mov_b32 s40, s{pDBG}"); a(f"s_mov_b32 s41, s{pDBG+1}"); a("s_mov_b32 s42, 256"); a("s_mov_b32 s43, 0x20000")
            a(f"v_lshlrev_b32 v{vST+1}, 2, v{vL}")
            a(f"v_mov_b32 v{vST+2}, 0"); a(f"v_mov_b32 v{vST+3}, 0")
            for dst, src, inv in ((0,0,1),(1,3,0),(2,4,0),(3,4,1),(4,6,0),(5,6,1),(6,7,0),(7,9,0),(8,10,0),(9,12,0),(10,15,0)):
                a(f"v_readlane_b32 s88, v{vST}, {src}")
                if inv: a("s_not_b32 s88, s88")
                a("s_nop 3"); a(f"v_writelane_b32 v{vST+2}, s88, {dst}")
            a(f"v_readlane_b32 s89, v{vST}, 0")
            for dst, src in ((11,6),(12,4),(13,3)):
                a(f"v_readlane_b32 s88, v{vST}, {src}"); a("s_nop 3"); a("s_sub_u32 s88, s88, s89"); a("s_nop 3"); a(f"v_writelane_b32 v{vST+3}, s88, {dst}")
            a("s_mov_b64 exec, 0x7ff")
            a(f"buffer_atomic_umax v{vST+2}, v{vST+1}, s[40:43], 0 offen")
            a("s_mov_b64 exec, 0x3800")
            a(f"buffer_atomic_add v{vST+3}, v{vST+1}, s[40:43], 0 offen")
            a.label(f"L_ds{n}")
            return
        stamp(15)
        a("s_mov_b32 exec_lo, -1"); a("s_mov_b32 exec_hi, 0")
        if helper: a("s_add_u32 s88, s2, 1024")
        else: a(f"s_lshl_b32 s88, s2, 2"); a(f"s_add_u32 s88, s88, s{sW}")
        a("s_lshl_b32 s88, s88, 7"); a(f"s_add_u32 s88, s88, {WS_SIZE}")
        a(f"v_lshlrev_b32 v{vST+1}, 2, v{vL}")
        a(f"buffer_store_dword v{vST}, v{vST+1}, {srd(WSR)}, s88 offen")

    DPP4 = ("quad_perm:[1,0,3,2]", "quad_perm:[2,3,0,1]", "row_half_mirror", "row_mirror")
    def dpp(op, v, m): a(f"{op}_dpp v{v}, v{v}, v{v} {m} row_mask:0xf bank_mask:0xf")
    def swap_reduce(ops_vs, tmps, sw):
        for (op, v), t in zip(ops_vs, tmps): a(f"v_mov_b32 v{t}, v{v}")
        for (op, v), t in zip(ops_vs, tmps): a(f"{sw} v{t}, v{v}")
        for (op, v), t in zip(ops_vs, tmps): a(f"{op} v{v}, v{v}, v{t}")
    def allreduce_n(ops_vs, tmps):
        for m in DPP4:
            for op, v in ops_vs: dpp(op, v, m)
        swap_reduce(ops_vs, tmps, "v_permlane16_swap_b32")
        swap_reduce(ops_vs, tmps, "v_permlane32_swap_b32")
    def allreduce(op, v, t): allreduce_n([(op, v)], [t])
    def set_exec(val):
        if isinstance(val, str) and val.startswith("0x") and len(val) > 10:
            a(f"s_mov_b32 exec_lo, 0x{val[-8:]}"); a(f"s_mov_b32 exec_hi, 0x{val[2:-8]}")
        else:
            a(f"s_mov_b64 exec, {val}")
    def a_operand(src, dst=None):
        dst = vA if dst is None else dst
        for r in range(4): a(f"v_and_b32 v{dst+r}, v{src}, v{vM[r]}")
    def tag4(b):
        for r in range(4): a(f"v_perm_b32 v{b+r}, v{b+r}, v{vN}, s{sSel+r}")
    def check4(b, t0, t1, first):
        a(f"v_perm_b32 v{t0}, v{b+1}, v{b}, s{sSelG}")
        a(f"v_perm_b32 v{t1}, v{b+3}, v{b+2}, s{sSelG}")
        a(f"v_lshl_or_b32 v{t0}, v{t1}, 16, v{t0}")
        a(f"v_cmp_ne_u32 vcc, v{t0}, v{vN}")
        if first: a(f"s_mov_b64 {sp(sBad)}, vcc")
        else: a(f"s_or_b64 {sp(sBad)}, {sp(sBad)}, vcc")
    lab = [0]
    def newlab():
        lab[0] += 1; return lab[0]
    def poll(issue, check, pre=None, first_issued=False, first_wait=0):
        n = newlab()
        a(f"s_mov_b32 s{sSpin}, {spin}")
        if not first_issued: issue()
        if pre: pre()
        a(f"s_waitcnt vmcnt({first_wait})")
        a(f"s_branch L_pollchk{n}")
        a.label(f"L_poll{n}")
        a(f"s_sub_u32 s{sSpin}, s{sSpin}, 1")
        a(f"s_cmp_eq_u32 s{sSpin}, 0")
        a("s_cbranch_scc1 L_abort")
        issue()
        a("s_waitcnt vmcnt(0)")
        a.label(f"L_pollchk{n}")
        check()
        a(f"s_cmp_lg_u64 {sp(sBad)}, 0")
        a(f"s_cbranch_scc1 L_poll{n}")
    def pub_store(data, voff, soff):
        n = newlab()
        if local:
            a(f"s_cmp_eq_u32 s{sLoc}, 1"); a(f"s_cbranch_scc1 L_pl{n}")
        a(f"buffer_store_dwordx4 {data}, v{voff}, {srd(WSR)}, s{soff} offen sc1")
        if local:
            a(f"s_branch L_pd{n}")
            a.label(f"L_pl{n}")
            a(f"buffer_store_dwordx4 {data}, v{voff}, {srd(WSR)}, s{soff} offen")
            a.label(f"L_pd{n}")
    def rne(dst, src):
        a(f"v_cvt_pk_bf16_f32 v{dst}, v{src}, v{src}")
        a(f"v_lshlrev_b32 v{dst}, 16, v{dst}")
    def pkadd(d, x, y): a(f"v_pk_add_f32 {vr(d,2)}, {vr(x,2)}, {vr(y,2)}")
    def sum_quads(dst, srcs):
        for s in srcs:
            pkadd(dst, dst, s); pkadd(dst + 2, dst + 2, s + 2)

    def ln_consts(s1, s2, t):
        a(f"v_mul_f32 v{s1}, {f32hex(1.0/640)}, v{s1}")
        a(f"v_mul_f32 v{s2}, {f32hex(1.0/640)}, v{s2}")
        a(f"v_fma_f32 v{s2}, -v{s1}, v{s1}, v{s2}")
        a(f"v_max_f32 v{s2}, 0, v{s2}")
        rne(s2, s2)
        a(f"v_add_f32 v{s2}, {f32hex(1e-5)}, v{s2}")
        rne(s2, s2)
        rne(s1, s1)
        a(f"v_sqrt_f32 v{s2}, v{s2}")
        rne(s2, s2)

    def layernorm_full(val, pk, tmp, refine):
        t0, t1, t2, t3, t4 = tmp
        ONES = t4
        a(f"v_mov_b32 v{ONES}, 0x3f803f80")
        a(f"v_dot2_f32_bf16 v{t0}, v{pk}, v{ONES}, 0"); a(f"v_dot2_f32_bf16 v{t1}, v{pk}, v{pk}, 0")
        for i in range(1, 6):
            a(f"v_dot2_f32_bf16 v{t0}, v{pk+i}, v{ONES}, v{t0}"); a(f"v_dot2_f32_bf16 v{t1}, v{pk+i}, v{pk+i}, v{t1}")
        allreduce_n([("v_add_f32", t0), ("v_add_f32", t1)], [t2, t3])
        ln_consts(t0, t1, t2)
        a(f"v_rcp_f32 v{t4}, v{t1}")
        for i in range(0, 12, 2):
            a(f"v_sub_f32 v{val+i}, v{val+i}, v{t0}")
            a(f"v_sub_f32 v{val+i+1}, v{val+i+1}, v{t0}")
            a(f"v_cvt_pk_bf16_f32 v{t2}, v{val+i}, v{val+i+1}")
            a(f"v_lshlrev_b32 v{val+i}, 16, v{t2}")
            a(f"v_and_b32 v{val+i+1}, 0xffff0000, v{t2}")
            for k in (i, i + 1):
                if refine:
                    a(f"v_mul_f32 v{t2}, v{val+k}, v{t4}")
                    a(f"v_fma_f32 v{t3}, -v{t2}, v{t1}, v{val+k}")
                    a(f"v_fma_f32 v{val+k}, v{t3}, v{t4}, v{t2}")
                else:
                    a(f"v_mul_f32 v{val+k}, v{val+k}, v{t4}")
            a(f"v_cvt_pk_bf16_f32 v{pk + i//2}, v{val+i}, v{val+i+1}")
            a(f"v_lshlrev_b32 v{val+i}, 16, v{pk + i//2}")
            a(f"v_and_b32 v{val+i+1}, 0xffff0000, v{pk + i//2}")

    a.lines.append(f"; @launch grid=(256,1,1) block=(320,1,1) lds={lds}")
    a.lines.append('.amdgcn_target "amdgcn-amd-amdhsa--gfx950"')
    a.lines += [".text", f".globl {NAME}", ".p2align 8", f".type {NAME},@function"]
    a.label(NAME)
    a("s_cmp_ge_u32 s2, 256")
    a("s_cbranch_scc1 L_end")
    a("s_load_dwordx16 s[4:19], s[0:1], 0")
    a("s_load_dwordx8 s[20:27], s[0:1], 64")
    a("s_load_dwordx2 s[28:29], s[0:1], 96")
    a(f"v_and_b32 v{vL}, 63, v0")
    a(f"v_lshrrev_b32 v{T[0]}, 6, v0")
    a(f"v_lshrrev_b32 v{T[2]}, 3, v{vL}")
    a(f"v_readfirstlane_b32 s{sW}, v{T[0]}")
    a(f"v_and_b32 v{T[3]}, 7, v{vL}")
    a(f"v_lshlrev_b32 v{T[4]}, 4, v{T[3]}")
    def masks():
        for r in range(4):
            a(f"v_mov_b32 v{vM[r]}, 0")
            a(f"v_mov_b32 v{T[5]}, 0xffff")
            a(f"v_cmp_eq_u32 vcc, {2*r}, v{T[3]}")
            a(f"v_cndmask_b32 v{vM[r]}, v{vM[r]}, v{T[5]}, vcc")
            a(f"v_mov_b32 v{T[5]}, 0xffff0000")
            a(f"v_cmp_eq_u32 vcc, {2*r+1}, v{T[3]}")
            a(f"v_cndmask_b32 v{vM[r]}, v{vM[r]}, v{T[5]}, vcc")
    def ws_srd():
        a(f"s_mov_b32 s{WSR}, s{pWS}"); a(f"s_mov_b32 s{WSR+1}, s{pWS+1}"); a(f"s_mov_b32 s{WSR+2}, {WS_SIZE * (2 if dbg else 1)}"); a(f"s_mov_b32 s{WSR+3}, 0x20000")
    vq = []
    def wait_for(name):
        if name not in vq: return
        idx = max(i for i, n in enumerate(vq) if n == name)
        n = len(vq) - 1 - idx
        a(f"s_waitcnt vmcnt({min(n, 63)})")
        del vq[:idx + 1]
    def red_addr():
        a(f"v_lshrrev_b32 v{T[0]}, 5, v{vL}")
        a(f"v_mul_u32_u24 v{vRA}, 768, v{T[0]}")
        a(f"v_and_b32 v{T[0]}, 7, v{vL}"); a(f"v_lshlrev_b32 v{T[0]}, 5, v{T[0]}"); a(f"v_add_u32 v{vRA}, v{vRA}, v{T[0]}")
        a(f"v_and_b32 v{T[0]}, 16, v{vL}"); a(f"v_add_u32 v{vRA}, v{vRA}, v{T[0]}")
        a(f"s_mul_i32 s{sT0}, s{sW}, 1536"); a(f"v_add_u32 v{vRA}, s{sT0}, v{vRA}")
    def red_write():
        set_exec(USEFUL)
        for t in range(3): a(f"ds_write_b128 v{vRA}, {vr(vACC+4*t,4)} offset:{L_RED + 256*t}")
        set_exec(-1)
    a(f"s_cmp_lg_u32 s{sW}, 4"); a("s_cbranch_scc1 L_stream")
    a("s_setprio 3")

    WD = RING
    XQ = 168
    XV = 176
    XR = 188
    a(f"s_and_b32 s{sT0}, s2, 31"); a(f"s_lshr_b32 s{sT1}, s2, 5")
    a(f"v_mul_u32_u24 v{T[6]}, 12288, v{T[2]}")
    a(f"s_mul_i32 s{sT2}, s{sT0}, 384")
    a(f"v_add3_u32 v{T[6]}, v{T[6]}, v{T[4]}, s{sT2}")
    a(f"s_mul_i32 s{sT3}, s{sT1}, {80*12288}")
    a(f"v_lshlrev_b32 v{T[1]}, 3, v{vL}")
    a(f"v_add_u32 v{T[5]}, 1024, v{T[1]}")
    a(f"v_min_u32 v{T[5]}, 1272, v{T[5]}")
    a(f"s_mov_b32 s{TMP+2}, 7864320"); a(f"s_mov_b32 s{TMP+3}, 0x20000")
    a("s_waitcnt lgkmcnt(0)")
    a(f"s_mov_b32 s{TMP}, s{pWQ}"); a(f"s_mov_b32 s{TMP+1}, s{pWQ+1}")
    a(f"global_load_dwordx2 {vr(XQ,2)}, v{T[1]}, {sp(pX)}")
    a(f"global_load_dwordx2 {vr(XQ+2,2)}, v{T[1]}, {sp(pX)} offset:512")
    a(f"global_load_dwordx2 {vr(XQ+4,2)}, v{T[5]}, {sp(pX)}")
    vq += ["x0", "x1", "x2"]
    for k in range(10):
        for t in range(3):
            a(f"buffer_load_dwordx4 {vr(WD + 12*k + 4*t, 4)}, v{T[6]}, {srd(TMP)}, s{sT3} offen offset:{128*t} {qpol}")
            vq.append(f"wq{k}")
        if k < 9: a(f"s_add_u32 s{sT3}, s{sT3}, {8*12288}")
    a(f"v_mov_b32 v{vZ}, 0")
    for o in range(0, 36, 4): a(f"ds_write_b32 v{vZ}, v{vZ} offset:{L_CTL + o}")
    a("s_waitcnt lgkmcnt(0)")
    a("s_barrier")
    a(f"s_load_dword s{sNon}, {sp(pWS)}, {EPOCH}")
    if dbg: a(f"v_mov_b32 v{vST}, 0")
    stamp(0)
    masks()
    ws_srd()
    a(f"s_and_b32 s{sSlot}, s2, {H-1}")
    wait_for("x2")
    stamp(18)
    CE = 198
    a("s_waitcnt lgkmcnt(0)")
    a(f"s_add_u32 s{sNon}, s{sNon}, 0x9e3779b9")
    a(f"v_mov_b32 v{vN}, s{sNon}")
    a(f"s_getreg_b32 s{sT0}, hwreg(HW_REG_XCC_ID, 0, 4)")
    a(f"s_and_b32 s{sT1}, s{sNon}, 0xfffffff0"); a(f"s_or_b32 s{sT0}, s{sT0}, s{sT1}")
    a(f"v_mov_b32 v{CE}, s{sT0}")
    a(f"s_and_b32 s{sU2}, s2, 7"); a(f"s_lshl_b32 s{sU2}, s{sU2}, 7")
    a(f"s_lshr_b32 s{sT1}, s2, 3"); a(f"s_lshl_b32 s{sT1}, s{sT1}, 2"); a(f"s_add_u32 s{sT1}, s{sT1}, s{sU2}"); a(f"s_add_u32 s{sT1}, s{sT1}, {CLS}")
    if local:
        set_exec(1)
        a(f"buffer_store_dword v{CE}, v{vZ}, {srd(WSR)}, s{sT1} offen")
        set_exec(-1)
        vq.append("cls_st")
    a(f"v_cmp_gt_u32 vcc, 32, v{vL}")
    a(f"v_cndmask_b32 v{XQ+4}, 0, v{XQ+4}, vcc"); a(f"v_cndmask_b32 v{XQ+5}, 0, v{XQ+5}, vcc")
    for k in range(6):
        a(f"v_lshlrev_b32 v{XV+2*k}, 16, v{XQ+k}")
        a(f"v_and_b32 v{XV+2*k+1}, 0xffff0000, v{XQ+k}")
    layernorm_full(XV, XQ, T[0:5], True)
    a(f"v_lshlrev_b32 v{T[0]}, 3, v{vL}")
    a(f"ds_write_b64 v{T[0]}, {vr(XQ,2)} offset:{L_XN}")
    a(f"ds_write_b64 v{T[0]}, {vr(XQ+2,2)} offset:{L_XN+512}")
    set_exec("0x00000000ffffffff")
    a(f"ds_write_b64 v{T[0]}, {vr(XQ+4,2)} offset:{L_XN+1024}")
    set_exec(-1)
    a(f"s_lshr_b32 s{sT1}, s2, 5"); a(f"s_mul_i32 s{sT1}, s{sT1}, 160")
    a(f"v_lshrrev_b32 v{T[0]}, 3, v{vL}"); a(f"v_lshlrev_b32 v{T[0]}, 1, v{T[0]}"); a(f"v_add_u32 v{T[0]}, s{sT1}, v{T[0]}")
    a("s_waitcnt lgkmcnt(0)")
    for k in range(10): a(f"ds_read_u16 v{XR+k}, v{T[0]} offset:{L_XN + 16*k}")
    for i in range(12): a(f"v_mov_b32 v{vACC+i}, 0")
    a("s_waitcnt lgkmcnt(0)")
    for k in range(10): a(f"v_lshl_or_b32 v{XR+k}, v{XR+k}, 16, v{XR+k}")
    stamp(1)
    def cls_issue():
        a(f"v_and_b32 v{T[5]}, 31, v{vL}"); a(f"v_lshlrev_b32 v{T[5]}, 2, v{T[5]}")
        a(f"s_add_u32 s{sT2}, s{sU2}, {CLS}")
        a(f"buffer_load_dword v{CE+1}, v{T[5]}, {srd(WSR)}, s{sT2} offen sc1")
    for k in range(10):
        a_operand(XR + k)
        if k == 8 and local:
            cls_issue(); vq.append("cls_ld")
        wait_for(f"wq{k}")
        for t in range(3):
            a(f"v_mfma_f32_16x16x32_bf16 {vr(vACC+4*t,4)}, {vr(vA,4)}, {vr(WD+12*k+4*t,4)}, {vr(vACC+4*t,4)}")
    a(f"v_lshrrev_b32 v{T[0]}, 5, v{vL}"); a(f"v_mul_u32_u24 v{vRA}, 768, v{T[0]}")
    a(f"v_and_b32 v{T[0]}, 7, v{vL}"); a(f"v_lshlrev_b32 v{T[0]}, 5, v{T[0]}"); a(f"v_add_u32 v{vRA}, v{vRA}, v{T[0]}")
    a(f"v_and_b32 v{T[0]}, 16, v{vL}"); a(f"v_add_u32 v{vRA}, v{vRA}, v{T[0]}")
    a(f"v_mul_u32_u24 v{T[0]}, 12, v{vL}")
    a(f"s_and_b32 s{sT0}, s2, 31"); a(f"s_lshr_b32 s{sT1}, s2, 5"); a(f"s_lshl_b32 s{sT0}, s{sT0}, 3"); a(f"s_add_u32 s{sT0}, s{sT0}, s{sT1}")
    a(f"s_lshl_b32 s{sT0}, s{sT0}, 10"); a(f"s_add_u32 s{sT0}, s{sT0}, {QP}")
    a(f"v_lshlrev_b32 v{T[1]}, 4, v{vL}")
    red_write()
    a("s_waitcnt lgkmcnt(0)")
    S3 = 200
    for s in range(2):
        for i in range(3): a(f"ds_read_b32 v{S3+4*s+i}, v{T[0]} offset:{L_RED + 768*s + 4*i}")
    a("s_waitcnt lgkmcnt(0)")
    pkadd(S3, S3, S3 + 4); a(f"v_add_f32 v{S3+2}, v{S3+2}, v{S3+6}")
    a(f"v_mov_b32 v{S3+3}, v{vN}")
    a(f"s_mov_b32 s{sLoc}, 0")
    if local:
        a(f"s_mov_b32 s{sSpin}, 8")
        a("s_waitcnt vmcnt(0)")
        a.label("L_clschk")
        a(f"v_cmp_ne_u32 vcc, v{CE+1}, v{CE}")
        a(f"s_cmp_eq_u64 vcc, 0"); a(f"s_cselect_b32 s{sLoc}, 1, 0"); a("s_cbranch_scc1 L_clsdone")
        a(f"s_sub_u32 s{sSpin}, s{sSpin}, 1"); a(f"s_cmp_eq_u32 s{sSpin}, 0"); a("s_cbranch_scc1 L_clsdone")
        cls_issue(); a("s_waitcnt vmcnt(0)"); a("s_branch L_clschk")
        a.label("L_clsdone")
    pub_store(vr(S3,4), T[1], sT0)
    a(f"v_mov_b32 v{T[2]}, s{sLoc}"); a(f"ds_write_b32 v{vZ}, v{T[2]} offset:{L_CTL + 8}")
    stamp(21)
    S4 = RING
    for p in range(nph):
        a(f"s_add_u32 s{sU}, s{sSlot}, {H*p}"); a(f"s_lshl_b32 s{sU}, s{sU}, 13"); a(f"s_add_u32 s{sU}, s{sU}, {QP}")
        def iss():
            for s in range(8):
                a(f"s_add_u32 s{sT1}, s{sU}, {1024*s}")
                a(f"buffer_load_dwordx4 {vr(S4+4*s,4)}, v{T[1]}, {srd(WSR)}, s{sT1} offen sc1")
        def chk():
            for s in range(8):
                a(f"v_cmp_ne_u32 vcc, v{S4+4*s+3}, v{vN}")
                a(f"s_mov_b64 {sp(sBad)}, vcc" if s == 0 else f"s_or_b64 {sp(sBad)}, {sp(sBad)}, vcc")
        poll(iss, chk)
        if p == 0: stamp(22)
        for s in range(1, 8):
            pkadd(S4, S4, S4 + 4*s); a(f"v_add_f32 v{S4+2}, v{S4+2}, v{S4+4*s+2}")
        a(f"v_cvt_pk_bf16_f32 v{S4}, v{S4}, v{S4+1}")
        a(f"v_cvt_pk_bf16_f32 v{S4+2}, v{S4+2}, v{S4+2}")
        a(f"v_mul_u32_u24 v{T[0]}, 6, v{vL}")
        a(f"ds_write_b16 v{T[0]}, v{S4} offset:{L_Q + 384*p}")
        a(f"ds_write_b16_d16_hi v{T[0]}, v{S4} offset:{L_Q + 384*p + 2}")
        a(f"ds_write_b16 v{T[0]}, v{S4+2} offset:{L_Q + 384*p + 4}")
        a("s_waitcnt lgkmcnt(0)")
        if nph > 1:
            a(f"v_mov_b32 v{T[0]}, {p+1}"); a(f"ds_write_b32 v{vZ}, v{T[0]} offset:{L_CTL + 32}"); a("s_waitcnt lgkmcnt(0)")
        if p == 0:
            a("s_barrier")
            if codepf:
                a(f"s_getpc_b64 {sp(58)}")
                a.label("L_pc")
                a(f"s_lshr_b32 s{sT3}, s2, 3"); a(f"s_lshl_b32 s{sT3}, s{sT3}, 9")
                a(f"v_and_b32 v{T[0]}, 7, v{vL}"); a(f"v_lshlrev_b32 v{T[0]}, 6, v{T[0]}"); a(f"v_add_u32 v{T[0]}, s{sT3}, v{T[0]}")
                a(f"v_add_u32 v{T[0]}, L_kcode-L_pc, v{T[0]}")
                a(f"v_min_u32 v{T[0]}, L_codeend-L_pc-4, v{T[0]}")
                a(f"global_load_dword v{vP}, v{T[0]}, {sp(58)}")
    if ctl or nph > 1:
        NTOT = 2 * NIT * nph
        sPub = sPh
        HBUF = RING
        a(f"s_and_b32 s{sT0}, s{sNon}, 0xffffff00"); a(f"v_mov_b32 v{T[3]}, s{sT0}")
        a(f"s_add_u32 s{sU}, s{sU2}, {PROG}")
        a(f"v_and_b32 v{T[4]}, 31, v{vL}"); a(f"v_lshlrev_b32 v{T[4]}, 2, v{T[4]}")
        a(f"s_lshr_b32 s{sT1}, s2, 3"); a(f"s_lshl_b32 s{sT1}, s{sT1}, 2"); a(f"v_mov_b32 v{T[5]}, s{sT1}")
        a(f"s_mov_b32 s{sGI}, 0"); a(f"s_mov_b32 s{sSpin}, {1 << 22}"); a(f"s_mov_b32 s{sPub}, 0")
        if nph > 1:
            for r in range(4): a(f"s_mov_b32 s{sSel+r}, 0x{0x07060500 | r:08x}")
            a(f"s_lshr_b32 s{sJ}, s2, {H.bit_length()-1}")
            a(f"v_mul_u32_u24 v{T[1]}, 43691, v{vL}"); a(f"v_lshrrev_b32 v{T[1]}, 19, v{T[1]}")
            a(f"v_mul_u32_u24 v{T[2]}, 12, v{T[1]}"); a(f"v_sub_u32 v{T[2]}, v{vL}, v{T[2]}")
            a(f"v_mul_u32_u24 v{T[1]}, {WPH*192}, v{T[1]}"); a(f"v_lshlrev_b32 v{T[2]}, 4, v{T[2]}"); a(f"v_add_u32 v{vOPA}, v{T[1]}, v{T[2]}")
            a(f"v_lshlrev_b32 v{vRA}, 4, v{vL}")
        a.label("L_cspin")
        a("s_sleep 4")
        a(f"ds_read_b32 v{T[0]}, v{vZ} offset:{L_CTL}")
        if nph > 1: a(f"ds_read_b128 {vr(vA,4)}, v{vZ} offset:{L_CTL + 16}")
        a("s_waitcnt lgkmcnt(0)"); a(f"v_readfirstlane_b32 s{sT0}, v{T[0]}")
        a(f"s_sub_u32 s{sSpin}, s{sSpin}, 1"); a(f"s_cmp_eq_u32 s{sSpin}, 0"); a("s_cbranch_scc1 L_cdone")
        if nph > 1:
            a(f"v_min_u32 v{vA}, v{vA}, v{vA+1}"); a(f"v_min_u32 v{vA+2}, v{vA+2}, v{vA+3}"); a(f"v_min_u32 v{vA}, v{vA}, v{vA+2}")
            a(f"v_readfirstlane_b32 s{sT1}, v{vA}")
            a(f"s_cmp_gt_u32 s{sT1}, s{sPub}"); a("s_cbranch_scc0 L_cnopub")
            set_exec("0x0000ffffffffffff")
            for s_ in range(8): a(f"ds_read_b128 {vr(HBUF+4*s_,4)}, v{vRA} offset:{L_REDH + 768*s_}")
            a("s_waitcnt lgkmcnt(0)")
            a(f"s_add_u32 s{sT1}, s{sPub}, 1"); a(f"v_mov_b32 v{T[1]}, s{sT1}"); a(f"ds_write_b32 v{vZ}, v{T[1]} offset:{L_CTL + 12}")
            sum_quads(HBUF, [HBUF + 4*k for k in range(1, 8)])
            tag4(HBUF)
            a(f"s_mul_i32 s{sT2}, s{sPub}, {H}"); a(f"s_add_u32 s{sT2}, s{sT2}, s{sSlot}")
            a(f"s_mul_i32 s{sT2}, s{sT2}, {4*WPH*192}"); a(f"s_mul_i32 s{sT3}, s{sJ}, 192"); a(f"s_add_u32 s{sT2}, s{sT2}, s{sT3}"); a(f"s_add_u32 s{sT2}, s{sT2}, {OP}")
            pub_store(vr(HBUF,4), vOPA, sT2)
            set_exec(-1)
            a(f"s_mov_b32 s{sPub}, s{sT1}")
            a.label("L_cnopub")
        if ctl:
            a(f"s_cmp_eq_u32 s{sT0}, s{sGI}"); a("s_cbranch_scc1 L_cchk")
            a(f"s_mov_b32 s{sGI}, s{sT0}")
            a(f"buffer_load_dword v{T[1]}, v{T[4]}, {srd(WSR)}, s{sU} offen sc1")
            a(f"v_or_b32 v{T[2]}, s{sGI}, v{T[3]}")
            set_exec(1)
            a(f"buffer_store_dword v{T[2]}, v{T[5]}, {srd(WSR)}, s{sU} offen")
            set_exec(-1)
            a("s_waitcnt vmcnt(1)")
            a(f"v_xor_b32 v{T[1]}, v{T[1]}, v{T[3]}")
            a(f"v_cmp_le_u32 vcc, s{sGI}, v{T[1]}"); a(f"s_mov_b32 s{sT2}, vcc_lo")
            a(f"v_cmp_gt_u32 vcc, 256, v{T[1]}"); a(f"s_and_b32 s{sT2}, s{sT2}, vcc_lo")
            a(f"s_bcnt1_i32_b32 s{sT2}, s{sT2}")
            a(f"s_cmp_ge_u32 s{sT2}, {thr}"); a(f"s_cselect_b32 s{sT2}, 1, 0")
            a(f"v_mov_b32 v{T[0]}, s{sT2}"); a(f"ds_write_b32 v{vZ}, v{T[0]} offset:{L_CTL + 4}")
            a.label("L_cchk")
            a(f"s_cmp_lt_u32 s{sGI}, {NTOT - 2}"); a("s_cbranch_scc1 L_cspin")
        if nph > 1:
            a(f"s_cmp_lt_u32 s{sPub}, {nph - 1}"); a("s_cbranch_scc1 L_cspin")
        a.label("L_cdone")
        a("s_waitcnt vmcnt(0) lgkmcnt(0)")
    dump_stamps(True)
    a("s_endpgm")

    a.label("L_stream")
    vq[:] = []
    a(f"v_mul_u32_u24 v{vSA}, 384, v{T[2]}")
    a(f"v_add_u32 v{vSA}, v{vSA}, v{T[4]}")
    a(f"s_and_b32 s{sSlot}, s2, {H-1}")
    a(f"s_lshr_b32 s{sJ}, s2, {H.bit_length()-1}")
    a(f"s_lshl_b32 s{sWI}, s{sJ}, 2")
    a(f"s_add_u32 s{sWI}, s{sWI}, s{sW}")
    a(f"s_mov_b32 s{sHead}, s{sSlot}")
    a(f"s_mov_b32 s{sPh}, 0")
    a(f"s_mul_i32 s{sT0}, s{sHead}, {HB}")
    a(f"s_mul_i32 s{sOff}, s{sWI}, 3072")
    a(f"s_mov_b32 s{STR+2}, {HB}"); a(f"s_mov_b32 s{STR+3}, 0x20000")
    a("s_waitcnt lgkmcnt(0)")
    a(f"s_add_u32 s{STR}, s{pK}, s{sT0}"); a(f"s_addc_u32 s{STR+1}, s{pK+1}, 0")
    a(f"s_load_dword s{sNon}, {sp(pWS)}, {EPOCH}")
    if dbg: a(f"v_mov_b32 v{vST}, 0")
    stamp(0)
    a(f"v_mov_b32 v{vOPA}, 0"); a(f"s_mov_b32 s{sU2}, {OP}")
    masks()
    a(f"s_mov_b32 s{sPh}, 0")
    for g in range(8):
        m = 0x0101010101010101 << g
        a(f"s_mov_b32 s{sMask+2*g}, 0x{m & 0xffffffff:08x}")
        a(f"s_mov_b32 s{sMask+2*g+1}, 0x{m >> 32:08x}")
    for r in range(4): a(f"s_mov_b32 s{sSel+r}, 0x{0x07060500 | r:08x}")
    a(f"s_mov_b32 s{sSelG}, 0x0c0c0400")
    a(f"s_mov_b32 s{sPkSel}, 0x07060302")
    for r in range(1, 4):
        m = 0xffff << (16 * r)
        a(f"s_mov_b32 s{sRow+2*(r-1)}, 0x{m & 0xffffffff:08x}"); a(f"s_mov_b32 s{sRow+2*(r-1)+1}, 0x{m >> 32:08x}")
    ws_srd()
    a(f"s_and_b32 s{sT0}, s2, 7"); a(f"s_lshr_b32 s{sT1}, s2, 3")
    a(f"s_lshl_b32 s{sT2}, s{sT1}, 3"); a(f"s_add_u32 s{sRI}, s{sT2}, s{sT0}"); a(f"s_mov_b32 s{sRole}, 0")
    a(f"s_lshr_b32 s{sT2}, s{sT1}, 2"); a(f"s_lshl_b32 s{sT2}, s{sT2}, 3"); a(f"s_add_u32 s{sT2}, s{sT2}, s{sT0}"); a(f"s_lshl_b32 s{sT2}, s{sT2}, 2")
    a(f"s_and_b32 s{sT3}, s{sT1}, 3"); a(f"s_add_u32 s{sOH}, s{sT2}, s{sT3}")
    a(f"s_cmp_lt_u32 s{sT1}, 16"); a("s_cbranch_scc1 L_roled")
    a(f"s_sub_u32 s{sT2}, s{sT1}, 16"); a(f"s_mul_i32 s{sT3}, s{sT0}, 12"); a(f"s_add_u32 s{sRI}, s{sT3}, s{sT2}"); a(f"s_mov_b32 s{sRole}, 1")
    a(f"s_cmp_lt_u32 s{sT1}, 28"); a("s_cbranch_scc1 L_roled")
    a(f"s_sub_u32 s{sT2}, s{sT1}, 28"); a(f"s_lshl_b32 s{sT2}, s{sT2}, 3"); a(f"s_add_u32 s{sRI}, s{sT2}, s{sT0}"); a(f"s_mov_b32 s{sRole}, 2")
    a.label("L_roled")
    def kslot(g):
        if g < 8: return RING + 12 * ((g + 5) % 8)
        if g < 13 and g < PK: return W + 12 * (g - 8)
        return RING + 12 * (g % 8)
    def issue(g):
        b = kslot(g)
        for t in range(3):
            a(f"buffer_load_dwordx4 {vr(b+4*t,4)}, v{vSA}, {srd(STR)}, s{sOff} offen offset:{128*t} {pol}")
            vq.append(f"k{g}")
        a(f"s_add_u32 s{sOff}, s{sOff}, {STRIDE}")
    a(f"v_mov_b32 v{vZ}, 0"); a(f"v_mov_b32 v{vFL}, 0"); a(f"s_mov_b32 s{sGI}, 0"); a(f"s_mov_b32 s{sPrv}, 0")
    a("s_barrier")
    for g in range(PK):
        if pace and g >= 2: wait_for(f"k{g-2}")
        issue(g)
    stamp(16)
    a("s_waitcnt lgkmcnt(0)")
    a(f"s_add_u32 s{sNon}, s{sNon}, 0x9e3779b9")
    a(f"v_mov_b32 v{vN}, s{sNon}")
    a("s_barrier")
    a(f"ds_read_b32 v{T[1]}, v{vZ} offset:{L_CTL + 8}"); a("s_waitcnt lgkmcnt(0)"); a(f"v_readfirstlane_b32 s{sLoc}, v{T[1]}")
    def progress():
        if not ctl: return
        n = newlab()
        a(f"s_add_u32 s{sGI}, s{sGI}, 1")
        a(f"s_cmp_lg_u32 s{sW}, 0"); a(f"s_cbranch_scc1 L_pg{n}")
        a(f"v_mov_b32 v{T[5]}, s{sGI}"); a(f"ds_write_b32 v{vZ}, v{T[5]} offset:{L_CTL}")
        a.label(f"L_pg{n}")
    def flag_read():
        if ctl: a(f"ds_read_b32 v{vFL}, v{vZ} offset:{L_CTL + 4}")
    def load_q():
        a(f"v_and_b32 v{T[0]}, 7, v{vL}"); a(f"v_lshlrev_b32 v{T[0]}, 4, v{T[0]}")
        a(f"s_mul_i32 s{sT0}, s{sPh}, 384"); a(f"v_add_u32 v{T[0]}, s{sT0}, v{T[0]}")
        for t in range(3): a(f"ds_read_b128 {vr(vQ+4*t,4)}, v{T[0]} offset:{L_Q + 128*t}")
    load_q()

    a.label("L_kcode")
    vSC = T[6]
    def score_addr():
        a(f"v_lshlrev_b32 v{vSC}, 2, v{vL}")
        a(f"s_lshl_b32 s{sT0}, s{sW}, 12"); a(f"v_add_u32 v{vSC}, s{sT0}, v{vSC}")
    def kinit():
        score_addr()
        a(f"v_mov_b32 v{vMX}, 0xff800000"); a(f"v_mov_b32 v{vLS}, 0")
        a("s_waitcnt lgkmcnt(0)")
    def kcompute(b, g):
        a0, a1, a2 = T[0], T[1], T[2]
        for i in range(4):
            for t, acc in enumerate((a0, a1, a2)):
                src2 = "0" if i == 0 else f"v{acc}"
                a(f"v_dot2_f32_bf16 v{acc}, v{b+4*t+i}, v{vQ+4*t+i}, {src2}")
        a(f"v_add_f32 v{a0}, v{a0}, v{a1}")
        a(f"v_add_f32 v{a0}, v{a0}, v{a2}")
        for m in DPP4[:3]: dpp("v_add_f32", a0, m)
        a(f"v_cndmask_b32 v{vC}, v{vC}, v{a0}, {sp(sMask+2*g)}")
    SCALE = f32hex(192 ** -0.5)
    def kfinish():
        t, u, w_ = T[0], T[1], T[2]
        rne(t, vC)
        a(f"v_mul_f32 v{t}, {SCALE}, v{t}")
        rne(t, t)
        a(f"ds_write_b32 v{vSC}, v{t} offset:{L_SC}")
        a(f"v_add_u32 v{vSC}, 256, v{vSC}")
        a(f"v_max_f32 v{u}, v{vMX}, v{t}")
        a(f"v_sub_f32 v{w_}, v{vMX}, v{u}"); a(f"v_sub_f32 v{t}, v{t}, v{u}")
        a(f"v_mul_f32 v{w_}, {f32hex(LOG2E)}, v{w_}"); a(f"v_mul_f32 v{t}, {f32hex(LOG2E)}, v{t}")
        a(f"v_exp_f32 v{w_}, v{w_}"); a(f"v_exp_f32 v{t}, v{t}")
        a(f"v_mov_b32 v{vMX}, v{u}")
        a(f"v_fma_f32 v{vLS}, v{vLS}, v{w_}, v{t}")
    kinit()
    stamp(3)
    nx = PK
    for g in range(16):
        while nx <= g + 1:
            issue(nx); nx += 1
        wait_for(f"k{g}")
        while nx <= g + 2:
            issue(nx); nx += 1
        kcompute(kslot(g), g % 8)
        if g < 2 and nx < 16 and kslot(nx) == kslot(g):
            issue(nx); nx += 1
        if g % 8 == 7:
            kfinish(); progress()
    assert nx == 18, nx
    flag_read()
    a(f"s_mov_b32 s{sIt}, 2")
    def switch_to_V():
        n = newlab()
        a(f"s_cmp_eq_u32 s{sIt}, {NIT-1}")
        a(f"s_cbranch_scc0 L_nosw{n}")
        a(f"s_mul_i32 s{sT0}, s{sHead}, {HB}")
        a(f"s_add_u32 s{STR}, s{pV}, s{sT0}"); a(f"s_addc_u32 s{STR+1}, s{pV+1}, 0")
        a(f"s_mul_i32 s{sOff}, s{sWI}, 3072")
        a.label(f"L_nosw{n}")
    def switch_to_nextK():
        n = newlab()
        a(f"s_cmp_eq_u32 s{sIt}, {NIT-1}")
        a(f"s_cbranch_scc0 L_nosw{n}")
        if nph > 1:
            a(f"s_add_u32 s{sT0}, s{sHead}, {H}")
            a(f"s_mul_i32 s{sT0}, s{sT0}, {HB}")
            a(f"s_add_u32 s{STR}, s{pK}, s{sT0}"); a(f"s_addc_u32 s{STR+1}, s{pK+1}, 0")
            a(f"s_mul_i32 s{sOff}, s{sWI}, 3072")
            a(f"s_cmp_eq_u32 s{sPh}, {nph-1}")
            a(f"s_cselect_b32 s{STR+2}, 0, {HB}")
            a(f"s_cselect_b32 s{STR}, s{pK}, s{STR}"); a(f"s_cselect_b32 s{STR+1}, s{pK+1}, s{STR+1}")
        else:
            a(f"s_mov_b32 s{STR+2}, 0")
        a.label(f"L_nosw{n}")
    def steady_issue(slot):
        for t in range(3):
            a(f"buffer_load_dwordx4 {ring(slot,t)}, v{vSA}, {srd(STR)}, s{sOff} offen offset:{128*t} {pol}")
        a(f"s_add_u32 s{sOff}, s{sOff}, {STRIDE}")
    def controlled_loop(tag, compute, switch, mid):
        if ctl:
            a("s_waitcnt lgkmcnt(0)"); a(f"v_readfirstlane_b32 s{sBst}, v{vFL}")
            a(f"s_cmp_eq_u32 s{sIt}, {NIT-1}"); a(f"s_cselect_b32 s{sBst}, 0, s{sBst}")
            a(f"s_cmp_eq_u32 s{sBst}, 1"); a(f"s_cbranch_scc1 L_{tag}boost")
            a(f"s_cmp_eq_u32 s{sPrv}, 0"); a(f"s_cbranch_scc1 L_{tag}n0")
            a("s_waitcnt vmcnt(6)"); a(f"s_branch L_{tag}n1")
            a.label(f"L_{tag}n0")
        a("s_waitcnt vmcnt(3)"); steady_issue(2)
        if ctl: a.label(f"L_{tag}n1")
        compute(0)
        for g in range(1, 8):
            a("s_waitcnt vmcnt(3)")
            if g == 6: switch()
            steady_issue((g + 2) % 8)
            if g == 4: flag_read()
            compute(g)
        if ctl:
            a(f"s_mov_b32 s{sPrv}, 0"); a(f"s_branch L_{tag}next")
            a.label(f"L_{tag}boost")
            a(f"s_cmp_eq_u32 s{sPrv}, 0"); a(f"s_cbranch_scc0 L_{tag}b0")
            steady_issue(2)
            a.label(f"L_{tag}b0")
            for g in range(8):
                a("s_waitcnt vmcnt(6)")
                steady_issue((g + 3) % 8)
                if g == 4: flag_read()
                compute(g)
            a(f"s_mov_b32 s{sPrv}, 1")
            a.label(f"L_{tag}next")
    a.label("L_kloop")
    controlled_loop("k", lambda g: kcompute(RING + 12 * g, g), switch_to_V, None)
    kfinish(); progress()
    a(f"s_add_u32 s{sIt}, s{sIt}, 1")
    a(f"s_cmp_lt_u32 s{sIt}, {NIT}")
    a("s_cbranch_scc1 L_kloop")
    stamp(4)

    a(f"v_mov_b32 v{T[2]}, v{vMX}")
    allreduce("v_max_f32", vMX, T[0])
    a(f"v_sub_f32 v{T[2]}, v{T[2]}, v{vMX}"); a(f"v_mul_f32 v{T[2]}, {f32hex(LOG2E)}, v{T[2]}"); a(f"v_exp_f32 v{T[2]}, v{T[2]}")
    a(f"v_mul_f32 v{vLS}, v{vLS}, v{T[2]}")
    allreduce("v_add_f32", vLS, T[0])
    MLQ = vA
    a(f"v_mov_b32 v{MLQ}, v{vMX}"); a(f"v_mov_b32 v{MLQ+1}, v{vLS}"); a(f"v_mov_b32 v{MLQ+2}, 0"); a(f"v_mov_b32 v{MLQ+3}, 0")
    tag4(MLQ)
    a(f"s_lshl_b32 s{sT0}, s{sHead}, 11"); a(f"s_lshl_b32 s{sT1}, s{sWI}, 4"); a(f"s_add_u32 s{sT0}, s{sT0}, s{sT1}"); a(f"s_add_u32 s{sT0}, s{sT0}, {ML}")
    a(f"v_mov_b32 v{T[0]}, 0")
    set_exec(1)
    pub_store(vr(MLQ,4), T[0], sT0)
    set_exec(-1)
    stamp(5)
    for i in range(12): a(f"v_mov_b32 v{vACC+i}, 0")
    score_addr()
    a("s_waitcnt lgkmcnt(0)")
    a(f"ds_read_b32 v{vPN}, v{vSC} offset:{L_SC}")
    def vcompute(slot, g):
        a(f"v_mov_b32_dpp v{vBC}, v{vP} row_newbcast:{g} row_mask:0xf bank_mask:0x3")
        a(f"v_mov_b32_dpp v{vBC}, v{vP} row_newbcast:{8+g} row_mask:0xf bank_mask:0xc")
        a_operand(vBC)
        for t in range(3):
            a(f"v_mfma_f32_16x16x32_bf16 {vr(vACC+4*t,4)}, {vr(vA,4)}, {ring(slot,t)}, {vr(vACC+4*t,4)}")
    def next_p():
        a("s_waitcnt lgkmcnt(0)")
        a(f"v_sub_f32 v{vP}, v{vPN}, v{vMX}")
        a(f"v_add_u32 v{vSC}, 256, v{vSC}")
        a(f"ds_read_b32 v{vPN}, v{vSC} offset:{L_SC}")
        a(f"v_mul_f32 v{vP}, {f32hex(LOG2E)}, v{vP}")
        a(f"v_exp_f32 v{vP}, v{vP}")
        a(f"v_cvt_pk_bf16_f32 v{vP}, v{vP}, v{vP}")
    a(f"s_mov_b32 s{sIt}, 0")
    if nph > 1:
        a(f"s_cmp_lg_u32 s{sPh}, {nph-1}"); a("s_cbranch_scc1 L_vloop")
    a(f"s_cmp_eq_u32 s{sRole}, 1"); a("s_cbranch_scc1 L_wF")
    a(f"s_cmp_eq_u32 s{sRole}, 2"); a("s_cbranch_scc1 L_wR")
    a(f"s_mul_i32 s{sT0}, s{sOH}, 48"); a(f"s_mul_i32 s{sT1}, s{sW}, 12"); a(f"s_add_u32 s{sT0}, s{sT0}, s{sT1}")
    a(f"v_lshrrev_b32 v{T[0]}, 4, v{vL}"); a(f"v_add_u32 v{T[0]}, s{sT0}, v{T[0]}")
    a(f"v_mul_u32_u24 v{T[0]}, 1280, v{T[0]}")
    a(f"v_and_b32 v{T[1]}, 15, v{vL}"); a(f"v_lshlrev_b32 v{T[1]}, 4, v{T[1]}"); a(f"v_add_u32 v{T[0]}, v{T[0]}, v{T[1]}")
    a(f"v_mov_b32 v{T[1]}, s{pWO+1}")
    a(f"v_add_co_u32 v{WA}, vcc, s{pWO}, v{T[0]}"); a(f"v_addc_co_u32 v{WA+1}, vcc, 0, v{T[1]}, vcc")
    a(f"v_add_co_u32 v{WB}, vcc, 10240, v{WA}"); a(f"v_addc_co_u32 v{WB+1}, vcc, 0, v{WA+1}, vcc")
    a(f"s_mov_b32 s{sInc}, 256"); a(f"s_mov_b32 s{sInc4}, 4096")
    a("s_branch L_wdone")
    a.label("L_wF")
    a(f"v_lshrrev_b32 v{T[0]}, 2, v{vL}"); a(f"s_mul_i32 s{sT0}, s{sW}, 160"); a(f"v_add_u32 v{T[0]}, s{sT0}, v{T[0]}")
    a(f"v_mul_u32_u24 v{T[0]}, 3072, v{T[0]}")
    a(f"v_and_b32 v{T[1]}, 1, v{vL}"); a(f"v_lshlrev_b32 v{T[1]}, 4, v{T[1]}"); a(f"v_add_u32 v{T[0]}, v{T[0]}, v{T[1]}")
    a(f"s_lshl_b32 s{sT0}, s{sRI}, 5"); a(f"v_add_u32 v{T[0]}, s{sT0}, v{T[0]}")
    a(f"v_mov_b32 v{T[2]}, s{pWG}"); a(f"v_mov_b32 v{T[3]}, s{pWG+1}")
    a(f"v_mov_b32 v{T[4]}, s{pWU}"); a(f"v_mov_b32 v{T[5]}, s{pWU+1}")
    a(f"v_and_b32 v{T[1]}, 2, v{vL}"); a(f"v_cmp_ne_u32 vcc, 0, v{T[1]}")
    a(f"v_cndmask_b32 v{T[2]}, v{T[2]}, v{T[4]}, vcc"); a(f"v_cndmask_b32 v{T[3]}, v{T[3]}, v{T[5]}, vcc")
    a(f"v_add_co_u32 v{WA}, vcc, v{T[2]}, v{T[0]}"); a(f"v_addc_co_u32 v{WA+1}, vcc, 0, v{T[3]}, vcc")
    a(f"s_lshl_b32 s{sT0}, s{sRI}, 4"); a(f"s_lshl_b32 s{sT1}, s{sW}, 2"); a(f"s_add_u32 s{sT0}, s{sT0}, s{sT1}")
    a(f"v_lshrrev_b32 v{T[0]}, 4, v{vL}"); a(f"v_add_u32 v{T[0]}, s{sT0}, v{T[0]}")
    a(f"v_mul_u32_u24 v{T[0]}, 1280, v{T[0]}")
    a(f"v_and_b32 v{T[1]}, 15, v{vL}"); a(f"v_lshlrev_b32 v{T[1]}, 4, v{T[1]}"); a(f"v_add_u32 v{T[0]}, v{T[0]}, v{T[1]}")
    a(f"v_mov_b32 v{T[1]}, s{pWD+1}")
    a(f"v_add_co_u32 v{WB}, vcc, s{pWD}, v{T[0]}"); a(f"v_addc_co_u32 v{WB+1}, vcc, 0, v{T[1]}, vcc")
    a(f"s_mov_b32 s{sInc}, {16*3072}"); a(f"s_mov_b32 s{sInc4}, {16*3072}")
    a("s_branch L_wdone")
    a.label("L_wR")
    a(f"v_mov_b32 v{WA}, s{pWO}"); a(f"v_mov_b32 v{WA+1}, s{pWO+1}"); a(f"v_mov_b32 v{WB}, s{pWO}"); a(f"v_mov_b32 v{WB+1}, s{pWO+1}")
    a(f"s_mov_b32 s{sInc}, 0"); a(f"s_mov_b32 s{sInc4}, 0")
    a.label("L_wdone")
    def wload(k):
        if k < 10:
            a(f"global_load_dwordx4 {vr(W + 4*k, 4)}, {vr(WA,2)}, off {wpol}")
            if k < 9:
                a(f"v_add_co_u32 v{WA}, vcc, s{sInc4 if k == 4 else sInc}, v{WA}"); a(f"v_addc_co_u32 v{WA+1}, vcc, 0, v{WA+1}, vcc")
        else:
            a(f"global_load_dwordx4 {vr(W + 4*k, 4)}, {vr(WB,2)}, off offset:{256*(k-10)} {wpol}")
        vq.append(f"w{k}")
    vq[:] = ["v0"] * 3 + ["v1"] * 3 + ["ml"]
    for it in range(2):
        next_p()
        for g in range(8):
            n = 8 * it + g
            wait_for(f"v{n}")
            steady_issue((g + 2) % 8); vq.extend([f"v{n+2}"] * 3)
            if n < 15: wload(n)
            vcompute(g, g)
        progress()
    flag_read()
    a(f"s_mov_b32 s{sIt}, 2")
    a.label("L_vloop")
    MLR = vX
    def ml_issue():
        a(f"s_lshl_b32 s{sT0}, s{sHead}, 11"); a(f"s_add_u32 s{sT0}, s{sT0}, {ML}")
        a(f"v_min_u32 v{T[1]}, {NWH-1}, v{vL}"); a(f"v_lshlrev_b32 v{T[1]}, 4, v{T[1]}")
        a(f"buffer_load_dwordx4 {vr(MLR,4)}, v{T[1]}, {srd(WSR)}, s{sT0} offen sc1")
        if NWH > 64:
            a(f"buffer_load_dwordx4 {vr(MLR+4,4)}, v{T[1]}, {srd(WSR)}, s{sT0} offen offset:1024 sc1")
    def ml_check():
        check4(MLR, T[0], T[2], True)
        if NWH > 64: check4(MLR + 4, T[0], T[2], False)
    a(f"s_cmp_eq_u32 s{sIt}, {NIT-2}"); a("s_cbranch_scc0 L_vh1")
    ml_issue()
    if codepf:
        a(f"s_getpc_b64 {sp(58)}")
        a.label("L_pc2")
        a(f"s_lshr_b32 s{sT3}, s2, 3"); a(f"s_lshl_b32 s{sT3}, s{sT3}, 9")
        a(f"v_and_b32 v{T[1]}, 7, v{vL}"); a(f"v_lshlrev_b32 v{T[1]}, 6, v{T[1]}"); a(f"v_add_u32 v{T[1]}, s{sT3}, v{T[1]}")
        a(f"v_add_u32 v{T[1]}, L_tailcode-L_pc2, v{T[1]}")
        a(f"v_min_u32 v{T[1]}, L_codeend-L_pc2-4, v{T[1]}")
        a(f"global_load_dword v{T[2]}, v{T[1]}, {sp(58)}")
    a.label("L_vh1")
    a(f"s_cmp_eq_u32 s{sIt}, {NIT-1}"); a("s_cbranch_scc0 L_vh2")
    a.label("L_tailcode")
    ml_check()
    a(f"s_cmp_eq_u64 {sp(sBad)}, 0"); a("s_cbranch_scc1 L_mlok")
    poll(ml_issue, ml_check)
    a.label("L_mlok")
    mm, ll = MLR, MLR + 1
    if NWH > 64: a(f"v_max_f32 v{T[0]}, v{mm}, v{MLR+4}")
    else: a(f"v_mov_b32 v{T[0]}, v{mm}")
    a(f"v_and_b32 v{T[0]}, 0xffffff00, v{T[0]}")
    allreduce("v_max_f32", T[0], T[1])
    a(f"v_and_b32 v{mm}, 0xffffff00, v{mm}")
    a(f"v_sub_f32 v{T[2]}, v{mm}, v{T[0]}"); a(f"v_mul_f32 v{T[2]}, {f32hex(LOG2E)}, v{T[2]}"); a(f"v_exp_f32 v{T[2]}, v{T[2]}")
    a(f"v_mul_f32 v{T[2]}, v{T[2]}, v{ll}")
    if NWH > 64:
        a(f"v_and_b32 v{MLR+4}, 0xffffff00, v{MLR+4}")
        a(f"v_sub_f32 v{T[3]}, v{MLR+4}, v{T[0]}"); a(f"v_mul_f32 v{T[3]}, {f32hex(LOG2E)}, v{T[3]}"); a(f"v_exp_f32 v{T[3]}, v{T[3]}")
        a(f"v_fmac_f32 v{T[2]}, v{T[3]}, v{MLR+5}")
    elif NWH < 64:
        a(f"v_cmp_gt_u32 vcc, {NWH}, v{vL}"); a(f"v_cndmask_b32 v{T[2]}, 0, v{T[2]}, vcc")
    allreduce("v_add_f32", T[2], T[1])
    a(f"v_sub_f32 v{T[3]}, v{vMX}, v{T[0]}"); a(f"v_mul_f32 v{T[3]}, {f32hex(LOG2E)}, v{T[3]}"); a(f"v_exp_f32 v{T[3]}, v{T[3]}")
    a(f"v_rcp_f32 v{T[2]}, v{T[2]}")
    a(f"v_mul_f32 v{vAL}, v{T[3]}, v{T[2]}")
    red_addr()
    a(f"v_mul_u32_u24 v{T[1]}, 43691, v{vL}"); a(f"v_lshrrev_b32 v{T[1]}, 19, v{T[1]}")
    a(f"v_mul_u32_u24 v{T[2]}, 12, v{T[1]}"); a(f"v_sub_u32 v{T[2]}, v{vL}, v{T[2]}")
    a(f"v_mul_u32_u24 v{T[1]}, {WPH*192}, v{T[1]}"); a(f"v_lshlrev_b32 v{T[2]}, 4, v{T[2]}"); a(f"v_add_u32 v{vOPA}, v{T[1]}, v{T[2]}")
    a(f"s_mul_i32 s{sT0}, s{sHead}, {4*WPH*192}"); a(f"s_mul_i32 s{sT1}, s{sJ}, 192"); a(f"s_add_u32 s{sT0}, s{sT0}, s{sT1}"); a(f"s_add_u32 s{sU2}, s{sT0}, {OP}")
    P = vQ
    if nph > 1:
        a(f"s_cmp_lg_u32 s{sPh}, {nph-1}"); a("s_cbranch_scc1 L_vh2")
    a(f"v_lshrrev_b32 v{T[0]}, 5, v{vL}"); a(f"v_lshlrev_b32 v{T[0]}, 8, v{T[0]}")
    a(f"v_and_b32 v{T[1]}, 7, v{vL}"); a(f"v_lshlrev_b32 v{T[1]}, 5, v{T[1]}"); a(f"v_add_u32 v{T[0]}, v{T[0]}, v{T[1]}")
    a(f"v_and_b32 v{T[1]}, 16, v{vL}"); a(f"v_add_u32 v{T[0]}, v{T[0]}, v{T[1]}")
    a(f"s_mul_i32 s{sT0}, s{sW}, 2560"); a(f"v_add_u32 v{P}, s{sT0}, v{T[0]}")
    a(f"s_mov_b32 s{sT0}, {128*128}"); a(f"s_cmp_eq_u32 s{sRole}, 1"); a(f"s_cselect_b32 s{sT0}, {96*128}, s{sT0}")
    a(f"v_lshrrev_b32 v{T[1]}, 3, v0"); a(f"v_mul_u32_u24 v{T[1]}, s{sT0}, v{T[1]}")
    a(f"v_and_b32 v{T[2]}, 7, v0"); a(f"v_lshlrev_b32 v{T[2]}, 4, v{T[2]}"); a(f"v_add_u32 v{P+1}, v{T[1]}, v{T[2]}")
    for i in range(20): a(f"v_mov_b32 v{vX+i}, 0")
    a.label("L_vh2")
    next_p()
    controlled_loop("v", lambda g: vcompute(g, g), switch_to_nextK, None)
    progress()
    a(f"s_add_u32 s{sIt}, s{sIt}, 1")
    a(f"s_cmp_lt_u32 s{sIt}, {NIT}")
    a("s_cbranch_scc1 L_vloop")

    stamp(6)
    for i in range(12): a(f"v_mul_f32 v{vACC+i}, v{vACC+i}, v{vAL}")
    if nph > 1:
        a(f"s_cmp_eq_u32 s{sPh}, {nph-1}"); a("s_cbranch_scc1 L_lastphase")
        def lds_wait_ge(off, sreg):
            n = newlab()
            a(f"s_mov_b32 s{sSpin}, {spin}")
            a.label(f"L_lw{n}")
            a(f"ds_read_b32 v{T[1]}, v{vZ} offset:{L_CTL + off}"); a("s_waitcnt lgkmcnt(0)"); a(f"v_readfirstlane_b32 s{sT0}, v{T[1]}")
            a(f"s_cmp_ge_u32 s{sT0}, s{sreg}"); a(f"s_cbranch_scc1 L_lk{n}")
            a(f"s_sub_u32 s{sSpin}, s{sSpin}, 1"); a(f"s_cmp_eq_u32 s{sSpin}, 0"); a("s_cbranch_scc1 L_abort")
            a(f"s_branch L_lw{n}")
            a.label(f"L_lk{n}")
        lds_wait_ge(12, sPh)
        set_exec(USEFUL)
        for t in range(3): a(f"ds_write_b128 v{vRA}, {vr(vACC+4*t,4)} offset:{L_REDH + 256*t}")
        set_exec(-1)
        a(f"s_add_u32 s{sPh}, s{sPh}, 1"); a(f"s_add_u32 s{sHead}, s{sHead}, {H}")
        a(f"s_lshl_b32 s{sT1}, s{sW}, 2"); a(f"v_mov_b32 v{T[2]}, s{sT1}"); a(f"v_mov_b32 v{T[3]}, s{sPh}")
        a("s_waitcnt lgkmcnt(0)")
        a(f"ds_write_b32 v{T[2]}, v{T[3]} offset:{L_CTL + 16}")
        a(f"s_add_u32 s{sT2}, s{sPh}, 1")
        lds_wait_ge(32, sT2)
        load_q(); kinit()
        a(f"s_mov_b32 s{sIt}, 0")
        a("s_branch L_kloop")
        a.label("L_lastphase")
    red_write()
    a("s_waitcnt lgkmcnt(0)"); a("s_barrier")
    a(f"s_cmp_lg_u32 s{sW}, 0"); a("s_cbranch_scc1 L_pubdone")
    SB = RING + 24
    a(f"v_lshlrev_b32 v{T[0]}, 4, v{vL}")
    set_exec("0x0000ffffffffffff")
    for s in range(8): a(f"ds_read_b128 {vr(SB+4*s,4)}, v{T[0]} offset:{L_RED + 768*s}")
    a("s_waitcnt lgkmcnt(4)")
    sum_quads(SB, [SB + 4, SB + 8, SB + 12])
    a("s_waitcnt lgkmcnt(0)")
    sum_quads(SB + 16, [SB + 20, SB + 24, SB + 28])
    sum_quads(SB, [SB + 16])
    tag4(SB)
    pub_store(vr(SB,4), vOPA, sU2)
    if stage1:
        a(f"s_and_b32 s{sT0}, s{sNon}, 0xffffff00"); a(f"s_or_b32 s{sT0}, s{sT0}, 255"); a(f"v_mov_b32 v{T[1]}, s{sT0}")
        a(f"s_and_b32 s{sT0}, s2, 7"); a(f"s_lshl_b32 s{sT0}, s{sT0}, 7"); a(f"s_lshr_b32 s{sT1}, s2, 3"); a(f"s_lshl_b32 s{sT1}, s{sT1}, 2")
        a(f"s_add_u32 s{sT0}, s{sT0}, s{sT1}"); a(f"s_add_u32 s{sT0}, s{sT0}, {PROG}")
        set_exec(1)
        a(f"buffer_store_dword v{T[1]}, v{vZ}, {srd(WSR)}, s{sT0} offen")
    set_exec(-1)
    a.label("L_pubdone")
    def class_wait():
        if not stage1: return
        n = newlab()
        a(f"s_and_b32 s{sT0}, s{sNon}, 0xffffff00"); a(f"s_or_b32 s{sT0}, s{sT0}, 255"); a(f"v_mov_b32 v{T[1]}, s{sT0}")
        a(f"s_and_b32 s{sT0}, s2, 7"); a(f"s_lshl_b32 s{sT0}, s{sT0}, 7"); a(f"s_add_u32 s{sT0}, s{sT0}, {PROG}")
        a(f"v_and_b32 v{T[0]}, 31, v{vL}"); a(f"v_lshlrev_b32 v{T[0]}, 2, v{T[0]}")
        a(f"s_mov_b32 s{sSpin}, {stage1}")
        a.label(f"L_cw{n}")
        a(f"buffer_load_dword v{T[2]}, v{T[0]}, {srd(WSR)}, s{sT0} offen sc1")
        a(f"s_sub_u32 s{sSpin}, s{sSpin}, 1"); a(f"s_cmp_eq_u32 s{sSpin}, 0"); a(f"s_cbranch_scc1 L_cwd{n}")
        a("s_waitcnt vmcnt(0)")
        a(f"v_cmp_ne_u32 vcc, v{T[2]}, v{T[1]}"); a("s_cbranch_vccnz L_cw%d" % n)
        a.label(f"L_cwd{n}")
        a("s_waitcnt vmcnt(0)")
    a.label("L_tail")
    stamp(7)
    RB = RING + 60
    a(f"s_cmp_eq_u32 s{sRole}, 1"); a("s_cbranch_scc1 L_roleF")
    a(f"s_cmp_eq_u32 s{sRole}, 2"); a("s_cbranch_scc1 L_roleR")

    def rowproj(ngroups, wbase, srcs, dstbase):
        for gi in range(ngroups):
            a_operand(srcs[gi])
            for cb in range(5):
                a(f"v_mfma_f32_16x16x32_bf16 {vr(vX+4*cb,4)}, {vr(vA,4)}, {vr(wbase + 4*(5*gi+cb),4)}, {vr(vX+4*cb,4)}")
        set_exec(USEFUL)
        for cb in range(5): a(f"ds_write_b128 v{P}, {vr(vX+4*cb,4)} offset:{L_RED2 + 512*cb}")
        set_exec(-1)
        a(f"v_lshlrev_b32 v{T[0]}, 4, v0")
        a(f"s_lshl_b32 s{sT0}, s{sRI}, 7"); a(f"s_add_u32 s{sT0}, s{sT0}, {dstbase}")
        a("s_waitcnt lgkmcnt(0)"); a("s_barrier")
        n = newlab()
        a(f"v_cmp_gt_u32 vcc, 160, v0"); a(f"s_and_saveexec_b64 {sp(sE)}, vcc"); a(f"s_cbranch_execz L_rpd{n}")
        for s in range(4): a(f"ds_read_b128 {vr(vX+4*s,4)}, v{T[0]} offset:{L_RED2 + 2560*s}")
        a("s_waitcnt lgkmcnt(0)")
        sum_quads(vX, [vX + 4]); sum_quads(vX + 8, [vX + 12]); sum_quads(vX, [vX + 8])
        tag4(vX)
        a(f"buffer_store_dwordx4 {vr(vX,4)}, v{P+1}, {srd(WSR)}, s{sT0} offen sc1")
        a.label(f"L_rpd{n}")
        a(f"s_mov_b64 exec, {sp(sE)}")

    NL = 2 if WPH == 32 else 1
    a(f"s_mul_i32 s{sT0}, s{sOH}, {WPH*192}"); a(f"s_add_u32 s{sU}, s{sT0}, {OP}")
    a(f"s_mul_i32 s{sT1}, s{sW}, 48"); a(f"s_add_u32 s{sU}, s{sU}, s{sT1}")
    a(f"v_lshrrev_b32 v{T[3]}, 2, v{vL}"); a(f"v_and_b32 v{T[3]}, {min(WPH,16)-1}, v{T[3]}"); a(f"v_mul_u32_u24 v{T[3]}, 192, v{T[3]}")
    a(f"v_and_b32 v{T[4]}, 3, v{vL}"); a(f"v_min_u32 v{T[4]}, 2, v{T[4]}"); a(f"v_lshlrev_b32 v{T[4]}, 4, v{T[4]}"); a(f"v_add_u32 v{T[3]}, v{T[3]}, v{T[4]}")
    def o_iss():
        for k in range(NL):
            a(f"buffer_load_dwordx4 {vr(RB+4*k,4)}, v{T[3]}, {srd(WSR)}, s{sU} offen offset:{3072*k} sc1")
    def o_chk():
        for k in range(NL): check4(RB + 4*k, T[0], T[1], k == 0)
    poll(o_iss, o_chk)
    stamp(8)
    if NL == 2: sum_quads(RB, [RB + 4])
    for m in ("row_ror:4", "row_ror:8"):
        for i in range(4): dpp("v_add_f32", RB + i, m)
    o4 = [("v_add_f32", RB + i) for i in range(4)]
    swap_reduce(o4, T[0:4], "v_permlane16_swap_b32")
    if WPH >= 16: swap_reduce(o4, T[0:4], "v_permlane32_swap_b32")
    for g in range(1, 4): a(f"v_cndmask_b32 v{RB}, v{RB}, v{RB+g}, {sp(sRow+2*(g-1))}")
    a(f"v_cvt_pk_bf16_f32 v{RB}, v{RB}, v{RB}")
    for gi in range(3): a(f"v_mov_b32_dpp v{RB+8+gi}, v{RB} quad_perm:[{gi},{gi},{gi},{gi}] row_mask:0xf bank_mask:0xf")
    rowproj(3, W, [RB+8, RB+9, RB+10], ZZ)
    dump_stamps()
    a("s_branch L_end")

    a.label("L_roleF")
    HQ = RB
    PK = RB + 16
    class_wait()
    a(f"v_min_u32 v{T[5]}, 39, v{vL}"); a(f"s_mul_i32 s{sT0}, s{sW}, 40"); a(f"v_add_u32 v{T[5]}, s{sT0}, v{T[5]}"); a(f"v_lshlrev_b32 v{T[5]}, 4, v{T[5]}")
    a(f"s_and_b32 s{sU}, s2, 7"); a(f"s_lshl_b32 s{sU}, s{sU}, 12"); a(f"s_add_u32 s{sU}, s{sU}, {HH}")
    def f_iss():
        a(f"buffer_load_dwordx4 {vr(HQ,4)}, v{T[5]}, {srd(WSR)}, s{sU} offen sc1")
    def f_chk():
        check4(HQ, T[0], T[1], True)
    FA = RING + 24
    FW = RB + 22
    DA = vACC
    def f_pre():
        a(f"s_lshl_b32 s{sT0}, s{sW}, 12"); a(f"s_add_u32 s{sT0}, s{sT0}, {L_SC}")
        a(f"v_lshlrev_b32 v{FW}, 6, v{vL}"); a(f"v_add_u32 v{FW}, s{sT0}, v{FW}")
        a(f"v_mov_b32 v{T[0]}, 0"); a(f"v_mov_b32 v{T[1]}, s{sT0}")
        a(f"ds_write_b32 v{T[1]}, v{T[0]} offset:2560")
        a(f"v_lshrrev_b32 v{FW+1}, 2, v{vL}"); a(f"v_lshlrev_b32 v{FW+1}, 4, v{FW+1}")
        a(f"v_and_b32 v{T[0]}, 3, v{vL}")
        a(f"v_mov_b32 v{T[1]}, 0x08000c04"); a(f"v_lshlrev_b32 v{T[0]}, 3, v{T[0]}"); a(f"v_lshrrev_b32 v{T[1]}, v{T[0]}, v{T[1]}"); a(f"v_and_b32 v{T[1]}, 0xff, v{T[1]}")
        a(f"v_add3_u32 v{FW+1}, v{FW+1}, v{T[1]}, s{sT0}")
        a(f"v_add_u32 v{FW+2}, 1024, v{FW+1}"); a(f"v_add_u32 v{FW+3}, 2048, v{FW+1}")
        a(f"v_lshrrev_b32 v{T[0]}, 4, v{vL}"); a(f"s_lshl_b32 s{sT0}, s{sW}, 2"); a(f"v_add_u32 v{T[0]}, s{sT0}, v{T[0]}"); a(f"v_lshlrev_b32 v{T[0]}, 7, v{T[0]}")
        a(f"v_and_b32 v{T[1]}, 3, v{vL}"); a(f"v_lshlrev_b32 v{T[1]}, 5, v{T[1]}"); a(f"v_add_u32 v{FW+4}, v{T[0]}, v{T[1]}")
        a(f"v_and_b32 v{T[0]}, 31, v{vL}"); a(f"v_lshlrev_b32 v{T[0]}, 2, v{T[0]}")
        a(f"v_lshrrev_b32 v{T[1]}, 5, v{vL}"); a(f"v_lshlrev_b32 v{T[1]}, 10, v{T[1]}"); a(f"v_add_u32 v{FW+5}, v{T[0]}, v{T[1]}")
        a(f"v_lshrrev_b32 v{T[0]}, 4, v{vL}"); a(f"s_lshl_b32 s{sT0}, s{sW}, 2"); a(f"v_add_u32 v{T[0]}, s{sT0}, v{T[0]}"); a(f"v_lshlrev_b32 v{FW+6}, 2, v{T[0]}")
        for i in range(8): a(f"v_mov_b32 v{DA+i}, 0")
        a(f"v_mov_b32 v{FW+7}, 0x3f803f80")
        a(f"v_cmp_gt_u32 {sp(sE)}, 40, v{vL}")
        a(f"s_lshl_b32 s{sT0}, s{sW}, 3"); a(f"v_mov_b32 v{PK+2}, s{sT0}")
    poll(f_iss, f_chk, pre=f_pre)
    stamp(10)
    a(f"v_perm_b32 v{PK}, v{HQ+1}, v{HQ}, s{sPkSel}"); a(f"v_perm_b32 v{PK+1}, v{HQ+3}, v{HQ+2}, s{sPkSel}")
    a(f"v_cndmask_b32 v{PK}, 0, v{PK}, {sp(sE)}"); a(f"v_cndmask_b32 v{PK+1}, 0, v{PK+1}, {sp(sE)}")
    t0, t1, t2, t3, t4 = T[0:5]
    a(f"v_dot2_f32_bf16 v{t0}, v{PK}, v{FW+7}, 0"); a(f"v_dot2_f32_bf16 v{t1}, v{PK}, v{PK}, 0")
    a(f"v_dot2_f32_bf16 v{t0}, v{PK+1}, v{FW+7}, v{t0}"); a(f"v_dot2_f32_bf16 v{t1}, v{PK+1}, v{PK+1}, v{t1}")
    for i in range(4): a(f"v_and_b32 v{HQ+12+i}, 0xffff0000, v{HQ+i}")
    assert t1 == t0 + 1 and t0 % 2 == 1
    allreduce_n([("v_add_f32", t0), ("v_add_f32", t1)], [t2, t3])
    a(f"v_mov_b32 v{HQ+4}, v{t0}"); a(f"v_mov_b32 v{HQ+5}, v{t1}")
    set_exec(1)
    a(f"ds_write_b64 v{PK+2}, {vr(HQ+4,2)} offset:{L_STAT}")
    set_exec(-1)
    a("s_waitcnt lgkmcnt(0)"); a("s_barrier")
    a(f"ds_read_b128 {vr(HQ+4,4)}, v{vZ} offset:{L_STAT}"); a(f"ds_read_b128 {vr(HQ+8,4)}, v{vZ} offset:{L_STAT+16}")
    a("s_waitcnt lgkmcnt(0)")
    pkadd(HQ + 4, HQ + 4, HQ + 6); pkadd(HQ + 8, HQ + 8, HQ + 10); pkadd(HQ + 4, HQ + 4, HQ + 8)
    a(f"v_mov_b32 v{t0}, v{HQ+4}"); a(f"v_mov_b32 v{t1}, v{HQ+5}")
    ln_consts(t0, t1, t2)
    a(f"v_rcp_f32 v{t4}, v{t1}")
    O4 = HQ + 12
    for i in range(4): a(f"v_sub_f32 v{O4+i}, v{O4+i}, v{t0}")
    a(f"v_cvt_pk_bf16_f32 v{t2}, v{O4}, v{O4+1}"); a(f"v_cvt_pk_bf16_f32 v{t3}, v{O4+2}, v{O4+3}")
    a(f"v_lshlrev_b32 v{O4}, 16, v{t2}"); a(f"v_and_b32 v{O4+1}, 0xffff0000, v{t2}"); a(f"v_lshlrev_b32 v{O4+2}, 16, v{t3}"); a(f"v_and_b32 v{O4+3}, 0xffff0000, v{t3}")
    for i in range(4): a(f"v_mul_f32 v{O4+i}, v{O4+i}, v{t4}")
    a(f"v_cvt_pk_bf16_f32 v{t2}, v{O4}, v{O4+1}"); a(f"v_cvt_pk_bf16_f32 v{t3}, v{O4+2}, v{O4+3}")
    PR = FA
    for r_, (src, hi) in enumerate(((t2, 0), (t2, 1), (t3, 0), (t3, 1))):
        b = PR + 4 * r_
        a(f"v_mov_b32 v{b}, 0"); a(f"v_mov_b32 v{b+2}, 0")
        if hi:
            a(f"v_lshrrev_b32 v{b+1}, 16, v{src}"); a(f"v_and_b32 v{b+3}, 0xffff0000, v{src}")
        else:
            a(f"v_and_b32 v{b+1}, 0xffff, v{src}"); a(f"v_lshlrev_b32 v{b+3}, 16, v{src}")
    set_exec("0x000000ffffffffff")
    for r_ in range(4): a(f"ds_write_b128 v{FW}, {vr(PR+4*r_,4)} offset:{16*r_}")
    set_exec(-1)
    a("s_waitcnt lgkmcnt(0)")
    for k in range(10):
        base = FW + 1 + k // 4
        a(f"ds_read2_b32 {vr(FA+2*k,2)}, v{base} offset0:{(k%4)*64} offset1:{(k%4)*64+1}")
    DB = DA + 4
    for k in range(10):
        a(f"s_waitcnt lgkmcnt({9-k})")
        a(f"v_mfma_f32_4x4x4_16b_bf16 {vr(DA,4)}, {vr(FA+2*k,2)}, {vr(W+4*k,2)}, {vr(DA,4)}")
        a(f"v_mfma_f32_4x4x4_16b_bf16 {vr(DB,4)}, {vr(FA+2*k,2)}, {vr(W+4*k+2,2)}, {vr(DB,4)}")
    for m in ("row_ror:4", "row_ror:8"):
        for i in range(8): dpp("v_add_f32", DA + i, m)
    set_exec("0x000f000f000f000f")
    a(f"ds_write_b128 v{FW+4}, {vr(DA,4)} offset:{L_RED3}")
    a(f"ds_write_b128 v{FW+4}, {vr(DB,4)} offset:{L_RED3+16}")
    set_exec(-1)
    a("s_waitcnt lgkmcnt(0)"); a("s_barrier")
    HR = FA
    for s in range(8): a(f"ds_read_b32 v{HR+s}, v{FW+5} offset:{L_RED3 + 128*s}")
    a("s_waitcnt lgkmcnt(0)")
    for s in range(0, 8, 4): pkadd(HR + s, HR + s, HR + s + 2)
    pkadd(HR, HR, HR + 4)
    a(f"v_add_f32 v{HR}, v{HR}, v{HR+1}")
    a(f"v_mov_b32 v{T[0]}, v{HR}"); a(f"v_permlane32_swap_b32 v{T[0]}, v{HR}"); a(f"v_add_f32 v{HR}, v{HR}, v{T[0]}")
    rne(HR, HR)
    a(f"v_mov_b32 v{T[0]}, v{HR}"); a(f"v_permlane16_swap_b32 v{T[0]}, v{HR}")
    a(f"v_mul_f32 v{T[1]}, {f32hex(-LOG2E)}, v{T[0]}"); a(f"v_min_f32 v{T[1]}, 0x42fc0000, v{T[1]}"); a(f"v_exp_f32 v{T[1]}, v{T[1]}")
    a(f"v_add_f32 v{T[1]}, 1.0, v{T[1]}"); a(f"v_rcp_f32 v{T[2]}, v{T[1]}")
    a(f"v_mul_f32 v{T[3]}, v{T[0]}, v{T[2]}")
    rne(T[3], T[3])
    a(f"v_mul_f32 v{T[3]}, v{T[3]}, v{HR}")
    a(f"v_cvt_pk_bf16_f32 v{T[3]}, v{T[3]}, v{T[3]}")
    a(f"ds_bpermute_b32 v{HR+1}, v{FW+6}, v{T[3]}")
    a("s_waitcnt lgkmcnt(0)")
    stamp(11)
    rowproj(1, W + 40, [HR+1], YY)
    dump_stamps()
    a("s_branch L_end")

    a.label("L_roleR")
    a(f"s_cmp_ge_u32 s{sRI}, 20"); a("s_cbranch_scc1 L_fin")
    RS = RING + 24
    RS = RING + 40
    XS = RB
    WRr = RB + 8
    HV = RB + 16
    HPK = RB + 28
    HS = vQ + 4
    SIG = vQ + 8
    def reduce_parts(base, nsrc, nld, lds, pre=None):
        a(f"s_mul_i32 s{sU}, s{sRI}, {nsrc*128}"); a(f"s_add_u32 s{sU}, s{sU}, {base}")
        a(f"v_lshlrev_b32 v{T[3]}, 4, v0")
        def iss():
            for k in range(nld):
                a(f"s_add_u32 s{sT1}, s{sU}, {4096*k}")
                a(f"buffer_load_dwordx4 {vr(RS+4*k,4)}, v{T[3]}, {srd(WSR)}, s{sT1} offen sc1")
        def chk():
            for k in range(nld): check4(RS + 4*k, T[0], T[1], k == 0)
        def pre2():
            if pre: pre()
            a(f"v_and_b32 v{T[4]}, 7, v{vL}"); a(f"v_lshlrev_b32 v{T[4]}, 4, v{T[4]}")
            a(f"s_lshl_b32 s{sT0}, s{sW}, 7"); a(f"v_add_u32 v{T[5]}, s{sT0}, v{T[4]}")
        poll(iss, chk, pre=pre2)
        if nld == 4:
            sum_quads(RS, [RS + 4]); sum_quads(RS + 8, [RS + 12]); sum_quads(RS, [RS + 8])
        else:
            sum_quads(RS, [RS + 4, RS + 8])
        for i in range(4): dpp("v_add_f32", RS + i, "row_ror:8")
        o4 = [("v_add_f32", RS + i) for i in range(4)]
        swap_reduce(o4, [RS + 4 + i for i in range(4)], "v_permlane16_swap_b32")
        swap_reduce(o4, [RS + 4 + i for i in range(4)], "v_permlane32_swap_b32")
        set_exec("0x00000000000000ff")
        a(f"ds_write_b128 v{T[5]}, {vr(RS,4)} offset:{lds}")
        set_exec(-1)
        a("s_waitcnt lgkmcnt(0)"); a("s_barrier")
        for s in range(4): a(f"ds_read_b128 {vr(RS+4*s,4)}, v{T[4]} offset:{lds + 128*s}")
        a("s_waitcnt lgkmcnt(0)")
        sum_quads(RS, [RS + 4]); sum_quads(RS + 8, [RS + 12]); sum_quads(RS, [RS + 8])
    def r_pre1():
        a(f"v_and_b32 v{T[0]}, 7, v{vL}"); a(f"v_lshlrev_b32 v{T[0]}, 3, v{T[0]}"); a(f"s_lshl_b32 s{sT0}, s{sRI}, 6"); a(f"v_add_u32 v{T[0]}, s{sT0}, v{T[0]}")
        a(f"global_load_dwordx2 {vr(XS+4,2)}, v{T[0]}, {sp(pX)}")
        a(f"v_lshlrev_b32 v{T[1]}, 3, v{vL}"); a(f"v_add_u32 v{T[2]}, 1024, v{T[1]}"); a(f"v_min_u32 v{T[2]}, 1272, v{T[2]}")
        a(f"global_load_dwordx2 {vr(WRr,2)}, v{T[1]}, {sp(pWR)}")
        a(f"global_load_dwordx2 {vr(WRr+2,2)}, v{T[1]}, {sp(pWR)} offset:512")
        a(f"global_load_dwordx2 {vr(WRr+4,2)}, v{T[2]}, {sp(pWR)}")
        a(f"v_lshrrev_b32 v{SIG+2}, 3, v{vL}"); a(f"v_lshlrev_b32 v{SIG+2}, 12, v{SIG+2}")
        a(f"v_and_b32 v{SIG+3}, 7, v{vL}"); a(f"v_lshlrev_b32 v{SIG+3}, 4, v{SIG+3}"); a(f"v_add_u32 v{SIG+2}, v{SIG+2}, v{SIG+3}")
        a(f"s_lshl_b32 s{sU2}, s{sRI}, 7"); a(f"s_add_u32 s{sU2}, s{sU2}, {HH}")
        a(f"global_load_dword v{SIG}, v{T[0]}, {sp(pOUT)}")
    class_wait()
    reduce_parts(ZZ, 128, 4, L_RED3, pre=r_pre1)
    stamp(9)
    for h in range(2):
        a(f"v_lshlrev_b32 v{XS+2*h}, 16, v{XS+4+h}"); a(f"v_and_b32 v{XS+2*h+1}, 0xffff0000, v{XS+4+h}")
    a(f"v_cvt_pk_bf16_f32 v{RS}, v{RS}, v{RS+1}"); a(f"v_cvt_pk_bf16_f32 v{RS+2}, v{RS+2}, v{RS+3}")
    a(f"v_and_b32 v{RS+1}, 0xffff0000, v{RS}"); a(f"v_lshlrev_b32 v{RS}, 16, v{RS}"); a(f"v_and_b32 v{RS+3}, 0xffff0000, v{RS+2}"); a(f"v_lshlrev_b32 v{RS+2}, 16, v{RS+2}")
    pkadd(XS, XS, RS); pkadd(XS + 2, XS + 2, RS + 2)
    a(f"v_cvt_pk_bf16_f32 v{RS}, v{XS}, v{XS+1}"); a(f"v_cvt_pk_bf16_f32 v{RS+2}, v{XS+2}, v{XS+3}")
    a(f"v_and_b32 v{XS+1}, 0xffff0000, v{RS}"); a(f"v_lshlrev_b32 v{XS}, 16, v{RS}"); a(f"v_and_b32 v{XS+3}, 0xffff0000, v{RS+2}"); a(f"v_lshlrev_b32 v{XS+2}, 16, v{RS+2}")
    for i in range(4): a(f"v_perm_b32 v{RS+i}, v{XS+i}, v{vN}, s{sSel+i}")
    a(f"s_cmp_lg_u32 s{sW}, 0"); a("s_cbranch_scc1 L_rnopub")
    a(f"buffer_store_dwordx4 {vr(RS,4)}, v{SIG+2}, {srd(WSR)}, s{sU2} offen sc1")
    a.label("L_rnopub")
    a(f"v_lshlrev_b32 v{T[3]}, 4, v{vL}")
    a(f"v_add_u32 v{T[4]}, 2048, v{T[3]}"); a(f"v_min_u32 v{T[4]}, 2544, v{T[4]}")
    a(f"s_and_b32 s{sU}, s2, 7"); a(f"s_lshl_b32 s{sU}, s{sU}, 12"); a(f"s_add_u32 s{sU}, s{sU}, {HH}")
    def r_iss():
        a(f"buffer_load_dwordx4 {vr(HV,4)}, v{T[3]}, {srd(WSR)}, s{sU} offen sc1")
        a(f"buffer_load_dwordx4 {vr(HV+4,4)}, v{T[3]}, {srd(WSR)}, s{sU} offen offset:1024 sc1")
        a(f"buffer_load_dwordx4 {vr(HV+8,4)}, v{T[4]}, {srd(WSR)}, s{sU} offen sc1")
    def r_chk():
        for k in range(3): check4(HV + 4*k, T[0], T[1], k == 0)
    poll(r_iss, r_chk)
    stamp(10)
    for i in range(12): a(f"v_and_b32 v{HV+i}, 0xffff0000, v{HV+i}")
    a(f"v_cmp_gt_u32 vcc, 32, v{vL}")
    for i in range(8, 12): a(f"v_cndmask_b32 v{HV+i}, 0, v{HV+i}, vcc")
    for k in range(6): a(f"v_perm_b32 v{HPK+k}, v{HV+2*k+1}, v{HV+2*k}, s{sPkSel}")
    layernorm_full(HV, HPK, T[0:5], False)
    a(f"v_cmp_gt_u32 vcc, 32, v{vL}")
    a(f"v_cndmask_b32 v{WRr+4}, 0, v{WRr+4}, vcc"); a(f"v_cndmask_b32 v{WRr+5}, 0, v{WRr+5}, vcc")
    a(f"v_dot2_f32_bf16 v{T[0]}, v{HPK}, v{WRr}, 0")
    for k in range(1, 6): a(f"v_dot2_f32_bf16 v{T[0]}, v{HPK+k}, v{WRr+k}, v{T[0]}")
    allreduce("v_add_f32", T[0], T[1])
    rne(T[0], T[0])
    a(f"v_mul_f32 v{T[1]}, {f32hex(-LOG2E)}, v{T[0]}"); a(f"v_min_f32 v{T[1]}, 0x42fc0000, v{T[1]}"); a(f"v_exp_f32 v{T[1]}, v{T[1]}")
    a(f"v_add_f32 v{T[1]}, 1.0, v{T[1]}"); a(f"v_rcp_f32 v{T[2]}, v{T[1]}")
    rne(SIG, T[2])
    a(f"s_lshl_b32 s{sT0}, s{sRI}, 3"); a(f"s_lshr_b32 s{sT1}, s{sT0}, 6"); a(f"s_and_b32 s{sT0}, s{sT0}, 63")
    a(f"v_and_b32 v{T[0]}, 7, v{vL}"); a(f"v_add_u32 v{T[0]}, s{sT0}, v{T[0]}"); a(f"v_lshlrev_b32 v{T[0]}, 2, v{T[0]}")
    for i in range(4): a(f"v_mov_b32 v{HS+i}, v{HV+i}")
    a(f"s_cmp_eq_u32 s{sT1}, 0"); a("s_cbranch_scc1 L_hs")
    for i in range(4): a(f"v_mov_b32 v{HS+i}, v{HV+4+i}")
    a(f"s_cmp_eq_u32 s{sT1}, 1"); a("s_cbranch_scc1 L_hs")
    for i in range(4): a(f"v_mov_b32 v{HS+i}, v{HV+8+i}")
    a.label("L_hs")
    for i in range(4): a(f"ds_bpermute_b32 v{HS+i}, v{T[0]}, v{HS+i}")
    a("s_waitcnt lgkmcnt(0)")
    stamp(11)
    def r_pre2():
        a(f"v_lshlrev_b32 v{SIG+1}, 3, v{vL}"); a(f"s_lshl_b32 s{sT0}, s{sRI}, 6"); a(f"v_add_u32 v{SIG+1}, s{sT0}, v{SIG+1}")
    reduce_parts(YY, 96, 3, L_RED2, pre=r_pre2)
    stamp(12)
    def rne4(b):
        a(f"v_cvt_pk_bf16_f32 v{b}, v{b}, v{b+1}"); a(f"v_cvt_pk_bf16_f32 v{b+2}, v{b+2}, v{b+3}")
        a(f"v_and_b32 v{b+1}, 0xffff0000, v{b}"); a(f"v_lshlrev_b32 v{b}, 16, v{b}"); a(f"v_and_b32 v{b+3}, 0xffff0000, v{b+2}"); a(f"v_lshlrev_b32 v{b+2}, 16, v{b+2}")
    rne4(RS)
    for i in range(4): a(f"v_mul_f32 v{RS+i}, v{RS+i}, v{SIG}")
    rne4(RS)
    pkadd(RS, RS, HS); pkadd(RS + 2, RS + 2, HS + 2)
    rne4(RS)
    pkadd(RS, RS, XS); pkadd(RS + 2, RS + 2, XS + 2)
    a(f"v_cvt_pk_bf16_f32 v{RS}, v{RS}, v{RS+1}"); a(f"v_cvt_pk_bf16_f32 v{RS+1}, v{RS+2}, v{RS+3}")
    a(f"s_cmp_lg_u32 s{sW}, 0"); a("s_cbranch_scc1 L_fin")
    set_exec("0x00000000000000ff")
    a(f"global_store_dwordx2 v{SIG+1}, {vr(RS,2)}, {sp(pOUT)}")
    a(f"s_cmp_lg_u32 s{sRI}, 0"); a("s_cbranch_scc1 L_fin")
    set_exec(1)
    a(f"v_mov_b32 v{T[1]}, 0")
    a(f"buffer_store_dword v{vN}, v{T[1]}, {srd(WSR)}, 0 offen offset:{EPOCH}")
    a.label("L_fin")
    dump_stamps()
    a.label("L_abort")
    a.label("L_end")
    a("s_endpgm")
    a.label("L_codeend")
    body = a.text()
    tail = f""".section .rodata,"a"
.p2align 6
.amdhsa_kernel {NAME}
  .amdhsa_next_free_vgpr {NV}
  .amdhsa_next_free_sgpr 100
  .amdhsa_accum_offset {NV}
  .amdhsa_group_segment_fixed_size 0
  .amdhsa_kernarg_size 104
  .amdhsa_user_sgpr_count 2
  .amdhsa_user_sgpr_kernarg_segment_ptr 1
  .amdhsa_system_sgpr_workgroup_id_x 1
.end_amdhsa_kernel
"""
    return body + tail

if __name__ == "__main__":
    kw = json.loads(sys.argv[1]) if len(sys.argv) > 1 else {}
    sys.stdout.write(gen(**kw))
```

```python
import sys, json, struct
from asmlib import Asm

NAME = "sequential_preLN__mha_block_cached__moe_arch_mod__decode_kernel"
def f32hex(x): return "0x%08x" % struct.unpack("<I", struct.pack("<f", x))[0]

HB = 12582912
EPOCH = 0
QP = 0x1000
ML = 0x48000
OP = 0x60000
ZZ = 0x130000
HH = 0x1D0000
YY = 0x181000
CLS = 0x1C0000
GLOB = 0x1C2000
PROG = 0x1C1000
WS_SIZE = 0x200000
L_XN = 0
L_Q = 5120
L_RED = 6656
L_RED2 = 12800
L_RED3 = 23040
L_SC = 25088
L_STAT = 2304
L_CTL = 2048
L_REDH = 25088 + 16384 + 512
LDS_BYTES = 25088 + 16384 + 512 + 6144
LOG2E = 1.4426950408889634

def gen(H=32, PK=13, ctl=1, thr=27, local=1, pace=1, wpol="nt", qpol="nt", stage1=64, nb=6, nx_=8, wmix=0, xctl=0, thr_odd=None, cthr=5, clead=1, thr_lo=10, thr_hi=32, cmed=16, lds=LDS_BYTES, dbg=0, pol="nt", spin=1 << 19, codepf=1):
    nph = 32 // H
    WPH = 256 // H
    NWH = WPH * 4
    G = 4096 // NWH
    NIT = G // 8
    STRIDE = NWH * 3072
    assert 2 <= PK <= 13 and NIT >= 4
    a = Asm()

    vL, vSA, vN = 1, 2, 3
    vM = [4, 5, 6, 7]; vA = 8
    vQ = 12
    vACC = 24
    vC, vMX, vP, vPN, vBC = 36, 37, 38, 39, 40
    T = list(range(41, 48))
    RING = 48
    W = 144
    vX = 204
    vLS, vAL, vRA, vOPA, WA, WB = 224, 225, 226, 227, 228, 230
    vZ, vFL = 232, 233
    NV = 240
    vST = 240
    if dbg: NV = 248
    def ring(slot, t): b = RING + slot * 12 + 4 * t; return f"v[{b}:{b+3}]"
    def vr(b, n): return f"v[{b}:{b+n-1}]"
    sW = 3
    pX, pK, pV, pWQ, pWO, pBX, pWR, pWG, pWU, pWD, pOUT, pDBG, pWS = [4 + 2 * i for i in range(13)]
    STR, WSR, TMP = 32, 36, 40
    sOff, sIt, sHead, sWI, sPh, sNon, sRole, sRI = 44, 45, 46, 47, 48, 49, 50, 51
    sSel = 52
    sSelG = 56
    sT0, sT1, sT2, sT3 = 57, 58, 59, 60
    sInc = 61
    sMask = 62
    sSlot, sJ, sInc4, sSpin = 78, 79, 80, 81
    sE = 82
    sBad = 84
    sU, sU2 = 86, 87
    sRow = 90
    sLoc, sBst, sPrv, sGI, sOH = 30, 31, 97, 98, 99
    sPkSel = 96
    def sp(b): return f"s[{b}:{b+1}]"
    def srd(b): return f"s[{b}:{b+3}]"
    USEFUL = "0xFF00FF0000FF00FF"

    def stamp(k):
        if not dbg: return
        if dbg == 3 and k not in (0, 3, 4, 6, 7, 9, 10, 12, 15): return
        a("s_memrealtime s[88:89]"); a("s_waitcnt lgkmcnt(0)"); a(f"v_writelane_b32 v{vST}, s88, {k}")
    def dump_stamps(helper=False):
        if not dbg: return
        if dbg == 3:
            if helper: return
            n = newlab()
            stamp(15)
            a(f"s_cmp_lg_u32 s{sW}, 0"); a(f"s_cbranch_scc1 L_ds{n}")
            a("s_mov_b64 exec, -1")
            a(f"s_mov_b32 s40, s{pDBG}"); a(f"s_mov_b32 s41, s{pDBG+1}"); a("s_mov_b32 s42, 256"); a("s_mov_b32 s43, 0x20000")
            a(f"v_lshlrev_b32 v{vST+1}, 2, v{vL}")
            a(f"v_mov_b32 v{vST+2}, 0"); a(f"v_mov_b32 v{vST+3}, 0")
            for dst, src, inv in ((0,0,1),(1,3,0),(2,4,0),(3,4,1),(4,6,0),(5,6,1),(6,7,0),(7,9,0),(8,10,0),(9,12,0),(10,15,0)):
                a(f"v_readlane_b32 s88, v{vST}, {src}")
                if inv: a("s_not_b32 s88, s88")
                a("s_nop 3"); a(f"v_writelane_b32 v{vST+2}, s88, {dst}")
            a(f"v_readlane_b32 s89, v{vST}, 0")
            for dst, src in ((11,6),(12,4),(13,3)):
                a(f"v_readlane_b32 s88, v{vST}, {src}"); a("s_nop 3"); a("s_sub_u32 s88, s88, s89"); a("s_nop 3"); a(f"v_writelane_b32 v{vST+3}, s88, {dst}")
            a("s_mov_b64 exec, 0x7ff")
            a(f"buffer_atomic_umax v{vST+2}, v{vST+1}, s[40:43], 0 offen")
            a("s_mov_b64 exec, 0x3800")
            a(f"buffer_atomic_add v{vST+3}, v{vST+1}, s[40:43], 0 offen")
            a.label(f"L_ds{n}")
            return
        stamp(15)
        a("s_mov_b32 exec_lo, -1"); a("s_mov_b32 exec_hi, 0")
        if helper: a("s_add_u32 s88, s2, 1024")
        else: a(f"s_lshl_b32 s88, s2, 2"); a(f"s_add_u32 s88, s88, s{sW}")
        a("s_lshl_b32 s88, s88, 7"); a(f"s_add_u32 s88, s88, {WS_SIZE}")
        a(f"v_lshlrev_b32 v{vST+1}, 2, v{vL}")
        a(f"buffer_store_dword v{vST}, v{vST+1}, {srd(WSR)}, s88 offen")

    DPP4 = ("quad_perm:[1,0,3,2]", "quad_perm:[2,3,0,1]", "row_half_mirror", "row_mirror")
    def dpp(op, v, m): a(f"{op}_dpp v{v}, v{v}, v{v} {m} row_mask:0xf bank_mask:0xf")
    def swap_reduce(ops_vs, tmps, sw):
        for (op, v), t in zip(ops_vs, tmps): a(f"v_mov_b32 v{t}, v{v}")
        for (op, v), t in zip(ops_vs, tmps): a(f"{sw} v{t}, v{v}")
        for (op, v), t in zip(ops_vs, tmps): a(f"{op} v{v}, v{v}, v{t}")
    def allreduce_n(ops_vs, tmps):
        for m in DPP4:
            for op, v in ops_vs: dpp(op, v, m)
        swap_reduce(ops_vs, tmps, "v_permlane16_swap_b32")
        swap_reduce(ops_vs, tmps, "v_permlane32_swap_b32")
    def allreduce(op, v, t): allreduce_n([(op, v)], [t])
    def set_exec(val):
        if isinstance(val, str) and val.startswith("0x") and len(val) > 10:
            a(f"s_mov_b32 exec_lo, 0x{val[-8:]}"); a(f"s_mov_b32 exec_hi, 0x{val[2:-8]}")
        else:
            a(f"s_mov_b64 exec, {val}")
    def a_operand(src, dst=None):
        dst = vA if dst is None else dst
        for r in range(4): a(f"v_and_b32 v{dst+r}, v{src}, v{vM[r]}")
    def tag4(b):
        for r in range(4): a(f"v_perm_b32 v{b+r}, v{b+r}, v{vN}, s{sSel+r}")
    def check4(b, t0, t1, first):
        a(f"v_perm_b32 v{t0}, v{b+1}, v{b}, s{sSelG}")
        a(f"v_perm_b32 v{t1}, v{b+3}, v{b+2}, s{sSelG}")
        a(f"v_lshl_or_b32 v{t0}, v{t1}, 16, v{t0}")
        a(f"v_cmp_ne_u32 vcc, v{t0}, v{vN}")
        if first: a(f"s_mov_b64 {sp(sBad)}, vcc")
        else: a(f"s_or_b64 {sp(sBad)}, {sp(sBad)}, vcc")
    lab = [0]
    def newlab():
        lab[0] += 1; return lab[0]
    def poll(issue, check, pre=None, first_issued=False, first_wait=0):
        n = newlab()
        a(f"s_mov_b32 s{sSpin}, {spin}")
        if not first_issued: issue()
        if pre: pre()
        a(f"s_waitcnt vmcnt({first_wait})")
        a(f"s_branch L_pollchk{n}")
        a.label(f"L_poll{n}")
        a(f"s_sub_u32 s{sSpin}, s{sSpin}, 1")
        a(f"s_cmp_eq_u32 s{sSpin}, 0")
        a("s_cbranch_scc1 L_abort")
        issue()
        a("s_waitcnt vmcnt(0)")
        a.label(f"L_pollchk{n}")
        check()
        a(f"s_cmp_lg_u64 {sp(sBad)}, 0")
        a(f"s_cbranch_scc1 L_poll{n}")
    def pub_store(data, voff, soff):
        n = newlab()
        if local:
            a(f"s_cmp_eq_u32 s{sLoc}, 1"); a(f"s_cbranch_scc1 L_pl{n}")
        a(f"buffer_store_dwordx4 {data}, v{voff}, {srd(WSR)}, s{soff} offen sc1")
        if local:
            a(f"s_branch L_pd{n}")
            a.label(f"L_pl{n}")
            a(f"buffer_store_dwordx4 {data}, v{voff}, {srd(WSR)}, s{soff} offen")
            a.label(f"L_pd{n}")
    def rne(dst, src):
        a(f"v_cvt_pk_bf16_f32 v{dst}, v{src}, v{src}")
        a(f"v_lshlrev_b32 v{dst}, 16, v{dst}")
    def pkadd(d, x, y): a(f"v_pk_add_f32 {vr(d,2)}, {vr(x,2)}, {vr(y,2)}")
    def sum_quads(dst, srcs):
        for s in srcs:
            pkadd(dst, dst, s); pkadd(dst + 2, dst + 2, s + 2)

    def ln_consts(s1, s2, t):
        a(f"v_mul_f32 v{s1}, {f32hex(1.0/640)}, v{s1}")
        a(f"v_mul_f32 v{s2}, {f32hex(1.0/640)}, v{s2}")
        a(f"v_fma_f32 v{s2}, -v{s1}, v{s1}, v{s2}")
        a(f"v_max_f32 v{s2}, 0, v{s2}")
        rne(s2, s2)
        a(f"v_add_f32 v{s2}, {f32hex(1e-5)}, v{s2}")
        rne(s2, s2)
        rne(s1, s1)
        a(f"v_sqrt_f32 v{s2}, v{s2}")
        rne(s2, s2)

    def layernorm_full(val, pk, tmp, refine):
        t0, t1, t2, t3, t4 = tmp
        ONES = t4
        a(f"v_mov_b32 v{ONES}, 0x3f803f80")
        a(f"v_dot2_f32_bf16 v{t0}, v{pk}, v{ONES}, 0"); a(f"v_dot2_f32_bf16 v{t1}, v{pk}, v{pk}, 0")
        for i in range(1, 6):
            a(f"v_dot2_f32_bf16 v{t0}, v{pk+i}, v{ONES}, v{t0}"); a(f"v_dot2_f32_bf16 v{t1}, v{pk+i}, v{pk+i}, v{t1}")
        allreduce_n([("v_add_f32", t0), ("v_add_f32", t1)], [t2, t3])
        ln_consts(t0, t1, t2)
        a(f"v_rcp_f32 v{t4}, v{t1}")
        for i in range(0, 12, 2):
            a(f"v_sub_f32 v{val+i}, v{val+i}, v{t0}")
            a(f"v_sub_f32 v{val+i+1}, v{val+i+1}, v{t0}")
            a(f"v_cvt_pk_bf16_f32 v{t2}, v{val+i}, v{val+i+1}")
            a(f"v_lshlrev_b32 v{val+i}, 16, v{t2}")
            a(f"v_and_b32 v{val+i+1}, 0xffff0000, v{t2}")
            for k in (i, i + 1):
                if refine:
                    a(f"v_mul_f32 v{t2}, v{val+k}, v{t4}")
                    a(f"v_fma_f32 v{t3}, -v{t2}, v{t1}, v{val+k}")
                    a(f"v_fma_f32 v{val+k}, v{t3}, v{t4}, v{t2}")
                else:
                    a(f"v_mul_f32 v{val+k}, v{val+k}, v{t4}")
            a(f"v_cvt_pk_bf16_f32 v{pk + i//2}, v{val+i}, v{val+i+1}")
            a(f"v_lshlrev_b32 v{val+i}, 16, v{pk + i//2}")
            a(f"v_and_b32 v{val+i+1}, 0xffff0000, v{pk + i//2}")

    a.lines.append(f"; @launch grid=(256,1,1) block=(320,1,1) lds={lds}")
    a.lines.append('.amdgcn_target "amdgcn-amd-amdhsa--gfx950"')
    a.lines += [".text", f".globl {NAME}", ".p2align 8", f".type {NAME},@function"]
    a.label(NAME)
    a("s_cmp_ge_u32 s2, 256")
    a("s_cbranch_scc1 L_end")
    a("s_load_dwordx16 s[4:19], s[0:1], 0")
    a("s_load_dwordx8 s[20:27], s[0:1], 64")
    a("s_load_dwordx2 s[28:29], s[0:1], 96")
    a(f"v_and_b32 v{vL}, 63, v0")
    a(f"v_lshrrev_b32 v{T[0]}, 6, v0")
    a(f"v_lshrrev_b32 v{T[2]}, 3, v{vL}")
    a(f"v_readfirstlane_b32 s{sW}, v{T[0]}")
    a(f"v_and_b32 v{T[3]}, 7, v{vL}")
    a(f"v_lshlrev_b32 v{T[4]}, 4, v{T[3]}")
    def masks():
        for r in range(4):
            a(f"v_mov_b32 v{vM[r]}, 0")
            a(f"v_mov_b32 v{T[5]}, 0xffff")
            a(f"v_cmp_eq_u32 vcc, {2*r}, v{T[3]}")
            a(f"v_cndmask_b32 v{vM[r]}, v{vM[r]}, v{T[5]}, vcc")
            a(f"v_mov_b32 v{T[5]}, 0xffff0000")
            a(f"v_cmp_eq_u32 vcc, {2*r+1}, v{T[3]}")
            a(f"v_cndmask_b32 v{vM[r]}, v{vM[r]}, v{T[5]}, vcc")
    def ws_srd():
        a(f"s_mov_b32 s{WSR}, s{pWS}"); a(f"s_mov_b32 s{WSR+1}, s{pWS+1}"); a(f"s_mov_b32 s{WSR+2}, {WS_SIZE * (2 if dbg else 1)}"); a(f"s_mov_b32 s{WSR+3}, 0x20000")
    vq = []
    def wait_for(name):
        if name not in vq: return
        idx = max(i for i, n in enumerate(vq) if n == name)
        n = len(vq) - 1 - idx
        a(f"s_waitcnt vmcnt({min(n, 63)})")
        del vq[:idx + 1]
    def red_addr():
        a(f"v_lshrrev_b32 v{T[0]}, 5, v{vL}")
        a(f"v_mul_u32_u24 v{vRA}, 768, v{T[0]}")
        a(f"v_and_b32 v{T[0]}, 7, v{vL}"); a(f"v_lshlrev_b32 v{T[0]}, 5, v{T[0]}"); a(f"v_add_u32 v{vRA}, v{vRA}, v{T[0]}")
        a(f"v_and_b32 v{T[0]}, 16, v{vL}"); a(f"v_add_u32 v{vRA}, v{vRA}, v{T[0]}")
        a(f"s_mul_i32 s{sT0}, s{sW}, 1536"); a(f"v_add_u32 v{vRA}, s{sT0}, v{vRA}")
    def red_write():
        set_exec(USEFUL)
        for t in range(3): a(f"ds_write_b128 v{vRA}, {vr(vACC+4*t,4)} offset:{L_RED + 256*t}")
        set_exec(-1)
    a(f"s_cmp_lg_u32 s{sW}, 4"); a("s_cbranch_scc1 L_stream")
    a("s_setprio 3")

    WD = RING
    XQ = 168
    XV = 176
    XR = 188
    a(f"s_and_b32 s{sT0}, s2, 31"); a(f"s_lshr_b32 s{sT1}, s2, 5")
    a(f"v_mul_u32_u24 v{T[6]}, 12288, v{T[2]}")
    a(f"s_mul_i32 s{sT2}, s{sT0}, 384")
    a(f"v_add3_u32 v{T[6]}, v{T[6]}, v{T[4]}, s{sT2}")
    a(f"s_mul_i32 s{sT3}, s{sT1}, {80*12288}")
    a(f"v_lshlrev_b32 v{T[1]}, 3, v{vL}")
    a(f"v_add_u32 v{T[5]}, 1024, v{T[1]}")
    a(f"v_min_u32 v{T[5]}, 1272, v{T[5]}")
    a(f"s_mov_b32 s{TMP+2}, 7864320"); a(f"s_mov_b32 s{TMP+3}, 0x20000")
    a("s_waitcnt lgkmcnt(0)")
    a(f"s_mov_b32 s{TMP}, s{pWQ}"); a(f"s_mov_b32 s{TMP+1}, s{pWQ+1}")
    a(f"global_load_dwordx2 {vr(XQ,2)}, v{T[1]}, {sp(pX)}")
    a(f"global_load_dwordx2 {vr(XQ+2,2)}, v{T[1]}, {sp(pX)} offset:512")
    a(f"global_load_dwordx2 {vr(XQ+4,2)}, v{T[5]}, {sp(pX)}")
    vq += ["x0", "x1", "x2"]
    for k in range(10):
        for t in range(3):
            a(f"buffer_load_dwordx4 {vr(WD + 12*k + 4*t, 4)}, v{T[6]}, {srd(TMP)}, s{sT3} offen offset:{128*t} {qpol}")
            vq.append(f"wq{k}")
        if k < 9: a(f"s_add_u32 s{sT3}, s{sT3}, {8*12288}")
    a(f"v_mov_b32 v{vZ}, 0")
    for o in range(0, 36, 4): a(f"ds_write_b32 v{vZ}, v{vZ} offset:{L_CTL + o}")
    a("s_waitcnt lgkmcnt(0)")
    a("s_barrier")
    a(f"s_load_dword s{sNon}, {sp(pWS)}, {EPOCH}")
    if dbg: a(f"v_mov_b32 v{vST}, 0")
    stamp(0)
    masks()
    ws_srd()
    a(f"s_and_b32 s{sSlot}, s2, {H-1}")
    wait_for("x2")
    stamp(18)
    CE = 198
    a("s_waitcnt lgkmcnt(0)")
    a(f"s_add_u32 s{sNon}, s{sNon}, 0x9e3779b9")
    a(f"v_mov_b32 v{vN}, s{sNon}")
    a(f"s_getreg_b32 s{sT0}, hwreg(HW_REG_XCC_ID, 0, 4)")
    a(f"s_and_b32 s{sRole}, s{sT0}, 1")
    a(f"s_and_b32 s{sT1}, s{sNon}, 0xfffffff0"); a(f"s_or_b32 s{sT0}, s{sT0}, s{sT1}")
    a(f"v_mov_b32 v{CE}, s{sT0}")
    a(f"s_and_b32 s{sU2}, s2, 7"); a(f"s_lshl_b32 s{sU2}, s{sU2}, 7")
    a(f"s_lshr_b32 s{sT1}, s2, 3"); a(f"s_lshl_b32 s{sT1}, s{sT1}, 2"); a(f"s_add_u32 s{sT1}, s{sT1}, s{sU2}"); a(f"s_add_u32 s{sT1}, s{sT1}, {CLS}")
    if local:
        set_exec(1)
        a(f"buffer_store_dword v{CE}, v{vZ}, {srd(WSR)}, s{sT1} offen")
        set_exec(-1)
        vq.append("cls_st")
    a(f"v_cmp_gt_u32 vcc, 32, v{vL}")
    a(f"v_cndmask_b32 v{XQ+4}, 0, v{XQ+4}, vcc"); a(f"v_cndmask_b32 v{XQ+5}, 0, v{XQ+5}, vcc")
    for k in range(6):
        a(f"v_lshlrev_b32 v{XV+2*k}, 16, v{XQ+k}")
        a(f"v_and_b32 v{XV+2*k+1}, 0xffff0000, v{XQ+k}")
    layernorm_full(XV, XQ, T[0:5], True)
    a(f"v_lshlrev_b32 v{T[0]}, 3, v{vL}")
    a(f"ds_write_b64 v{T[0]}, {vr(XQ,2)} offset:{L_XN}")
    a(f"ds_write_b64 v{T[0]}, {vr(XQ+2,2)} offset:{L_XN+512}")
    set_exec("0x00000000ffffffff")
    a(f"ds_write_b64 v{T[0]}, {vr(XQ+4,2)} offset:{L_XN+1024}")
    set_exec(-1)
    a(f"s_lshr_b32 s{sT1}, s2, 5"); a(f"s_mul_i32 s{sT1}, s{sT1}, 160")
    a(f"v_lshrrev_b32 v{T[0]}, 3, v{vL}"); a(f"v_lshlrev_b32 v{T[0]}, 1, v{T[0]}"); a(f"v_add_u32 v{T[0]}, s{sT1}, v{T[0]}")
    a("s_waitcnt lgkmcnt(0)")
    for k in range(10): a(f"ds_read_u16 v{XR+k}, v{T[0]} offset:{L_XN + 16*k}")
    for i in range(12): a(f"v_mov_b32 v{vACC+i}, 0")
    a("s_waitcnt lgkmcnt(0)")
    for k in range(10): a(f"v_lshl_or_b32 v{XR+k}, v{XR+k}, 16, v{XR+k}")
    stamp(1)
    def cls_issue():
        a(f"v_and_b32 v{T[5]}, 31, v{vL}"); a(f"v_lshlrev_b32 v{T[5]}, 2, v{T[5]}")
        a(f"s_add_u32 s{sT2}, s{sU2}, {CLS}")
        a(f"buffer_load_dword v{CE+1}, v{T[5]}, {srd(WSR)}, s{sT2} offen sc1")
    for k in range(10):
        a_operand(XR + k)
        if k == 8 and local:
            cls_issue(); vq.append("cls_ld")
        wait_for(f"wq{k}")
        for t in range(3):
            a(f"v_mfma_f32_16x16x32_bf16 {vr(vACC+4*t,4)}, {vr(vA,4)}, {vr(WD+12*k+4*t,4)}, {vr(vACC+4*t,4)}")
    a(f"v_lshrrev_b32 v{T[0]}, 5, v{vL}"); a(f"v_mul_u32_u24 v{vRA}, 768, v{T[0]}")
    a(f"v_and_b32 v{T[0]}, 7, v{vL}"); a(f"v_lshlrev_b32 v{T[0]}, 5, v{T[0]}"); a(f"v_add_u32 v{vRA}, v{vRA}, v{T[0]}")
    a(f"v_and_b32 v{T[0]}, 16, v{vL}"); a(f"v_add_u32 v{vRA}, v{vRA}, v{T[0]}")
    a(f"v_mul_u32_u24 v{T[0]}, 12, v{vL}")
    a(f"s_and_b32 s{sT0}, s2, 31"); a(f"s_lshr_b32 s{sT1}, s2, 5"); a(f"s_lshl_b32 s{sT0}, s{sT0}, 3"); a(f"s_add_u32 s{sT0}, s{sT0}, s{sT1}")
    a(f"s_lshl_b32 s{sT0}, s{sT0}, 10"); a(f"s_add_u32 s{sT0}, s{sT0}, {QP}")
    a(f"v_lshlrev_b32 v{T[1]}, 4, v{vL}")
    red_write()
    a("s_waitcnt lgkmcnt(0)")
    S3 = 200
    for s in range(2):
        for i in range(3): a(f"ds_read_b32 v{S3+4*s+i}, v{T[0]} offset:{L_RED + 768*s + 4*i}")
    a("s_waitcnt lgkmcnt(0)")
    pkadd(S3, S3, S3 + 4); a(f"v_add_f32 v{S3+2}, v{S3+2}, v{S3+6}")
    a(f"v_mov_b32 v{S3+3}, v{vN}")
    a(f"s_mov_b32 s{sLoc}, 0")
    if local:
        a(f"s_mov_b32 s{sSpin}, 8")
        a("s_waitcnt vmcnt(0)")
        a.label("L_clschk")
        a(f"v_cmp_ne_u32 vcc, v{CE+1}, v{CE}")
        a(f"s_cmp_eq_u64 vcc, 0"); a(f"s_cselect_b32 s{sLoc}, 1, 0"); a("s_cbranch_scc1 L_clsdone")
        a(f"s_sub_u32 s{sSpin}, s{sSpin}, 1"); a(f"s_cmp_eq_u32 s{sSpin}, 0"); a("s_cbranch_scc1 L_clsdone")
        cls_issue(); a("s_waitcnt vmcnt(0)"); a("s_branch L_clschk")
        a.label("L_clsdone")
    pub_store(vr(S3,4), T[1], sT0)
    a(f"v_mov_b32 v{T[2]}, s{sLoc}"); a(f"ds_write_b32 v{vZ}, v{T[2]} offset:{L_CTL + 8}")
    stamp(21)
    S4 = RING
    for p in range(nph):
        a(f"s_add_u32 s{sU}, s{sSlot}, {H*p}"); a(f"s_lshl_b32 s{sU}, s{sU}, 13"); a(f"s_add_u32 s{sU}, s{sU}, {QP}")
        def iss():
            for s in range(8):
                a(f"s_add_u32 s{sT1}, s{sU}, {1024*s}")
                a(f"buffer_load_dwordx4 {vr(S4+4*s,4)}, v{T[1]}, {srd(WSR)}, s{sT1} offen sc1")
        def chk():
            for s in range(8):
                a(f"v_cmp_ne_u32 vcc, v{S4+4*s+3}, v{vN}")
                a(f"s_mov_b64 {sp(sBad)}, vcc" if s == 0 else f"s_or_b64 {sp(sBad)}, {sp(sBad)}, vcc")
        poll(iss, chk)
        if p == 0: stamp(22)
        for s in range(1, 8):
            pkadd(S4, S4, S4 + 4*s); a(f"v_add_f32 v{S4+2}, v{S4+2}, v{S4+4*s+2}")
        a(f"v_cvt_pk_bf16_f32 v{S4}, v{S4}, v{S4+1}")
        a(f"v_cvt_pk_bf16_f32 v{S4+2}, v{S4+2}, v{S4+2}")
        a(f"v_mul_u32_u24 v{T[0]}, 6, v{vL}")
        a(f"ds_write_b16 v{T[0]}, v{S4} offset:{L_Q + 384*p}")
        a(f"ds_write_b16_d16_hi v{T[0]}, v{S4} offset:{L_Q + 384*p + 2}")
        a(f"ds_write_b16 v{T[0]}, v{S4+2} offset:{L_Q + 384*p + 4}")
        a("s_waitcnt lgkmcnt(0)")
        if nph > 1:
            a(f"v_mov_b32 v{T[0]}, {p+1}"); a(f"ds_write_b32 v{vZ}, v{T[0]} offset:{L_CTL + 32}"); a("s_waitcnt lgkmcnt(0)")
        if p == 0:
            a("s_barrier")
            if codepf:
                a(f"s_getpc_b64 {sp(58)}")
                a.label("L_pc")
                a(f"s_lshr_b32 s{sT3}, s2, 3"); a(f"s_lshl_b32 s{sT3}, s{sT3}, 9")
                a(f"v_and_b32 v{T[0]}, 7, v{vL}"); a(f"v_lshlrev_b32 v{T[0]}, 6, v{T[0]}"); a(f"v_add_u32 v{T[0]}, s{sT3}, v{T[0]}")
                a(f"v_add_u32 v{T[0]}, L_kcode-L_pc, v{T[0]}")
                a(f"v_min_u32 v{T[0]}, L_codeend-L_pc-4, v{T[0]}")
                a(f"global_load_dword v{vP}, v{T[0]}, {sp(58)}")
    if ctl or nph > 1:
        NTOT = 2 * NIT * nph
        sPub = sPh
        HBUF = RING
        a(f"s_and_b32 s{sT0}, s{sNon}, 0xffffff00"); a(f"v_mov_b32 v{T[3]}, s{sT0}")
        a(f"s_add_u32 s{sU}, s{sU2}, {PROG}")
        a(f"v_lshlrev_b32 v{T[4]}, 2, v{vL}"); a(f"v_mov_b32 v{T[5]}, 0x800"); a(f"v_cmp_gt_u32 vcc, 32, v{vL}"); a(f"v_cndmask_b32 v{T[4]}, v{T[5]}, v{T[4]}, vcc")
        a(f"s_lshr_b32 s{sT1}, s2, 3"); a(f"s_lshl_b32 s{sT1}, s{sT1}, 2"); a(f"v_mov_b32 v{T[5]}, s{sT1}")
        sCN, sLead, sThr = sWI, sOff, sIt
        a(f"s_mov_b32 s{sCN}, 1"); a(f"s_cmp_lt_u32 s2, 8"); a(f"s_cselect_b32 s{sLead}, 1, 0")
        a(f"v_lshlrev_b32 v{vBC}, 8, v{vL}"); a(f"v_min_u32 v{vBC}, {7*256}, v{vBC}")
        a(f"s_and_b32 s{sT2}, s2, 7"); a(f"s_lshl_b32 s{sT2}, s{sT2}, 8"); a(f"v_mov_b32 v{vP}, s{sT2}")
        a(f"v_mov_b32 v{vPN}, 0x800")
        a(f"s_mov_b32 s{sGI}, 0"); a(f"s_mov_b32 s{sSpin}, {1 << 22}"); a(f"s_mov_b32 s{sPub}, 0")
        if nph > 1:
            for r in range(4): a(f"s_mov_b32 s{sSel+r}, 0x{0x07060500 | r:08x}")
            a(f"s_lshr_b32 s{sJ}, s2, {H.bit_length()-1}")
            a(f"v_mul_u32_u24 v{T[1]}, 43691, v{vL}"); a(f"v_lshrrev_b32 v{T[1]}, 19, v{T[1]}")
            a(f"v_mul_u32_u24 v{T[2]}, 12, v{T[1]}"); a(f"v_sub_u32 v{T[2]}, v{vL}, v{T[2]}")
            a(f"v_mul_u32_u24 v{T[1]}, {WPH*192}, v{T[1]}"); a(f"v_lshlrev_b32 v{T[2]}, 4, v{T[2]}"); a(f"v_add_u32 v{vOPA}, v{T[1]}, v{T[2]}")
            a(f"v_lshlrev_b32 v{vRA}, 4, v{vL}")
        a.label("L_cspin")
        a("s_sleep 4")
        a(f"ds_read_b32 v{T[0]}, v{vZ} offset:{L_CTL}")
        if nph > 1: a(f"ds_read_b128 {vr(vA,4)}, v{vZ} offset:{L_CTL + 16}")
        a("s_waitcnt lgkmcnt(0)"); a(f"v_readfirstlane_b32 s{sT0}, v{T[0]}")
        a(f"s_sub_u32 s{sSpin}, s{sSpin}, 1"); a(f"s_cmp_eq_u32 s{sSpin}, 0"); a("s_cbranch_scc1 L_cdone")
        if nph > 1:
            a(f"v_min_u32 v{vA}, v{vA}, v{vA+1}"); a(f"v_min_u32 v{vA+2}, v{vA+2}, v{vA+3}"); a(f"v_min_u32 v{vA}, v{vA}, v{vA+2}")
            a(f"v_readfirstlane_b32 s{sT1}, v{vA}")
            a(f"s_cmp_gt_u32 s{sT1}, s{sPub}"); a("s_cbranch_scc0 L_cnopub")
            set_exec("0x0000ffffffffffff")
            for s_ in range(8): a(f"ds_read_b128 {vr(HBUF+4*s_,4)}, v{vRA} offset:{L_REDH + 768*s_}")
            a("s_waitcnt lgkmcnt(0)")
            a(f"s_add_u32 s{sT1}, s{sPub}, 1"); a(f"v_mov_b32 v{T[1]}, s{sT1}"); a(f"ds_write_b32 v{vZ}, v{T[1]} offset:{L_CTL + 12}")
            sum_quads(HBUF, [HBUF + 4*k for k in range(1, 8)])
            tag4(HBUF)
            a(f"s_mul_i32 s{sT2}, s{sPub}, {H}"); a(f"s_add_u32 s{sT2}, s{sT2}, s{sSlot}")
            a(f"s_mul_i32 s{sT2}, s{sT2}, {4*WPH*192}"); a(f"s_mul_i32 s{sT3}, s{sJ}, 192"); a(f"s_add_u32 s{sT2}, s{sT2}, s{sT3}"); a(f"s_add_u32 s{sT2}, s{sT2}, {OP}")
            pub_store(vr(HBUF,4), vOPA, sT2)
            set_exec(-1)
            a(f"s_mov_b32 s{sPub}, s{sT1}")
            a.label("L_cnopub")
        if ctl:
            a(f"s_cmp_lg_u32 s{sT0}, s{sGI}"); a("s_cbranch_scc1 L_cchg")
            if xctl:
                a(f"s_cmp_eq_u32 s{sLead}, 0"); a("s_cbranch_scc1 L_cchk")
                a(f"buffer_load_dword v{T[1]}, v{T[4]}, {srd(WSR)}, s{sU} offen sc1")
                a("s_waitcnt vmcnt(0)")
                a(f"v_xor_b32 v{T[1]}, v{T[1]}, v{T[3]}")
                a("s_branch L_clead")
            else:
                a("s_branch L_cchk")
            a.label("L_cchg")
            a(f"s_mov_b32 s{sGI}, s{sT0}")
            a(f"buffer_load_dword v{T[1]}, v{T[4]}, {srd(WSR)}, s{sU} offen sc1")
            a(f"v_or_b32 v{T[2]}, s{sGI}, v{T[3]}")
            set_exec(1)
            a(f"buffer_store_dword v{T[2]}, v{T[5]}, {srd(WSR)}, s{sU} offen")
            set_exec(-1)
            a("s_waitcnt vmcnt(1)")
            a(f"v_xor_b32 v{T[1]}, v{T[1]}, v{T[3]}")
            a(f"s_mov_b32 s{sThr}, {thr}")
            if thr_odd is not None:
                a(f"s_cmp_eq_u32 s{sRole}, 1"); a(f"s_cselect_b32 s{sThr}, {thr_odd}, s{sThr}")
            if xctl:
                a(f"v_readlane_b32 s{sT3}, v{T[1]}, 32")
                a("s_nop 1")
                a(f"s_cmp_eq_u32 s{sT3}, 2"); a(f"s_cselect_b32 s{sThr}, {thr_lo}, s{sThr}")
                a(f"s_cmp_eq_u32 s{sT3}, 0"); a(f"s_cselect_b32 s{sThr}, {thr_hi}, s{sThr}")
            a(f"v_cmp_le_u32 vcc, s{sGI}, v{T[1]}"); a(f"s_mov_b32 s{sT2}, vcc_lo")
            a(f"v_cmp_gt_u32 vcc, 256, v{T[1]}"); a(f"s_and_b32 s{sT2}, s{sT2}, vcc_lo")
            a(f"s_bcnt1_i32_b32 s{sT2}, s{sT2}")
            a(f"s_cmp_ge_u32 s{sT2}, s{sThr}"); a(f"s_cselect_b32 s{sT2}, 1, 0")
            a(f"v_mov_b32 v{T[0]}, s{sT2}"); a(f"ds_write_b32 v{vZ}, v{T[0]} offset:{L_CTL + 4}")
            if xctl:
                a(f"s_cmp_eq_u32 s{sLead}, 0"); a("s_cbranch_scc1 L_cchk")
                a.label("L_clead")
                a(f"v_cmp_le_u32 vcc, s{sCN}, v{T[1]}"); a(f"s_mov_b32 s{sT2}, vcc_lo")
                a(f"v_cmp_gt_u32 vcc, 256, v{T[1]}"); a(f"s_and_b32 s{sT2}, s{sT2}, vcc_lo")
                a(f"s_bcnt1_i32_b32 s{sT2}, s{sT2}")
                a(f"s_cmp_ge_u32 s{sT2}, {cmed}"); a("s_cbranch_scc0 L_cchk")
                a(f"s_mov_b32 s{sT2}, {GLOB}")
                a(f"buffer_load_dword v{T[1]}, v{vBC}, {srd(WSR)}, s{sT2} offen sc1")
                a(f"v_or_b32 v{T[2]}, s{sCN}, v{T[3]}")
                set_exec(1)
                a(f"buffer_store_dword v{T[2]}, v{vP}, {srd(WSR)}, s{sT2} offen sc1")
                set_exec(-1)
                a("s_waitcnt vmcnt(1)")
                a(f"v_xor_b32 v{T[1]}, v{T[1]}, v{T[3]}")
                a(f"v_cmp_le_u32 vcc, s{sCN}, v{T[1]}"); a(f"s_and_b32 s{sT2}, vcc_lo, 0xff")
                a(f"v_cmp_gt_u32 vcc, 256, v{T[1]}"); a(f"s_and_b32 s{sT2}, s{sT2}, vcc_lo")
                a(f"s_bcnt1_i32_b32 s{sT2}, s{sT2}")
                a(f"s_mov_b32 s{sT3}, 1")
                a(f"s_cmp_ge_u32 s{sT2}, {cthr}"); a(f"s_cselect_b32 s{sT3}, 2, s{sT3}")
                if clead >= 0:
                    a(f"s_cmp_le_u32 s{sT2}, {clead}"); a(f"s_cselect_b32 s{sT3}, 0, s{sT3}")
                a(f"v_or_b32 v{T[2]}, s{sT3}, v{T[3]}")
                set_exec(1)
                a(f"buffer_store_dword v{T[2]}, v{vPN}, {srd(WSR)}, s{sU} offen")
                set_exec(-1)
                a(f"s_add_u32 s{sCN}, s{sCN}, 1")
            a.label("L_cchk")
            a(f"s_cmp_lt_u32 s{sGI}, {NTOT - 2}"); a("s_cbranch_scc1 L_cspin")
        if nph > 1:
            a(f"s_cmp_lt_u32 s{sPub}, {nph - 1}"); a("s_cbranch_scc1 L_cspin")
        a.label("L_cdone")
        a("s_waitcnt vmcnt(0) lgkmcnt(0)")
    dump_stamps(True)
    a("s_endpgm")

    a.label("L_stream")
    vq[:] = []
    a(f"v_mul_u32_u24 v{vSA}, 384, v{T[2]}")
    a(f"v_add_u32 v{vSA}, v{vSA}, v{T[4]}")
    a(f"s_and_b32 s{sSlot}, s2, {H-1}")
    a(f"s_lshr_b32 s{sJ}, s2, {H.bit_length()-1}")
    a(f"s_lshl_b32 s{sWI}, s{sJ}, 2")
    a(f"s_add_u32 s{sWI}, s{sWI}, s{sW}")
    a(f"s_mov_b32 s{sHead}, s{sSlot}")
    a(f"s_mov_b32 s{sPh}, 0")
    a(f"s_mul_i32 s{sT0}, s{sHead}, {HB}")
    a(f"s_mul_i32 s{sOff}, s{sWI}, 3072")
    a(f"s_mov_b32 s{STR+2}, {HB}"); a(f"s_mov_b32 s{STR+3}, 0x20000")
    a("s_waitcnt lgkmcnt(0)")
    a(f"s_add_u32 s{STR}, s{pK}, s{sT0}"); a(f"s_addc_u32 s{STR+1}, s{pK+1}, 0")
    a(f"s_load_dword s{sNon}, {sp(pWS)}, {EPOCH}")
    if dbg: a(f"v_mov_b32 v{vST}, 0")
    stamp(0)
    a(f"v_mov_b32 v{vOPA}, 0"); a(f"s_mov_b32 s{sU2}, {OP}")
    masks()
    a(f"s_mov_b32 s{sPh}, 0")
    for g in range(8):
        m = 0x0101010101010101 << g
        a(f"s_mov_b32 s{sMask+2*g}, 0x{m & 0xffffffff:08x}")
        a(f"s_mov_b32 s{sMask+2*g+1}, 0x{m >> 32:08x}")
    for r in range(4): a(f"s_mov_b32 s{sSel+r}, 0x{0x07060500 | r:08x}")
    a(f"s_mov_b32 s{sSelG}, 0x0c0c0400")
    a(f"s_mov_b32 s{sPkSel}, 0x07060302")
    for r in range(1, 4):
        m = 0xffff << (16 * r)
        a(f"s_mov_b32 s{sRow+2*(r-1)}, 0x{m & 0xffffffff:08x}"); a(f"s_mov_b32 s{sRow+2*(r-1)+1}, 0x{m >> 32:08x}")
    ws_srd()
    a(f"s_and_b32 s{sT0}, s2, 7"); a(f"s_lshr_b32 s{sT1}, s2, 3")
    a(f"s_lshl_b32 s{sT2}, s{sT1}, 3"); a(f"s_add_u32 s{sRI}, s{sT2}, s{sT0}"); a(f"s_mov_b32 s{sRole}, 0")
    a(f"s_lshr_b32 s{sT2}, s{sT1}, 2"); a(f"s_lshl_b32 s{sT2}, s{sT2}, 3"); a(f"s_add_u32 s{sT2}, s{sT2}, s{sT0}"); a(f"s_lshl_b32 s{sT2}, s{sT2}, 2")
    a(f"s_and_b32 s{sT3}, s{sT1}, 3"); a(f"s_add_u32 s{sOH}, s{sT2}, s{sT3}")
    a(f"s_cmp_lt_u32 s{sT1}, 16"); a("s_cbranch_scc1 L_roled")
    a(f"s_sub_u32 s{sT2}, s{sT1}, 16"); a(f"s_mul_i32 s{sT3}, s{sT0}, 12"); a(f"s_add_u32 s{sRI}, s{sT3}, s{sT2}"); a(f"s_mov_b32 s{sRole}, 1")
    a(f"s_cmp_lt_u32 s{sT1}, 28"); a("s_cbranch_scc1 L_roled")
    a(f"s_sub_u32 s{sT2}, s{sT1}, 28"); a(f"s_lshl_b32 s{sT2}, s{sT2}, 3"); a(f"s_add_u32 s{sRI}, s{sT2}, s{sT0}"); a(f"s_mov_b32 s{sRole}, 2")
    a.label("L_roled")
    def kslot(g):
        if g < 8: return RING + 12 * ((g + 5) % 8)
        if g < 13 and g < PK: return W + 12 * (g - 8)
        return RING + 12 * (g % 8)
    def kreg(l): return kslot(l // 3) + 4 * (l % 3)
    def stream_load(reg, t):
        a(f"buffer_load_dwordx4 {vr(reg,4)}, v{vSA}, {srd(STR)}, s{sOff} offen offset:{128*t} {pol}")
        if t == 2: a(f"s_add_u32 s{sOff}, s{sOff}, {STRIDE}")
    def issue(l):
        stream_load(kreg(l), l % 3); vq.append(f"k{l}")
    a(f"v_mov_b32 v{vZ}, 0"); a(f"v_mov_b32 v{vFL}, 0"); a(f"s_mov_b32 s{sGI}, 0"); a(f"s_mov_b32 s{sPrv}, 0")
    a("s_barrier")
    for l in range(3 * PK):
        if pace and l >= nb: wait_for(f"k{l-nb}")
        issue(l)
    stamp(16)
    a("s_waitcnt lgkmcnt(0)")
    a(f"s_add_u32 s{sNon}, s{sNon}, 0x9e3779b9")
    a(f"v_mov_b32 v{vN}, s{sNon}")
    a("s_barrier")
    a(f"ds_read_b32 v{T[1]}, v{vZ} offset:{L_CTL + 8}"); a("s_waitcnt lgkmcnt(0)"); a(f"v_readfirstlane_b32 s{sLoc}, v{T[1]}")
    def progress():
        if not ctl: return
        n = newlab()
        a(f"s_add_u32 s{sGI}, s{sGI}, 1")
        a(f"s_cmp_lg_u32 s{sW}, 0"); a(f"s_cbranch_scc1 L_pg{n}")
        a(f"v_mov_b32 v{T[5]}, s{sGI}"); a(f"ds_write_b32 v{vZ}, v{T[5]} offset:{L_CTL}")
        a.label(f"L_pg{n}")
    def flag_read():
        if ctl or wmix: a(f"ds_read_b32 v{vFL}, v{vZ} offset:{L_CTL + 4}")
    def load_q():
        a(f"v_and_b32 v{T[0]}, 7, v{vL}"); a(f"v_lshlrev_b32 v{T[0]}, 4, v{T[0]}")
        a(f"s_mul_i32 s{sT0}, s{sPh}, 384"); a(f"v_add_u32 v{T[0]}, s{sT0}, v{T[0]}")
        for t in range(3): a(f"ds_read_b128 {vr(vQ+4*t,4)}, v{T[0]} offset:{L_Q + 128*t}")
    load_q()

    a.label("L_kcode")
    vSC = T[6]
    def score_addr():
        a(f"v_lshlrev_b32 v{vSC}, 2, v{vL}")
        a(f"s_lshl_b32 s{sT0}, s{sW}, 12"); a(f"v_add_u32 v{vSC}, s{sT0}, v{vSC}")
    def kinit():
        score_addr()
        a(f"v_mov_b32 v{vMX}, 0xff800000"); a(f"v_mov_b32 v{vLS}, 0")
        a("s_waitcnt lgkmcnt(0)")
    def kpart(reg, g, t):
        acc = T[t]
        for i in range(4):
            src2 = "0" if i == 0 else f"v{acc}"
            a(f"v_dot2_f32_bf16 v{acc}, v{reg+i}, v{vQ+4*t+i}, {src2}")
        if t == 2:
            a0 = T[0]
            a(f"v_add_f32 v{a0}, v{a0}, v{T[1]}")
            a(f"v_add_f32 v{a0}, v{a0}, v{T[2]}")
            for m in DPP4[:3]: dpp("v_add_f32", a0, m)
            a(f"v_cndmask_b32 v{vC}, v{vC}, v{a0}, {sp(sMask+2*g)}")
    SCALE = f32hex(192 ** -0.5)
    def kfinish():
        t, u, w_ = T[0], T[1], T[2]
        rne(t, vC)
        a(f"v_mul_f32 v{t}, {SCALE}, v{t}")
        rne(t, t)
        a(f"ds_write_b32 v{vSC}, v{t} offset:{L_SC}")
        a(f"v_add_u32 v{vSC}, 256, v{vSC}")
        a(f"v_max_f32 v{u}, v{vMX}, v{t}")
        a(f"v_sub_f32 v{w_}, v{vMX}, v{u}"); a(f"v_sub_f32 v{t}, v{t}, v{u}")
        a(f"v_mul_f32 v{w_}, {f32hex(LOG2E)}, v{w_}"); a(f"v_mul_f32 v{t}, {f32hex(LOG2E)}, v{t}")
        a(f"v_exp_f32 v{w_}, v{w_}"); a(f"v_exp_f32 v{t}, v{t}")
        a(f"v_mov_b32 v{vMX}, v{u}")
        a(f"v_fma_f32 v{vLS}, v{vLS}, v{w_}, v{t}")
    kinit()
    stamp(3)
    nxt = 3 * PK
    early = nb
    for l in range(48):
        while nxt <= l:
            issue(nxt); nxt += 1
        wait_for(f"k{l}")
        while nxt <= l + nb:
            issue(nxt); nxt += 1
        kpart(kreg(l), (l // 3) % 8, l % 3)
        if early > 0 and nxt < 48 and kreg(nxt) == kreg(l) and l % 3 != 2:
            issue(nxt); nxt += 1; early -= 1
        elif early > 0 and nxt < 48 and l % 3 == 2 and kreg(nxt) == kreg(l):
            issue(nxt); nxt += 1; early -= 1
        if l % 24 == 23:
            kfinish(); progress()
    assert nxt == 48 + nb, nxt
    flag_read()
    a(f"s_mov_b32 s{sIt}, 2")
    def switch_to_V():
        n = newlab()
        a(f"s_cmp_eq_u32 s{sIt}, {NIT-1}")
        a(f"s_cbranch_scc0 L_nosw{n}")
        a(f"s_mul_i32 s{sT0}, s{sHead}, {HB}")
        a(f"s_add_u32 s{STR}, s{pV}, s{sT0}"); a(f"s_addc_u32 s{STR+1}, s{pV+1}, 0")
        a(f"s_mul_i32 s{sOff}, s{sWI}, 3072")
        a.label(f"L_nosw{n}")
    def switch_to_nextK():
        n = newlab()
        a(f"s_cmp_eq_u32 s{sIt}, {NIT-1}")
        a(f"s_cbranch_scc0 L_nosw{n}")
        if nph > 1:
            a(f"s_add_u32 s{sT0}, s{sHead}, {H}")
            a(f"s_mul_i32 s{sT0}, s{sT0}, {HB}")
            a(f"s_add_u32 s{STR}, s{pK}, s{sT0}"); a(f"s_addc_u32 s{STR+1}, s{pK+1}, 0")
            a(f"s_mul_i32 s{sOff}, s{sWI}, 3072")
            a(f"s_cmp_eq_u32 s{sPh}, {nph-1}")
            a(f"s_cselect_b32 s{STR+2}, 0, {HB}")
            a(f"s_cselect_b32 s{STR}, s{pK}, s{STR}"); a(f"s_cselect_b32 s{STR+1}, s{pK+1}, s{STR+1}")
        else:
            a(f"s_mov_b32 s{STR+2}, 0")
        a.label(f"L_nosw{n}")
    def ring_load(l):
        stream_load(RING + 12 * ((l // 3) % 8) + 4 * (l % 3), l % 3)
    def controlled_loop(tag, part, switch):
        d = nx_ - nb
        if ctl or wmix:
            a("s_waitcnt lgkmcnt(0)"); a(f"v_readfirstlane_b32 s{sBst}, v{vFL}")
            if wmix:
                a(f"s_lshr_b32 s{sT0}, {wmix}, s{sW}"); a(f"s_and_b32 s{sT0}, s{sT0}, 1"); a(f"s_or_b32 s{sBst}, s{sBst}, s{sT0}")
            a(f"s_cmp_eq_u32 s{sIt}, {NIT-1}"); a(f"s_cselect_b32 s{sBst}, 0, s{sBst}")
            a(f"s_cmp_eq_u32 s{sBst}, 1"); a(f"s_cbranch_scc1 L_{tag}boost")
            a(f"s_cmp_eq_u32 s{sPrv}, 0"); a(f"s_cbranch_scc1 L_{tag}n0")
            for l in range(d):
                a(f"s_waitcnt vmcnt({nx_ - 1 - l})"); part(l)
            a(f"s_branch L_{tag}n1")
            a.label(f"L_{tag}n0")
        for l in range(d):
            a(f"s_waitcnt vmcnt({nb - 1})"); ring_load(l + nb); part(l)
        if ctl or wmix: a.label(f"L_{tag}n1")
        for l in range(d, 24):
            a(f"s_waitcnt vmcnt({nb - 1})")
            if l + nb == 24: switch()
            ring_load(l + nb)
            if l == 12: flag_read()
            part(l)
        if ctl or wmix:
            a(f"s_mov_b32 s{sPrv}, 0"); a(f"s_branch L_{tag}next")
            a.label(f"L_{tag}boost")
            a(f"s_cmp_eq_u32 s{sPrv}, 0"); a(f"s_cbranch_scc0 L_{tag}b0")
            for l in range(nb, nx_): ring_load(l)
            a.label(f"L_{tag}b0")
            for l in range(24):
                a(f"s_waitcnt vmcnt({nx_ - 1})")
                ring_load(l + nx_)
                if l == 12: flag_read()
                part(l)
            a(f"s_mov_b32 s{sPrv}, 1")
            a.label(f"L_{tag}next")
    a.label("L_kloop")
    controlled_loop("k", lambda l: kpart(RING + 12 * (l // 3) + 4 * (l % 3), l // 3, l % 3), switch_to_V)
    kfinish(); progress()
    a(f"s_add_u32 s{sIt}, s{sIt}, 1")
    a(f"s_cmp_lt_u32 s{sIt}, {NIT}")
    a("s_cbranch_scc1 L_kloop")
    stamp(4)

    a(f"v_mov_b32 v{T[2]}, v{vMX}")
    allreduce("v_max_f32", vMX, T[0])
    a(f"v_sub_f32 v{T[2]}, v{T[2]}, v{vMX}"); a(f"v_mul_f32 v{T[2]}, {f32hex(LOG2E)}, v{T[2]}"); a(f"v_exp_f32 v{T[2]}, v{T[2]}")
    a(f"v_mul_f32 v{vLS}, v{vLS}, v{T[2]}")
    allreduce("v_add_f32", vLS, T[0])
    MLQ = vA
    a(f"v_mov_b32 v{MLQ}, v{vMX}"); a(f"v_mov_b32 v{MLQ+1}, v{vLS}"); a(f"v_mov_b32 v{MLQ+2}, 0"); a(f"v_mov_b32 v{MLQ+3}, 0")
    tag4(MLQ)
    a(f"s_lshl_b32 s{sT0}, s{sHead}, 11"); a(f"s_lshl_b32 s{sT1}, s{sWI}, 4"); a(f"s_add_u32 s{sT0}, s{sT0}, s{sT1}"); a(f"s_add_u32 s{sT0}, s{sT0}, {ML}")
    a(f"v_mov_b32 v{T[0]}, 0")
    set_exec(1)
    pub_store(vr(MLQ,4), T[0], sT0)
    set_exec(-1)
    stamp(5)
    for i in range(12): a(f"v_mov_b32 v{vACC+i}, 0")
    score_addr()
    a("s_waitcnt lgkmcnt(0)")
    a(f"ds_read_b32 v{vPN}, v{vSC} offset:{L_SC}")
    def vpart(l):
        g, t = l // 3, l % 3
        if t == 0:
            a(f"v_mov_b32_dpp v{vBC}, v{vP} row_newbcast:{g} row_mask:0xf bank_mask:0x3")
            a(f"v_mov_b32_dpp v{vBC}, v{vP} row_newbcast:{8+g} row_mask:0xf bank_mask:0xc")
            a_operand(vBC)
        a(f"v_mfma_f32_16x16x32_bf16 {vr(vACC+4*t,4)}, {vr(vA,4)}, {ring(g,t)}, {vr(vACC+4*t,4)}")
    def next_p():
        a("s_waitcnt lgkmcnt(0)")
        a(f"v_sub_f32 v{vP}, v{vPN}, v{vMX}")
        a(f"v_add_u32 v{vSC}, 256, v{vSC}")
        a(f"ds_read_b32 v{vPN}, v{vSC} offset:{L_SC}")
        a(f"v_mul_f32 v{vP}, {f32hex(LOG2E)}, v{vP}")
        a(f"v_exp_f32 v{vP}, v{vP}")
        a(f"v_cvt_pk_bf16_f32 v{vP}, v{vP}, v{vP}")
    a(f"s_mov_b32 s{sIt}, 0")
    if nph > 1:
        a(f"s_cmp_lg_u32 s{sPh}, {nph-1}"); a("s_cbranch_scc1 L_vloop")
    a(f"s_cmp_eq_u32 s{sRole}, 1"); a("s_cbranch_scc1 L_wF")
    a(f"s_cmp_eq_u32 s{sRole}, 2"); a("s_cbranch_scc1 L_wR")
    a(f"s_mul_i32 s{sT0}, s{sOH}, 48"); a(f"s_mul_i32 s{sT1}, s{sW}, 12"); a(f"s_add_u32 s{sT0}, s{sT0}, s{sT1}")
    a(f"v_lshrrev_b32 v{T[0]}, 4, v{vL}"); a(f"v_add_u32 v{T[0]}, s{sT0}, v{T[0]}")
    a(f"v_mul_u32_u24 v{T[0]}, 1280, v{T[0]}")
    a(f"v_and_b32 v{T[1]}, 15, v{vL}"); a(f"v_lshlrev_b32 v{T[1]}, 4, v{T[1]}"); a(f"v_add_u32 v{T[0]}, v{T[0]}, v{T[1]}")
    a(f"v_mov_b32 v{T[1]}, s{pWO+1}")
    a(f"v_add_co_u32 v{WA}, vcc, s{pWO}, v{T[0]}"); a(f"v_addc_co_u32 v{WA+1}, vcc, 0, v{T[1]}, vcc")
    a(f"v_add_co_u32 v{WB}, vcc, 10240, v{WA}"); a(f"v_addc_co_u32 v{WB+1}, vcc, 0, v{WA+1}, vcc")
    a(f"s_mov_b32 s{sInc}, 256"); a(f"s_mov_b32 s{sInc4}, 4096")
    a("s_branch L_wdone")
    a.label("L_wF")
    a(f"v_lshrrev_b32 v{T[0]}, 2, v{vL}"); a(f"s_mul_i32 s{sT0}, s{sW}, 160"); a(f"v_add_u32 v{T[0]}, s{sT0}, v{T[0]}")
    a(f"v_mul_u32_u24 v{T[0]}, 3072, v{T[0]}")
    a(f"v_and_b32 v{T[1]}, 1, v{vL}"); a(f"v_lshlrev_b32 v{T[1]}, 4, v{T[1]}"); a(f"v_add_u32 v{T[0]}, v{T[0]}, v{T[1]}")
    a(f"s_lshl_b32 s{sT0}, s{sRI}, 5"); a(f"v_add_u32 v{T[0]}, s{sT0}, v{T[0]}")
    a(f"v_mov_b32 v{T[2]}, s{pWG}"); a(f"v_mov_b32 v{T[3]}, s{pWG+1}")
    a(f"v_mov_b32 v{T[4]}, s{pWU}"); a(f"v_mov_b32 v{T[5]}, s{pWU+1}")
    a(f"v_and_b32 v{T[1]}, 2, v{vL}"); a(f"v_cmp_ne_u32 vcc, 0, v{T[1]}")
    a(f"v_cndmask_b32 v{T[2]}, v{T[2]}, v{T[4]}, vcc"); a(f"v_cndmask_b32 v{T[3]}, v{T[3]}, v{T[5]}, vcc")
    a(f"v_add_co_u32 v{WA}, vcc, v{T[2]}, v{T[0]}"); a(f"v_addc_co_u32 v{WA+1}, vcc, 0, v{T[3]}, vcc")
    a(f"s_lshl_b32 s{sT0}, s{sRI}, 4"); a(f"s_lshl_b32 s{sT1}, s{sW}, 2"); a(f"s_add_u32 s{sT0}, s{sT0}, s{sT1}")
    a(f"v_lshrrev_b32 v{T[0]}, 4, v{vL}"); a(f"v_add_u32 v{T[0]}, s{sT0}, v{T[0]}")
    a(f"v_mul_u32_u24 v{T[0]}, 1280, v{T[0]}")
    a(f"v_and_b32 v{T[1]}, 15, v{vL}"); a(f"v_lshlrev_b32 v{T[1]}, 4, v{T[1]}"); a(f"v_add_u32 v{T[0]}, v{T[0]}, v{T[1]}")
    a(f"v_mov_b32 v{T[1]}, s{pWD+1}")
    a(f"v_add_co_u32 v{WB}, vcc, s{pWD}, v{T[0]}"); a(f"v_addc_co_u32 v{WB+1}, vcc, 0, v{T[1]}, vcc")
    a(f"s_mov_b32 s{sInc}, {16*3072}"); a(f"s_mov_b32 s{sInc4}, {16*3072}")
    a("s_branch L_wdone")
    a.label("L_wR")
    a(f"v_mov_b32 v{WA}, s{pWO}"); a(f"v_mov_b32 v{WA+1}, s{pWO+1}"); a(f"v_mov_b32 v{WB}, s{pWO}"); a(f"v_mov_b32 v{WB+1}, s{pWO+1}")
    a(f"s_mov_b32 s{sInc}, 0"); a(f"s_mov_b32 s{sInc4}, 0")
    a.label("L_wdone")
    def wload(k):
        if k < 10:
            a(f"global_load_dwordx4 {vr(W + 4*k, 4)}, {vr(WA,2)}, off {wpol}")
            if k < 9:
                a(f"v_add_co_u32 v{WA}, vcc, s{sInc4 if k == 4 else sInc}, v{WA}"); a(f"v_addc_co_u32 v{WA+1}, vcc, 0, v{WA+1}, vcc")
        else:
            a(f"global_load_dwordx4 {vr(W + 4*k, 4)}, {vr(WB,2)}, off offset:{256*(k-10)} {wpol}")
        vq.append(f"w{k}")
    vq[:] = [f"v{l}" for l in range(nb)] + ["ml"]
    for it in range(2):
        next_p()
        for l in range(24):
            n = 24 * it + l
            wait_for(f"v{n}")
            ring_load(n + nb); vq.append(f"v{n+nb}")
            if n % 3 == 0 and n // 3 < 15: wload(n // 3)
            vpart(l)
        progress()
    flag_read()
    a(f"s_mov_b32 s{sIt}, 2")
    a.label("L_vloop")
    MLR = vX
    def ml_issue():
        a(f"s_lshl_b32 s{sT0}, s{sHead}, 11"); a(f"s_add_u32 s{sT0}, s{sT0}, {ML}")
        a(f"v_min_u32 v{T[1]}, {NWH-1}, v{vL}"); a(f"v_lshlrev_b32 v{T[1]}, 4, v{T[1]}")
        a(f"buffer_load_dwordx4 {vr(MLR,4)}, v{T[1]}, {srd(WSR)}, s{sT0} offen sc1")
        if NWH > 64:
            a(f"buffer_load_dwordx4 {vr(MLR+4,4)}, v{T[1]}, {srd(WSR)}, s{sT0} offen offset:1024 sc1")
    def ml_check():
        check4(MLR, T[0], T[2], True)
        if NWH > 64: check4(MLR + 4, T[0], T[2], False)
    a(f"s_cmp_eq_u32 s{sIt}, {NIT-2}"); a("s_cbranch_scc0 L_vh1")
    ml_issue()
    if codepf:
        a(f"s_getpc_b64 {sp(58)}")
        a.label("L_pc2")
        a(f"s_lshr_b32 s{sT3}, s2, 3"); a(f"s_lshl_b32 s{sT3}, s{sT3}, 9")
        a(f"v_and_b32 v{T[1]}, 7, v{vL}"); a(f"v_lshlrev_b32 v{T[1]}, 6, v{T[1]}"); a(f"v_add_u32 v{T[1]}, s{sT3}, v{T[1]}")
        a(f"v_add_u32 v{T[1]}, L_tailcode-L_pc2, v{T[1]}")
        a(f"v_min_u32 v{T[1]}, L_codeend-L_pc2-4, v{T[1]}")
        a(f"global_load_dword v{T[2]}, v{T[1]}, {sp(58)}")
    a.label("L_vh1")
    a(f"s_cmp_eq_u32 s{sIt}, {NIT-1}"); a("s_cbranch_scc0 L_vh2")
    a.label("L_tailcode")
    ml_check()
    a(f"s_cmp_eq_u64 {sp(sBad)}, 0"); a("s_cbranch_scc1 L_mlok")
    poll(ml_issue, ml_check)
    a.label("L_mlok")
    mm, ll = MLR, MLR + 1
    if NWH > 64: a(f"v_max_f32 v{T[0]}, v{mm}, v{MLR+4}")
    else: a(f"v_mov_b32 v{T[0]}, v{mm}")
    a(f"v_and_b32 v{T[0]}, 0xffffff00, v{T[0]}")
    allreduce("v_max_f32", T[0], T[1])
    a(f"v_and_b32 v{mm}, 0xffffff00, v{mm}")
    a(f"v_sub_f32 v{T[2]}, v{mm}, v{T[0]}"); a(f"v_mul_f32 v{T[2]}, {f32hex(LOG2E)}, v{T[2]}"); a(f"v_exp_f32 v{T[2]}, v{T[2]}")
    a(f"v_mul_f32 v{T[2]}, v{T[2]}, v{ll}")
    if NWH > 64:
        a(f"v_and_b32 v{MLR+4}, 0xffffff00, v{MLR+4}")
        a(f"v_sub_f32 v{T[3]}, v{MLR+4}, v{T[0]}"); a(f"v_mul_f32 v{T[3]}, {f32hex(LOG2E)}, v{T[3]}"); a(f"v_exp_f32 v{T[3]}, v{T[3]}")
        a(f"v_fmac_f32 v{T[2]}, v{T[3]}, v{MLR+5}")
    elif NWH < 64:
        a(f"v_cmp_gt_u32 vcc, {NWH}, v{vL}"); a(f"v_cndmask_b32 v{T[2]}, 0, v{T[2]}, vcc")
    allreduce("v_add_f32", T[2], T[1])
    a(f"v_sub_f32 v{T[3]}, v{vMX}, v{T[0]}"); a(f"v_mul_f32 v{T[3]}, {f32hex(LOG2E)}, v{T[3]}"); a(f"v_exp_f32 v{T[3]}, v{T[3]}")
    a(f"v_rcp_f32 v{T[2]}, v{T[2]}")
    a(f"v_mul_f32 v{vAL}, v{T[3]}, v{T[2]}")
    red_addr()
    a(f"v_mul_u32_u24 v{T[1]}, 43691, v{vL}"); a(f"v_lshrrev_b32 v{T[1]}, 19, v{T[1]}")
    a(f"v_mul_u32_u24 v{T[2]}, 12, v{T[1]}"); a(f"v_sub_u32 v{T[2]}, v{vL}, v{T[2]}")
    a(f"v_mul_u32_u24 v{T[1]}, {WPH*192}, v{T[1]}"); a(f"v_lshlrev_b32 v{T[2]}, 4, v{T[2]}"); a(f"v_add_u32 v{vOPA}, v{T[1]}, v{T[2]}")
    a(f"s_mul_i32 s{sT0}, s{sHead}, {4*WPH*192}"); a(f"s_mul_i32 s{sT1}, s{sJ}, 192"); a(f"s_add_u32 s{sT0}, s{sT0}, s{sT1}"); a(f"s_add_u32 s{sU2}, s{sT0}, {OP}")
    P = vQ
    if nph > 1:
        a(f"s_cmp_lg_u32 s{sPh}, {nph-1}"); a("s_cbranch_scc1 L_vh2")
    a(f"v_lshrrev_b32 v{T[0]}, 5, v{vL}"); a(f"v_lshlrev_b32 v{T[0]}, 8, v{T[0]}")
    a(f"v_and_b32 v{T[1]}, 7, v{vL}"); a(f"v_lshlrev_b32 v{T[1]}, 5, v{T[1]}"); a(f"v_add_u32 v{T[0]}, v{T[0]}, v{T[1]}")
    a(f"v_and_b32 v{T[1]}, 16, v{vL}"); a(f"v_add_u32 v{T[0]}, v{T[0]}, v{T[1]}")
    a(f"s_mul_i32 s{sT0}, s{sW}, 2560"); a(f"v_add_u32 v{P}, s{sT0}, v{T[0]}")
    a(f"s_mov_b32 s{sT0}, {128*128}"); a(f"s_cmp_eq_u32 s{sRole}, 1"); a(f"s_cselect_b32 s{sT0}, {96*128}, s{sT0}")
    a(f"v_lshrrev_b32 v{T[1]}, 3, v0"); a(f"v_mul_u32_u24 v{T[1]}, s{sT0}, v{T[1]}")
    a(f"v_and_b32 v{T[2]}, 7, v0"); a(f"v_lshlrev_b32 v{T[2]}, 4, v{T[2]}"); a(f"v_add_u32 v{P+1}, v{T[1]}, v{T[2]}")
    for i in range(20): a(f"v_mov_b32 v{vX+i}, 0")
    a.label("L_vh2")
    next_p()
    controlled_loop("v", vpart, switch_to_nextK)
    progress()
    a(f"s_add_u32 s{sIt}, s{sIt}, 1")
    a(f"s_cmp_lt_u32 s{sIt}, {NIT}")
    a("s_cbranch_scc1 L_vloop")

    stamp(6)
    for i in range(12): a(f"v_mul_f32 v{vACC+i}, v{vACC+i}, v{vAL}")
    if nph > 1:
        a(f"s_cmp_eq_u32 s{sPh}, {nph-1}"); a("s_cbranch_scc1 L_lastphase")
        def lds_wait_ge(off, sreg):
            n = newlab()
            a(f"s_mov_b32 s{sSpin}, {spin}")
            a.label(f"L_lw{n}")
            a(f"ds_read_b32 v{T[1]}, v{vZ} offset:{L_CTL + off}"); a("s_waitcnt lgkmcnt(0)"); a(f"v_readfirstlane_b32 s{sT0}, v{T[1]}")
            a(f"s_cmp_ge_u32 s{sT0}, s{sreg}"); a(f"s_cbranch_scc1 L_lk{n}")
            a(f"s_sub_u32 s{sSpin}, s{sSpin}, 1"); a(f"s_cmp_eq_u32 s{sSpin}, 0"); a("s_cbranch_scc1 L_abort")
            a(f"s_branch L_lw{n}")
            a.label(f"L_lk{n}")
        lds_wait_ge(12, sPh)
        set_exec(USEFUL)
        for t in range(3): a(f"ds_write_b128 v{vRA}, {vr(vACC+4*t,4)} offset:{L_REDH + 256*t}")
        set_exec(-1)
        a(f"s_add_u32 s{sPh}, s{sPh}, 1"); a(f"s_add_u32 s{sHead}, s{sHead}, {H}")
        a(f"s_lshl_b32 s{sT1}, s{sW}, 2"); a(f"v_mov_b32 v{T[2]}, s{sT1}"); a(f"v_mov_b32 v{T[3]}, s{sPh}")
        a("s_waitcnt lgkmcnt(0)")
        a(f"ds_write_b32 v{T[2]}, v{T[3]} offset:{L_CTL + 16}")
        a(f"s_add_u32 s{sT2}, s{sPh}, 1")
        lds_wait_ge(32, sT2)
        load_q(); kinit()
        a(f"s_mov_b32 s{sIt}, 0")
        a("s_branch L_kloop")
        a.label("L_lastphase")
    red_write()
    a("s_waitcnt lgkmcnt(0)"); a("s_barrier")
    a(f"s_cmp_lg_u32 s{sW}, 0"); a("s_cbranch_scc1 L_pubdone")
    SB = RING + 24
    a(f"v_lshlrev_b32 v{T[0]}, 4, v{vL}")
    set_exec("0x0000ffffffffffff")
    for s in range(8): a(f"ds_read_b128 {vr(SB+4*s,4)}, v{T[0]} offset:{L_RED + 768*s}")
    a("s_waitcnt lgkmcnt(4)")
    sum_quads(SB, [SB + 4, SB + 8, SB + 12])
    a("s_waitcnt lgkmcnt(0)")
    sum_quads(SB + 16, [SB + 20, SB + 24, SB + 28])
    sum_quads(SB, [SB + 16])
    tag4(SB)
    pub_store(vr(SB,4), vOPA, sU2)
    if stage1:
        a(f"s_and_b32 s{sT0}, s{sNon}, 0xffffff00"); a(f"s_or_b32 s{sT0}, s{sT0}, 255"); a(f"v_mov_b32 v{T[1]}, s{sT0}")
        a(f"s_and_b32 s{sT0}, s2, 7"); a(f"s_lshl_b32 s{sT0}, s{sT0}, 7"); a(f"s_lshr_b32 s{sT1}, s2, 3"); a(f"s_lshl_b32 s{sT1}, s{sT1}, 2")
        a(f"s_add_u32 s{sT0}, s{sT0}, s{sT1}"); a(f"s_add_u32 s{sT0}, s{sT0}, {PROG}")
        set_exec(1)
        a(f"buffer_store_dword v{T[1]}, v{vZ}, {srd(WSR)}, s{sT0} offen")
    set_exec(-1)
    a.label("L_pubdone")
    def class_wait():
        if not stage1: return
        n = newlab()
        a(f"s_and_b32 s{sT0}, s{sNon}, 0xffffff00"); a(f"s_or_b32 s{sT0}, s{sT0}, 255"); a(f"v_mov_b32 v{T[1]}, s{sT0}")
        a(f"s_and_b32 s{sT0}, s2, 7"); a(f"s_lshl_b32 s{sT0}, s{sT0}, 7"); a(f"s_add_u32 s{sT0}, s{sT0}, {PROG}")
        a(f"v_and_b32 v{T[0]}, 31, v{vL}"); a(f"v_lshlrev_b32 v{T[0]}, 2, v{T[0]}")
        a(f"s_mov_b32 s{sSpin}, {stage1}")
        a.label(f"L_cw{n}")
        a(f"buffer_load_dword v{T[2]}, v{T[0]}, {srd(WSR)}, s{sT0} offen sc1")
        a(f"s_sub_u32 s{sSpin}, s{sSpin}, 1"); a(f"s_cmp_eq_u32 s{sSpin}, 0"); a(f"s_cbranch_scc1 L_cwd{n}")
        a("s_waitcnt vmcnt(0)")
        a(f"v_cmp_ne_u32 vcc, v{T[2]}, v{T[1]}"); a("s_cbranch_vccnz L_cw%d" % n)
        a.label(f"L_cwd{n}")
        a("s_waitcnt vmcnt(0)")
    a.label("L_tail")
    stamp(7)
    RB = RING + 60
    a(f"s_cmp_eq_u32 s{sRole}, 1"); a("s_cbranch_scc1 L_roleF")
    a(f"s_cmp_eq_u32 s{sRole}, 2"); a("s_cbranch_scc1 L_roleR")

    def rowproj(ngroups, wbase, srcs, dstbase):
        for gi in range(ngroups):
            a_operand(srcs[gi])
            for cb in range(5):
                a(f"v_mfma_f32_16x16x32_bf16 {vr(vX+4*cb,4)}, {vr(vA,4)}, {vr(wbase + 4*(5*gi+cb),4)}, {vr(vX+4*cb,4)}")
        set_exec(USEFUL)
        for cb in range(5): a(f"ds_write_b128 v{P}, {vr(vX+4*cb,4)} offset:{L_RED2 + 512*cb}")
        set_exec(-1)
        a(f"v_lshlrev_b32 v{T[0]}, 4, v0")
        a(f"s_lshl_b32 s{sT0}, s{sRI}, 7"); a(f"s_add_u32 s{sT0}, s{sT0}, {dstbase}")
        a("s_waitcnt lgkmcnt(0)"); a("s_barrier")
        n = newlab()
        a(f"v_cmp_gt_u32 vcc, 160, v0"); a(f"s_and_saveexec_b64 {sp(sE)}, vcc"); a(f"s_cbranch_execz L_rpd{n}")
        for s in range(4): a(f"ds_read_b128 {vr(vX+4*s,4)}, v{T[0]} offset:{L_RED2 + 2560*s}")
        a("s_waitcnt lgkmcnt(0)")
        sum_quads(vX, [vX + 4]); sum_quads(vX + 8, [vX + 12]); sum_quads(vX, [vX + 8])
        tag4(vX)
        a(f"buffer_store_dwordx4 {vr(vX,4)}, v{P+1}, {srd(WSR)}, s{sT0} offen sc1")
        a.label(f"L_rpd{n}")
        a(f"s_mov_b64 exec, {sp(sE)}")

    NL = 2 if WPH == 32 else 1
    a(f"s_mul_i32 s{sT0}, s{sOH}, {WPH*192}"); a(f"s_add_u32 s{sU}, s{sT0}, {OP}")
    a(f"s_mul_i32 s{sT1}, s{sW}, 48"); a(f"s_add_u32 s{sU}, s{sU}, s{sT1}")
    a(f"v_lshrrev_b32 v{T[3]}, 2, v{vL}"); a(f"v_and_b32 v{T[3]}, {min(WPH,16)-1}, v{T[3]}"); a(f"v_mul_u32_u24 v{T[3]}, 192, v{T[3]}")
    a(f"v_and_b32 v{T[4]}, 3, v{vL}"); a(f"v_min_u32 v{T[4]}, 2, v{T[4]}"); a(f"v_lshlrev_b32 v{T[4]}, 4, v{T[4]}"); a(f"v_add_u32 v{T[3]}, v{T[3]}, v{T[4]}")
    def o_iss():
        for k in range(NL):
            a(f"buffer_load_dwordx4 {vr(RB+4*k,4)}, v{T[3]}, {srd(WSR)}, s{sU} offen offset:{3072*k} sc1")
    def o_chk():
        for k in range(NL): check4(RB + 4*k, T[0], T[1], k == 0)
    poll(o_iss, o_chk)
    stamp(8)
    if NL == 2: sum_quads(RB, [RB + 4])
    for m in ("row_ror:4", "row_ror:8"):
        for i in range(4): dpp("v_add_f32", RB + i, m)
    o4 = [("v_add_f32", RB + i) for i in range(4)]
    swap_reduce(o4, T[0:4], "v_permlane16_swap_b32")
    if WPH >= 16: swap_reduce(o4, T[0:4], "v_permlane32_swap_b32")
    for g in range(1, 4): a(f"v_cndmask_b32 v{RB}, v{RB}, v{RB+g}, {sp(sRow+2*(g-1))}")
    a(f"v_cvt_pk_bf16_f32 v{RB}, v{RB}, v{RB}")
    for gi in range(3): a(f"v_mov_b32_dpp v{RB+8+gi}, v{RB} quad_perm:[{gi},{gi},{gi},{gi}] row_mask:0xf bank_mask:0xf")
    rowproj(3, W, [RB+8, RB+9, RB+10], ZZ)
    dump_stamps()
    a("s_branch L_end")

    a.label("L_roleF")
    HQ = RB
    PK = RB + 16
    class_wait()
    a(f"v_min_u32 v{T[5]}, 39, v{vL}"); a(f"s_mul_i32 s{sT0}, s{sW}, 40"); a(f"v_add_u32 v{T[5]}, s{sT0}, v{T[5]}"); a(f"v_lshlrev_b32 v{T[5]}, 4, v{T[5]}")
    a(f"s_and_b32 s{sU}, s2, 7"); a(f"s_lshl_b32 s{sU}, s{sU}, 12"); a(f"s_add_u32 s{sU}, s{sU}, {HH}")
    def f_iss():
        a(f"buffer_load_dwordx4 {vr(HQ,4)}, v{T[5]}, {srd(WSR)}, s{sU} offen sc1")
    def f_chk():
        check4(HQ, T[0], T[1], True)
    FA = RING + 24
    FW = RB + 22
    DA = vACC
    def f_pre():
        a(f"s_lshl_b32 s{sT0}, s{sW}, 12"); a(f"s_add_u32 s{sT0}, s{sT0}, {L_SC}")
        a(f"v_lshlrev_b32 v{FW}, 6, v{vL}"); a(f"v_add_u32 v{FW}, s{sT0}, v{FW}")
        a(f"v_mov_b32 v{T[0]}, 0"); a(f"v_mov_b32 v{T[1]}, s{sT0}")
        a(f"ds_write_b32 v{T[1]}, v{T[0]} offset:2560")
        a(f"v_lshrrev_b32 v{FW+1}, 2, v{vL}"); a(f"v_lshlrev_b32 v{FW+1}, 4, v{FW+1}")
        a(f"v_and_b32 v{T[0]}, 3, v{vL}")
        a(f"v_mov_b32 v{T[1]}, 0x08000c04"); a(f"v_lshlrev_b32 v{T[0]}, 3, v{T[0]}"); a(f"v_lshrrev_b32 v{T[1]}, v{T[0]}, v{T[1]}"); a(f"v_and_b32 v{T[1]}, 0xff, v{T[1]}")
        a(f"v_add3_u32 v{FW+1}, v{FW+1}, v{T[1]}, s{sT0}")
        a(f"v_add_u32 v{FW+2}, 1024, v{FW+1}"); a(f"v_add_u32 v{FW+3}, 2048, v{FW+1}")
        a(f"v_lshrrev_b32 v{T[0]}, 4, v{vL}"); a(f"s_lshl_b32 s{sT0}, s{sW}, 2"); a(f"v_add_u32 v{T[0]}, s{sT0}, v{T[0]}"); a(f"v_lshlrev_b32 v{T[0]}, 7, v{T[0]}")
        a(f"v_and_b32 v{T[1]}, 3, v{vL}"); a(f"v_lshlrev_b32 v{T[1]}, 5, v{T[1]}"); a(f"v_add_u32 v{FW+4}, v{T[0]}, v{T[1]}")
        a(f"v_and_b32 v{T[0]}, 31, v{vL}"); a(f"v_lshlrev_b32 v{T[0]}, 2, v{T[0]}")
        a(f"v_lshrrev_b32 v{T[1]}, 5, v{vL}"); a(f"v_lshlrev_b32 v{T[1]}, 10, v{T[1]}"); a(f"v_add_u32 v{FW+5}, v{T[0]}, v{T[1]}")
        a(f"v_lshrrev_b32 v{T[0]}, 4, v{vL}"); a(f"s_lshl_b32 s{sT0}, s{sW}, 2"); a(f"v_add_u32 v{T[0]}, s{sT0}, v{T[0]}"); a(f"v_lshlrev_b32 v{FW+6}, 2, v{T[0]}")
        for i in range(8): a(f"v_mov_b32 v{DA+i}, 0")
        a(f"v_mov_b32 v{FW+7}, 0x3f803f80")
        a(f"v_cmp_gt_u32 {sp(sE)}, 40, v{vL}")
        a(f"s_lshl_b32 s{sT0}, s{sW}, 3"); a(f"v_mov_b32 v{PK+2}, s{sT0}")
    poll(f_iss, f_chk, pre=f_pre)
    stamp(10)
    a(f"v_perm_b32 v{PK}, v{HQ+1}, v{HQ}, s{sPkSel}"); a(f"v_perm_b32 v{PK+1}, v{HQ+3}, v{HQ+2}, s{sPkSel}")
    a(f"v_cndmask_b32 v{PK}, 0, v{PK}, {sp(sE)}"); a(f"v_cndmask_b32 v{PK+1}, 0, v{PK+1}, {sp(sE)}")
    t0, t1, t2, t3, t4 = T[0:5]
    a(f"v_dot2_f32_bf16 v{t0}, v{PK}, v{FW+7}, 0"); a(f"v_dot2_f32_bf16 v{t1}, v{PK}, v{PK}, 0")
    a(f"v_dot2_f32_bf16 v{t0}, v{PK+1}, v{FW+7}, v{t0}"); a(f"v_dot2_f32_bf16 v{t1}, v{PK+1}, v{PK+1}, v{t1}")
    for i in range(4): a(f"v_and_b32 v{HQ+12+i}, 0xffff0000, v{HQ+i}")
    assert t1 == t0 + 1 and t0 % 2 == 1
    allreduce_n([("v_add_f32", t0), ("v_add_f32", t1)], [t2, t3])
    a(f"v_mov_b32 v{HQ+4}, v{t0}"); a(f"v_mov_b32 v{HQ+5}, v{t1}")
    set_exec(1)
    a(f"ds_write_b64 v{PK+2}, {vr(HQ+4,2)} offset:{L_STAT}")
    set_exec(-1)
    a("s_waitcnt lgkmcnt(0)"); a("s_barrier")
    a(f"ds_read_b128 {vr(HQ+4,4)}, v{vZ} offset:{L_STAT}"); a(f"ds_read_b128 {vr(HQ+8,4)}, v{vZ} offset:{L_STAT+16}")
    a("s_waitcnt lgkmcnt(0)")
    pkadd(HQ + 4, HQ + 4, HQ + 6); pkadd(HQ + 8, HQ + 8, HQ + 10); pkadd(HQ + 4, HQ + 4, HQ + 8)
    a(f"v_mov_b32 v{t0}, v{HQ+4}"); a(f"v_mov_b32 v{t1}, v{HQ+5}")
    ln_consts(t0, t1, t2)
    a(f"v_rcp_f32 v{t4}, v{t1}")
    O4 = HQ + 12
    for i in range(4): a(f"v_sub_f32 v{O4+i}, v{O4+i}, v{t0}")
    a(f"v_cvt_pk_bf16_f32 v{t2}, v{O4}, v{O4+1}"); a(f"v_cvt_pk_bf16_f32 v{t3}, v{O4+2}, v{O4+3}")
    a(f"v_lshlrev_b32 v{O4}, 16, v{t2}"); a(f"v_and_b32 v{O4+1}, 0xffff0000, v{t2}"); a(f"v_lshlrev_b32 v{O4+2}, 16, v{t3}"); a(f"v_and_b32 v{O4+3}, 0xffff0000, v{t3}")
    for i in range(4): a(f"v_mul_f32 v{O4+i}, v{O4+i}, v{t4}")
    a(f"v_cvt_pk_bf16_f32 v{t2}, v{O4}, v{O4+1}"); a(f"v_cvt_pk_bf16_f32 v{t3}, v{O4+2}, v{O4+3}")
    PR = FA
    for r_, (src, hi) in enumerate(((t2, 0), (t2, 1), (t3, 0), (t3, 1))):
        b = PR + 4 * r_
        a(f"v_mov_b32 v{b}, 0"); a(f"v_mov_b32 v{b+2}, 0")
        if hi:
            a(f"v_lshrrev_b32 v{b+1}, 16, v{src}"); a(f"v_and_b32 v{b+3}, 0xffff0000, v{src}")
        else:
            a(f"v_and_b32 v{b+1}, 0xffff, v{src}"); a(f"v_lshlrev_b32 v{b+3}, 16, v{src}")
    set_exec("0x000000ffffffffff")
    for r_ in range(4): a(f"ds_write_b128 v{FW}, {vr(PR+4*r_,4)} offset:{16*r_}")
    set_exec(-1)
    a("s_waitcnt lgkmcnt(0)")
    for k in range(10):
        base = FW + 1 + k // 4
        a(f"ds_read2_b32 {vr(FA+2*k,2)}, v{base} offset0:{(k%4)*64} offset1:{(k%4)*64+1}")
    DB = DA + 4
    for k in range(10):
        a(f"s_waitcnt lgkmcnt({9-k})")
        a(f"v_mfma_f32_4x4x4_16b_bf16 {vr(DA,4)}, {vr(FA+2*k,2)}, {vr(W+4*k,2)}, {vr(DA,4)}")
        a(f"v_mfma_f32_4x4x4_16b_bf16 {vr(DB,4)}, {vr(FA+2*k,2)}, {vr(W+4*k+2,2)}, {vr(DB,4)}")
    for m in ("row_ror:4", "row_ror:8"):
        for i in range(8): dpp("v_add_f32", DA + i, m)
    set_exec("0x000f000f000f000f")
    a(f"ds_write_b128 v{FW+4}, {vr(DA,4)} offset:{L_RED3}")
    a(f"ds_write_b128 v{FW+4}, {vr(DB,4)} offset:{L_RED3+16}")
    set_exec(-1)
    a("s_waitcnt lgkmcnt(0)"); a("s_barrier")
    HR = FA
    for s in range(8): a(f"ds_read_b32 v{HR+s}, v{FW+5} offset:{L_RED3 + 128*s}")
    a("s_waitcnt lgkmcnt(0)")
    for s in range(0, 8, 4): pkadd(HR + s, HR + s, HR + s + 2)
    pkadd(HR, HR, HR + 4)
    a(f"v_add_f32 v{HR}, v{HR}, v{HR+1}")
    a(f"v_mov_b32 v{T[0]}, v{HR}"); a(f"v_permlane32_swap_b32 v{T[0]}, v{HR}"); a(f"v_add_f32 v{HR}, v{HR}, v{T[0]}")
    rne(HR, HR)
    a(f"v_mov_b32 v{T[0]}, v{HR}"); a(f"v_permlane16_swap_b32 v{T[0]}, v{HR}")
    a(f"v_mul_f32 v{T[1]}, {f32hex(-LOG2E)}, v{T[0]}"); a(f"v_min_f32 v{T[1]}, 0x42fc0000, v{T[1]}"); a(f"v_exp_f32 v{T[1]}, v{T[1]}")
    a(f"v_add_f32 v{T[1]}, 1.0, v{T[1]}"); a(f"v_rcp_f32 v{T[2]}, v{T[1]}")
    a(f"v_mul_f32 v{T[3]}, v{T[0]}, v{T[2]}")
    rne(T[3], T[3])
    a(f"v_mul_f32 v{T[3]}, v{T[3]}, v{HR}")
    a(f"v_cvt_pk_bf16_f32 v{T[3]}, v{T[3]}, v{T[3]}")
    a(f"ds_bpermute_b32 v{HR+1}, v{FW+6}, v{T[3]}")
    a("s_waitcnt lgkmcnt(0)")
    stamp(11)
    rowproj(1, W + 40, [HR+1], YY)
    dump_stamps()
    a("s_branch L_end")

    a.label("L_roleR")
    a(f"s_cmp_ge_u32 s{sRI}, 20"); a("s_cbranch_scc1 L_fin")
    RS = RING + 24
    RS = RING + 40
    XS = RB
    WRr = RB + 8
    HV = RB + 16
    HPK = RB + 28
    HS = vQ + 4
    SIG = vQ + 8
    def reduce_parts(base, nsrc, nld, lds, pre=None):
        a(f"s_mul_i32 s{sU}, s{sRI}, {nsrc*128}"); a(f"s_add_u32 s{sU}, s{sU}, {base}")
        a(f"v_lshlrev_b32 v{T[3]}, 4, v0")
        def iss():
            for k in range(nld):
                a(f"s_add_u32 s{sT1}, s{sU}, {4096*k}")
                a(f"buffer_load_dwordx4 {vr(RS+4*k,4)}, v{T[3]}, {srd(WSR)}, s{sT1} offen sc1")
        def chk():
            for k in range(nld): check4(RS + 4*k, T[0], T[1], k == 0)
        def pre2():
            if pre: pre()
            a(f"v_and_b32 v{T[4]}, 7, v{vL}"); a(f"v_lshlrev_b32 v{T[4]}, 4, v{T[4]}")
            a(f"s_lshl_b32 s{sT0}, s{sW}, 7"); a(f"v_add_u32 v{T[5]}, s{sT0}, v{T[4]}")
        poll(iss, chk, pre=pre2)
        if nld == 4:
            sum_quads(RS, [RS + 4]); sum_quads(RS + 8, [RS + 12]); sum_quads(RS, [RS + 8])
        else:
            sum_quads(RS, [RS + 4, RS + 8])
        for i in range(4): dpp("v_add_f32", RS + i, "row_ror:8")
        o4 = [("v_add_f32", RS + i) for i in range(4)]
        swap_reduce(o4, [RS + 4 + i for i in range(4)], "v_permlane16_swap_b32")
        swap_reduce(o4, [RS + 4 + i for i in range(4)], "v_permlane32_swap_b32")
        set_exec("0x00000000000000ff")
        a(f"ds_write_b128 v{T[5]}, {vr(RS,4)} offset:{lds}")
        set_exec(-1)
        a("s_waitcnt lgkmcnt(0)"); a("s_barrier")
        for s in range(4): a(f"ds_read_b128 {vr(RS+4*s,4)}, v{T[4]} offset:{lds + 128*s}")
        a("s_waitcnt lgkmcnt(0)")
        sum_quads(RS, [RS + 4]); sum_quads(RS + 8, [RS + 12]); sum_quads(RS, [RS + 8])
    def r_pre1():
        a(f"v_and_b32 v{T[0]}, 7, v{vL}"); a(f"v_lshlrev_b32 v{T[0]}, 3, v{T[0]}"); a(f"s_lshl_b32 s{sT0}, s{sRI}, 6"); a(f"v_add_u32 v{T[0]}, s{sT0}, v{T[0]}")
        a(f"global_load_dwordx2 {vr(XS+4,2)}, v{T[0]}, {sp(pX)}")
        a(f"v_lshlrev_b32 v{T[1]}, 3, v{vL}"); a(f"v_add_u32 v{T[2]}, 1024, v{T[1]}"); a(f"v_min_u32 v{T[2]}, 1272, v{T[2]}")
        a(f"global_load_dwordx2 {vr(WRr,2)}, v{T[1]}, {sp(pWR)}")
        a(f"global_load_dwordx2 {vr(WRr+2,2)}, v{T[1]}, {sp(pWR)} offset:512")
        a(f"global_load_dwordx2 {vr(WRr+4,2)}, v{T[2]}, {sp(pWR)}")
        a(f"v_lshrrev_b32 v{SIG+2}, 3, v{vL}"); a(f"v_lshlrev_b32 v{SIG+2}, 12, v{SIG+2}")
        a(f"v_and_b32 v{SIG+3}, 7, v{vL}"); a(f"v_lshlrev_b32 v{SIG+3}, 4, v{SIG+3}"); a(f"v_add_u32 v{SIG+2}, v{SIG+2}, v{SIG+3}")
        a(f"s_lshl_b32 s{sU2}, s{sRI}, 7"); a(f"s_add_u32 s{sU2}, s{sU2}, {HH}")
        a(f"global_load_dword v{SIG}, v{T[0]}, {sp(pOUT)}")
    class_wait()
    reduce_parts(ZZ, 128, 4, L_RED3, pre=r_pre1)
    stamp(9)
    for h in range(2):
        a(f"v_lshlrev_b32 v{XS+2*h}, 16, v{XS+4+h}"); a(f"v_and_b32 v{XS+2*h+1}, 0xffff0000, v{XS+4+h}")
    a(f"v_cvt_pk_bf16_f32 v{RS}, v{RS}, v{RS+1}"); a(f"v_cvt_pk_bf16_f32 v{RS+2}, v{RS+2}, v{RS+3}")
    a(f"v_and_b32 v{RS+1}, 0xffff0000, v{RS}"); a(f"v_lshlrev_b32 v{RS}, 16, v{RS}"); a(f"v_and_b32 v{RS+3}, 0xffff0000, v{RS+2}"); a(f"v_lshlrev_b32 v{RS+2}, 16, v{RS+2}")
    pkadd(XS, XS, RS); pkadd(XS + 2, XS + 2, RS + 2)
    a(f"v_cvt_pk_bf16_f32 v{RS}, v{XS}, v{XS+1}"); a(f"v_cvt_pk_bf16_f32 v{RS+2}, v{XS+2}, v{XS+3}")
    a(f"v_and_b32 v{XS+1}, 0xffff0000, v{RS}"); a(f"v_lshlrev_b32 v{XS}, 16, v{RS}"); a(f"v_and_b32 v{XS+3}, 0xffff0000, v{RS+2}"); a(f"v_lshlrev_b32 v{XS+2}, 16, v{RS+2}")
    for i in range(4): a(f"v_perm_b32 v{RS+i}, v{XS+i}, v{vN}, s{sSel+i}")
    a(f"s_cmp_lg_u32 s{sW}, 0"); a("s_cbranch_scc1 L_rnopub")
    a(f"buffer_store_dwordx4 {vr(RS,4)}, v{SIG+2}, {srd(WSR)}, s{sU2} offen sc1")
    a.label("L_rnopub")
    a(f"v_lshlrev_b32 v{T[3]}, 4, v{vL}")
    a(f"v_add_u32 v{T[4]}, 2048, v{T[3]}"); a(f"v_min_u32 v{T[4]}, 2544, v{T[4]}")
    a(f"s_and_b32 s{sU}, s2, 7"); a(f"s_lshl_b32 s{sU}, s{sU}, 12"); a(f"s_add_u32 s{sU}, s{sU}, {HH}")
    def r_iss():
        a(f"buffer_load_dwordx4 {vr(HV,4)}, v{T[3]}, {srd(WSR)}, s{sU} offen sc1")
        a(f"buffer_load_dwordx4 {vr(HV+4,4)}, v{T[3]}, {srd(WSR)}, s{sU} offen offset:1024 sc1")
        a(f"buffer_load_dwordx4 {vr(HV+8,4)}, v{T[4]}, {srd(WSR)}, s{sU} offen sc1")
    def r_chk():
        for k in range(3): check4(HV + 4*k, T[0], T[1], k == 0)
    poll(r_iss, r_chk)
    stamp(10)
    for i in range(12): a(f"v_and_b32 v{HV+i}, 0xffff0000, v{HV+i}")
    a(f"v_cmp_gt_u32 vcc, 32, v{vL}")
    for i in range(8, 12): a(f"v_cndmask_b32 v{HV+i}, 0, v{HV+i}, vcc")
    for k in range(6): a(f"v_perm_b32 v{HPK+k}, v{HV+2*k+1}, v{HV+2*k}, s{sPkSel}")
    layernorm_full(HV, HPK, T[0:5], False)
    a(f"v_cmp_gt_u32 vcc, 32, v{vL}")
    a(f"v_cndmask_b32 v{WRr+4}, 0, v{WRr+4}, vcc"); a(f"v_cndmask_b32 v{WRr+5}, 0, v{WRr+5}, vcc")
    a(f"v_dot2_f32_bf16 v{T[0]}, v{HPK}, v{WRr}, 0")
    for k in range(1, 6): a(f"v_dot2_f32_bf16 v{T[0]}, v{HPK+k}, v{WRr+k}, v{T[0]}")
    allreduce("v_add_f32", T[0], T[1])
    rne(T[0], T[0])
    a(f"v_mul_f32 v{T[1]}, {f32hex(-LOG2E)}, v{T[0]}"); a(f"v_min_f32 v{T[1]}, 0x42fc0000, v{T[1]}"); a(f"v_exp_f32 v{T[1]}, v{T[1]}")
    a(f"v_add_f32 v{T[1]}, 1.0, v{T[1]}"); a(f"v_rcp_f32 v{T[2]}, v{T[1]}")
    rne(SIG, T[2])
    a(f"s_lshl_b32 s{sT0}, s{sRI}, 3"); a(f"s_lshr_b32 s{sT1}, s{sT0}, 6"); a(f"s_and_b32 s{sT0}, s{sT0}, 63")
    a(f"v_and_b32 v{T[0]}, 7, v{vL}"); a(f"v_add_u32 v{T[0]}, s{sT0}, v{T[0]}"); a(f"v_lshlrev_b32 v{T[0]}, 2, v{T[0]}")
    for i in range(4): a(f"v_mov_b32 v{HS+i}, v{HV+i}")
    a(f"s_cmp_eq_u32 s{sT1}, 0"); a("s_cbranch_scc1 L_hs")
    for i in range(4): a(f"v_mov_b32 v{HS+i}, v{HV+4+i}")
    a(f"s_cmp_eq_u32 s{sT1}, 1"); a("s_cbranch_scc1 L_hs")
    for i in range(4): a(f"v_mov_b32 v{HS+i}, v{HV+8+i}")
    a.label("L_hs")
    for i in range(4): a(f"ds_bpermute_b32 v{HS+i}, v{T[0]}, v{HS+i}")
    a("s_waitcnt lgkmcnt(0)")
    stamp(11)
    def r_pre2():
        a(f"v_lshlrev_b32 v{SIG+1}, 3, v{vL}"); a(f"s_lshl_b32 s{sT0}, s{sRI}, 6"); a(f"v_add_u32 v{SIG+1}, s{sT0}, v{SIG+1}")
    reduce_parts(YY, 96, 3, L_RED2, pre=r_pre2)
    stamp(12)
    def rne4(b):
        a(f"v_cvt_pk_bf16_f32 v{b}, v{b}, v{b+1}"); a(f"v_cvt_pk_bf16_f32 v{b+2}, v{b+2}, v{b+3}")
        a(f"v_and_b32 v{b+1}, 0xffff0000, v{b}"); a(f"v_lshlrev_b32 v{b}, 16, v{b}"); a(f"v_and_b32 v{b+3}, 0xffff0000, v{b+2}"); a(f"v_lshlrev_b32 v{b+2}, 16, v{b+2}")
    rne4(RS)
    for i in range(4): a(f"v_mul_f32 v{RS+i}, v{RS+i}, v{SIG}")
    rne4(RS)
    pkadd(RS, RS, HS); pkadd(RS + 2, RS + 2, HS + 2)
    rne4(RS)
    pkadd(RS, RS, XS); pkadd(RS + 2, RS + 2, XS + 2)
    a(f"v_cvt_pk_bf16_f32 v{RS}, v{RS}, v{RS+1}"); a(f"v_cvt_pk_bf16_f32 v{RS+1}, v{RS+2}, v{RS+3}")
    a(f"s_cmp_lg_u32 s{sW}, 0"); a("s_cbranch_scc1 L_fin")
    set_exec("0x00000000000000ff")
    a(f"global_store_dwordx2 v{SIG+1}, {vr(RS,2)}, {sp(pOUT)}")
    a(f"s_cmp_lg_u32 s{sRI}, 0"); a("s_cbranch_scc1 L_fin")
    set_exec(1)
    a(f"v_mov_b32 v{T[1]}, 0")
    a(f"buffer_store_dword v{vN}, v{T[1]}, {srd(WSR)}, 0 offen offset:{EPOCH}")
    a.label("L_fin")
    dump_stamps()
    a.label("L_abort")
    a.label("L_end")
    a("s_endpgm")
    a.label("L_codeend")
    body = a.text()
    tail = f""".section .rodata,"a"
.p2align 6
.amdhsa_kernel {NAME}
  .amdhsa_next_free_vgpr {NV}
  .amdhsa_next_free_sgpr 100
  .amdhsa_accum_offset {NV}
  .amdhsa_group_segment_fixed_size 0
  .amdhsa_kernarg_size 104
  .amdhsa_user_sgpr_count 2
  .amdhsa_user_sgpr_kernarg_segment_ptr 1
  .amdhsa_system_sgpr_workgroup_id_x 1
.end_amdhsa_kernel
"""
    return body + tail

if __name__ == "__main__":
    kw = json.loads(sys.argv[1]) if len(sys.argv) > 1 else {}
    sys.stdout.write(gen(**kw))
```

```python
import sys, json, struct
from asmlib import Asm

NAME = "sequential_preLN__mha_block_cached__moe_arch_mod__decode_kernel"
def f32hex(x): return "0x%08x" % struct.unpack("<I", struct.pack("<f", x))[0]

HB = 12582912
EPOCH = 0
QP = 0x1000
ML = 0x48000
OP = 0x60000
ZZ = 0x130000
HH = 0x1D0000
YY = 0x181000
CLS = 0x1C0000
GLOB = 0x1C2000
PROG = 0x1C1000
WS_SIZE = 0x200000
L_XN = 0
L_Q = 5120
L_RED = 6656
L_RED2 = 12800
L_RED3 = 23040
L_SC = 25088
L_STAT = 2304
L_CTL = 2048
L_REDH = 25088 + 16384 + 512
LDS_BYTES = 25088 + 16384 + 512 + 6144
LOG2E = 1.4426950408889634

def gen(H=32, PK=13, ctl=1, thr=27, local=1, pace=1, wpol="nt", qpol="nt", stage1=64, nb=6, nx_=8, early=0, wmix=0, xctl=0, thr_odd=None, cthr=5, clead=1, thr_lo=10, thr_hi=32, cmed=16, lds=LDS_BYTES, dbg=0, pol="nt", spin=1 << 19, codepf=1):
    nph = 32 // H
    WPH = 256 // H
    NWH = WPH * 4
    G = 4096 // NWH
    NIT = G // 8
    STRIDE = NWH * 3072
    assert 2 <= PK <= 13 and NIT >= 4 and nb <= 9 and nx_ <= 12
    a = Asm()

    vL, vSA, vN = 1, 2, 3
    vM = [4, 5, 6, 7]; vA = 8
    vQ = 12
    vACC = 24
    vC, vMX, vP, vPN, vBC = 36, 37, 38, 39, 40
    T = list(range(41, 48))
    RING = 48
    W = 144
    vX = 204
    vLS, vAL, vRA, vOPA, WA, WB = 224, 225, 226, 227, 228, 230
    vZ, vFL = 232, 233
    NV = 240
    vST = 240
    if dbg: NV = 248
    def ring(slot, t): b = RING + slot * 12 + 4 * t; return f"v[{b}:{b+3}]"
    def vr(b, n): return f"v[{b}:{b+n-1}]"
    sW = 3
    pX, pK, pV, pWQ, pWO, pBX, pWR, pWG, pWU, pWD, pOUT, pDBG, pWS = [4 + 2 * i for i in range(13)]
    STR, WSR, TMP = 32, 36, 40
    sOff, sIt, sHead, sWI, sPh, sNon, sRole, sRI = 44, 45, 46, 47, 48, 49, 50, 51
    sSel = 52
    sSelG = 56
    sT0, sT1, sT2, sT3 = 57, 58, 59, 60
    sInc = 61
    sMask = 62
    sSlot, sJ, sInc4, sSpin = 78, 79, 80, 81
    sE = 82
    sBad = 84
    sU, sU2 = 86, 87
    sRow = 90
    sLoc, sBst, sPrv, sGI, sOH = 30, 31, 97, 98, 99
    sPkSel = 96
    def sp(b): return f"s[{b}:{b+1}]"
    def srd(b): return f"s[{b}:{b+3}]"
    USEFUL = "0xFF00FF0000FF00FF"

    def stamp(k):
        if not dbg: return
        if dbg == 3 and k not in (0, 3, 4, 6, 7, 9, 10, 12, 15): return
        a("s_memrealtime s[88:89]"); a("s_waitcnt lgkmcnt(0)"); a(f"v_writelane_b32 v{vST}, s88, {k}")
    def dump_stamps(helper=False):
        if not dbg: return
        if dbg == 3:
            if helper: return
            n = newlab()
            stamp(15)
            a(f"s_cmp_lg_u32 s{sW}, 0"); a(f"s_cbranch_scc1 L_ds{n}")
            a("s_mov_b64 exec, -1")
            a(f"s_mov_b32 s40, s{pDBG}"); a(f"s_mov_b32 s41, s{pDBG+1}"); a("s_mov_b32 s42, 256"); a("s_mov_b32 s43, 0x20000")
            a(f"v_lshlrev_b32 v{vST+1}, 2, v{vL}")
            a(f"v_mov_b32 v{vST+2}, 0"); a(f"v_mov_b32 v{vST+3}, 0")
            for dst, src, inv in ((0,0,1),(1,3,0),(2,4,0),(3,4,1),(4,6,0),(5,6,1),(6,7,0),(7,9,0),(8,10,0),(9,12,0),(10,15,0)):
                a(f"v_readlane_b32 s88, v{vST}, {src}")
                if inv: a("s_not_b32 s88, s88")
                a("s_nop 3"); a(f"v_writelane_b32 v{vST+2}, s88, {dst}")
            a(f"v_readlane_b32 s89, v{vST}, 0")
            for dst, src in ((11,6),(12,4),(13,3)):
                a(f"v_readlane_b32 s88, v{vST}, {src}"); a("s_nop 3"); a("s_sub_u32 s88, s88, s89"); a("s_nop 3"); a(f"v_writelane_b32 v{vST+3}, s88, {dst}")
            a("s_mov_b64 exec, 0x7ff")
            a(f"buffer_atomic_umax v{vST+2}, v{vST+1}, s[40:43], 0 offen")
            a("s_mov_b64 exec, 0x3800")
            a(f"buffer_atomic_add v{vST+3}, v{vST+1}, s[40:43], 0 offen")
            a.label(f"L_ds{n}")
            return
        stamp(15)
        a("s_mov_b32 exec_lo, -1"); a("s_mov_b32 exec_hi, 0")
        if helper: a("s_add_u32 s88, s2, 1024")
        else: a(f"s_lshl_b32 s88, s2, 2"); a(f"s_add_u32 s88, s88, s{sW}")
        a("s_lshl_b32 s88, s88, 7"); a(f"s_add_u32 s88, s88, {WS_SIZE}")
        a(f"v_lshlrev_b32 v{vST+1}, 2, v{vL}")
        a(f"buffer_store_dword v{vST}, v{vST+1}, {srd(WSR)}, s88 offen")

    DPP4 = ("quad_perm:[1,0,3,2]", "quad_perm:[2,3,0,1]", "row_half_mirror", "row_mirror")
    def dpp(op, v, m): a(f"{op}_dpp v{v}, v{v}, v{v} {m} row_mask:0xf bank_mask:0xf")
    def swap_reduce(ops_vs, tmps, sw):
        for (op, v), t in zip(ops_vs, tmps): a(f"v_mov_b32 v{t}, v{v}")
        for (op, v), t in zip(ops_vs, tmps): a(f"{sw} v{t}, v{v}")
        for (op, v), t in zip(ops_vs, tmps): a(f"{op} v{v}, v{v}, v{t}")
    def allreduce_n(ops_vs, tmps):
        for m in DPP4:
            for op, v in ops_vs: dpp(op, v, m)
        swap_reduce(ops_vs, tmps, "v_permlane16_swap_b32")
        swap_reduce(ops_vs, tmps, "v_permlane32_swap_b32")
    def allreduce(op, v, t): allreduce_n([(op, v)], [t])
    def set_exec(val):
        if isinstance(val, str) and val.startswith("0x") and len(val) > 10:
            a(f"s_mov_b32 exec_lo, 0x{val[-8:]}"); a(f"s_mov_b32 exec_hi, 0x{val[2:-8]}")
        else:
            a(f"s_mov_b64 exec, {val}")
    def a_operand(src, dst=None):
        dst = vA if dst is None else dst
        for r in range(4): a(f"v_and_b32 v{dst+r}, v{src}, v{vM[r]}")
    def tag4(b):
        for r in range(4): a(f"v_perm_b32 v{b+r}, v{b+r}, v{vN}, s{sSel+r}")
    def check4(b, t0, t1, first):
        a(f"v_perm_b32 v{t0}, v{b+1}, v{b}, s{sSelG}")
        a(f"v_perm_b32 v{t1}, v{b+3}, v{b+2}, s{sSelG}")
        a(f"v_lshl_or_b32 v{t0}, v{t1}, 16, v{t0}")
        a(f"v_cmp_ne_u32 vcc, v{t0}, v{vN}")
        if first: a(f"s_mov_b64 {sp(sBad)}, vcc")
        else: a(f"s_or_b64 {sp(sBad)}, {sp(sBad)}, vcc")
    lab = [0]
    def newlab():
        lab[0] += 1; return lab[0]
    def poll(issue, check, pre=None, first_issued=False, first_wait=0):
        n = newlab()
        a(f"s_mov_b32 s{sSpin}, {spin}")
        if not first_issued: issue()
        if pre: pre()
        a(f"s_waitcnt vmcnt({first_wait})")
        a(f"s_branch L_pollchk{n}")
        a.label(f"L_poll{n}")
        a(f"s_sub_u32 s{sSpin}, s{sSpin}, 1")
        a(f"s_cmp_eq_u32 s{sSpin}, 0")
        a("s_cbranch_scc1 L_abort")
        issue()
        a("s_waitcnt vmcnt(0)")
        a.label(f"L_pollchk{n}")
        check()
        a(f"s_cmp_lg_u64 {sp(sBad)}, 0")
        a(f"s_cbranch_scc1 L_poll{n}")
    def pub_store(data, voff, soff):
        n = newlab()
        if local:
            a(f"s_cmp_eq_u32 s{sLoc}, 1"); a(f"s_cbranch_scc1 L_pl{n}")
        a(f"buffer_store_dwordx4 {data}, v{voff}, {srd(WSR)}, s{soff} offen sc1")
        if local:
            a(f"s_branch L_pd{n}")
            a.label(f"L_pl{n}")
            a(f"buffer_store_dwordx4 {data}, v{voff}, {srd(WSR)}, s{soff} offen")
            a.label(f"L_pd{n}")
    def rne(dst, src):
        a(f"v_cvt_pk_bf16_f32 v{dst}, v{src}, v{src}")
        a(f"v_lshlrev_b32 v{dst}, 16, v{dst}")
    def pkadd(d, x, y): a(f"v_pk_add_f32 {vr(d,2)}, {vr(x,2)}, {vr(y,2)}")
    def sum_quads(dst, srcs):
        for s in srcs:
            pkadd(dst, dst, s); pkadd(dst + 2, dst + 2, s + 2)

    def ln_consts(s1, s2, t):
        a(f"v_mul_f32 v{s1}, {f32hex(1.0/640)}, v{s1}")
        a(f"v_mul_f32 v{s2}, {f32hex(1.0/640)}, v{s2}")
        a(f"v_fma_f32 v{s2}, -v{s1}, v{s1}, v{s2}")
        a(f"v_max_f32 v{s2}, 0, v{s2}")
        rne(s2, s2)
        a(f"v_add_f32 v{s2}, {f32hex(1e-5)}, v{s2}")
        rne(s2, s2)
        rne(s1, s1)
        a(f"v_sqrt_f32 v{s2}, v{s2}")
        rne(s2, s2)

    def layernorm_full(val, pk, tmp, refine):
        t0, t1, t2, t3, t4 = tmp
        ONES = t4
        a(f"v_mov_b32 v{ONES}, 0x3f803f80")
        a(f"v_dot2_f32_bf16 v{t0}, v{pk}, v{ONES}, 0"); a(f"v_dot2_f32_bf16 v{t1}, v{pk}, v{pk}, 0")
        for i in range(1, 6):
            a(f"v_dot2_f32_bf16 v{t0}, v{pk+i}, v{ONES}, v{t0}"); a(f"v_dot2_f32_bf16 v{t1}, v{pk+i}, v{pk+i}, v{t1}")
        allreduce_n([("v_add_f32", t0), ("v_add_f32", t1)], [t2, t3])
        ln_consts(t0, t1, t2)
        a(f"v_rcp_f32 v{t4}, v{t1}")
        for i in range(0, 12, 2):
            a(f"v_sub_f32 v{val+i}, v{val+i}, v{t0}")
            a(f"v_sub_f32 v{val+i+1}, v{val+i+1}, v{t0}")
            a(f"v_cvt_pk_bf16_f32 v{t2}, v{val+i}, v{val+i+1}")
            a(f"v_lshlrev_b32 v{val+i}, 16, v{t2}")
            a(f"v_and_b32 v{val+i+1}, 0xffff0000, v{t2}")
            for k in (i, i + 1):
                if refine:
                    a(f"v_mul_f32 v{t2}, v{val+k}, v{t4}")
                    a(f"v_fma_f32 v{t3}, -v{t2}, v{t1}, v{val+k}")
                    a(f"v_fma_f32 v{val+k}, v{t3}, v{t4}, v{t2}")
                else:
                    a(f"v_mul_f32 v{val+k}, v{val+k}, v{t4}")
            a(f"v_cvt_pk_bf16_f32 v{pk + i//2}, v{val+i}, v{val+i+1}")
            a(f"v_lshlrev_b32 v{val+i}, 16, v{pk + i//2}")
            a(f"v_and_b32 v{val+i+1}, 0xffff0000, v{pk + i//2}")

    a.lines.append(f"; @launch grid=(256,1,1) block=(320,1,1) lds={lds}")
    a.lines.append('.amdgcn_target "amdgcn-amd-amdhsa--gfx950"')
    a.lines += [".text", f".globl {NAME}", ".p2align 8", f".type {NAME},@function"]
    a.label(NAME)
    a("s_cmp_ge_u32 s2, 256")
    a("s_cbranch_scc1 L_end")
    a("s_load_dwordx16 s[4:19], s[0:1], 0")
    a("s_load_dwordx8 s[20:27], s[0:1], 64")
    a("s_load_dwordx2 s[28:29], s[0:1], 96")
    a(f"v_and_b32 v{vL}, 63, v0")
    a(f"v_lshrrev_b32 v{T[0]}, 6, v0")
    a(f"v_lshrrev_b32 v{T[2]}, 3, v{vL}")
    a(f"v_readfirstlane_b32 s{sW}, v{T[0]}")
    a(f"v_and_b32 v{T[3]}, 7, v{vL}")
    a(f"v_lshlrev_b32 v{T[4]}, 4, v{T[3]}")
    def masks():
        for r in range(4):
            a(f"v_mov_b32 v{vM[r]}, 0")
            a(f"v_mov_b32 v{T[5]}, 0xffff")
            a(f"v_cmp_eq_u32 vcc, {2*r}, v{T[3]}")
            a(f"v_cndmask_b32 v{vM[r]}, v{vM[r]}, v{T[5]}, vcc")
            a(f"v_mov_b32 v{T[5]}, 0xffff0000")
            a(f"v_cmp_eq_u32 vcc, {2*r+1}, v{T[3]}")
            a(f"v_cndmask_b32 v{vM[r]}, v{vM[r]}, v{T[5]}, vcc")
    def ws_srd():
        a(f"s_mov_b32 s{WSR}, s{pWS}"); a(f"s_mov_b32 s{WSR+1}, s{pWS+1}"); a(f"s_mov_b32 s{WSR+2}, {WS_SIZE * (2 if dbg else 1)}"); a(f"s_mov_b32 s{WSR+3}, 0x20000")
    vq = []
    def wait_for(name):
        if name not in vq: return
        idx = max(i for i, n in enumerate(vq) if n == name)
        n = len(vq) - 1 - idx
        a(f"s_waitcnt vmcnt({min(n, 63)})")
        del vq[:idx + 1]
    def red_addr():
        a(f"v_lshrrev_b32 v{T[0]}, 5, v{vL}")
        a(f"v_mul_u32_u24 v{vRA}, 768, v{T[0]}")
        a(f"v_and_b32 v{T[0]}, 7, v{vL}"); a(f"v_lshlrev_b32 v{T[0]}, 5, v{T[0]}"); a(f"v_add_u32 v{vRA}, v{vRA}, v{T[0]}")
        a(f"v_and_b32 v{T[0]}, 16, v{vL}"); a(f"v_add_u32 v{vRA}, v{vRA}, v{T[0]}")
        a(f"s_mul_i32 s{sT0}, s{sW}, 1536"); a(f"v_add_u32 v{vRA}, s{sT0}, v{vRA}")
    def red_write():
        set_exec(USEFUL)
        for t in range(3): a(f"ds_write_b128 v{vRA}, {vr(vACC+4*t,4)} offset:{L_RED + 256*t}")
        set_exec(-1)
    a(f"s_cmp_lg_u32 s{sW}, 4"); a("s_cbranch_scc1 L_stream")
    a("s_setprio 3")

    WD = RING
    XQ = 168
    XV = 176
    XR = 188
    a(f"s_and_b32 s{sT0}, s2, 31"); a(f"s_lshr_b32 s{sT1}, s2, 5")
    a(f"v_mul_u32_u24 v{T[6]}, 12288, v{T[2]}")
    a(f"s_mul_i32 s{sT2}, s{sT0}, 384")
    a(f"v_add3_u32 v{T[6]}, v{T[6]}, v{T[4]}, s{sT2}")
    a(f"s_mul_i32 s{sT3}, s{sT1}, {80*12288}")
    a(f"v_lshlrev_b32 v{T[1]}, 3, v{vL}")
    a(f"v_add_u32 v{T[5]}, 1024, v{T[1]}")
    a(f"v_min_u32 v{T[5]}, 1272, v{T[5]}")
    a(f"s_mov_b32 s{TMP+2}, 7864320"); a(f"s_mov_b32 s{TMP+3}, 0x20000")
    a("s_waitcnt lgkmcnt(0)")
    a(f"s_mov_b32 s{TMP}, s{pWQ}"); a(f"s_mov_b32 s{TMP+1}, s{pWQ+1}")
    a(f"global_load_dwordx2 {vr(XQ,2)}, v{T[1]}, {sp(pX)}")
    a(f"global_load_dwordx2 {vr(XQ+2,2)}, v{T[1]}, {sp(pX)} offset:512")
    a(f"global_load_dwordx2 {vr(XQ+4,2)}, v{T[5]}, {sp(pX)}")
    vq += ["x0", "x1", "x2"]
    for k in range(10):
        for t in range(3):
            a(f"buffer_load_dwordx4 {vr(WD + 12*k + 4*t, 4)}, v{T[6]}, {srd(TMP)}, s{sT3} offen offset:{128*t} {qpol}")
            vq.append(f"wq{k}")
        if k < 9: a(f"s_add_u32 s{sT3}, s{sT3}, {8*12288}")
    a("s_barrier")
    a(f"v_mov_b32 v{vZ}, 0")
    for o in range(0, 36, 4): a(f"ds_write_b32 v{vZ}, v{vZ} offset:{L_CTL + o}")
    a(f"s_load_dword s{sNon}, {sp(pWS)}, {EPOCH}")
    if dbg: a(f"v_mov_b32 v{vST}, 0")
    stamp(0)
    masks()
    ws_srd()
    a(f"s_and_b32 s{sSlot}, s2, {H-1}")
    wait_for("x2")
    stamp(18)
    CE = 198
    a("s_waitcnt lgkmcnt(0)")
    a(f"s_add_u32 s{sNon}, s{sNon}, 0x9e3779b9")
    a(f"v_mov_b32 v{vN}, s{sNon}")
    a(f"s_getreg_b32 s{sT0}, hwreg(HW_REG_XCC_ID, 0, 4)")
    a(f"s_and_b32 s{sRole}, s{sT0}, 1")
    a(f"s_and_b32 s{sT1}, s{sNon}, 0xfffffff0"); a(f"s_or_b32 s{sT0}, s{sT0}, s{sT1}")
    a(f"v_mov_b32 v{CE}, s{sT0}")
    a(f"s_and_b32 s{sU2}, s2, 7"); a(f"s_lshl_b32 s{sU2}, s{sU2}, 7")
    a(f"s_lshr_b32 s{sT1}, s2, 3"); a(f"s_lshl_b32 s{sT1}, s{sT1}, 2"); a(f"s_add_u32 s{sT1}, s{sT1}, s{sU2}"); a(f"s_add_u32 s{sT1}, s{sT1}, {CLS}")
    if local:
        set_exec(1)
        a(f"buffer_store_dword v{CE}, v{vZ}, {srd(WSR)}, s{sT1} offen")
        set_exec(-1)
        vq.append("cls_st")
    a(f"v_cmp_gt_u32 vcc, 32, v{vL}")
    a(f"v_cndmask_b32 v{XQ+4}, 0, v{XQ+4}, vcc"); a(f"v_cndmask_b32 v{XQ+5}, 0, v{XQ+5}, vcc")
    for k in range(6):
        a(f"v_lshlrev_b32 v{XV+2*k}, 16, v{XQ+k}")
        a(f"v_and_b32 v{XV+2*k+1}, 0xffff0000, v{XQ+k}")
    layernorm_full(XV, XQ, T[0:5], True)
    a(f"v_lshlrev_b32 v{T[0]}, 3, v{vL}")
    a(f"ds_write_b64 v{T[0]}, {vr(XQ,2)} offset:{L_XN}")
    a(f"ds_write_b64 v{T[0]}, {vr(XQ+2,2)} offset:{L_XN+512}")
    set_exec("0x00000000ffffffff")
    a(f"ds_write_b64 v{T[0]}, {vr(XQ+4,2)} offset:{L_XN+1024}")
    set_exec(-1)
    a(f"s_lshr_b32 s{sT1}, s2, 5"); a(f"s_mul_i32 s{sT1}, s{sT1}, 160")
    a(f"v_lshrrev_b32 v{T[0]}, 3, v{vL}"); a(f"v_lshlrev_b32 v{T[0]}, 1, v{T[0]}"); a(f"v_add_u32 v{T[0]}, s{sT1}, v{T[0]}")
    a("s_waitcnt lgkmcnt(0)")
    for k in range(10): a(f"ds_read_u16 v{XR+k}, v{T[0]} offset:{L_XN + 16*k}")
    for i in range(12): a(f"v_mov_b32 v{vACC+i}, 0")
    a("s_waitcnt lgkmcnt(0)")
    for k in range(10): a(f"v_lshl_or_b32 v{XR+k}, v{XR+k}, 16, v{XR+k}")
    stamp(1)
    def cls_issue():
        a(f"v_and_b32 v{T[5]}, 31, v{vL}"); a(f"v_lshlrev_b32 v{T[5]}, 2, v{T[5]}")
        a(f"s_add_u32 s{sT2}, s{sU2}, {CLS}")
        a(f"buffer_load_dword v{CE+1}, v{T[5]}, {srd(WSR)}, s{sT2} offen sc1")
    for k in range(10):
        a_operand(XR + k)
        if k == 8 and local:
            cls_issue(); vq.append("cls_ld")
        wait_for(f"wq{k}")
        for t in range(3):
            a(f"v_mfma_f32_16x16x32_bf16 {vr(vACC+4*t,4)}, {vr(vA,4)}, {vr(WD+12*k+4*t,4)}, {vr(vACC+4*t,4)}")
    a(f"v_lshrrev_b32 v{T[0]}, 5, v{vL}"); a(f"v_mul_u32_u24 v{vRA}, 768, v{T[0]}")
    a(f"v_and_b32 v{T[0]}, 7, v{vL}"); a(f"v_lshlrev_b32 v{T[0]}, 5, v{T[0]}"); a(f"v_add_u32 v{vRA}, v{vRA}, v{T[0]}")
    a(f"v_and_b32 v{T[0]}, 16, v{vL}"); a(f"v_add_u32 v{vRA}, v{vRA}, v{T[0]}")
    a(f"v_mul_u32_u24 v{T[0]}, 12, v{vL}")
    a(f"s_and_b32 s{sT0}, s2, 31"); a(f"s_lshr_b32 s{sT1}, s2, 5"); a(f"s_lshl_b32 s{sT0}, s{sT0}, 3"); a(f"s_add_u32 s{sT0}, s{sT0}, s{sT1}")
    a(f"s_lshl_b32 s{sT0}, s{sT0}, 10"); a(f"s_add_u32 s{sT0}, s{sT0}, {QP}")
    a(f"v_lshlrev_b32 v{T[1]}, 4, v{vL}")
    red_write()
    a("s_waitcnt lgkmcnt(0)")
    S3 = 200
    for s in range(2):
        for i in range(3): a(f"ds_read_b32 v{S3+4*s+i}, v{T[0]} offset:{L_RED + 768*s + 4*i}")
    a("s_waitcnt lgkmcnt(0)")
    pkadd(S3, S3, S3 + 4); a(f"v_add_f32 v{S3+2}, v{S3+2}, v{S3+6}")
    a(f"v_mov_b32 v{S3+3}, v{vN}")
    a(f"s_mov_b32 s{sLoc}, 0")
    if local:
        a(f"s_mov_b32 s{sSpin}, 8")
        a("s_waitcnt vmcnt(0)")
        a.label("L_clschk")
        a(f"v_cmp_ne_u32 vcc, v{CE+1}, v{CE}")
        a(f"s_cmp_eq_u64 vcc, 0"); a(f"s_cselect_b32 s{sLoc}, 1, 0"); a("s_cbranch_scc1 L_clsdone")
        a(f"s_sub_u32 s{sSpin}, s{sSpin}, 1"); a(f"s_cmp_eq_u32 s{sSpin}, 0"); a("s_cbranch_scc1 L_clsdone")
        cls_issue(); a("s_waitcnt vmcnt(0)"); a("s_branch L_clschk")
        a.label("L_clsdone")
    pub_store(vr(S3,4), T[1], sT0)
    a(f"v_mov_b32 v{T[2]}, s{sLoc}"); a(f"ds_write_b32 v{vZ}, v{T[2]} offset:{L_CTL + 8}")
    stamp(21)
    S4 = RING
    for p in range(nph):
        a(f"s_add_u32 s{sU}, s{sSlot}, {H*p}"); a(f"s_lshl_b32 s{sU}, s{sU}, 13"); a(f"s_add_u32 s{sU}, s{sU}, {QP}")
        def iss():
            for s in range(8):
                a(f"s_add_u32 s{sT1}, s{sU}, {1024*s}")
                a(f"buffer_load_dwordx4 {vr(S4+4*s,4)}, v{T[1]}, {srd(WSR)}, s{sT1} offen sc1")
        def chk():
            for s in range(8):
                a(f"v_cmp_ne_u32 vcc, v{S4+4*s+3}, v{vN}")
                a(f"s_mov_b64 {sp(sBad)}, vcc" if s == 0 else f"s_or_b64 {sp(sBad)}, {sp(sBad)}, vcc")
        poll(iss, chk)
        if p == 0: stamp(22)
        for s in range(1, 8):
            pkadd(S4, S4, S4 + 4*s); a(f"v_add_f32 v{S4+2}, v{S4+2}, v{S4+4*s+2}")
        a(f"v_cvt_pk_bf16_f32 v{S4}, v{S4}, v{S4+1}")
        a(f"v_cvt_pk_bf16_f32 v{S4+2}, v{S4+2}, v{S4+2}")
        a(f"v_mul_u32_u24 v{T[0]}, 6, v{vL}")
        a(f"ds_write_b16 v{T[0]}, v{S4} offset:{L_Q + 384*p}")
        a(f"ds_write_b16_d16_hi v{T[0]}, v{S4} offset:{L_Q + 384*p + 2}")
        a(f"ds_write_b16 v{T[0]}, v{S4+2} offset:{L_Q + 384*p + 4}")
        a("s_waitcnt lgkmcnt(0)")
        if nph > 1:
            a(f"v_mov_b32 v{T[0]}, {p+1}"); a(f"ds_write_b32 v{vZ}, v{T[0]} offset:{L_CTL + 32}"); a("s_waitcnt lgkmcnt(0)")
        if p == 0:
            a("s_barrier")
            if codepf:
                a(f"s_getpc_b64 {sp(58)}")
                a.label("L_pc")
                a(f"s_lshr_b32 s{sT3}, s2, 3"); a(f"s_lshl_b32 s{sT3}, s{sT3}, 9")
                a(f"v_and_b32 v{T[0]}, 7, v{vL}"); a(f"v_lshlrev_b32 v{T[0]}, 6, v{T[0]}"); a(f"v_add_u32 v{T[0]}, s{sT3}, v{T[0]}")
                a(f"v_add_u32 v{T[0]}, L_kcode-L_pc, v{T[0]}")
                a(f"v_min_u32 v{T[0]}, L_codeend-L_pc-4, v{T[0]}")
                a(f"global_load_dword v{vAL}, v{T[0]}, {sp(58)}")
    if ctl or nph > 1:
        NTOT = 2 * NIT * nph
        sPub = sPh
        HBUF = RING
        a(f"s_and_b32 s{sT0}, s{sNon}, 0xffffff00"); a(f"v_mov_b32 v{T[3]}, s{sT0}")
        a(f"s_add_u32 s{sU}, s{sU2}, {PROG}")
        a(f"v_lshlrev_b32 v{T[4]}, 2, v{vL}"); a(f"v_mov_b32 v{T[5]}, 0x800"); a(f"v_cmp_gt_u32 vcc, 32, v{vL}"); a(f"v_cndmask_b32 v{T[4]}, v{T[5]}, v{T[4]}, vcc")
        a(f"s_lshr_b32 s{sT1}, s2, 3"); a(f"s_lshl_b32 s{sT1}, s{sT1}, 2"); a(f"v_mov_b32 v{T[5]}, s{sT1}")
        sCN, sLead, sThr = sWI, sOff, sIt
        a(f"s_mov_b32 s{sCN}, 1"); a(f"s_cmp_lt_u32 s2, 8"); a(f"s_cselect_b32 s{sLead}, 1, 0")
        a(f"v_lshlrev_b32 v{vBC}, 8, v{vL}"); a(f"v_min_u32 v{vBC}, {7*256}, v{vBC}")
        a(f"s_and_b32 s{sT2}, s2, 7"); a(f"s_lshl_b32 s{sT2}, s{sT2}, 8"); a(f"v_mov_b32 v{vP}, s{sT2}")
        a(f"v_mov_b32 v{vPN}, 0x800")
        a(f"s_mov_b32 s{sGI}, 0"); a(f"s_mov_b32 s{sSpin}, {1 << 22}"); a(f"s_mov_b32 s{sPub}, 0")
        if nph > 1:
            for r in range(4): a(f"s_mov_b32 s{sSel+r}, 0x{0x07060500 | r:08x}")
            a(f"s_lshr_b32 s{sJ}, s2, {H.bit_length()-1}")
            a(f"v_mul_u32_u24 v{T[1]}, 43691, v{vL}"); a(f"v_lshrrev_b32 v{T[1]}, 19, v{T[1]}")
            a(f"v_mul_u32_u24 v{T[2]}, 12, v{T[1]}"); a(f"v_sub_u32 v{T[2]}, v{vL}, v{T[2]}")
            a(f"v_mul_u32_u24 v{T[1]}, {WPH*192}, v{T[1]}"); a(f"v_lshlrev_b32 v{T[2]}, 4, v{T[2]}"); a(f"v_add_u32 v{vOPA}, v{T[1]}, v{T[2]}")
            a(f"v_lshlrev_b32 v{vRA}, 4, v{vL}")
        a.label("L_cspin")
        a("s_sleep 4")
        a(f"ds_read_b32 v{T[0]}, v{vZ} offset:{L_CTL}")
        if nph > 1: a(f"ds_read_b128 {vr(vA,4)}, v{vZ} offset:{L_CTL + 16}")
        a("s_waitcnt lgkmcnt(0)"); a(f"v_readfirstlane_b32 s{sT0}, v{T[0]}")
        a(f"s_sub_u32 s{sSpin}, s{sSpin}, 1"); a(f"s_cmp_eq_u32 s{sSpin}, 0"); a("s_cbranch_scc1 L_cdone")
        if nph > 1:
            a(f"v_min_u32 v{vA}, v{vA}, v{vA+1}"); a(f"v_min_u32 v{vA+2}, v{vA+2}, v{vA+3}"); a(f"v_min_u32 v{vA}, v{vA}, v{vA+2}")
            a(f"v_readfirstlane_b32 s{sT1}, v{vA}")
            a(f"s_cmp_gt_u32 s{sT1}, s{sPub}"); a("s_cbranch_scc0 L_cnopub")
            set_exec("0x0000ffffffffffff")
            for s_ in range(8): a(f"ds_read_b128 {vr(HBUF+4*s_,4)}, v{vRA} offset:{L_REDH + 768*s_}")
            a("s_waitcnt lgkmcnt(0)")
            a(f"s_add_u32 s{sT1}, s{sPub}, 1"); a(f"v_mov_b32 v{T[1]}, s{sT1}"); a(f"ds_write_b32 v{vZ}, v{T[1]} offset:{L_CTL + 12}")
            sum_quads(HBUF, [HBUF + 4*k for k in range(1, 8)])
            tag4(HBUF)
            a(f"s_mul_i32 s{sT2}, s{sPub}, {H}"); a(f"s_add_u32 s{sT2}, s{sT2}, s{sSlot}")
            a(f"s_mul_i32 s{sT2}, s{sT2}, {4*WPH*192}"); a(f"s_mul_i32 s{sT3}, s{sJ}, 192"); a(f"s_add_u32 s{sT2}, s{sT2}, s{sT3}"); a(f"s_add_u32 s{sT2}, s{sT2}, {OP}")
            pub_store(vr(HBUF,4), vOPA, sT2)
            set_exec(-1)
            a(f"s_mov_b32 s{sPub}, s{sT1}")
            a.label("L_cnopub")
        if ctl:
            a(f"s_cmp_lg_u32 s{sT0}, s{sGI}"); a("s_cbranch_scc1 L_cchg")
            if xctl:
                a(f"s_cmp_eq_u32 s{sLead}, 0"); a("s_cbranch_scc1 L_cchk")
                a(f"buffer_load_dword v{T[1]}, v{T[4]}, {srd(WSR)}, s{sU} offen sc1")
                a("s_waitcnt vmcnt(0)")
                a(f"v_xor_b32 v{T[1]}, v{T[1]}, v{T[3]}")
                a("s_branch L_clead")
            else:
                a("s_branch L_cchk")
            a.label("L_cchg")
            a(f"s_mov_b32 s{sGI}, s{sT0}")
            a(f"buffer_load_dword v{T[1]}, v{T[4]}, {srd(WSR)}, s{sU} offen sc1")
            a(f"v_or_b32 v{T[2]}, s{sGI}, v{T[3]}")
            set_exec(1)
            a(f"buffer_store_dword v{T[2]}, v{T[5]}, {srd(WSR)}, s{sU} offen")
            set_exec(-1)
            a("s_waitcnt vmcnt(1)")
            a(f"v_xor_b32 v{T[1]}, v{T[1]}, v{T[3]}")
            a(f"s_mov_b32 s{sThr}, {thr}")
            if thr_odd is not None:
                a(f"s_cmp_eq_u32 s{sRole}, 1"); a(f"s_cselect_b32 s{sThr}, {thr_odd}, s{sThr}")
            if xctl:
                a(f"v_readlane_b32 s{sT3}, v{T[1]}, 32")
                a("s_nop 1")
                a(f"s_cmp_eq_u32 s{sT3}, 2"); a(f"s_cselect_b32 s{sThr}, {thr_lo}, s{sThr}")
                a(f"s_cmp_eq_u32 s{sT3}, 0"); a(f"s_cselect_b32 s{sThr}, {thr_hi}, s{sThr}")
            a(f"v_cmp_le_u32 vcc, s{sGI}, v{T[1]}"); a(f"s_mov_b32 s{sT2}, vcc_lo")
            a(f"v_cmp_gt_u32 vcc, 256, v{T[1]}"); a(f"s_and_b32 s{sT2}, s{sT2}, vcc_lo")
            a(f"s_bcnt1_i32_b32 s{sT2}, s{sT2}")
            a(f"s_cmp_ge_u32 s{sT2}, s{sThr}"); a(f"s_cselect_b32 s{sT2}, 1, 0")
            a(f"v_mov_b32 v{T[0]}, s{sT2}"); a(f"ds_write_b32 v{vZ}, v{T[0]} offset:{L_CTL + 4}")
            if xctl:
                a(f"s_cmp_eq_u32 s{sLead}, 0"); a("s_cbranch_scc1 L_cchk")
                a.label("L_clead")
                a(f"v_cmp_le_u32 vcc, s{sCN}, v{T[1]}"); a(f"s_mov_b32 s{sT2}, vcc_lo")
                a(f"v_cmp_gt_u32 vcc, 256, v{T[1]}"); a(f"s_and_b32 s{sT2}, s{sT2}, vcc_lo")
                a(f"s_bcnt1_i32_b32 s{sT2}, s{sT2}")
                a(f"s_cmp_ge_u32 s{sT2}, {cmed}"); a("s_cbranch_scc0 L_cchk")
                a(f"s_mov_b32 s{sT2}, {GLOB}")
                a(f"buffer_load_dword v{T[1]}, v{vBC}, {srd(WSR)}, s{sT2} offen sc1")
                a(f"v_or_b32 v{T[2]}, s{sCN}, v{T[3]}")
                set_exec(1)
                a(f"buffer_store_dword v{T[2]}, v{vP}, {srd(WSR)}, s{sT2} offen sc1")
                set_exec(-1)
                a("s_waitcnt vmcnt(1)")
                a(f"v_xor_b32 v{T[1]}, v{T[1]}, v{T[3]}")
                a(f"v_cmp_le_u32 vcc, s{sCN}, v{T[1]}"); a(f"s_and_b32 s{sT2}, vcc_lo, 0xff")
                a(f"v_cmp_gt_u32 vcc, 256, v{T[1]}"); a(f"s_and_b32 s{sT2}, s{sT2}, vcc_lo")
                a(f"s_bcnt1_i32_b32 s{sT2}, s{sT2}")
                a(f"s_mov_b32 s{sT3}, 1")
                a(f"s_cmp_ge_u32 s{sT2}, {cthr}"); a(f"s_cselect_b32 s{sT3}, 2, s{sT3}")
                if clead >= 0:
                    a(f"s_cmp_le_u32 s{sT2}, {clead}"); a(f"s_cselect_b32 s{sT3}, 0, s{sT3}")
                a(f"v_or_b32 v{T[2]}, s{sT3}, v{T[3]}")
                set_exec(1)
                a(f"buffer_store_dword v{T[2]}, v{vPN}, {srd(WSR)}, s{sU} offen")
                set_exec(-1)
                a(f"s_add_u32 s{sCN}, s{sCN}, 1")
            a.label("L_cchk")
            a(f"s_cmp_lt_u32 s{sGI}, {NTOT - 2}"); a("s_cbranch_scc1 L_cspin")
        if nph > 1:
            a(f"s_cmp_lt_u32 s{sPub}, {nph - 1}"); a("s_cbranch_scc1 L_cspin")
        a.label("L_cdone")
        a("s_waitcnt vmcnt(0) lgkmcnt(0)")
    dump_stamps(True)
    a("s_endpgm")

    a.label("L_stream")
    vq[:] = []
    a(f"v_mul_u32_u24 v{vSA}, 384, v{T[2]}")
    a(f"v_add_u32 v{vSA}, v{vSA}, v{T[4]}")
    a(f"s_and_b32 s{sSlot}, s2, {H-1}")
    a(f"s_lshr_b32 s{sJ}, s2, {H.bit_length()-1}")
    a(f"s_lshl_b32 s{sWI}, s{sJ}, 2")
    a(f"s_add_u32 s{sWI}, s{sWI}, s{sW}")
    a(f"s_mov_b32 s{sHead}, s{sSlot}")
    a(f"s_mov_b32 s{sPh}, 0")
    a(f"s_mul_i32 s{sT0}, s{sHead}, {HB}")
    a(f"s_mul_i32 s{sOff}, s{sWI}, 3072")
    a(f"s_mov_b32 s{STR+2}, {HB}"); a(f"s_mov_b32 s{STR+3}, 0x20000")
    a("s_waitcnt lgkmcnt(0)")
    def kslot(g):
        if g < 8: return RING + 12 * ((g + 5) % 8)
        if g < 13 and g < PK: return W + 12 * (g - 8)
        return RING + 12 * (g % 8)
    def kreg(l): return kslot(l // 3) + 4 * (l % 3)
    def stream_load(reg, t):
        a(f"buffer_load_dwordx4 {vr(reg,4)}, v{vSA}, {srd(STR)}, s{sOff} offen offset:{128*t} {pol}")
        if t == 2: a(f"s_add_u32 s{sOff}, s{sOff}, {STRIDE}")
    def issue(l):
        stream_load(kreg(l), l % 3); vq.append(f"k{l}")
    a(f"s_add_u32 s{STR}, s{pK}, s{sT0}"); a(f"s_addc_u32 s{STR+1}, s{pK+1}, 0")
    for l in range(early): issue(l)
    a(f"s_load_dword s{sNon}, {sp(pWS)}, {EPOCH}")
    if dbg: a(f"v_mov_b32 v{vST}, 0")
    stamp(0)
    a(f"v_mov_b32 v{vOPA}, 0"); a(f"s_mov_b32 s{sU2}, {OP}")
    masks()
    a(f"s_mov_b32 s{sPh}, 0")
    for g in range(8):
        m = 0x0101010101010101 << g
        a(f"s_mov_b32 s{sMask+2*g}, 0x{m & 0xffffffff:08x}")
        a(f"s_mov_b32 s{sMask+2*g+1}, 0x{m >> 32:08x}")
    for r in range(4): a(f"s_mov_b32 s{sSel+r}, 0x{0x07060500 | r:08x}")
    a(f"s_mov_b32 s{sSelG}, 0x0c0c0400")
    a(f"s_mov_b32 s{sPkSel}, 0x07060302")
    for r in range(1, 4):
        m = 0xffff << (16 * r)
        a(f"s_mov_b32 s{sRow+2*(r-1)}, 0x{m & 0xffffffff:08x}"); a(f"s_mov_b32 s{sRow+2*(r-1)+1}, 0x{m >> 32:08x}")
    ws_srd()
    a(f"s_and_b32 s{sT0}, s2, 7"); a(f"s_lshr_b32 s{sT1}, s2, 3")
    a(f"s_lshl_b32 s{sT2}, s{sT1}, 3"); a(f"s_add_u32 s{sRI}, s{sT2}, s{sT0}"); a(f"s_mov_b32 s{sRole}, 0")
    a(f"s_lshr_b32 s{sT2}, s{sT1}, 2"); a(f"s_lshl_b32 s{sT2}, s{sT2}, 3"); a(f"s_add_u32 s{sT2}, s{sT2}, s{sT0}"); a(f"s_lshl_b32 s{sT2}, s{sT2}, 2")
    a(f"s_and_b32 s{sT3}, s{sT1}, 3"); a(f"s_add_u32 s{sOH}, s{sT2}, s{sT3}")
    a(f"s_cmp_lt_u32 s{sT1}, 16"); a("s_cbranch_scc1 L_roled")
    a(f"s_sub_u32 s{sT2}, s{sT1}, 16"); a(f"s_mul_i32 s{sT3}, s{sT0}, 12"); a(f"s_add_u32 s{sRI}, s{sT3}, s{sT2}"); a(f"s_mov_b32 s{sRole}, 1")
    a(f"s_cmp_lt_u32 s{sT1}, 28"); a("s_cbranch_scc1 L_roled")
    a(f"s_sub_u32 s{sT2}, s{sT1}, 28"); a(f"s_lshl_b32 s{sT2}, s{sT2}, 3"); a(f"s_add_u32 s{sRI}, s{sT2}, s{sT0}"); a(f"s_mov_b32 s{sRole}, 2")
    a.label("L_roled")
    a(f"v_mov_b32 v{vZ}, 0"); a(f"v_mov_b32 v{vFL}, 0"); a(f"s_mov_b32 s{sGI}, 0"); a(f"s_mov_b32 s{sPrv}, 0")
    a("s_barrier")
    for l in range(early, 3 * PK):
        if pace and l >= nb: wait_for(f"k{l-nb}")
        issue(l)
    stamp(16)
    a("s_waitcnt lgkmcnt(0)")
    a(f"s_add_u32 s{sNon}, s{sNon}, 0x9e3779b9")
    a(f"v_mov_b32 v{vN}, s{sNon}")
    a("s_barrier")
    a(f"ds_read_b32 v{T[1]}, v{vZ} offset:{L_CTL + 8}"); a("s_waitcnt lgkmcnt(0)"); a(f"v_readfirstlane_b32 s{sLoc}, v{T[1]}")
    def progress():
        if not ctl: return
        n = newlab()
        a(f"s_add_u32 s{sGI}, s{sGI}, 1")
        a(f"s_cmp_lg_u32 s{sW}, 0"); a(f"s_cbranch_scc1 L_pg{n}")
        a(f"v_mov_b32 v{T[5]}, s{sGI}"); a(f"ds_write_b32 v{vZ}, v{T[5]} offset:{L_CTL}")
        a.label(f"L_pg{n}")
    def flag_read():
        if ctl or wmix: a(f"ds_read_b32 v{vFL}, v{vZ} offset:{L_CTL + 4}")
    def load_q():
        a(f"v_and_b32 v{T[0]}, 7, v{vL}"); a(f"v_lshlrev_b32 v{T[0]}, 4, v{T[0]}")
        a(f"s_mul_i32 s{sT0}, s{sPh}, 384"); a(f"v_add_u32 v{T[0]}, s{sT0}, v{T[0]}")
        for t in range(3): a(f"ds_read_b128 {vr(vQ+4*t,4)}, v{T[0]} offset:{L_Q + 128*t}")
    load_q()

    a.label("L_kcode")
    vSC = T[6]
    def score_addr():
        a(f"v_lshlrev_b32 v{vSC}, 2, v{vL}")
        a(f"s_lshl_b32 s{sT0}, s{sW}, 12"); a(f"v_add_u32 v{vSC}, s{sT0}, v{vSC}")
    def kinit():
        score_addr()
        a(f"v_mov_b32 v{vMX}, 0xff800000"); a(f"v_mov_b32 v{vLS}, 0")
        a("s_waitcnt lgkmcnt(0)")
    def kpart(reg, g, t):
        acc = T[t]
        for i in range(4):
            src2 = "0" if i == 0 else f"v{acc}"
            a(f"v_dot2_f32_bf16 v{acc}, v{reg+i}, v{vQ+4*t+i}, {src2}")
        if t == 2:
            a0 = T[0]
            a(f"v_add_f32 v{a0}, v{a0}, v{T[1]}")
            a(f"v_add_f32 v{a0}, v{a0}, v{T[2]}")
            for m in DPP4[:3]: dpp("v_add_f32", a0, m)
            a(f"v_cndmask_b32 v{vC}, v{vC}, v{a0}, {sp(sMask+2*g)}")
    SCALE = f32hex(192 ** -0.5)
    def kfinish():
        t, u, w_ = T[0], T[1], T[2]
        rne(t, vC)
        a(f"v_mul_f32 v{t}, {SCALE}, v{t}")
        rne(t, t)
        a(f"ds_write_b32 v{vSC}, v{t} offset:{L_SC}")
        a(f"v_add_u32 v{vSC}, 256, v{vSC}")
        a(f"v_max_f32 v{u}, v{vMX}, v{t}")
        a(f"v_sub_f32 v{w_}, v{vMX}, v{u}"); a(f"v_sub_f32 v{t}, v{t}, v{u}")
        a(f"v_mul_f32 v{w_}, {f32hex(LOG2E)}, v{w_}"); a(f"v_mul_f32 v{t}, {f32hex(LOG2E)}, v{t}")
        a(f"v_exp_f32 v{w_}, v{w_}"); a(f"v_exp_f32 v{t}, v{t}")
        a(f"v_mov_b32 v{vMX}, v{u}")
        a(f"v_fma_f32 v{vLS}, v{vLS}, v{w_}, v{t}")
    kinit()
    stamp(3)
    nxt = 3 * PK
    early = nb
    for l in range(48):
        while nxt <= l:
            issue(nxt); nxt += 1
        wait_for(f"k{l}")
        while nxt <= l + nb:
            issue(nxt); nxt += 1
        kpart(kreg(l), (l // 3) % 8, l % 3)
        if early > 0 and nxt < 48 and kreg(nxt) == kreg(l) and l % 3 != 2:
            issue(nxt); nxt += 1; early -= 1
        elif early > 0 and nxt < 48 and l % 3 == 2 and kreg(nxt) == kreg(l):
            issue(nxt); nxt += 1; early -= 1
        if l % 24 == 23:
            kfinish(); progress()
    assert nxt == 48 + nb, nxt
    flag_read()
    a(f"s_mov_b32 s{sIt}, 2")
    def switch_to_V():
        n = newlab()
        a(f"s_cmp_eq_u32 s{sIt}, {NIT-1}")
        a(f"s_cbranch_scc0 L_nosw{n}")
        a(f"s_mul_i32 s{sT0}, s{sHead}, {HB}")
        a(f"s_add_u32 s{STR}, s{pV}, s{sT0}"); a(f"s_addc_u32 s{STR+1}, s{pV+1}, 0")
        a(f"s_mul_i32 s{sOff}, s{sWI}, 3072")
        a.label(f"L_nosw{n}")
    def switch_to_nextK():
        n = newlab()
        a(f"s_cmp_eq_u32 s{sIt}, {NIT-1}")
        a(f"s_cbranch_scc0 L_nosw{n}")
        if nph > 1:
            a(f"s_add_u32 s{sT0}, s{sHead}, {H}")
            a(f"s_mul_i32 s{sT0}, s{sT0}, {HB}")
            a(f"s_add_u32 s{STR}, s{pK}, s{sT0}"); a(f"s_addc_u32 s{STR+1}, s{pK+1}, 0")
            a(f"s_mul_i32 s{sOff}, s{sWI}, 3072")
            a(f"s_cmp_eq_u32 s{sPh}, {nph-1}")
            a(f"s_cselect_b32 s{STR+2}, 0, {HB}")
            a(f"s_cselect_b32 s{STR}, s{pK}, s{STR}"); a(f"s_cselect_b32 s{STR+1}, s{pK+1}, s{STR+1}")
        else:
            a(f"s_mov_b32 s{STR+2}, 0")
        a.label(f"L_nosw{n}")
    def ring_load(l):
        stream_load(RING + 12 * ((l // 3) % 8) + 4 * (l % 3), l % 3)
    def controlled_loop(tag, part, switch):
        d = nx_ - nb
        if ctl or wmix:
            a("s_waitcnt lgkmcnt(0)"); a(f"v_readfirstlane_b32 s{sBst}, v{vFL}")
            if wmix:
                a(f"s_lshr_b32 s{sT0}, {wmix}, s{sW}"); a(f"s_and_b32 s{sT0}, s{sT0}, 1"); a(f"s_or_b32 s{sBst}, s{sBst}, s{sT0}")
            a(f"s_cmp_eq_u32 s{sIt}, {NIT-1}"); a(f"s_cselect_b32 s{sBst}, 0, s{sBst}")
            a(f"s_cmp_eq_u32 s{sBst}, 1"); a(f"s_cbranch_scc1 L_{tag}boost")
            a(f"s_cmp_eq_u32 s{sPrv}, 0"); a(f"s_cbranch_scc1 L_{tag}n0")
            for l in range(d):
                a(f"s_waitcnt vmcnt({nx_ - 1 - l})"); part(l)
            a(f"s_branch L_{tag}n1")
            a.label(f"L_{tag}n0")
        for l in range(d):
            a(f"s_waitcnt vmcnt({nb - 1})"); ring_load(l + nb); part(l)
        if ctl or wmix: a.label(f"L_{tag}n1")
        for l in range(d, 24):
            a(f"s_waitcnt vmcnt({nb - 1})")
            if l + nb == 24: switch()
            ring_load(l + nb)
            if l == 12: flag_read()
            part(l)
        if ctl or wmix:
            a(f"s_mov_b32 s{sPrv}, 0"); a(f"s_branch L_{tag}next")
            a.label(f"L_{tag}boost")
            a(f"s_cmp_eq_u32 s{sPrv}, 0"); a(f"s_cbranch_scc0 L_{tag}b0")
            for l in range(nb, nx_): ring_load(l)
            a.label(f"L_{tag}b0")
            for l in range(24):
                a(f"s_waitcnt vmcnt({nx_ - 1})")
                ring_load(l + nx_)
                if l == 12: flag_read()
                part(l)
            a(f"s_mov_b32 s{sPrv}, 1")
            a.label(f"L_{tag}next")
    a.label("L_kloop")
    controlled_loop("k", lambda l: kpart(RING + 12 * (l // 3) + 4 * (l % 3), l // 3, l % 3), switch_to_V)
    kfinish(); progress()
    a(f"s_add_u32 s{sIt}, s{sIt}, 1")
    a(f"s_cmp_lt_u32 s{sIt}, {NIT}")
    a("s_cbranch_scc1 L_kloop")
    stamp(4)

    a(f"v_mov_b32 v{T[2]}, v{vMX}")
    allreduce("v_max_f32", vMX, T[0])
    a(f"v_sub_f32 v{T[2]}, v{T[2]}, v{vMX}"); a(f"v_mul_f32 v{T[2]}, {f32hex(LOG2E)}, v{T[2]}"); a(f"v_exp_f32 v{T[2]}, v{T[2]}")
    a(f"v_mul_f32 v{vLS}, v{vLS}, v{T[2]}")
    allreduce("v_add_f32", vLS, T[0])
    MLQ = vA
    a(f"v_mov_b32 v{MLQ}, v{vMX}"); a(f"v_mov_b32 v{MLQ+1}, v{vLS}"); a(f"v_mov_b32 v{MLQ+2}, 0"); a(f"v_mov_b32 v{MLQ+3}, 0")
    tag4(MLQ)
    a(f"s_lshl_b32 s{sT0}, s{sHead}, 11"); a(f"s_lshl_b32 s{sT1}, s{sWI}, 4"); a(f"s_add_u32 s{sT0}, s{sT0}, s{sT1}"); a(f"s_add_u32 s{sT0}, s{sT0}, {ML}")
    a(f"v_mov_b32 v{T[0]}, 0")
    set_exec(1)
    pub_store(vr(MLQ,4), T[0], sT0)
    set_exec(-1)
    stamp(5)
    for i in range(12): a(f"v_mov_b32 v{vACC+i}, 0")
    score_addr()
    a("s_waitcnt lgkmcnt(0)")
    a(f"ds_read_b32 v{vPN}, v{vSC} offset:{L_SC}")
    def vpart(l):
        g, t = l // 3, l % 3
        if t == 0:
            a(f"v_mov_b32_dpp v{vBC}, v{vP} row_newbcast:{g} row_mask:0xf bank_mask:0x3")
            a(f"v_mov_b32_dpp v{vBC}, v{vP} row_newbcast:{8+g} row_mask:0xf bank_mask:0xc")
            a_operand(vBC)
        a(f"v_mfma_f32_16x16x32_bf16 {vr(vACC+4*t,4)}, {vr(vA,4)}, {ring(g,t)}, {vr(vACC+4*t,4)}")
    def next_p():
        a("s_waitcnt lgkmcnt(0)")
        a(f"v_sub_f32 v{vP}, v{vPN}, v{vMX}")
        a(f"v_add_u32 v{vSC}, 256, v{vSC}")
        a(f"ds_read_b32 v{vPN}, v{vSC} offset:{L_SC}")
        a(f"v_mul_f32 v{vP}, {f32hex(LOG2E)}, v{vP}")
        a(f"v_exp_f32 v{vP}, v{vP}")
        a(f"v_cvt_pk_bf16_f32 v{vP}, v{vP}, v{vP}")
    a(f"s_mov_b32 s{sIt}, 0")
    if nph > 1:
        a(f"s_cmp_lg_u32 s{sPh}, {nph-1}"); a("s_cbranch_scc1 L_vloop")
    a(f"s_cmp_eq_u32 s{sRole}, 1"); a("s_cbranch_scc1 L_wF")
    a(f"s_cmp_eq_u32 s{sRole}, 2"); a("s_cbranch_scc1 L_wR")
    a(f"s_mul_i32 s{sT0}, s{sOH}, 48"); a(f"s_mul_i32 s{sT1}, s{sW}, 12"); a(f"s_add_u32 s{sT0}, s{sT0}, s{sT1}")
    a(f"v_lshrrev_b32 v{T[0]}, 4, v{vL}"); a(f"v_add_u32 v{T[0]}, s{sT0}, v{T[0]}")
    a(f"v_mul_u32_u24 v{T[0]}, 1280, v{T[0]}")
    a(f"v_and_b32 v{T[1]}, 15, v{vL}"); a(f"v_lshlrev_b32 v{T[1]}, 4, v{T[1]}"); a(f"v_add_u32 v{T[0]}, v{T[0]}, v{T[1]}")
    a(f"v_mov_b32 v{T[1]}, s{pWO+1}")
    a(f"v_add_co_u32 v{WA}, vcc, s{pWO}, v{T[0]}"); a(f"v_addc_co_u32 v{WA+1}, vcc, 0, v{T[1]}, vcc")
    a(f"v_add_co_u32 v{WB}, vcc, 10240, v{WA}"); a(f"v_addc_co_u32 v{WB+1}, vcc, 0, v{WA+1}, vcc")
    a(f"s_mov_b32 s{sInc}, 256"); a(f"s_mov_b32 s{sInc4}, 4096")
    a("s_branch L_wdone")
    a.label("L_wF")
    a(f"v_lshrrev_b32 v{T[0]}, 2, v{vL}"); a(f"s_mul_i32 s{sT0}, s{sW}, 160"); a(f"v_add_u32 v{T[0]}, s{sT0}, v{T[0]}")
    a(f"v_mul_u32_u24 v{T[0]}, 3072, v{T[0]}")
    a(f"v_and_b32 v{T[1]}, 1, v{vL}"); a(f"v_lshlrev_b32 v{T[1]}, 4, v{T[1]}"); a(f"v_add_u32 v{T[0]}, v{T[0]}, v{T[1]}")
    a(f"s_lshl_b32 s{sT0}, s{sRI}, 5"); a(f"v_add_u32 v{T[0]}, s{sT0}, v{T[0]}")
    a(f"v_mov_b32 v{T[2]}, s{pWG}"); a(f"v_mov_b32 v{T[3]}, s{pWG+1}")
    a(f"v_mov_b32 v{T[4]}, s{pWU}"); a(f"v_mov_b32 v{T[5]}, s{pWU+1}")
    a(f"v_and_b32 v{T[1]}, 2, v{vL}"); a(f"v_cmp_ne_u32 vcc, 0, v{T[1]}")
    a(f"v_cndmask_b32 v{T[2]}, v{T[2]}, v{T[4]}, vcc"); a(f"v_cndmask_b32 v{T[3]}, v{T[3]}, v{T[5]}, vcc")
    a(f"v_add_co_u32 v{WA}, vcc, v{T[2]}, v{T[0]}"); a(f"v_addc_co_u32 v{WA+1}, vcc, 0, v{T[3]}, vcc")
    a(f"s_lshl_b32 s{sT0}, s{sRI}, 4"); a(f"s_lshl_b32 s{sT1}, s{sW}, 2"); a(f"s_add_u32 s{sT0}, s{sT0}, s{sT1}")
    a(f"v_lshrrev_b32 v{T[0]}, 4, v{vL}"); a(f"v_add_u32 v{T[0]}, s{sT0}, v{T[0]}")
    a(f"v_mul_u32_u24 v{T[0]}, 1280, v{T[0]}")
    a(f"v_and_b32 v{T[1]}, 15, v{vL}"); a(f"v_lshlrev_b32 v{T[1]}, 4, v{T[1]}"); a(f"v_add_u32 v{T[0]}, v{T[0]}, v{T[1]}")
    a(f"v_mov_b32 v{T[1]}, s{pWD+1}")
    a(f"v_add_co_u32 v{WB}, vcc, s{pWD}, v{T[0]}"); a(f"v_addc_co_u32 v{WB+1}, vcc, 0, v{T[1]}, vcc")
    a(f"s_mov_b32 s{sInc}, {16*3072}"); a(f"s_mov_b32 s{sInc4}, {16*3072}")
    a("s_branch L_wdone")
    a.label("L_wR")
    a(f"v_mov_b32 v{WA}, s{pWO}"); a(f"v_mov_b32 v{WA+1}, s{pWO+1}"); a(f"v_mov_b32 v{WB}, s{pWO}"); a(f"v_mov_b32 v{WB+1}, s{pWO+1}")
    a(f"s_mov_b32 s{sInc}, 0"); a(f"s_mov_b32 s{sInc4}, 0")
    a.label("L_wdone")
    def wload(k):
        if k < 10:
            a(f"global_load_dwordx4 {vr(W + 4*k, 4)}, {vr(WA,2)}, off {wpol}")
            if k < 9:
                a(f"v_add_co_u32 v{WA}, vcc, s{sInc4 if k == 4 else sInc}, v{WA}"); a(f"v_addc_co_u32 v{WA+1}, vcc, 0, v{WA+1}, vcc")
        else:
            a(f"global_load_dwordx4 {vr(W + 4*k, 4)}, {vr(WB,2)}, off offset:{256*(k-10)} {wpol}")
        vq.append(f"w{k}")
    vq[:] = [f"v{l}" for l in range(nb)] + ["ml"]
    for it in range(2):
        next_p()
        for l in range(24):
            n = 24 * it + l
            wait_for(f"v{n}")
            ring_load(n + nb); vq.append(f"v{n+nb}")
            if n % 3 == 0 and n // 3 < 15: wload(n // 3)
            vpart(l)
        progress()
    flag_read()
    a(f"s_mov_b32 s{sIt}, 2")
    a.label("L_vloop")
    MLR = vX
    def ml_issue():
        a(f"s_lshl_b32 s{sT0}, s{sHead}, 11"); a(f"s_add_u32 s{sT0}, s{sT0}, {ML}")
        a(f"v_min_u32 v{T[1]}, {NWH-1}, v{vL}"); a(f"v_lshlrev_b32 v{T[1]}, 4, v{T[1]}")
        a(f"buffer_load_dwordx4 {vr(MLR,4)}, v{T[1]}, {srd(WSR)}, s{sT0} offen sc1")
        if NWH > 64:
            a(f"buffer_load_dwordx4 {vr(MLR+4,4)}, v{T[1]}, {srd(WSR)}, s{sT0} offen offset:1024 sc1")
    def ml_check():
        check4(MLR, T[0], T[2], True)
        if NWH > 64: check4(MLR + 4, T[0], T[2], False)
    a(f"s_cmp_eq_u32 s{sIt}, {NIT-2}"); a("s_cbranch_scc0 L_vh1")
    ml_issue()
    if codepf:
        a(f"s_getpc_b64 {sp(58)}")
        a.label("L_pc2")
        a(f"s_lshr_b32 s{sT3}, s2, 3"); a(f"s_lshl_b32 s{sT3}, s{sT3}, 9")
        a(f"v_and_b32 v{T[1]}, 7, v{vL}"); a(f"v_lshlrev_b32 v{T[1]}, 6, v{T[1]}"); a(f"v_add_u32 v{T[1]}, s{sT3}, v{T[1]}")
        a(f"v_add_u32 v{T[1]}, L_tailcode-L_pc2, v{T[1]}")
        a(f"v_min_u32 v{T[1]}, L_codeend-L_pc2-4, v{T[1]}")
        a(f"global_load_dword v{T[2]}, v{T[1]}, {sp(58)}")
    a.label("L_vh1")
    a(f"s_cmp_eq_u32 s{sIt}, {NIT-1}"); a("s_cbranch_scc0 L_vh2")
    a.label("L_tailcode")
    ml_check()
    a(f"s_cmp_eq_u64 {sp(sBad)}, 0"); a("s_cbranch_scc1 L_mlok")
    poll(ml_issue, ml_check)
    a.label("L_mlok")
    mm, ll = MLR, MLR + 1
    if NWH > 64: a(f"v_max_f32 v{T[0]}, v{mm}, v{MLR+4}")
    else: a(f"v_mov_b32 v{T[0]}, v{mm}")
    a(f"v_and_b32 v{T[0]}, 0xffffff00, v{T[0]}")
    allreduce("v_max_f32", T[0], T[1])
    a(f"v_and_b32 v{mm}, 0xffffff00, v{mm}")
    a(f"v_sub_f32 v{T[2]}, v{mm}, v{T[0]}"); a(f"v_mul_f32 v{T[2]}, {f32hex(LOG2E)}, v{T[2]}"); a(f"v_exp_f32 v{T[2]}, v{T[2]}")
    a(f"v_mul_f32 v{T[2]}, v{T[2]}, v{ll}")
    if NWH > 64:
        a(f"v_and_b32 v{MLR+4}, 0xffffff00, v{MLR+4}")
        a(f"v_sub_f32 v{T[3]}, v{MLR+4}, v{T[0]}"); a(f"v_mul_f32 v{T[3]}, {f32hex(LOG2E)}, v{T[3]}"); a(f"v_exp_f32 v{T[3]}, v{T[3]}")
        a(f"v_fmac_f32 v{T[2]}, v{T[3]}, v{MLR+5}")
    elif NWH < 64:
        a(f"v_cmp_gt_u32 vcc, {NWH}, v{vL}"); a(f"v_cndmask_b32 v{T[2]}, 0, v{T[2]}, vcc")
    allreduce("v_add_f32", T[2], T[1])
    a(f"v_sub_f32 v{T[3]}, v{vMX}, v{T[0]}"); a(f"v_mul_f32 v{T[3]}, {f32hex(LOG2E)}, v{T[3]}"); a(f"v_exp_f32 v{T[3]}, v{T[3]}")
    a(f"v_rcp_f32 v{T[2]}, v{T[2]}")
    a(f"v_mul_f32 v{vAL}, v{T[3]}, v{T[2]}")
    red_addr()
    a(f"v_mul_u32_u24 v{T[1]}, 43691, v{vL}"); a(f"v_lshrrev_b32 v{T[1]}, 19, v{T[1]}")
    a(f"v_mul_u32_u24 v{T[2]}, 12, v{T[1]}"); a(f"v_sub_u32 v{T[2]}, v{vL}, v{T[2]}")
    a(f"v_mul_u32_u24 v{T[1]}, {WPH*192}, v{T[1]}"); a(f"v_lshlrev_b32 v{T[2]}, 4, v{T[2]}"); a(f"v_add_u32 v{vOPA}, v{T[1]}, v{T[2]}")
    a(f"s_mul_i32 s{sT0}, s{sHead}, {4*WPH*192}"); a(f"s_mul_i32 s{sT1}, s{sJ}, 192"); a(f"s_add_u32 s{sT0}, s{sT0}, s{sT1}"); a(f"s_add_u32 s{sU2}, s{sT0}, {OP}")
    P = vQ
    if nph > 1:
        a(f"s_cmp_lg_u32 s{sPh}, {nph-1}"); a("s_cbranch_scc1 L_vh2")
    a(f"v_lshrrev_b32 v{T[0]}, 5, v{vL}"); a(f"v_lshlrev_b32 v{T[0]}, 8, v{T[0]}")
    a(f"v_and_b32 v{T[1]}, 7, v{vL}"); a(f"v_lshlrev_b32 v{T[1]}, 5, v{T[1]}"); a(f"v_add_u32 v{T[0]}, v{T[0]}, v{T[1]}")
    a(f"v_and_b32 v{T[1]}, 16, v{vL}"); a(f"v_add_u32 v{T[0]}, v{T[0]}, v{T[1]}")
    a(f"s_mul_i32 s{sT0}, s{sW}, 2560"); a(f"v_add_u32 v{P}, s{sT0}, v{T[0]}")
    a(f"s_mov_b32 s{sT0}, {128*128}"); a(f"s_cmp_eq_u32 s{sRole}, 1"); a(f"s_cselect_b32 s{sT0}, {96*128}, s{sT0}")
    a(f"v_lshrrev_b32 v{T[1]}, 3, v0"); a(f"v_mul_u32_u24 v{T[1]}, s{sT0}, v{T[1]}")
    a(f"v_and_b32 v{T[2]}, 7, v0"); a(f"v_lshlrev_b32 v{T[2]}, 4, v{T[2]}"); a(f"v_add_u32 v{P+1}, v{T[1]}, v{T[2]}")
    for i in range(20): a(f"v_mov_b32 v{vX+i}, 0")
    a.label("L_vh2")
    next_p()
    controlled_loop("v", vpart, switch_to_nextK)
    progress()
    a(f"s_add_u32 s{sIt}, s{sIt}, 1")
    a(f"s_cmp_lt_u32 s{sIt}, {NIT}")
    a("s_cbranch_scc1 L_vloop")

    stamp(6)
    for i in range(12): a(f"v_mul_f32 v{vACC+i}, v{vACC+i}, v{vAL}")
    if nph > 1:
        a(f"s_cmp_eq_u32 s{sPh}, {nph-1}"); a("s_cbranch_scc1 L_lastphase")
        def lds_wait_ge(off, sreg):
            n = newlab()
            a(f"s_mov_b32 s{sSpin}, {spin}")
            a.label(f"L_lw{n}")
            a(f"ds_read_b32 v{T[1]}, v{vZ} offset:{L_CTL + off}"); a("s_waitcnt lgkmcnt(0)"); a(f"v_readfirstlane_b32 s{sT0}, v{T[1]}")
            a(f"s_cmp_ge_u32 s{sT0}, s{sreg}"); a(f"s_cbranch_scc1 L_lk{n}")
            a(f"s_sub_u32 s{sSpin}, s{sSpin}, 1"); a(f"s_cmp_eq_u32 s{sSpin}, 0"); a("s_cbranch_scc1 L_abort")
            a(f"s_branch L_lw{n}")
            a.label(f"L_lk{n}")
        lds_wait_ge(12, sPh)
        set_exec(USEFUL)
        for t in range(3): a(f"ds_write_b128 v{vRA}, {vr(vACC+4*t,4)} offset:{L_REDH + 256*t}")
        set_exec(-1)
        a(f"s_add_u32 s{sPh}, s{sPh}, 1"); a(f"s_add_u32 s{sHead}, s{sHead}, {H}")
        a(f"s_lshl_b32 s{sT1}, s{sW}, 2"); a(f"v_mov_b32 v{T[2]}, s{sT1}"); a(f"v_mov_b32 v{T[3]}, s{sPh}")
        a("s_waitcnt lgkmcnt(0)")
        a(f"ds_write_b32 v{T[2]}, v{T[3]} offset:{L_CTL + 16}")
        a(f"s_add_u32 s{sT2}, s{sPh}, 1")
        lds_wait_ge(32, sT2)
        load_q(); kinit()
        a(f"s_mov_b32 s{sIt}, 0")
        a("s_branch L_kloop")
        a.label("L_lastphase")
    red_write()
    a("s_waitcnt lgkmcnt(0)"); a("s_barrier")
    a(f"s_cmp_lg_u32 s{sW}, 0"); a("s_cbranch_scc1 L_pubdone")
    SB = RING + 36
    a(f"v_lshlrev_b32 v{T[0]}, 4, v{vL}")
    set_exec("0x0000ffffffffffff")
    for s in range(8): a(f"ds_read_b128 {vr(SB+4*s,4)}, v{T[0]} offset:{L_RED + 768*s}")
    a("s_waitcnt lgkmcnt(4)")
    sum_quads(SB, [SB + 4, SB + 8, SB + 12])
    a("s_waitcnt lgkmcnt(0)")
    sum_quads(SB + 16, [SB + 20, SB + 24, SB + 28])
    sum_quads(SB, [SB + 16])
    tag4(SB)
    pub_store(vr(SB,4), vOPA, sU2)
    if stage1:
        a(f"s_and_b32 s{sT0}, s{sNon}, 0xffffff00"); a(f"s_or_b32 s{sT0}, s{sT0}, 255"); a(f"v_mov_b32 v{T[1]}, s{sT0}")
        a(f"s_and_b32 s{sT0}, s2, 7"); a(f"s_lshl_b32 s{sT0}, s{sT0}, 7"); a(f"s_lshr_b32 s{sT1}, s2, 3"); a(f"s_lshl_b32 s{sT1}, s{sT1}, 2")
        a(f"s_add_u32 s{sT0}, s{sT0}, s{sT1}"); a(f"s_add_u32 s{sT0}, s{sT0}, {PROG}")
        set_exec(1)
        a(f"buffer_store_dword v{T[1]}, v{vZ}, {srd(WSR)}, s{sT0} offen")
    set_exec(-1)
    a.label("L_pubdone")
    def class_wait():
        if not stage1: return
        n = newlab()
        a(f"s_and_b32 s{sT0}, s{sNon}, 0xffffff00"); a(f"s_or_b32 s{sT0}, s{sT0}, 255"); a(f"v_mov_b32 v{T[1]}, s{sT0}")
        a(f"s_and_b32 s{sT0}, s2, 7"); a(f"s_lshl_b32 s{sT0}, s{sT0}, 7"); a(f"s_add_u32 s{sT0}, s{sT0}, {PROG}")
        a(f"v_and_b32 v{T[0]}, 31, v{vL}"); a(f"v_lshlrev_b32 v{T[0]}, 2, v{T[0]}")
        a(f"s_mov_b32 s{sSpin}, {stage1}")
        a.label(f"L_cw{n}")
        a(f"buffer_load_dword v{T[2]}, v{T[0]}, {srd(WSR)}, s{sT0} offen sc1")
        a(f"s_sub_u32 s{sSpin}, s{sSpin}, 1"); a(f"s_cmp_eq_u32 s{sSpin}, 0"); a(f"s_cbranch_scc1 L_cwd{n}")
        a("s_waitcnt vmcnt(0)")
        a(f"v_cmp_ne_u32 vcc, v{T[2]}, v{T[1]}"); a("s_cbranch_vccnz L_cw%d" % n)
        a.label(f"L_cwd{n}")
        a("s_waitcnt vmcnt(0)")
    a.label("L_tail")
    stamp(7)
    RB = RING + 60
    a(f"s_cmp_eq_u32 s{sRole}, 1"); a("s_cbranch_scc1 L_roleF")
    a(f"s_cmp_eq_u32 s{sRole}, 2"); a("s_cbranch_scc1 L_roleR")

    def rowproj(ngroups, wbase, srcs, dstbase):
        for gi in range(ngroups):
            a_operand(srcs[gi])
            for cb in range(5):
                a(f"v_mfma_f32_16x16x32_bf16 {vr(vX+4*cb,4)}, {vr(vA,4)}, {vr(wbase + 4*(5*gi+cb),4)}, {vr(vX+4*cb,4)}")
        set_exec(USEFUL)
        for cb in range(5): a(f"ds_write_b128 v{P}, {vr(vX+4*cb,4)} offset:{L_RED2 + 512*cb}")
        set_exec(-1)
        a(f"v_lshlrev_b32 v{T[0]}, 4, v0")
        a(f"s_lshl_b32 s{sT0}, s{sRI}, 7"); a(f"s_add_u32 s{sT0}, s{sT0}, {dstbase}")
        a("s_waitcnt lgkmcnt(0)"); a("s_barrier")
        n = newlab()
        a(f"v_cmp_gt_u32 vcc, 160, v0"); a(f"s_and_saveexec_b64 {sp(sE)}, vcc"); a(f"s_cbranch_execz L_rpd{n}")
        for s in range(4): a(f"ds_read_b128 {vr(vX+4*s,4)}, v{T[0]} offset:{L_RED2 + 2560*s}")
        a("s_waitcnt lgkmcnt(0)")
        sum_quads(vX, [vX + 4]); sum_quads(vX + 8, [vX + 12]); sum_quads(vX, [vX + 8])
        tag4(vX)
        a(f"buffer_store_dwordx4 {vr(vX,4)}, v{P+1}, {srd(WSR)}, s{sT0} offen sc1")
        a.label(f"L_rpd{n}")
        a(f"s_mov_b64 exec, {sp(sE)}")

    NL = 2 if WPH == 32 else 1
    a(f"s_mul_i32 s{sT0}, s{sOH}, {WPH*192}"); a(f"s_add_u32 s{sU}, s{sT0}, {OP}")
    a(f"s_mul_i32 s{sT1}, s{sW}, 48"); a(f"s_add_u32 s{sU}, s{sU}, s{sT1}")
    a(f"v_lshrrev_b32 v{T[3]}, 2, v{vL}"); a(f"v_and_b32 v{T[3]}, {min(WPH,16)-1}, v{T[3]}"); a(f"v_mul_u32_u24 v{T[3]}, 192, v{T[3]}")
    a(f"v_and_b32 v{T[4]}, 3, v{vL}"); a(f"v_min_u32 v{T[4]}, 2, v{T[4]}"); a(f"v_lshlrev_b32 v{T[4]}, 4, v{T[4]}"); a(f"v_add_u32 v{T[3]}, v{T[3]}, v{T[4]}")
    def o_iss():
        for k in range(NL):
            a(f"buffer_load_dwordx4 {vr(RB+4*k,4)}, v{T[3]}, {srd(WSR)}, s{sU} offen offset:{3072*k} sc1")
    def o_chk():
        for k in range(NL): check4(RB + 4*k, T[0], T[1], k == 0)
    poll(o_iss, o_chk)
    stamp(8)
    if NL == 2: sum_quads(RB, [RB + 4])
    for m in ("row_ror:4", "row_ror:8"):
        for i in range(4): dpp("v_add_f32", RB + i, m)
    o4 = [("v_add_f32", RB + i) for i in range(4)]
    swap_reduce(o4, T[0:4], "v_permlane16_swap_b32")
    if WPH >= 16: swap_reduce(o4, T[0:4], "v_permlane32_swap_b32")
    for g in range(1, 4): a(f"v_cndmask_b32 v{RB}, v{RB}, v{RB+g}, {sp(sRow+2*(g-1))}")
    a(f"v_cvt_pk_bf16_f32 v{RB}, v{RB}, v{RB}")
    for gi in range(3): a(f"v_mov_b32_dpp v{RB+8+gi}, v{RB} quad_perm:[{gi},{gi},{gi},{gi}] row_mask:0xf bank_mask:0xf")
    rowproj(3, W, [RB+8, RB+9, RB+10], ZZ)
    dump_stamps()
    a("s_branch L_end")

    a.label("L_roleF")
    HQ = RB
    PK = RB + 16
    class_wait()
    a(f"v_min_u32 v{T[5]}, 39, v{vL}"); a(f"s_mul_i32 s{sT0}, s{sW}, 40"); a(f"v_add_u32 v{T[5]}, s{sT0}, v{T[5]}"); a(f"v_lshlrev_b32 v{T[5]}, 4, v{T[5]}")
    a(f"s_and_b32 s{sU}, s2, 7"); a(f"s_lshl_b32 s{sU}, s{sU}, 12"); a(f"s_add_u32 s{sU}, s{sU}, {HH}")
    def f_iss():
        a(f"buffer_load_dwordx4 {vr(HQ,4)}, v{T[5]}, {srd(WSR)}, s{sU} offen sc1")
    def f_chk():
        check4(HQ, T[0], T[1], True)
    FA = RING + 24
    FW = RB + 22
    DA = vACC
    def f_pre():
        a(f"s_lshl_b32 s{sT0}, s{sW}, 12"); a(f"s_add_u32 s{sT0}, s{sT0}, {L_SC}")
        a(f"v_lshlrev_b32 v{FW}, 6, v{vL}"); a(f"v_add_u32 v{FW}, s{sT0}, v{FW}")
        a(f"v_mov_b32 v{T[0]}, 0"); a(f"v_mov_b32 v{T[1]}, s{sT0}")
        a(f"ds_write_b32 v{T[1]}, v{T[0]} offset:2560")
        a(f"v_lshrrev_b32 v{FW+1}, 2, v{vL}"); a(f"v_lshlrev_b32 v{FW+1}, 4, v{FW+1}")
        a(f"v_and_b32 v{T[0]}, 3, v{vL}")
        a(f"v_mov_b32 v{T[1]}, 0x08000c04"); a(f"v_lshlrev_b32 v{T[0]}, 3, v{T[0]}"); a(f"v_lshrrev_b32 v{T[1]}, v{T[0]}, v{T[1]}"); a(f"v_and_b32 v{T[1]}, 0xff, v{T[1]}")
        a(f"v_add3_u32 v{FW+1}, v{FW+1}, v{T[1]}, s{sT0}")
        a(f"v_add_u32 v{FW+2}, 1024, v{FW+1}"); a(f"v_add_u32 v{FW+3}, 2048, v{FW+1}")
        a(f"v_lshrrev_b32 v{T[0]}, 4, v{vL}"); a(f"s_lshl_b32 s{sT0}, s{sW}, 2"); a(f"v_add_u32 v{T[0]}, s{sT0}, v{T[0]}"); a(f"v_lshlrev_b32 v{T[0]}, 7, v{T[0]}")
        a(f"v_and_b32 v{T[1]}, 3, v{vL}"); a(f"v_lshlrev_b32 v{T[1]}, 5, v{T[1]}"); a(f"v_add_u32 v{FW+4}, v{T[0]}, v{T[1]}")
        a(f"v_and_b32 v{T[0]}, 31, v{vL}"); a(f"v_lshlrev_b32 v{T[0]}, 2, v{T[0]}")
        a(f"v_lshrrev_b32 v{T[1]}, 5, v{vL}"); a(f"v_lshlrev_b32 v{T[1]}, 10, v{T[1]}"); a(f"v_add_u32 v{FW+5}, v{T[0]}, v{T[1]}")
        a(f"v_lshrrev_b32 v{T[0]}, 4, v{vL}"); a(f"s_lshl_b32 s{sT0}, s{sW}, 2"); a(f"v_add_u32 v{T[0]}, s{sT0}, v{T[0]}"); a(f"v_lshlrev_b32 v{FW+6}, 2, v{T[0]}")
        for i in range(8): a(f"v_mov_b32 v{DA+i}, 0")
        a(f"v_mov_b32 v{FW+7}, 0x3f803f80")
        a(f"v_cmp_gt_u32 {sp(sE)}, 40, v{vL}")
        a(f"s_lshl_b32 s{sT0}, s{sW}, 3"); a(f"v_mov_b32 v{PK+2}, s{sT0}")
    poll(f_iss, f_chk, pre=f_pre)
    stamp(10)
    a(f"v_perm_b32 v{PK}, v{HQ+1}, v{HQ}, s{sPkSel}"); a(f"v_perm_b32 v{PK+1}, v{HQ+3}, v{HQ+2}, s{sPkSel}")
    a(f"v_cndmask_b32 v{PK}, 0, v{PK}, {sp(sE)}"); a(f"v_cndmask_b32 v{PK+1}, 0, v{PK+1}, {sp(sE)}")
    t0, t1, t2, t3, t4 = T[0:5]
    a(f"v_dot2_f32_bf16 v{t0}, v{PK}, v{FW+7}, 0"); a(f"v_dot2_f32_bf16 v{t1}, v{PK}, v{PK}, 0")
    a(f"v_dot2_f32_bf16 v{t0}, v{PK+1}, v{FW+7}, v{t0}"); a(f"v_dot2_f32_bf16 v{t1}, v{PK+1}, v{PK+1}, v{t1}")
    for i in range(4): a(f"v_and_b32 v{HQ+12+i}, 0xffff0000, v{HQ+i}")
    assert t1 == t0 + 1 and t0 % 2 == 1
    allreduce_n([("v_add_f32", t0), ("v_add_f32", t1)], [t2, t3])
    a(f"v_mov_b32 v{HQ+4}, v{t0}"); a(f"v_mov_b32 v{HQ+5}, v{t1}")
    set_exec(1)
    a(f"ds_write_b64 v{PK+2}, {vr(HQ+4,2)} offset:{L_STAT}")
    set_exec(-1)
    a("s_waitcnt lgkmcnt(0)"); a("s_barrier")
    a(f"ds_read_b128 {vr(HQ+4,4)}, v{vZ} offset:{L_STAT}"); a(f"ds_read_b128 {vr(HQ+8,4)}, v{vZ} offset:{L_STAT+16}")
    a("s_waitcnt lgkmcnt(0)")
    pkadd(HQ + 4, HQ + 4, HQ + 6); pkadd(HQ + 8, HQ + 8, HQ + 10); pkadd(HQ + 4, HQ + 4, HQ + 8)
    a(f"v_mov_b32 v{t0}, v{HQ+4}"); a(f"v_mov_b32 v{t1}, v{HQ+5}")
    ln_consts(t0, t1, t2)
    a(f"v_rcp_f32 v{t4}, v{t1}")
    O4 = HQ + 12
    for i in range(4): a(f"v_sub_f32 v{O4+i}, v{O4+i}, v{t0}")
    a(f"v_cvt_pk_bf16_f32 v{t2}, v{O4}, v{O4+1}"); a(f"v_cvt_pk_bf16_f32 v{t3}, v{O4+2}, v{O4+3}")
    a(f"v_lshlrev_b32 v{O4}, 16, v{t2}"); a(f"v_and_b32 v{O4+1}, 0xffff0000, v{t2}"); a(f"v_lshlrev_b32 v{O4+2}, 16, v{t3}"); a(f"v_and_b32 v{O4+3}, 0xffff0000, v{t3}")
    for i in range(4): a(f"v_mul_f32 v{O4+i}, v{O4+i}, v{t4}")
    a(f"v_cvt_pk_bf16_f32 v{t2}, v{O4}, v{O4+1}"); a(f"v_cvt_pk_bf16_f32 v{t3}, v{O4+2}, v{O4+3}")
    PR = FA
    for r_, (src, hi) in enumerate(((t2, 0), (t2, 1), (t3, 0), (t3, 1))):
        b = PR + 4 * r_
        a(f"v_mov_b32 v{b}, 0"); a(f"v_mov_b32 v{b+2}, 0")
        if hi:
            a(f"v_lshrrev_b32 v{b+1}, 16, v{src}"); a(f"v_and_b32 v{b+3}, 0xffff0000, v{src}")
        else:
            a(f"v_and_b32 v{b+1}, 0xffff, v{src}"); a(f"v_lshlrev_b32 v{b+3}, 16, v{src}")
    set_exec("0x000000ffffffffff")
    for r_ in range(4): a(f"ds_write_b128 v{FW}, {vr(PR+4*r_,4)} offset:{16*r_}")
    set_exec(-1)
    a("s_waitcnt lgkmcnt(0)")
    for k in range(10):
        base = FW + 1 + k // 4
        a(f"ds_read2_b32 {vr(FA+2*k,2)}, v{base} offset0:{(k%4)*64} offset1:{(k%4)*64+1}")
    DB = DA + 4
    for k in range(10):
        a(f"s_waitcnt lgkmcnt({9-k})")
        a(f"v_mfma_f32_4x4x4_16b_bf16 {vr(DA,4)}, {vr(FA+2*k,2)}, {vr(W+4*k,2)}, {vr(DA,4)}")
        a(f"v_mfma_f32_4x4x4_16b_bf16 {vr(DB,4)}, {vr(FA+2*k,2)}, {vr(W+4*k+2,2)}, {vr(DB,4)}")
    for m in ("row_ror:4", "row_ror:8"):
        for i in range(8): dpp("v_add_f32", DA + i, m)
    set_exec("0x000f000f000f000f")
    a(f"ds_write_b128 v{FW+4}, {vr(DA,4)} offset:{L_RED3}")
    a(f"ds_write_b128 v{FW+4}, {vr(DB,4)} offset:{L_RED3+16}")
    set_exec(-1)
    a("s_waitcnt lgkmcnt(0)"); a("s_barrier")
    HR = FA
    for s in range(8): a(f"ds_read_b32 v{HR+s}, v{FW+5} offset:{L_RED3 + 128*s}")
    a("s_waitcnt lgkmcnt(0)")
    for s in range(0, 8, 4): pkadd(HR + s, HR + s, HR + s + 2)
    pkadd(HR, HR, HR + 4)
    a(f"v_add_f32 v{HR}, v{HR}, v{HR+1}")
    a(f"v_mov_b32 v{T[0]}, v{HR}"); a(f"v_permlane32_swap_b32 v{T[0]}, v{HR}"); a(f"v_add_f32 v{HR}, v{HR}, v{T[0]}")
    rne(HR, HR)
    a(f"v_mov_b32 v{T[0]}, v{HR}"); a(f"v_permlane16_swap_b32 v{T[0]}, v{HR}")
    a(f"v_mul_f32 v{T[1]}, {f32hex(-LOG2E)}, v{T[0]}"); a(f"v_min_f32 v{T[1]}, 0x42fc0000, v{T[1]}"); a(f"v_exp_f32 v{T[1]}, v{T[1]}")
    a(f"v_add_f32 v{T[1]}, 1.0, v{T[1]}"); a(f"v_rcp_f32 v{T[2]}, v{T[1]}")
    a(f"v_mul_f32 v{T[3]}, v{T[0]}, v{T[2]}")
    rne(T[3], T[3])
    a(f"v_mul_f32 v{T[3]}, v{T[3]}, v{HR}")
    a(f"v_cvt_pk_bf16_f32 v{T[3]}, v{T[3]}, v{T[3]}")
    a(f"ds_bpermute_b32 v{HR+1}, v{FW+6}, v{T[3]}")
    a("s_waitcnt lgkmcnt(0)")
    stamp(11)
    rowproj(1, W + 40, [HR+1], YY)
    dump_stamps()
    a("s_branch L_end")

    a.label("L_roleR")
    a(f"s_cmp_ge_u32 s{sRI}, 20"); a("s_cbranch_scc1 L_fin")
    RS = RING + 24
    RS = RING + 40
    XS = RB
    WRr = RB + 8
    HV = RB + 16
    HPK = RB + 28
    HS = vQ + 4
    SIG = vQ + 8
    def reduce_parts(base, nsrc, nld, lds, pre=None):
        a(f"s_mul_i32 s{sU}, s{sRI}, {nsrc*128}"); a(f"s_add_u32 s{sU}, s{sU}, {base}")
        a(f"v_lshlrev_b32 v{T[3]}, 4, v0")
        def iss():
            for k in range(nld):
                a(f"s_add_u32 s{sT1}, s{sU}, {4096*k}")
                a(f"buffer_load_dwordx4 {vr(RS+4*k,4)}, v{T[3]}, {srd(WSR)}, s{sT1} offen sc1")
        def chk():
            for k in range(nld): check4(RS + 4*k, T[0], T[1], k == 0)
        def pre2():
            if pre: pre()
            a(f"v_and_b32 v{T[4]}, 7, v{vL}"); a(f"v_lshlrev_b32 v{T[4]}, 4, v{T[4]}")
            a(f"s_lshl_b32 s{sT0}, s{sW}, 7"); a(f"v_add_u32 v{T[5]}, s{sT0}, v{T[4]}")
        poll(iss, chk, pre=pre2)
        if nld == 4:
            sum_quads(RS, [RS + 4]); sum_quads(RS + 8, [RS + 12]); sum_quads(RS, [RS + 8])
        else:
            sum_quads(RS, [RS + 4, RS + 8])
        for i in range(4): dpp("v_add_f32", RS + i, "row_ror:8")
        o4 = [("v_add_f32", RS + i) for i in range(4)]
        swap_reduce(o4, [RS + 4 + i for i in range(4)], "v_permlane16_swap_b32")
        swap_reduce(o4, [RS + 4 + i for i in range(4)], "v_permlane32_swap_b32")
        set_exec("0x00000000000000ff")
        a(f"ds_write_b128 v{T[5]}, {vr(RS,4)} offset:{lds}")
        set_exec(-1)
        a("s_waitcnt lgkmcnt(0)"); a("s_barrier")
        for s in range(4): a(f"ds_read_b128 {vr(RS+4*s,4)}, v{T[4]} offset:{lds + 128*s}")
        a("s_waitcnt lgkmcnt(0)")
        sum_quads(RS, [RS + 4]); sum_quads(RS + 8, [RS + 12]); sum_quads(RS, [RS + 8])
    def r_pre1():
        a(f"v_and_b32 v{T[0]}, 7, v{vL}"); a(f"v_lshlrev_b32 v{T[0]}, 3, v{T[0]}"); a(f"s_lshl_b32 s{sT0}, s{sRI}, 6"); a(f"v_add_u32 v{T[0]}, s{sT0}, v{T[0]}")
        a(f"global_load_dwordx2 {vr(XS+4,2)}, v{T[0]}, {sp(pX)}")
        a(f"v_lshlrev_b32 v{T[1]}, 3, v{vL}"); a(f"v_add_u32 v{T[2]}, 1024, v{T[1]}"); a(f"v_min_u32 v{T[2]}, 1272, v{T[2]}")
        a(f"global_load_dwordx2 {vr(WRr,2)}, v{T[1]}, {sp(pWR)}")
        a(f"global_load_dwordx2 {vr(WRr+2,2)}, v{T[1]}, {sp(pWR)} offset:512")
        a(f"global_load_dwordx2 {vr(WRr+4,2)}, v{T[2]}, {sp(pWR)}")
        a(f"v_lshrrev_b32 v{SIG+2}, 3, v{vL}"); a(f"v_lshlrev_b32 v{SIG+2}, 12, v{SIG+2}")
        a(f"v_and_b32 v{SIG+3}, 7, v{vL}"); a(f"v_lshlrev_b32 v{SIG+3}, 4, v{SIG+3}"); a(f"v_add_u32 v{SIG+2}, v{SIG+2}, v{SIG+3}")
        a(f"s_lshl_b32 s{sU2}, s{sRI}, 7"); a(f"s_add_u32 s{sU2}, s{sU2}, {HH}")
        a(f"global_load_dword v{SIG}, v{T[0]}, {sp(pOUT)}")
    class_wait()
    reduce_parts(ZZ, 128, 4, L_RED3, pre=r_pre1)
    stamp(9)
    for h in range(2):
        a(f"v_lshlrev_b32 v{XS+2*h}, 16, v{XS+4+h}"); a(f"v_and_b32 v{XS+2*h+1}, 0xffff0000, v{XS+4+h}")
    a(f"v_cvt_pk_bf16_f32 v{RS}, v{RS}, v{RS+1}"); a(f"v_cvt_pk_bf16_f32 v{RS+2}, v{RS+2}, v{RS+3}")
    a(f"v_and_b32 v{RS+1}, 0xffff0000, v{RS}"); a(f"v_lshlrev_b32 v{RS}, 16, v{RS}"); a(f"v_and_b32 v{RS+3}, 0xffff0000, v{RS+2}"); a(f"v_lshlrev_b32 v{RS+2}, 16, v{RS+2}")
    pkadd(XS, XS, RS); pkadd(XS + 2, XS + 2, RS + 2)
    a(f"v_cvt_pk_bf16_f32 v{RS}, v{XS}, v{XS+1}"); a(f"v_cvt_pk_bf16_f32 v{RS+2}, v{XS+2}, v{XS+3}")
    a(f"v_and_b32 v{XS+1}, 0xffff0000, v{RS}"); a(f"v_lshlrev_b32 v{XS}, 16, v{RS}"); a(f"v_and_b32 v{XS+3}, 0xffff0000, v{RS+2}"); a(f"v_lshlrev_b32 v{XS+2}, 16, v{RS+2}")
    for i in range(4): a(f"v_perm_b32 v{RS+i}, v{XS+i}, v{vN}, s{sSel+i}")
    a(f"s_cmp_lg_u32 s{sW}, 0"); a("s_cbranch_scc1 L_rnopub")
    a(f"buffer_store_dwordx4 {vr(RS,4)}, v{SIG+2}, {srd(WSR)}, s{sU2} offen sc1")
    a.label("L_rnopub")
    a(f"v_lshlrev_b32 v{T[3]}, 4, v{vL}")
    a(f"v_add_u32 v{T[4]}, 2048, v{T[3]}"); a(f"v_min_u32 v{T[4]}, 2544, v{T[4]}")
    a(f"s_and_b32 s{sU}, s2, 7"); a(f"s_lshl_b32 s{sU}, s{sU}, 12"); a(f"s_add_u32 s{sU}, s{sU}, {HH}")
    def r_iss():
        a(f"buffer_load_dwordx4 {vr(HV,4)}, v{T[3]}, {srd(WSR)}, s{sU} offen sc1")
        a(f"buffer_load_dwordx4 {vr(HV+4,4)}, v{T[3]}, {srd(WSR)}, s{sU} offen offset:1024 sc1")
        a(f"buffer_load_dwordx4 {vr(HV+8,4)}, v{T[4]}, {srd(WSR)}, s{sU} offen sc1")
    def r_chk():
        for k in range(3): check4(HV + 4*k, T[0], T[1], k == 0)
    poll(r_iss, r_chk)
    stamp(10)
    for i in range(12): a(f"v_and_b32 v{HV+i}, 0xffff0000, v{HV+i}")
    a(f"v_cmp_gt_u32 vcc, 32, v{vL}")
    for i in range(8, 12): a(f"v_cndmask_b32 v{HV+i}, 0, v{HV+i}, vcc")
    for k in range(6): a(f"v_perm_b32 v{HPK+k}, v{HV+2*k+1}, v{HV+2*k}, s{sPkSel}")
    layernorm_full(HV, HPK, T[0:5], False)
    a(f"v_cmp_gt_u32 vcc, 32, v{vL}")
    a(f"v_cndmask_b32 v{WRr+4}, 0, v{WRr+4}, vcc"); a(f"v_cndmask_b32 v{WRr+5}, 0, v{WRr+5}, vcc")
    a(f"v_dot2_f32_bf16 v{T[0]}, v{HPK}, v{WRr}, 0")
    for k in range(1, 6): a(f"v_dot2_f32_bf16 v{T[0]}, v{HPK+k}, v{WRr+k}, v{T[0]}")
    allreduce("v_add_f32", T[0], T[1])
    rne(T[0], T[0])
    a(f"v_mul_f32 v{T[1]}, {f32hex(-LOG2E)}, v{T[0]}"); a(f"v_min_f32 v{T[1]}, 0x42fc0000, v{T[1]}"); a(f"v_exp_f32 v{T[1]}, v{T[1]}")
    a(f"v_add_f32 v{T[1]}, 1.0, v{T[1]}"); a(f"v_rcp_f32 v{T[2]}, v{T[1]}")
    rne(SIG, T[2])
    a(f"s_lshl_b32 s{sT0}, s{sRI}, 3"); a(f"s_lshr_b32 s{sT1}, s{sT0}, 6"); a(f"s_and_b32 s{sT0}, s{sT0}, 63")
    a(f"v_and_b32 v{T[0]}, 7, v{vL}"); a(f"v_add_u32 v{T[0]}, s{sT0}, v{T[0]}"); a(f"v_lshlrev_b32 v{T[0]}, 2, v{T[0]}")
    for i in range(4): a(f"v_mov_b32 v{HS+i}, v{HV+i}")
    a(f"s_cmp_eq_u32 s{sT1}, 0"); a("s_cbranch_scc1 L_hs")
    for i in range(4): a(f"v_mov_b32 v{HS+i}, v{HV+4+i}")
    a(f"s_cmp_eq_u32 s{sT1}, 1"); a("s_cbranch_scc1 L_hs")
    for i in range(4): a(f"v_mov_b32 v{HS+i}, v{HV+8+i}")
    a.label("L_hs")
    for i in range(4): a(f"ds_bpermute_b32 v{HS+i}, v{T[0]}, v{HS+i}")
    a("s_waitcnt lgkmcnt(0)")
    stamp(11)
    def r_pre2():
        a(f"v_lshlrev_b32 v{SIG+1}, 3, v{vL}"); a(f"s_lshl_b32 s{sT0}, s{sRI}, 6"); a(f"v_add_u32 v{SIG+1}, s{sT0}, v{SIG+1}")
    reduce_parts(YY, 96, 3, L_RED2, pre=r_pre2)
    stamp(12)
    def rne4(b):
        a(f"v_cvt_pk_bf16_f32 v{b}, v{b}, v{b+1}"); a(f"v_cvt_pk_bf16_f32 v{b+2}, v{b+2}, v{b+3}")
        a(f"v_and_b32 v{b+1}, 0xffff0000, v{b}"); a(f"v_lshlrev_b32 v{b}, 16, v{b}"); a(f"v_and_b32 v{b+3}, 0xffff0000, v{b+2}"); a(f"v_lshlrev_b32 v{b+2}, 16, v{b+2}")
    rne4(RS)
    for i in range(4): a(f"v_mul_f32 v{RS+i}, v{RS+i}, v{SIG}")
    rne4(RS)
    pkadd(RS, RS, HS); pkadd(RS + 2, RS + 2, HS + 2)
    rne4(RS)
    pkadd(RS, RS, XS); pkadd(RS + 2, RS + 2, XS + 2)
    a(f"v_cvt_pk_bf16_f32 v{RS}, v{RS}, v{RS+1}"); a(f"v_cvt_pk_bf16_f32 v{RS+1}, v{RS+2}, v{RS+3}")
    a(f"s_cmp_lg_u32 s{sW}, 0"); a("s_cbranch_scc1 L_fin")
    set_exec("0x00000000000000ff")
    a(f"global_store_dwordx2 v{SIG+1}, {vr(RS,2)}, {sp(pOUT)}")
    a(f"s_cmp_lg_u32 s{sRI}, 0"); a("s_cbranch_scc1 L_fin")
    set_exec(1)
    a(f"v_mov_b32 v{T[1]}, 0")
    a(f"buffer_store_dword v{vN}, v{T[1]}, {srd(WSR)}, 0 offen offset:{EPOCH}")
    a.label("L_fin")
    dump_stamps()
    a.label("L_abort")
    a.label("L_end")
    a("s_endpgm")
    a.label("L_codeend")
    body = a.text()
    tail = f""".section .rodata,"a"
.p2align 6
.amdhsa_kernel {NAME}
  .amdhsa_next_free_vgpr {NV}
  .amdhsa_next_free_sgpr 100
  .amdhsa_accum_offset {NV}
  .amdhsa_group_segment_fixed_size 0
  .amdhsa_kernarg_size 104
  .amdhsa_user_sgpr_count 2
  .amdhsa_user_sgpr_kernarg_segment_ptr 1
  .amdhsa_system_sgpr_workgroup_id_x 1
.end_amdhsa_kernel
"""
    return body + tail

if __name__ == "__main__":
    kw = json.loads(sys.argv[1]) if len(sys.argv) > 1 else {}
    sys.stdout.write(gen(**kw))
```

```python
import sys, json, struct
from asmlib import Asm

NAME = "sequential_preLN__mha_block_cached__moe_arch_mod__decode_kernel"
def f32hex(x): return "0x%08x" % struct.unpack("<I", struct.pack("<f", x))[0]

HB = 12582912
EPOCH = 0
QP = 0x1000
ML = 0x48000
OP = 0x60000
ZZ = 0x130000
HH = 0x1D0000
YY = 0x181000
CLS = 0x1C0000
TT = 0x1C4000
GT = 0x1C8000
GLOB = 0x1C2000
PROG = 0x1C1000
WS_SIZE = 0x200000
L_XN = 0
L_Q = 5120
L_RED = 6656
L_RED2 = 12800
L_RED3 = 23040
L_SC = 25088
L_STAT = 2304
L_CTL = 2048
L_REDH = 25088 + 16384 + 512
LDS_BYTES = 25088 + 16384 + 512 + 6144
LOG2E = 1.4426950408889634

def gen(H=32, PK=13, ctl=1, thr=27, local=1, pace=1, wpol="nt", qpol="nt", stage1=64, nb=6, nx_=8, early=6, p2=0, stag=3, tctl=0, oploc=1, wb=0, wphase=None, tb=0, outwt=0, donewt=0, delta=20, cpmax=24, kp=5, thrF=None, thrR=None, wmix=0, xctl=0, thr_odd=None, cthr=5, clead=1, thr_lo=10, thr_hi=32, cmed=16, lds=LDS_BYTES, dbg=0, pol="nt", spin=1 << 19, codepf=1):
    nph = 32 // H
    WPH = 256 // H
    NWH = WPH * 4
    G = 4096 // NWH
    NIT = G // 8
    STRIDE = NWH * 3072
    assert 2 <= PK <= 13 and NIT >= 4 and nb <= 9 and nx_ <= 12
    a = Asm()

    vL, vSA, vN = 1, 2, 3
    vM = [4, 5, 6, 7]; vA = 8
    vQ = 12
    vACC = 24
    vC, vMX, vP, vPN, vBC = 36, 37, 38, 39, 40
    T = list(range(41, 48))
    RING = 48
    W = 144
    vX = 204
    vLS, vAL, vRA, vOPA, WA, WB = 224, 225, 226, 227, 228, 230
    vZ, vFL = 232, 233
    NV = 240
    vST = 240
    if dbg: NV = 248
    def ring(slot, t): b = RING + slot * 12 + 4 * t; return f"v[{b}:{b+3}]"
    def vr(b, n): return f"v[{b}:{b+n-1}]"
    sW = 3
    pX, pK, pV, pWQ, pWO, pBX, pWR, pWG, pWU, pWD, pOUT, pDBG, pWS = [4 + 2 * i for i in range(13)]
    STR, WSR, TMP = 32, 36, 40
    sOff, sIt, sHead, sWI, sPh, sNon, sRole, sRI = 44, 45, 46, 47, 48, 49, 50, 51
    sSel = 52
    sSelG = 56
    sT0, sT1, sT2, sT3 = 57, 58, 59, 60
    sInc = 61
    sMask = 62
    sSlot, sJ, sInc4, sSpin = 78, 79, 80, 81
    sE = 82
    sBad = 84
    sU, sU2 = 86, 87
    sRow = 90
    sLoc, sBst, sPrv, sGI, sOH = 30, 31, 97, 98, 99
    sPkSel = 96
    def sp(b): return f"s[{b}:{b+1}]"
    def srd(b): return f"s[{b}:{b+3}]"
    USEFUL = "0xFF00FF0000FF00FF"

    def stamp(k):
        if not dbg: return
        if dbg == 3 and k not in (0, 3, 4, 6, 7, 9, 10, 12, 15): return
        if dbg == 2 and k not in (0, 15): return
        a("s_memrealtime s[88:89]"); a("s_waitcnt lgkmcnt(0)"); a(f"v_writelane_b32 v{vST}, s88, {k}")
    def dump_stamps(helper=False):
        if not dbg: return
        if dbg == 3:
            if helper: return
            n = newlab()
            stamp(15)
            a(f"s_cmp_lg_u32 s{sW}, 0"); a(f"s_cbranch_scc1 L_ds{n}")
            a("s_mov_b64 exec, -1")
            a(f"s_mov_b32 s40, s{pDBG}"); a(f"s_mov_b32 s41, s{pDBG+1}"); a("s_mov_b32 s42, 256"); a("s_mov_b32 s43, 0x20000")
            a(f"v_lshlrev_b32 v{vST+1}, 2, v{vL}")
            a(f"v_mov_b32 v{vST+2}, 0"); a(f"v_mov_b32 v{vST+3}, 0")
            for dst, src, inv in ((0,0,1),(1,3,0),(2,4,0),(3,4,1),(4,6,0),(5,6,1),(6,7,0),(7,9,0),(8,10,0),(9,12,0),(10,15,0)):
                a(f"v_readlane_b32 s88, v{vST}, {src}")
                if inv: a("s_not_b32 s88, s88")
                a("s_nop 3"); a(f"v_writelane_b32 v{vST+2}, s88, {dst}")
            a(f"v_readlane_b32 s89, v{vST}, 0")
            for dst, src in ((11,6),(12,4),(13,3)):
                a(f"v_readlane_b32 s88, v{vST}, {src}"); a("s_nop 3"); a("s_sub_u32 s88, s88, s89"); a("s_nop 3"); a(f"v_writelane_b32 v{vST+3}, s88, {dst}")
            a("s_mov_b64 exec, 0x7ff")
            a(f"buffer_atomic_umax v{vST+2}, v{vST+1}, s[40:43], 0 offen")
            a("s_mov_b64 exec, 0x3800")
            a(f"buffer_atomic_add v{vST+3}, v{vST+1}, s[40:43], 0 offen")
            a.label(f"L_ds{n}")
            return
        stamp(15)
        a("s_mov_b32 exec_lo, -1"); a("s_mov_b32 exec_hi, 0")
        if helper: a("s_add_u32 s88, s2, 1024")
        else: a(f"s_lshl_b32 s88, s2, 2"); a(f"s_add_u32 s88, s88, s{sW}")
        a("s_lshl_b32 s88, s88, 7"); a(f"s_add_u32 s88, s88, {WS_SIZE}")
        a(f"v_lshlrev_b32 v{vST+1}, 2, v{vL}")
        a(f"buffer_store_dword v{vST}, v{vST+1}, {srd(WSR)}, s88 offen")

    DPP4 = ("quad_perm:[1,0,3,2]", "quad_perm:[2,3,0,1]", "row_half_mirror", "row_mirror")
    def dpp(op, v, m): a(f"{op}_dpp v{v}, v{v}, v{v} {m} row_mask:0xf bank_mask:0xf")
    def swap_reduce(ops_vs, tmps, sw):
        for (op, v), t in zip(ops_vs, tmps): a(f"v_mov_b32 v{t}, v{v}")
        for (op, v), t in zip(ops_vs, tmps): a(f"{sw} v{t}, v{v}")
        for (op, v), t in zip(ops_vs, tmps): a(f"{op} v{v}, v{v}, v{t}")
    def allreduce_n(ops_vs, tmps):
        for m in DPP4:
            for op, v in ops_vs: dpp(op, v, m)
        swap_reduce(ops_vs, tmps, "v_permlane16_swap_b32")
        swap_reduce(ops_vs, tmps, "v_permlane32_swap_b32")
    def allreduce(op, v, t): allreduce_n([(op, v)], [t])
    def set_exec(val):
        if isinstance(val, str) and val.startswith("0x") and len(val) > 10:
            a(f"s_mov_b32 exec_lo, 0x{val[-8:]}"); a(f"s_mov_b32 exec_hi, 0x{val[2:-8]}")
        else:
            a(f"s_mov_b64 exec, {val}")
    def a_operand(src, dst=None):
        dst = vA if dst is None else dst
        for r in range(4): a(f"v_and_b32 v{dst+r}, v{src}, v{vM[r]}")
    def tag4(b):
        for r in range(4): a(f"v_perm_b32 v{b+r}, v{b+r}, v{vN}, s{sSel+r}")
    def check4(b, t0, t1, first):
        a(f"v_perm_b32 v{t0}, v{b+1}, v{b}, s{sSelG}")
        a(f"v_perm_b32 v{t1}, v{b+3}, v{b+2}, s{sSelG}")
        a(f"v_lshl_or_b32 v{t0}, v{t1}, 16, v{t0}")
        a(f"v_cmp_ne_u32 vcc, v{t0}, v{vN}")
        if first: a(f"s_mov_b64 {sp(sBad)}, vcc")
        else: a(f"s_or_b64 {sp(sBad)}, {sp(sBad)}, vcc")
    lab = [0]
    def newlab():
        lab[0] += 1; return lab[0]
    def poll(issue, check, pre=None, first_issued=False, first_wait=0):
        n = newlab()
        a(f"s_mov_b32 s{sSpin}, {spin}")
        if not first_issued: issue()
        if pre: pre()
        a(f"s_waitcnt vmcnt({first_wait})")
        a(f"s_branch L_pollchk{n}")
        a.label(f"L_poll{n}")
        a(f"s_sub_u32 s{sSpin}, s{sSpin}, 1")
        a(f"s_cmp_eq_u32 s{sSpin}, 0")
        a("s_cbranch_scc1 L_abort")
        issue()
        a("s_waitcnt vmcnt(0)")
        a.label(f"L_pollchk{n}")
        check()
        a(f"s_cmp_lg_u64 {sp(sBad)}, 0")
        a(f"s_cbranch_scc1 L_poll{n}")
    def poll2(issue, check, nld, stage1, pre=None):
        if not p2:
            poll(lambda: issue(0), lambda: check(0), pre=pre); stage1(0); return
        n = newlab()
        a(f"s_mov_b32 s{sSpin}, {spin}")
        issue(0)
        if pre: pre()
        if stag: a(f"s_sleep {stag}")
        issue(1)
        a.label(f"L_p2{n}")
        a(f"s_waitcnt vmcnt({nld})")
        check(0)
        a(f"s_cmp_eq_u64 {sp(sBad)}, 0"); a(f"s_cbranch_scc1 L_p2a{n}")
        issue(0)
        a(f"s_waitcnt vmcnt({nld})")
        check(1)
        a(f"s_cmp_eq_u64 {sp(sBad)}, 0"); a(f"s_cbranch_scc1 L_p2b{n}")
        issue(1)
        a(f"s_sub_u32 s{sSpin}, s{sSpin}, 1"); a(f"s_cmp_eq_u32 s{sSpin}, 0"); a("s_cbranch_scc1 L_abort")
        a(f"s_branch L_p2{n}")
        a.label(f"L_p2b{n}")
        stage1(1)
        a(f"s_branch L_p2j{n}")
        a.label(f"L_p2a{n}")
        stage1(0)
        a.label(f"L_p2j{n}")
    def pub_store(data, voff, soff):
        n = newlab()
        if local:
            a(f"s_cmp_eq_u32 s{sLoc}, 1"); a(f"s_cbranch_scc1 L_pl{n}")
        a(f"buffer_store_dwordx4 {data}, v{voff}, {srd(WSR)}, s{soff} offen sc1")
        if local:
            a(f"s_branch L_pd{n}")
            a.label(f"L_pl{n}")
            a(f"buffer_store_dwordx4 {data}, v{voff}, {srd(WSR)}, s{soff} offen")
            a.label(f"L_pd{n}")
    def rne(dst, src):
        a(f"v_cvt_pk_bf16_f32 v{dst}, v{src}, v{src}")
        a(f"v_lshlrev_b32 v{dst}, 16, v{dst}")
    def pkadd(d, x, y): a(f"v_pk_add_f32 {vr(d,2)}, {vr(x,2)}, {vr(y,2)}")
    def sum_quads(dst, srcs):
        for s in srcs:
            pkadd(dst, dst, s); pkadd(dst + 2, dst + 2, s + 2)

    def ln_consts(s1, s2, t):
        a(f"v_mul_f32 v{s1}, {f32hex(1.0/640)}, v{s1}")
        a(f"v_mul_f32 v{s2}, {f32hex(1.0/640)}, v{s2}")
        a(f"v_fma_f32 v{s2}, -v{s1}, v{s1}, v{s2}")
        a(f"v_max_f32 v{s2}, 0, v{s2}")
        rne(s2, s2)
        a(f"v_add_f32 v{s2}, {f32hex(1e-5)}, v{s2}")
        rne(s2, s2)
        rne(s1, s1)
        a(f"v_sqrt_f32 v{s2}, v{s2}")
        rne(s2, s2)

    def layernorm_full(val, pk, tmp, refine):
        t0, t1, t2, t3, t4 = tmp
        ONES = t4
        a(f"v_mov_b32 v{ONES}, 0x3f803f80")
        a(f"v_dot2_f32_bf16 v{t0}, v{pk}, v{ONES}, 0"); a(f"v_dot2_f32_bf16 v{t1}, v{pk}, v{pk}, 0")
        for i in range(1, 6):
            a(f"v_dot2_f32_bf16 v{t0}, v{pk+i}, v{ONES}, v{t0}"); a(f"v_dot2_f32_bf16 v{t1}, v{pk+i}, v{pk+i}, v{t1}")
        allreduce_n([("v_add_f32", t0), ("v_add_f32", t1)], [t2, t3])
        ln_consts(t0, t1, t2)
        a(f"v_rcp_f32 v{t4}, v{t1}")
        for i in range(0, 12, 2):
            a(f"v_sub_f32 v{val+i}, v{val+i}, v{t0}")
            a(f"v_sub_f32 v{val+i+1}, v{val+i+1}, v{t0}")
            a(f"v_cvt_pk_bf16_f32 v{t2}, v{val+i}, v{val+i+1}")
            a(f"v_lshlrev_b32 v{val+i}, 16, v{t2}")
            a(f"v_and_b32 v{val+i+1}, 0xffff0000, v{t2}")
            for k in (i, i + 1):
                if refine:
                    a(f"v_mul_f32 v{t2}, v{val+k}, v{t4}")
                    a(f"v_fma_f32 v{t3}, -v{t2}, v{t1}, v{val+k}")
                    a(f"v_fma_f32 v{val+k}, v{t3}, v{t4}, v{t2}")
                else:
                    a(f"v_mul_f32 v{val+k}, v{val+k}, v{t4}")
            a(f"v_cvt_pk_bf16_f32 v{pk + i//2}, v{val+i}, v{val+i+1}")
            a(f"v_lshlrev_b32 v{val+i}, 16, v{pk + i//2}")
            a(f"v_and_b32 v{val+i+1}, 0xffff0000, v{pk + i//2}")

    a.lines.append(f"; @launch grid=(256,1,1) block=(320,1,1) lds={lds}")
    a.lines.append('.amdgcn_target "amdgcn-amd-amdhsa--gfx950"')
    a.lines += [".text", f".globl {NAME}", ".p2align 8", f".type {NAME},@function"]
    a.label(NAME)
    a("s_cmp_ge_u32 s2, 256")
    a("s_cbranch_scc1 L_end")
    a("s_load_dwordx16 s[4:19], s[0:1], 0")
    a("s_load_dwordx8 s[20:27], s[0:1], 64")
    a("s_load_dwordx2 s[28:29], s[0:1], 96")
    a(f"v_and_b32 v{vL}, 63, v0")
    a(f"v_lshrrev_b32 v{T[0]}, 6, v0")
    a(f"v_lshrrev_b32 v{T[2]}, 3, v{vL}")
    a(f"v_readfirstlane_b32 s{sW}, v{T[0]}")
    a(f"v_and_b32 v{T[3]}, 7, v{vL}")
    a(f"v_lshlrev_b32 v{T[4]}, 4, v{T[3]}")
    def masks():
        for r in range(4):
            a(f"v_mov_b32 v{vM[r]}, 0")
            a(f"v_mov_b32 v{T[5]}, 0xffff")
            a(f"v_cmp_eq_u32 vcc, {2*r}, v{T[3]}")
            a(f"v_cndmask_b32 v{vM[r]}, v{vM[r]}, v{T[5]}, vcc")
            a(f"v_mov_b32 v{T[5]}, 0xffff0000")
            a(f"v_cmp_eq_u32 vcc, {2*r+1}, v{T[3]}")
            a(f"v_cndmask_b32 v{vM[r]}, v{vM[r]}, v{T[5]}, vcc")
    def ws_srd():
        a(f"s_mov_b32 s{WSR}, s{pWS}"); a(f"s_mov_b32 s{WSR+1}, s{pWS+1}"); a(f"s_mov_b32 s{WSR+2}, {WS_SIZE * (2 if dbg else 1)}"); a(f"s_mov_b32 s{WSR+3}, 0x20000")
    vq = []
    def wait_for(name):
        if name not in vq: return
        idx = max(i for i, n in enumerate(vq) if n == name)
        n = len(vq) - 1 - idx
        a(f"s_waitcnt vmcnt({min(n, 63)})")
        del vq[:idx + 1]
    def red_addr():
        a(f"v_lshrrev_b32 v{T[0]}, 5, v{vL}")
        a(f"v_mul_u32_u24 v{vRA}, 768, v{T[0]}")
        a(f"v_and_b32 v{T[0]}, 7, v{vL}"); a(f"v_lshlrev_b32 v{T[0]}, 5, v{T[0]}"); a(f"v_add_u32 v{vRA}, v{vRA}, v{T[0]}")
        a(f"v_and_b32 v{T[0]}, 16, v{vL}"); a(f"v_add_u32 v{vRA}, v{vRA}, v{T[0]}")
        a(f"s_mul_i32 s{sT0}, s{sW}, 1536"); a(f"v_add_u32 v{vRA}, s{sT0}, v{vRA}")
    def red_write():
        set_exec(USEFUL)
        for t in range(3): a(f"ds_write_b128 v{vRA}, {vr(vACC+4*t,4)} offset:{L_RED + 256*t}")
        set_exec(-1)
    a(f"s_cmp_lg_u32 s{sW}, 4"); a("s_cbranch_scc1 L_stream")
    a("s_setprio 3")

    WD = RING
    XQ = 168
    XV = 176
    XR = 188
    a(f"s_and_b32 s{sT0}, s2, 31"); a(f"s_lshr_b32 s{sT1}, s2, 5")
    a(f"v_mul_u32_u24 v{T[6]}, 12288, v{T[2]}")
    a(f"s_mul_i32 s{sT2}, s{sT0}, 384")
    a(f"v_add3_u32 v{T[6]}, v{T[6]}, v{T[4]}, s{sT2}")
    a(f"s_mul_i32 s{sT3}, s{sT1}, {80*12288}")
    a(f"v_lshlrev_b32 v{T[1]}, 3, v{vL}")
    a(f"v_add_u32 v{T[5]}, 1024, v{T[1]}")
    a(f"v_min_u32 v{T[5]}, 1272, v{T[5]}")
    a(f"s_mov_b32 s{TMP+2}, 7864320"); a(f"s_mov_b32 s{TMP+3}, 0x20000")
    a("s_waitcnt lgkmcnt(0)")
    a(f"s_mov_b32 s{TMP}, s{pWQ}"); a(f"s_mov_b32 s{TMP+1}, s{pWQ+1}")
    a(f"global_load_dwordx2 {vr(XQ,2)}, v{T[1]}, {sp(pX)}")
    a(f"global_load_dwordx2 {vr(XQ+2,2)}, v{T[1]}, {sp(pX)} offset:512")
    a(f"global_load_dwordx2 {vr(XQ+4,2)}, v{T[5]}, {sp(pX)}")
    vq += ["x0", "x1", "x2"]
    for k in range(10):
        for t in range(3):
            a(f"buffer_load_dwordx4 {vr(WD + 12*k + 4*t, 4)}, v{T[6]}, {srd(TMP)}, s{sT3} offen offset:{128*t} {qpol}")
            vq.append(f"wq{k}")
        if k < 9: a(f"s_add_u32 s{sT3}, s{sT3}, {8*12288}")
    a("s_barrier")
    a(f"v_mov_b32 v{vZ}, 0")
    for o in range(0, 36, 4): a(f"ds_write_b32 v{vZ}, v{vZ} offset:{L_CTL + o}")
    a(f"s_load_dword s{sNon}, {sp(pWS)}, {EPOCH}")
    if dbg: a(f"v_mov_b32 v{vST}, 0")
    stamp(0)
    masks()
    ws_srd()
    a(f"s_and_b32 s{sSlot}, s2, {H-1}")
    wait_for("x2")
    stamp(18)
    CE = 198
    a("s_waitcnt lgkmcnt(0)")
    a(f"s_add_u32 s{sNon}, s{sNon}, 0x9e3779b9")
    a(f"v_mov_b32 v{vN}, s{sNon}")
    a(f"s_getreg_b32 s{sT0}, hwreg(HW_REG_XCC_ID, 0, 4)")
    a(f"s_and_b32 s{sRole}, s{sT0}, 1")
    a(f"s_and_b32 s{sT1}, s{sNon}, 0xfffffff0"); a(f"s_or_b32 s{sT0}, s{sT0}, s{sT1}")
    a(f"v_mov_b32 v{CE}, s{sT0}")
    a(f"s_and_b32 s{sU2}, s2, 7"); a(f"s_lshl_b32 s{sU2}, s{sU2}, 7")
    a(f"s_lshr_b32 s{sT1}, s2, 3"); a(f"s_lshl_b32 s{sT1}, s{sT1}, 2"); a(f"s_add_u32 s{sT1}, s{sT1}, s{sU2}"); a(f"s_add_u32 s{sT1}, s{sT1}, {CLS}")
    if local:
        set_exec(1)
        a(f"buffer_store_dword v{CE}, v{vZ}, {srd(WSR)}, s{sT1} offen")
        set_exec(-1)
        vq.append("cls_st")
    a(f"v_cmp_gt_u32 vcc, 32, v{vL}")
    a(f"v_cndmask_b32 v{XQ+4}, 0, v{XQ+4}, vcc"); a(f"v_cndmask_b32 v{XQ+5}, 0, v{XQ+5}, vcc")
    for k in range(6):
        a(f"v_lshlrev_b32 v{XV+2*k}, 16, v{XQ+k}")
        a(f"v_and_b32 v{XV+2*k+1}, 0xffff0000, v{XQ+k}")
    layernorm_full(XV, XQ, T[0:5], True)
    a(f"v_lshlrev_b32 v{T[0]}, 3, v{vL}")
    a(f"ds_write_b64 v{T[0]}, {vr(XQ,2)} offset:{L_XN}")
    a(f"ds_write_b64 v{T[0]}, {vr(XQ+2,2)} offset:{L_XN+512}")
    set_exec("0x00000000ffffffff")
    a(f"ds_write_b64 v{T[0]}, {vr(XQ+4,2)} offset:{L_XN+1024}")
    set_exec(-1)
    a(f"s_lshr_b32 s{sT1}, s2, 5"); a(f"s_mul_i32 s{sT1}, s{sT1}, 160")
    a(f"v_lshrrev_b32 v{T[0]}, 3, v{vL}"); a(f"v_lshlrev_b32 v{T[0]}, 1, v{T[0]}"); a(f"v_add_u32 v{T[0]}, s{sT1}, v{T[0]}")
    a("s_waitcnt lgkmcnt(0)")
    for k in range(10): a(f"ds_read_u16 v{XR+k}, v{T[0]} offset:{L_XN + 16*k}")
    for i in range(12): a(f"v_mov_b32 v{vACC+i}, 0")
    a("s_waitcnt lgkmcnt(0)")
    for k in range(10): a(f"v_lshl_or_b32 v{XR+k}, v{XR+k}, 16, v{XR+k}")
    stamp(1)
    def cls_issue():
        a(f"v_and_b32 v{T[5]}, 31, v{vL}"); a(f"v_lshlrev_b32 v{T[5]}, 2, v{T[5]}")
        a(f"s_add_u32 s{sT2}, s{sU2}, {CLS}")
        a(f"buffer_load_dword v{CE+1}, v{T[5]}, {srd(WSR)}, s{sT2} offen sc1")
    for k in range(10):
        a_operand(XR + k)
        if k == 8 and local:
            cls_issue(); vq.append("cls_ld")
        wait_for(f"wq{k}")
        for t in range(3):
            a(f"v_mfma_f32_16x16x32_bf16 {vr(vACC+4*t,4)}, {vr(vA,4)}, {vr(WD+12*k+4*t,4)}, {vr(vACC+4*t,4)}")
    a(f"v_lshrrev_b32 v{T[0]}, 5, v{vL}"); a(f"v_mul_u32_u24 v{vRA}, 768, v{T[0]}")
    a(f"v_and_b32 v{T[0]}, 7, v{vL}"); a(f"v_lshlrev_b32 v{T[0]}, 5, v{T[0]}"); a(f"v_add_u32 v{vRA}, v{vRA}, v{T[0]}")
    a(f"v_and_b32 v{T[0]}, 16, v{vL}"); a(f"v_add_u32 v{vRA}, v{vRA}, v{T[0]}")
    a(f"v_mul_u32_u24 v{T[0]}, 12, v{vL}")
    a(f"s_and_b32 s{sT0}, s2, 31"); a(f"s_lshr_b32 s{sT1}, s2, 5"); a(f"s_lshl_b32 s{sT0}, s{sT0}, 3"); a(f"s_add_u32 s{sT0}, s{sT0}, s{sT1}")
    a(f"s_lshl_b32 s{sT0}, s{sT0}, 10"); a(f"s_add_u32 s{sT0}, s{sT0}, {QP}")
    a(f"v_lshlrev_b32 v{T[1]}, 4, v{vL}")
    red_write()
    a("s_waitcnt lgkmcnt(0)")
    S3 = 200
    for s in range(2):
        for i in range(3): a(f"ds_read_b32 v{S3+4*s+i}, v{T[0]} offset:{L_RED + 768*s + 4*i}")
    a("s_waitcnt lgkmcnt(0)")
    pkadd(S3, S3, S3 + 4); a(f"v_add_f32 v{S3+2}, v{S3+2}, v{S3+6}")
    a(f"v_mov_b32 v{S3+3}, v{vN}")
    a(f"s_mov_b32 s{sLoc}, 0")
    if local:
        a(f"s_mov_b32 s{sSpin}, 8")
        a("s_waitcnt vmcnt(0)")
        a.label("L_clschk")
        a(f"v_cmp_ne_u32 vcc, v{CE+1}, v{CE}")
        a(f"s_cmp_eq_u64 vcc, 0"); a(f"s_cselect_b32 s{sLoc}, 1, 0"); a("s_cbranch_scc1 L_clsdone")
        a(f"s_sub_u32 s{sSpin}, s{sSpin}, 1"); a(f"s_cmp_eq_u32 s{sSpin}, 0"); a("s_cbranch_scc1 L_clsdone")
        cls_issue(); a("s_waitcnt vmcnt(0)"); a("s_branch L_clschk")
        a.label("L_clsdone")
    pub_store(vr(S3,4), T[1], sT0)
    a(f"v_mov_b32 v{T[2]}, s{sLoc}"); a(f"ds_write_b32 v{vZ}, v{T[2]} offset:{L_CTL + 8}")
    stamp(21)
    S4 = RING
    for p in range(nph):
        a(f"s_add_u32 s{sU}, s{sSlot}, {H*p}"); a(f"s_lshl_b32 s{sU}, s{sU}, 13"); a(f"s_add_u32 s{sU}, s{sU}, {QP}")
        def iss():
            for s in range(8):
                a(f"s_add_u32 s{sT1}, s{sU}, {1024*s}")
                a(f"buffer_load_dwordx4 {vr(S4+4*s,4)}, v{T[1]}, {srd(WSR)}, s{sT1} offen sc1")
        def chk():
            for s in range(8):
                a(f"v_cmp_ne_u32 vcc, v{S4+4*s+3}, v{vN}")
                a(f"s_mov_b64 {sp(sBad)}, vcc" if s == 0 else f"s_or_b64 {sp(sBad)}, {sp(sBad)}, vcc")
        poll(iss, chk)
        if p == 0: stamp(22)
        for s in range(1, 8):
            pkadd(S4, S4, S4 + 4*s); a(f"v_add_f32 v{S4+2}, v{S4+2}, v{S4+4*s+2}")
        a(f"v_cvt_pk_bf16_f32 v{S4}, v{S4}, v{S4+1}")
        a(f"v_cvt_pk_bf16_f32 v{S4+2}, v{S4+2}, v{S4+2}")
        a(f"v_mul_u32_u24 v{T[0]}, 6, v{vL}")
        a(f"ds_write_b16 v{T[0]}, v{S4} offset:{L_Q + 384*p}")
        a(f"ds_write_b16_d16_hi v{T[0]}, v{S4} offset:{L_Q + 384*p + 2}")
        a(f"ds_write_b16 v{T[0]}, v{S4+2} offset:{L_Q + 384*p + 4}")
        a("s_waitcnt lgkmcnt(0)")
        if nph > 1:
            a(f"v_mov_b32 v{T[0]}, {p+1}"); a(f"ds_write_b32 v{vZ}, v{T[0]} offset:{L_CTL + 32}"); a("s_waitcnt lgkmcnt(0)")
        if p == 0:
            a("s_barrier")
            if codepf:
                a(f"s_getpc_b64 {sp(58)}")
                a.label("L_pc")
                a(f"s_lshr_b32 s{sT3}, s2, 3"); a(f"s_lshl_b32 s{sT3}, s{sT3}, 9")
                a(f"v_and_b32 v{T[0]}, 7, v{vL}"); a(f"v_lshlrev_b32 v{T[0]}, 6, v{T[0]}"); a(f"v_add_u32 v{T[0]}, s{sT3}, v{T[0]}")
                a(f"v_add_u32 v{T[0]}, L_kcode-L_pc, v{T[0]}")
                a(f"v_min_u32 v{T[0]}, L_codeend-L_pc-4, v{T[0]}")
                a(f"global_load_dword v{vAL}, v{T[0]}, {sp(58)}")
    if ctl or nph > 1:
        NTOT = 2 * NIT * nph
        sPub = sPh
        HBUF = RING
        a(f"s_and_b32 s{sT0}, s{sNon}, 0xffffff00"); a(f"v_mov_b32 v{T[3]}, s{sT0}")
        a(f"s_add_u32 s{sU}, s{sU2}, {PROG}")
        a(f"v_lshlrev_b32 v{T[4]}, 2, v{vL}"); a(f"v_mov_b32 v{T[5]}, 0x800"); a(f"v_cmp_gt_u32 vcc, 32, v{vL}"); a(f"v_cndmask_b32 v{T[4]}, v{T[5]}, v{T[4]}, vcc")
        a(f"s_lshr_b32 s{sT1}, s2, 3"); a(f"s_lshl_b32 s{sT1}, s{sT1}, 2"); a(f"v_mov_b32 v{T[5]}, s{sT1}")
        sCN, sLead, sThr = sWI, sOff, sIt
        a(f"s_mov_b32 s{sCN}, 1"); a(f"s_cmp_lt_u32 s2, 8"); a(f"s_cselect_b32 s{sLead}, 1, 0")
        a(f"v_lshlrev_b32 v{vBC}, 8, v{vL}"); a(f"v_min_u32 v{vBC}, {7*256}, v{vBC}")
        a(f"s_and_b32 s{sT2}, s2, 7"); a(f"s_lshl_b32 s{sT2}, s{sT2}, 8"); a(f"v_mov_b32 v{vP}, s{sT2}")
        a(f"v_mov_b32 v{vPN}, 0x800")
        sA, sAp, sAn, sTau, sHave, sK, sLcp, sTn = 62, 63, 64, 65, 66, 67, 68, 70
        if tctl:
            a(f"s_mov_b32 s{sLcp}, 4"); a(f"s_mov_b32 s{sK}, 4"); a(f"s_mov_b32 s{sHave}, 0")
            a(f"s_mov_b32 s{sA}, 0"); a(f"s_mov_b32 s{sAp}, 0"); a(f"s_mov_b32 s{sAn}, 0"); a(f"s_mov_b32 s{sTau}, 0")
            a(f"s_and_b32 s{sT2}, s2, 7"); a(f"s_lshl_b32 s{sT2}, s{sT2}, 8")
            a(f"v_and_b32 v{vBC}, 31, v{vL}"); a(f"v_lshlrev_b32 v{vBC}, 3, v{vBC}"); a(f"v_add_u32 v{vBC}, s{sT2}, v{vBC}")
            a(f"s_lshr_b32 s{sT3}, s2, 3"); a(f"s_lshl_b32 s{sT3}, s{sT3}, 3"); a(f"s_add_u32 s{sT3}, s{sT3}, s{sT2}"); a(f"v_mov_b32 v{vP}, s{sT3}")
            a(f"v_min_u32 v{vPN}, 7, v{vL}"); a(f"v_lshlrev_b32 v{vPN}, 8, v{vPN}")
            a(f"v_mov_b32 v{vC}, s{sT2}")
        a(f"s_mov_b32 s{sGI}, 0"); a(f"s_mov_b32 s{sSpin}, {1 << 22}"); a(f"s_mov_b32 s{sPub}, 0")
        if nph > 1:
            for r in range(4): a(f"s_mov_b32 s{sSel+r}, 0x{0x07060500 | r:08x}")
            a(f"s_lshr_b32 s{sJ}, s2, {H.bit_length()-1}")
            a(f"v_mul_u32_u24 v{T[1]}, 43691, v{vL}"); a(f"v_lshrrev_b32 v{T[1]}, 19, v{T[1]}")
            a(f"v_mul_u32_u24 v{T[2]}, 12, v{T[1]}"); a(f"v_sub_u32 v{T[2]}, v{vL}, v{T[2]}")
            a(f"v_mul_u32_u24 v{T[1]}, {WPH*192}, v{T[1]}"); a(f"v_lshlrev_b32 v{T[2]}, 4, v{T[2]}"); a(f"v_add_u32 v{vOPA}, v{T[1]}, v{T[2]}")
            a(f"v_lshlrev_b32 v{vRA}, 4, v{vL}")
        a.label("L_cspin")
        a("s_sleep 4")
        a(f"ds_read_b32 v{T[0]}, v{vZ} offset:{L_CTL}")
        if nph > 1: a(f"ds_read_b128 {vr(vA,4)}, v{vZ} offset:{L_CTL + 16}")
        a("s_waitcnt lgkmcnt(0)"); a(f"v_readfirstlane_b32 s{sT0}, v{T[0]}")
        a(f"s_sub_u32 s{sSpin}, s{sSpin}, 1"); a(f"s_cmp_eq_u32 s{sSpin}, 0"); a("s_cbranch_scc1 L_cdone")
        if nph > 1:
            a(f"v_min_u32 v{vA}, v{vA}, v{vA+1}"); a(f"v_min_u32 v{vA+2}, v{vA+2}, v{vA+3}"); a(f"v_min_u32 v{vA}, v{vA}, v{vA+2}")
            a(f"v_readfirstlane_b32 s{sT1}, v{vA}")
            a(f"s_cmp_gt_u32 s{sT1}, s{sPub}"); a("s_cbranch_scc0 L_cnopub")
            set_exec("0x0000ffffffffffff")
            for s_ in range(8): a(f"ds_read_b128 {vr(HBUF+4*s_,4)}, v{vRA} offset:{L_REDH + 768*s_}")
            a("s_waitcnt lgkmcnt(0)")
            a(f"s_add_u32 s{sT1}, s{sPub}, 1"); a(f"v_mov_b32 v{T[1]}, s{sT1}"); a(f"ds_write_b32 v{vZ}, v{T[1]} offset:{L_CTL + 12}")
            sum_quads(HBUF, [HBUF + 4*k for k in range(1, 8)])
            tag4(HBUF)
            a(f"s_mul_i32 s{sT2}, s{sPub}, {H}"); a(f"s_add_u32 s{sT2}, s{sT2}, s{sSlot}")
            a(f"s_mul_i32 s{sT2}, s{sT2}, {4*WPH*192}"); a(f"s_mul_i32 s{sT3}, s{sJ}, 192"); a(f"s_add_u32 s{sT2}, s{sT2}, s{sT3}"); a(f"s_add_u32 s{sT2}, s{sT2}, {OP}")
            pub_store(vr(HBUF,4), vOPA, sT2)
            set_exec(-1)
            a(f"s_mov_b32 s{sPub}, s{sT1}")
            a.label("L_cnopub")
        if ctl and tctl:
            a(f"s_cmp_eq_u32 s{sLead}, 0"); a("s_cbranch_scc1 L_tnolead")
            a(f"s_cmp_gt_u32 s{sLcp}, {cpmax}"); a("s_cbranch_scc1 L_tnolead")
            a(f"s_cmp_gt_u32 s{sLcp}, s{sGI}"); a("s_cbranch_scc1 L_tnolead")
            a(f"s_lshl_b32 s72, s{sLcp}, 9"); a(f"s_add_u32 s72, s72, {TT - 2048}")
            a(f"buffer_load_dwordx2 {vr(vA,2)}, v{vBC}, {srd(WSR)}, s72 offen sc1")
            a("s_waitcnt vmcnt(0)")
            a(f"v_cmp_eq_u32 vcc, v{vA+1}, v{vN}"); a("s_cmp_eq_u32 vcc_lo, -1"); a("s_cbranch_scc0 L_tnolead")
            a(f"v_readlane_b32 s73, v{vA}, 0"); a("s_nop 1")
            a(f"v_subrev_u32 v{vA}, s73, v{vA}")
            allreduce("v_add_u32", vA, vA + 2)
            a(f"v_readfirstlane_b32 s74, v{vA}"); a("s_nop 1")
            a("s_ashr_i32 s74, s74, 6"); a("s_add_u32 s73, s73, s74")
            a(f"v_mov_b32 v{vA}, s73"); a(f"v_mov_b32 v{vA+1}, v{vN}")
            a(f"s_lshl_b32 s72, s{sLcp}, 9"); a(f"s_add_u32 s72, s72, {GT - 2048}")
            set_exec(1)
            a(f"buffer_store_dwordx2 {vr(vA,2)}, v{vC}, {srd(WSR)}, s72 offen sc1")
            set_exec(-1)
            a(f"s_add_u32 s{sLcp}, s{sLcp}, 4")
            a.label("L_tnolead")
        if ctl:
            a(f"s_cmp_lg_u32 s{sT0}, s{sGI}"); a("s_cbranch_scc1 L_cchg")
            if xctl:
                a(f"s_cmp_eq_u32 s{sLead}, 0"); a("s_cbranch_scc1 L_cchk")
                a(f"buffer_load_dword v{T[1]}, v{T[4]}, {srd(WSR)}, s{sU} offen sc1")
                a("s_waitcnt vmcnt(0)")
                a(f"v_xor_b32 v{T[1]}, v{T[1]}, v{T[3]}")
                a("s_branch L_clead")
            else:
                a("s_branch L_cchk")
            a.label("L_cchg")
            a(f"s_mov_b32 s{sGI}, s{sT0}")
            if tctl:
                a(f"s_memrealtime {sp(sTn)}"); a("s_waitcnt lgkmcnt(0)")
                a(f"s_and_b32 s72, s{sGI}, 3"); a("s_cmp_eq_u32 s72, 0"); a("s_cbranch_scc0 L_tnocp")
                a(f"s_cmp_gt_u32 s{sGI}, {cpmax}"); a("s_cbranch_scc1 L_tnocp")
                a(f"s_lshl_b32 s72, s{sGI}, 9"); a(f"s_add_u32 s72, s72, {TT - 2048}")
                a(f"v_mov_b32 v{vA}, s{sTn}"); a(f"v_mov_b32 v{vA+1}, v{vN}")
                set_exec(1)
                a(f"buffer_store_dwordx2 {vr(vA,2)}, v{vP}, {srd(WSR)}, s72 offen")
                set_exec(-1)
                a.label("L_tnocp")
                a(f"s_cmp_gt_u32 s{sK}, {cpmax}"); a("s_cbranch_scc1 L_tnoget")
                a(f"s_cmp_le_u32 s{sGI}, s{sK}"); a("s_cbranch_scc1 L_tnoget")
                a(f"s_lshl_b32 s72, s{sK}, 9"); a(f"s_add_u32 s72, s72, {GT - 2048}")
                a(f"buffer_load_dwordx2 {vr(vA,2)}, v{vPN}, {srd(WSR)}, s72 offen sc1")
                a("s_waitcnt vmcnt(0)")
                a(f"v_cmp_eq_u32 vcc, v{vA+1}, v{vN}"); a("s_and_b32 s72, vcc_lo, 0xff"); a("s_cmp_eq_u32 s72, 0xff"); a("s_cbranch_scc0 L_tnoget")
                a(f"s_and_b32 s75, s2, 7"); a(f"v_readlane_b32 s73, v{vA}, 0"); a("s_nop 3"); a(f"v_readlane_b32 s75, v{vA}, s75"); a("s_nop 1")
                a(f"v_subrev_u32 v{vA}, s73, v{vA}")
                a(f"v_cmp_gt_u32 vcc, 8, v{vL}"); a(f"v_cndmask_b32 v{vA}, 0, v{vA}, vcc")
                allreduce("v_add_u32", vA, vA + 2)
                a(f"v_readfirstlane_b32 s74, v{vA}"); a("s_nop 1")
                a("s_ashr_i32 s74, s74, 3"); a("s_add_u32 s73, s73, s74")
                if tctl == 2:
                    a("s_sub_i32 s75, s75, s73"); a(f"s_mul_i32 s75, s75, {kp}"); a("s_ashr_i32 s75, s75, 6"); a(f"s_sub_i32 s{sTau}, 0, s75")
                    a(f"s_add_u32 s{sK}, s{sK}, 4")
                    a("s_branch L_tnoget")
                a(f"s_cmp_eq_u32 s{sK}, 4"); a("s_cbranch_scc1 L_tfirst")
                a(f"s_sub_u32 s{sTau}, s73, s{sAp}"); a(f"s_lshr_b32 s{sTau}, s{sTau}, 2"); a(f"s_mov_b32 s{sHave}, 1")
                a.label("L_tfirst")
                a(f"s_mov_b32 s{sAp}, s73"); a(f"s_mov_b32 s{sA}, s73"); a(f"s_mov_b32 s{sAn}, s{sK}"); a(f"s_add_u32 s{sK}, s{sK}, 4")
                a.label("L_tnoget")
                if tctl == 2: a("s_branch L_trank")
                a(f"s_cmp_eq_u32 s{sHave}, 0"); a("s_cbranch_scc1 L_trank")
                a(f"s_sub_u32 s72, s{sGI}, s{sAn}"); a(f"s_mul_i32 s72, s72, s{sTau}"); a(f"s_add_u32 s72, s72, s{sA}")
                a(f"s_sub_u32 s72, s{sTn}, s72")
                a(f"s_cmp_gt_i32 s72, {delta}"); a(f"s_cselect_b32 s72, 1, 0")
                a(f"v_mov_b32 v{T[0]}, s72"); a(f"ds_write_b32 v{vZ}, v{T[0]} offset:{L_CTL + 4}")
                a("s_branch L_cchk")
                a.label("L_trank")
            a(f"buffer_load_dword v{T[1]}, v{T[4]}, {srd(WSR)}, s{sU} offen sc1")
            a(f"v_or_b32 v{T[2]}, s{sGI}, v{T[3]}")
            set_exec(1)
            a(f"buffer_store_dword v{T[2]}, v{T[5]}, {srd(WSR)}, s{sU} offen")
            set_exec(-1)
            a("s_waitcnt vmcnt(1)")
            a(f"v_xor_b32 v{T[1]}, v{T[1]}, v{T[3]}")
            a(f"s_mov_b32 s{sThr}, {thr}")
            if thrF is not None:
                a(f"s_lshr_b32 s{sT3}, s2, 3"); a(f"s_sub_u32 s{sT3}, s{sT3}, 16"); a(f"s_cmp_lt_u32 s{sT3}, 12"); a(f"s_cselect_b32 s{sThr}, {thrF}, s{sThr}")
            if thrR is not None:
                a(f"s_lshr_b32 s{sT3}, s2, 3"); a(f"s_cmp_ge_u32 s{sT3}, 28"); a(f"s_cselect_b32 s{sThr}, {thrR}, s{sThr}")
            if thr_odd is not None:
                a(f"s_cmp_eq_u32 s{sRole}, 1"); a(f"s_cselect_b32 s{sThr}, {thr_odd}, s{sThr}")
            if tctl == 2:
                a(f"s_add_i32 s{sThr}, s{sThr}, s{sTau}"); a(f"s_max_i32 s{sThr}, s{sThr}, 3"); a(f"s_min_i32 s{sThr}, s{sThr}, 32")
            if xctl:
                a(f"v_readlane_b32 s{sT3}, v{T[1]}, 32")
                a("s_nop 1")
                a(f"s_cmp_eq_u32 s{sT3}, 2"); a(f"s_cselect_b32 s{sThr}, {thr_lo}, s{sThr}")
                a(f"s_cmp_eq_u32 s{sT3}, 0"); a(f"s_cselect_b32 s{sThr}, {thr_hi}, s{sThr}")
            a(f"v_cmp_le_u32 vcc, s{sGI}, v{T[1]}"); a(f"s_mov_b32 s{sT2}, vcc_lo")
            a(f"v_cmp_gt_u32 vcc, 256, v{T[1]}"); a(f"s_and_b32 s{sT2}, s{sT2}, vcc_lo")
            a(f"s_bcnt1_i32_b32 s{sT2}, s{sT2}")
            a(f"s_cmp_ge_u32 s{sT2}, s{sThr}"); a(f"s_cselect_b32 s{sT2}, 1, 0")
            a(f"v_mov_b32 v{T[0]}, s{sT2}"); a(f"ds_write_b32 v{vZ}, v{T[0]} offset:{L_CTL + 4}")
            if xctl:
                a(f"s_cmp_eq_u32 s{sLead}, 0"); a("s_cbranch_scc1 L_cchk")
                a.label("L_clead")
                a(f"v_cmp_le_u32 vcc, s{sCN}, v{T[1]}"); a(f"s_mov_b32 s{sT2}, vcc_lo")
                a(f"v_cmp_gt_u32 vcc, 256, v{T[1]}"); a(f"s_and_b32 s{sT2}, s{sT2}, vcc_lo")
                a(f"s_bcnt1_i32_b32 s{sT2}, s{sT2}")
                a(f"s_cmp_ge_u32 s{sT2}, {cmed}"); a("s_cbranch_scc0 L_cchk")
                a(f"s_mov_b32 s{sT2}, {GLOB}")
                a(f"buffer_load_dword v{T[1]}, v{vBC}, {srd(WSR)}, s{sT2} offen sc1")
                a(f"v_or_b32 v{T[2]}, s{sCN}, v{T[3]}")
                set_exec(1)
                a(f"buffer_store_dword v{T[2]}, v{vP}, {srd(WSR)}, s{sT2} offen sc1")
                set_exec(-1)
                a("s_waitcnt vmcnt(1)")
                a(f"v_xor_b32 v{T[1]}, v{T[1]}, v{T[3]}")
                a(f"v_cmp_le_u32 vcc, s{sCN}, v{T[1]}"); a(f"s_and_b32 s{sT2}, vcc_lo, 0xff")
                a(f"v_cmp_gt_u32 vcc, 256, v{T[1]}"); a(f"s_and_b32 s{sT2}, s{sT2}, vcc_lo")
                a(f"s_bcnt1_i32_b32 s{sT2}, s{sT2}")
                a(f"s_mov_b32 s{sT3}, 1")
                a(f"s_cmp_ge_u32 s{sT2}, {cthr}"); a(f"s_cselect_b32 s{sT3}, 2, s{sT3}")
                if clead >= 0:
                    a(f"s_cmp_le_u32 s{sT2}, {clead}"); a(f"s_cselect_b32 s{sT3}, 0, s{sT3}")
                a(f"v_or_b32 v{T[2]}, s{sT3}, v{T[3]}")
                set_exec(1)
                a(f"buffer_store_dword v{T[2]}, v{vPN}, {srd(WSR)}, s{sU} offen")
                set_exec(-1)
                a(f"s_add_u32 s{sCN}, s{sCN}, 1")
            a.label("L_cchk")
            a(f"s_cmp_lt_u32 s{sGI}, {NTOT - 2}"); a("s_cbranch_scc1 L_cspin")
        if nph > 1:
            a(f"s_cmp_lt_u32 s{sPub}, {nph - 1}"); a("s_cbranch_scc1 L_cspin")
        a.label("L_cdone")
        a("s_waitcnt vmcnt(0) lgkmcnt(0)")
    dump_stamps(True)
    a("s_endpgm")

    a.label("L_stream")
    vq[:] = []
    a(f"v_mul_u32_u24 v{vSA}, 384, v{T[2]}")
    a(f"v_add_u32 v{vSA}, v{vSA}, v{T[4]}")
    a(f"s_and_b32 s{sSlot}, s2, {H-1}")
    a(f"s_lshr_b32 s{sJ}, s2, {H.bit_length()-1}")
    a(f"s_lshl_b32 s{sWI}, s{sJ}, 2")
    a(f"s_add_u32 s{sWI}, s{sWI}, s{sW}")
    a(f"s_mov_b32 s{sHead}, s{sSlot}")
    a(f"s_mov_b32 s{sPh}, 0")
    a(f"s_mul_i32 s{sT0}, s{sHead}, {HB}")
    a(f"s_mul_i32 s{sOff}, s{sWI}, 3072")
    a(f"s_mov_b32 s{STR+2}, {HB}"); a(f"s_mov_b32 s{STR+3}, 0x20000")
    a("s_waitcnt lgkmcnt(0)")
    def kslot(g):
        if g < 8: return RING + 12 * ((g + 5) % 8)
        if g < 13 and g < PK: return W + 12 * (g - 8)
        return RING + 12 * (g % 8)
    def kreg(l): return kslot(l // 3) + 4 * (l % 3)
    def stream_load(reg, t):
        a(f"buffer_load_dwordx4 {vr(reg,4)}, v{vSA}, {srd(STR)}, s{sOff} offen offset:{128*t} {pol}")
        if t == 2: a(f"s_add_u32 s{sOff}, s{sOff}, {STRIDE}")
    def issue(l):
        stream_load(kreg(l), l % 3); vq.append(f"k{l}")
    a(f"s_add_u32 s{STR}, s{pK}, s{sT0}"); a(f"s_addc_u32 s{STR+1}, s{pK+1}, 0")
    for l in range(early): issue(l)
    a(f"s_load_dword s{sNon}, {sp(pWS)}, {EPOCH}")
    if dbg: a(f"v_mov_b32 v{vST}, 0")
    stamp(0)
    a(f"v_mov_b32 v{vOPA}, 0"); a(f"s_mov_b32 s{sU2}, {OP}")
    masks()
    a(f"s_mov_b32 s{sPh}, 0")
    for g in range(8):
        m = 0x0101010101010101 << g
        a(f"s_mov_b32 s{sMask+2*g}, 0x{m & 0xffffffff:08x}")
        a(f"s_mov_b32 s{sMask+2*g+1}, 0x{m >> 32:08x}")
    for r in range(4): a(f"s_mov_b32 s{sSel+r}, 0x{0x07060500 | r:08x}")
    a(f"s_mov_b32 s{sSelG}, 0x0c0c0400")
    a(f"s_mov_b32 s{sPkSel}, 0x07060302")
    for r in range(1, 4):
        m = 0xffff << (16 * r)
        a(f"s_mov_b32 s{sRow+2*(r-1)}, 0x{m & 0xffffffff:08x}"); a(f"s_mov_b32 s{sRow+2*(r-1)+1}, 0x{m >> 32:08x}")
    ws_srd()
    a(f"s_and_b32 s{sT0}, s2, 7"); a(f"s_lshr_b32 s{sT1}, s2, 3")
    a(f"s_lshl_b32 s{sT2}, s{sT1}, 3"); a(f"s_add_u32 s{sRI}, s{sT2}, s{sT0}"); a(f"s_mov_b32 s{sRole}, 0")
    a(f"s_lshr_b32 s{sT2}, s{sT1}, 2"); a(f"s_lshl_b32 s{sT2}, s{sT2}, 3"); a(f"s_add_u32 s{sT2}, s{sT2}, s{sT0}"); a(f"s_lshl_b32 s{sT2}, s{sT2}, 2")
    a(f"s_and_b32 s{sT3}, s{sT1}, 3"); a(f"s_add_u32 s{sOH}, s{sT2}, s{sT3}")
    a(f"s_cmp_lt_u32 s{sT1}, 16"); a("s_cbranch_scc1 L_roled")
    a(f"s_sub_u32 s{sT2}, s{sT1}, 16"); a(f"s_mul_i32 s{sT3}, s{sT0}, 12"); a(f"s_add_u32 s{sRI}, s{sT3}, s{sT2}"); a(f"s_mov_b32 s{sRole}, 1")
    a(f"s_cmp_lt_u32 s{sT1}, 28"); a("s_cbranch_scc1 L_roled")
    a(f"s_sub_u32 s{sT2}, s{sT1}, 28"); a(f"s_lshl_b32 s{sT2}, s{sT2}, 3"); a(f"s_add_u32 s{sRI}, s{sT2}, s{sT0}"); a(f"s_mov_b32 s{sRole}, 2")
    a.label("L_roled")
    a(f"v_mov_b32 v{vZ}, 0"); a(f"v_mov_b32 v{vFL}, 0"); a(f"s_mov_b32 s{sGI}, 0"); a(f"s_mov_b32 s{sPrv}, 0")
    a("s_barrier")
    for l in range(early, 3 * PK):
        if pace and l >= nb: wait_for(f"k{l-nb}")
        issue(l)
    stamp(16)
    a("s_waitcnt lgkmcnt(0)")
    a(f"s_add_u32 s{sNon}, s{sNon}, 0x9e3779b9")
    a(f"v_mov_b32 v{vN}, s{sNon}")
    a("s_barrier")
    a(f"ds_read_b32 v{T[1]}, v{vZ} offset:{L_CTL + 8}"); a("s_waitcnt lgkmcnt(0)"); a(f"v_readfirstlane_b32 s{sLoc}, v{T[1]}")
    def progress():
        if not ctl: return
        n = newlab()
        a(f"s_add_u32 s{sGI}, s{sGI}, 1")
        a(f"s_cmp_lg_u32 s{sW}, 0"); a(f"s_cbranch_scc1 L_pg{n}")
        a(f"v_mov_b32 v{T[5]}, s{sGI}"); a(f"ds_write_b32 v{vZ}, v{T[5]} offset:{L_CTL}")
        a.label(f"L_pg{n}")
    def flag_read():
        if ctl or wmix: a(f"ds_read_b32 v{vFL}, v{vZ} offset:{L_CTL + 4}")
    def load_q():
        a(f"v_and_b32 v{T[0]}, 7, v{vL}"); a(f"v_lshlrev_b32 v{T[0]}, 4, v{T[0]}")
        a(f"s_mul_i32 s{sT0}, s{sPh}, 384"); a(f"v_add_u32 v{T[0]}, s{sT0}, v{T[0]}")
        for t in range(3): a(f"ds_read_b128 {vr(vQ+4*t,4)}, v{T[0]} offset:{L_Q + 128*t}")
    load_q()

    a.label("L_kcode")
    vSC = T[6]
    def score_addr():
        a(f"v_lshlrev_b32 v{vSC}, 2, v{vL}")
        a(f"s_lshl_b32 s{sT0}, s{sW}, 12"); a(f"v_add_u32 v{vSC}, s{sT0}, v{vSC}")
    def kinit():
        score_addr()
        a(f"v_mov_b32 v{vMX}, 0xff800000"); a(f"v_mov_b32 v{vLS}, 0")
        a("s_waitcnt lgkmcnt(0)")
    def kpart(reg, g, t):
        acc = T[t]
        for i in range(4):
            src2 = "0" if i == 0 else f"v{acc}"
            a(f"v_dot2_f32_bf16 v{acc}, v{reg+i}, v{vQ+4*t+i}, {src2}")
        if t == 2:
            a0 = T[0]
            a(f"v_add_f32 v{a0}, v{a0}, v{T[1]}")
            a(f"v_add_f32 v{a0}, v{a0}, v{T[2]}")
            for m in DPP4[:3]: dpp("v_add_f32", a0, m)
            a(f"v_cndmask_b32 v{vC}, v{vC}, v{a0}, {sp(sMask+2*g)}")
    SCALE = f32hex(192 ** -0.5)
    def kfinish():
        t, u, w_ = T[0], T[1], T[2]
        rne(t, vC)
        a(f"v_mul_f32 v{t}, {SCALE}, v{t}")
        rne(t, t)
        a(f"ds_write_b32 v{vSC}, v{t} offset:{L_SC}")
        a(f"v_add_u32 v{vSC}, 256, v{vSC}")
        a(f"v_max_f32 v{u}, v{vMX}, v{t}")
        a(f"v_sub_f32 v{w_}, v{vMX}, v{u}"); a(f"v_sub_f32 v{t}, v{t}, v{u}")
        a(f"v_mul_f32 v{w_}, {f32hex(LOG2E)}, v{w_}"); a(f"v_mul_f32 v{t}, {f32hex(LOG2E)}, v{t}")
        a(f"v_exp_f32 v{w_}, v{w_}"); a(f"v_exp_f32 v{t}, v{t}")
        a(f"v_mov_b32 v{vMX}, v{u}")
        a(f"v_fma_f32 v{vLS}, v{vLS}, v{w_}, v{t}")
    kinit()
    stamp(3)
    nxt = 3 * PK
    early = nb
    for l in range(48):
        while nxt <= l:
            issue(nxt); nxt += 1
        wait_for(f"k{l}")
        while nxt <= l + nb:
            issue(nxt); nxt += 1
        kpart(kreg(l), (l // 3) % 8, l % 3)
        if early > 0 and nxt < 48 and kreg(nxt) == kreg(l) and l % 3 != 2:
            issue(nxt); nxt += 1; early -= 1
        elif early > 0 and nxt < 48 and l % 3 == 2 and kreg(nxt) == kreg(l):
            issue(nxt); nxt += 1; early -= 1
        if l % 24 == 23:
            kfinish(); progress()
    assert nxt == 48 + nb, nxt
    flag_read()
    a(f"s_mov_b32 s{sIt}, 2")
    def switch_to_V():
        n = newlab()
        a(f"s_cmp_eq_u32 s{sIt}, {NIT-1}")
        a(f"s_cbranch_scc0 L_nosw{n}")
        a(f"s_mul_i32 s{sT0}, s{sHead}, {HB}")
        a(f"s_add_u32 s{STR}, s{pV}, s{sT0}"); a(f"s_addc_u32 s{STR+1}, s{pV+1}, 0")
        a(f"s_mul_i32 s{sOff}, s{sWI}, 3072")
        a.label(f"L_nosw{n}")
    def switch_to_nextK():
        n = newlab()
        a(f"s_cmp_eq_u32 s{sIt}, {NIT-1}")
        a(f"s_cbranch_scc0 L_nosw{n}")
        if nph > 1:
            a(f"s_add_u32 s{sT0}, s{sHead}, {H}")
            a(f"s_mul_i32 s{sT0}, s{sT0}, {HB}")
            a(f"s_add_u32 s{STR}, s{pK}, s{sT0}"); a(f"s_addc_u32 s{STR+1}, s{pK+1}, 0")
            a(f"s_mul_i32 s{sOff}, s{sWI}, 3072")
            a(f"s_cmp_eq_u32 s{sPh}, {nph-1}")
            a(f"s_cselect_b32 s{STR+2}, 0, {HB}")
            a(f"s_cselect_b32 s{STR}, s{pK}, s{STR}"); a(f"s_cselect_b32 s{STR+1}, s{pK+1}, s{STR+1}")
        else:
            a(f"s_mov_b32 s{STR+2}, 0")
        a.label(f"L_nosw{n}")
    def ring_load(l):
        stream_load(RING + 12 * ((l // 3) % 8) + 4 * (l % 3), l % 3)
    def controlled_loop(tag, part, switch):
        d = nx_ - nb
        if ctl or wmix:
            a("s_waitcnt lgkmcnt(0)"); a(f"v_readfirstlane_b32 s{sBst}, v{vFL}")
            if wmix:
                a(f"s_lshr_b32 s{sT0}, {wmix}, s{sW}"); a(f"s_and_b32 s{sT0}, s{sT0}, 1"); a(f"s_or_b32 s{sBst}, s{sBst}, s{sT0}")
            a(f"s_cmp_eq_u32 s{sIt}, {NIT-1}"); a(f"s_cselect_b32 s{sBst}, 0, s{sBst}")
            a(f"s_cmp_eq_u32 s{sBst}, 1"); a(f"s_cbranch_scc1 L_{tag}boost")
            a(f"s_cmp_eq_u32 s{sPrv}, 0"); a(f"s_cbranch_scc1 L_{tag}n0")
            for l in range(d):
                a(f"s_waitcnt vmcnt({nx_ - 1 - l})"); part(l)
            a(f"s_branch L_{tag}n1")
            a.label(f"L_{tag}n0")
        for l in range(d):
            a(f"s_waitcnt vmcnt({nb - 1})"); ring_load(l + nb); part(l)
        if ctl or wmix: a.label(f"L_{tag}n1")
        for l in range(d, 24):
            a(f"s_waitcnt vmcnt({nb - 1})")
            if l + nb == 24: switch()
            ring_load(l + nb)
            if l == 12: flag_read()
            part(l)
        if ctl or wmix:
            a(f"s_mov_b32 s{sPrv}, 0"); a(f"s_branch L_{tag}next")
            a.label(f"L_{tag}boost")
            a(f"s_cmp_eq_u32 s{sPrv}, 0"); a(f"s_cbranch_scc0 L_{tag}b0")
            for l in range(nb, nx_): ring_load(l)
            a.label(f"L_{tag}b0")
            for l in range(24):
                a(f"s_waitcnt vmcnt({nx_ - 1})")
                ring_load(l + nx_)
                if l == 12: flag_read()
                part(l)
            a(f"s_mov_b32 s{sPrv}, 1")
            a.label(f"L_{tag}next")
    a.label("L_kloop")
    controlled_loop("k", lambda l: kpart(RING + 12 * (l // 3) + 4 * (l % 3), l // 3, l % 3), switch_to_V)
    kfinish(); progress()
    a(f"s_add_u32 s{sIt}, s{sIt}, 1")
    a(f"s_cmp_lt_u32 s{sIt}, {NIT}")
    a("s_cbranch_scc1 L_kloop")
    stamp(4)

    if tb:
        for l in range(nb, nx_): ring_load(l)
        a(f"s_mov_b32 s{sPrv}, 1")
    a(f"v_mov_b32 v{T[2]}, v{vMX}")
    allreduce("v_max_f32", vMX, T[0])
    a(f"v_sub_f32 v{T[2]}, v{T[2]}, v{vMX}"); a(f"v_mul_f32 v{T[2]}, {f32hex(LOG2E)}, v{T[2]}"); a(f"v_exp_f32 v{T[2]}, v{T[2]}")
    a(f"v_mul_f32 v{vLS}, v{vLS}, v{T[2]}")
    allreduce("v_add_f32", vLS, T[0])
    MLQ = vA
    a(f"v_mov_b32 v{MLQ}, v{vMX}"); a(f"v_mov_b32 v{MLQ+1}, v{vLS}"); a(f"v_mov_b32 v{MLQ+2}, 0"); a(f"v_mov_b32 v{MLQ+3}, 0")
    tag4(MLQ)
    a(f"s_lshl_b32 s{sT0}, s{sHead}, 11"); a(f"s_lshl_b32 s{sT1}, s{sWI}, 4"); a(f"s_add_u32 s{sT0}, s{sT0}, s{sT1}"); a(f"s_add_u32 s{sT0}, s{sT0}, {ML}")
    a(f"v_mov_b32 v{T[0]}, 0")
    set_exec(1)
    pub_store(vr(MLQ,4), T[0], sT0)
    set_exec(-1)
    stamp(5)
    for i in range(12): a(f"v_mov_b32 v{vACC+i}, 0")
    score_addr()
    a("s_waitcnt lgkmcnt(0)")
    a(f"ds_read_b32 v{vPN}, v{vSC} offset:{L_SC}")
    def vpart(l):
        g, t = l // 3, l % 3
        if t == 0:
            a(f"v_mov_b32_dpp v{vBC}, v{vP} row_newbcast:{g} row_mask:0xf bank_mask:0x3")
            a(f"v_mov_b32_dpp v{vBC}, v{vP} row_newbcast:{8+g} row_mask:0xf bank_mask:0xc")
            a_operand(vBC)
        a(f"v_mfma_f32_16x16x32_bf16 {vr(vACC+4*t,4)}, {vr(vA,4)}, {ring(g,t)}, {vr(vACC+4*t,4)}")
    def next_p():
        a("s_waitcnt lgkmcnt(0)")
        a(f"v_sub_f32 v{vP}, v{vPN}, v{vMX}")
        a(f"v_add_u32 v{vSC}, 256, v{vSC}")
        a(f"ds_read_b32 v{vPN}, v{vSC} offset:{L_SC}")
        a(f"v_mul_f32 v{vP}, {f32hex(LOG2E)}, v{vP}")
        a(f"v_exp_f32 v{vP}, v{vP}")
        a(f"v_cvt_pk_bf16_f32 v{vP}, v{vP}, v{vP}")
    a(f"s_mov_b32 s{sIt}, 0")
    if nph > 1:
        a(f"s_cmp_lg_u32 s{sPh}, {nph-1 if wphase is None else wphase}"); a("s_cbranch_scc1 L_vloop")
    a(f"s_cmp_eq_u32 s{sRole}, 1"); a("s_cbranch_scc1 L_wF")
    a(f"s_cmp_eq_u32 s{sRole}, 2"); a("s_cbranch_scc1 L_wR")
    a(f"s_mul_i32 s{sT0}, s{sOH}, 48"); a(f"s_mul_i32 s{sT1}, s{sW}, 12"); a(f"s_add_u32 s{sT0}, s{sT0}, s{sT1}")
    a(f"v_lshrrev_b32 v{T[0]}, 4, v{vL}"); a(f"v_add_u32 v{T[0]}, s{sT0}, v{T[0]}")
    a(f"v_mul_u32_u24 v{T[0]}, 1280, v{T[0]}")
    a(f"v_and_b32 v{T[1]}, 15, v{vL}"); a(f"v_lshlrev_b32 v{T[1]}, 4, v{T[1]}"); a(f"v_add_u32 v{T[0]}, v{T[0]}, v{T[1]}")
    a(f"v_mov_b32 v{T[1]}, s{pWO+1}")
    a(f"v_add_co_u32 v{WA}, vcc, s{pWO}, v{T[0]}"); a(f"v_addc_co_u32 v{WA+1}, vcc, 0, v{T[1]}, vcc")
    a(f"v_add_co_u32 v{WB}, vcc, 10240, v{WA}"); a(f"v_addc_co_u32 v{WB+1}, vcc, 0, v{WA+1}, vcc")
    a(f"s_mov_b32 s{sInc}, 256"); a(f"s_mov_b32 s{sInc4}, 4096")
    a("s_branch L_wdone")
    a.label("L_wF")
    a(f"v_lshrrev_b32 v{T[0]}, 2, v{vL}"); a(f"s_mul_i32 s{sT0}, s{sW}, 160"); a(f"v_add_u32 v{T[0]}, s{sT0}, v{T[0]}")
    a(f"v_mul_u32_u24 v{T[0]}, 3072, v{T[0]}")
    a(f"v_and_b32 v{T[1]}, 1, v{vL}"); a(f"v_lshlrev_b32 v{T[1]}, 4, v{T[1]}"); a(f"v_add_u32 v{T[0]}, v{T[0]}, v{T[1]}")
    a(f"s_lshl_b32 s{sT0}, s{sRI}, 5"); a(f"v_add_u32 v{T[0]}, s{sT0}, v{T[0]}")
    a(f"v_mov_b32 v{T[2]}, s{pWG}"); a(f"v_mov_b32 v{T[3]}, s{pWG+1}")
    a(f"v_mov_b32 v{T[4]}, s{pWU}"); a(f"v_mov_b32 v{T[5]}, s{pWU+1}")
    a(f"v_and_b32 v{T[1]}, 2, v{vL}"); a(f"v_cmp_ne_u32 vcc, 0, v{T[1]}")
    a(f"v_cndmask_b32 v{T[2]}, v{T[2]}, v{T[4]}, vcc"); a(f"v_cndmask_b32 v{T[3]}, v{T[3]}, v{T[5]}, vcc")
    a(f"v_add_co_u32 v{WA}, vcc, v{T[2]}, v{T[0]}"); a(f"v_addc_co_u32 v{WA+1}, vcc, 0, v{T[3]}, vcc")
    a(f"s_lshl_b32 s{sT0}, s{sRI}, 4"); a(f"s_lshl_b32 s{sT1}, s{sW}, 2"); a(f"s_add_u32 s{sT0}, s{sT0}, s{sT1}")
    a(f"v_lshrrev_b32 v{T[0]}, 4, v{vL}"); a(f"v_add_u32 v{T[0]}, s{sT0}, v{T[0]}")
    a(f"v_mul_u32_u24 v{T[0]}, 1280, v{T[0]}")
    a(f"v_and_b32 v{T[1]}, 15, v{vL}"); a(f"v_lshlrev_b32 v{T[1]}, 4, v{T[1]}"); a(f"v_add_u32 v{T[0]}, v{T[0]}, v{T[1]}")
    a(f"v_mov_b32 v{T[1]}, s{pWD+1}")
    a(f"v_add_co_u32 v{WB}, vcc, s{pWD}, v{T[0]}"); a(f"v_addc_co_u32 v{WB+1}, vcc, 0, v{T[1]}, vcc")
    a(f"s_mov_b32 s{sInc}, {16*3072}"); a(f"s_mov_b32 s{sInc4}, {16*3072}")
    a("s_branch L_wdone")
    a.label("L_wR")
    a(f"v_mov_b32 v{WA}, s{pWO}"); a(f"v_mov_b32 v{WA+1}, s{pWO+1}"); a(f"v_mov_b32 v{WB}, s{pWO}"); a(f"v_mov_b32 v{WB+1}, s{pWO+1}")
    a(f"s_mov_b32 s{sInc}, 0"); a(f"s_mov_b32 s{sInc4}, 0")
    a.label("L_wdone")
    def wload(k):
        if k < 10:
            a(f"global_load_dwordx4 {vr(W + 4*k, 4)}, {vr(WA,2)}, off {wpol}")
            if k < 9:
                a(f"v_add_co_u32 v{WA}, vcc, s{sInc4 if k == 4 else sInc}, v{WA}"); a(f"v_addc_co_u32 v{WA+1}, vcc, 0, v{WA+1}, vcc")
        else:
            a(f"global_load_dwordx4 {vr(W + 4*k, 4)}, {vr(WB,2)}, off offset:{256*(k-10)} {wpol}")
        vq.append(f"w{k}")
    vq[:] = [f"v{l}" for l in range(nx_ if tb else nb)] + ["ml"]
    for it in range(2):
        next_p()
        for l in range(24):
            n = 24 * it + l
            wait_for(f"v{n}")
            if not (tb and n + nb < nx_):
                ring_load(n + nb); vq.append(f"v{n+nb}")
            if n % 3 == 0 and n // 3 < 15: wload(n // 3)
            vpart(l)
        progress()
    flag_read()
    a(f"s_mov_b32 s{sIt}, 2"); a(f"s_mov_b32 s{sPrv}, 0")
    a.label("L_vloop")
    MLR = vX
    def ml_issue():
        a(f"s_lshl_b32 s{sT0}, s{sHead}, 11"); a(f"s_add_u32 s{sT0}, s{sT0}, {ML}")
        a(f"v_min_u32 v{T[1]}, {NWH-1}, v{vL}"); a(f"v_lshlrev_b32 v{T[1]}, 4, v{T[1]}")
        a(f"buffer_load_dwordx4 {vr(MLR,4)}, v{T[1]}, {srd(WSR)}, s{sT0} offen sc1")
        if NWH > 64:
            a(f"buffer_load_dwordx4 {vr(MLR+4,4)}, v{T[1]}, {srd(WSR)}, s{sT0} offen offset:1024 sc1")
    def ml_check():
        check4(MLR, T[0], T[2], True)
        if NWH > 64: check4(MLR + 4, T[0], T[2], False)
    a(f"s_cmp_eq_u32 s{sIt}, {NIT-2}"); a("s_cbranch_scc0 L_vh1")
    ml_issue()
    if codepf:
        a(f"s_getpc_b64 {sp(58)}")
        a.label("L_pc2")
        a(f"s_lshr_b32 s{sT3}, s2, 3"); a(f"s_lshl_b32 s{sT3}, s{sT3}, 9")
        a(f"v_and_b32 v{T[1]}, 7, v{vL}"); a(f"v_lshlrev_b32 v{T[1]}, 6, v{T[1]}"); a(f"v_add_u32 v{T[1]}, s{sT3}, v{T[1]}")
        a(f"v_add_u32 v{T[1]}, L_tailcode-L_pc2, v{T[1]}")
        a(f"v_min_u32 v{T[1]}, L_codeend-L_pc2-4, v{T[1]}")
        a(f"global_load_dword v{T[2]}, v{T[1]}, {sp(58)}")
    a.label("L_vh1")
    a(f"s_cmp_eq_u32 s{sIt}, {NIT-1}"); a("s_cbranch_scc0 L_vh2")
    a.label("L_tailcode")
    ml_check()
    a(f"s_cmp_eq_u64 {sp(sBad)}, 0"); a("s_cbranch_scc1 L_mlok")
    poll(ml_issue, ml_check)
    a.label("L_mlok")
    mm, ll = MLR, MLR + 1
    if NWH > 64: a(f"v_max_f32 v{T[0]}, v{mm}, v{MLR+4}")
    else: a(f"v_mov_b32 v{T[0]}, v{mm}")
    a(f"v_and_b32 v{T[0]}, 0xffffff00, v{T[0]}")
    allreduce("v_max_f32", T[0], T[1])
    a(f"v_and_b32 v{mm}, 0xffffff00, v{mm}")
    a(f"v_sub_f32 v{T[2]}, v{mm}, v{T[0]}"); a(f"v_mul_f32 v{T[2]}, {f32hex(LOG2E)}, v{T[2]}"); a(f"v_exp_f32 v{T[2]}, v{T[2]}")
    a(f"v_mul_f32 v{T[2]}, v{T[2]}, v{ll}")
    if NWH > 64:
        a(f"v_and_b32 v{MLR+4}, 0xffffff00, v{MLR+4}")
        a(f"v_sub_f32 v{T[3]}, v{MLR+4}, v{T[0]}"); a(f"v_mul_f32 v{T[3]}, {f32hex(LOG2E)}, v{T[3]}"); a(f"v_exp_f32 v{T[3]}, v{T[3]}")
        a(f"v_fmac_f32 v{T[2]}, v{T[3]}, v{MLR+5}")
    elif NWH < 64:
        a(f"v_cmp_gt_u32 vcc, {NWH}, v{vL}"); a(f"v_cndmask_b32 v{T[2]}, 0, v{T[2]}, vcc")
    allreduce("v_add_f32", T[2], T[1])
    a(f"v_sub_f32 v{T[3]}, v{vMX}, v{T[0]}"); a(f"v_mul_f32 v{T[3]}, {f32hex(LOG2E)}, v{T[3]}"); a(f"v_exp_f32 v{T[3]}, v{T[3]}")
    a(f"v_rcp_f32 v{T[2]}, v{T[2]}")
    a(f"v_mul_f32 v{vAL}, v{T[3]}, v{T[2]}")
    red_addr()
    a(f"v_mul_u32_u24 v{T[1]}, 43691, v{vL}"); a(f"v_lshrrev_b32 v{T[1]}, 19, v{T[1]}")
    a(f"v_mul_u32_u24 v{T[2]}, 12, v{T[1]}"); a(f"v_sub_u32 v{T[2]}, v{vL}, v{T[2]}")
    a(f"v_mul_u32_u24 v{T[1]}, {WPH*192}, v{T[1]}"); a(f"v_lshlrev_b32 v{T[2]}, 4, v{T[2]}"); a(f"v_add_u32 v{vOPA}, v{T[1]}, v{T[2]}")
    a(f"s_mul_i32 s{sT0}, s{sHead}, {4*WPH*192}"); a(f"s_mul_i32 s{sT1}, s{sJ}, 192"); a(f"s_add_u32 s{sT0}, s{sT0}, s{sT1}"); a(f"s_add_u32 s{sU2}, s{sT0}, {OP}")
    P = vQ
    if nph > 1:
        a(f"s_cmp_lg_u32 s{sPh}, {nph-1}"); a("s_cbranch_scc1 L_vh2")
    a(f"v_lshrrev_b32 v{T[0]}, 5, v{vL}"); a(f"v_lshlrev_b32 v{T[0]}, 8, v{T[0]}")
    a(f"v_and_b32 v{T[1]}, 7, v{vL}"); a(f"v_lshlrev_b32 v{T[1]}, 5, v{T[1]}"); a(f"v_add_u32 v{T[0]}, v{T[0]}, v{T[1]}")
    a(f"v_and_b32 v{T[1]}, 16, v{vL}"); a(f"v_add_u32 v{T[0]}, v{T[0]}, v{T[1]}")
    a(f"s_mul_i32 s{sT0}, s{sW}, 2560"); a(f"v_add_u32 v{P}, s{sT0}, v{T[0]}")
    a(f"s_mov_b32 s{sT0}, {128*128}"); a(f"s_cmp_eq_u32 s{sRole}, 1"); a(f"s_cselect_b32 s{sT0}, {96*128}, s{sT0}")
    a(f"v_lshrrev_b32 v{T[1]}, 3, v0"); a(f"v_mul_u32_u24 v{T[1]}, s{sT0}, v{T[1]}")
    a(f"v_and_b32 v{T[2]}, 7, v0"); a(f"v_lshlrev_b32 v{T[2]}, 4, v{T[2]}"); a(f"v_add_u32 v{P+1}, v{T[1]}, v{T[2]}")
    for i in range(20): a(f"v_mov_b32 v{vX+i}, 0")
    a.label("L_vh2")
    next_p()
    controlled_loop("v", vpart, switch_to_nextK)
    progress()
    a(f"s_add_u32 s{sIt}, s{sIt}, 1")
    a(f"s_cmp_lt_u32 s{sIt}, {NIT}")
    a("s_cbranch_scc1 L_vloop")

    stamp(6)
    for i in range(12): a(f"v_mul_f32 v{vACC+i}, v{vACC+i}, v{vAL}")
    if nph > 1:
        a(f"s_cmp_eq_u32 s{sPh}, {nph-1}"); a("s_cbranch_scc1 L_lastphase")
        if tb:
            for l in range(nb, nx_): ring_load(l)
            a(f"s_mov_b32 s{sPrv}, 1")
        def lds_wait_ge(off, sreg):
            n = newlab()
            a(f"s_mov_b32 s{sSpin}, {spin}")
            a.label(f"L_lw{n}")
            a(f"ds_read_b32 v{T[1]}, v{vZ} offset:{L_CTL + off}"); a("s_waitcnt lgkmcnt(0)"); a(f"v_readfirstlane_b32 s{sT0}, v{T[1]}")
            a(f"s_cmp_ge_u32 s{sT0}, s{sreg}"); a(f"s_cbranch_scc1 L_lk{n}")
            a(f"s_sub_u32 s{sSpin}, s{sSpin}, 1"); a(f"s_cmp_eq_u32 s{sSpin}, 0"); a("s_cbranch_scc1 L_abort")
            a(f"s_branch L_lw{n}")
            a.label(f"L_lk{n}")
        lds_wait_ge(12, sPh)
        set_exec(USEFUL)
        for t in range(3): a(f"ds_write_b128 v{vRA}, {vr(vACC+4*t,4)} offset:{L_REDH + 256*t}")
        set_exec(-1)
        a(f"s_add_u32 s{sPh}, s{sPh}, 1"); a(f"s_add_u32 s{sHead}, s{sHead}, {H}")
        a(f"s_lshl_b32 s{sT1}, s{sW}, 2"); a(f"v_mov_b32 v{T[2]}, s{sT1}"); a(f"v_mov_b32 v{T[3]}, s{sPh}")
        a("s_waitcnt lgkmcnt(0)")
        a(f"ds_write_b32 v{T[2]}, v{T[3]} offset:{L_CTL + 16}")
        a(f"s_add_u32 s{sT2}, s{sPh}, 1")
        lds_wait_ge(32, sT2)
        load_q(); kinit()
        a(f"s_mov_b32 s{sIt}, 0")
        a("s_branch L_kloop")
        a.label("L_lastphase")
    red_write()
    a("s_waitcnt lgkmcnt(0)"); a("s_barrier")
    a(f"s_cmp_lg_u32 s{sW}, 0"); a("s_cbranch_scc1 L_pubdone")
    SB = RING + 36
    a(f"v_lshlrev_b32 v{T[0]}, 4, v{vL}")
    set_exec("0x0000ffffffffffff")
    for s in range(8): a(f"ds_read_b128 {vr(SB+4*s,4)}, v{T[0]} offset:{L_RED + 768*s}")
    a("s_waitcnt lgkmcnt(4)")
    sum_quads(SB, [SB + 4, SB + 8, SB + 12])
    a("s_waitcnt lgkmcnt(0)")
    sum_quads(SB + 16, [SB + 20, SB + 24, SB + 28])
    sum_quads(SB, [SB + 16])
    tag4(SB)
    if oploc: pub_store(vr(SB,4), vOPA, sU2)
    else: a(f"buffer_store_dwordx4 {vr(SB,4)}, v{vOPA}, {srd(WSR)}, s{sU2} offen sc1")
    if stage1:
        a(f"s_and_b32 s{sT0}, s{sNon}, 0xffffff00"); a(f"s_or_b32 s{sT0}, s{sT0}, 255"); a(f"v_mov_b32 v{T[1]}, s{sT0}")
        a(f"s_and_b32 s{sT0}, s2, 7"); a(f"s_lshl_b32 s{sT0}, s{sT0}, 7"); a(f"s_lshr_b32 s{sT1}, s2, 3"); a(f"s_lshl_b32 s{sT1}, s{sT1}, 2")
        a(f"s_add_u32 s{sT0}, s{sT0}, s{sT1}"); a(f"s_add_u32 s{sT0}, s{sT0}, {PROG}")
        set_exec(1)
        a(f"buffer_store_dword v{T[1]}, v{vZ}, {srd(WSR)}, s{sT0} offen")
    set_exec(-1)
    a.label("L_pubdone")
    def class_wait():
        if not stage1: return
        n = newlab()
        a(f"s_and_b32 s{sT0}, s{sNon}, 0xffffff00"); a(f"s_or_b32 s{sT0}, s{sT0}, 255"); a(f"v_mov_b32 v{T[1]}, s{sT0}")
        a(f"s_and_b32 s{sT0}, s2, 7"); a(f"s_lshl_b32 s{sT0}, s{sT0}, 7"); a(f"s_add_u32 s{sT0}, s{sT0}, {PROG}")
        a(f"v_and_b32 v{T[0]}, 31, v{vL}"); a(f"v_lshlrev_b32 v{T[0]}, 2, v{T[0]}")
        a(f"s_mov_b32 s{sSpin}, {stage1}")
        a.label(f"L_cw{n}")
        a(f"buffer_load_dword v{T[2]}, v{T[0]}, {srd(WSR)}, s{sT0} offen sc1")
        a(f"s_sub_u32 s{sSpin}, s{sSpin}, 1"); a(f"s_cmp_eq_u32 s{sSpin}, 0"); a(f"s_cbranch_scc1 L_cwd{n}")
        a("s_waitcnt vmcnt(0)")
        a(f"v_cmp_ne_u32 vcc, v{T[2]}, v{T[1]}"); a("s_cbranch_vccnz L_cw%d" % n)
        a.label(f"L_cwd{n}")
        a("s_waitcnt vmcnt(0)")
    a.label("L_tail")
    stamp(7)
    RB = RING + 60
    a(f"s_cmp_eq_u32 s{sRole}, 1"); a("s_cbranch_scc1 L_roleF")
    a(f"s_cmp_eq_u32 s{sRole}, 2"); a("s_cbranch_scc1 L_roleR")

    def rowproj(ngroups, wbase, srcs, dstbase):
        for gi in range(ngroups):
            a_operand(srcs[gi])
            for cb in range(5):
                a(f"v_mfma_f32_16x16x32_bf16 {vr(vX+4*cb,4)}, {vr(vA,4)}, {vr(wbase + 4*(5*gi+cb),4)}, {vr(vX+4*cb,4)}")
        set_exec(USEFUL)
        for cb in range(5): a(f"ds_write_b128 v{P}, {vr(vX+4*cb,4)} offset:{L_RED2 + 512*cb}")
        set_exec(-1)
        a(f"v_lshlrev_b32 v{T[0]}, 4, v0")
        a(f"s_lshl_b32 s{sT0}, s{sRI}, 7"); a(f"s_add_u32 s{sT0}, s{sT0}, {dstbase}")
        a("s_waitcnt lgkmcnt(0)"); a("s_barrier")
        n = newlab()
        a(f"v_cmp_gt_u32 vcc, 160, v0"); a(f"s_and_saveexec_b64 {sp(sE)}, vcc"); a(f"s_cbranch_execz L_rpd{n}")
        for s in range(4): a(f"ds_read_b128 {vr(vX+4*s,4)}, v{T[0]} offset:{L_RED2 + 2560*s}")
        a("s_waitcnt lgkmcnt(0)")
        sum_quads(vX, [vX + 4]); sum_quads(vX + 8, [vX + 12]); sum_quads(vX, [vX + 8])
        tag4(vX)
        a(f"buffer_store_dwordx4 {vr(vX,4)}, v{P+1}, {srd(WSR)}, s{sT0} offen sc1")
        a.label(f"L_rpd{n}")
        a(f"s_mov_b64 exec, {sp(sE)}")

    NL = 2 if WPH == 32 else 1
    a(f"s_mul_i32 s{sT0}, s{sOH}, {WPH*192}"); a(f"s_add_u32 s{sU}, s{sT0}, {OP}")
    a(f"s_mul_i32 s{sT1}, s{sW}, 48"); a(f"s_add_u32 s{sU}, s{sU}, s{sT1}")
    a(f"v_lshrrev_b32 v{T[3]}, 2, v{vL}"); a(f"v_and_b32 v{T[3]}, {min(WPH,16)-1}, v{T[3]}"); a(f"v_mul_u32_u24 v{T[3]}, 192, v{T[3]}")
    a(f"v_and_b32 v{T[4]}, 3, v{vL}"); a(f"v_min_u32 v{T[4]}, 2, v{T[4]}"); a(f"v_lshlrev_b32 v{T[4]}, 4, v{T[4]}"); a(f"v_add_u32 v{T[3]}, v{T[3]}, v{T[4]}")
    OB = [RB + 12, RB + 20]
    def o_iss(z):
        for k in range(NL):
            a(f"buffer_load_dwordx4 {vr(OB[z]+4*k,4)}, v{T[3]}, {srd(WSR)}, s{sU} offen offset:{3072*k} sc1")
    def o_chk(z):
        for k in range(NL): check4(OB[z] + 4*k, T[0], T[1], k == 0)
    def o_st1(z):
        if NL == 2:
            a(f"v_pk_add_f32 {vr(RB,2)}, {vr(OB[z],2)}, {vr(OB[z]+4,2)}"); a(f"v_pk_add_f32 {vr(RB+2,2)}, {vr(OB[z]+2,2)}, {vr(OB[z]+6,2)}")
            for i in range(4): dpp("v_add_f32", RB + i, "row_ror:4")
        else:
            for i in range(4): a(f"v_add_f32_dpp v{RB+i}, v{OB[z]+i}, v{OB[z]+i} row_ror:4 row_mask:0xf bank_mask:0xf")
    poll2(o_iss, o_chk, NL, o_st1)
    stamp(8)
    for i in range(4): dpp("v_add_f32", RB + i, "row_ror:8")
    o4 = [("v_add_f32", RB + i) for i in range(4)]
    swap_reduce(o4, T[0:4], "v_permlane16_swap_b32")
    if WPH >= 16: swap_reduce(o4, T[0:4], "v_permlane32_swap_b32")
    for g in range(1, 4): a(f"v_cndmask_b32 v{RB}, v{RB}, v{RB+g}, {sp(sRow+2*(g-1))}")
    a(f"v_cvt_pk_bf16_f32 v{RB}, v{RB}, v{RB}")
    for gi in range(3): a(f"v_mov_b32_dpp v{RB+8+gi}, v{RB} quad_perm:[{gi},{gi},{gi},{gi}] row_mask:0xf bank_mask:0xf")
    rowproj(3, W, [RB+8, RB+9, RB+10], ZZ)
    dump_stamps()
    a("s_branch L_end")

    a.label("L_roleF")
    HQ = RB
    PK = RB + 16
    class_wait()
    a(f"v_min_u32 v{T[5]}, 39, v{vL}"); a(f"s_mul_i32 s{sT0}, s{sW}, 40"); a(f"v_add_u32 v{T[5]}, s{sT0}, v{T[5]}"); a(f"v_lshlrev_b32 v{T[5]}, 4, v{T[5]}")
    a(f"s_and_b32 s{sU}, s2, 7"); a(f"s_lshl_b32 s{sU}, s{sU}, 12"); a(f"s_add_u32 s{sU}, s{sU}, {HH}")
    HB_ = [HQ, HQ + 4]
    def f_iss(z):
        a(f"buffer_load_dwordx4 {vr(HB_[z],4)}, v{T[5]}, {srd(WSR)}, s{sU} offen sc1")
    def f_chk(z):
        check4(HB_[z], T[0], T[1], True)
    def f_st1(z):
        a(f"v_perm_b32 v{PK}, v{HB_[z]+1}, v{HB_[z]}, s{sPkSel}"); a(f"v_perm_b32 v{PK+1}, v{HB_[z]+3}, v{HB_[z]+2}, s{sPkSel}")
        for i in range(4): a(f"v_and_b32 v{HQ+12+i}, 0xffff0000, v{HB_[z]+i}")
    FA = RING + 24
    FW = RB + 22
    DA = vACC
    def f_pre():
        a(f"s_lshl_b32 s{sT0}, s{sW}, 12"); a(f"s_add_u32 s{sT0}, s{sT0}, {L_SC}")
        a(f"v_lshlrev_b32 v{FW}, 6, v{vL}"); a(f"v_add_u32 v{FW}, s{sT0}, v{FW}")
        a(f"v_mov_b32 v{T[0]}, 0"); a(f"v_mov_b32 v{T[1]}, s{sT0}")
        a(f"ds_write_b32 v{T[1]}, v{T[0]} offset:2560")
        a(f"v_lshrrev_b32 v{FW+1}, 2, v{vL}"); a(f"v_lshlrev_b32 v{FW+1}, 4, v{FW+1}")
        a(f"v_and_b32 v{T[0]}, 3, v{vL}")
        a(f"v_mov_b32 v{T[1]}, 0x08000c04"); a(f"v_lshlrev_b32 v{T[0]}, 3, v{T[0]}"); a(f"v_lshrrev_b32 v{T[1]}, v{T[0]}, v{T[1]}"); a(f"v_and_b32 v{T[1]}, 0xff, v{T[1]}")
        a(f"v_add3_u32 v{FW+1}, v{FW+1}, v{T[1]}, s{sT0}")
        a(f"v_add_u32 v{FW+2}, 1024, v{FW+1}"); a(f"v_add_u32 v{FW+3}, 2048, v{FW+1}")
        a(f"v_lshrrev_b32 v{T[0]}, 4, v{vL}"); a(f"s_lshl_b32 s{sT0}, s{sW}, 2"); a(f"v_add_u32 v{T[0]}, s{sT0}, v{T[0]}"); a(f"v_lshlrev_b32 v{T[0]}, 7, v{T[0]}")
        a(f"v_and_b32 v{T[1]}, 3, v{vL}"); a(f"v_lshlrev_b32 v{T[1]}, 5, v{T[1]}"); a(f"v_add_u32 v{FW+4}, v{T[0]}, v{T[1]}")
        a(f"v_and_b32 v{T[0]}, 31, v{vL}"); a(f"v_lshlrev_b32 v{T[0]}, 2, v{T[0]}")
        a(f"v_lshrrev_b32 v{T[1]}, 5, v{vL}"); a(f"v_lshlrev_b32 v{T[1]}, 10, v{T[1]}"); a(f"v_add_u32 v{FW+5}, v{T[0]}, v{T[1]}")
        a(f"v_lshrrev_b32 v{T[0]}, 4, v{vL}"); a(f"s_lshl_b32 s{sT0}, s{sW}, 2"); a(f"v_add_u32 v{T[0]}, s{sT0}, v{T[0]}"); a(f"v_lshlrev_b32 v{FW+6}, 2, v{T[0]}")
        for i in range(8): a(f"v_mov_b32 v{DA+i}, 0")
        a(f"v_mov_b32 v{FW+7}, 0x3f803f80")
        a(f"v_cmp_gt_u32 {sp(sE)}, 40, v{vL}")
        a(f"s_lshl_b32 s{sT0}, s{sW}, 3"); a(f"v_mov_b32 v{PK+2}, s{sT0}")
    poll2(f_iss, f_chk, 1, f_st1, pre=f_pre)
    stamp(10)
    a(f"v_cndmask_b32 v{PK}, 0, v{PK}, {sp(sE)}"); a(f"v_cndmask_b32 v{PK+1}, 0, v{PK+1}, {sp(sE)}")
    t0, t1, t2, t3, t4 = T[0:5]
    a(f"v_dot2_f32_bf16 v{t0}, v{PK}, v{FW+7}, 0"); a(f"v_dot2_f32_bf16 v{t1}, v{PK}, v{PK}, 0")
    a(f"v_dot2_f32_bf16 v{t0}, v{PK+1}, v{FW+7}, v{t0}"); a(f"v_dot2_f32_bf16 v{t1}, v{PK+1}, v{PK+1}, v{t1}")
    assert t1 == t0 + 1 and t0 % 2 == 1
    allreduce_n([("v_add_f32", t0), ("v_add_f32", t1)], [t2, t3])
    SX = vQ + 4
    a(f"v_mov_b32 v{SX}, v{t0}"); a(f"v_mov_b32 v{SX+1}, v{t1}")
    set_exec(1)
    a(f"ds_write_b64 v{PK+2}, {vr(SX,2)} offset:{L_STAT}")
    set_exec(-1)
    a("s_waitcnt lgkmcnt(0)"); a("s_barrier")
    a(f"ds_read_b128 {vr(SX,4)}, v{vZ} offset:{L_STAT}"); a(f"ds_read_b128 {vr(SX+4,4)}, v{vZ} offset:{L_STAT+16}")
    a("s_waitcnt lgkmcnt(0)")
    pkadd(SX, SX, SX + 2); pkadd(SX + 4, SX + 4, SX + 6); pkadd(SX, SX, SX + 4)
    a(f"v_mov_b32 v{t0}, v{SX}"); a(f"v_mov_b32 v{t1}, v{SX+1}")
    ln_consts(t0, t1, t2)
    a(f"v_rcp_f32 v{t4}, v{t1}")
    O4 = HQ + 12
    for i in range(4): a(f"v_sub_f32 v{O4+i}, v{O4+i}, v{t0}")
    a(f"v_cvt_pk_bf16_f32 v{t2}, v{O4}, v{O4+1}"); a(f"v_cvt_pk_bf16_f32 v{t3}, v{O4+2}, v{O4+3}")
    a(f"v_lshlrev_b32 v{O4}, 16, v{t2}"); a(f"v_and_b32 v{O4+1}, 0xffff0000, v{t2}"); a(f"v_lshlrev_b32 v{O4+2}, 16, v{t3}"); a(f"v_and_b32 v{O4+3}, 0xffff0000, v{t3}")
    for i in range(4): a(f"v_mul_f32 v{O4+i}, v{O4+i}, v{t4}")
    a(f"v_cvt_pk_bf16_f32 v{t2}, v{O4}, v{O4+1}"); a(f"v_cvt_pk_bf16_f32 v{t3}, v{O4+2}, v{O4+3}")
    PR = FA
    for r_, (src, hi) in enumerate(((t2, 0), (t2, 1), (t3, 0), (t3, 1))):
        b = PR + 4 * r_
        a(f"v_mov_b32 v{b}, 0"); a(f"v_mov_b32 v{b+2}, 0")
        if hi:
            a(f"v_lshrrev_b32 v{b+1}, 16, v{src}"); a(f"v_and_b32 v{b+3}, 0xffff0000, v{src}")
        else:
            a(f"v_and_b32 v{b+1}, 0xffff, v{src}"); a(f"v_lshlrev_b32 v{b+3}, 16, v{src}")
    set_exec("0x000000ffffffffff")
    for r_ in range(4): a(f"ds_write_b128 v{FW}, {vr(PR+4*r_,4)} offset:{16*r_}")
    set_exec(-1)
    a("s_waitcnt lgkmcnt(0)")
    for k in range(10):
        base = FW + 1 + k // 4
        a(f"ds_read2_b32 {vr(FA+2*k,2)}, v{base} offset0:{(k%4)*64} offset1:{(k%4)*64+1}")
    DB = DA + 4
    for k in range(10):
        a(f"s_waitcnt lgkmcnt({9-k})")
        a(f"v_mfma_f32_4x4x4_16b_bf16 {vr(DA,4)}, {vr(FA+2*k,2)}, {vr(W+4*k,2)}, {vr(DA,4)}")
        a(f"v_mfma_f32_4x4x4_16b_bf16 {vr(DB,4)}, {vr(FA+2*k,2)}, {vr(W+4*k+2,2)}, {vr(DB,4)}")
    for m in ("row_ror:4", "row_ror:8"):
        for i in range(8): dpp("v_add_f32", DA + i, m)
    set_exec("0x000f000f000f000f")
    a(f"ds_write_b128 v{FW+4}, {vr(DA,4)} offset:{L_RED3}")
    a(f"ds_write_b128 v{FW+4}, {vr(DB,4)} offset:{L_RED3+16}")
    set_exec(-1)
    a("s_waitcnt lgkmcnt(0)"); a("s_barrier")
    HR = FA
    for s in range(8): a(f"ds_read_b32 v{HR+s}, v{FW+5} offset:{L_RED3 + 128*s}")
    a("s_waitcnt lgkmcnt(0)")
    for s in range(0, 8, 4): pkadd(HR + s, HR + s, HR + s + 2)
    pkadd(HR, HR, HR + 4)
    a(f"v_add_f32 v{HR}, v{HR}, v{HR+1}")
    a(f"v_mov_b32 v{T[0]}, v{HR}"); a(f"v_permlane32_swap_b32 v{T[0]}, v{HR}"); a(f"v_add_f32 v{HR}, v{HR}, v{T[0]}")
    rne(HR, HR)
    a(f"v_mov_b32 v{T[0]}, v{HR}"); a(f"v_permlane16_swap_b32 v{T[0]}, v{HR}")
    a(f"v_mul_f32 v{T[1]}, {f32hex(-LOG2E)}, v{T[0]}"); a(f"v_min_f32 v{T[1]}, 0x42fc0000, v{T[1]}"); a(f"v_exp_f32 v{T[1]}, v{T[1]}")
    a(f"v_add_f32 v{T[1]}, 1.0, v{T[1]}"); a(f"v_rcp_f32 v{T[2]}, v{T[1]}")
    a(f"v_mul_f32 v{T[3]}, v{T[0]}, v{T[2]}")
    rne(T[3], T[3])
    a(f"v_mul_f32 v{T[3]}, v{T[3]}, v{HR}")
    a(f"v_cvt_pk_bf16_f32 v{T[3]}, v{T[3]}, v{T[3]}")
    a(f"ds_bpermute_b32 v{HR+1}, v{FW+6}, v{T[3]}")
    a("s_waitcnt lgkmcnt(0)")
    stamp(11)
    rowproj(1, W + 40, [HR+1], YY)
    dump_stamps()
    a("s_branch L_end")

    a.label("L_roleR")
    if wb:
        a(f"s_cmp_ge_u32 s{sRI}, 24"); a("s_cbranch_scc0 L_nowb")
        a(f"s_cmp_lg_u32 s{sW}, 0"); a("s_cbranch_scc1 L_fin")
        class_wait()
        a("buffer_wbl2 sc1"); a("s_waitcnt vmcnt(0)")
        a("s_branch L_fin")
        a.label("L_nowb")
    a(f"s_cmp_ge_u32 s{sRI}, 20"); a("s_cbranch_scc1 L_fin")
    RS = RING + 24
    RS = RING + 40
    XS = RB
    WRr = RB + 8
    HV = RB + 16
    HPK = RB + 28
    HS = vQ + 4
    SIG = vQ + 8
    def reduce_parts(base, nsrc, nld, lds, pre=None):
        a(f"s_mul_i32 s{sU}, s{sRI}, {nsrc*128}"); a(f"s_add_u32 s{sU}, s{sU}, {base}")
        a(f"v_lshlrev_b32 v{T[3]}, 4, v0")
        PB = [RS + 4, RING]
        def iss(z):
            for k in range(nld):
                a(f"s_add_u32 s{sT1}, s{sU}, {4096*k}")
                a(f"buffer_load_dwordx4 {vr(PB[z]+4*k,4)}, v{T[3]}, {srd(WSR)}, s{sT1} offen sc1")
        def chk(z):
            for k in range(nld): check4(PB[z] + 4*k, T[0], T[1], k == 0)
        def st1(z):
            b = PB[z]
            a(f"v_pk_add_f32 {vr(RS,2)}, {vr(b,2)}, {vr(b+4,2)}"); a(f"v_pk_add_f32 {vr(RS+2,2)}, {vr(b+2,2)}, {vr(b+6,2)}")
            for k in range(2, nld): sum_quads(RS, [b + 4*k])
        def pre2():
            if pre: pre()
            a(f"v_and_b32 v{T[4]}, 7, v{vL}"); a(f"v_lshlrev_b32 v{T[4]}, 4, v{T[4]}")
            a(f"s_lshl_b32 s{sT0}, s{sW}, 7"); a(f"v_add_u32 v{T[5]}, s{sT0}, v{T[4]}")
        poll2(iss, chk, nld, st1, pre=pre2)
        RT = vACC
        for i in range(4): dpp("v_add_f32", RS + i, "row_ror:8")
        o4 = [("v_add_f32", RS + i) for i in range(4)]
        swap_reduce(o4, [RT + i for i in range(4)], "v_permlane16_swap_b32")
        swap_reduce(o4, [RT + i for i in range(4)], "v_permlane32_swap_b32")
        set_exec("0x00000000000000ff")
        a(f"ds_write_b128 v{T[5]}, {vr(RS,4)} offset:{lds}")
        set_exec(-1)
        a("s_waitcnt lgkmcnt(0)"); a("s_barrier")
        a(f"ds_read_b128 {vr(RS,4)}, v{T[4]} offset:{lds}")
        for s in range(1, 4): a(f"ds_read_b128 {vr(RT+4*(s-1),4)}, v{T[4]} offset:{lds + 128*s}")
        a("s_waitcnt lgkmcnt(0)")
        sum_quads(RS, [RT]); sum_quads(RT + 4, [RT + 8]); sum_quads(RS, [RT + 4])
    def r_pre1():
        a(f"v_and_b32 v{T[0]}, 7, v{vL}"); a(f"v_lshlrev_b32 v{T[0]}, 3, v{T[0]}"); a(f"s_lshl_b32 s{sT0}, s{sRI}, 6"); a(f"v_add_u32 v{T[0]}, s{sT0}, v{T[0]}")
        a(f"global_load_dwordx2 {vr(XS+4,2)}, v{T[0]}, {sp(pX)}")
        a(f"v_lshlrev_b32 v{T[1]}, 3, v{vL}"); a(f"v_add_u32 v{T[2]}, 1024, v{T[1]}"); a(f"v_min_u32 v{T[2]}, 1272, v{T[2]}")
        a(f"global_load_dwordx2 {vr(WRr,2)}, v{T[1]}, {sp(pWR)}")
        a(f"global_load_dwordx2 {vr(WRr+2,2)}, v{T[1]}, {sp(pWR)} offset:512")
        a(f"global_load_dwordx2 {vr(WRr+4,2)}, v{T[2]}, {sp(pWR)}")
        a(f"v_lshrrev_b32 v{SIG+2}, 3, v{vL}"); a(f"v_lshlrev_b32 v{SIG+2}, 12, v{SIG+2}")
        a(f"v_and_b32 v{SIG+3}, 7, v{vL}"); a(f"v_lshlrev_b32 v{SIG+3}, 4, v{SIG+3}"); a(f"v_add_u32 v{SIG+2}, v{SIG+2}, v{SIG+3}")
        a(f"s_lshl_b32 s{sU2}, s{sRI}, 7"); a(f"s_add_u32 s{sU2}, s{sU2}, {HH}")
        a(f"global_load_dword v{SIG}, v{T[0]}, {sp(pOUT)}")
    class_wait()
    reduce_parts(ZZ, 128, 4, L_RED3, pre=r_pre1)
    stamp(9)
    for h in range(2):
        a(f"v_lshlrev_b32 v{XS+2*h}, 16, v{XS+4+h}"); a(f"v_and_b32 v{XS+2*h+1}, 0xffff0000, v{XS+4+h}")
    a(f"v_cvt_pk_bf16_f32 v{RS}, v{RS}, v{RS+1}"); a(f"v_cvt_pk_bf16_f32 v{RS+2}, v{RS+2}, v{RS+3}")
    a(f"v_and_b32 v{RS+1}, 0xffff0000, v{RS}"); a(f"v_lshlrev_b32 v{RS}, 16, v{RS}"); a(f"v_and_b32 v{RS+3}, 0xffff0000, v{RS+2}"); a(f"v_lshlrev_b32 v{RS+2}, 16, v{RS+2}")
    pkadd(XS, XS, RS); pkadd(XS + 2, XS + 2, RS + 2)
    a(f"v_cvt_pk_bf16_f32 v{RS}, v{XS}, v{XS+1}"); a(f"v_cvt_pk_bf16_f32 v{RS+2}, v{XS+2}, v{XS+3}")
    a(f"v_and_b32 v{XS+1}, 0xffff0000, v{RS}"); a(f"v_lshlrev_b32 v{XS}, 16, v{RS}"); a(f"v_and_b32 v{XS+3}, 0xffff0000, v{RS+2}"); a(f"v_lshlrev_b32 v{XS+2}, 16, v{RS+2}")
    for i in range(4): a(f"v_perm_b32 v{RS+i}, v{XS+i}, v{vN}, s{sSel+i}")
    a(f"s_cmp_lg_u32 s{sW}, 0"); a("s_cbranch_scc1 L_rnopub")
    a(f"buffer_store_dwordx4 {vr(RS,4)}, v{SIG+2}, {srd(WSR)}, s{sU2} offen sc1")
    a.label("L_rnopub")
    a(f"v_lshlrev_b32 v{T[3]}, 4, v{vL}")
    a(f"v_add_u32 v{T[4]}, 2048, v{T[3]}"); a(f"v_min_u32 v{T[4]}, 2544, v{T[4]}")
    a(f"s_and_b32 s{sU}, s2, 7"); a(f"s_lshl_b32 s{sU}, s{sU}, 12"); a(f"s_add_u32 s{sU}, s{sU}, {HH}")
    def r_iss():
        a(f"buffer_load_dwordx4 {vr(HV,4)}, v{T[3]}, {srd(WSR)}, s{sU} offen sc1")
        a(f"buffer_load_dwordx4 {vr(HV+4,4)}, v{T[3]}, {srd(WSR)}, s{sU} offen offset:1024 sc1")
        a(f"buffer_load_dwordx4 {vr(HV+8,4)}, v{T[4]}, {srd(WSR)}, s{sU} offen sc1")
    def r_chk():
        for k in range(3): check4(HV + 4*k, T[0], T[1], k == 0)
    poll(r_iss, r_chk)
    stamp(10)
    for i in range(12): a(f"v_and_b32 v{HV+i}, 0xffff0000, v{HV+i}")
    a(f"v_cmp_gt_u32 vcc, 32, v{vL}")
    for i in range(8, 12): a(f"v_cndmask_b32 v{HV+i}, 0, v{HV+i}, vcc")
    for k in range(6): a(f"v_perm_b32 v{HPK+k}, v{HV+2*k+1}, v{HV+2*k}, s{sPkSel}")
    layernorm_full(HV, HPK, T[0:5], False)
    a(f"v_cmp_gt_u32 vcc, 32, v{vL}")
    a(f"v_cndmask_b32 v{WRr+4}, 0, v{WRr+4}, vcc"); a(f"v_cndmask_b32 v{WRr+5}, 0, v{WRr+5}, vcc")
    a(f"v_dot2_f32_bf16 v{T[0]}, v{HPK}, v{WRr}, 0")
    for k in range(1, 6): a(f"v_dot2_f32_bf16 v{T[0]}, v{HPK+k}, v{WRr+k}, v{T[0]}")
    allreduce("v_add_f32", T[0], T[1])
    rne(T[0], T[0])
    a(f"v_mul_f32 v{T[1]}, {f32hex(-LOG2E)}, v{T[0]}"); a(f"v_min_f32 v{T[1]}, 0x42fc0000, v{T[1]}"); a(f"v_exp_f32 v{T[1]}, v{T[1]}")
    a(f"v_add_f32 v{T[1]}, 1.0, v{T[1]}"); a(f"v_rcp_f32 v{T[2]}, v{T[1]}")
    rne(SIG, T[2])
    a(f"s_lshl_b32 s{sT0}, s{sRI}, 3"); a(f"s_lshr_b32 s{sT1}, s{sT0}, 6"); a(f"s_and_b32 s{sT0}, s{sT0}, 63")
    a(f"v_and_b32 v{T[0]}, 7, v{vL}"); a(f"v_add_u32 v{T[0]}, s{sT0}, v{T[0]}"); a(f"v_lshlrev_b32 v{T[0]}, 2, v{T[0]}")
    for i in range(4): a(f"v_mov_b32 v{HS+i}, v{HV+i}")
    a(f"s_cmp_eq_u32 s{sT1}, 0"); a("s_cbranch_scc1 L_hs")
    for i in range(4): a(f"v_mov_b32 v{HS+i}, v{HV+4+i}")
    a(f"s_cmp_eq_u32 s{sT1}, 1"); a("s_cbranch_scc1 L_hs")
    for i in range(4): a(f"v_mov_b32 v{HS+i}, v{HV+8+i}")
    a.label("L_hs")
    for i in range(4): a(f"ds_bpermute_b32 v{HS+i}, v{T[0]}, v{HS+i}")
    a("s_waitcnt lgkmcnt(0)")
    stamp(11)
    def r_pre2():
        a(f"v_lshlrev_b32 v{SIG+1}, 3, v{vL}"); a(f"s_lshl_b32 s{sT0}, s{sRI}, 6"); a(f"v_add_u32 v{SIG+1}, s{sT0}, v{SIG+1}")
    reduce_parts(YY, 96, 3, L_RED2, pre=r_pre2)
    stamp(12)
    def rne4(b):
        a(f"v_cvt_pk_bf16_f32 v{b}, v{b}, v{b+1}"); a(f"v_cvt_pk_bf16_f32 v{b+2}, v{b+2}, v{b+3}")
        a(f"v_and_b32 v{b+1}, 0xffff0000, v{b}"); a(f"v_lshlrev_b32 v{b}, 16, v{b}"); a(f"v_and_b32 v{b+3}, 0xffff0000, v{b+2}"); a(f"v_lshlrev_b32 v{b+2}, 16, v{b+2}")
    rne4(RS)
    for i in range(4): a(f"v_mul_f32 v{RS+i}, v{RS+i}, v{SIG}")
    rne4(RS)
    pkadd(RS, RS, HS); pkadd(RS + 2, RS + 2, HS + 2)
    rne4(RS)
    pkadd(RS, RS, XS); pkadd(RS + 2, RS + 2, XS + 2)
    a(f"v_cvt_pk_bf16_f32 v{RS}, v{RS}, v{RS+1}"); a(f"v_cvt_pk_bf16_f32 v{RS+1}, v{RS+2}, v{RS+3}")
    a(f"s_cmp_lg_u32 s{sW}, 0"); a("s_cbranch_scc1 L_fin")
    set_exec("0x00000000000000ff")
    a(f"global_store_dwordx2 v{SIG+1}, {vr(RS,2)}, {sp(pOUT)}" + (" sc1" if outwt else ""))
    a(f"s_cmp_lg_u32 s{sRI}, 0"); a("s_cbranch_scc1 L_fin")
    set_exec(1)
    a(f"v_mov_b32 v{T[1]}, 0")
    a(f"buffer_store_dword v{vN}, v{T[1]}, {srd(WSR)}, 0 offen offset:{EPOCH}" + (" sc1" if outwt else ""))
    a.label("L_fin")
    dump_stamps()
    a.label("L_abort")
    a.label("L_end")
    a("s_endpgm")
    a.label("L_codeend")
    body = a.text()
    tail = f""".section .rodata,"a"
.p2align 6
.amdhsa_kernel {NAME}
  .amdhsa_next_free_vgpr {NV}
  .amdhsa_next_free_sgpr 100
  .amdhsa_accum_offset {NV}
  .amdhsa_group_segment_fixed_size 0
  .amdhsa_kernarg_size 104
  .amdhsa_user_sgpr_count 2
  .amdhsa_user_sgpr_kernarg_segment_ptr 1
  .amdhsa_system_sgpr_workgroup_id_x 1
.end_amdhsa_kernel
"""
    return body + tail

if __name__ == "__main__":
    kw = json.loads(sys.argv[1]) if len(sys.argv) > 1 else {}
    sys.stdout.write(gen(**kw))
```

```python
import sys, json, struct
from asmlib import Asm

NAME = "sequential_preLN__mha_block_cached__moe_arch_mod__decode_kernel"
def f32hex(x): return "0x%08x" % struct.unpack("<I", struct.pack("<f", x))[0]

HB = 12582912
EPOCH = 0
QP = 0x1000
ML = 0x48000
OP = 0x60000
ZZ = 0x130000
HH = 0x1D0000
YY = 0x181000
CLS = 0x1C0000
TT = 0x1C4000
GT = 0x1C8000
GLOB = 0x1C2000
PROG = 0x1C1000
WS_SIZE = 0x200000
L_XN = 0
L_Q = 5120
L_RED = 6656
L_RED2 = 12800
L_RED3 = 23040
L_SC = 25088
L_STAT = 2304
L_CTL = 2048
L_REDH = 25088 + 16384 + 512
LDS_BYTES = 25088 + 16384 + 512 + 6144
LOG2E = 1.4426950408889634

def gen(H=8, PK=13, ctl=1, thr=24, local=1, pace=1, wpol="nt", qpol="nt", stage1=64, nb=6, nx_=8, early=6, p2=0, stag=3, tctl=0, oploc=1, wb=0, wphase=0, tb=1, lastb=1, outwt=0, donewt=0, delta=20, cpmax=24, kp=5, thrF=None, thrR=None, wmix=0, xctl=0, thr_odd=None, cthr=5, clead=1, thr_lo=10, thr_hi=32, cmed=16, lds=LDS_BYTES, dbg=0, pol="nt", spin=1 << 19, codepf=1):
    nph = 32 // H
    WPH = 256 // H
    NWH = WPH * 4
    G = 4096 // NWH
    NIT = G // 8
    STRIDE = NWH * 3072
    assert 2 <= PK <= 15 and NIT >= 4 and nb <= 9 and nx_ <= 12
    a = Asm()

    vL, vSA, vN = 1, 2, 3
    vM = [4, 5, 6, 7]; vA = 8
    vQ = 12
    vACC = 24
    vC, vMX, vP, vPN, vBC = 36, 37, 38, 39, 40
    T = list(range(41, 48))
    RING = 48
    W = 144
    vX = 204
    vLS, vAL, vRA, vOPA, WA, WB = 224, 225, 226, 227, 228, 230
    vZ, vFL = 232, 233
    NV = 240
    vST = 240
    if dbg: NV = 248
    def ring(slot, t): b = RING + slot * 12 + 4 * t; return f"v[{b}:{b+3}]"
    def vr(b, n): return f"v[{b}:{b+n-1}]"
    sW = 3
    pX, pK, pV, pWQ, pWO, pBX, pWR, pWG, pWU, pWD, pOUT, pDBG, pWS = [4 + 2 * i for i in range(13)]
    STR, WSR, TMP = 32, 36, 40
    sOff, sIt, sHead, sWI, sPh, sNon, sRole, sRI = 44, 45, 46, 47, 48, 49, 50, 51
    sSel = 52
    sSelG = 56
    sT0, sT1, sT2, sT3 = 57, 58, 59, 60
    sInc = 61
    sMask = 62
    sSlot, sJ, sInc4, sSpin = 78, 79, 80, 81
    sE = 82
    sBad = 84
    sU, sU2 = 86, 87
    sRow = 90
    sLoc, sBst, sPrv, sGI, sOH = 30, 31, 97, 98, 99
    sPkSel = 96
    def sp(b): return f"s[{b}:{b+1}]"
    def srd(b): return f"s[{b}:{b+3}]"
    USEFUL = "0xFF00FF0000FF00FF"

    def stamp(k):
        if not dbg: return
        if dbg == 3 and k not in (0, 3, 4, 6, 7, 9, 10, 12, 15): return
        if dbg == 2 and k not in (0, 15): return
        a("s_memrealtime s[88:89]"); a("s_waitcnt lgkmcnt(0)"); a(f"v_writelane_b32 v{vST}, s88, {k}")
    def dump_stamps(helper=False):
        if not dbg: return
        if dbg == 3:
            if helper: return
            n = newlab()
            stamp(15)
            a(f"s_cmp_lg_u32 s{sW}, 0"); a(f"s_cbranch_scc1 L_ds{n}")
            a("s_mov_b64 exec, -1")
            a(f"s_mov_b32 s40, s{pDBG}"); a(f"s_mov_b32 s41, s{pDBG+1}"); a("s_mov_b32 s42, 256"); a("s_mov_b32 s43, 0x20000")
            a(f"v_lshlrev_b32 v{vST+1}, 2, v{vL}")
            a(f"v_mov_b32 v{vST+2}, 0"); a(f"v_mov_b32 v{vST+3}, 0")
            for dst, src, inv in ((0,0,1),(1,3,0),(2,4,0),(3,4,1),(4,6,0),(5,6,1),(6,7,0),(7,9,0),(8,10,0),(9,12,0),(10,15,0)):
                a(f"v_readlane_b32 s88, v{vST}, {src}")
                if inv: a("s_not_b32 s88, s88")
                a("s_nop 3"); a(f"v_writelane_b32 v{vST+2}, s88, {dst}")
            a(f"v_readlane_b32 s89, v{vST}, 0")
            for dst, src in ((11,6),(12,4),(13,3)):
                a(f"v_readlane_b32 s88, v{vST}, {src}"); a("s_nop 3"); a("s_sub_u32 s88, s88, s89"); a("s_nop 3"); a(f"v_writelane_b32 v{vST+3}, s88, {dst}")
            a("s_mov_b64 exec, 0x7ff")
            a(f"buffer_atomic_umax v{vST+2}, v{vST+1}, s[40:43], 0 offen")
            a("s_mov_b64 exec, 0x3800")
            a(f"buffer_atomic_add v{vST+3}, v{vST+1}, s[40:43], 0 offen")
            a.label(f"L_ds{n}")
            return
        stamp(15)
        a("s_mov_b32 exec_lo, -1"); a("s_mov_b32 exec_hi, 0")
        if helper: a("s_add_u32 s88, s2, 1024")
        else: a(f"s_lshl_b32 s88, s2, 2"); a(f"s_add_u32 s88, s88, s{sW}")
        a("s_lshl_b32 s88, s88, 7"); a(f"s_add_u32 s88, s88, {WS_SIZE}")
        a(f"v_lshlrev_b32 v{vST+1}, 2, v{vL}")
        a(f"buffer_store_dword v{vST}, v{vST+1}, {srd(WSR)}, s88 offen")

    DPP4 = ("quad_perm:[1,0,3,2]", "quad_perm:[2,3,0,1]", "row_half_mirror", "row_mirror")
    def dpp(op, v, m): a(f"{op}_dpp v{v}, v{v}, v{v} {m} row_mask:0xf bank_mask:0xf")
    def swap_reduce(ops_vs, tmps, sw):
        for (op, v), t in zip(ops_vs, tmps): a(f"v_mov_b32 v{t}, v{v}")
        for (op, v), t in zip(ops_vs, tmps): a(f"{sw} v{t}, v{v}")
        for (op, v), t in zip(ops_vs, tmps): a(f"{op} v{v}, v{v}, v{t}")
    def allreduce_n(ops_vs, tmps):
        for m in DPP4:
            for op, v in ops_vs: dpp(op, v, m)
        swap_reduce(ops_vs, tmps, "v_permlane16_swap_b32")
        swap_reduce(ops_vs, tmps, "v_permlane32_swap_b32")
    def allreduce(op, v, t): allreduce_n([(op, v)], [t])
    def set_exec(val):
        if isinstance(val, str) and val.startswith("0x") and len(val) > 10:
            a(f"s_mov_b32 exec_lo, 0x{val[-8:]}"); a(f"s_mov_b32 exec_hi, 0x{val[2:-8]}")
        else:
            a(f"s_mov_b64 exec, {val}")
    def a_operand(src, dst=None):
        dst = vA if dst is None else dst
        for r in range(4): a(f"v_and_b32 v{dst+r}, v{src}, v{vM[r]}")
    def tag4(b):
        for r in range(4): a(f"v_perm_b32 v{b+r}, v{b+r}, v{vN}, s{sSel+r}")
    def check4(b, t0, t1, first):
        a(f"v_perm_b32 v{t0}, v{b+1}, v{b}, s{sSelG}")
        a(f"v_perm_b32 v{t1}, v{b+3}, v{b+2}, s{sSelG}")
        a(f"v_lshl_or_b32 v{t0}, v{t1}, 16, v{t0}")
        a(f"v_cmp_ne_u32 vcc, v{t0}, v{vN}")
        if first: a(f"s_mov_b64 {sp(sBad)}, vcc")
        else: a(f"s_or_b64 {sp(sBad)}, {sp(sBad)}, vcc")
    lab = [0]
    def newlab():
        lab[0] += 1; return lab[0]
    def poll(issue, check, pre=None, first_issued=False, first_wait=0):
        n = newlab()
        a(f"s_mov_b32 s{sSpin}, {spin}")
        if not first_issued: issue()
        if pre: pre()
        a(f"s_waitcnt vmcnt({first_wait})")
        a(f"s_branch L_pollchk{n}")
        a.label(f"L_poll{n}")
        a(f"s_sub_u32 s{sSpin}, s{sSpin}, 1")
        a(f"s_cmp_eq_u32 s{sSpin}, 0")
        a("s_cbranch_scc1 L_abort")
        issue()
        a("s_waitcnt vmcnt(0)")
        a.label(f"L_pollchk{n}")
        check()
        a(f"s_cmp_lg_u64 {sp(sBad)}, 0")
        a(f"s_cbranch_scc1 L_poll{n}")
    def poll2(issue, check, nld, stage1, pre=None):
        if not p2:
            poll(lambda: issue(0), lambda: check(0), pre=pre); stage1(0); return
        n = newlab()
        a(f"s_mov_b32 s{sSpin}, {spin}")
        issue(0)
        if pre: pre()
        if stag: a(f"s_sleep {stag}")
        issue(1)
        a.label(f"L_p2{n}")
        a(f"s_waitcnt vmcnt({nld})")
        check(0)
        a(f"s_cmp_eq_u64 {sp(sBad)}, 0"); a(f"s_cbranch_scc1 L_p2a{n}")
        issue(0)
        a(f"s_waitcnt vmcnt({nld})")
        check(1)
        a(f"s_cmp_eq_u64 {sp(sBad)}, 0"); a(f"s_cbranch_scc1 L_p2b{n}")
        issue(1)
        a(f"s_sub_u32 s{sSpin}, s{sSpin}, 1"); a(f"s_cmp_eq_u32 s{sSpin}, 0"); a("s_cbranch_scc1 L_abort")
        a(f"s_branch L_p2{n}")
        a.label(f"L_p2b{n}")
        stage1(1)
        a(f"s_branch L_p2j{n}")
        a.label(f"L_p2a{n}")
        stage1(0)
        a.label(f"L_p2j{n}")
    def pub_store(data, voff, soff):
        n = newlab()
        if local:
            a(f"s_cmp_eq_u32 s{sLoc}, 1"); a(f"s_cbranch_scc1 L_pl{n}")
        a(f"buffer_store_dwordx4 {data}, v{voff}, {srd(WSR)}, s{soff} offen sc1")
        if local:
            a(f"s_branch L_pd{n}")
            a.label(f"L_pl{n}")
            a(f"buffer_store_dwordx4 {data}, v{voff}, {srd(WSR)}, s{soff} offen")
            a.label(f"L_pd{n}")
    def rne(dst, src):
        a(f"v_cvt_pk_bf16_f32 v{dst}, v{src}, v{src}")
        a(f"v_lshlrev_b32 v{dst}, 16, v{dst}")
    def pkadd(d, x, y): a(f"v_pk_add_f32 {vr(d,2)}, {vr(x,2)}, {vr(y,2)}")
    def sum_quads(dst, srcs):
        for s in srcs:
            pkadd(dst, dst, s); pkadd(dst + 2, dst + 2, s + 2)

    def ln_consts(s1, s2, t):
        a(f"v_mul_f32 v{s1}, {f32hex(1.0/640)}, v{s1}")
        a(f"v_mul_f32 v{s2}, {f32hex(1.0/640)}, v{s2}")
        a(f"v_fma_f32 v{s2}, -v{s1}, v{s1}, v{s2}")
        a(f"v_max_f32 v{s2}, 0, v{s2}")
        rne(s2, s2)
        a(f"v_add_f32 v{s2}, {f32hex(1e-5)}, v{s2}")
        rne(s2, s2)
        rne(s1, s1)
        a(f"v_sqrt_f32 v{s2}, v{s2}")
        rne(s2, s2)

    def layernorm_full(val, pk, tmp, refine):
        t0, t1, t2, t3, t4 = tmp
        ONES = t4
        a(f"v_mov_b32 v{ONES}, 0x3f803f80")
        a(f"v_dot2_f32_bf16 v{t0}, v{pk}, v{ONES}, 0"); a(f"v_dot2_f32_bf16 v{t1}, v{pk}, v{pk}, 0")
        for i in range(1, 6):
            a(f"v_dot2_f32_bf16 v{t0}, v{pk+i}, v{ONES}, v{t0}"); a(f"v_dot2_f32_bf16 v{t1}, v{pk+i}, v{pk+i}, v{t1}")
        allreduce_n([("v_add_f32", t0), ("v_add_f32", t1)], [t2, t3])
        ln_consts(t0, t1, t2)
        a(f"v_rcp_f32 v{t4}, v{t1}")
        for i in range(0, 12, 2):
            a(f"v_sub_f32 v{val+i}, v{val+i}, v{t0}")
            a(f"v_sub_f32 v{val+i+1}, v{val+i+1}, v{t0}")
            a(f"v_cvt_pk_bf16_f32 v{t2}, v{val+i}, v{val+i+1}")
            a(f"v_lshlrev_b32 v{val+i}, 16, v{t2}")
            a(f"v_and_b32 v{val+i+1}, 0xffff0000, v{t2}")
            for k in (i, i + 1):
                if refine:
                    a(f"v_mul_f32 v{t2}, v{val+k}, v{t4}")
                    a(f"v_fma_f32 v{t3}, -v{t2}, v{t1}, v{val+k}")
                    a(f"v_fma_f32 v{val+k}, v{t3}, v{t4}, v{t2}")
                else:
                    a(f"v_mul_f32 v{val+k}, v{val+k}, v{t4}")
            a(f"v_cvt_pk_bf16_f32 v{pk + i//2}, v{val+i}, v{val+i+1}")
            a(f"v_lshlrev_b32 v{val+i}, 16, v{pk + i//2}")
            a(f"v_and_b32 v{val+i+1}, 0xffff0000, v{pk + i//2}")

    a.lines.append(f"; @launch grid=(256,1,1) block=(320,1,1) lds={lds}")
    a.lines.append('.amdgcn_target "amdgcn-amd-amdhsa--gfx950"')
    a.lines += [".text", f".globl {NAME}", ".p2align 8", f".type {NAME},@function"]
    a.label(NAME)
    a("s_cmp_ge_u32 s2, 256")
    a("s_cbranch_scc1 L_end")
    a("s_load_dwordx16 s[4:19], s[0:1], 0")
    a("s_load_dwordx8 s[20:27], s[0:1], 64")
    a("s_load_dwordx2 s[28:29], s[0:1], 96")
    a(f"v_and_b32 v{vL}, 63, v0")
    a(f"v_lshrrev_b32 v{T[0]}, 6, v0")
    a(f"v_lshrrev_b32 v{T[2]}, 3, v{vL}")
    a(f"v_readfirstlane_b32 s{sW}, v{T[0]}")
    a(f"v_and_b32 v{T[3]}, 7, v{vL}")
    a(f"v_lshlrev_b32 v{T[4]}, 4, v{T[3]}")
    def masks():
        for r in range(4):
            a(f"v_mov_b32 v{vM[r]}, 0")
            a(f"v_mov_b32 v{T[5]}, 0xffff")
            a(f"v_cmp_eq_u32 vcc, {2*r}, v{T[3]}")
            a(f"v_cndmask_b32 v{vM[r]}, v{vM[r]}, v{T[5]}, vcc")
            a(f"v_mov_b32 v{T[5]}, 0xffff0000")
            a(f"v_cmp_eq_u32 vcc, {2*r+1}, v{T[3]}")
            a(f"v_cndmask_b32 v{vM[r]}, v{vM[r]}, v{T[5]}, vcc")
    def ws_srd():
        a(f"s_mov_b32 s{WSR}, s{pWS}"); a(f"s_mov_b32 s{WSR+1}, s{pWS+1}"); a(f"s_mov_b32 s{WSR+2}, {WS_SIZE * (2 if dbg else 1)}"); a(f"s_mov_b32 s{WSR+3}, 0x20000")
    vq = []
    def wait_for(name):
        if name not in vq: return
        idx = max(i for i, n in enumerate(vq) if n == name)
        n = len(vq) - 1 - idx
        a(f"s_waitcnt vmcnt({min(n, 63)})")
        del vq[:idx + 1]
    def red_addr():
        a(f"v_lshrrev_b32 v{T[0]}, 5, v{vL}")
        a(f"v_mul_u32_u24 v{vRA}, 768, v{T[0]}")
        a(f"v_and_b32 v{T[0]}, 7, v{vL}"); a(f"v_lshlrev_b32 v{T[0]}, 5, v{T[0]}"); a(f"v_add_u32 v{vRA}, v{vRA}, v{T[0]}")
        a(f"v_and_b32 v{T[0]}, 16, v{vL}"); a(f"v_add_u32 v{vRA}, v{vRA}, v{T[0]}")
        a(f"s_mul_i32 s{sT0}, s{sW}, 1536"); a(f"v_add_u32 v{vRA}, s{sT0}, v{vRA}")
    def red_write():
        set_exec(USEFUL)
        for t in range(3): a(f"ds_write_b128 v{vRA}, {vr(vACC+4*t,4)} offset:{L_RED + 256*t}")
        set_exec(-1)
    a(f"s_cmp_lg_u32 s{sW}, 4"); a("s_cbranch_scc1 L_stream")
    a("s_setprio 3")

    WD = RING
    XQ = 168
    XV = 176
    XR = 188
    a(f"s_and_b32 s{sT0}, s2, 31"); a(f"s_lshr_b32 s{sT1}, s2, 5")
    a(f"v_mul_u32_u24 v{T[6]}, 12288, v{T[2]}")
    a(f"s_mul_i32 s{sT2}, s{sT0}, 384")
    a(f"v_add3_u32 v{T[6]}, v{T[6]}, v{T[4]}, s{sT2}")
    a(f"s_mul_i32 s{sT3}, s{sT1}, {80*12288}")
    a(f"v_lshlrev_b32 v{T[1]}, 3, v{vL}")
    a(f"v_add_u32 v{T[5]}, 1024, v{T[1]}")
    a(f"v_min_u32 v{T[5]}, 1272, v{T[5]}")
    a(f"s_mov_b32 s{TMP+2}, 7864320"); a(f"s_mov_b32 s{TMP+3}, 0x20000")
    a("s_waitcnt lgkmcnt(0)")
    a(f"s_mov_b32 s{TMP}, s{pWQ}"); a(f"s_mov_b32 s{TMP+1}, s{pWQ+1}")
    a(f"global_load_dwordx2 {vr(XQ,2)}, v{T[1]}, {sp(pX)}")
    a(f"global_load_dwordx2 {vr(XQ+2,2)}, v{T[1]}, {sp(pX)} offset:512")
    a(f"global_load_dwordx2 {vr(XQ+4,2)}, v{T[5]}, {sp(pX)}")
    vq += ["x0", "x1", "x2"]
    for k in range(10):
        for t in range(3):
            a(f"buffer_load_dwordx4 {vr(WD + 12*k + 4*t, 4)}, v{T[6]}, {srd(TMP)}, s{sT3} offen offset:{128*t} {qpol}")
            vq.append(f"wq{k}")
        if k < 9: a(f"s_add_u32 s{sT3}, s{sT3}, {8*12288}")
    a("s_barrier")
    a(f"v_mov_b32 v{vZ}, 0")
    for o in range(0, 36, 4): a(f"ds_write_b32 v{vZ}, v{vZ} offset:{L_CTL + o}")
    a(f"s_load_dword s{sNon}, {sp(pWS)}, {EPOCH}")
    if dbg: a(f"v_mov_b32 v{vST}, 0")
    stamp(0)
    masks()
    ws_srd()
    a(f"s_and_b32 s{sSlot}, s2, {H-1}")
    wait_for("x2")
    stamp(18)
    CE = 198
    a("s_waitcnt lgkmcnt(0)")
    a(f"s_add_u32 s{sNon}, s{sNon}, 0x9e3779b9")
    a(f"v_mov_b32 v{vN}, s{sNon}")
    a(f"s_getreg_b32 s{sT0}, hwreg(HW_REG_XCC_ID, 0, 4)")
    a(f"s_and_b32 s{sRole}, s{sT0}, 1")
    a(f"s_and_b32 s{sT1}, s{sNon}, 0xfffffff0"); a(f"s_or_b32 s{sT0}, s{sT0}, s{sT1}")
    a(f"v_mov_b32 v{CE}, s{sT0}")
    a(f"s_and_b32 s{sU2}, s2, 7"); a(f"s_lshl_b32 s{sU2}, s{sU2}, 7")
    a(f"s_lshr_b32 s{sT1}, s2, 3"); a(f"s_lshl_b32 s{sT1}, s{sT1}, 2"); a(f"s_add_u32 s{sT1}, s{sT1}, s{sU2}"); a(f"s_add_u32 s{sT1}, s{sT1}, {CLS}")
    if local:
        set_exec(1)
        a(f"buffer_store_dword v{CE}, v{vZ}, {srd(WSR)}, s{sT1} offen")
        set_exec(-1)
        vq.append("cls_st")
    a(f"v_cmp_gt_u32 vcc, 32, v{vL}")
    a(f"v_cndmask_b32 v{XQ+4}, 0, v{XQ+4}, vcc"); a(f"v_cndmask_b32 v{XQ+5}, 0, v{XQ+5}, vcc")
    for k in range(6):
        a(f"v_lshlrev_b32 v{XV+2*k}, 16, v{XQ+k}")
        a(f"v_and_b32 v{XV+2*k+1}, 0xffff0000, v{XQ+k}")
    layernorm_full(XV, XQ, T[0:5], True)
    a(f"v_lshlrev_b32 v{T[0]}, 3, v{vL}")
    a(f"ds_write_b64 v{T[0]}, {vr(XQ,2)} offset:{L_XN}")
    a(f"ds_write_b64 v{T[0]}, {vr(XQ+2,2)} offset:{L_XN+512}")
    set_exec("0x00000000ffffffff")
    a(f"ds_write_b64 v{T[0]}, {vr(XQ+4,2)} offset:{L_XN+1024}")
    set_exec(-1)
    a(f"s_lshr_b32 s{sT1}, s2, 5"); a(f"s_mul_i32 s{sT1}, s{sT1}, 160")
    a(f"v_lshrrev_b32 v{T[0]}, 3, v{vL}"); a(f"v_lshlrev_b32 v{T[0]}, 1, v{T[0]}"); a(f"v_add_u32 v{T[0]}, s{sT1}, v{T[0]}")
    a("s_waitcnt lgkmcnt(0)")
    for k in range(10): a(f"ds_read_u16 v{XR+k}, v{T[0]} offset:{L_XN + 16*k}")
    for i in range(12): a(f"v_mov_b32 v{vACC+i}, 0")
    a("s_waitcnt lgkmcnt(0)")
    for k in range(10): a(f"v_lshl_or_b32 v{XR+k}, v{XR+k}, 16, v{XR+k}")
    stamp(1)
    def cls_issue():
        a(f"v_and_b32 v{T[5]}, 31, v{vL}"); a(f"v_lshlrev_b32 v{T[5]}, 2, v{T[5]}")
        a(f"s_add_u32 s{sT2}, s{sU2}, {CLS}")
        a(f"buffer_load_dword v{CE+1}, v{T[5]}, {srd(WSR)}, s{sT2} offen sc1")
    for k in range(10):
        a_operand(XR + k)
        if k == 8 and local:
            cls_issue(); vq.append("cls_ld")
        wait_for(f"wq{k}")
        for t in range(3):
            a(f"v_mfma_f32_16x16x32_bf16 {vr(vACC+4*t,4)}, {vr(vA,4)}, {vr(WD+12*k+4*t,4)}, {vr(vACC+4*t,4)}")
    a(f"v_lshrrev_b32 v{T[0]}, 5, v{vL}"); a(f"v_mul_u32_u24 v{vRA}, 768, v{T[0]}")
    a(f"v_and_b32 v{T[0]}, 7, v{vL}"); a(f"v_lshlrev_b32 v{T[0]}, 5, v{T[0]}"); a(f"v_add_u32 v{vRA}, v{vRA}, v{T[0]}")
    a(f"v_and_b32 v{T[0]}, 16, v{vL}"); a(f"v_add_u32 v{vRA}, v{vRA}, v{T[0]}")
    a(f"v_mul_u32_u24 v{T[0]}, 12, v{vL}")
    a(f"s_and_b32 s{sT0}, s2, 31"); a(f"s_lshr_b32 s{sT1}, s2, 5"); a(f"s_lshl_b32 s{sT0}, s{sT0}, 3"); a(f"s_add_u32 s{sT0}, s{sT0}, s{sT1}")
    a(f"s_lshl_b32 s{sT0}, s{sT0}, 10"); a(f"s_add_u32 s{sT0}, s{sT0}, {QP}")
    a(f"v_lshlrev_b32 v{T[1]}, 4, v{vL}")
    red_write()
    a("s_waitcnt lgkmcnt(0)")
    S3 = 200
    for s in range(2):
        for i in range(3): a(f"ds_read_b32 v{S3+4*s+i}, v{T[0]} offset:{L_RED + 768*s + 4*i}")
    a("s_waitcnt lgkmcnt(0)")
    pkadd(S3, S3, S3 + 4); a(f"v_add_f32 v{S3+2}, v{S3+2}, v{S3+6}")
    a(f"v_mov_b32 v{S3+3}, v{vN}")
    a(f"s_mov_b32 s{sLoc}, 0")
    if local:
        a(f"s_mov_b32 s{sSpin}, 8")
        a("s_waitcnt vmcnt(0)")
        a.label("L_clschk")
        a(f"v_cmp_ne_u32 vcc, v{CE+1}, v{CE}")
        a(f"s_cmp_eq_u64 vcc, 0"); a(f"s_cselect_b32 s{sLoc}, 1, 0"); a("s_cbranch_scc1 L_clsdone")
        a(f"s_sub_u32 s{sSpin}, s{sSpin}, 1"); a(f"s_cmp_eq_u32 s{sSpin}, 0"); a("s_cbranch_scc1 L_clsdone")
        cls_issue(); a("s_waitcnt vmcnt(0)"); a("s_branch L_clschk")
        a.label("L_clsdone")
    pub_store(vr(S3,4), T[1], sT0)
    a(f"v_mov_b32 v{T[2]}, s{sLoc}"); a(f"ds_write_b32 v{vZ}, v{T[2]} offset:{L_CTL + 8}")
    stamp(21)
    S4 = RING
    for p in range(nph):
        a(f"s_add_u32 s{sU}, s{sSlot}, {H*p}"); a(f"s_lshl_b32 s{sU}, s{sU}, 13"); a(f"s_add_u32 s{sU}, s{sU}, {QP}")
        def iss():
            for s in range(8):
                a(f"s_add_u32 s{sT1}, s{sU}, {1024*s}")
                a(f"buffer_load_dwordx4 {vr(S4+4*s,4)}, v{T[1]}, {srd(WSR)}, s{sT1} offen sc1")
        def chk():
            for s in range(8):
                a(f"v_cmp_ne_u32 vcc, v{S4+4*s+3}, v{vN}")
                a(f"s_mov_b64 {sp(sBad)}, vcc" if s == 0 else f"s_or_b64 {sp(sBad)}, {sp(sBad)}, vcc")
        poll(iss, chk)
        if p == 0: stamp(22)
        for s in range(1, 8):
            pkadd(S4, S4, S4 + 4*s); a(f"v_add_f32 v{S4+2}, v{S4+2}, v{S4+4*s+2}")
        a(f"v_cvt_pk_bf16_f32 v{S4}, v{S4}, v{S4+1}")
        a(f"v_cvt_pk_bf16_f32 v{S4+2}, v{S4+2}, v{S4+2}")
        a(f"v_mul_u32_u24 v{T[0]}, 6, v{vL}")
        a(f"ds_write_b16 v{T[0]}, v{S4} offset:{L_Q + 384*p}")
        a(f"ds_write_b16_d16_hi v{T[0]}, v{S4} offset:{L_Q + 384*p + 2}")
        a(f"ds_write_b16 v{T[0]}, v{S4+2} offset:{L_Q + 384*p + 4}")
        a("s_waitcnt lgkmcnt(0)")
        if nph > 1:
            a(f"v_mov_b32 v{T[0]}, {p+1}"); a(f"ds_write_b32 v{vZ}, v{T[0]} offset:{L_CTL + 32}"); a("s_waitcnt lgkmcnt(0)")
        if p == 0:
            a("s_barrier")
            if codepf:
                a(f"s_getpc_b64 {sp(58)}")
                a.label("L_pc")
                a(f"s_lshr_b32 s{sT3}, s2, 3"); a(f"s_lshl_b32 s{sT3}, s{sT3}, 9")
                a(f"v_and_b32 v{T[0]}, 7, v{vL}"); a(f"v_lshlrev_b32 v{T[0]}, 6, v{T[0]}"); a(f"v_add_u32 v{T[0]}, s{sT3}, v{T[0]}")
                a(f"v_add_u32 v{T[0]}, L_kcode-L_pc, v{T[0]}")
                a(f"v_min_u32 v{T[0]}, L_codeend-L_pc-4, v{T[0]}")
                a(f"global_load_dword v{vAL}, v{T[0]}, {sp(58)}")
    if ctl or nph > 1:
        NTOT = 2 * NIT * nph
        sPub = sPh
        HBUF = RING
        a(f"s_and_b32 s{sT0}, s{sNon}, 0xffffff00"); a(f"v_mov_b32 v{T[3]}, s{sT0}")
        a(f"s_add_u32 s{sU}, s{sU2}, {PROG}")
        a(f"v_lshlrev_b32 v{T[4]}, 2, v{vL}"); a(f"v_mov_b32 v{T[5]}, 0x800"); a(f"v_cmp_gt_u32 vcc, 32, v{vL}"); a(f"v_cndmask_b32 v{T[4]}, v{T[5]}, v{T[4]}, vcc")
        a(f"s_lshr_b32 s{sT1}, s2, 3"); a(f"s_lshl_b32 s{sT1}, s{sT1}, 2"); a(f"v_mov_b32 v{T[5]}, s{sT1}")
        sCN, sLead, sThr = sWI, sOff, sIt
        a(f"s_mov_b32 s{sCN}, 1"); a(f"s_cmp_lt_u32 s2, 8"); a(f"s_cselect_b32 s{sLead}, 1, 0")
        a(f"v_lshlrev_b32 v{vBC}, 8, v{vL}"); a(f"v_min_u32 v{vBC}, {7*256}, v{vBC}")
        a(f"s_and_b32 s{sT2}, s2, 7"); a(f"s_lshl_b32 s{sT2}, s{sT2}, 8"); a(f"v_mov_b32 v{vP}, s{sT2}")
        a(f"v_mov_b32 v{vPN}, 0x800")
        sA, sAp, sAn, sTau, sHave, sK, sLcp, sTn = 62, 63, 64, 65, 66, 67, 68, 70
        if tctl:
            a(f"s_mov_b32 s{sLcp}, 4"); a(f"s_mov_b32 s{sK}, 4"); a(f"s_mov_b32 s{sHave}, 0")
            a(f"s_mov_b32 s{sA}, 0"); a(f"s_mov_b32 s{sAp}, 0"); a(f"s_mov_b32 s{sAn}, 0"); a(f"s_mov_b32 s{sTau}, 0")
            a(f"s_and_b32 s{sT2}, s2, 7"); a(f"s_lshl_b32 s{sT2}, s{sT2}, 8")
            a(f"v_and_b32 v{vBC}, 31, v{vL}"); a(f"v_lshlrev_b32 v{vBC}, 3, v{vBC}"); a(f"v_add_u32 v{vBC}, s{sT2}, v{vBC}")
            a(f"s_lshr_b32 s{sT3}, s2, 3"); a(f"s_lshl_b32 s{sT3}, s{sT3}, 3"); a(f"s_add_u32 s{sT3}, s{sT3}, s{sT2}"); a(f"v_mov_b32 v{vP}, s{sT3}")
            a(f"v_min_u32 v{vPN}, 7, v{vL}"); a(f"v_lshlrev_b32 v{vPN}, 8, v{vPN}")
            a(f"v_mov_b32 v{vC}, s{sT2}")
        a(f"s_mov_b32 s{sGI}, 0"); a(f"s_mov_b32 s{sSpin}, {1 << 22}"); a(f"s_mov_b32 s{sPub}, 0")
        if nph > 1:
            for r in range(4): a(f"s_mov_b32 s{sSel+r}, 0x{0x07060500 | r:08x}")
            a(f"s_lshr_b32 s{sJ}, s2, {H.bit_length()-1}")
            a(f"v_mul_u32_u24 v{T[1]}, 43691, v{vL}"); a(f"v_lshrrev_b32 v{T[1]}, 19, v{T[1]}")
            a(f"v_mul_u32_u24 v{T[2]}, 12, v{T[1]}"); a(f"v_sub_u32 v{T[2]}, v{vL}, v{T[2]}")
            a(f"v_mul_u32_u24 v{T[1]}, {WPH*192}, v{T[1]}"); a(f"v_lshlrev_b32 v{T[2]}, 4, v{T[2]}"); a(f"v_add_u32 v{vOPA}, v{T[1]}, v{T[2]}")
            a(f"v_lshlrev_b32 v{vRA}, 4, v{vL}")
        a.label("L_cspin")
        a("s_sleep 4")
        a(f"ds_read_b32 v{T[0]}, v{vZ} offset:{L_CTL}")
        if nph > 1: a(f"ds_read_b128 {vr(vA,4)}, v{vZ} offset:{L_CTL + 16}")
        a("s_waitcnt lgkmcnt(0)"); a(f"v_readfirstlane_b32 s{sT0}, v{T[0]}")
        a(f"s_sub_u32 s{sSpin}, s{sSpin}, 1"); a(f"s_cmp_eq_u32 s{sSpin}, 0"); a("s_cbranch_scc1 L_cdone")
        if nph > 1:
            a(f"v_min_u32 v{vA}, v{vA}, v{vA+1}"); a(f"v_min_u32 v{vA+2}, v{vA+2}, v{vA+3}"); a(f"v_min_u32 v{vA}, v{vA}, v{vA+2}")
            a(f"v_readfirstlane_b32 s{sT1}, v{vA}")
            a(f"s_cmp_gt_u32 s{sT1}, s{sPub}"); a("s_cbranch_scc0 L_cnopub")
            set_exec("0x0000ffffffffffff")
            for s_ in range(8): a(f"ds_read_b128 {vr(HBUF+4*s_,4)}, v{vRA} offset:{L_REDH + 768*s_}")
            a("s_waitcnt lgkmcnt(0)")
            a(f"s_add_u32 s{sT1}, s{sPub}, 1"); a(f"v_mov_b32 v{T[1]}, s{sT1}"); a(f"ds_write_b32 v{vZ}, v{T[1]} offset:{L_CTL + 12}")
            sum_quads(HBUF, [HBUF + 4*k for k in range(1, 8)])
            tag4(HBUF)
            a(f"s_mul_i32 s{sT2}, s{sPub}, {H}"); a(f"s_add_u32 s{sT2}, s{sT2}, s{sSlot}")
            a(f"s_mul_i32 s{sT2}, s{sT2}, {4*WPH*192}"); a(f"s_mul_i32 s{sT3}, s{sJ}, 192"); a(f"s_add_u32 s{sT2}, s{sT2}, s{sT3}"); a(f"s_add_u32 s{sT2}, s{sT2}, {OP}")
            pub_store(vr(HBUF,4), vOPA, sT2)
            set_exec(-1)
            a(f"s_mov_b32 s{sPub}, s{sT1}")
            a.label("L_cnopub")
        if ctl and tctl:
            a(f"s_cmp_eq_u32 s{sLead}, 0"); a("s_cbranch_scc1 L_tnolead")
            a(f"s_cmp_gt_u32 s{sLcp}, {cpmax}"); a("s_cbranch_scc1 L_tnolead")
            a(f"s_cmp_gt_u32 s{sLcp}, s{sGI}"); a("s_cbranch_scc1 L_tnolead")
            a(f"s_lshl_b32 s72, s{sLcp}, 9"); a(f"s_add_u32 s72, s72, {TT - 2048}")
            a(f"buffer_load_dwordx2 {vr(vA,2)}, v{vBC}, {srd(WSR)}, s72 offen sc1")
            a("s_waitcnt vmcnt(0)")
            a(f"v_cmp_eq_u32 vcc, v{vA+1}, v{vN}"); a("s_cmp_eq_u32 vcc_lo, -1"); a("s_cbranch_scc0 L_tnolead")
            a(f"v_readlane_b32 s73, v{vA}, 0"); a("s_nop 1")
            a(f"v_subrev_u32 v{vA}, s73, v{vA}")
            allreduce("v_add_u32", vA, vA + 2)
            a(f"v_readfirstlane_b32 s74, v{vA}"); a("s_nop 1")
            a("s_ashr_i32 s74, s74, 6"); a("s_add_u32 s73, s73, s74")
            a(f"v_mov_b32 v{vA}, s73"); a(f"v_mov_b32 v{vA+1}, v{vN}")
            a(f"s_lshl_b32 s72, s{sLcp}, 9"); a(f"s_add_u32 s72, s72, {GT - 2048}")
            set_exec(1)
            a(f"buffer_store_dwordx2 {vr(vA,2)}, v{vC}, {srd(WSR)}, s72 offen sc1")
            set_exec(-1)
            a(f"s_add_u32 s{sLcp}, s{sLcp}, 4")
            a.label("L_tnolead")
        if ctl:
            a(f"s_cmp_lg_u32 s{sT0}, s{sGI}"); a("s_cbranch_scc1 L_cchg")
            if xctl:
                a(f"s_cmp_eq_u32 s{sLead}, 0"); a("s_cbranch_scc1 L_cchk")
                a(f"buffer_load_dword v{T[1]}, v{T[4]}, {srd(WSR)}, s{sU} offen sc1")
                a("s_waitcnt vmcnt(0)")
                a(f"v_xor_b32 v{T[1]}, v{T[1]}, v{T[3]}")
                a("s_branch L_clead")
            else:
                a("s_branch L_cchk")
            a.label("L_cchg")
            a(f"s_mov_b32 s{sGI}, s{sT0}")
            if tctl:
                a(f"s_memrealtime {sp(sTn)}"); a("s_waitcnt lgkmcnt(0)")
                a(f"s_and_b32 s72, s{sGI}, 3"); a("s_cmp_eq_u32 s72, 0"); a("s_cbranch_scc0 L_tnocp")
                a(f"s_cmp_gt_u32 s{sGI}, {cpmax}"); a("s_cbranch_scc1 L_tnocp")
                a(f"s_lshl_b32 s72, s{sGI}, 9"); a(f"s_add_u32 s72, s72, {TT - 2048}")
                a(f"v_mov_b32 v{vA}, s{sTn}"); a(f"v_mov_b32 v{vA+1}, v{vN}")
                set_exec(1)
                a(f"buffer_store_dwordx2 {vr(vA,2)}, v{vP}, {srd(WSR)}, s72 offen")
                set_exec(-1)
                a.label("L_tnocp")
                a(f"s_cmp_gt_u32 s{sK}, {cpmax}"); a("s_cbranch_scc1 L_tnoget")
                a(f"s_cmp_le_u32 s{sGI}, s{sK}"); a("s_cbranch_scc1 L_tnoget")
                a(f"s_lshl_b32 s72, s{sK}, 9"); a(f"s_add_u32 s72, s72, {GT - 2048}")
                a(f"buffer_load_dwordx2 {vr(vA,2)}, v{vPN}, {srd(WSR)}, s72 offen sc1")
                a("s_waitcnt vmcnt(0)")
                a(f"v_cmp_eq_u32 vcc, v{vA+1}, v{vN}"); a("s_and_b32 s72, vcc_lo, 0xff"); a("s_cmp_eq_u32 s72, 0xff"); a("s_cbranch_scc0 L_tnoget")
                a(f"s_and_b32 s75, s2, 7"); a(f"v_readlane_b32 s73, v{vA}, 0"); a("s_nop 3"); a(f"v_readlane_b32 s75, v{vA}, s75"); a("s_nop 1")
                a(f"v_subrev_u32 v{vA}, s73, v{vA}")
                a(f"v_cmp_gt_u32 vcc, 8, v{vL}"); a(f"v_cndmask_b32 v{vA}, 0, v{vA}, vcc")
                allreduce("v_add_u32", vA, vA + 2)
                a(f"v_readfirstlane_b32 s74, v{vA}"); a("s_nop 1")
                a("s_ashr_i32 s74, s74, 3"); a("s_add_u32 s73, s73, s74")
                if tctl == 2:
                    a("s_sub_i32 s75, s75, s73"); a(f"s_mul_i32 s75, s75, {kp}"); a("s_ashr_i32 s75, s75, 6"); a(f"s_sub_i32 s{sTau}, 0, s75")
                    a(f"s_add_u32 s{sK}, s{sK}, 4")
                    a("s_branch L_tnoget")
                a(f"s_cmp_eq_u32 s{sK}, 4"); a("s_cbranch_scc1 L_tfirst")
                a(f"s_sub_u32 s{sTau}, s73, s{sAp}"); a(f"s_lshr_b32 s{sTau}, s{sTau}, 2"); a(f"s_mov_b32 s{sHave}, 1")
                a.label("L_tfirst")
                a(f"s_mov_b32 s{sAp}, s73"); a(f"s_mov_b32 s{sA}, s73"); a(f"s_mov_b32 s{sAn}, s{sK}"); a(f"s_add_u32 s{sK}, s{sK}, 4")
                a.label("L_tnoget")
                if tctl == 2: a("s_branch L_trank")
                a(f"s_cmp_eq_u32 s{sHave}, 0"); a("s_cbranch_scc1 L_trank")
                a(f"s_sub_u32 s72, s{sGI}, s{sAn}"); a(f"s_mul_i32 s72, s72, s{sTau}"); a(f"s_add_u32 s72, s72, s{sA}")
                a(f"s_sub_u32 s72, s{sTn}, s72")
                a(f"s_cmp_gt_i32 s72, {delta}"); a(f"s_cselect_b32 s72, 1, 0")
                a(f"v_mov_b32 v{T[0]}, s72"); a(f"ds_write_b32 v{vZ}, v{T[0]} offset:{L_CTL + 4}")
                a("s_branch L_cchk")
                a.label("L_trank")
            a(f"buffer_load_dword v{T[1]}, v{T[4]}, {srd(WSR)}, s{sU} offen sc1")
            a(f"v_or_b32 v{T[2]}, s{sGI}, v{T[3]}")
            set_exec(1)
            a(f"buffer_store_dword v{T[2]}, v{T[5]}, {srd(WSR)}, s{sU} offen")
            set_exec(-1)
            a("s_waitcnt vmcnt(1)")
            a(f"v_xor_b32 v{T[1]}, v{T[1]}, v{T[3]}")
            a(f"s_mov_b32 s{sThr}, {thr}")
            if thrF is not None:
                a(f"s_lshr_b32 s{sT3}, s2, 3"); a(f"s_sub_u32 s{sT3}, s{sT3}, 16"); a(f"s_cmp_lt_u32 s{sT3}, 12"); a(f"s_cselect_b32 s{sThr}, {thrF}, s{sThr}")
            if thrR is not None:
                a(f"s_lshr_b32 s{sT3}, s2, 3"); a(f"s_cmp_ge_u32 s{sT3}, 28"); a(f"s_cselect_b32 s{sThr}, {thrR}, s{sThr}")
            if thr_odd is not None:
                a(f"s_cmp_eq_u32 s{sRole}, 1"); a(f"s_cselect_b32 s{sThr}, {thr_odd}, s{sThr}")
            if tctl == 2:
                a(f"s_add_i32 s{sThr}, s{sThr}, s{sTau}"); a(f"s_max_i32 s{sThr}, s{sThr}, 3"); a(f"s_min_i32 s{sThr}, s{sThr}, 32")
            if xctl:
                a(f"v_readlane_b32 s{sT3}, v{T[1]}, 32")
                a("s_nop 1")
                a(f"s_cmp_eq_u32 s{sT3}, 2"); a(f"s_cselect_b32 s{sThr}, {thr_lo}, s{sThr}")
                a(f"s_cmp_eq_u32 s{sT3}, 0"); a(f"s_cselect_b32 s{sThr}, {thr_hi}, s{sThr}")
            a(f"v_cmp_le_u32 vcc, s{sGI}, v{T[1]}"); a(f"s_mov_b32 s{sT2}, vcc_lo")
            a(f"v_cmp_gt_u32 vcc, 256, v{T[1]}"); a(f"s_and_b32 s{sT2}, s{sT2}, vcc_lo")
            a(f"s_bcnt1_i32_b32 s{sT2}, s{sT2}")
            a(f"s_cmp_ge_u32 s{sT2}, s{sThr}"); a(f"s_cselect_b32 s{sT2}, 1, 0")
            a(f"v_mov_b32 v{T[0]}, s{sT2}"); a(f"ds_write_b32 v{vZ}, v{T[0]} offset:{L_CTL + 4}")
            if xctl:
                a(f"s_cmp_eq_u32 s{sLead}, 0"); a("s_cbranch_scc1 L_cchk")
                a.label("L_clead")
                a(f"v_cmp_le_u32 vcc, s{sCN}, v{T[1]}"); a(f"s_mov_b32 s{sT2}, vcc_lo")
                a(f"v_cmp_gt_u32 vcc, 256, v{T[1]}"); a(f"s_and_b32 s{sT2}, s{sT2}, vcc_lo")
                a(f"s_bcnt1_i32_b32 s{sT2}, s{sT2}")
                a(f"s_cmp_ge_u32 s{sT2}, {cmed}"); a("s_cbranch_scc0 L_cchk")
                a(f"s_mov_b32 s{sT2}, {GLOB}")
                a(f"buffer_load_dword v{T[1]}, v{vBC}, {srd(WSR)}, s{sT2} offen sc1")
                a(f"v_or_b32 v{T[2]}, s{sCN}, v{T[3]}")
                set_exec(1)
                a(f"buffer_store_dword v{T[2]}, v{vP}, {srd(WSR)}, s{sT2} offen sc1")
                set_exec(-1)
                a("s_waitcnt vmcnt(1)")
                a(f"v_xor_b32 v{T[1]}, v{T[1]}, v{T[3]}")
                a(f"v_cmp_le_u32 vcc, s{sCN}, v{T[1]}"); a(f"s_and_b32 s{sT2}, vcc_lo, 0xff")
                a(f"v_cmp_gt_u32 vcc, 256, v{T[1]}"); a(f"s_and_b32 s{sT2}, s{sT2}, vcc_lo")
                a(f"s_bcnt1_i32_b32 s{sT2}, s{sT2}")
                a(f"s_mov_b32 s{sT3}, 1")
                a(f"s_cmp_ge_u32 s{sT2}, {cthr}"); a(f"s_cselect_b32 s{sT3}, 2, s{sT3}")
                if clead >= 0:
                    a(f"s_cmp_le_u32 s{sT2}, {clead}"); a(f"s_cselect_b32 s{sT3}, 0, s{sT3}")
                a(f"v_or_b32 v{T[2]}, s{sT3}, v{T[3]}")
                set_exec(1)
                a(f"buffer_store_dword v{T[2]}, v{vPN}, {srd(WSR)}, s{sU} offen")
                set_exec(-1)
                a(f"s_add_u32 s{sCN}, s{sCN}, 1")
            a.label("L_cchk")
            a(f"s_cmp_lt_u32 s{sGI}, {NTOT - 2}"); a("s_cbranch_scc1 L_cspin")
        if nph > 1:
            a(f"s_cmp_lt_u32 s{sPub}, {nph - 1}"); a("s_cbranch_scc1 L_cspin")
        a.label("L_cdone")
        a("s_waitcnt vmcnt(0) lgkmcnt(0)")
    dump_stamps(True)
    a("s_endpgm")

    a.label("L_stream")
    vq[:] = []
    a(f"v_mul_u32_u24 v{vSA}, 384, v{T[2]}")
    a(f"v_add_u32 v{vSA}, v{vSA}, v{T[4]}")
    a(f"s_and_b32 s{sSlot}, s2, {H-1}")
    a(f"s_lshr_b32 s{sJ}, s2, {H.bit_length()-1}")
    a(f"s_lshl_b32 s{sWI}, s{sJ}, 2")
    a(f"s_add_u32 s{sWI}, s{sWI}, s{sW}")
    a(f"s_mov_b32 s{sHead}, s{sSlot}")
    a(f"s_mov_b32 s{sPh}, 0")
    a(f"s_mul_i32 s{sT0}, s{sHead}, {HB}")
    a(f"s_mul_i32 s{sOff}, s{sWI}, 3072")
    a(f"s_mov_b32 s{STR+2}, {HB}"); a(f"s_mov_b32 s{STR+3}, 0x20000")
    a("s_waitcnt lgkmcnt(0)")
    def kslot(g):
        if g < 8: return RING + 12 * ((g + 5) % 8)
        if g < 13 and g < PK: return W + 12 * (g - 8)
        if g == 13 and PK > 13: return vX
        if g == 14 and PK > 14: return vACC
        return RING + 12 * (g % 8)
    def kreg(l): return kslot(l // 3) + 4 * (l % 3)
    def stream_load(reg, t):
        a(f"buffer_load_dwordx4 {vr(reg,4)}, v{vSA}, {srd(STR)}, s{sOff} offen offset:{128*t} {pol}")
        if t == 2: a(f"s_add_u32 s{sOff}, s{sOff}, {STRIDE}")
    def issue(l):
        stream_load(kreg(l), l % 3); vq.append(f"k{l}")
    a(f"s_add_u32 s{STR}, s{pK}, s{sT0}"); a(f"s_addc_u32 s{STR+1}, s{pK+1}, 0")
    for l in range(min(early, nb)): issue(l)
    a(f"s_load_dword s{sNon}, {sp(pWS)}, {EPOCH}")
    if dbg: a(f"v_mov_b32 v{vST}, 0")
    stamp(0)
    a(f"v_mov_b32 v{vOPA}, 0"); a(f"s_mov_b32 s{sU2}, {OP}")
    masks()
    a(f"s_mov_b32 s{sPh}, 0")
    for g in range(8):
        m = 0x0101010101010101 << g
        a(f"s_mov_b32 s{sMask+2*g}, 0x{m & 0xffffffff:08x}")
        a(f"s_mov_b32 s{sMask+2*g+1}, 0x{m >> 32:08x}")
    for r in range(4): a(f"s_mov_b32 s{sSel+r}, 0x{0x07060500 | r:08x}")
    a(f"s_mov_b32 s{sSelG}, 0x0c0c0400")
    a(f"s_mov_b32 s{sPkSel}, 0x07060302")
    for r in range(1, 4):
        m = 0xffff << (16 * r)
        a(f"s_mov_b32 s{sRow+2*(r-1)}, 0x{m & 0xffffffff:08x}"); a(f"s_mov_b32 s{sRow+2*(r-1)+1}, 0x{m >> 32:08x}")
    ws_srd()
    a(f"s_and_b32 s{sT0}, s2, 7"); a(f"s_lshr_b32 s{sT1}, s2, 3")
    a(f"s_lshl_b32 s{sT2}, s{sT1}, 3"); a(f"s_add_u32 s{sRI}, s{sT2}, s{sT0}"); a(f"s_mov_b32 s{sRole}, 0")
    a(f"s_lshr_b32 s{sT2}, s{sT1}, 2"); a(f"s_lshl_b32 s{sT2}, s{sT2}, 3"); a(f"s_add_u32 s{sT2}, s{sT2}, s{sT0}"); a(f"s_lshl_b32 s{sT2}, s{sT2}, 2")
    a(f"s_and_b32 s{sT3}, s{sT1}, 3"); a(f"s_add_u32 s{sOH}, s{sT2}, s{sT3}")
    a(f"s_cmp_lt_u32 s{sT1}, 16"); a("s_cbranch_scc1 L_roled")
    a(f"s_sub_u32 s{sT2}, s{sT1}, 16"); a(f"s_mul_i32 s{sT3}, s{sT0}, 12"); a(f"s_add_u32 s{sRI}, s{sT3}, s{sT2}"); a(f"s_mov_b32 s{sRole}, 1")
    a(f"s_cmp_lt_u32 s{sT1}, 28"); a("s_cbranch_scc1 L_roled")
    a(f"s_sub_u32 s{sT2}, s{sT1}, 28"); a(f"s_lshl_b32 s{sT2}, s{sT2}, 3"); a(f"s_add_u32 s{sRI}, s{sT2}, s{sT0}"); a(f"s_mov_b32 s{sRole}, 2")
    a.label("L_roled")
    a(f"v_mov_b32 v{vZ}, 0"); a(f"v_mov_b32 v{vFL}, 0"); a(f"s_mov_b32 s{sGI}, 0"); a(f"s_mov_b32 s{sPrv}, 0")
    for l in range(nb, early):
        wait_for(f"k{l-nb}"); issue(l)
    a("s_barrier")
    for l in range(early, 3 * PK):
        if pace and l >= nb: wait_for(f"k{l-nb}")
        issue(l)
    stamp(16)
    a("s_waitcnt lgkmcnt(0)")
    a(f"s_add_u32 s{sNon}, s{sNon}, 0x9e3779b9")
    a(f"v_mov_b32 v{vN}, s{sNon}")
    a("s_barrier")
    a(f"ds_read_b32 v{T[1]}, v{vZ} offset:{L_CTL + 8}"); a("s_waitcnt lgkmcnt(0)"); a(f"v_readfirstlane_b32 s{sLoc}, v{T[1]}")
    def progress():
        if not ctl: return
        n = newlab()
        a(f"s_add_u32 s{sGI}, s{sGI}, 1")
        a(f"s_cmp_lg_u32 s{sW}, 0"); a(f"s_cbranch_scc1 L_pg{n}")
        a(f"v_mov_b32 v{T[5]}, s{sGI}"); a(f"ds_write_b32 v{vZ}, v{T[5]} offset:{L_CTL}")
        a.label(f"L_pg{n}")
    def flag_read():
        if ctl or wmix: a(f"ds_read_b32 v{vFL}, v{vZ} offset:{L_CTL + 4}")
    def load_q():
        a(f"v_and_b32 v{T[0]}, 7, v{vL}"); a(f"v_lshlrev_b32 v{T[0]}, 4, v{T[0]}")
        a(f"s_mul_i32 s{sT0}, s{sPh}, 384"); a(f"v_add_u32 v{T[0]}, s{sT0}, v{T[0]}")
        for t in range(3): a(f"ds_read_b128 {vr(vQ+4*t,4)}, v{T[0]} offset:{L_Q + 128*t}")
    load_q()

    a.label("L_kcode")
    vSC = T[6]
    def score_addr():
        a(f"v_lshlrev_b32 v{vSC}, 2, v{vL}")
        a(f"s_lshl_b32 s{sT0}, s{sW}, 12"); a(f"v_add_u32 v{vSC}, s{sT0}, v{vSC}")
    def kinit():
        score_addr()
        a(f"v_mov_b32 v{vMX}, 0xff800000"); a(f"v_mov_b32 v{vLS}, 0")
        a("s_waitcnt lgkmcnt(0)")
    def kpart(reg, g, t):
        acc = T[t]
        for i in range(4):
            src2 = "0" if i == 0 else f"v{acc}"
            a(f"v_dot2_f32_bf16 v{acc}, v{reg+i}, v{vQ+4*t+i}, {src2}")
        if t == 2:
            a0 = T[0]
            a(f"v_add_f32 v{a0}, v{a0}, v{T[1]}")
            a(f"v_add_f32 v{a0}, v{a0}, v{T[2]}")
            for m in DPP4[:3]: dpp("v_add_f32", a0, m)
            a(f"v_cndmask_b32 v{vC}, v{vC}, v{a0}, {sp(sMask+2*g)}")
    SCALE = f32hex(192 ** -0.5)
    def kfinish():
        t, u, w_ = T[0], T[1], T[2]
        rne(t, vC)
        a(f"v_mul_f32 v{t}, {SCALE}, v{t}")
        rne(t, t)
        a(f"ds_write_b32 v{vSC}, v{t} offset:{L_SC}")
        a(f"v_add_u32 v{vSC}, 256, v{vSC}")
        a(f"v_max_f32 v{u}, v{vMX}, v{t}")
        a(f"v_sub_f32 v{w_}, v{vMX}, v{u}"); a(f"v_sub_f32 v{t}, v{t}, v{u}")
        a(f"v_mul_f32 v{w_}, {f32hex(LOG2E)}, v{w_}"); a(f"v_mul_f32 v{t}, {f32hex(LOG2E)}, v{t}")
        a(f"v_exp_f32 v{w_}, v{w_}"); a(f"v_exp_f32 v{t}, v{t}")
        a(f"v_mov_b32 v{vMX}, v{u}")
        a(f"v_fma_f32 v{vLS}, v{vLS}, v{w_}, v{t}")
    kinit()
    stamp(3)
    nxt = 3 * PK
    early_left = nb
    for l in range(48):
        while nxt <= l:
            issue(nxt); nxt += 1
        wait_for(f"k{l}")
        while nxt <= l + nb:
            issue(nxt); nxt += 1
        kpart(kreg(l), (l // 3) % 8, l % 3)
        if early_left > 0 and nxt < 48 + nb and kreg(nxt) == kreg(l):
            issue(nxt); nxt += 1; early_left -= 1
        if l % 24 == 23:
            kfinish(); progress()
    assert nxt == 48 + nb, nxt
    flag_read()
    a(f"s_mov_b32 s{sIt}, 2")
    def switch_to_V():
        n = newlab()
        a(f"s_cmp_eq_u32 s{sIt}, {NIT-1}")
        a(f"s_cbranch_scc0 L_nosw{n}")
        a(f"s_mul_i32 s{sT0}, s{sHead}, {HB}")
        a(f"s_add_u32 s{STR}, s{pV}, s{sT0}"); a(f"s_addc_u32 s{STR+1}, s{pV+1}, 0")
        a(f"s_mul_i32 s{sOff}, s{sWI}, 3072")
        a.label(f"L_nosw{n}")
    def switch_to_nextK():
        n = newlab()
        a(f"s_cmp_eq_u32 s{sIt}, {NIT-1}")
        a(f"s_cbranch_scc0 L_nosw{n}")
        if nph > 1:
            a(f"s_add_u32 s{sT0}, s{sHead}, {H}")
            a(f"s_mul_i32 s{sT0}, s{sT0}, {HB}")
            a(f"s_add_u32 s{STR}, s{pK}, s{sT0}"); a(f"s_addc_u32 s{STR+1}, s{pK+1}, 0")
            a(f"s_mul_i32 s{sOff}, s{sWI}, 3072")
            a(f"s_cmp_eq_u32 s{sPh}, {nph-1}")
            a(f"s_cselect_b32 s{STR+2}, 0, {HB}")
            a(f"s_cselect_b32 s{STR}, s{pK}, s{STR}"); a(f"s_cselect_b32 s{STR+1}, s{pK+1}, s{STR+1}")
        else:
            a(f"s_mov_b32 s{STR+2}, 0")
        a.label(f"L_nosw{n}")
    def ring_load(l):
        stream_load(RING + 12 * ((l // 3) % 8) + 4 * (l % 3), l % 3)
    def controlled_loop(tag, part, switch):
        d = nx_ - nb
        if ctl or wmix:
            a("s_waitcnt lgkmcnt(0)"); a(f"v_readfirstlane_b32 s{sBst}, v{vFL}")
            if wmix:
                a(f"s_lshr_b32 s{sT0}, {wmix}, s{sW}"); a(f"s_and_b32 s{sT0}, s{sT0}, 1"); a(f"s_or_b32 s{sBst}, s{sBst}, s{sT0}")
            if not lastb:
                a(f"s_cmp_eq_u32 s{sIt}, {NIT-1}"); a(f"s_cselect_b32 s{sBst}, 0, s{sBst}")
            a(f"s_cmp_eq_u32 s{sBst}, 1"); a(f"s_cbranch_scc1 L_{tag}boost")
            a(f"s_cmp_eq_u32 s{sPrv}, 0"); a(f"s_cbranch_scc1 L_{tag}n0")
            for l in range(d):
                a(f"s_waitcnt vmcnt({nx_ - 1 - l})"); part(l)
            a(f"s_branch L_{tag}n1")
            a.label(f"L_{tag}n0")
        for l in range(d):
            a(f"s_waitcnt vmcnt({nb - 1})"); ring_load(l + nb); part(l)
        if ctl or wmix: a.label(f"L_{tag}n1")
        for l in range(d, 24):
            a(f"s_waitcnt vmcnt({nb - 1})")
            if l + nb == 24: switch()
            ring_load(l + nb)
            if l == 12: flag_read()
            part(l)
        if ctl or wmix:
            a(f"s_mov_b32 s{sPrv}, 0"); a(f"s_branch L_{tag}next")
            a.label(f"L_{tag}boost")
            a(f"s_cmp_eq_u32 s{sPrv}, 0"); a(f"s_cbranch_scc0 L_{tag}b0")
            for l in range(nb, nx_): ring_load(l)
            a.label(f"L_{tag}b0")
            for l in range(24):
                a(f"s_waitcnt vmcnt({nx_ - 1})")
                if lastb and l + nx_ == 24: switch()
                ring_load(l + nx_)
                if l == 12: flag_read()
                part(l)
            a(f"s_mov_b32 s{sPrv}, 1")
            a.label(f"L_{tag}next")
    def deepen():
        n = newlab()
        if lastb:
            a(f"s_cmp_eq_u32 s{sPrv}, 1"); a(f"s_cbranch_scc1 L_dp{n}")
        for l in range(nb, nx_): ring_load(l)
        a(f"s_mov_b32 s{sPrv}, 1")
        if lastb: a.label(f"L_dp{n}")
    assert tb or not lastb
    a.label("L_kloop")
    controlled_loop("k", lambda l: kpart(RING + 12 * (l // 3) + 4 * (l % 3), l // 3, l % 3), switch_to_V)
    kfinish(); progress()
    a(f"s_add_u32 s{sIt}, s{sIt}, 1")
    a(f"s_cmp_lt_u32 s{sIt}, {NIT}")
    a("s_cbranch_scc1 L_kloop")
    stamp(4)

    if tb:
        deepen()
    a(f"v_mov_b32 v{T[2]}, v{vMX}")
    allreduce("v_max_f32", vMX, T[0])
    a(f"v_sub_f32 v{T[2]}, v{T[2]}, v{vMX}"); a(f"v_mul_f32 v{T[2]}, {f32hex(LOG2E)}, v{T[2]}"); a(f"v_exp_f32 v{T[2]}, v{T[2]}")
    a(f"v_mul_f32 v{vLS}, v{vLS}, v{T[2]}")
    allreduce("v_add_f32", vLS, T[0])
    MLQ = vA
    a(f"v_mov_b32 v{MLQ}, v{vMX}"); a(f"v_mov_b32 v{MLQ+1}, v{vLS}"); a(f"v_mov_b32 v{MLQ+2}, 0"); a(f"v_mov_b32 v{MLQ+3}, 0")
    tag4(MLQ)
    a(f"s_lshl_b32 s{sT0}, s{sHead}, 11"); a(f"s_lshl_b32 s{sT1}, s{sWI}, 4"); a(f"s_add_u32 s{sT0}, s{sT0}, s{sT1}"); a(f"s_add_u32 s{sT0}, s{sT0}, {ML}")
    a(f"v_mov_b32 v{T[0]}, 0")
    set_exec(1)
    pub_store(vr(MLQ,4), T[0], sT0)
    set_exec(-1)
    stamp(5)
    for i in range(12): a(f"v_mov_b32 v{vACC+i}, 0")
    score_addr()
    a("s_waitcnt lgkmcnt(0)")
    a(f"ds_read_b32 v{vPN}, v{vSC} offset:{L_SC}")
    def vpart(l):
        g, t = l // 3, l % 3
        if t == 0:
            a(f"v_mov_b32_dpp v{vBC}, v{vP} row_newbcast:{g} row_mask:0xf bank_mask:0x3")
            a(f"v_mov_b32_dpp v{vBC}, v{vP} row_newbcast:{8+g} row_mask:0xf bank_mask:0xc")
            a_operand(vBC)
        a(f"v_mfma_f32_16x16x32_bf16 {vr(vACC+4*t,4)}, {vr(vA,4)}, {ring(g,t)}, {vr(vACC+4*t,4)}")
    def next_p():
        a("s_waitcnt lgkmcnt(0)")
        a(f"v_sub_f32 v{vP}, v{vPN}, v{vMX}")
        a(f"v_add_u32 v{vSC}, 256, v{vSC}")
        a(f"ds_read_b32 v{vPN}, v{vSC} offset:{L_SC}")
        a(f"v_mul_f32 v{vP}, {f32hex(LOG2E)}, v{vP}")
        a(f"v_exp_f32 v{vP}, v{vP}")
        a(f"v_cvt_pk_bf16_f32 v{vP}, v{vP}, v{vP}")
    a(f"s_mov_b32 s{sIt}, 0")
    if nph > 1:
        a(f"s_cmp_lg_u32 s{sPh}, {nph-1 if wphase is None else wphase}"); a("s_cbranch_scc1 L_vloop")
    a(f"s_cmp_eq_u32 s{sRole}, 1"); a("s_cbranch_scc1 L_wF")
    a(f"s_cmp_eq_u32 s{sRole}, 2"); a("s_cbranch_scc1 L_wR")
    a(f"s_mul_i32 s{sT0}, s{sOH}, 48"); a(f"s_mul_i32 s{sT1}, s{sW}, 12"); a(f"s_add_u32 s{sT0}, s{sT0}, s{sT1}")
    a(f"v_lshrrev_b32 v{T[0]}, 4, v{vL}"); a(f"v_add_u32 v{T[0]}, s{sT0}, v{T[0]}")
    a(f"v_mul_u32_u24 v{T[0]}, 1280, v{T[0]}")
    a(f"v_and_b32 v{T[1]}, 15, v{vL}"); a(f"v_lshlrev_b32 v{T[1]}, 4, v{T[1]}"); a(f"v_add_u32 v{T[0]}, v{T[0]}, v{T[1]}")
    a(f"v_mov_b32 v{T[1]}, s{pWO+1}")
    a(f"v_add_co_u32 v{WA}, vcc, s{pWO}, v{T[0]}"); a(f"v_addc_co_u32 v{WA+1}, vcc, 0, v{T[1]}, vcc")
    a(f"v_add_co_u32 v{WB}, vcc, 10240, v{WA}"); a(f"v_addc_co_u32 v{WB+1}, vcc, 0, v{WA+1}, vcc")
    a(f"s_mov_b32 s{sInc}, 256"); a(f"s_mov_b32 s{sInc4}, 4096")
    a("s_branch L_wdone")
    a.label("L_wF")
    a(f"v_lshrrev_b32 v{T[0]}, 2, v{vL}"); a(f"s_mul_i32 s{sT0}, s{sW}, 160"); a(f"v_add_u32 v{T[0]}, s{sT0}, v{T[0]}")
    a(f"v_mul_u32_u24 v{T[0]}, 3072, v{T[0]}")
    a(f"v_and_b32 v{T[1]}, 1, v{vL}"); a(f"v_lshlrev_b32 v{T[1]}, 4, v{T[1]}"); a(f"v_add_u32 v{T[0]}, v{T[0]}, v{T[1]}")
    a(f"s_lshl_b32 s{sT0}, s{sRI}, 5"); a(f"v_add_u32 v{T[0]}, s{sT0}, v{T[0]}")
    a(f"v_mov_b32 v{T[2]}, s{pWG}"); a(f"v_mov_b32 v{T[3]}, s{pWG+1}")
    a(f"v_mov_b32 v{T[4]}, s{pWU}"); a(f"v_mov_b32 v{T[5]}, s{pWU+1}")
    a(f"v_and_b32 v{T[1]}, 2, v{vL}"); a(f"v_cmp_ne_u32 vcc, 0, v{T[1]}")
    a(f"v_cndmask_b32 v{T[2]}, v{T[2]}, v{T[4]}, vcc"); a(f"v_cndmask_b32 v{T[3]}, v{T[3]}, v{T[5]}, vcc")
    a(f"v_add_co_u32 v{WA}, vcc, v{T[2]}, v{T[0]}"); a(f"v_addc_co_u32 v{WA+1}, vcc, 0, v{T[3]}, vcc")
    a(f"s_lshl_b32 s{sT0}, s{sRI}, 4"); a(f"s_lshl_b32 s{sT1}, s{sW}, 2"); a(f"s_add_u32 s{sT0}, s{sT0}, s{sT1}")
    a(f"v_lshrrev_b32 v{T[0]}, 4, v{vL}"); a(f"v_add_u32 v{T[0]}, s{sT0}, v{T[0]}")
    a(f"v_mul_u32_u24 v{T[0]}, 1280, v{T[0]}")
    a(f"v_and_b32 v{T[1]}, 15, v{vL}"); a(f"v_lshlrev_b32 v{T[1]}, 4, v{T[1]}"); a(f"v_add_u32 v{T[0]}, v{T[0]}, v{T[1]}")
    a(f"v_mov_b32 v{T[1]}, s{pWD+1}")
    a(f"v_add_co_u32 v{WB}, vcc, s{pWD}, v{T[0]}"); a(f"v_addc_co_u32 v{WB+1}, vcc, 0, v{T[1]}, vcc")
    a(f"s_mov_b32 s{sInc}, {16*3072}"); a(f"s_mov_b32 s{sInc4}, {16*3072}")
    a("s_branch L_wdone")
    a.label("L_wR")
    a(f"v_mov_b32 v{WA}, s{pWO}"); a(f"v_mov_b32 v{WA+1}, s{pWO+1}"); a(f"v_mov_b32 v{WB}, s{pWO}"); a(f"v_mov_b32 v{WB+1}, s{pWO+1}")
    a(f"s_mov_b32 s{sInc}, 0"); a(f"s_mov_b32 s{sInc4}, 0")
    a.label("L_wdone")
    def wload(k):
        if k < 10:
            a(f"global_load_dwordx4 {vr(W + 4*k, 4)}, {vr(WA,2)}, off {wpol}")
            if k < 9:
                a(f"v_add_co_u32 v{WA}, vcc, s{sInc4 if k == 4 else sInc}, v{WA}"); a(f"v_addc_co_u32 v{WA+1}, vcc, 0, v{WA+1}, vcc")
        else:
            a(f"global_load_dwordx4 {vr(W + 4*k, 4)}, {vr(WB,2)}, off offset:{256*(k-10)} {wpol}")
        vq.append(f"w{k}")
    vq[:] = [f"v{l}" for l in range(nx_ if tb else nb)] + ["ml"]
    for it in range(2):
        next_p()
        for l in range(24):
            n = 24 * it + l
            wait_for(f"v{n}")
            if not (tb and n + nb < nx_):
                ring_load(n + nb); vq.append(f"v{n+nb}")
            if n % 3 == 0 and n // 3 < 15: wload(n // 3)
            vpart(l)
        progress()
    flag_read()
    a(f"s_mov_b32 s{sIt}, 2"); a(f"s_mov_b32 s{sPrv}, 0")
    a.label("L_vloop")
    MLR = vX
    def ml_issue():
        a(f"s_lshl_b32 s{sT0}, s{sHead}, 11"); a(f"s_add_u32 s{sT0}, s{sT0}, {ML}")
        a(f"v_min_u32 v{T[1]}, {NWH-1}, v{vL}"); a(f"v_lshlrev_b32 v{T[1]}, 4, v{T[1]}")
        a(f"buffer_load_dwordx4 {vr(MLR,4)}, v{T[1]}, {srd(WSR)}, s{sT0} offen sc1")
        if NWH > 64:
            a(f"buffer_load_dwordx4 {vr(MLR+4,4)}, v{T[1]}, {srd(WSR)}, s{sT0} offen offset:1024 sc1")
    def ml_check():
        check4(MLR, T[0], T[2], True)
        if NWH > 64: check4(MLR + 4, T[0], T[2], False)
    a(f"s_cmp_eq_u32 s{sIt}, {NIT-2}"); a("s_cbranch_scc0 L_vh1")
    ml_issue()
    if codepf:
        a(f"s_getpc_b64 {sp(58)}")
        a.label("L_pc2")
        a(f"s_lshr_b32 s{sT3}, s2, 3"); a(f"s_lshl_b32 s{sT3}, s{sT3}, 9")
        a(f"v_and_b32 v{T[1]}, 7, v{vL}"); a(f"v_lshlrev_b32 v{T[1]}, 6, v{T[1]}"); a(f"v_add_u32 v{T[1]}, s{sT3}, v{T[1]}")
        a(f"v_add_u32 v{T[1]}, L_tailcode-L_pc2, v{T[1]}")
        a(f"v_min_u32 v{T[1]}, L_codeend-L_pc2-4, v{T[1]}")
        a(f"global_load_dword v{T[2]}, v{T[1]}, {sp(58)}")
    a.label("L_vh1")
    a(f"s_cmp_eq_u32 s{sIt}, {NIT-1}"); a("s_cbranch_scc0 L_vh2")
    a.label("L_tailcode")
    ml_check()
    a(f"s_cmp_eq_u64 {sp(sBad)}, 0"); a("s_cbranch_scc1 L_mlok")
    poll(ml_issue, ml_check)
    a.label("L_mlok")
    mm, ll = MLR, MLR + 1
    if NWH > 64: a(f"v_max_f32 v{T[0]}, v{mm}, v{MLR+4}")
    else: a(f"v_mov_b32 v{T[0]}, v{mm}")
    a(f"v_and_b32 v{T[0]}, 0xffffff00, v{T[0]}")
    allreduce("v_max_f32", T[0], T[1])
    a(f"v_and_b32 v{mm}, 0xffffff00, v{mm}"); a(f"v_and_b32 v{ll}, 0xffffff00, v{ll}")
    a(f"v_sub_f32 v{T[2]}, v{mm}, v{T[0]}"); a(f"v_mul_f32 v{T[2]}, {f32hex(LOG2E)}, v{T[2]}"); a(f"v_exp_f32 v{T[2]}, v{T[2]}")
    a(f"v_mul_f32 v{T[2]}, v{T[2]}, v{ll}")
    if NWH > 64:
        a(f"v_and_b32 v{MLR+4}, 0xffffff00, v{MLR+4}"); a(f"v_and_b32 v{MLR+5}, 0xffffff00, v{MLR+5}")
        a(f"v_sub_f32 v{T[3]}, v{MLR+4}, v{T[0]}"); a(f"v_mul_f32 v{T[3]}, {f32hex(LOG2E)}, v{T[3]}"); a(f"v_exp_f32 v{T[3]}, v{T[3]}")
        a(f"v_fmac_f32 v{T[2]}, v{T[3]}, v{MLR+5}")
    elif NWH < 64:
        a(f"v_cmp_gt_u32 vcc, {NWH}, v{vL}"); a(f"v_cndmask_b32 v{T[2]}, 0, v{T[2]}, vcc")
    allreduce("v_add_f32", T[2], T[1])
    a(f"v_sub_f32 v{T[3]}, v{vMX}, v{T[0]}"); a(f"v_mul_f32 v{T[3]}, {f32hex(LOG2E)}, v{T[3]}"); a(f"v_exp_f32 v{T[3]}, v{T[3]}")
    a(f"v_rcp_f32 v{T[2]}, v{T[2]}")
    a(f"v_mul_f32 v{vAL}, v{T[3]}, v{T[2]}")
    red_addr()
    a(f"v_mul_u32_u24 v{T[1]}, 43691, v{vL}"); a(f"v_lshrrev_b32 v{T[1]}, 19, v{T[1]}")
    a(f"v_mul_u32_u24 v{T[2]}, 12, v{T[1]}"); a(f"v_sub_u32 v{T[2]}, v{vL}, v{T[2]}")
    a(f"v_mul_u32_u24 v{T[1]}, {WPH*192}, v{T[1]}"); a(f"v_lshlrev_b32 v{T[2]}, 4, v{T[2]}"); a(f"v_add_u32 v{vOPA}, v{T[1]}, v{T[2]}")
    a(f"s_mul_i32 s{sT0}, s{sHead}, {4*WPH*192}"); a(f"s_mul_i32 s{sT1}, s{sJ}, 192"); a(f"s_add_u32 s{sT0}, s{sT0}, s{sT1}"); a(f"s_add_u32 s{sU2}, s{sT0}, {OP}")
    P = vQ
    if nph > 1:
        a(f"s_cmp_lg_u32 s{sPh}, {nph-1}"); a("s_cbranch_scc1 L_vh2")
    a(f"v_lshrrev_b32 v{T[0]}, 5, v{vL}"); a(f"v_lshlrev_b32 v{T[0]}, 8, v{T[0]}")
    a(f"v_and_b32 v{T[1]}, 7, v{vL}"); a(f"v_lshlrev_b32 v{T[1]}, 5, v{T[1]}"); a(f"v_add_u32 v{T[0]}, v{T[0]}, v{T[1]}")
    a(f"v_and_b32 v{T[1]}, 16, v{vL}"); a(f"v_add_u32 v{T[0]}, v{T[0]}, v{T[1]}")
    a(f"s_mul_i32 s{sT0}, s{sW}, 2560"); a(f"v_add_u32 v{P}, s{sT0}, v{T[0]}")
    a(f"s_mov_b32 s{sT0}, {128*128}"); a(f"s_cmp_eq_u32 s{sRole}, 1"); a(f"s_cselect_b32 s{sT0}, {96*128}, s{sT0}")
    a(f"v_lshrrev_b32 v{T[1]}, 3, v0"); a(f"v_mul_u32_u24 v{T[1]}, s{sT0}, v{T[1]}")
    a(f"v_and_b32 v{T[2]}, 7, v0"); a(f"v_lshlrev_b32 v{T[2]}, 4, v{T[2]}"); a(f"v_add_u32 v{P+1}, v{T[1]}, v{T[2]}")
    for i in range(20): a(f"v_mov_b32 v{vX+i}, 0")
    a.label("L_vh2")
    next_p()
    controlled_loop("v", vpart, switch_to_nextK)
    progress()
    a(f"s_add_u32 s{sIt}, s{sIt}, 1")
    a(f"s_cmp_lt_u32 s{sIt}, {NIT}")
    a("s_cbranch_scc1 L_vloop")

    stamp(6)
    for i in range(12): a(f"v_mul_f32 v{vACC+i}, v{vACC+i}, v{vAL}")
    if nph > 1:
        a(f"s_cmp_eq_u32 s{sPh}, {nph-1}"); a("s_cbranch_scc1 L_lastphase")
        if tb: deepen()
        def lds_wait_ge(off, sreg):
            n = newlab()
            a(f"s_mov_b32 s{sSpin}, {spin}")
            a.label(f"L_lw{n}")
            a(f"ds_read_b32 v{T[1]}, v{vZ} offset:{L_CTL + off}"); a("s_waitcnt lgkmcnt(0)"); a(f"v_readfirstlane_b32 s{sT0}, v{T[1]}")
            a(f"s_cmp_ge_u32 s{sT0}, s{sreg}"); a(f"s_cbranch_scc1 L_lk{n}")
            a(f"s_sub_u32 s{sSpin}, s{sSpin}, 1"); a(f"s_cmp_eq_u32 s{sSpin}, 0"); a("s_cbranch_scc1 L_abort")
            a(f"s_branch L_lw{n}")
            a.label(f"L_lk{n}")
        lds_wait_ge(12, sPh)
        set_exec(USEFUL)
        for t in range(3): a(f"ds_write_b128 v{vRA}, {vr(vACC+4*t,4)} offset:{L_REDH + 256*t}")
        set_exec(-1)
        a(f"s_add_u32 s{sPh}, s{sPh}, 1"); a(f"s_add_u32 s{sHead}, s{sHead}, {H}")
        a(f"s_lshl_b32 s{sT1}, s{sW}, 2"); a(f"v_mov_b32 v{T[2]}, s{sT1}"); a(f"v_mov_b32 v{T[3]}, s{sPh}")
        a("s_waitcnt lgkmcnt(0)")
        a(f"ds_write_b32 v{T[2]}, v{T[3]} offset:{L_CTL + 16}")
        a(f"s_add_u32 s{sT2}, s{sPh}, 1")
        lds_wait_ge(32, sT2)
        load_q(); kinit()
        a(f"s_mov_b32 s{sIt}, 0")
        a("s_branch L_kloop")
        a.label("L_lastphase")
    red_write()
    a("s_waitcnt lgkmcnt(0)"); a("s_barrier")
    a(f"s_cmp_lg_u32 s{sW}, 0"); a("s_cbranch_scc1 L_pubdone")
    SB = RING + 36
    a(f"v_lshlrev_b32 v{T[0]}, 4, v{vL}")
    set_exec("0x0000ffffffffffff")
    for s in range(8): a(f"ds_read_b128 {vr(SB+4*s,4)}, v{T[0]} offset:{L_RED + 768*s}")
    a("s_waitcnt lgkmcnt(4)")
    sum_quads(SB, [SB + 4, SB + 8, SB + 12])
    a("s_waitcnt lgkmcnt(0)")
    sum_quads(SB + 16, [SB + 20, SB + 24, SB + 28])
    sum_quads(SB, [SB + 16])
    tag4(SB)
    if oploc: pub_store(vr(SB,4), vOPA, sU2)
    else: a(f"buffer_store_dwordx4 {vr(SB,4)}, v{vOPA}, {srd(WSR)}, s{sU2} offen sc1")
    if stage1:
        a(f"s_and_b32 s{sT0}, s{sNon}, 0xffffff00"); a(f"s_or_b32 s{sT0}, s{sT0}, 255"); a(f"v_mov_b32 v{T[1]}, s{sT0}")
        a(f"s_and_b32 s{sT0}, s2, 7"); a(f"s_lshl_b32 s{sT0}, s{sT0}, 7"); a(f"s_lshr_b32 s{sT1}, s2, 3"); a(f"s_lshl_b32 s{sT1}, s{sT1}, 2")
        a(f"s_add_u32 s{sT0}, s{sT0}, s{sT1}"); a(f"s_add_u32 s{sT0}, s{sT0}, {PROG}")
        set_exec(1)
        a(f"buffer_store_dword v{T[1]}, v{vZ}, {srd(WSR)}, s{sT0} offen")
    set_exec(-1)
    a.label("L_pubdone")
    def class_wait():
        if not stage1: return
        n = newlab()
        a(f"s_and_b32 s{sT0}, s{sNon}, 0xffffff00"); a(f"s_or_b32 s{sT0}, s{sT0}, 255"); a(f"v_mov_b32 v{T[1]}, s{sT0}")
        a(f"s_and_b32 s{sT0}, s2, 7"); a(f"s_lshl_b32 s{sT0}, s{sT0}, 7"); a(f"s_add_u32 s{sT0}, s{sT0}, {PROG}")
        a(f"v_and_b32 v{T[0]}, 31, v{vL}"); a(f"v_lshlrev_b32 v{T[0]}, 2, v{T[0]}")
        a(f"s_mov_b32 s{sSpin}, {stage1}")
        a.label(f"L_cw{n}")
        a(f"buffer_load_dword v{T[2]}, v{T[0]}, {srd(WSR)}, s{sT0} offen sc1")
        a(f"s_sub_u32 s{sSpin}, s{sSpin}, 1"); a(f"s_cmp_eq_u32 s{sSpin}, 0"); a(f"s_cbranch_scc1 L_cwd{n}")
        a("s_waitcnt vmcnt(0)")
        a(f"v_cmp_ne_u32 vcc, v{T[2]}, v{T[1]}"); a("s_cbranch_vccnz L_cw%d" % n)
        a.label(f"L_cwd{n}")
        a("s_waitcnt vmcnt(0)")
    a.label("L_tail")
    stamp(7)
    RB = RING + 60
    a(f"s_cmp_eq_u32 s{sRole}, 1"); a("s_cbranch_scc1 L_roleF")
    a(f"s_cmp_eq_u32 s{sRole}, 2"); a("s_cbranch_scc1 L_roleR")

    def rowproj(ngroups, wbase, srcs, dstbase):
        for gi in range(ngroups):
            a_operand(srcs[gi])
            for cb in range(5):
                a(f"v_mfma_f32_16x16x32_bf16 {vr(vX+4*cb,4)}, {vr(vA,4)}, {vr(wbase + 4*(5*gi+cb),4)}, {vr(vX+4*cb,4)}")
        set_exec(USEFUL)
        for cb in range(5): a(f"ds_write_b128 v{P}, {vr(vX+4*cb,4)} offset:{L_RED2 + 512*cb}")
        set_exec(-1)
        a(f"v_lshlrev_b32 v{T[0]}, 4, v0")
        a(f"s_lshl_b32 s{sT0}, s{sRI}, 7"); a(f"s_add_u32 s{sT0}, s{sT0}, {dstbase}")
        a("s_waitcnt lgkmcnt(0)"); a("s_barrier")
        n = newlab()
        a(f"v_cmp_gt_u32 vcc, 160, v0"); a(f"s_and_saveexec_b64 {sp(sE)}, vcc"); a(f"s_cbranch_execz L_rpd{n}")
        for s in range(4): a(f"ds_read_b128 {vr(vX+4*s,4)}, v{T[0]} offset:{L_RED2 + 2560*s}")
        a("s_waitcnt lgkmcnt(0)")
        sum_quads(vX, [vX + 4]); sum_quads(vX + 8, [vX + 12]); sum_quads(vX, [vX + 8])
        tag4(vX)
        a(f"buffer_store_dwordx4 {vr(vX,4)}, v{P+1}, {srd(WSR)}, s{sT0} offen sc1")
        a.label(f"L_rpd{n}")
        a(f"s_mov_b64 exec, {sp(sE)}")

    NL = 2 if WPH == 32 else 1
    a(f"s_mul_i32 s{sT0}, s{sOH}, {WPH*192}"); a(f"s_add_u32 s{sU}, s{sT0}, {OP}")
    a(f"s_mul_i32 s{sT1}, s{sW}, 48"); a(f"s_add_u32 s{sU}, s{sU}, s{sT1}")
    a(f"v_lshrrev_b32 v{T[3]}, 2, v{vL}"); a(f"v_and_b32 v{T[3]}, {min(WPH,16)-1}, v{T[3]}"); a(f"v_mul_u32_u24 v{T[3]}, 192, v{T[3]}")
    a(f"v_and_b32 v{T[4]}, 3, v{vL}"); a(f"v_min_u32 v{T[4]}, 2, v{T[4]}"); a(f"v_lshlrev_b32 v{T[4]}, 4, v{T[4]}"); a(f"v_add_u32 v{T[3]}, v{T[3]}, v{T[4]}")
    OB = [RB + 12, RB + 20]
    def o_iss(z):
        for k in range(NL):
            a(f"buffer_load_dwordx4 {vr(OB[z]+4*k,4)}, v{T[3]}, {srd(WSR)}, s{sU} offen offset:{3072*k} sc1")
    def o_chk(z):
        for k in range(NL): check4(OB[z] + 4*k, T[0], T[1], k == 0)
    def untag(b, n):
        assert not p2
        for i in range(n): a(f"v_and_b32 v{b+i}, 0xffffff00, v{b+i}")
    def o_st1(z):
        untag(OB[z], 4 * NL)
        if NL == 2:
            a(f"v_pk_add_f32 {vr(RB,2)}, {vr(OB[z],2)}, {vr(OB[z]+4,2)}"); a(f"v_pk_add_f32 {vr(RB+2,2)}, {vr(OB[z]+2,2)}, {vr(OB[z]+6,2)}")
            for i in range(4): dpp("v_add_f32", RB + i, "row_ror:4")
        else:
            for i in range(4): a(f"v_add_f32_dpp v{RB+i}, v{OB[z]+i}, v{OB[z]+i} row_ror:4 row_mask:0xf bank_mask:0xf")
    poll2(o_iss, o_chk, NL, o_st1)
    stamp(8)
    for i in range(4): dpp("v_add_f32", RB + i, "row_ror:8")
    o4 = [("v_add_f32", RB + i) for i in range(4)]
    swap_reduce(o4, T[0:4], "v_permlane16_swap_b32")
    if WPH >= 16: swap_reduce(o4, T[0:4], "v_permlane32_swap_b32")
    for g in range(1, 4): a(f"v_cndmask_b32 v{RB}, v{RB}, v{RB+g}, {sp(sRow+2*(g-1))}")
    a(f"v_cvt_pk_bf16_f32 v{RB}, v{RB}, v{RB}")
    for gi in range(3): a(f"v_mov_b32_dpp v{RB+8+gi}, v{RB} quad_perm:[{gi},{gi},{gi},{gi}] row_mask:0xf bank_mask:0xf")
    rowproj(3, W, [RB+8, RB+9, RB+10], ZZ)
    dump_stamps()
    a("s_branch L_end")

    a.label("L_roleF")
    HQ = RB
    PK = RB + 16
    class_wait()
    a(f"v_min_u32 v{T[5]}, 39, v{vL}"); a(f"s_mul_i32 s{sT0}, s{sW}, 40"); a(f"v_add_u32 v{T[5]}, s{sT0}, v{T[5]}"); a(f"v_lshlrev_b32 v{T[5]}, 4, v{T[5]}")
    a(f"s_and_b32 s{sU}, s2, 7"); a(f"s_lshl_b32 s{sU}, s{sU}, 12"); a(f"s_add_u32 s{sU}, s{sU}, {HH}")
    HB_ = [HQ, HQ + 4]
    def f_iss(z):
        a(f"buffer_load_dwordx4 {vr(HB_[z],4)}, v{T[5]}, {srd(WSR)}, s{sU} offen sc1")
    def f_chk(z):
        check4(HB_[z], T[0], T[1], True)
    def f_st1(z):
        a(f"v_perm_b32 v{PK}, v{HB_[z]+1}, v{HB_[z]}, s{sPkSel}"); a(f"v_perm_b32 v{PK+1}, v{HB_[z]+3}, v{HB_[z]+2}, s{sPkSel}")
        for i in range(4): a(f"v_and_b32 v{HQ+12+i}, 0xffff0000, v{HB_[z]+i}")
    FA = RING + 24
    FW = RB + 22
    DA = vACC
    def f_pre():
        a(f"s_lshl_b32 s{sT0}, s{sW}, 12"); a(f"s_add_u32 s{sT0}, s{sT0}, {L_SC}")
        a(f"v_lshlrev_b32 v{FW}, 6, v{vL}"); a(f"v_add_u32 v{FW}, s{sT0}, v{FW}")
        a(f"v_mov_b32 v{T[0]}, 0"); a(f"v_mov_b32 v{T[1]}, s{sT0}")
        a(f"ds_write_b32 v{T[1]}, v{T[0]} offset:2560")
        a(f"v_lshrrev_b32 v{FW+1}, 2, v{vL}"); a(f"v_lshlrev_b32 v{FW+1}, 4, v{FW+1}")
        a(f"v_and_b32 v{T[0]}, 3, v{vL}")
        a(f"v_mov_b32 v{T[1]}, 0x08000c04"); a(f"v_lshlrev_b32 v{T[0]}, 3, v{T[0]}"); a(f"v_lshrrev_b32 v{T[1]}, v{T[0]}, v{T[1]}"); a(f"v_and_b32 v{T[1]}, 0xff, v{T[1]}")
        a(f"v_add3_u32 v{FW+1}, v{FW+1}, v{T[1]}, s{sT0}")
        a(f"v_add_u32 v{FW+2}, 1024, v{FW+1}"); a(f"v_add_u32 v{FW+3}, 2048, v{FW+1}")
        a(f"v_lshrrev_b32 v{T[0]}, 4, v{vL}"); a(f"s_lshl_b32 s{sT0}, s{sW}, 2"); a(f"v_add_u32 v{T[0]}, s{sT0}, v{T[0]}"); a(f"v_lshlrev_b32 v{T[0]}, 7, v{T[0]}")
        a(f"v_and_b32 v{T[1]}, 3, v{vL}"); a(f"v_lshlrev_b32 v{T[1]}, 5, v{T[1]}"); a(f"v_add_u32 v{FW+4}, v{T[0]}, v{T[1]}")
        a(f"v_and_b32 v{T[0]}, 31, v{vL}"); a(f"v_lshlrev_b32 v{T[0]}, 2, v{T[0]}")
        a(f"v_lshrrev_b32 v{T[1]}, 5, v{vL}"); a(f"v_lshlrev_b32 v{T[1]}, 10, v{T[1]}"); a(f"v_add_u32 v{FW+5}, v{T[0]}, v{T[1]}")
        a(f"v_lshrrev_b32 v{T[0]}, 4, v{vL}"); a(f"s_lshl_b32 s{sT0}, s{sW}, 2"); a(f"v_add_u32 v{T[0]}, s{sT0}, v{T[0]}"); a(f"v_lshlrev_b32 v{FW+6}, 2, v{T[0]}")
        for i in range(8): a(f"v_mov_b32 v{DA+i}, 0")
        a(f"v_mov_b32 v{FW+7}, 0x3f803f80")
        a(f"v_cmp_gt_u32 {sp(sE)}, 40, v{vL}")
        a(f"s_lshl_b32 s{sT0}, s{sW}, 3"); a(f"v_mov_b32 v{PK+2}, s{sT0}")
    poll2(f_iss, f_chk, 1, f_st1, pre=f_pre)
    stamp(10)
    a(f"v_cndmask_b32 v{PK}, 0, v{PK}, {sp(sE)}"); a(f"v_cndmask_b32 v{PK+1}, 0, v{PK+1}, {sp(sE)}")
    t0, t1, t2, t3, t4 = T[0:5]
    a(f"v_dot2_f32_bf16 v{t0}, v{PK}, v{FW+7}, 0"); a(f"v_dot2_f32_bf16 v{t1}, v{PK}, v{PK}, 0")
    a(f"v_dot2_f32_bf16 v{t0}, v{PK+1}, v{FW+7}, v{t0}"); a(f"v_dot2_f32_bf16 v{t1}, v{PK+1}, v{PK+1}, v{t1}")
    assert t1 == t0 + 1 and t0 % 2 == 1
    allreduce_n([("v_add_f32", t0), ("v_add_f32", t1)], [t2, t3])
    SX = vQ + 4
    a(f"v_mov_b32 v{SX}, v{t0}"); a(f"v_mov_b32 v{SX+1}, v{t1}")
    set_exec(1)
    a(f"ds_write_b64 v{PK+2}, {vr(SX,2)} offset:{L_STAT}")
    set_exec(-1)
    a("s_waitcnt lgkmcnt(0)"); a("s_barrier")
    a(f"ds_read_b128 {vr(SX,4)}, v{vZ} offset:{L_STAT}"); a(f"ds_read_b128 {vr(SX+4,4)}, v{vZ} offset:{L_STAT+16}")
    a("s_waitcnt lgkmcnt(0)")
    pkadd(SX, SX, SX + 2); pkadd(SX + 4, SX + 4, SX + 6); pkadd(SX, SX, SX + 4)
    a(f"v_mov_b32 v{t0}, v{SX}"); a(f"v_mov_b32 v{t1}, v{SX+1}")
    ln_consts(t0, t1, t2)
    a(f"v_rcp_f32 v{t4}, v{t1}")
    O4 = HQ + 12
    for i in range(4): a(f"v_sub_f32 v{O4+i}, v{O4+i}, v{t0}")
    a(f"v_cvt_pk_bf16_f32 v{t2}, v{O4}, v{O4+1}"); a(f"v_cvt_pk_bf16_f32 v{t3}, v{O4+2}, v{O4+3}")
    a(f"v_lshlrev_b32 v{O4}, 16, v{t2}"); a(f"v_and_b32 v{O4+1}, 0xffff0000, v{t2}"); a(f"v_lshlrev_b32 v{O4+2}, 16, v{t3}"); a(f"v_and_b32 v{O4+3}, 0xffff0000, v{t3}")
    for i in range(4): a(f"v_mul_f32 v{O4+i}, v{O4+i}, v{t4}")
    a(f"v_cvt_pk_bf16_f32 v{t2}, v{O4}, v{O4+1}"); a(f"v_cvt_pk_bf16_f32 v{t3}, v{O4+2}, v{O4+3}")
    PR = FA
    for r_, (src, hi) in enumerate(((t2, 0), (t2, 1), (t3, 0), (t3, 1))):
        b = PR + 4 * r_
        a(f"v_mov_b32 v{b}, 0"); a(f"v_mov_b32 v{b+2}, 0")
        if hi:
            a(f"v_lshrrev_b32 v{b+1}, 16, v{src}"); a(f"v_and_b32 v{b+3}, 0xffff0000, v{src}")
        else:
            a(f"v_and_b32 v{b+1}, 0xffff, v{src}"); a(f"v_lshlrev_b32 v{b+3}, 16, v{src}")
    set_exec("0x000000ffffffffff")
    for r_ in range(4): a(f"ds_write_b128 v{FW}, {vr(PR+4*r_,4)} offset:{16*r_}")
    set_exec(-1)
    a("s_waitcnt lgkmcnt(0)")
    for k in range(10):
        base = FW + 1 + k // 4
        a(f"ds_read2_b32 {vr(FA+2*k,2)}, v{base} offset0:{(k%4)*64} offset1:{(k%4)*64+1}")
    DB = DA + 4
    for k in range(10):
        a(f"s_waitcnt lgkmcnt({9-k})")
        a(f"v_mfma_f32_4x4x4_16b_bf16 {vr(DA,4)}, {vr(FA+2*k,2)}, {vr(W+4*k,2)}, {vr(DA,4)}")
        a(f"v_mfma_f32_4x4x4_16b_bf16 {vr(DB,4)}, {vr(FA+2*k,2)}, {vr(W+4*k+2,2)}, {vr(DB,4)}")
    for m in ("row_ror:4", "row_ror:8"):
        for i in range(8): dpp("v_add_f32", DA + i, m)
    set_exec("0x000f000f000f000f")
    a(f"ds_write_b128 v{FW+4}, {vr(DA,4)} offset:{L_RED3}")
    a(f"ds_write_b128 v{FW+4}, {vr(DB,4)} offset:{L_RED3+16}")
    set_exec(-1)
    a("s_waitcnt lgkmcnt(0)"); a("s_barrier")
    HR = FA
    for s in range(8): a(f"ds_read_b32 v{HR+s}, v{FW+5} offset:{L_RED3 + 128*s}")
    a("s_waitcnt lgkmcnt(0)")
    for s in range(0, 8, 4): pkadd(HR + s, HR + s, HR + s + 2)
    pkadd(HR, HR, HR + 4)
    a(f"v_add_f32 v{HR}, v{HR}, v{HR+1}")
    a(f"v_mov_b32 v{T[0]}, v{HR}"); a(f"v_permlane32_swap_b32 v{T[0]}, v{HR}"); a(f"v_add_f32 v{HR}, v{HR}, v{T[0]}")
    rne(HR, HR)
    a(f"v_mov_b32 v{T[0]}, v{HR}"); a(f"v_permlane16_swap_b32 v{T[0]}, v{HR}")
    a(f"v_mul_f32 v{T[1]}, {f32hex(-LOG2E)}, v{T[0]}"); a(f"v_min_f32 v{T[1]}, 0x42fc0000, v{T[1]}"); a(f"v_exp_f32 v{T[1]}, v{T[1]}")
    a(f"v_add_f32 v{T[1]}, 1.0, v{T[1]}"); a(f"v_rcp_f32 v{T[2]}, v{T[1]}")
    a(f"v_mul_f32 v{T[3]}, v{T[0]}, v{T[2]}")
    rne(T[3], T[3])
    a(f"v_mul_f32 v{T[3]}, v{T[3]}, v{HR}")
    a(f"v_cvt_pk_bf16_f32 v{T[3]}, v{T[3]}, v{T[3]}")
    a(f"ds_bpermute_b32 v{HR+1}, v{FW+6}, v{T[3]}")
    a("s_waitcnt lgkmcnt(0)")
    stamp(11)
    rowproj(1, W + 40, [HR+1], YY)
    dump_stamps()
    a("s_branch L_end")

    a.label("L_roleR")
    if wb:
        a(f"s_cmp_ge_u32 s{sRI}, 24"); a("s_cbranch_scc0 L_nowb")
        a(f"s_cmp_lg_u32 s{sW}, 0"); a("s_cbranch_scc1 L_fin")
        class_wait()
        a("buffer_wbl2 sc1"); a("s_waitcnt vmcnt(0)")
        a("s_branch L_fin")
        a.label("L_nowb")
    a(f"s_cmp_ge_u32 s{sRI}, 20"); a("s_cbranch_scc1 L_fin")
    RS = RING + 24
    RS = RING + 40
    XS = RB
    WRr = RB + 8
    HV = RB + 16
    HPK = RB + 28
    HS = vQ + 4
    SIG = vQ + 8
    def reduce_parts(base, nsrc, nld, lds, pre=None):
        a(f"s_mul_i32 s{sU}, s{sRI}, {nsrc*128}"); a(f"s_add_u32 s{sU}, s{sU}, {base}")
        a(f"v_lshlrev_b32 v{T[3]}, 4, v0")
        PB = [RS + 4, RING]
        def iss(z):
            for k in range(nld):
                a(f"s_add_u32 s{sT1}, s{sU}, {4096*k}")
                a(f"buffer_load_dwordx4 {vr(PB[z]+4*k,4)}, v{T[3]}, {srd(WSR)}, s{sT1} offen sc1")
        def chk(z):
            for k in range(nld): check4(PB[z] + 4*k, T[0], T[1], k == 0)
        def st1(z):
            b = PB[z]
            untag(b, 4 * nld)
            a(f"v_pk_add_f32 {vr(RS,2)}, {vr(b,2)}, {vr(b+4,2)}"); a(f"v_pk_add_f32 {vr(RS+2,2)}, {vr(b+2,2)}, {vr(b+6,2)}")
            for k in range(2, nld): sum_quads(RS, [b + 4*k])
        def pre2():
            if pre: pre()
            a(f"v_and_b32 v{T[4]}, 7, v{vL}"); a(f"v_lshlrev_b32 v{T[4]}, 4, v{T[4]}")
            a(f"s_lshl_b32 s{sT0}, s{sW}, 7"); a(f"v_add_u32 v{T[5]}, s{sT0}, v{T[4]}")
        poll2(iss, chk, nld, st1, pre=pre2)
        RT = vACC
        for i in range(4): dpp("v_add_f32", RS + i, "row_ror:8")
        o4 = [("v_add_f32", RS + i) for i in range(4)]
        swap_reduce(o4, [RT + i for i in range(4)], "v_permlane16_swap_b32")
        swap_reduce(o4, [RT + i for i in range(4)], "v_permlane32_swap_b32")
        set_exec("0x00000000000000ff")
        a(f"ds_write_b128 v{T[5]}, {vr(RS,4)} offset:{lds}")
        set_exec(-1)
        a("s_waitcnt lgkmcnt(0)"); a("s_barrier")
        a(f"ds_read_b128 {vr(RS,4)}, v{T[4]} offset:{lds}")
        for s in range(1, 4): a(f"ds_read_b128 {vr(RT+4*(s-1),4)}, v{T[4]} offset:{lds + 128*s}")
        a("s_waitcnt lgkmcnt(0)")
        sum_quads(RS, [RT]); sum_quads(RT + 4, [RT + 8]); sum_quads(RS, [RT + 4])
    def r_pre1():
        a(f"v_and_b32 v{T[0]}, 7, v{vL}"); a(f"v_lshlrev_b32 v{T[0]}, 3, v{T[0]}"); a(f"s_lshl_b32 s{sT0}, s{sRI}, 6"); a(f"v_add_u32 v{T[0]}, s{sT0}, v{T[0]}")
        a(f"global_load_dwordx2 {vr(XS+4,2)}, v{T[0]}, {sp(pX)}")
        a(f"v_lshlrev_b32 v{T[1]}, 3, v{vL}"); a(f"v_add_u32 v{T[2]}, 1024, v{T[1]}"); a(f"v_min_u32 v{T[2]}, 1272, v{T[2]}")
        a(f"global_load_dwordx2 {vr(WRr,2)}, v{T[1]}, {sp(pWR)}")
        a(f"global_load_dwordx2 {vr(WRr+2,2)}, v{T[1]}, {sp(pWR)} offset:512")
        a(f"global_load_dwordx2 {vr(WRr+4,2)}, v{T[2]}, {sp(pWR)}")
        a(f"v_lshrrev_b32 v{SIG+2}, 3, v{vL}"); a(f"v_lshlrev_b32 v{SIG+2}, 12, v{SIG+2}")
        a(f"v_and_b32 v{SIG+3}, 7, v{vL}"); a(f"v_lshlrev_b32 v{SIG+3}, 4, v{SIG+3}"); a(f"v_add_u32 v{SIG+2}, v{SIG+2}, v{SIG+3}")
        a(f"s_lshl_b32 s{sU2}, s{sRI}, 7"); a(f"s_add_u32 s{sU2}, s{sU2}, {HH}")
        a(f"global_load_dword v{SIG}, v{T[0]}, {sp(pOUT)}")
    class_wait()
    reduce_parts(ZZ, 128, 4, L_RED3, pre=r_pre1)
    stamp(9)
    for h in range(2):
        a(f"v_lshlrev_b32 v{XS+2*h}, 16, v{XS+4+h}"); a(f"v_and_b32 v{XS+2*h+1}, 0xffff0000, v{XS+4+h}")
    a(f"v_cvt_pk_bf16_f32 v{RS}, v{RS}, v{RS+1}"); a(f"v_cvt_pk_bf16_f32 v{RS+2}, v{RS+2}, v{RS+3}")
    a(f"v_and_b32 v{RS+1}, 0xffff0000, v{RS}"); a(f"v_lshlrev_b32 v{RS}, 16, v{RS}"); a(f"v_and_b32 v{RS+3}, 0xffff0000, v{RS+2}"); a(f"v_lshlrev_b32 v{RS+2}, 16, v{RS+2}")
    pkadd(XS, XS, RS); pkadd(XS + 2, XS + 2, RS + 2)
    a(f"v_cvt_pk_bf16_f32 v{RS}, v{XS}, v{XS+1}"); a(f"v_cvt_pk_bf16_f32 v{RS+2}, v{XS+2}, v{XS+3}")
    a(f"v_and_b32 v{XS+1}, 0xffff0000, v{RS}"); a(f"v_lshlrev_b32 v{XS}, 16, v{RS}"); a(f"v_and_b32 v{XS+3}, 0xffff0000, v{RS+2}"); a(f"v_lshlrev_b32 v{XS+2}, 16, v{RS+2}")
    for i in range(4): a(f"v_perm_b32 v{RS+i}, v{XS+i}, v{vN}, s{sSel+i}")
    a(f"s_cmp_lg_u32 s{sW}, 0"); a("s_cbranch_scc1 L_rnopub")
    a(f"buffer_store_dwordx4 {vr(RS,4)}, v{SIG+2}, {srd(WSR)}, s{sU2} offen sc1")
    a.label("L_rnopub")
    a(f"v_lshlrev_b32 v{T[3]}, 4, v{vL}")
    a(f"v_add_u32 v{T[4]}, 2048, v{T[3]}"); a(f"v_min_u32 v{T[4]}, 2544, v{T[4]}")
    a(f"s_and_b32 s{sU}, s2, 7"); a(f"s_lshl_b32 s{sU}, s{sU}, 12"); a(f"s_add_u32 s{sU}, s{sU}, {HH}")
    def r_iss():
        a(f"buffer_load_dwordx4 {vr(HV,4)}, v{T[3]}, {srd(WSR)}, s{sU} offen sc1")
        a(f"buffer_load_dwordx4 {vr(HV+4,4)}, v{T[3]}, {srd(WSR)}, s{sU} offen offset:1024 sc1")
        a(f"buffer_load_dwordx4 {vr(HV+8,4)}, v{T[4]}, {srd(WSR)}, s{sU} offen sc1")
    def r_chk():
        for k in range(3): check4(HV + 4*k, T[0], T[1], k == 0)
    poll(r_iss, r_chk)
    stamp(10)
    for i in range(12): a(f"v_and_b32 v{HV+i}, 0xffff0000, v{HV+i}")
    a(f"v_cmp_gt_u32 vcc, 32, v{vL}")
    for i in range(8, 12): a(f"v_cndmask_b32 v{HV+i}, 0, v{HV+i}, vcc")
    for k in range(6): a(f"v_perm_b32 v{HPK+k}, v{HV+2*k+1}, v{HV+2*k}, s{sPkSel}")
    layernorm_full(HV, HPK, T[0:5], False)
    a(f"v_cmp_gt_u32 vcc, 32, v{vL}")
    a(f"v_cndmask_b32 v{WRr+4}, 0, v{WRr+4}, vcc"); a(f"v_cndmask_b32 v{WRr+5}, 0, v{WRr+5}, vcc")
    a(f"v_dot2_f32_bf16 v{T[0]}, v{HPK}, v{WRr}, 0")
    for k in range(1, 6): a(f"v_dot2_f32_bf16 v{T[0]}, v{HPK+k}, v{WRr+k}, v{T[0]}")
    allreduce("v_add_f32", T[0], T[1])
    rne(T[0], T[0])
    a(f"v_mul_f32 v{T[1]}, {f32hex(-LOG2E)}, v{T[0]}"); a(f"v_min_f32 v{T[1]}, 0x42fc0000, v{T[1]}"); a(f"v_exp_f32 v{T[1]}, v{T[1]}")
    a(f"v_add_f32 v{T[1]}, 1.0, v{T[1]}"); a(f"v_rcp_f32 v{T[2]}, v{T[1]}")
    rne(SIG, T[2])
    a(f"s_lshl_b32 s{sT0}, s{sRI}, 3"); a(f"s_lshr_b32 s{sT1}, s{sT0}, 6"); a(f"s_and_b32 s{sT0}, s{sT0}, 63")
    a(f"v_and_b32 v{T[0]}, 7, v{vL}"); a(f"v_add_u32 v{T[0]}, s{sT0}, v{T[0]}"); a(f"v_lshlrev_b32 v{T[0]}, 2, v{T[0]}")
    for i in range(4): a(f"v_mov_b32 v{HS+i}, v{HV+i}")
    a(f"s_cmp_eq_u32 s{sT1}, 0"); a("s_cbranch_scc1 L_hs")
    for i in range(4): a(f"v_mov_b32 v{HS+i}, v{HV+4+i}")
    a(f"s_cmp_eq_u32 s{sT1}, 1"); a("s_cbranch_scc1 L_hs")
    for i in range(4): a(f"v_mov_b32 v{HS+i}, v{HV+8+i}")
    a.label("L_hs")
    for i in range(4): a(f"ds_bpermute_b32 v{HS+i}, v{T[0]}, v{HS+i}")
    a("s_waitcnt lgkmcnt(0)")
    stamp(11)
    def r_pre2():
        a(f"v_lshlrev_b32 v{SIG+1}, 3, v{vL}"); a(f"s_lshl_b32 s{sT0}, s{sRI}, 6"); a(f"v_add_u32 v{SIG+1}, s{sT0}, v{SIG+1}")
    reduce_parts(YY, 96, 3, L_RED2, pre=r_pre2)
    stamp(12)
    def rne4(b):
        a(f"v_cvt_pk_bf16_f32 v{b}, v{b}, v{b+1}"); a(f"v_cvt_pk_bf16_f32 v{b+2}, v{b+2}, v{b+3}")
        a(f"v_and_b32 v{b+1}, 0xffff0000, v{b}"); a(f"v_lshlrev_b32 v{b}, 16, v{b}"); a(f"v_and_b32 v{b+3}, 0xffff0000, v{b+2}"); a(f"v_lshlrev_b32 v{b+2}, 16, v{b+2}")
    rne4(RS)
    for i in range(4): a(f"v_mul_f32 v{RS+i}, v{RS+i}, v{SIG}")
    rne4(RS)
    pkadd(RS, RS, HS); pkadd(RS + 2, RS + 2, HS + 2)
    rne4(RS)
    pkadd(RS, RS, XS); pkadd(RS + 2, RS + 2, XS + 2)
    a(f"v_cvt_pk_bf16_f32 v{RS}, v{RS}, v{RS+1}"); a(f"v_cvt_pk_bf16_f32 v{RS+1}, v{RS+2}, v{RS+3}")
    a(f"s_cmp_lg_u32 s{sW}, 0"); a("s_cbranch_scc1 L_fin")
    set_exec("0x00000000000000ff")
    a(f"global_store_dwordx2 v{SIG+1}, {vr(RS,2)}, {sp(pOUT)}" + (" sc1" if outwt else ""))
    a(f"s_cmp_lg_u32 s{sRI}, 0"); a("s_cbranch_scc1 L_fin")
    set_exec(1)
    a(f"v_mov_b32 v{T[1]}, 0")
    a(f"buffer_store_dword v{vN}, v{T[1]}, {srd(WSR)}, 0 offen offset:{EPOCH}" + (" sc1" if outwt else ""))
    a.label("L_fin")
    dump_stamps()
    a.label("L_abort")
    a.label("L_end")
    a("s_endpgm")
    a.label("L_codeend")
    body = a.text()
    tail = f""".section .rodata,"a"
.p2align 6
.amdhsa_kernel {NAME}
  .amdhsa_next_free_vgpr {NV}
  .amdhsa_next_free_sgpr 100
  .amdhsa_accum_offset {NV}
  .amdhsa_group_segment_fixed_size 0
  .amdhsa_kernarg_size 104
  .amdhsa_user_sgpr_count 2
  .amdhsa_user_sgpr_kernarg_segment_ptr 1
  .amdhsa_system_sgpr_workgroup_id_x 1
.end_amdhsa_kernel
"""
    return body + tail

if __name__ == "__main__":
    kw = json.loads(sys.argv[1]) if len(sys.argv) > 1 else {}
    sys.stdout.write(gen(**kw))
```

```python
import sys, json, struct
from asmlib import Asm

NAME = "sequential_preLN__mha_block_cached__moe_arch_mod__decode_kernel"
def f32hex(x): return "0x%08x" % struct.unpack("<I", struct.pack("<f", x))[0]

HB = 12582912
EPOCH = 0
QP = 0x1000
ML = 0x48000
OP = 0x60000
ZZ = 0x130000
HH = 0x1D0000
YY = 0x181000
CLS = 0x1C0000
TT = 0x1C4000
GT = 0x1C8000
GLOB = 0x1C2000
PROG = 0x1C1000
WS_SIZE = 0x200000
L_XN = 0
L_Q = 5120
L_RED = 6656
L_RED2 = 12800
L_RED3 = 23040
L_SC = 25088
L_STAT = 2304
L_CTL = 2048
L_REDH = 25088 + 16384 + 512
LDS_BYTES = 25088 + 16384 + 512 + 6144
LOG2E = 1.4426950408889634

def gen(H=8, PK=13, ctl=1, thr=16, local=1, pace=1, wpol="nt", qpol="nt", stage1=64, nb=5, nx_=7, early=5, p2=0, stag=3, tctl=0, oploc=1, wb=0, wphase=0, tb=1, lastb=1, pfearly=1, outwt=0, donewt=0, delta=20, cpmax=24, kp=5, thrF=None, thrR=None, wmix=0, xctl=0, thr_odd=None, cthr=5, clead=1, thr_lo=10, thr_hi=32, cmed=16, lds=LDS_BYTES, dbg=0, pol="nt", spin=1 << 19, codepf=1):
    nph = 32 // H
    WPH = 256 // H
    NWH = WPH * 4
    G = 4096 // NWH
    NIT = G // 8
    STRIDE = NWH * 3072
    assert 2 <= PK <= 15 and NIT >= 4 and nb <= 9 and nx_ <= 12
    a = Asm()

    vL, vSA, vN = 1, 2, 3
    vM = [4, 5, 6, 7]; vA = 8
    vQ = 12
    vACC = 24
    vC, vMX, vP, vPN, vBC = 36, 37, 38, 39, 40
    T = list(range(41, 48))
    RING = 48
    W = 144
    vX = 204
    vLS, vAL, vRA, vOPA, WA, WB = 224, 225, 226, 227, 228, 230
    vZ, vFL = 232, 233
    NV = 240
    vST = 240
    if dbg: NV = 248
    def ring(slot, t): b = RING + slot * 12 + 4 * t; return f"v[{b}:{b+3}]"
    def vr(b, n): return f"v[{b}:{b+n-1}]"
    sW = 3
    pX, pK, pV, pWQ, pWO, pBX, pWR, pWG, pWU, pWD, pOUT, pDBG, pWS = [4 + 2 * i for i in range(13)]
    STR, WSR, TMP = 32, 36, 40
    sOff, sIt, sHead, sWI, sPh, sNon, sRole, sRI = 44, 45, 46, 47, 48, 49, 50, 51
    sSel = 52
    sSelG = 56
    sT0, sT1, sT2, sT3 = 57, 58, 59, 60
    sInc = 61
    sMask = 62
    sSlot, sJ, sInc4, sSpin = 78, 79, 80, 81
    sE = 82
    sBad = 84
    sU, sU2 = 86, 87
    sRow = 90
    sLoc, sBst, sPrv, sGI, sOH = 30, 31, 97, 98, 99
    sPkSel = 96
    def sp(b): return f"s[{b}:{b+1}]"
    def srd(b): return f"s[{b}:{b+3}]"
    USEFUL = "0xFF00FF0000FF00FF"

    def stamp(k):
        if not dbg: return
        if dbg == 3 and k not in (0, 3, 4, 6, 7, 9, 10, 12, 15): return
        if dbg == 2 and k not in (0, 15): return
        a("s_memrealtime s[88:89]"); a("s_waitcnt lgkmcnt(0)"); a(f"v_writelane_b32 v{vST}, s88, {k}")
    def dump_stamps(helper=False):
        if not dbg: return
        if dbg == 3:
            if helper: return
            n = newlab()
            stamp(15)
            a(f"s_cmp_lg_u32 s{sW}, 0"); a(f"s_cbranch_scc1 L_ds{n}")
            a("s_mov_b64 exec, -1")
            a(f"s_mov_b32 s40, s{pDBG}"); a(f"s_mov_b32 s41, s{pDBG+1}"); a("s_mov_b32 s42, 256"); a("s_mov_b32 s43, 0x20000")
            a(f"v_lshlrev_b32 v{vST+1}, 2, v{vL}")
            a(f"v_mov_b32 v{vST+2}, 0"); a(f"v_mov_b32 v{vST+3}, 0")
            for dst, src, inv in ((0,0,1),(1,3,0),(2,4,0),(3,4,1),(4,6,0),(5,6,1),(6,7,0),(7,9,0),(8,10,0),(9,12,0),(10,15,0)):
                a(f"v_readlane_b32 s88, v{vST}, {src}")
                if inv: a("s_not_b32 s88, s88")
                a("s_nop 3"); a(f"v_writelane_b32 v{vST+2}, s88, {dst}")
            a(f"v_readlane_b32 s89, v{vST}, 0")
            for dst, src in ((11,6),(12,4),(13,3)):
                a(f"v_readlane_b32 s88, v{vST}, {src}"); a("s_nop 3"); a("s_sub_u32 s88, s88, s89"); a("s_nop 3"); a(f"v_writelane_b32 v{vST+3}, s88, {dst}")
            a("s_mov_b64 exec, 0x7ff")
            a(f"buffer_atomic_umax v{vST+2}, v{vST+1}, s[40:43], 0 offen")
            a("s_mov_b64 exec, 0x3800")
            a(f"buffer_atomic_add v{vST+3}, v{vST+1}, s[40:43], 0 offen")
            a.label(f"L_ds{n}")
            return
        stamp(15)
        a("s_mov_b32 exec_lo, -1"); a("s_mov_b32 exec_hi, 0")
        if helper: a("s_add_u32 s88, s2, 1024")
        else: a(f"s_lshl_b32 s88, s2, 2"); a(f"s_add_u32 s88, s88, s{sW}")
        a("s_lshl_b32 s88, s88, 7"); a(f"s_add_u32 s88, s88, {WS_SIZE}")
        a(f"v_lshlrev_b32 v{vST+1}, 2, v{vL}")
        a(f"buffer_store_dword v{vST}, v{vST+1}, {srd(WSR)}, s88 offen")

    DPP4 = ("quad_perm:[1,0,3,2]", "quad_perm:[2,3,0,1]", "row_half_mirror", "row_mirror")
    def dpp(op, v, m): a(f"{op}_dpp v{v}, v{v}, v{v} {m} row_mask:0xf bank_mask:0xf")
    def swap_reduce(ops_vs, tmps, sw):
        for (op, v), t in zip(ops_vs, tmps): a(f"v_mov_b32 v{t}, v{v}")
        for (op, v), t in zip(ops_vs, tmps): a(f"{sw} v{t}, v{v}")
        for (op, v), t in zip(ops_vs, tmps): a(f"{op} v{v}, v{v}, v{t}")
    def allreduce_n(ops_vs, tmps):
        for m in DPP4:
            for op, v in ops_vs: dpp(op, v, m)
        swap_reduce(ops_vs, tmps, "v_permlane16_swap_b32")
        swap_reduce(ops_vs, tmps, "v_permlane32_swap_b32")
    def allreduce(op, v, t): allreduce_n([(op, v)], [t])
    def set_exec(val):
        if isinstance(val, str) and val.startswith("0x") and len(val) > 10:
            a(f"s_mov_b32 exec_lo, 0x{val[-8:]}"); a(f"s_mov_b32 exec_hi, 0x{val[2:-8]}")
        else:
            a(f"s_mov_b64 exec, {val}")
    def a_operand(src, dst=None):
        dst = vA if dst is None else dst
        for r in range(4): a(f"v_and_b32 v{dst+r}, v{src}, v{vM[r]}")
    def tag4(b):
        for r in range(4): a(f"v_perm_b32 v{b+r}, v{b+r}, v{vN}, s{sSel+r}")
    def check4(b, t0, t1, first):
        a(f"v_perm_b32 v{t0}, v{b+1}, v{b}, s{sSelG}")
        a(f"v_perm_b32 v{t1}, v{b+3}, v{b+2}, s{sSelG}")
        a(f"v_lshl_or_b32 v{t0}, v{t1}, 16, v{t0}")
        a(f"v_cmp_ne_u32 vcc, v{t0}, v{vN}")
        if first: a(f"s_mov_b64 {sp(sBad)}, vcc")
        else: a(f"s_or_b64 {sp(sBad)}, {sp(sBad)}, vcc")
    lab = [0]
    def newlab():
        lab[0] += 1; return lab[0]
    def poll(issue, check, pre=None, first_issued=False, first_wait=0):
        n = newlab()
        a(f"s_mov_b32 s{sSpin}, {spin}")
        if not first_issued: issue()
        if pre: pre()
        a(f"s_waitcnt vmcnt({first_wait})")
        a(f"s_branch L_pollchk{n}")
        a.label(f"L_poll{n}")
        a(f"s_sub_u32 s{sSpin}, s{sSpin}, 1")
        a(f"s_cmp_eq_u32 s{sSpin}, 0")
        a("s_cbranch_scc1 L_abort")
        issue()
        a("s_waitcnt vmcnt(0)")
        a.label(f"L_pollchk{n}")
        check()
        a(f"s_cmp_lg_u64 {sp(sBad)}, 0")
        a(f"s_cbranch_scc1 L_poll{n}")
    def poll2(issue, check, nld, stage1, pre=None):
        if not p2:
            poll(lambda: issue(0), lambda: check(0), pre=pre); stage1(0); return
        n = newlab()
        a(f"s_mov_b32 s{sSpin}, {spin}")
        issue(0)
        if pre: pre()
        if stag: a(f"s_sleep {stag}")
        issue(1)
        a.label(f"L_p2{n}")
        a(f"s_waitcnt vmcnt({nld})")
        check(0)
        a(f"s_cmp_eq_u64 {sp(sBad)}, 0"); a(f"s_cbranch_scc1 L_p2a{n}")
        issue(0)
        a(f"s_waitcnt vmcnt({nld})")
        check(1)
        a(f"s_cmp_eq_u64 {sp(sBad)}, 0"); a(f"s_cbranch_scc1 L_p2b{n}")
        issue(1)
        a(f"s_sub_u32 s{sSpin}, s{sSpin}, 1"); a(f"s_cmp_eq_u32 s{sSpin}, 0"); a("s_cbranch_scc1 L_abort")
        a(f"s_branch L_p2{n}")
        a.label(f"L_p2b{n}")
        stage1(1)
        a(f"s_branch L_p2j{n}")
        a.label(f"L_p2a{n}")
        stage1(0)
        a.label(f"L_p2j{n}")
    def pub_store(data, voff, soff):
        n = newlab()
        if local:
            a(f"s_cmp_eq_u32 s{sLoc}, 1"); a(f"s_cbranch_scc1 L_pl{n}")
        a(f"buffer_store_dwordx4 {data}, v{voff}, {srd(WSR)}, s{soff} offen sc1")
        if local:
            a(f"s_branch L_pd{n}")
            a.label(f"L_pl{n}")
            a(f"buffer_store_dwordx4 {data}, v{voff}, {srd(WSR)}, s{soff} offen")
            a.label(f"L_pd{n}")
    def rne(dst, src):
        a(f"v_cvt_pk_bf16_f32 v{dst}, v{src}, v{src}")
        a(f"v_lshlrev_b32 v{dst}, 16, v{dst}")
    def pkadd(d, x, y): a(f"v_pk_add_f32 {vr(d,2)}, {vr(x,2)}, {vr(y,2)}")
    def sum_quads(dst, srcs):
        for s in srcs:
            pkadd(dst, dst, s); pkadd(dst + 2, dst + 2, s + 2)

    def ln_consts(s1, s2, t):
        a(f"v_mul_f32 v{s1}, {f32hex(1.0/640)}, v{s1}")
        a(f"v_mul_f32 v{s2}, {f32hex(1.0/640)}, v{s2}")
        a(f"v_fma_f32 v{s2}, -v{s1}, v{s1}, v{s2}")
        a(f"v_max_f32 v{s2}, 0, v{s2}")
        rne(s2, s2)
        a(f"v_add_f32 v{s2}, {f32hex(1e-5)}, v{s2}")
        rne(s2, s2)
        rne(s1, s1)
        a(f"v_sqrt_f32 v{s2}, v{s2}")
        rne(s2, s2)

    def layernorm_full(val, pk, tmp, refine):
        t0, t1, t2, t3, t4 = tmp
        ONES = t4
        a(f"v_mov_b32 v{ONES}, 0x3f803f80")
        a(f"v_dot2_f32_bf16 v{t0}, v{pk}, v{ONES}, 0"); a(f"v_dot2_f32_bf16 v{t1}, v{pk}, v{pk}, 0")
        for i in range(1, 6):
            a(f"v_dot2_f32_bf16 v{t0}, v{pk+i}, v{ONES}, v{t0}"); a(f"v_dot2_f32_bf16 v{t1}, v{pk+i}, v{pk+i}, v{t1}")
        allreduce_n([("v_add_f32", t0), ("v_add_f32", t1)], [t2, t3])
        ln_consts(t0, t1, t2)
        a(f"v_rcp_f32 v{t4}, v{t1}")
        for i in range(0, 12, 2):
            a(f"v_sub_f32 v{val+i}, v{val+i}, v{t0}")
            a(f"v_sub_f32 v{val+i+1}, v{val+i+1}, v{t0}")
            a(f"v_cvt_pk_bf16_f32 v{t2}, v{val+i}, v{val+i+1}")
            a(f"v_lshlrev_b32 v{val+i}, 16, v{t2}")
            a(f"v_and_b32 v{val+i+1}, 0xffff0000, v{t2}")
            for k in (i, i + 1):
                if refine:
                    a(f"v_mul_f32 v{t2}, v{val+k}, v{t4}")
                    a(f"v_fma_f32 v{t3}, -v{t2}, v{t1}, v{val+k}")
                    a(f"v_fma_f32 v{val+k}, v{t3}, v{t4}, v{t2}")
                else:
                    a(f"v_mul_f32 v{val+k}, v{val+k}, v{t4}")
            a(f"v_cvt_pk_bf16_f32 v{pk + i//2}, v{val+i}, v{val+i+1}")
            a(f"v_lshlrev_b32 v{val+i}, 16, v{pk + i//2}")
            a(f"v_and_b32 v{val+i+1}, 0xffff0000, v{pk + i//2}")

    a.lines.append(f"; @launch grid=(256,1,1) block=(320,1,1) lds={lds}")
    a.lines.append('.amdgcn_target "amdgcn-amd-amdhsa--gfx950"')
    a.lines += [".text", f".globl {NAME}", ".p2align 8", f".type {NAME},@function"]
    a.label(NAME)
    a("s_cmp_ge_u32 s2, 256")
    a("s_cbranch_scc1 L_end")
    a("s_load_dwordx16 s[4:19], s[0:1], 0")
    a("s_load_dwordx8 s[20:27], s[0:1], 64")
    a("s_load_dwordx2 s[28:29], s[0:1], 96")
    a(f"v_and_b32 v{vL}, 63, v0")
    a(f"v_lshrrev_b32 v{T[0]}, 6, v0")
    a(f"v_lshrrev_b32 v{T[2]}, 3, v{vL}")
    a(f"v_readfirstlane_b32 s{sW}, v{T[0]}")
    a(f"v_and_b32 v{T[3]}, 7, v{vL}")
    a(f"v_lshlrev_b32 v{T[4]}, 4, v{T[3]}")
    def masks():
        for r in range(4):
            a(f"v_mov_b32 v{vM[r]}, 0")
            a(f"v_mov_b32 v{T[5]}, 0xffff")
            a(f"v_cmp_eq_u32 vcc, {2*r}, v{T[3]}")
            a(f"v_cndmask_b32 v{vM[r]}, v{vM[r]}, v{T[5]}, vcc")
            a(f"v_mov_b32 v{T[5]}, 0xffff0000")
            a(f"v_cmp_eq_u32 vcc, {2*r+1}, v{T[3]}")
            a(f"v_cndmask_b32 v{vM[r]}, v{vM[r]}, v{T[5]}, vcc")
    def ws_srd():
        a(f"s_mov_b32 s{WSR}, s{pWS}"); a(f"s_mov_b32 s{WSR+1}, s{pWS+1}"); a(f"s_mov_b32 s{WSR+2}, {WS_SIZE * (2 if dbg else 1)}"); a(f"s_mov_b32 s{WSR+3}, 0x20000")
    vq = []
    def wait_for(name):
        if name not in vq: return
        idx = max(i for i, n in enumerate(vq) if n == name)
        n = len(vq) - 1 - idx
        a(f"s_waitcnt vmcnt({min(n, 63)})")
        del vq[:idx + 1]
    def red_addr():
        a(f"v_lshrrev_b32 v{T[0]}, 5, v{vL}")
        a(f"v_mul_u32_u24 v{vRA}, 768, v{T[0]}")
        a(f"v_and_b32 v{T[0]}, 7, v{vL}"); a(f"v_lshlrev_b32 v{T[0]}, 5, v{T[0]}"); a(f"v_add_u32 v{vRA}, v{vRA}, v{T[0]}")
        a(f"v_and_b32 v{T[0]}, 16, v{vL}"); a(f"v_add_u32 v{vRA}, v{vRA}, v{T[0]}")
        a(f"s_mul_i32 s{sT0}, s{sW}, 1536"); a(f"v_add_u32 v{vRA}, s{sT0}, v{vRA}")
    def red_write():
        set_exec(USEFUL)
        for t in range(3): a(f"ds_write_b128 v{vRA}, {vr(vACC+4*t,4)} offset:{L_RED + 256*t}")
        set_exec(-1)
    a(f"s_cmp_lg_u32 s{sW}, 4"); a("s_cbranch_scc1 L_stream")
    a("s_setprio 3")

    WD = RING
    XQ = 168
    XV = 176
    XR = 188
    a(f"s_and_b32 s{sT0}, s2, 31"); a(f"s_lshr_b32 s{sT1}, s2, 5")
    a(f"v_mul_u32_u24 v{T[6]}, 12288, v{T[2]}")
    a(f"s_mul_i32 s{sT2}, s{sT0}, 384")
    a(f"v_add3_u32 v{T[6]}, v{T[6]}, v{T[4]}, s{sT2}")
    a(f"s_mul_i32 s{sT3}, s{sT1}, {80*12288}")
    a(f"v_lshlrev_b32 v{T[1]}, 3, v{vL}")
    a(f"v_add_u32 v{T[5]}, 1024, v{T[1]}")
    a(f"v_min_u32 v{T[5]}, 1272, v{T[5]}")
    a(f"s_mov_b32 s{TMP+2}, 7864320"); a(f"s_mov_b32 s{TMP+3}, 0x20000")
    a("s_waitcnt lgkmcnt(0)")
    a(f"s_mov_b32 s{TMP}, s{pWQ}"); a(f"s_mov_b32 s{TMP+1}, s{pWQ+1}")
    a(f"global_load_dwordx2 {vr(XQ,2)}, v{T[1]}, {sp(pX)}")
    a(f"global_load_dwordx2 {vr(XQ+2,2)}, v{T[1]}, {sp(pX)} offset:512")
    a(f"global_load_dwordx2 {vr(XQ+4,2)}, v{T[5]}, {sp(pX)}")
    vq += ["x0", "x1", "x2"]
    for k in range(10):
        for t in range(3):
            a(f"buffer_load_dwordx4 {vr(WD + 12*k + 4*t, 4)}, v{T[6]}, {srd(TMP)}, s{sT3} offen offset:{128*t} {qpol}")
            vq.append(f"wq{k}")
        if k < 9: a(f"s_add_u32 s{sT3}, s{sT3}, {8*12288}")
    a("s_barrier")
    if codepf and pfearly:
        a(f"s_getpc_b64 {sp(58)}")
        a.label("L_pc")
        a(f"s_lshr_b32 s{sT3}, s2, 3"); a(f"s_lshl_b32 s{sT3}, s{sT3}, 9")
        a(f"v_and_b32 v{T[0]}, 7, v{vL}"); a(f"v_lshlrev_b32 v{T[0]}, 6, v{T[0]}"); a(f"v_add_u32 v{T[0]}, s{sT3}, v{T[0]}")
        a(f"v_add_u32 v{T[0]}, L_kcode-L_pc, v{T[0]}")
        a(f"v_min_u32 v{T[0]}, L_codeend-L_pc-4, v{T[0]}")
        a(f"global_load_dword v{vAL}, v{T[0]}, {sp(58)}")
        vq.append("pf")
    a(f"v_mov_b32 v{vZ}, 0")
    for o in range(0, 36, 4): a(f"ds_write_b32 v{vZ}, v{vZ} offset:{L_CTL + o}")
    a(f"s_load_dword s{sNon}, {sp(pWS)}, {EPOCH}")
    if dbg: a(f"v_mov_b32 v{vST}, 0")
    stamp(0)
    masks()
    ws_srd()
    a(f"s_and_b32 s{sSlot}, s2, {H-1}")
    wait_for("x2")
    stamp(18)
    CE = 198
    a("s_waitcnt lgkmcnt(0)")
    a(f"s_add_u32 s{sNon}, s{sNon}, 0x9e3779b9")
    a(f"v_mov_b32 v{vN}, s{sNon}")
    a(f"s_getreg_b32 s{sT0}, hwreg(HW_REG_XCC_ID, 0, 4)")
    a(f"s_and_b32 s{sRole}, s{sT0}, 1")
    a(f"s_and_b32 s{sT1}, s{sNon}, 0xfffffff0"); a(f"s_or_b32 s{sT0}, s{sT0}, s{sT1}")
    a(f"v_mov_b32 v{CE}, s{sT0}")
    a(f"s_and_b32 s{sU2}, s2, 7"); a(f"s_lshl_b32 s{sU2}, s{sU2}, 7")
    a(f"s_lshr_b32 s{sT1}, s2, 3"); a(f"s_lshl_b32 s{sT1}, s{sT1}, 2"); a(f"s_add_u32 s{sT1}, s{sT1}, s{sU2}"); a(f"s_add_u32 s{sT1}, s{sT1}, {CLS}")
    if local:
        set_exec(1)
        a(f"buffer_store_dword v{CE}, v{vZ}, {srd(WSR)}, s{sT1} offen")
        set_exec(-1)
        vq.append("cls_st")
    a(f"v_cmp_gt_u32 vcc, 32, v{vL}")
    a(f"v_cndmask_b32 v{XQ+4}, 0, v{XQ+4}, vcc"); a(f"v_cndmask_b32 v{XQ+5}, 0, v{XQ+5}, vcc")
    for k in range(6):
        a(f"v_lshlrev_b32 v{XV+2*k}, 16, v{XQ+k}")
        a(f"v_and_b32 v{XV+2*k+1}, 0xffff0000, v{XQ+k}")
    layernorm_full(XV, XQ, T[0:5], True)
    a(f"v_lshlrev_b32 v{T[0]}, 3, v{vL}")
    a(f"ds_write_b64 v{T[0]}, {vr(XQ,2)} offset:{L_XN}")
    a(f"ds_write_b64 v{T[0]}, {vr(XQ+2,2)} offset:{L_XN+512}")
    set_exec("0x00000000ffffffff")
    a(f"ds_write_b64 v{T[0]}, {vr(XQ+4,2)} offset:{L_XN+1024}")
    set_exec(-1)
    a(f"s_lshr_b32 s{sT1}, s2, 5"); a(f"s_mul_i32 s{sT1}, s{sT1}, 160")
    a(f"v_lshrrev_b32 v{T[0]}, 3, v{vL}"); a(f"v_lshlrev_b32 v{T[0]}, 1, v{T[0]}"); a(f"v_add_u32 v{T[0]}, s{sT1}, v{T[0]}")
    a("s_waitcnt lgkmcnt(0)")
    for k in range(10): a(f"ds_read_u16 v{XR+k}, v{T[0]} offset:{L_XN + 16*k}")
    for i in range(12): a(f"v_mov_b32 v{vACC+i}, 0")
    a("s_waitcnt lgkmcnt(0)")
    for k in range(10): a(f"v_lshl_or_b32 v{XR+k}, v{XR+k}, 16, v{XR+k}")
    stamp(1)
    def cls_issue():
        a(f"v_and_b32 v{T[5]}, 31, v{vL}"); a(f"v_lshlrev_b32 v{T[5]}, 2, v{T[5]}")
        a(f"s_add_u32 s{sT2}, s{sU2}, {CLS}")
        a(f"buffer_load_dword v{CE+1}, v{T[5]}, {srd(WSR)}, s{sT2} offen sc1")
    for k in range(10):
        a_operand(XR + k)
        if k == 8 and local:
            cls_issue(); vq.append("cls_ld")
        wait_for(f"wq{k}")
        for t in range(3):
            a(f"v_mfma_f32_16x16x32_bf16 {vr(vACC+4*t,4)}, {vr(vA,4)}, {vr(WD+12*k+4*t,4)}, {vr(vACC+4*t,4)}")
    a(f"v_lshrrev_b32 v{T[0]}, 5, v{vL}"); a(f"v_mul_u32_u24 v{vRA}, 768, v{T[0]}")
    a(f"v_and_b32 v{T[0]}, 7, v{vL}"); a(f"v_lshlrev_b32 v{T[0]}, 5, v{T[0]}"); a(f"v_add_u32 v{vRA}, v{vRA}, v{T[0]}")
    a(f"v_and_b32 v{T[0]}, 16, v{vL}"); a(f"v_add_u32 v{vRA}, v{vRA}, v{T[0]}")
    a(f"v_mul_u32_u24 v{T[0]}, 12, v{vL}")
    a(f"s_and_b32 s{sT0}, s2, 31"); a(f"s_lshr_b32 s{sT1}, s2, 5"); a(f"s_lshl_b32 s{sT0}, s{sT0}, 3"); a(f"s_add_u32 s{sT0}, s{sT0}, s{sT1}")
    a(f"s_lshl_b32 s{sT0}, s{sT0}, 10"); a(f"s_add_u32 s{sT0}, s{sT0}, {QP}")
    a(f"v_lshlrev_b32 v{T[1]}, 4, v{vL}")
    red_write()
    a("s_waitcnt lgkmcnt(0)")
    S3 = 200
    for s in range(2):
        for i in range(3): a(f"ds_read_b32 v{S3+4*s+i}, v{T[0]} offset:{L_RED + 768*s + 4*i}")
    a("s_waitcnt lgkmcnt(0)")
    pkadd(S3, S3, S3 + 4); a(f"v_add_f32 v{S3+2}, v{S3+2}, v{S3+6}")
    a(f"v_mov_b32 v{S3+3}, v{vN}")
    a(f"s_mov_b32 s{sLoc}, 0")
    if local:
        a(f"s_mov_b32 s{sSpin}, 8")
        a("s_waitcnt vmcnt(0)")
        a.label("L_clschk")
        a(f"v_cmp_ne_u32 vcc, v{CE+1}, v{CE}")
        a(f"s_cmp_eq_u64 vcc, 0"); a(f"s_cselect_b32 s{sLoc}, 1, 0"); a("s_cbranch_scc1 L_clsdone")
        a(f"s_sub_u32 s{sSpin}, s{sSpin}, 1"); a(f"s_cmp_eq_u32 s{sSpin}, 0"); a("s_cbranch_scc1 L_clsdone")
        cls_issue(); a("s_waitcnt vmcnt(0)"); a("s_branch L_clschk")
        a.label("L_clsdone")
    pub_store(vr(S3,4), T[1], sT0)
    a(f"v_mov_b32 v{T[2]}, s{sLoc}"); a(f"ds_write_b32 v{vZ}, v{T[2]} offset:{L_CTL + 8}")
    stamp(21)
    S4 = RING
    for p in range(nph):
        a(f"s_add_u32 s{sU}, s{sSlot}, {H*p}"); a(f"s_lshl_b32 s{sU}, s{sU}, 13"); a(f"s_add_u32 s{sU}, s{sU}, {QP}")
        def iss():
            for s in range(8):
                a(f"s_add_u32 s{sT1}, s{sU}, {1024*s}")
                a(f"buffer_load_dwordx4 {vr(S4+4*s,4)}, v{T[1]}, {srd(WSR)}, s{sT1} offen sc1")
        def chk():
            for s in range(8):
                a(f"v_cmp_ne_u32 vcc, v{S4+4*s+3}, v{vN}")
                a(f"s_mov_b64 {sp(sBad)}, vcc" if s == 0 else f"s_or_b64 {sp(sBad)}, {sp(sBad)}, vcc")
        poll(iss, chk)
        if p == 0: stamp(22)
        for s in range(1, 8):
            pkadd(S4, S4, S4 + 4*s); a(f"v_add_f32 v{S4+2}, v{S4+2}, v{S4+4*s+2}")
        a(f"v_cvt_pk_bf16_f32 v{S4}, v{S4}, v{S4+1}")
        a(f"v_cvt_pk_bf16_f32 v{S4+2}, v{S4+2}, v{S4+2}")
        a(f"v_mul_u32_u24 v{T[0]}, 6, v{vL}")
        a(f"ds_write_b16 v{T[0]}, v{S4} offset:{L_Q + 384*p}")
        a(f"ds_write_b16_d16_hi v{T[0]}, v{S4} offset:{L_Q + 384*p + 2}")
        a(f"ds_write_b16 v{T[0]}, v{S4+2} offset:{L_Q + 384*p + 4}")
        a("s_waitcnt lgkmcnt(0)")
        if nph > 1:
            a(f"v_mov_b32 v{T[0]}, {p+1}"); a(f"ds_write_b32 v{vZ}, v{T[0]} offset:{L_CTL + 32}"); a("s_waitcnt lgkmcnt(0)")
        if p == 0:
            a("s_barrier")
            if codepf and not pfearly:
                a(f"s_getpc_b64 {sp(58)}")
                a.label("L_pc")
                a(f"s_lshr_b32 s{sT3}, s2, 3"); a(f"s_lshl_b32 s{sT3}, s{sT3}, 9")
                a(f"v_and_b32 v{T[0]}, 7, v{vL}"); a(f"v_lshlrev_b32 v{T[0]}, 6, v{T[0]}"); a(f"v_add_u32 v{T[0]}, s{sT3}, v{T[0]}")
                a(f"v_add_u32 v{T[0]}, L_kcode-L_pc, v{T[0]}")
                a(f"v_min_u32 v{T[0]}, L_codeend-L_pc-4, v{T[0]}")
                a(f"global_load_dword v{vAL}, v{T[0]}, {sp(58)}")
    if ctl or nph > 1:
        NTOT = 2 * NIT * nph
        sPub = sPh
        HBUF = RING
        a(f"s_and_b32 s{sT0}, s{sNon}, 0xffffff00"); a(f"v_mov_b32 v{T[3]}, s{sT0}")
        a(f"s_add_u32 s{sU}, s{sU2}, {PROG}")
        a(f"v_lshlrev_b32 v{T[4]}, 2, v{vL}"); a(f"v_mov_b32 v{T[5]}, 0x800"); a(f"v_cmp_gt_u32 vcc, 32, v{vL}"); a(f"v_cndmask_b32 v{T[4]}, v{T[5]}, v{T[4]}, vcc")
        a(f"s_lshr_b32 s{sT1}, s2, 3"); a(f"s_lshl_b32 s{sT1}, s{sT1}, 2"); a(f"v_mov_b32 v{T[5]}, s{sT1}")
        sCN, sLead, sThr = sWI, sOff, sIt
        a(f"s_mov_b32 s{sCN}, 1"); a(f"s_cmp_lt_u32 s2, 8"); a(f"s_cselect_b32 s{sLead}, 1, 0")
        a(f"v_lshlrev_b32 v{vBC}, 8, v{vL}"); a(f"v_min_u32 v{vBC}, {7*256}, v{vBC}")
        a(f"s_and_b32 s{sT2}, s2, 7"); a(f"s_lshl_b32 s{sT2}, s{sT2}, 8"); a(f"v_mov_b32 v{vP}, s{sT2}")
        a(f"v_mov_b32 v{vPN}, 0x800")
        sA, sAp, sAn, sTau, sHave, sK, sLcp, sTn = 62, 63, 64, 65, 66, 67, 68, 70
        if tctl:
            a(f"s_mov_b32 s{sLcp}, 4"); a(f"s_mov_b32 s{sK}, 4"); a(f"s_mov_b32 s{sHave}, 0")
            a(f"s_mov_b32 s{sA}, 0"); a(f"s_mov_b32 s{sAp}, 0"); a(f"s_mov_b32 s{sAn}, 0"); a(f"s_mov_b32 s{sTau}, 0")
            a(f"s_and_b32 s{sT2}, s2, 7"); a(f"s_lshl_b32 s{sT2}, s{sT2}, 8")
            a(f"v_and_b32 v{vBC}, 31, v{vL}"); a(f"v_lshlrev_b32 v{vBC}, 3, v{vBC}"); a(f"v_add_u32 v{vBC}, s{sT2}, v{vBC}")
            a(f"s_lshr_b32 s{sT3}, s2, 3"); a(f"s_lshl_b32 s{sT3}, s{sT3}, 3"); a(f"s_add_u32 s{sT3}, s{sT3}, s{sT2}"); a(f"v_mov_b32 v{vP}, s{sT3}")
            a(f"v_min_u32 v{vPN}, 7, v{vL}"); a(f"v_lshlrev_b32 v{vPN}, 8, v{vPN}")
            a(f"v_mov_b32 v{vC}, s{sT2}")
        a(f"s_mov_b32 s{sGI}, 0"); a(f"s_mov_b32 s{sSpin}, {1 << 22}"); a(f"s_mov_b32 s{sPub}, 0")
        if nph > 1:
            for r in range(4): a(f"s_mov_b32 s{sSel+r}, 0x{0x07060500 | r:08x}")
            a(f"s_lshr_b32 s{sJ}, s2, {H.bit_length()-1}")
            a(f"v_mul_u32_u24 v{T[1]}, 43691, v{vL}"); a(f"v_lshrrev_b32 v{T[1]}, 19, v{T[1]}")
            a(f"v_mul_u32_u24 v{T[2]}, 12, v{T[1]}"); a(f"v_sub_u32 v{T[2]}, v{vL}, v{T[2]}")
            a(f"v_mul_u32_u24 v{T[1]}, {WPH*192}, v{T[1]}"); a(f"v_lshlrev_b32 v{T[2]}, 4, v{T[2]}"); a(f"v_add_u32 v{vOPA}, v{T[1]}, v{T[2]}")
            a(f"v_lshlrev_b32 v{vRA}, 4, v{vL}")
        a.label("L_cspin")
        a("s_sleep 4")
        a(f"ds_read_b32 v{T[0]}, v{vZ} offset:{L_CTL}")
        if nph > 1: a(f"ds_read_b128 {vr(vA,4)}, v{vZ} offset:{L_CTL + 16}")
        a("s_waitcnt lgkmcnt(0)"); a(f"v_readfirstlane_b32 s{sT0}, v{T[0]}")
        a(f"s_sub_u32 s{sSpin}, s{sSpin}, 1"); a(f"s_cmp_eq_u32 s{sSpin}, 0"); a("s_cbranch_scc1 L_cdone")
        if nph > 1:
            a(f"v_min_u32 v{vA}, v{vA}, v{vA+1}"); a(f"v_min_u32 v{vA+2}, v{vA+2}, v{vA+3}"); a(f"v_min_u32 v{vA}, v{vA}, v{vA+2}")
            a(f"v_readfirstlane_b32 s{sT1}, v{vA}")
            a(f"s_cmp_gt_u32 s{sT1}, s{sPub}"); a("s_cbranch_scc0 L_cnopub")
            set_exec("0x0000ffffffffffff")
            for s_ in range(8): a(f"ds_read_b128 {vr(HBUF+4*s_,4)}, v{vRA} offset:{L_REDH + 768*s_}")
            a("s_waitcnt lgkmcnt(0)")
            a(f"s_add_u32 s{sT1}, s{sPub}, 1"); a(f"v_mov_b32 v{T[1]}, s{sT1}"); a(f"ds_write_b32 v{vZ}, v{T[1]} offset:{L_CTL + 12}")
            sum_quads(HBUF, [HBUF + 4*k for k in range(1, 8)])
            tag4(HBUF)
            a(f"s_mul_i32 s{sT2}, s{sPub}, {H}"); a(f"s_add_u32 s{sT2}, s{sT2}, s{sSlot}")
            a(f"s_mul_i32 s{sT2}, s{sT2}, {4*WPH*192}"); a(f"s_mul_i32 s{sT3}, s{sJ}, 192"); a(f"s_add_u32 s{sT2}, s{sT2}, s{sT3}"); a(f"s_add_u32 s{sT2}, s{sT2}, {OP}")
            pub_store(vr(HBUF,4), vOPA, sT2)
            set_exec(-1)
            a(f"s_mov_b32 s{sPub}, s{sT1}")
            a.label("L_cnopub")
        if ctl and tctl:
            a(f"s_cmp_eq_u32 s{sLead}, 0"); a("s_cbranch_scc1 L_tnolead")
            a(f"s_cmp_gt_u32 s{sLcp}, {cpmax}"); a("s_cbranch_scc1 L_tnolead")
            a(f"s_cmp_gt_u32 s{sLcp}, s{sGI}"); a("s_cbranch_scc1 L_tnolead")
            a(f"s_lshl_b32 s72, s{sLcp}, 9"); a(f"s_add_u32 s72, s72, {TT - 2048}")
            a(f"buffer_load_dwordx2 {vr(vA,2)}, v{vBC}, {srd(WSR)}, s72 offen sc1")
            a("s_waitcnt vmcnt(0)")
            a(f"v_cmp_eq_u32 vcc, v{vA+1}, v{vN}"); a("s_cmp_eq_u32 vcc_lo, -1"); a("s_cbranch_scc0 L_tnolead")
            a(f"v_readlane_b32 s73, v{vA}, 0"); a("s_nop 1")
            a(f"v_subrev_u32 v{vA}, s73, v{vA}")
            allreduce("v_add_u32", vA, vA + 2)
            a(f"v_readfirstlane_b32 s74, v{vA}"); a("s_nop 1")
            a("s_ashr_i32 s74, s74, 6"); a("s_add_u32 s73, s73, s74")
            a(f"v_mov_b32 v{vA}, s73"); a(f"v_mov_b32 v{vA+1}, v{vN}")
            a(f"s_lshl_b32 s72, s{sLcp}, 9"); a(f"s_add_u32 s72, s72, {GT - 2048}")
            set_exec(1)
            a(f"buffer_store_dwordx2 {vr(vA,2)}, v{vC}, {srd(WSR)}, s72 offen sc1")
            set_exec(-1)
            a(f"s_add_u32 s{sLcp}, s{sLcp}, 4")
            a.label("L_tnolead")
        if ctl:
            a(f"s_cmp_lg_u32 s{sT0}, s{sGI}"); a("s_cbranch_scc1 L_cchg")
            if xctl:
                a(f"s_cmp_eq_u32 s{sLead}, 0"); a("s_cbranch_scc1 L_cchk")
                a(f"buffer_load_dword v{T[1]}, v{T[4]}, {srd(WSR)}, s{sU} offen sc1")
                a("s_waitcnt vmcnt(0)")
                a(f"v_xor_b32 v{T[1]}, v{T[1]}, v{T[3]}")
                a("s_branch L_clead")
            else:
                a("s_branch L_cchk")
            a.label("L_cchg")
            a(f"s_mov_b32 s{sGI}, s{sT0}")
            if tctl:
                a(f"s_memrealtime {sp(sTn)}"); a("s_waitcnt lgkmcnt(0)")
                a(f"s_and_b32 s72, s{sGI}, 3"); a("s_cmp_eq_u32 s72, 0"); a("s_cbranch_scc0 L_tnocp")
                a(f"s_cmp_gt_u32 s{sGI}, {cpmax}"); a("s_cbranch_scc1 L_tnocp")
                a(f"s_lshl_b32 s72, s{sGI}, 9"); a(f"s_add_u32 s72, s72, {TT - 2048}")
                a(f"v_mov_b32 v{vA}, s{sTn}"); a(f"v_mov_b32 v{vA+1}, v{vN}")
                set_exec(1)
                a(f"buffer_store_dwordx2 {vr(vA,2)}, v{vP}, {srd(WSR)}, s72 offen")
                set_exec(-1)
                a.label("L_tnocp")
                a(f"s_cmp_gt_u32 s{sK}, {cpmax}"); a("s_cbranch_scc1 L_tnoget")
                a(f"s_cmp_le_u32 s{sGI}, s{sK}"); a("s_cbranch_scc1 L_tnoget")
                a(f"s_lshl_b32 s72, s{sK}, 9"); a(f"s_add_u32 s72, s72, {GT - 2048}")
                a(f"buffer_load_dwordx2 {vr(vA,2)}, v{vPN}, {srd(WSR)}, s72 offen sc1")
                a("s_waitcnt vmcnt(0)")
                a(f"v_cmp_eq_u32 vcc, v{vA+1}, v{vN}"); a("s_and_b32 s72, vcc_lo, 0xff"); a("s_cmp_eq_u32 s72, 0xff"); a("s_cbranch_scc0 L_tnoget")
                a(f"s_and_b32 s75, s2, 7"); a(f"v_readlane_b32 s73, v{vA}, 0"); a("s_nop 3"); a(f"v_readlane_b32 s75, v{vA}, s75"); a("s_nop 1")
                a(f"v_subrev_u32 v{vA}, s73, v{vA}")
                a(f"v_cmp_gt_u32 vcc, 8, v{vL}"); a(f"v_cndmask_b32 v{vA}, 0, v{vA}, vcc")
                allreduce("v_add_u32", vA, vA + 2)
                a(f"v_readfirstlane_b32 s74, v{vA}"); a("s_nop 1")
                a("s_ashr_i32 s74, s74, 3"); a("s_add_u32 s73, s73, s74")
                if tctl == 2:
                    a("s_sub_i32 s75, s75, s73"); a(f"s_mul_i32 s75, s75, {kp}"); a("s_ashr_i32 s75, s75, 6"); a(f"s_sub_i32 s{sTau}, 0, s75")
                    a(f"s_add_u32 s{sK}, s{sK}, 4")
                    a("s_branch L_tnoget")
                a(f"s_cmp_eq_u32 s{sK}, 4"); a("s_cbranch_scc1 L_tfirst")
                a(f"s_sub_u32 s{sTau}, s73, s{sAp}"); a(f"s_lshr_b32 s{sTau}, s{sTau}, 2"); a(f"s_mov_b32 s{sHave}, 1")
                a.label("L_tfirst")
                a(f"s_mov_b32 s{sAp}, s73"); a(f"s_mov_b32 s{sA}, s73"); a(f"s_mov_b32 s{sAn}, s{sK}"); a(f"s_add_u32 s{sK}, s{sK}, 4")
                a.label("L_tnoget")
                if tctl == 2: a("s_branch L_trank")
                a(f"s_cmp_eq_u32 s{sHave}, 0"); a("s_cbranch_scc1 L_trank")
                a(f"s_sub_u32 s72, s{sGI}, s{sAn}"); a(f"s_mul_i32 s72, s72, s{sTau}"); a(f"s_add_u32 s72, s72, s{sA}")
                a(f"s_sub_u32 s72, s{sTn}, s72")
                a(f"s_cmp_gt_i32 s72, {delta}"); a(f"s_cselect_b32 s72, 1, 0")
                a(f"v_mov_b32 v{T[0]}, s72"); a(f"ds_write_b32 v{vZ}, v{T[0]} offset:{L_CTL + 4}")
                a("s_branch L_cchk")
                a.label("L_trank")
            a(f"buffer_load_dword v{T[1]}, v{T[4]}, {srd(WSR)}, s{sU} offen sc1")
            a(f"v_or_b32 v{T[2]}, s{sGI}, v{T[3]}")
            set_exec(1)
            a(f"buffer_store_dword v{T[2]}, v{T[5]}, {srd(WSR)}, s{sU} offen")
            set_exec(-1)
            a("s_waitcnt vmcnt(1)")
            a(f"v_xor_b32 v{T[1]}, v{T[1]}, v{T[3]}")
            a(f"s_mov_b32 s{sThr}, {thr}")
            if thrF is not None:
                a(f"s_lshr_b32 s{sT3}, s2, 3"); a(f"s_sub_u32 s{sT3}, s{sT3}, 16"); a(f"s_cmp_lt_u32 s{sT3}, 12"); a(f"s_cselect_b32 s{sThr}, {thrF}, s{sThr}")
            if thrR is not None:
                a(f"s_lshr_b32 s{sT3}, s2, 3"); a(f"s_cmp_ge_u32 s{sT3}, 28"); a(f"s_cselect_b32 s{sThr}, {thrR}, s{sThr}")
            if thr_odd is not None:
                a(f"s_cmp_eq_u32 s{sRole}, 1"); a(f"s_cselect_b32 s{sThr}, {thr_odd}, s{sThr}")
            if tctl == 2:
                a(f"s_add_i32 s{sThr}, s{sThr}, s{sTau}"); a(f"s_max_i32 s{sThr}, s{sThr}, 3"); a(f"s_min_i32 s{sThr}, s{sThr}, 32")
            if xctl:
                a(f"v_readlane_b32 s{sT3}, v{T[1]}, 32")
                a("s_nop 1")
                a(f"s_cmp_eq_u32 s{sT3}, 2"); a(f"s_cselect_b32 s{sThr}, {thr_lo}, s{sThr}")
                a(f"s_cmp_eq_u32 s{sT3}, 0"); a(f"s_cselect_b32 s{sThr}, {thr_hi}, s{sThr}")
            a(f"v_cmp_le_u32 vcc, s{sGI}, v{T[1]}"); a(f"s_mov_b32 s{sT2}, vcc_lo")
            a(f"v_cmp_gt_u32 vcc, 256, v{T[1]}"); a(f"s_and_b32 s{sT2}, s{sT2}, vcc_lo")
            a(f"s_bcnt1_i32_b32 s{sT2}, s{sT2}")
            a(f"s_cmp_ge_u32 s{sT2}, s{sThr}"); a(f"s_cselect_b32 s{sT2}, 1, 0")
            a(f"v_mov_b32 v{T[0]}, s{sT2}"); a(f"ds_write_b32 v{vZ}, v{T[0]} offset:{L_CTL + 4}")
            if xctl:
                a(f"s_cmp_eq_u32 s{sLead}, 0"); a("s_cbranch_scc1 L_cchk")
                a.label("L_clead")
                a(f"v_cmp_le_u32 vcc, s{sCN}, v{T[1]}"); a(f"s_mov_b32 s{sT2}, vcc_lo")
                a(f"v_cmp_gt_u32 vcc, 256, v{T[1]}"); a(f"s_and_b32 s{sT2}, s{sT2}, vcc_lo")
                a(f"s_bcnt1_i32_b32 s{sT2}, s{sT2}")
                a(f"s_cmp_ge_u32 s{sT2}, {cmed}"); a("s_cbranch_scc0 L_cchk")
                a(f"s_mov_b32 s{sT2}, {GLOB}")
                a(f"buffer_load_dword v{T[1]}, v{vBC}, {srd(WSR)}, s{sT2} offen sc1")
                a(f"v_or_b32 v{T[2]}, s{sCN}, v{T[3]}")
                set_exec(1)
                a(f"buffer_store_dword v{T[2]}, v{vP}, {srd(WSR)}, s{sT2} offen sc1")
                set_exec(-1)
                a("s_waitcnt vmcnt(1)")
                a(f"v_xor_b32 v{T[1]}, v{T[1]}, v{T[3]}")
                a(f"v_cmp_le_u32 vcc, s{sCN}, v{T[1]}"); a(f"s_and_b32 s{sT2}, vcc_lo, 0xff")
                a(f"v_cmp_gt_u32 vcc, 256, v{T[1]}"); a(f"s_and_b32 s{sT2}, s{sT2}, vcc_lo")
                a(f"s_bcnt1_i32_b32 s{sT2}, s{sT2}")
                a(f"s_mov_b32 s{sT3}, 1")
                a(f"s_cmp_ge_u32 s{sT2}, {cthr}"); a(f"s_cselect_b32 s{sT3}, 2, s{sT3}")
                if clead >= 0:
                    a(f"s_cmp_le_u32 s{sT2}, {clead}"); a(f"s_cselect_b32 s{sT3}, 0, s{sT3}")
                a(f"v_or_b32 v{T[2]}, s{sT3}, v{T[3]}")
                set_exec(1)
                a(f"buffer_store_dword v{T[2]}, v{vPN}, {srd(WSR)}, s{sU} offen")
                set_exec(-1)
                a(f"s_add_u32 s{sCN}, s{sCN}, 1")
            a.label("L_cchk")
            a(f"s_cmp_lt_u32 s{sGI}, {NTOT - 2}"); a("s_cbranch_scc1 L_cspin")
        if nph > 1:
            a(f"s_cmp_lt_u32 s{sPub}, {nph - 1}"); a("s_cbranch_scc1 L_cspin")
        a.label("L_cdone")
        a("s_waitcnt vmcnt(0) lgkmcnt(0)")
    dump_stamps(True)
    a("s_endpgm")

    a.label("L_stream")
    vq[:] = []
    a(f"v_mul_u32_u24 v{vSA}, 384, v{T[2]}")
    a(f"v_add_u32 v{vSA}, v{vSA}, v{T[4]}")
    a(f"s_and_b32 s{sSlot}, s2, {H-1}")
    a(f"s_lshr_b32 s{sJ}, s2, {H.bit_length()-1}")
    a(f"s_lshl_b32 s{sWI}, s{sJ}, 2")
    a(f"s_add_u32 s{sWI}, s{sWI}, s{sW}")
    a(f"s_mov_b32 s{sHead}, s{sSlot}")
    a(f"s_mov_b32 s{sPh}, 0")
    a(f"s_mul_i32 s{sT0}, s{sHead}, {HB}")
    a(f"s_mul_i32 s{sOff}, s{sWI}, 3072")
    a(f"s_mov_b32 s{STR+2}, {HB}"); a(f"s_mov_b32 s{STR+3}, 0x20000")
    a("s_waitcnt lgkmcnt(0)")
    def kslot(g):
        if g < 8: return RING + 12 * ((g + 5) % 8)
        if g < 13 and g < PK: return W + 12 * (g - 8)
        if g == 13 and PK > 13: return vX
        if g == 14 and PK > 14: return vACC
        return RING + 12 * (g % 8)
    def kreg(l): return kslot(l // 3) + 4 * (l % 3)
    def stream_load(reg, t):
        a(f"buffer_load_dwordx4 {vr(reg,4)}, v{vSA}, {srd(STR)}, s{sOff} offen offset:{128*t} {pol}")
        if t == 2: a(f"s_add_u32 s{sOff}, s{sOff}, {STRIDE}")
    def issue(l):
        stream_load(kreg(l), l % 3); vq.append(f"k{l}")
    a(f"s_add_u32 s{STR}, s{pK}, s{sT0}"); a(f"s_addc_u32 s{STR+1}, s{pK+1}, 0")
    for l in range(min(early, nb)): issue(l)
    a(f"s_load_dword s{sNon}, {sp(pWS)}, {EPOCH}")
    if dbg: a(f"v_mov_b32 v{vST}, 0")
    stamp(0)
    a(f"v_mov_b32 v{vOPA}, 0"); a(f"s_mov_b32 s{sU2}, {OP}")
    masks()
    a(f"s_mov_b32 s{sPh}, 0")
    for g in range(8):
        m = 0x0101010101010101 << g
        a(f"s_mov_b32 s{sMask+2*g}, 0x{m & 0xffffffff:08x}")
        a(f"s_mov_b32 s{sMask+2*g+1}, 0x{m >> 32:08x}")
    for r in range(4): a(f"s_mov_b32 s{sSel+r}, 0x{0x07060500 | r:08x}")
    a(f"s_mov_b32 s{sSelG}, 0x0c0c0400")
    a(f"s_mov_b32 s{sPkSel}, 0x07060302")
    for r in range(1, 4):
        m = 0xffff << (16 * r)
        a(f"s_mov_b32 s{sRow+2*(r-1)}, 0x{m & 0xffffffff:08x}"); a(f"s_mov_b32 s{sRow+2*(r-1)+1}, 0x{m >> 32:08x}")
    ws_srd()
    a(f"s_and_b32 s{sT0}, s2, 7"); a(f"s_lshr_b32 s{sT1}, s2, 3")
    a(f"s_lshl_b32 s{sT2}, s{sT1}, 3"); a(f"s_add_u32 s{sRI}, s{sT2}, s{sT0}"); a(f"s_mov_b32 s{sRole}, 0")
    a(f"s_lshr_b32 s{sT2}, s{sT1}, 2"); a(f"s_lshl_b32 s{sT2}, s{sT2}, 3"); a(f"s_add_u32 s{sT2}, s{sT2}, s{sT0}"); a(f"s_lshl_b32 s{sT2}, s{sT2}, 2")
    a(f"s_and_b32 s{sT3}, s{sT1}, 3"); a(f"s_add_u32 s{sOH}, s{sT2}, s{sT3}")
    a(f"s_cmp_lt_u32 s{sT1}, 16"); a("s_cbranch_scc1 L_roled")
    a(f"s_sub_u32 s{sT2}, s{sT1}, 16"); a(f"s_mul_i32 s{sT3}, s{sT0}, 12"); a(f"s_add_u32 s{sRI}, s{sT3}, s{sT2}"); a(f"s_mov_b32 s{sRole}, 1")
    a(f"s_cmp_lt_u32 s{sT1}, 28"); a("s_cbranch_scc1 L_roled")
    a(f"s_sub_u32 s{sT2}, s{sT1}, 28"); a(f"s_lshl_b32 s{sT2}, s{sT2}, 3"); a(f"s_add_u32 s{sRI}, s{sT2}, s{sT0}"); a(f"s_mov_b32 s{sRole}, 2")
    a.label("L_roled")
    a(f"v_mov_b32 v{vZ}, 0"); a(f"v_mov_b32 v{vFL}, 0"); a(f"s_mov_b32 s{sGI}, 0"); a(f"s_mov_b32 s{sPrv}, 0")
    for l in range(nb, early):
        wait_for(f"k{l-nb}"); issue(l)
    a("s_barrier")
    for l in range(early, 3 * PK):
        if pace and l >= nb: wait_for(f"k{l-nb}")
        issue(l)
    stamp(16)
    a("s_waitcnt lgkmcnt(0)")
    a(f"s_add_u32 s{sNon}, s{sNon}, 0x9e3779b9")
    a(f"v_mov_b32 v{vN}, s{sNon}")
    a("s_barrier")
    a(f"ds_read_b32 v{T[1]}, v{vZ} offset:{L_CTL + 8}"); a("s_waitcnt lgkmcnt(0)"); a(f"v_readfirstlane_b32 s{sLoc}, v{T[1]}")
    def progress():
        if not ctl: return
        n = newlab()
        a(f"s_add_u32 s{sGI}, s{sGI}, 1")
        a(f"s_cmp_lg_u32 s{sW}, 0"); a(f"s_cbranch_scc1 L_pg{n}")
        a(f"v_mov_b32 v{T[5]}, s{sGI}"); a(f"ds_write_b32 v{vZ}, v{T[5]} offset:{L_CTL}")
        a.label(f"L_pg{n}")
    def flag_read():
        if ctl or wmix: a(f"ds_read_b32 v{vFL}, v{vZ} offset:{L_CTL + 4}")
    def load_q():
        a(f"v_and_b32 v{T[0]}, 7, v{vL}"); a(f"v_lshlrev_b32 v{T[0]}, 4, v{T[0]}")
        a(f"s_mul_i32 s{sT0}, s{sPh}, 384"); a(f"v_add_u32 v{T[0]}, s{sT0}, v{T[0]}")
        for t in range(3): a(f"ds_read_b128 {vr(vQ+4*t,4)}, v{T[0]} offset:{L_Q + 128*t}")
    load_q()

    a.label("L_kcode")
    vSC = T[6]
    def score_addr():
        a(f"v_lshlrev_b32 v{vSC}, 2, v{vL}")
        a(f"s_lshl_b32 s{sT0}, s{sW}, 12"); a(f"v_add_u32 v{vSC}, s{sT0}, v{vSC}")
    def kinit():
        score_addr()
        a(f"v_mov_b32 v{vMX}, 0xff800000"); a(f"v_mov_b32 v{vLS}, 0")
        a("s_waitcnt lgkmcnt(0)")
    def kpart(reg, g, t):
        acc = T[t]
        for i in range(4):
            src2 = "0" if i == 0 else f"v{acc}"
            a(f"v_dot2_f32_bf16 v{acc}, v{reg+i}, v{vQ+4*t+i}, {src2}")
        if t == 2:
            a0 = T[0]
            a(f"v_add_f32 v{a0}, v{a0}, v{T[1]}")
            a(f"v_add_f32 v{a0}, v{a0}, v{T[2]}")
            for m in DPP4[:3]: dpp("v_add_f32", a0, m)
            a(f"v_cndmask_b32 v{vC}, v{vC}, v{a0}, {sp(sMask+2*g)}")
    SCALE = f32hex(192 ** -0.5)
    def kfinish():
        t, u, w_ = T[0], T[1], T[2]
        rne(t, vC)
        a(f"v_mul_f32 v{t}, {SCALE}, v{t}")
        rne(t, t)
        a(f"ds_write_b32 v{vSC}, v{t} offset:{L_SC}")
        a(f"v_add_u32 v{vSC}, 256, v{vSC}")
        a(f"v_max_f32 v{u}, v{vMX}, v{t}")
        a(f"v_sub_f32 v{w_}, v{vMX}, v{u}"); a(f"v_sub_f32 v{t}, v{t}, v{u}")
        a(f"v_mul_f32 v{w_}, {f32hex(LOG2E)}, v{w_}"); a(f"v_mul_f32 v{t}, {f32hex(LOG2E)}, v{t}")
        a(f"v_exp_f32 v{w_}, v{w_}"); a(f"v_exp_f32 v{t}, v{t}")
        a(f"v_mov_b32 v{vMX}, v{u}")
        a(f"v_fma_f32 v{vLS}, v{vLS}, v{w_}, v{t}")
    kinit()
    stamp(3)
    nxt = 3 * PK
    early_left = nb
    for l in range(48):
        while nxt <= l:
            issue(nxt); nxt += 1
        wait_for(f"k{l}")
        while nxt <= l + nb:
            issue(nxt); nxt += 1
        kpart(kreg(l), (l // 3) % 8, l % 3)
        if early_left > 0 and nxt < 48 + nb and kreg(nxt) == kreg(l):
            issue(nxt); nxt += 1; early_left -= 1
        if l % 24 == 23:
            kfinish(); progress()
    assert nxt == 48 + nb, nxt
    flag_read()
    a(f"s_mov_b32 s{sIt}, 2")
    def switch_to_V():
        n = newlab()
        a(f"s_cmp_eq_u32 s{sIt}, {NIT-1}")
        a(f"s_cbranch_scc0 L_nosw{n}")
        a(f"s_mul_i32 s{sT0}, s{sHead}, {HB}")
        a(f"s_add_u32 s{STR}, s{pV}, s{sT0}"); a(f"s_addc_u32 s{STR+1}, s{pV+1}, 0")
        a(f"s_mul_i32 s{sOff}, s{sWI}, 3072")
        a.label(f"L_nosw{n}")
    def switch_to_nextK():
        n = newlab()
        a(f"s_cmp_eq_u32 s{sIt}, {NIT-1}")
        a(f"s_cbranch_scc0 L_nosw{n}")
        if nph > 1:
            a(f"s_add_u32 s{sT0}, s{sHead}, {H}")
            a(f"s_mul_i32 s{sT0}, s{sT0}, {HB}")
            a(f"s_add_u32 s{STR}, s{pK}, s{sT0}"); a(f"s_addc_u32 s{STR+1}, s{pK+1}, 0")
            a(f"s_mul_i32 s{sOff}, s{sWI}, 3072")
            a(f"s_cmp_eq_u32 s{sPh}, {nph-1}")
            a(f"s_cselect_b32 s{STR+2}, 0, {HB}")
            a(f"s_cselect_b32 s{STR}, s{pK}, s{STR}"); a(f"s_cselect_b32 s{STR+1}, s{pK+1}, s{STR+1}")
        else:
            a(f"s_mov_b32 s{STR+2}, 0")
        a.label(f"L_nosw{n}")
    def ring_load(l):
        stream_load(RING + 12 * ((l // 3) % 8) + 4 * (l % 3), l % 3)
    def controlled_loop(tag, part, switch):
        d = nx_ - nb
        if ctl or wmix:
            a("s_waitcnt lgkmcnt(0)"); a(f"v_readfirstlane_b32 s{sBst}, v{vFL}")
            if wmix:
                a(f"s_lshr_b32 s{sT0}, {wmix}, s{sW}"); a(f"s_and_b32 s{sT0}, s{sT0}, 1"); a(f"s_or_b32 s{sBst}, s{sBst}, s{sT0}")
            if not lastb:
                a(f"s_cmp_eq_u32 s{sIt}, {NIT-1}"); a(f"s_cselect_b32 s{sBst}, 0, s{sBst}")
            a(f"s_cmp_eq_u32 s{sBst}, 1"); a(f"s_cbranch_scc1 L_{tag}boost")
            a(f"s_cmp_eq_u32 s{sPrv}, 0"); a(f"s_cbranch_scc1 L_{tag}n0")
            for l in range(d):
                a(f"s_waitcnt vmcnt({nx_ - 1 - l})"); part(l)
            a(f"s_branch L_{tag}n1")
            a.label(f"L_{tag}n0")
        for l in range(d):
            a(f"s_waitcnt vmcnt({nb - 1})"); ring_load(l + nb); part(l)
        if ctl or wmix: a.label(f"L_{tag}n1")
        for l in range(d, 24):
            a(f"s_waitcnt vmcnt({nb - 1})")
            if l + nb == 24: switch()
            ring_load(l + nb)
            if l == 12: flag_read()
            part(l)
        if ctl or wmix:
            a(f"s_mov_b32 s{sPrv}, 0"); a(f"s_branch L_{tag}next")
            a.label(f"L_{tag}boost")
            a(f"s_cmp_eq_u32 s{sPrv}, 0"); a(f"s_cbranch_scc0 L_{tag}b0")
            for l in range(nb, nx_): ring_load(l)
            a.label(f"L_{tag}b0")
            for l in range(24):
                a(f"s_waitcnt vmcnt({nx_ - 1})")
                if lastb and l + nx_ == 24: switch()
                ring_load(l + nx_)
                if l == 12: flag_read()
                part(l)
            a(f"s_mov_b32 s{sPrv}, 1")
            a.label(f"L_{tag}next")
    def deepen():
        n = newlab()
        if lastb:
            a(f"s_cmp_eq_u32 s{sPrv}, 1"); a(f"s_cbranch_scc1 L_dp{n}")
        for l in range(nb, nx_): ring_load(l)
        a(f"s_mov_b32 s{sPrv}, 1")
        if lastb: a.label(f"L_dp{n}")
    assert tb or not lastb
    a.label("L_kloop")
    controlled_loop("k", lambda l: kpart(RING + 12 * (l // 3) + 4 * (l % 3), l // 3, l % 3), switch_to_V)
    kfinish(); progress()
    a(f"s_add_u32 s{sIt}, s{sIt}, 1")
    a(f"s_cmp_lt_u32 s{sIt}, {NIT}")
    a("s_cbranch_scc1 L_kloop")
    stamp(4)

    if tb:
        deepen()
    a(f"v_mov_b32 v{T[2]}, v{vMX}")
    allreduce("v_max_f32", vMX, T[0])
    a(f"v_sub_f32 v{T[2]}, v{T[2]}, v{vMX}"); a(f"v_mul_f32 v{T[2]}, {f32hex(LOG2E)}, v{T[2]}"); a(f"v_exp_f32 v{T[2]}, v{T[2]}")
    a(f"v_mul_f32 v{vLS}, v{vLS}, v{T[2]}")
    allreduce("v_add_f32", vLS, T[0])
    MLQ = vA
    a(f"v_mov_b32 v{MLQ}, v{vMX}"); a(f"v_mov_b32 v{MLQ+1}, v{vLS}"); a(f"v_mov_b32 v{MLQ+2}, 0"); a(f"v_mov_b32 v{MLQ+3}, 0")
    tag4(MLQ)
    a(f"s_lshl_b32 s{sT0}, s{sHead}, 11"); a(f"s_lshl_b32 s{sT1}, s{sWI}, 4"); a(f"s_add_u32 s{sT0}, s{sT0}, s{sT1}"); a(f"s_add_u32 s{sT0}, s{sT0}, {ML}")
    a(f"v_mov_b32 v{T[0]}, 0")
    set_exec(1)
    pub_store(vr(MLQ,4), T[0], sT0)
    set_exec(-1)
    stamp(5)
    for i in range(12): a(f"v_mov_b32 v{vACC+i}, 0")
    score_addr()
    a("s_waitcnt lgkmcnt(0)")
    a(f"ds_read_b32 v{vPN}, v{vSC} offset:{L_SC}")
    def vpart(l):
        g, t = l // 3, l % 3
        if t == 0:
            a(f"v_mov_b32_dpp v{vBC}, v{vP} row_newbcast:{g} row_mask:0xf bank_mask:0x3")
            a(f"v_mov_b32_dpp v{vBC}, v{vP} row_newbcast:{8+g} row_mask:0xf bank_mask:0xc")
            a_operand(vBC)
        a(f"v_mfma_f32_16x16x32_bf16 {vr(vACC+4*t,4)}, {vr(vA,4)}, {ring(g,t)}, {vr(vACC+4*t,4)}")
    def next_p():
        a("s_waitcnt lgkmcnt(0)")
        a(f"v_sub_f32 v{vP}, v{vPN}, v{vMX}")
        a(f"v_add_u32 v{vSC}, 256, v{vSC}")
        a(f"ds_read_b32 v{vPN}, v{vSC} offset:{L_SC}")
        a(f"v_mul_f32 v{vP}, {f32hex(LOG2E)}, v{vP}")
        a(f"v_exp_f32 v{vP}, v{vP}")
        a(f"v_cvt_pk_bf16_f32 v{vP}, v{vP}, v{vP}")
    a(f"s_mov_b32 s{sIt}, 0")
    if nph > 1:
        a(f"s_cmp_lg_u32 s{sPh}, {nph-1 if wphase is None else wphase}"); a("s_cbranch_scc1 L_vloop")
    a(f"s_cmp_eq_u32 s{sRole}, 1"); a("s_cbranch_scc1 L_wF")
    a(f"s_cmp_eq_u32 s{sRole}, 2"); a("s_cbranch_scc1 L_wR")
    a(f"s_mul_i32 s{sT0}, s{sOH}, 48"); a(f"s_mul_i32 s{sT1}, s{sW}, 12"); a(f"s_add_u32 s{sT0}, s{sT0}, s{sT1}")
    a(f"v_lshrrev_b32 v{T[0]}, 4, v{vL}"); a(f"v_add_u32 v{T[0]}, s{sT0}, v{T[0]}")
    a(f"v_mul_u32_u24 v{T[0]}, 1280, v{T[0]}")
    a(f"v_and_b32 v{T[1]}, 15, v{vL}"); a(f"v_lshlrev_b32 v{T[1]}, 4, v{T[1]}"); a(f"v_add_u32 v{T[0]}, v{T[0]}, v{T[1]}")
    a(f"v_mov_b32 v{T[1]}, s{pWO+1}")
    a(f"v_add_co_u32 v{WA}, vcc, s{pWO}, v{T[0]}"); a(f"v_addc_co_u32 v{WA+1}, vcc, 0, v{T[1]}, vcc")
    a(f"v_add_co_u32 v{WB}, vcc, 10240, v{WA}"); a(f"v_addc_co_u32 v{WB+1}, vcc, 0, v{WA+1}, vcc")
    a(f"s_mov_b32 s{sInc}, 256"); a(f"s_mov_b32 s{sInc4}, 4096")
    a("s_branch L_wdone")
    a.label("L_wF")
    a(f"v_lshrrev_b32 v{T[0]}, 2, v{vL}"); a(f"s_mul_i32 s{sT0}, s{sW}, 160"); a(f"v_add_u32 v{T[0]}, s{sT0}, v{T[0]}")
    a(f"v_mul_u32_u24 v{T[0]}, 3072, v{T[0]}")
    a(f"v_and_b32 v{T[1]}, 1, v{vL}"); a(f"v_lshlrev_b32 v{T[1]}, 4, v{T[1]}"); a(f"v_add_u32 v{T[0]}, v{T[0]}, v{T[1]}")
    a(f"s_lshl_b32 s{sT0}, s{sRI}, 5"); a(f"v_add_u32 v{T[0]}, s{sT0}, v{T[0]}")
    a(f"v_mov_b32 v{T[2]}, s{pWG}"); a(f"v_mov_b32 v{T[3]}, s{pWG+1}")
    a(f"v_mov_b32 v{T[4]}, s{pWU}"); a(f"v_mov_b32 v{T[5]}, s{pWU+1}")
    a(f"v_and_b32 v{T[1]}, 2, v{vL}"); a(f"v_cmp_ne_u32 vcc, 0, v{T[1]}")
    a(f"v_cndmask_b32 v{T[2]}, v{T[2]}, v{T[4]}, vcc"); a(f"v_cndmask_b32 v{T[3]}, v{T[3]}, v{T[5]}, vcc")
    a(f"v_add_co_u32 v{WA}, vcc, v{T[2]}, v{T[0]}"); a(f"v_addc_co_u32 v{WA+1}, vcc, 0, v{T[3]}, vcc")
    a(f"s_lshl_b32 s{sT0}, s{sRI}, 4"); a(f"s_lshl_b32 s{sT1}, s{sW}, 2"); a(f"s_add_u32 s{sT0}, s{sT0}, s{sT1}")
    a(f"v_lshrrev_b32 v{T[0]}, 4, v{vL}"); a(f"v_add_u32 v{T[0]}, s{sT0}, v{T[0]}")
    a(f"v_mul_u32_u24 v{T[0]}, 1280, v{T[0]}")
    a(f"v_and_b32 v{T[1]}, 15, v{vL}"); a(f"v_lshlrev_b32 v{T[1]}, 4, v{T[1]}"); a(f"v_add_u32 v{T[0]}, v{T[0]}, v{T[1]}")
    a(f"v_mov_b32 v{T[1]}, s{pWD+1}")
    a(f"v_add_co_u32 v{WB}, vcc, s{pWD}, v{T[0]}"); a(f"v_addc_co_u32 v{WB+1}, vcc, 0, v{T[1]}, vcc")
    a(f"s_mov_b32 s{sInc}, {16*3072}"); a(f"s_mov_b32 s{sInc4}, {16*3072}")
    a("s_branch L_wdone")
    a.label("L_wR")
    a(f"v_mov_b32 v{WA}, s{pWO}"); a(f"v_mov_b32 v{WA+1}, s{pWO+1}"); a(f"v_mov_b32 v{WB}, s{pWO}"); a(f"v_mov_b32 v{WB+1}, s{pWO+1}")
    a(f"s_mov_b32 s{sInc}, 0"); a(f"s_mov_b32 s{sInc4}, 0")
    a.label("L_wdone")
    def wload(k):
        if k < 10:
            a(f"global_load_dwordx4 {vr(W + 4*k, 4)}, {vr(WA,2)}, off {wpol}")
            if k < 9:
                a(f"v_add_co_u32 v{WA}, vcc, s{sInc4 if k == 4 else sInc}, v{WA}"); a(f"v_addc_co_u32 v{WA+1}, vcc, 0, v{WA+1}, vcc")
        else:
            a(f"global_load_dwordx4 {vr(W + 4*k, 4)}, {vr(WB,2)}, off offset:{256*(k-10)} {wpol}")
        vq.append(f"w{k}")
    vq[:] = [f"v{l}" for l in range(nx_ if tb else nb)] + ["ml"]
    for it in range(2):
        next_p()
        for l in range(24):
            n = 24 * it + l
            wait_for(f"v{n}")
            if not (tb and n + nb < nx_):
                ring_load(n + nb); vq.append(f"v{n+nb}")
            if n % 3 == 0 and n // 3 < 15: wload(n // 3)
            vpart(l)
        progress()
    flag_read()
    a(f"s_mov_b32 s{sIt}, 2"); a(f"s_mov_b32 s{sPrv}, 0")
    a.label("L_vloop")
    MLR = vX
    def ml_issue():
        a(f"s_lshl_b32 s{sT0}, s{sHead}, 11"); a(f"s_add_u32 s{sT0}, s{sT0}, {ML}")
        a(f"v_min_u32 v{T[1]}, {NWH-1}, v{vL}"); a(f"v_lshlrev_b32 v{T[1]}, 4, v{T[1]}")
        a(f"buffer_load_dwordx4 {vr(MLR,4)}, v{T[1]}, {srd(WSR)}, s{sT0} offen sc1")
        if NWH > 64:
            a(f"buffer_load_dwordx4 {vr(MLR+4,4)}, v{T[1]}, {srd(WSR)}, s{sT0} offen offset:1024 sc1")
    def ml_check():
        check4(MLR, T[0], T[2], True)
        if NWH > 64: check4(MLR + 4, T[0], T[2], False)
    a(f"s_cmp_eq_u32 s{sIt}, {NIT-2}"); a("s_cbranch_scc0 L_vh1")
    ml_issue()
    if codepf:
        a(f"s_getpc_b64 {sp(58)}")
        a.label("L_pc2")
        a(f"s_lshr_b32 s{sT3}, s2, 3"); a(f"s_lshl_b32 s{sT3}, s{sT3}, 9")
        a(f"v_and_b32 v{T[1]}, 7, v{vL}"); a(f"v_lshlrev_b32 v{T[1]}, 6, v{T[1]}"); a(f"v_add_u32 v{T[1]}, s{sT3}, v{T[1]}")
        a(f"v_add_u32 v{T[1]}, L_tailcode-L_pc2, v{T[1]}")
        a(f"v_min_u32 v{T[1]}, L_codeend-L_pc2-4, v{T[1]}")
        a(f"global_load_dword v{T[2]}, v{T[1]}, {sp(58)}")
    a.label("L_vh1")
    a(f"s_cmp_eq_u32 s{sIt}, {NIT-1}"); a("s_cbranch_scc0 L_vh2")
    a.label("L_tailcode")
    ml_check()
    a(f"s_cmp_eq_u64 {sp(sBad)}, 0"); a("s_cbranch_scc1 L_mlok")
    poll(ml_issue, ml_check)
    a.label("L_mlok")
    mm, ll = MLR, MLR + 1
    if NWH > 64: a(f"v_max_f32 v{T[0]}, v{mm}, v{MLR+4}")
    else: a(f"v_mov_b32 v{T[0]}, v{mm}")
    a(f"v_and_b32 v{T[0]}, 0xffffff00, v{T[0]}")
    allreduce("v_max_f32", T[0], T[1])
    a(f"v_and_b32 v{mm}, 0xffffff00, v{mm}"); a(f"v_and_b32 v{ll}, 0xffffff00, v{ll}")
    a(f"v_sub_f32 v{T[2]}, v{mm}, v{T[0]}"); a(f"v_mul_f32 v{T[2]}, {f32hex(LOG2E)}, v{T[2]}"); a(f"v_exp_f32 v{T[2]}, v{T[2]}")
    a(f"v_mul_f32 v{T[2]}, v{T[2]}, v{ll}")
    if NWH > 64:
        a(f"v_and_b32 v{MLR+4}, 0xffffff00, v{MLR+4}"); a(f"v_and_b32 v{MLR+5}, 0xffffff00, v{MLR+5}")
        a(f"v_sub_f32 v{T[3]}, v{MLR+4}, v{T[0]}"); a(f"v_mul_f32 v{T[3]}, {f32hex(LOG2E)}, v{T[3]}"); a(f"v_exp_f32 v{T[3]}, v{T[3]}")
        a(f"v_fmac_f32 v{T[2]}, v{T[3]}, v{MLR+5}")
    elif NWH < 64:
        a(f"v_cmp_gt_u32 vcc, {NWH}, v{vL}"); a(f"v_cndmask_b32 v{T[2]}, 0, v{T[2]}, vcc")
    allreduce("v_add_f32", T[2], T[1])
    a(f"v_sub_f32 v{T[3]}, v{vMX}, v{T[0]}"); a(f"v_mul_f32 v{T[3]}, {f32hex(LOG2E)}, v{T[3]}"); a(f"v_exp_f32 v{T[3]}, v{T[3]}")
    a(f"v_rcp_f32 v{T[2]}, v{T[2]}")
    a(f"v_mul_f32 v{vAL}, v{T[3]}, v{T[2]}")
    red_addr()
    a(f"v_mul_u32_u24 v{T[1]}, 43691, v{vL}"); a(f"v_lshrrev_b32 v{T[1]}, 19, v{T[1]}")
    a(f"v_mul_u32_u24 v{T[2]}, 12, v{T[1]}"); a(f"v_sub_u32 v{T[2]}, v{vL}, v{T[2]}")
    a(f"v_mul_u32_u24 v{T[1]}, {WPH*192}, v{T[1]}"); a(f"v_lshlrev_b32 v{T[2]}, 4, v{T[2]}"); a(f"v_add_u32 v{vOPA}, v{T[1]}, v{T[2]}")
    a(f"s_mul_i32 s{sT0}, s{sHead}, {4*WPH*192}"); a(f"s_mul_i32 s{sT1}, s{sJ}, 192"); a(f"s_add_u32 s{sT0}, s{sT0}, s{sT1}"); a(f"s_add_u32 s{sU2}, s{sT0}, {OP}")
    P = vQ
    if nph > 1:
        a(f"s_cmp_lg_u32 s{sPh}, {nph-1}"); a("s_cbranch_scc1 L_vh2")
    a(f"v_lshrrev_b32 v{T[0]}, 5, v{vL}"); a(f"v_lshlrev_b32 v{T[0]}, 8, v{T[0]}")
    a(f"v_and_b32 v{T[1]}, 7, v{vL}"); a(f"v_lshlrev_b32 v{T[1]}, 5, v{T[1]}"); a(f"v_add_u32 v{T[0]}, v{T[0]}, v{T[1]}")
    a(f"v_and_b32 v{T[1]}, 16, v{vL}"); a(f"v_add_u32 v{T[0]}, v{T[0]}, v{T[1]}")
    a(f"s_mul_i32 s{sT0}, s{sW}, 2560"); a(f"v_add_u32 v{P}, s{sT0}, v{T[0]}")
    a(f"s_mov_b32 s{sT0}, {128*128}"); a(f"s_cmp_eq_u32 s{sRole}, 1"); a(f"s_cselect_b32 s{sT0}, {96*128}, s{sT0}")
    a(f"v_lshrrev_b32 v{T[1]}, 3, v0"); a(f"v_mul_u32_u24 v{T[1]}, s{sT0}, v{T[1]}")
    a(f"v_and_b32 v{T[2]}, 7, v0"); a(f"v_lshlrev_b32 v{T[2]}, 4, v{T[2]}"); a(f"v_add_u32 v{P+1}, v{T[1]}, v{T[2]}")
    for i in range(20): a(f"v_mov_b32 v{vX+i}, 0")
    a.label("L_vh2")
    next_p()
    controlled_loop("v", vpart, switch_to_nextK)
    progress()
    a(f"s_add_u32 s{sIt}, s{sIt}, 1")
    a(f"s_cmp_lt_u32 s{sIt}, {NIT}")
    a("s_cbranch_scc1 L_vloop")

    stamp(6)
    for i in range(12): a(f"v_mul_f32 v{vACC+i}, v{vACC+i}, v{vAL}")
    if nph > 1:
        a(f"s_cmp_eq_u32 s{sPh}, {nph-1}"); a("s_cbranch_scc1 L_lastphase")
        if tb: deepen()
        def lds_wait_ge(off, sreg):
            n = newlab()
            a(f"s_mov_b32 s{sSpin}, {spin}")
            a.label(f"L_lw{n}")
            a(f"ds_read_b32 v{T[1]}, v{vZ} offset:{L_CTL + off}"); a("s_waitcnt lgkmcnt(0)"); a(f"v_readfirstlane_b32 s{sT0}, v{T[1]}")
            a(f"s_cmp_ge_u32 s{sT0}, s{sreg}"); a(f"s_cbranch_scc1 L_lk{n}")
            a(f"s_sub_u32 s{sSpin}, s{sSpin}, 1"); a(f"s_cmp_eq_u32 s{sSpin}, 0"); a("s_cbranch_scc1 L_abort")
            a(f"s_branch L_lw{n}")
            a.label(f"L_lk{n}")
        lds_wait_ge(12, sPh)
        set_exec(USEFUL)
        for t in range(3): a(f"ds_write_b128 v{vRA}, {vr(vACC+4*t,4)} offset:{L_REDH + 256*t}")
        set_exec(-1)
        a(f"s_add_u32 s{sPh}, s{sPh}, 1"); a(f"s_add_u32 s{sHead}, s{sHead}, {H}")
        a(f"s_lshl_b32 s{sT1}, s{sW}, 2"); a(f"v_mov_b32 v{T[2]}, s{sT1}"); a(f"v_mov_b32 v{T[3]}, s{sPh}")
        a("s_waitcnt lgkmcnt(0)")
        a(f"ds_write_b32 v{T[2]}, v{T[3]} offset:{L_CTL + 16}")
        a(f"s_add_u32 s{sT2}, s{sPh}, 1")
        lds_wait_ge(32, sT2)
        load_q(); kinit()
        a(f"s_mov_b32 s{sIt}, 0")
        a("s_branch L_kloop")
        a.label("L_lastphase")
    red_write()
    a("s_waitcnt lgkmcnt(0)"); a("s_barrier")
    a(f"s_cmp_lg_u32 s{sW}, 0"); a("s_cbranch_scc1 L_pubdone")
    SB = RING + 36
    a(f"v_lshlrev_b32 v{T[0]}, 4, v{vL}")
    set_exec("0x0000ffffffffffff")
    for s in range(8): a(f"ds_read_b128 {vr(SB+4*s,4)}, v{T[0]} offset:{L_RED + 768*s}")
    a("s_waitcnt lgkmcnt(4)")
    sum_quads(SB, [SB + 4, SB + 8, SB + 12])
    a("s_waitcnt lgkmcnt(0)")
    sum_quads(SB + 16, [SB + 20, SB + 24, SB + 28])
    sum_quads(SB, [SB + 16])
    tag4(SB)
    if oploc: pub_store(vr(SB,4), vOPA, sU2)
    else: a(f"buffer_store_dwordx4 {vr(SB,4)}, v{vOPA}, {srd(WSR)}, s{sU2} offen sc1")
    if stage1:
        a(f"s_and_b32 s{sT0}, s{sNon}, 0xffffff00"); a(f"s_or_b32 s{sT0}, s{sT0}, 255"); a(f"v_mov_b32 v{T[1]}, s{sT0}")
        a(f"s_and_b32 s{sT0}, s2, 7"); a(f"s_lshl_b32 s{sT0}, s{sT0}, 7"); a(f"s_lshr_b32 s{sT1}, s2, 3"); a(f"s_lshl_b32 s{sT1}, s{sT1}, 2")
        a(f"s_add_u32 s{sT0}, s{sT0}, s{sT1}"); a(f"s_add_u32 s{sT0}, s{sT0}, {PROG}")
        set_exec(1)
        a(f"buffer_store_dword v{T[1]}, v{vZ}, {srd(WSR)}, s{sT0} offen")
    set_exec(-1)
    a.label("L_pubdone")
    def class_wait():
        if not stage1: return
        n = newlab()
        a(f"s_and_b32 s{sT0}, s{sNon}, 0xffffff00"); a(f"s_or_b32 s{sT0}, s{sT0}, 255"); a(f"v_mov_b32 v{T[1]}, s{sT0}")
        a(f"s_and_b32 s{sT0}, s2, 7"); a(f"s_lshl_b32 s{sT0}, s{sT0}, 7"); a(f"s_add_u32 s{sT0}, s{sT0}, {PROG}")
        a(f"v_and_b32 v{T[0]}, 31, v{vL}"); a(f"v_lshlrev_b32 v{T[0]}, 2, v{T[0]}")
        a(f"s_mov_b32 s{sSpin}, {stage1}")
        a.label(f"L_cw{n}")
        a(f"buffer_load_dword v{T[2]}, v{T[0]}, {srd(WSR)}, s{sT0} offen sc1")
        a(f"s_sub_u32 s{sSpin}, s{sSpin}, 1"); a(f"s_cmp_eq_u32 s{sSpin}, 0"); a(f"s_cbranch_scc1 L_cwd{n}")
        a("s_waitcnt vmcnt(0)")
        a(f"v_cmp_ne_u32 vcc, v{T[2]}, v{T[1]}"); a("s_cbranch_vccnz L_cw%d" % n)
        a.label(f"L_cwd{n}")
        a("s_waitcnt vmcnt(0)")
    a.label("L_tail")
    stamp(7)
    RB = RING + 60
    a(f"s_cmp_eq_u32 s{sRole}, 1"); a("s_cbranch_scc1 L_roleF")
    a(f"s_cmp_eq_u32 s{sRole}, 2"); a("s_cbranch_scc1 L_roleR")

    def rowproj(ngroups, wbase, srcs, dstbase):
        for gi in range(ngroups):
            a_operand(srcs[gi])
            for cb in range(5):
                a(f"v_mfma_f32_16x16x32_bf16 {vr(vX+4*cb,4)}, {vr(vA,4)}, {vr(wbase + 4*(5*gi+cb),4)}, {vr(vX+4*cb,4)}")
        set_exec(USEFUL)
        for cb in range(5): a(f"ds_write_b128 v{P}, {vr(vX+4*cb,4)} offset:{L_RED2 + 512*cb}")
        set_exec(-1)
        a(f"v_lshlrev_b32 v{T[0]}, 4, v0")
        a(f"s_lshl_b32 s{sT0}, s{sRI}, 7"); a(f"s_add_u32 s{sT0}, s{sT0}, {dstbase}")
        a("s_waitcnt lgkmcnt(0)"); a("s_barrier")
        n = newlab()
        a(f"v_cmp_gt_u32 vcc, 160, v0"); a(f"s_and_saveexec_b64 {sp(sE)}, vcc"); a(f"s_cbranch_execz L_rpd{n}")
        for s in range(4): a(f"ds_read_b128 {vr(vX+4*s,4)}, v{T[0]} offset:{L_RED2 + 2560*s}")
        a("s_waitcnt lgkmcnt(0)")
        sum_quads(vX, [vX + 4]); sum_quads(vX + 8, [vX + 12]); sum_quads(vX, [vX + 8])
        tag4(vX)
        a(f"buffer_store_dwordx4 {vr(vX,4)}, v{P+1}, {srd(WSR)}, s{sT0} offen sc1")
        a.label(f"L_rpd{n}")
        a(f"s_mov_b64 exec, {sp(sE)}")

    NL = 2 if WPH == 32 else 1
    a(f"s_mul_i32 s{sT0}, s{sOH}, {WPH*192}"); a(f"s_add_u32 s{sU}, s{sT0}, {OP}")
    a(f"s_mul_i32 s{sT1}, s{sW}, 48"); a(f"s_add_u32 s{sU}, s{sU}, s{sT1}")
    a(f"v_lshrrev_b32 v{T[3]}, 2, v{vL}"); a(f"v_and_b32 v{T[3]}, {min(WPH,16)-1}, v{T[3]}"); a(f"v_mul_u32_u24 v{T[3]}, 192, v{T[3]}")
    a(f"v_and_b32 v{T[4]}, 3, v{vL}"); a(f"v_min_u32 v{T[4]}, 2, v{T[4]}"); a(f"v_lshlrev_b32 v{T[4]}, 4, v{T[4]}"); a(f"v_add_u32 v{T[3]}, v{T[3]}, v{T[4]}")
    OB = [RB + 12, RB + 20]
    def o_iss(z):
        for k in range(NL):
            a(f"buffer_load_dwordx4 {vr(OB[z]+4*k,4)}, v{T[3]}, {srd(WSR)}, s{sU} offen offset:{3072*k} sc1")
    def o_chk(z):
        for k in range(NL): check4(OB[z] + 4*k, T[0], T[1], k == 0)
    def untag(b, n):
        assert not p2
        for i in range(n): a(f"v_and_b32 v{b+i}, 0xffffff00, v{b+i}")
    def o_st1(z):
        untag(OB[z], 4 * NL)
        if NL == 2:
            a(f"v_pk_add_f32 {vr(RB,2)}, {vr(OB[z],2)}, {vr(OB[z]+4,2)}"); a(f"v_pk_add_f32 {vr(RB+2,2)}, {vr(OB[z]+2,2)}, {vr(OB[z]+6,2)}")
            for i in range(4): dpp("v_add_f32", RB + i, "row_ror:4")
        else:
            for i in range(4): a(f"v_add_f32_dpp v{RB+i}, v{OB[z]+i}, v{OB[z]+i} row_ror:4 row_mask:0xf bank_mask:0xf")
    poll2(o_iss, o_chk, NL, o_st1)
    stamp(8)
    for i in range(4): dpp("v_add_f32", RB + i, "row_ror:8")
    o4 = [("v_add_f32", RB + i) for i in range(4)]
    swap_reduce(o4, T[0:4], "v_permlane16_swap_b32")
    if WPH >= 16: swap_reduce(o4, T[0:4], "v_permlane32_swap_b32")
    for g in range(1, 4): a(f"v_cndmask_b32 v{RB}, v{RB}, v{RB+g}, {sp(sRow+2*(g-1))}")
    a(f"v_cvt_pk_bf16_f32 v{RB}, v{RB}, v{RB}")
    for gi in range(3): a(f"v_mov_b32_dpp v{RB+8+gi}, v{RB} quad_perm:[{gi},{gi},{gi},{gi}] row_mask:0xf bank_mask:0xf")
    rowproj(3, W, [RB+8, RB+9, RB+10], ZZ)
    dump_stamps()
    a("s_branch L_end")

    a.label("L_roleF")
    HQ = RB
    PK = RB + 16
    class_wait()
    a(f"v_min_u32 v{T[5]}, 39, v{vL}"); a(f"s_mul_i32 s{sT0}, s{sW}, 40"); a(f"v_add_u32 v{T[5]}, s{sT0}, v{T[5]}"); a(f"v_lshlrev_b32 v{T[5]}, 4, v{T[5]}")
    a(f"s_and_b32 s{sU}, s2, 7"); a(f"s_lshl_b32 s{sU}, s{sU}, 12"); a(f"s_add_u32 s{sU}, s{sU}, {HH}")
    HB_ = [HQ, HQ + 4]
    def f_iss(z):
        a(f"buffer_load_dwordx4 {vr(HB_[z],4)}, v{T[5]}, {srd(WSR)}, s{sU} offen sc1")
    def f_chk(z):
        check4(HB_[z], T[0], T[1], True)
    def f_st1(z):
        a(f"v_perm_b32 v{PK}, v{HB_[z]+1}, v{HB_[z]}, s{sPkSel}"); a(f"v_perm_b32 v{PK+1}, v{HB_[z]+3}, v{HB_[z]+2}, s{sPkSel}")
        for i in range(4): a(f"v_and_b32 v{HQ+12+i}, 0xffff0000, v{HB_[z]+i}")
    FA = RING + 24
    FW = RB + 22
    DA = vACC
    def f_pre():
        a(f"s_lshl_b32 s{sT0}, s{sW}, 12"); a(f"s_add_u32 s{sT0}, s{sT0}, {L_SC}")
        a(f"v_lshlrev_b32 v{FW}, 6, v{vL}"); a(f"v_add_u32 v{FW}, s{sT0}, v{FW}")
        a(f"v_mov_b32 v{T[0]}, 0"); a(f"v_mov_b32 v{T[1]}, s{sT0}")
        a(f"ds_write_b32 v{T[1]}, v{T[0]} offset:2560")
        a(f"v_lshrrev_b32 v{FW+1}, 2, v{vL}"); a(f"v_lshlrev_b32 v{FW+1}, 4, v{FW+1}")
        a(f"v_and_b32 v{T[0]}, 3, v{vL}")
        a(f"v_mov_b32 v{T[1]}, 0x08000c04"); a(f"v_lshlrev_b32 v{T[0]}, 3, v{T[0]}"); a(f"v_lshrrev_b32 v{T[1]}, v{T[0]}, v{T[1]}"); a(f"v_and_b32 v{T[1]}, 0xff, v{T[1]}")
        a(f"v_add3_u32 v{FW+1}, v{FW+1}, v{T[1]}, s{sT0}")
        a(f"v_add_u32 v{FW+2}, 1024, v{FW+1}"); a(f"v_add_u32 v{FW+3}, 2048, v{FW+1}")
        a(f"v_lshrrev_b32 v{T[0]}, 4, v{vL}"); a(f"s_lshl_b32 s{sT0}, s{sW}, 2"); a(f"v_add_u32 v{T[0]}, s{sT0}, v{T[0]}"); a(f"v_lshlrev_b32 v{T[0]}, 7, v{T[0]}")
        a(f"v_and_b32 v{T[1]}, 3, v{vL}"); a(f"v_lshlrev_b32 v{T[1]}, 5, v{T[1]}"); a(f"v_add_u32 v{FW+4}, v{T[0]}, v{T[1]}")
        a(f"v_and_b32 v{T[0]}, 31, v{vL}"); a(f"v_lshlrev_b32 v{T[0]}, 2, v{T[0]}")
        a(f"v_lshrrev_b32 v{T[1]}, 5, v{vL}"); a(f"v_lshlrev_b32 v{T[1]}, 10, v{T[1]}"); a(f"v_add_u32 v{FW+5}, v{T[0]}, v{T[1]}")
        a(f"v_lshrrev_b32 v{T[0]}, 4, v{vL}"); a(f"s_lshl_b32 s{sT0}, s{sW}, 2"); a(f"v_add_u32 v{T[0]}, s{sT0}, v{T[0]}"); a(f"v_lshlrev_b32 v{FW+6}, 2, v{T[0]}")
        for i in range(8): a(f"v_mov_b32 v{DA+i}, 0")
        a(f"v_mov_b32 v{FW+7}, 0x3f803f80")
        a(f"v_cmp_gt_u32 {sp(sE)}, 40, v{vL}")
        a(f"s_lshl_b32 s{sT0}, s{sW}, 3"); a(f"v_mov_b32 v{PK+2}, s{sT0}")
    poll2(f_iss, f_chk, 1, f_st1, pre=f_pre)
    stamp(10)
    a(f"v_cndmask_b32 v{PK}, 0, v{PK}, {sp(sE)}"); a(f"v_cndmask_b32 v{PK+1}, 0, v{PK+1}, {sp(sE)}")
    t0, t1, t2, t3, t4 = T[0:5]
    a(f"v_dot2_f32_bf16 v{t0}, v{PK}, v{FW+7}, 0"); a(f"v_dot2_f32_bf16 v{t1}, v{PK}, v{PK}, 0")
    a(f"v_dot2_f32_bf16 v{t0}, v{PK+1}, v{FW+7}, v{t0}"); a(f"v_dot2_f32_bf16 v{t1}, v{PK+1}, v{PK+1}, v{t1}")
    assert t1 == t0 + 1 and t0 % 2 == 1
    allreduce_n([("v_add_f32", t0), ("v_add_f32", t1)], [t2, t3])
    SX = vQ + 4
    a(f"v_mov_b32 v{SX}, v{t0}"); a(f"v_mov_b32 v{SX+1}, v{t1}")
    set_exec(1)
    a(f"ds_write_b64 v{PK+2}, {vr(SX,2)} offset:{L_STAT}")
    set_exec(-1)
    a("s_waitcnt lgkmcnt(0)"); a("s_barrier")
    a(f"ds_read_b128 {vr(SX,4)}, v{vZ} offset:{L_STAT}"); a(f"ds_read_b128 {vr(SX+4,4)}, v{vZ} offset:{L_STAT+16}")
    a("s_waitcnt lgkmcnt(0)")
    pkadd(SX, SX, SX + 2); pkadd(SX + 4, SX + 4, SX + 6); pkadd(SX, SX, SX + 4)
    a(f"v_mov_b32 v{t0}, v{SX}"); a(f"v_mov_b32 v{t1}, v{SX+1}")
    ln_consts(t0, t1, t2)
    a(f"v_rcp_f32 v{t4}, v{t1}")
    O4 = HQ + 12
    for i in range(4): a(f"v_sub_f32 v{O4+i}, v{O4+i}, v{t0}")
    a(f"v_cvt_pk_bf16_f32 v{t2}, v{O4}, v{O4+1}"); a(f"v_cvt_pk_bf16_f32 v{t3}, v{O4+2}, v{O4+3}")
    a(f"v_lshlrev_b32 v{O4}, 16, v{t2}"); a(f"v_and_b32 v{O4+1}, 0xffff0000, v{t2}"); a(f"v_lshlrev_b32 v{O4+2}, 16, v{t3}"); a(f"v_and_b32 v{O4+3}, 0xffff0000, v{t3}")
    for i in range(4): a(f"v_mul_f32 v{O4+i}, v{O4+i}, v{t4}")
    a(f"v_cvt_pk_bf16_f32 v{t2}, v{O4}, v{O4+1}"); a(f"v_cvt_pk_bf16_f32 v{t3}, v{O4+2}, v{O4+3}")
    PR = FA
    for r_, (src, hi) in enumerate(((t2, 0), (t2, 1), (t3, 0), (t3, 1))):
        b = PR + 4 * r_
        a(f"v_mov_b32 v{b}, 0"); a(f"v_mov_b32 v{b+2}, 0")
        if hi:
            a(f"v_lshrrev_b32 v{b+1}, 16, v{src}"); a(f"v_and_b32 v{b+3}, 0xffff0000, v{src}")
        else:
            a(f"v_and_b32 v{b+1}, 0xffff, v{src}"); a(f"v_lshlrev_b32 v{b+3}, 16, v{src}")
    set_exec("0x000000ffffffffff")
    for r_ in range(4): a(f"ds_write_b128 v{FW}, {vr(PR+4*r_,4)} offset:{16*r_}")
    set_exec(-1)
    a("s_waitcnt lgkmcnt(0)")
    for k in range(10):
        base = FW + 1 + k // 4
        a(f"ds_read2_b32 {vr(FA+2*k,2)}, v{base} offset0:{(k%4)*64} offset1:{(k%4)*64+1}")
    DB = DA + 4
    for k in range(10):
        a(f"s_waitcnt lgkmcnt({9-k})")
        a(f"v_mfma_f32_4x4x4_16b_bf16 {vr(DA,4)}, {vr(FA+2*k,2)}, {vr(W+4*k,2)}, {vr(DA,4)}")
        a(f"v_mfma_f32_4x4x4_16b_bf16 {vr(DB,4)}, {vr(FA+2*k,2)}, {vr(W+4*k+2,2)}, {vr(DB,4)}")
    for m in ("row_ror:4", "row_ror:8"):
        for i in range(8): dpp("v_add_f32", DA + i, m)
    set_exec("0x000f000f000f000f")
    a(f"ds_write_b128 v{FW+4}, {vr(DA,4)} offset:{L_RED3}")
    a(f"ds_write_b128 v{FW+4}, {vr(DB,4)} offset:{L_RED3+16}")
    set_exec(-1)
    a("s_waitcnt lgkmcnt(0)"); a("s_barrier")
    HR = FA
    for s in range(8): a(f"ds_read_b32 v{HR+s}, v{FW+5} offset:{L_RED3 + 128*s}")
    a("s_waitcnt lgkmcnt(0)")
    for s in range(0, 8, 4): pkadd(HR + s, HR + s, HR + s + 2)
    pkadd(HR, HR, HR + 4)
    a(f"v_add_f32 v{HR}, v{HR}, v{HR+1}")
    a(f"v_mov_b32 v{T[0]}, v{HR}"); a(f"v_permlane32_swap_b32 v{T[0]}, v{HR}"); a(f"v_add_f32 v{HR}, v{HR}, v{T[0]}")
    rne(HR, HR)
    a(f"v_mov_b32 v{T[0]}, v{HR}"); a(f"v_permlane16_swap_b32 v{T[0]}, v{HR}")
    a(f"v_mul_f32 v{T[1]}, {f32hex(-LOG2E)}, v{T[0]}"); a(f"v_min_f32 v{T[1]}, 0x42fc0000, v{T[1]}"); a(f"v_exp_f32 v{T[1]}, v{T[1]}")
    a(f"v_add_f32 v{T[1]}, 1.0, v{T[1]}"); a(f"v_rcp_f32 v{T[2]}, v{T[1]}")
    a(f"v_mul_f32 v{T[3]}, v{T[0]}, v{T[2]}")
    rne(T[3], T[3])
    a(f"v_mul_f32 v{T[3]}, v{T[3]}, v{HR}")
    a(f"v_cvt_pk_bf16_f32 v{T[3]}, v{T[3]}, v{T[3]}")
    a(f"ds_bpermute_b32 v{HR+1}, v{FW+6}, v{T[3]}")
    a("s_waitcnt lgkmcnt(0)")
    stamp(11)
    rowproj(1, W + 40, [HR+1], YY)
    dump_stamps()
    a("s_branch L_end")

    a.label("L_roleR")
    if wb:
        a(f"s_cmp_ge_u32 s{sRI}, 24"); a("s_cbranch_scc0 L_nowb")
        a(f"s_cmp_lg_u32 s{sW}, 0"); a("s_cbranch_scc1 L_fin")
        class_wait()
        a("buffer_wbl2 sc1"); a("s_waitcnt vmcnt(0)")
        a("s_branch L_fin")
        a.label("L_nowb")
    a(f"s_cmp_ge_u32 s{sRI}, 20"); a("s_cbranch_scc1 L_fin")
    RS = RING + 24
    RS = RING + 40
    XS = RB
    WRr = RB + 8
    HV = RB + 16
    HPK = RB + 28
    HS = vQ + 4
    SIG = vQ + 8
    def reduce_parts(base, nsrc, nld, lds, pre=None):
        a(f"s_mul_i32 s{sU}, s{sRI}, {nsrc*128}"); a(f"s_add_u32 s{sU}, s{sU}, {base}")
        a(f"v_lshlrev_b32 v{T[3]}, 4, v0")
        PB = [RS + 4, RING]
        def iss(z):
            for k in range(nld):
                a(f"s_add_u32 s{sT1}, s{sU}, {4096*k}")
                a(f"buffer_load_dwordx4 {vr(PB[z]+4*k,4)}, v{T[3]}, {srd(WSR)}, s{sT1} offen sc1")
        def chk(z):
            for k in range(nld): check4(PB[z] + 4*k, T[0], T[1], k == 0)
        def st1(z):
            b = PB[z]
            untag(b, 4 * nld)
            a(f"v_pk_add_f32 {vr(RS,2)}, {vr(b,2)}, {vr(b+4,2)}"); a(f"v_pk_add_f32 {vr(RS+2,2)}, {vr(b+2,2)}, {vr(b+6,2)}")
            for k in range(2, nld): sum_quads(RS, [b + 4*k])
        def pre2():
            if pre: pre()
            a(f"v_and_b32 v{T[4]}, 7, v{vL}"); a(f"v_lshlrev_b32 v{T[4]}, 4, v{T[4]}")
            a(f"s_lshl_b32 s{sT0}, s{sW}, 7"); a(f"v_add_u32 v{T[5]}, s{sT0}, v{T[4]}")
        poll2(iss, chk, nld, st1, pre=pre2)
        RT = vACC
        for i in range(4): dpp("v_add_f32", RS + i, "row_ror:8")
        o4 = [("v_add_f32", RS + i) for i in range(4)]
        swap_reduce(o4, [RT + i for i in range(4)], "v_permlane16_swap_b32")
        swap_reduce(o4, [RT + i for i in range(4)], "v_permlane32_swap_b32")
        set_exec("0x00000000000000ff")
        a(f"ds_write_b128 v{T[5]}, {vr(RS,4)} offset:{lds}")
        set_exec(-1)
        a("s_waitcnt lgkmcnt(0)"); a("s_barrier")
        a(f"ds_read_b128 {vr(RS,4)}, v{T[4]} offset:{lds}")
        for s in range(1, 4): a(f"ds_read_b128 {vr(RT+4*(s-1),4)}, v{T[4]} offset:{lds + 128*s}")
        a("s_waitcnt lgkmcnt(0)")
        sum_quads(RS, [RT]); sum_quads(RT + 4, [RT + 8]); sum_quads(RS, [RT + 4])
    def r_pre1():
        a(f"v_and_b32 v{T[0]}, 7, v{vL}"); a(f"v_lshlrev_b32 v{T[0]}, 3, v{T[0]}"); a(f"s_lshl_b32 s{sT0}, s{sRI}, 6"); a(f"v_add_u32 v{T[0]}, s{sT0}, v{T[0]}")
        a(f"global_load_dwordx2 {vr(XS+4,2)}, v{T[0]}, {sp(pX)}")
        a(f"v_lshlrev_b32 v{T[1]}, 3, v{vL}"); a(f"v_add_u32 v{T[2]}, 1024, v{T[1]}"); a(f"v_min_u32 v{T[2]}, 1272, v{T[2]}")
        a(f"global_load_dwordx2 {vr(WRr,2)}, v{T[1]}, {sp(pWR)}")
        a(f"global_load_dwordx2 {vr(WRr+2,2)}, v{T[1]}, {sp(pWR)} offset:512")
        a(f"global_load_dwordx2 {vr(WRr+4,2)}, v{T[2]}, {sp(pWR)}")
        a(f"v_lshrrev_b32 v{SIG+2}, 3, v{vL}"); a(f"v_lshlrev_b32 v{SIG+2}, 12, v{SIG+2}")
        a(f"v_and_b32 v{SIG+3}, 7, v{vL}"); a(f"v_lshlrev_b32 v{SIG+3}, 4, v{SIG+3}"); a(f"v_add_u32 v{SIG+2}, v{SIG+2}, v{SIG+3}")
        a(f"s_lshl_b32 s{sU2}, s{sRI}, 7"); a(f"s_add_u32 s{sU2}, s{sU2}, {HH}")
        a(f"global_load_dword v{SIG}, v{T[0]}, {sp(pOUT)}")
    class_wait()
    reduce_parts(ZZ, 128, 4, L_RED3, pre=r_pre1)
    stamp(9)
    for h in range(2):
        a(f"v_lshlrev_b32 v{XS+2*h}, 16, v{XS+4+h}"); a(f"v_and_b32 v{XS+2*h+1}, 0xffff0000, v{XS+4+h}")
    a(f"v_cvt_pk_bf16_f32 v{RS}, v{RS}, v{RS+1}"); a(f"v_cvt_pk_bf16_f32 v{RS+2}, v{RS+2}, v{RS+3}")
    a(f"v_and_b32 v{RS+1}, 0xffff0000, v{RS}"); a(f"v_lshlrev_b32 v{RS}, 16, v{RS}"); a(f"v_and_b32 v{RS+3}, 0xffff0000, v{RS+2}"); a(f"v_lshlrev_b32 v{RS+2}, 16, v{RS+2}")
    pkadd(XS, XS, RS); pkadd(XS + 2, XS + 2, RS + 2)
    a(f"v_cvt_pk_bf16_f32 v{RS}, v{XS}, v{XS+1}"); a(f"v_cvt_pk_bf16_f32 v{RS+2}, v{XS+2}, v{XS+3}")
    a(f"v_and_b32 v{XS+1}, 0xffff0000, v{RS}"); a(f"v_lshlrev_b32 v{XS}, 16, v{RS}"); a(f"v_and_b32 v{XS+3}, 0xffff0000, v{RS+2}"); a(f"v_lshlrev_b32 v{XS+2}, 16, v{RS+2}")
    for i in range(4): a(f"v_perm_b32 v{RS+i}, v{XS+i}, v{vN}, s{sSel+i}")
    a(f"s_cmp_lg_u32 s{sW}, 0"); a("s_cbranch_scc1 L_rnopub")
    a(f"buffer_store_dwordx4 {vr(RS,4)}, v{SIG+2}, {srd(WSR)}, s{sU2} offen sc1")
    a.label("L_rnopub")
    a(f"v_lshlrev_b32 v{T[3]}, 4, v{vL}")
    a(f"v_add_u32 v{T[4]}, 2048, v{T[3]}"); a(f"v_min_u32 v{T[4]}, 2544, v{T[4]}")
    a(f"s_and_b32 s{sU}, s2, 7"); a(f"s_lshl_b32 s{sU}, s{sU}, 12"); a(f"s_add_u32 s{sU}, s{sU}, {HH}")
    def r_iss():
        a(f"buffer_load_dwordx4 {vr(HV,4)}, v{T[3]}, {srd(WSR)}, s{sU} offen sc1")
        a(f"buffer_load_dwordx4 {vr(HV+4,4)}, v{T[3]}, {srd(WSR)}, s{sU} offen offset:1024 sc1")
        a(f"buffer_load_dwordx4 {vr(HV+8,4)}, v{T[4]}, {srd(WSR)}, s{sU} offen sc1")
    def r_chk():
        for k in range(3): check4(HV + 4*k, T[0], T[1], k == 0)
    poll(r_iss, r_chk)
    stamp(10)
    for i in range(12): a(f"v_and_b32 v{HV+i}, 0xffff0000, v{HV+i}")
    a(f"v_cmp_gt_u32 vcc, 32, v{vL}")
    for i in range(8, 12): a(f"v_cndmask_b32 v{HV+i}, 0, v{HV+i}, vcc")
    for k in range(6): a(f"v_perm_b32 v{HPK+k}, v{HV+2*k+1}, v{HV+2*k}, s{sPkSel}")
    layernorm_full(HV, HPK, T[0:5], False)
    a(f"v_cmp_gt_u32 vcc, 32, v{vL}")
    a(f"v_cndmask_b32 v{WRr+4}, 0, v{WRr+4}, vcc"); a(f"v_cndmask_b32 v{WRr+5}, 0, v{WRr+5}, vcc")
    a(f"v_dot2_f32_bf16 v{T[0]}, v{HPK}, v{WRr}, 0")
    for k in range(1, 6): a(f"v_dot2_f32_bf16 v{T[0]}, v{HPK+k}, v{WRr+k}, v{T[0]}")
    allreduce("v_add_f32", T[0], T[1])
    rne(T[0], T[0])
    a(f"v_mul_f32 v{T[1]}, {f32hex(-LOG2E)}, v{T[0]}"); a(f"v_min_f32 v{T[1]}, 0x42fc0000, v{T[1]}"); a(f"v_exp_f32 v{T[1]}, v{T[1]}")
    a(f"v_add_f32 v{T[1]}, 1.0, v{T[1]}"); a(f"v_rcp_f32 v{T[2]}, v{T[1]}")
    rne(SIG, T[2])
    a(f"s_lshl_b32 s{sT0}, s{sRI}, 3"); a(f"s_lshr_b32 s{sT1}, s{sT0}, 6"); a(f"s_and_b32 s{sT0}, s{sT0}, 63")
    a(f"v_and_b32 v{T[0]}, 7, v{vL}"); a(f"v_add_u32 v{T[0]}, s{sT0}, v{T[0]}"); a(f"v_lshlrev_b32 v{T[0]}, 2, v{T[0]}")
    for i in range(4): a(f"v_mov_b32 v{HS+i}, v{HV+i}")
    a(f"s_cmp_eq_u32 s{sT1}, 0"); a("s_cbranch_scc1 L_hs")
    for i in range(4): a(f"v_mov_b32 v{HS+i}, v{HV+4+i}")
    a(f"s_cmp_eq_u32 s{sT1}, 1"); a("s_cbranch_scc1 L_hs")
    for i in range(4): a(f"v_mov_b32 v{HS+i}, v{HV+8+i}")
    a.label("L_hs")
    for i in range(4): a(f"ds_bpermute_b32 v{HS+i}, v{T[0]}, v{HS+i}")
    a("s_waitcnt lgkmcnt(0)")
    stamp(11)
    def r_pre2():
        a(f"v_lshlrev_b32 v{SIG+1}, 3, v{vL}"); a(f"s_lshl_b32 s{sT0}, s{sRI}, 6"); a(f"v_add_u32 v{SIG+1}, s{sT0}, v{SIG+1}")
    reduce_parts(YY, 96, 3, L_RED2, pre=r_pre2)
    stamp(12)
    def rne4(b):
        a(f"v_cvt_pk_bf16_f32 v{b}, v{b}, v{b+1}"); a(f"v_cvt_pk_bf16_f32 v{b+2}, v{b+2}, v{b+3}")
        a(f"v_and_b32 v{b+1}, 0xffff0000, v{b}"); a(f"v_lshlrev_b32 v{b}, 16, v{b}"); a(f"v_and_b32 v{b+3}, 0xffff0000, v{b+2}"); a(f"v_lshlrev_b32 v{b+2}, 16, v{b+2}")
    rne4(RS)
    for i in range(4): a(f"v_mul_f32 v{RS+i}, v{RS+i}, v{SIG}")
    rne4(RS)
    pkadd(RS, RS, HS); pkadd(RS + 2, RS + 2, HS + 2)
    rne4(RS)
    pkadd(RS, RS, XS); pkadd(RS + 2, RS + 2, XS + 2)
    a(f"v_cvt_pk_bf16_f32 v{RS}, v{RS}, v{RS+1}"); a(f"v_cvt_pk_bf16_f32 v{RS+1}, v{RS+2}, v{RS+3}")
    a(f"s_cmp_lg_u32 s{sW}, 0"); a("s_cbranch_scc1 L_fin")
    set_exec("0x00000000000000ff")
    a(f"global_store_dwordx2 v{SIG+1}, {vr(RS,2)}, {sp(pOUT)}" + (" sc1" if outwt else ""))
    a(f"s_cmp_lg_u32 s{sRI}, 0"); a("s_cbranch_scc1 L_fin")
    set_exec(1)
    a(f"v_mov_b32 v{T[1]}, 0")
    a(f"buffer_store_dword v{vN}, v{T[1]}, {srd(WSR)}, 0 offen offset:{EPOCH}" + (" sc1" if outwt else ""))
    a.label("L_fin")
    dump_stamps()
    a.label("L_abort")
    a.label("L_end")
    a("s_endpgm")
    a.label("L_codeend")
    body = a.text()
    tail = f""".section .rodata,"a"
.p2align 6
.amdhsa_kernel {NAME}
  .amdhsa_next_free_vgpr {NV}
  .amdhsa_next_free_sgpr 100
  .amdhsa_accum_offset {NV}
  .amdhsa_group_segment_fixed_size 0
  .amdhsa_kernarg_size 104
  .amdhsa_user_sgpr_count 2
  .amdhsa_user_sgpr_kernarg_segment_ptr 1
  .amdhsa_system_sgpr_workgroup_id_x 1
.end_amdhsa_kernel
"""
    return body + tail

if __name__ == "__main__":
    kw = json.loads(sys.argv[1]) if len(sys.argv) > 1 else {}
    sys.stdout.write(gen(**kw))
```

```python
import sys, json, struct
from asmlib import Asm

NAME = "sequential_preLN__mha_block_cached__moe_arch_mod__decode_kernel"
HEADER = """
;
"""

def f32hex(x): return "0x%08x" % struct.unpack("<I", struct.pack("<f", x))[0]

HB = 12582912
EPOCH = 0
QP = 0x1000
ML = 0x48000
OP = 0x60000
ZZ = 0x130000
HH = 0x1D0000
YY = 0x181000
CLS = 0x1C0000
TT = 0x1C4000
GT = 0x1C8000
GLOB = 0x1C2000
PROG = 0x1C1000
WS_SIZE = 0x200000
L_XN = 0
L_Q = 5120
L_RED = 6656
L_RED2 = 12800
L_RED3 = 23040
L_SC = 25088
L_STAT = 2304
L_CTL = 2048
L_REDH = 25088 + 16384 + 512
LDS_BYTES = 25088 + 16384 + 512 + 6144
LOG2E = 1.4426950408889634

def gen(H=8, PK=13, ctl=1, thr=16, local=1, pace=1, wpol="nt", qpol="nt", stage1=64, nb=5, nx_=7, early=5, p2=0, stag=3, tctl=0, oploc=1, wb=0, wphase=0, tb=1, lastb=1, pfearly=1, outwt=0, donewt=0, delta=20, cpmax=24, kp=5, thrF=None, thrR=None, wmix=0, xctl=0, thr_odd=None, cthr=5, clead=1, thr_lo=10, thr_hi=32, cmed=16, lds=LDS_BYTES, dbg=0, pol="nt", spin=1 << 19, codepf=1):
    nph = 32 // H
    WPH = 256 // H
    NWH = WPH * 4
    G = 4096 // NWH
    NIT = G // 8
    STRIDE = NWH * 3072
    assert 2 <= PK <= 15 and NIT >= 4 and nb <= 9 and nx_ <= 12
    a = Asm()

    vL, vSA, vN = 1, 2, 3
    vM = [4, 5, 6, 7]; vA = 8
    vQ = 12
    vACC = 24
    vC, vMX, vP, vPN, vBC = 36, 37, 38, 39, 40
    T = list(range(41, 48))
    RING = 48
    W = 144
    vX = 204
    vLS, vAL, vRA, vOPA, WA, WB = 224, 225, 226, 227, 228, 230
    vZ, vFL = 232, 233
    NV = 240
    vST = 240
    if dbg: NV = 248
    def ring(slot, t): b = RING + slot * 12 + 4 * t; return f"v[{b}:{b+3}]"
    def vr(b, n): return f"v[{b}:{b+n-1}]"
    sW = 3
    pX, pK, pV, pWQ, pWO, pBX, pWR, pWG, pWU, pWD, pOUT, pDBG, pWS = [4 + 2 * i for i in range(13)]
    STR, WSR, TMP = 32, 36, 40
    sOff, sIt, sHead, sWI, sPh, sNon, sRole, sRI = 44, 45, 46, 47, 48, 49, 50, 51
    sSel = 52
    sSelG = 56
    sT0, sT1, sT2, sT3 = 57, 58, 59, 60
    sInc = 61
    sMask = 62
    sSlot, sJ, sInc4, sSpin = 78, 79, 80, 81
    sE = 82
    sBad = 84
    sU, sU2 = 86, 87
    sRow = 90
    sLoc, sBst, sPrv, sGI, sOH = 30, 31, 97, 98, 99
    sPkSel = 96
    def sp(b): return f"s[{b}:{b+1}]"
    def srd(b): return f"s[{b}:{b+3}]"
    USEFUL = "0xFF00FF0000FF00FF"

    def stamp(k):
        if not dbg: return
        if dbg == 3 and k not in (0, 3, 4, 6, 7, 9, 10, 12, 15): return
        if dbg == 2 and k not in (0, 15): return
        a("s_memrealtime s[88:89]"); a("s_waitcnt lgkmcnt(0)"); a(f"v_writelane_b32 v{vST}, s88, {k}")
    def dump_stamps(helper=False):
        if not dbg: return
        if dbg == 3:
            if helper: return
            n = newlab()
            stamp(15)
            a(f"s_cmp_lg_u32 s{sW}, 0"); a(f"s_cbranch_scc1 L_ds{n}")
            a("s_mov_b64 exec, -1")
            a(f"s_mov_b32 s40, s{pDBG}"); a(f"s_mov_b32 s41, s{pDBG+1}"); a("s_mov_b32 s42, 256"); a("s_mov_b32 s43, 0x20000")
            a(f"v_lshlrev_b32 v{vST+1}, 2, v{vL}")
            a(f"v_mov_b32 v{vST+2}, 0"); a(f"v_mov_b32 v{vST+3}, 0")
            for dst, src, inv in ((0,0,1),(1,3,0),(2,4,0),(3,4,1),(4,6,0),(5,6,1),(6,7,0),(7,9,0),(8,10,0),(9,12,0),(10,15,0)):
                a(f"v_readlane_b32 s88, v{vST}, {src}")
                if inv: a("s_not_b32 s88, s88")
                a("s_nop 3"); a(f"v_writelane_b32 v{vST+2}, s88, {dst}")
            a(f"v_readlane_b32 s89, v{vST}, 0")
            for dst, src in ((11,6),(12,4),(13,3)):
                a(f"v_readlane_b32 s88, v{vST}, {src}"); a("s_nop 3"); a("s_sub_u32 s88, s88, s89"); a("s_nop 3"); a(f"v_writelane_b32 v{vST+3}, s88, {dst}")
            a("s_mov_b64 exec, 0x7ff")
            a(f"buffer_atomic_umax v{vST+2}, v{vST+1}, s[40:43], 0 offen")
            a("s_mov_b64 exec, 0x3800")
            a(f"buffer_atomic_add v{vST+3}, v{vST+1}, s[40:43], 0 offen")
            a.label(f"L_ds{n}")
            return
        stamp(15)
        a("s_mov_b32 exec_lo, -1"); a("s_mov_b32 exec_hi, 0")
        if helper: a("s_add_u32 s88, s2, 1024")
        else: a(f"s_lshl_b32 s88, s2, 2"); a(f"s_add_u32 s88, s88, s{sW}")
        a("s_lshl_b32 s88, s88, 7"); a(f"s_add_u32 s88, s88, {WS_SIZE}")
        a(f"v_lshlrev_b32 v{vST+1}, 2, v{vL}")
        a(f"buffer_store_dword v{vST}, v{vST+1}, {srd(WSR)}, s88 offen")

    DPP4 = ("quad_perm:[1,0,3,2]", "quad_perm:[2,3,0,1]", "row_half_mirror", "row_mirror")
    def dpp(op, v, m): a(f"{op}_dpp v{v}, v{v}, v{v} {m} row_mask:0xf bank_mask:0xf")
    def swap_reduce(ops_vs, tmps, sw):
        for (op, v), t in zip(ops_vs, tmps): a(f"v_mov_b32 v{t}, v{v}")
        for (op, v), t in zip(ops_vs, tmps): a(f"{sw} v{t}, v{v}")
        for (op, v), t in zip(ops_vs, tmps): a(f"{op} v{v}, v{v}, v{t}")
    def allreduce_n(ops_vs, tmps):
        for m in DPP4:
            for op, v in ops_vs: dpp(op, v, m)
        swap_reduce(ops_vs, tmps, "v_permlane16_swap_b32")
        swap_reduce(ops_vs, tmps, "v_permlane32_swap_b32")
    def allreduce(op, v, t): allreduce_n([(op, v)], [t])
    def set_exec(val):
        if isinstance(val, str) and val.startswith("0x") and len(val) > 10:
            a(f"s_mov_b32 exec_lo, 0x{val[-8:]}"); a(f"s_mov_b32 exec_hi, 0x{val[2:-8]}")
        else:
            a(f"s_mov_b64 exec, {val}")
    def a_operand(src, dst=None):
        dst = vA if dst is None else dst
        for r in range(4): a(f"v_and_b32 v{dst+r}, v{src}, v{vM[r]}")
    def tag4(b):
        for r in range(4): a(f"v_perm_b32 v{b+r}, v{b+r}, v{vN}, s{sSel+r}")
    def check4(b, t0, t1, first):
        a(f"v_perm_b32 v{t0}, v{b+1}, v{b}, s{sSelG}")
        a(f"v_perm_b32 v{t1}, v{b+3}, v{b+2}, s{sSelG}")
        a(f"v_lshl_or_b32 v{t0}, v{t1}, 16, v{t0}")
        a(f"v_cmp_ne_u32 vcc, v{t0}, v{vN}")
        if first: a(f"s_mov_b64 {sp(sBad)}, vcc")
        else: a(f"s_or_b64 {sp(sBad)}, {sp(sBad)}, vcc")
    lab = [0]
    def newlab():
        lab[0] += 1; return lab[0]
    def poll(issue, check, pre=None, first_issued=False, first_wait=0):
        n = newlab()
        a(f"s_mov_b32 s{sSpin}, {spin}")
        if not first_issued: issue()
        if pre: pre()
        a(f"s_waitcnt vmcnt({first_wait})")
        a(f"s_branch L_pollchk{n}")
        a.label(f"L_poll{n}")
        a(f"s_sub_u32 s{sSpin}, s{sSpin}, 1")
        a(f"s_cmp_eq_u32 s{sSpin}, 0")
        a("s_cbranch_scc1 L_abort")
        issue()
        a("s_waitcnt vmcnt(0)")
        a.label(f"L_pollchk{n}")
        check()
        a(f"s_cmp_lg_u64 {sp(sBad)}, 0")
        a(f"s_cbranch_scc1 L_poll{n}")
    def poll2(issue, check, nld, stage1, pre=None):
        if not p2:
            poll(lambda: issue(0), lambda: check(0), pre=pre); stage1(0); return
        n = newlab()
        a(f"s_mov_b32 s{sSpin}, {spin}")
        issue(0)
        if pre: pre()
        if stag: a(f"s_sleep {stag}")
        issue(1)
        a.label(f"L_p2{n}")
        a(f"s_waitcnt vmcnt({nld})")
        check(0)
        a(f"s_cmp_eq_u64 {sp(sBad)}, 0"); a(f"s_cbranch_scc1 L_p2a{n}")
        issue(0)
        a(f"s_waitcnt vmcnt({nld})")
        check(1)
        a(f"s_cmp_eq_u64 {sp(sBad)}, 0"); a(f"s_cbranch_scc1 L_p2b{n}")
        issue(1)
        a(f"s_sub_u32 s{sSpin}, s{sSpin}, 1"); a(f"s_cmp_eq_u32 s{sSpin}, 0"); a("s_cbranch_scc1 L_abort")
        a(f"s_branch L_p2{n}")
        a.label(f"L_p2b{n}")
        stage1(1)
        a(f"s_branch L_p2j{n}")
        a.label(f"L_p2a{n}")
        stage1(0)
        a.label(f"L_p2j{n}")
    def pub_store(data, voff, soff):
        n = newlab()
        if local:
            a(f"s_cmp_eq_u32 s{sLoc}, 1"); a(f"s_cbranch_scc1 L_pl{n}")
        a(f"buffer_store_dwordx4 {data}, v{voff}, {srd(WSR)}, s{soff} offen sc1")
        if local:
            a(f"s_branch L_pd{n}")
            a.label(f"L_pl{n}")
            a(f"buffer_store_dwordx4 {data}, v{voff}, {srd(WSR)}, s{soff} offen")
            a.label(f"L_pd{n}")
    def rne(dst, src):
        a(f"v_cvt_pk_bf16_f32 v{dst}, v{src}, v{src}")
        a(f"v_lshlrev_b32 v{dst}, 16, v{dst}")
    def pkadd(d, x, y): a(f"v_pk_add_f32 {vr(d,2)}, {vr(x,2)}, {vr(y,2)}")
    def sum_quads(dst, srcs):
        for s in srcs:
            pkadd(dst, dst, s); pkadd(dst + 2, dst + 2, s + 2)

    def ln_consts(s1, s2, t):
        a(f"v_mul_f32 v{s1}, {f32hex(1.0/640)}, v{s1}")
        a(f"v_mul_f32 v{s2}, {f32hex(1.0/640)}, v{s2}")
        a(f"v_fma_f32 v{s2}, -v{s1}, v{s1}, v{s2}")
        a(f"v_max_f32 v{s2}, 0, v{s2}")
        rne(s2, s2)
        a(f"v_add_f32 v{s2}, {f32hex(1e-5)}, v{s2}")
        rne(s2, s2)
        rne(s1, s1)
        a(f"v_sqrt_f32 v{s2}, v{s2}")
        rne(s2, s2)

    def layernorm_full(val, pk, tmp, refine):
        t0, t1, t2, t3, t4 = tmp
        ONES = t4
        a(f"v_mov_b32 v{ONES}, 0x3f803f80")
        a(f"v_dot2_f32_bf16 v{t0}, v{pk}, v{ONES}, 0"); a(f"v_dot2_f32_bf16 v{t1}, v{pk}, v{pk}, 0")
        for i in range(1, 6):
            a(f"v_dot2_f32_bf16 v{t0}, v{pk+i}, v{ONES}, v{t0}"); a(f"v_dot2_f32_bf16 v{t1}, v{pk+i}, v{pk+i}, v{t1}")
        allreduce_n([("v_add_f32", t0), ("v_add_f32", t1)], [t2, t3])
        ln_consts(t0, t1, t2)
        a(f"v_rcp_f32 v{t4}, v{t1}")
        for i in range(0, 12, 2):
            a(f"v_sub_f32 v{val+i}, v{val+i}, v{t0}")
            a(f"v_sub_f32 v{val+i+1}, v{val+i+1}, v{t0}")
            a(f"v_cvt_pk_bf16_f32 v{t2}, v{val+i}, v{val+i+1}")
            a(f"v_lshlrev_b32 v{val+i}, 16, v{t2}")
            a(f"v_and_b32 v{val+i+1}, 0xffff0000, v{t2}")
            for k in (i, i + 1):
                if refine:
                    a(f"v_mul_f32 v{t2}, v{val+k}, v{t4}")
                    a(f"v_fma_f32 v{t3}, -v{t2}, v{t1}, v{val+k}")
                    a(f"v_fma_f32 v{val+k}, v{t3}, v{t4}, v{t2}")
                else:
                    a(f"v_mul_f32 v{val+k}, v{val+k}, v{t4}")
            a(f"v_cvt_pk_bf16_f32 v{pk + i//2}, v{val+i}, v{val+i+1}")
            a(f"v_lshlrev_b32 v{val+i}, 16, v{pk + i//2}")
            a(f"v_and_b32 v{val+i+1}, 0xffff0000, v{pk + i//2}")

    for ln in HEADER.strip("\n").split("\n"): a.lines.append(ln)
    a.lines.append(f"; @launch grid=(256,1,1) block=(320,1,1) lds={lds}")
    a.lines.append('.amdgcn_target "amdgcn-amd-amdhsa--gfx950"')
    a.lines += [".text", f".globl {NAME}", ".p2align 8", f".type {NAME},@function"]
    a.label(NAME)
    a("s_cmp_ge_u32 s2, 256")
    a("s_cbranch_scc1 L_end")
    a("s_load_dwordx16 s[4:19], s[0:1], 0")
    a("s_load_dwordx8 s[20:27], s[0:1], 64")
    a("s_load_dwordx2 s[28:29], s[0:1], 96")
    a(f"v_and_b32 v{vL}, 63, v0")
    a(f"v_lshrrev_b32 v{T[0]}, 6, v0")
    a(f"v_lshrrev_b32 v{T[2]}, 3, v{vL}")
    a(f"v_readfirstlane_b32 s{sW}, v{T[0]}")
    a(f"v_and_b32 v{T[3]}, 7, v{vL}")
    a(f"v_lshlrev_b32 v{T[4]}, 4, v{T[3]}")
    def masks():
        for r in range(4):
            a(f"v_mov_b32 v{vM[r]}, 0")
            a(f"v_mov_b32 v{T[5]}, 0xffff")
            a(f"v_cmp_eq_u32 vcc, {2*r}, v{T[3]}")
            a(f"v_cndmask_b32 v{vM[r]}, v{vM[r]}, v{T[5]}, vcc")
            a(f"v_mov_b32 v{T[5]}, 0xffff0000")
            a(f"v_cmp_eq_u32 vcc, {2*r+1}, v{T[3]}")
            a(f"v_cndmask_b32 v{vM[r]}, v{vM[r]}, v{T[5]}, vcc")
    def ws_srd():
        a(f"s_mov_b32 s{WSR}, s{pWS}"); a(f"s_mov_b32 s{WSR+1}, s{pWS+1}"); a(f"s_mov_b32 s{WSR+2}, {WS_SIZE * (2 if dbg else 1)}"); a(f"s_mov_b32 s{WSR+3}, 0x20000")
    vq = []
    def wait_for(name):
        if name not in vq: return
        idx = max(i for i, n in enumerate(vq) if n == name)
        n = len(vq) - 1 - idx
        a(f"s_waitcnt vmcnt({min(n, 63)})")
        del vq[:idx + 1]
    def red_addr():
        a(f"v_lshrrev_b32 v{T[0]}, 5, v{vL}")
        a(f"v_mul_u32_u24 v{vRA}, 768, v{T[0]}")
        a(f"v_and_b32 v{T[0]}, 7, v{vL}"); a(f"v_lshlrev_b32 v{T[0]}, 5, v{T[0]}"); a(f"v_add_u32 v{vRA}, v{vRA}, v{T[0]}")
        a(f"v_and_b32 v{T[0]}, 16, v{vL}"); a(f"v_add_u32 v{vRA}, v{vRA}, v{T[0]}")
        a(f"s_mul_i32 s{sT0}, s{sW}, 1536"); a(f"v_add_u32 v{vRA}, s{sT0}, v{vRA}")
    def red_write():
        set_exec(USEFUL)
        for t in range(3): a(f"ds_write_b128 v{vRA}, {vr(vACC+4*t,4)} offset:{L_RED + 256*t}")
        set_exec(-1)
    a(f"s_cmp_lg_u32 s{sW}, 4"); a("s_cbranch_scc1 L_stream")
    a("s_setprio 3")

    WD = RING
    XQ = 168
    XV = 176
    XR = 188
    a(f"s_and_b32 s{sT0}, s2, 31"); a(f"s_lshr_b32 s{sT1}, s2, 5")
    a(f"v_mul_u32_u24 v{T[6]}, 12288, v{T[2]}")
    a(f"s_mul_i32 s{sT2}, s{sT0}, 384")
    a(f"v_add3_u32 v{T[6]}, v{T[6]}, v{T[4]}, s{sT2}")
    a(f"s_mul_i32 s{sT3}, s{sT1}, {80*12288}")
    a(f"v_lshlrev_b32 v{T[1]}, 3, v{vL}")
    a(f"v_add_u32 v{T[5]}, 1024, v{T[1]}")
    a(f"v_min_u32 v{T[5]}, 1272, v{T[5]}")
    a(f"s_mov_b32 s{TMP+2}, 7864320"); a(f"s_mov_b32 s{TMP+3}, 0x20000")
    a("s_waitcnt lgkmcnt(0)")
    a(f"s_mov_b32 s{TMP}, s{pWQ}"); a(f"s_mov_b32 s{TMP+1}, s{pWQ+1}")
    a(f"global_load_dwordx2 {vr(XQ,2)}, v{T[1]}, {sp(pX)}")
    a(f"global_load_dwordx2 {vr(XQ+2,2)}, v{T[1]}, {sp(pX)} offset:512")
    a(f"global_load_dwordx2 {vr(XQ+4,2)}, v{T[5]}, {sp(pX)}")
    vq += ["x0", "x1", "x2"]
    for k in range(10):
        for t in range(3):
            a(f"buffer_load_dwordx4 {vr(WD + 12*k + 4*t, 4)}, v{T[6]}, {srd(TMP)}, s{sT3} offen offset:{128*t} {qpol}")
            vq.append(f"wq{k}")
        if k < 9: a(f"s_add_u32 s{sT3}, s{sT3}, {8*12288}")
    a("s_barrier")
    if codepf and pfearly:
        a(f"s_getpc_b64 {sp(58)}")
        a.label("L_pc")
        a(f"s_lshr_b32 s{sT3}, s2, 3"); a(f"s_lshl_b32 s{sT3}, s{sT3}, 9")
        a(f"v_and_b32 v{T[0]}, 7, v{vL}"); a(f"v_lshlrev_b32 v{T[0]}, 6, v{T[0]}"); a(f"v_add_u32 v{T[0]}, s{sT3}, v{T[0]}")
        a(f"v_add_u32 v{T[0]}, L_kcode-L_pc, v{T[0]}")
        a(f"v_min_u32 v{T[0]}, L_codeend-L_pc-4, v{T[0]}")
        a(f"global_load_dword v{vAL}, v{T[0]}, {sp(58)}")
        vq.append("pf")
    a(f"v_mov_b32 v{vZ}, 0")
    for o in range(0, 36, 4): a(f"ds_write_b32 v{vZ}, v{vZ} offset:{L_CTL + o}")
    a(f"s_load_dword s{sNon}, {sp(pWS)}, {EPOCH}")
    if dbg: a(f"v_mov_b32 v{vST}, 0")
    stamp(0)
    masks()
    ws_srd()
    a(f"s_and_b32 s{sSlot}, s2, {H-1}")
    wait_for("x2")
    stamp(18)
    CE = 198
    a("s_waitcnt lgkmcnt(0)")
    a(f"s_add_u32 s{sNon}, s{sNon}, 0x9e3779b9")
    a(f"v_mov_b32 v{vN}, s{sNon}")
    a(f"s_getreg_b32 s{sT0}, hwreg(HW_REG_XCC_ID, 0, 4)")
    a(f"s_and_b32 s{sRole}, s{sT0}, 1")
    a(f"s_and_b32 s{sT1}, s{sNon}, 0xfffffff0"); a(f"s_or_b32 s{sT0}, s{sT0}, s{sT1}")
    a(f"v_mov_b32 v{CE}, s{sT0}")
    a(f"s_and_b32 s{sU2}, s2, 7"); a(f"s_lshl_b32 s{sU2}, s{sU2}, 7")
    a(f"s_lshr_b32 s{sT1}, s2, 3"); a(f"s_lshl_b32 s{sT1}, s{sT1}, 2"); a(f"s_add_u32 s{sT1}, s{sT1}, s{sU2}"); a(f"s_add_u32 s{sT1}, s{sT1}, {CLS}")
    if local:
        set_exec(1)
        a(f"buffer_store_dword v{CE}, v{vZ}, {srd(WSR)}, s{sT1} offen")
        set_exec(-1)
        vq.append("cls_st")
    a(f"v_cmp_gt_u32 vcc, 32, v{vL}")
    a(f"v_cndmask_b32 v{XQ+4}, 0, v{XQ+4}, vcc"); a(f"v_cndmask_b32 v{XQ+5}, 0, v{XQ+5}, vcc")
    for k in range(6):
        a(f"v_lshlrev_b32 v{XV+2*k}, 16, v{XQ+k}")
        a(f"v_and_b32 v{XV+2*k+1}, 0xffff0000, v{XQ+k}")
    layernorm_full(XV, XQ, T[0:5], True)
    a(f"v_lshlrev_b32 v{T[0]}, 3, v{vL}")
    a(f"ds_write_b64 v{T[0]}, {vr(XQ,2)} offset:{L_XN}")
    a(f"ds_write_b64 v{T[0]}, {vr(XQ+2,2)} offset:{L_XN+512}")
    set_exec("0x00000000ffffffff")
    a(f"ds_write_b64 v{T[0]}, {vr(XQ+4,2)} offset:{L_XN+1024}")
    set_exec(-1)
    a(f"s_lshr_b32 s{sT1}, s2, 5"); a(f"s_mul_i32 s{sT1}, s{sT1}, 160")
    a(f"v_lshrrev_b32 v{T[0]}, 3, v{vL}"); a(f"v_lshlrev_b32 v{T[0]}, 1, v{T[0]}"); a(f"v_add_u32 v{T[0]}, s{sT1}, v{T[0]}")
    a("s_waitcnt lgkmcnt(0)")
    for k in range(10): a(f"ds_read_u16 v{XR+k}, v{T[0]} offset:{L_XN + 16*k}")
    for i in range(12): a(f"v_mov_b32 v{vACC+i}, 0")
    a("s_waitcnt lgkmcnt(0)")
    for k in range(10): a(f"v_lshl_or_b32 v{XR+k}, v{XR+k}, 16, v{XR+k}")
    stamp(1)
    def cls_issue():
        a(f"v_and_b32 v{T[5]}, 31, v{vL}"); a(f"v_lshlrev_b32 v{T[5]}, 2, v{T[5]}")
        a(f"s_add_u32 s{sT2}, s{sU2}, {CLS}")
        a(f"buffer_load_dword v{CE+1}, v{T[5]}, {srd(WSR)}, s{sT2} offen sc1")
    for k in range(10):
        a_operand(XR + k)
        if k == 8 and local:
            cls_issue(); vq.append("cls_ld")
        wait_for(f"wq{k}")
        for t in range(3):
            a(f"v_mfma_f32_16x16x32_bf16 {vr(vACC+4*t,4)}, {vr(vA,4)}, {vr(WD+12*k+4*t,4)}, {vr(vACC+4*t,4)}")
    a(f"v_lshrrev_b32 v{T[0]}, 5, v{vL}"); a(f"v_mul_u32_u24 v{vRA}, 768, v{T[0]}")
    a(f"v_and_b32 v{T[0]}, 7, v{vL}"); a(f"v_lshlrev_b32 v{T[0]}, 5, v{T[0]}"); a(f"v_add_u32 v{vRA}, v{vRA}, v{T[0]}")
    a(f"v_and_b32 v{T[0]}, 16, v{vL}"); a(f"v_add_u32 v{vRA}, v{vRA}, v{T[0]}")
    a(f"v_mul_u32_u24 v{T[0]}, 12, v{vL}")
    a(f"s_and_b32 s{sT0}, s2, 31"); a(f"s_lshr_b32 s{sT1}, s2, 5"); a(f"s_lshl_b32 s{sT0}, s{sT0}, 3"); a(f"s_add_u32 s{sT0}, s{sT0}, s{sT1}")
    a(f"s_lshl_b32 s{sT0}, s{sT0}, 10"); a(f"s_add_u32 s{sT0}, s{sT0}, {QP}")
    a(f"v_lshlrev_b32 v{T[1]}, 4, v{vL}")
    red_write()
    a("s_waitcnt lgkmcnt(0)")
    S3 = 200
    for s in range(2):
        for i in range(3): a(f"ds_read_b32 v{S3+4*s+i}, v{T[0]} offset:{L_RED + 768*s + 4*i}")
    a("s_waitcnt lgkmcnt(0)")
    pkadd(S3, S3, S3 + 4); a(f"v_add_f32 v{S3+2}, v{S3+2}, v{S3+6}")
    a(f"v_mov_b32 v{S3+3}, v{vN}")
    a(f"s_mov_b32 s{sLoc}, 0")
    if local:
        a(f"s_mov_b32 s{sSpin}, 8")
        a("s_waitcnt vmcnt(0)")
        a.label("L_clschk")
        a(f"v_cmp_ne_u32 vcc, v{CE+1}, v{CE}")
        a(f"s_cmp_eq_u64 vcc, 0"); a(f"s_cselect_b32 s{sLoc}, 1, 0"); a("s_cbranch_scc1 L_clsdone")
        a(f"s_sub_u32 s{sSpin}, s{sSpin}, 1"); a(f"s_cmp_eq_u32 s{sSpin}, 0"); a("s_cbranch_scc1 L_clsdone")
        cls_issue(); a("s_waitcnt vmcnt(0)"); a("s_branch L_clschk")
        a.label("L_clsdone")
    pub_store(vr(S3,4), T[1], sT0)
    a(f"v_mov_b32 v{T[2]}, s{sLoc}"); a(f"ds_write_b32 v{vZ}, v{T[2]} offset:{L_CTL + 8}")
    stamp(21)
    S4 = RING
    for p in range(nph):
        a(f"s_add_u32 s{sU}, s{sSlot}, {H*p}"); a(f"s_lshl_b32 s{sU}, s{sU}, 13"); a(f"s_add_u32 s{sU}, s{sU}, {QP}")
        def iss():
            for s in range(8):
                a(f"s_add_u32 s{sT1}, s{sU}, {1024*s}")
                a(f"buffer_load_dwordx4 {vr(S4+4*s,4)}, v{T[1]}, {srd(WSR)}, s{sT1} offen sc1")
        def chk():
            for s in range(8):
                a(f"v_cmp_ne_u32 vcc, v{S4+4*s+3}, v{vN}")
                a(f"s_mov_b64 {sp(sBad)}, vcc" if s == 0 else f"s_or_b64 {sp(sBad)}, {sp(sBad)}, vcc")
        poll(iss, chk)
        if p == 0: stamp(22)
        for s in range(1, 8):
            pkadd(S4, S4, S4 + 4*s); a(f"v_add_f32 v{S4+2}, v{S4+2}, v{S4+4*s+2}")
        a(f"v_cvt_pk_bf16_f32 v{S4}, v{S4}, v{S4+1}")
        a(f"v_cvt_pk_bf16_f32 v{S4+2}, v{S4+2}, v{S4+2}")
        a(f"v_mul_u32_u24 v{T[0]}, 6, v{vL}")
        a(f"ds_write_b16 v{T[0]}, v{S4} offset:{L_Q + 384*p}")
        a(f"ds_write_b16_d16_hi v{T[0]}, v{S4} offset:{L_Q + 384*p + 2}")
        a(f"ds_write_b16 v{T[0]}, v{S4+2} offset:{L_Q + 384*p + 4}")
        a("s_waitcnt lgkmcnt(0)")
        if nph > 1:
            a(f"v_mov_b32 v{T[0]}, {p+1}"); a(f"ds_write_b32 v{vZ}, v{T[0]} offset:{L_CTL + 32}"); a("s_waitcnt lgkmcnt(0)")
        if p == 0:
            a("s_barrier")
            if codepf and not pfearly:
                a(f"s_getpc_b64 {sp(58)}")
                a.label("L_pc")
                a(f"s_lshr_b32 s{sT3}, s2, 3"); a(f"s_lshl_b32 s{sT3}, s{sT3}, 9")
                a(f"v_and_b32 v{T[0]}, 7, v{vL}"); a(f"v_lshlrev_b32 v{T[0]}, 6, v{T[0]}"); a(f"v_add_u32 v{T[0]}, s{sT3}, v{T[0]}")
                a(f"v_add_u32 v{T[0]}, L_kcode-L_pc, v{T[0]}")
                a(f"v_min_u32 v{T[0]}, L_codeend-L_pc-4, v{T[0]}")
                a(f"global_load_dword v{vAL}, v{T[0]}, {sp(58)}")
    if ctl or nph > 1:
        NTOT = 2 * NIT * nph
        sPub = sPh
        HBUF = RING
        a(f"s_and_b32 s{sT0}, s{sNon}, 0xffffff00"); a(f"v_mov_b32 v{T[3]}, s{sT0}")
        a(f"s_add_u32 s{sU}, s{sU2}, {PROG}")
        a(f"v_lshlrev_b32 v{T[4]}, 2, v{vL}"); a(f"v_mov_b32 v{T[5]}, 0x800"); a(f"v_cmp_gt_u32 vcc, 32, v{vL}"); a(f"v_cndmask_b32 v{T[4]}, v{T[5]}, v{T[4]}, vcc")
        a(f"s_lshr_b32 s{sT1}, s2, 3"); a(f"s_lshl_b32 s{sT1}, s{sT1}, 2"); a(f"v_mov_b32 v{T[5]}, s{sT1}")
        sCN, sLead, sThr = sWI, sOff, sIt
        a(f"s_mov_b32 s{sCN}, 1"); a(f"s_cmp_lt_u32 s2, 8"); a(f"s_cselect_b32 s{sLead}, 1, 0")
        a(f"v_lshlrev_b32 v{vBC}, 8, v{vL}"); a(f"v_min_u32 v{vBC}, {7*256}, v{vBC}")
        a(f"s_and_b32 s{sT2}, s2, 7"); a(f"s_lshl_b32 s{sT2}, s{sT2}, 8"); a(f"v_mov_b32 v{vP}, s{sT2}")
        a(f"v_mov_b32 v{vPN}, 0x800")
        sA, sAp, sAn, sTau, sHave, sK, sLcp, sTn = 62, 63, 64, 65, 66, 67, 68, 70
        if tctl:
            a(f"s_mov_b32 s{sLcp}, 4"); a(f"s_mov_b32 s{sK}, 4"); a(f"s_mov_b32 s{sHave}, 0")
            a(f"s_mov_b32 s{sA}, 0"); a(f"s_mov_b32 s{sAp}, 0"); a(f"s_mov_b32 s{sAn}, 0"); a(f"s_mov_b32 s{sTau}, 0")
            a(f"s_and_b32 s{sT2}, s2, 7"); a(f"s_lshl_b32 s{sT2}, s{sT2}, 8")
            a(f"v_and_b32 v{vBC}, 31, v{vL}"); a(f"v_lshlrev_b32 v{vBC}, 3, v{vBC}"); a(f"v_add_u32 v{vBC}, s{sT2}, v{vBC}")
            a(f"s_lshr_b32 s{sT3}, s2, 3"); a(f"s_lshl_b32 s{sT3}, s{sT3}, 3"); a(f"s_add_u32 s{sT3}, s{sT3}, s{sT2}"); a(f"v_mov_b32 v{vP}, s{sT3}")
            a(f"v_min_u32 v{vPN}, 7, v{vL}"); a(f"v_lshlrev_b32 v{vPN}, 8, v{vPN}")
            a(f"v_mov_b32 v{vC}, s{sT2}")
        a(f"s_mov_b32 s{sGI}, 0"); a(f"s_mov_b32 s{sSpin}, {1 << 22}"); a(f"s_mov_b32 s{sPub}, 0")
        if nph > 1:
            for r in range(4): a(f"s_mov_b32 s{sSel+r}, 0x{0x07060500 | r:08x}")
            a(f"s_lshr_b32 s{sJ}, s2, {H.bit_length()-1}")
            a(f"v_mul_u32_u24 v{T[1]}, 43691, v{vL}"); a(f"v_lshrrev_b32 v{T[1]}, 19, v{T[1]}")
            a(f"v_mul_u32_u24 v{T[2]}, 12, v{T[1]}"); a(f"v_sub_u32 v{T[2]}, v{vL}, v{T[2]}")
            a(f"v_mul_u32_u24 v{T[1]}, {WPH*192}, v{T[1]}"); a(f"v_lshlrev_b32 v{T[2]}, 4, v{T[2]}"); a(f"v_add_u32 v{vOPA}, v{T[1]}, v{T[2]}")
            a(f"v_lshlrev_b32 v{vRA}, 4, v{vL}")
        a.label("L_cspin")
        a("s_sleep 4")
        a(f"ds_read_b32 v{T[0]}, v{vZ} offset:{L_CTL}")
        if nph > 1: a(f"ds_read_b128 {vr(vA,4)}, v{vZ} offset:{L_CTL + 16}")
        a("s_waitcnt lgkmcnt(0)"); a(f"v_readfirstlane_b32 s{sT0}, v{T[0]}")
        a(f"s_sub_u32 s{sSpin}, s{sSpin}, 1"); a(f"s_cmp_eq_u32 s{sSpin}, 0"); a("s_cbranch_scc1 L_cdone")
        if nph > 1:
            a(f"v_min_u32 v{vA}, v{vA}, v{vA+1}"); a(f"v_min_u32 v{vA+2}, v{vA+2}, v{vA+3}"); a(f"v_min_u32 v{vA}, v{vA}, v{vA+2}")
            a(f"v_readfirstlane_b32 s{sT1}, v{vA}")
            a(f"s_cmp_gt_u32 s{sT1}, s{sPub}"); a("s_cbranch_scc0 L_cnopub")
            set_exec("0x0000ffffffffffff")
            for s_ in range(8): a(f"ds_read_b128 {vr(HBUF+4*s_,4)}, v{vRA} offset:{L_REDH + 768*s_}")
            a("s_waitcnt lgkmcnt(0)")
            a(f"s_add_u32 s{sT1}, s{sPub}, 1"); a(f"v_mov_b32 v{T[1]}, s{sT1}"); a(f"ds_write_b32 v{vZ}, v{T[1]} offset:{L_CTL + 12}")
            sum_quads(HBUF, [HBUF + 4*k for k in range(1, 8)])
            tag4(HBUF)
            a(f"s_mul_i32 s{sT2}, s{sPub}, {H}"); a(f"s_add_u32 s{sT2}, s{sT2}, s{sSlot}")
            a(f"s_mul_i32 s{sT2}, s{sT2}, {4*WPH*192}"); a(f"s_mul_i32 s{sT3}, s{sJ}, 192"); a(f"s_add_u32 s{sT2}, s{sT2}, s{sT3}"); a(f"s_add_u32 s{sT2}, s{sT2}, {OP}")
            pub_store(vr(HBUF,4), vOPA, sT2)
            set_exec(-1)
            a(f"s_mov_b32 s{sPub}, s{sT1}")
            a.label("L_cnopub")
        if ctl and tctl:
            a(f"s_cmp_eq_u32 s{sLead}, 0"); a("s_cbranch_scc1 L_tnolead")
            a(f"s_cmp_gt_u32 s{sLcp}, {cpmax}"); a("s_cbranch_scc1 L_tnolead")
            a(f"s_cmp_gt_u32 s{sLcp}, s{sGI}"); a("s_cbranch_scc1 L_tnolead")
            a(f"s_lshl_b32 s72, s{sLcp}, 9"); a(f"s_add_u32 s72, s72, {TT - 2048}")
            a(f"buffer_load_dwordx2 {vr(vA,2)}, v{vBC}, {srd(WSR)}, s72 offen sc1")
            a("s_waitcnt vmcnt(0)")
            a(f"v_cmp_eq_u32 vcc, v{vA+1}, v{vN}"); a("s_cmp_eq_u32 vcc_lo, -1"); a("s_cbranch_scc0 L_tnolead")
            a(f"v_readlane_b32 s73, v{vA}, 0"); a("s_nop 1")
            a(f"v_subrev_u32 v{vA}, s73, v{vA}")
            allreduce("v_add_u32", vA, vA + 2)
            a(f"v_readfirstlane_b32 s74, v{vA}"); a("s_nop 1")
            a("s_ashr_i32 s74, s74, 6"); a("s_add_u32 s73, s73, s74")
            a(f"v_mov_b32 v{vA}, s73"); a(f"v_mov_b32 v{vA+1}, v{vN}")
            a(f"s_lshl_b32 s72, s{sLcp}, 9"); a(f"s_add_u32 s72, s72, {GT - 2048}")
            set_exec(1)
            a(f"buffer_store_dwordx2 {vr(vA,2)}, v{vC}, {srd(WSR)}, s72 offen sc1")
            set_exec(-1)
            a(f"s_add_u32 s{sLcp}, s{sLcp}, 4")
            a.label("L_tnolead")
        if ctl:
            a(f"s_cmp_lg_u32 s{sT0}, s{sGI}"); a("s_cbranch_scc1 L_cchg")
            if xctl:
                a(f"s_cmp_eq_u32 s{sLead}, 0"); a("s_cbranch_scc1 L_cchk")
                a(f"buffer_load_dword v{T[1]}, v{T[4]}, {srd(WSR)}, s{sU} offen sc1")
                a("s_waitcnt vmcnt(0)")
                a(f"v_xor_b32 v{T[1]}, v{T[1]}, v{T[3]}")
                a("s_branch L_clead")
            else:
                a("s_branch L_cchk")
            a.label("L_cchg")
            a(f"s_mov_b32 s{sGI}, s{sT0}")
            if tctl:
                a(f"s_memrealtime {sp(sTn)}"); a("s_waitcnt lgkmcnt(0)")
                a(f"s_and_b32 s72, s{sGI}, 3"); a("s_cmp_eq_u32 s72, 0"); a("s_cbranch_scc0 L_tnocp")
                a(f"s_cmp_gt_u32 s{sGI}, {cpmax}"); a("s_cbranch_scc1 L_tnocp")
                a(f"s_lshl_b32 s72, s{sGI}, 9"); a(f"s_add_u32 s72, s72, {TT - 2048}")
                a(f"v_mov_b32 v{vA}, s{sTn}"); a(f"v_mov_b32 v{vA+1}, v{vN}")
                set_exec(1)
                a(f"buffer_store_dwordx2 {vr(vA,2)}, v{vP}, {srd(WSR)}, s72 offen")
                set_exec(-1)
                a.label("L_tnocp")
                a(f"s_cmp_gt_u32 s{sK}, {cpmax}"); a("s_cbranch_scc1 L_tnoget")
                a(f"s_cmp_le_u32 s{sGI}, s{sK}"); a("s_cbranch_scc1 L_tnoget")
                a(f"s_lshl_b32 s72, s{sK}, 9"); a(f"s_add_u32 s72, s72, {GT - 2048}")
                a(f"buffer_load_dwordx2 {vr(vA,2)}, v{vPN}, {srd(WSR)}, s72 offen sc1")
                a("s_waitcnt vmcnt(0)")
                a(f"v_cmp_eq_u32 vcc, v{vA+1}, v{vN}"); a("s_and_b32 s72, vcc_lo, 0xff"); a("s_cmp_eq_u32 s72, 0xff"); a("s_cbranch_scc0 L_tnoget")
                a(f"s_and_b32 s75, s2, 7"); a(f"v_readlane_b32 s73, v{vA}, 0"); a("s_nop 3"); a(f"v_readlane_b32 s75, v{vA}, s75"); a("s_nop 1")
                a(f"v_subrev_u32 v{vA}, s73, v{vA}")
                a(f"v_cmp_gt_u32 vcc, 8, v{vL}"); a(f"v_cndmask_b32 v{vA}, 0, v{vA}, vcc")
                allreduce("v_add_u32", vA, vA + 2)
                a(f"v_readfirstlane_b32 s74, v{vA}"); a("s_nop 1")
                a("s_ashr_i32 s74, s74, 3"); a("s_add_u32 s73, s73, s74")
                if tctl == 2:
                    a("s_sub_i32 s75, s75, s73"); a(f"s_mul_i32 s75, s75, {kp}"); a("s_ashr_i32 s75, s75, 6"); a(f"s_sub_i32 s{sTau}, 0, s75")
                    a(f"s_add_u32 s{sK}, s{sK}, 4")
                    a("s_branch L_tnoget")
                a(f"s_cmp_eq_u32 s{sK}, 4"); a("s_cbranch_scc1 L_tfirst")
                a(f"s_sub_u32 s{sTau}, s73, s{sAp}"); a(f"s_lshr_b32 s{sTau}, s{sTau}, 2"); a(f"s_mov_b32 s{sHave}, 1")
                a.label("L_tfirst")
                a(f"s_mov_b32 s{sAp}, s73"); a(f"s_mov_b32 s{sA}, s73"); a(f"s_mov_b32 s{sAn}, s{sK}"); a(f"s_add_u32 s{sK}, s{sK}, 4")
                a.label("L_tnoget")
                if tctl == 2: a("s_branch L_trank")
                a(f"s_cmp_eq_u32 s{sHave}, 0"); a("s_cbranch_scc1 L_trank")
                a(f"s_sub_u32 s72, s{sGI}, s{sAn}"); a(f"s_mul_i32 s72, s72, s{sTau}"); a(f"s_add_u32 s72, s72, s{sA}")
                a(f"s_sub_u32 s72, s{sTn}, s72")
                a(f"s_cmp_gt_i32 s72, {delta}"); a(f"s_cselect_b32 s72, 1, 0")
                a(f"v_mov_b32 v{T[0]}, s72"); a(f"ds_write_b32 v{vZ}, v{T[0]} offset:{L_CTL + 4}")
                a("s_branch L_cchk")
                a.label("L_trank")
            a(f"buffer_load_dword v{T[1]}, v{T[4]}, {srd(WSR)}, s{sU} offen sc1")
            a(f"v_or_b32 v{T[2]}, s{sGI}, v{T[3]}")
            set_exec(1)
            a(f"buffer_store_dword v{T[2]}, v{T[5]}, {srd(WSR)}, s{sU} offen")
            set_exec(-1)
            a("s_waitcnt vmcnt(1)")
            a(f"v_xor_b32 v{T[1]}, v{T[1]}, v{T[3]}")
            a(f"s_mov_b32 s{sThr}, {thr}")
            if thrF is not None:
                a(f"s_lshr_b32 s{sT3}, s2, 3"); a(f"s_sub_u32 s{sT3}, s{sT3}, 16"); a(f"s_cmp_lt_u32 s{sT3}, 12"); a(f"s_cselect_b32 s{sThr}, {thrF}, s{sThr}")
            if thrR is not None:
                a(f"s_lshr_b32 s{sT3}, s2, 3"); a(f"s_cmp_ge_u32 s{sT3}, 28"); a(f"s_cselect_b32 s{sThr}, {thrR}, s{sThr}")
            if thr_odd is not None:
                a(f"s_cmp_eq_u32 s{sRole}, 1"); a(f"s_cselect_b32 s{sThr}, {thr_odd}, s{sThr}")
            if tctl == 2:
                a(f"s_add_i32 s{sThr}, s{sThr}, s{sTau}"); a(f"s_max_i32 s{sThr}, s{sThr}, 3"); a(f"s_min_i32 s{sThr}, s{sThr}, 32")
            if xctl:
                a(f"v_readlane_b32 s{sT3}, v{T[1]}, 32")
                a("s_nop 1")
                a(f"s_cmp_eq_u32 s{sT3}, 2"); a(f"s_cselect_b32 s{sThr}, {thr_lo}, s{sThr}")
                a(f"s_cmp_eq_u32 s{sT3}, 0"); a(f"s_cselect_b32 s{sThr}, {thr_hi}, s{sThr}")
            a(f"v_cmp_le_u32 vcc, s{sGI}, v{T[1]}"); a(f"s_mov_b32 s{sT2}, vcc_lo")
            a(f"v_cmp_gt_u32 vcc, 256, v{T[1]}"); a(f"s_and_b32 s{sT2}, s{sT2}, vcc_lo")
            a(f"s_bcnt1_i32_b32 s{sT2}, s{sT2}")
            a(f"s_cmp_ge_u32 s{sT2}, s{sThr}"); a(f"s_cselect_b32 s{sT2}, 1, 0")
            a(f"v_mov_b32 v{T[0]}, s{sT2}"); a(f"ds_write_b32 v{vZ}, v{T[0]} offset:{L_CTL + 4}")
            if xctl:
                a(f"s_cmp_eq_u32 s{sLead}, 0"); a("s_cbranch_scc1 L_cchk")
                a.label("L_clead")
                a(f"v_cmp_le_u32 vcc, s{sCN}, v{T[1]}"); a(f"s_mov_b32 s{sT2}, vcc_lo")
                a(f"v_cmp_gt_u32 vcc, 256, v{T[1]}"); a(f"s_and_b32 s{sT2}, s{sT2}, vcc_lo")
                a(f"s_bcnt1_i32_b32 s{sT2}, s{sT2}")
                a(f"s_cmp_ge_u32 s{sT2}, {cmed}"); a("s_cbranch_scc0 L_cchk")
                a(f"s_mov_b32 s{sT2}, {GLOB}")
                a(f"buffer_load_dword v{T[1]}, v{vBC}, {srd(WSR)}, s{sT2} offen sc1")
                a(f"v_or_b32 v{T[2]}, s{sCN}, v{T[3]}")
                set_exec(1)
                a(f"buffer_store_dword v{T[2]}, v{vP}, {srd(WSR)}, s{sT2} offen sc1")
                set_exec(-1)
                a("s_waitcnt vmcnt(1)")
                a(f"v_xor_b32 v{T[1]}, v{T[1]}, v{T[3]}")
                a(f"v_cmp_le_u32 vcc, s{sCN}, v{T[1]}"); a(f"s_and_b32 s{sT2}, vcc_lo, 0xff")
                a(f"v_cmp_gt_u32 vcc, 256, v{T[1]}"); a(f"s_and_b32 s{sT2}, s{sT2}, vcc_lo")
                a(f"s_bcnt1_i32_b32 s{sT2}, s{sT2}")
                a(f"s_mov_b32 s{sT3}, 1")
                a(f"s_cmp_ge_u32 s{sT2}, {cthr}"); a(f"s_cselect_b32 s{sT3}, 2, s{sT3}")
                if clead >= 0:
                    a(f"s_cmp_le_u32 s{sT2}, {clead}"); a(f"s_cselect_b32 s{sT3}, 0, s{sT3}")
                a(f"v_or_b32 v{T[2]}, s{sT3}, v{T[3]}")
                set_exec(1)
                a(f"buffer_store_dword v{T[2]}, v{vPN}, {srd(WSR)}, s{sU} offen")
                set_exec(-1)
                a(f"s_add_u32 s{sCN}, s{sCN}, 1")
            a.label("L_cchk")
            a(f"s_cmp_lt_u32 s{sGI}, {NTOT - 2}"); a("s_cbranch_scc1 L_cspin")
        if nph > 1:
            a(f"s_cmp_lt_u32 s{sPub}, {nph - 1}"); a("s_cbranch_scc1 L_cspin")
        a.label("L_cdone")
        a("s_waitcnt vmcnt(0) lgkmcnt(0)")
    dump_stamps(True)
    a("s_endpgm")

    a.label("L_stream")
    vq[:] = []
    a(f"v_mul_u32_u24 v{vSA}, 384, v{T[2]}")
    a(f"v_add_u32 v{vSA}, v{vSA}, v{T[4]}")
    a(f"s_and_b32 s{sSlot}, s2, {H-1}")
    a(f"s_lshr_b32 s{sJ}, s2, {H.bit_length()-1}")
    a(f"s_lshl_b32 s{sWI}, s{sJ}, 2")
    a(f"s_add_u32 s{sWI}, s{sWI}, s{sW}")
    a(f"s_mov_b32 s{sHead}, s{sSlot}")
    a(f"s_mov_b32 s{sPh}, 0")
    a(f"s_mul_i32 s{sT0}, s{sHead}, {HB}")
    a(f"s_mul_i32 s{sOff}, s{sWI}, 3072")
    a(f"s_mov_b32 s{STR+2}, {HB}"); a(f"s_mov_b32 s{STR+3}, 0x20000")
    a("s_waitcnt lgkmcnt(0)")
    def kslot(g):
        if g < 8: return RING + 12 * ((g + 5) % 8)
        if g < 13 and g < PK: return W + 12 * (g - 8)
        if g == 13 and PK > 13: return vX
        if g == 14 and PK > 14: return vACC
        return RING + 12 * (g % 8)
    def kreg(l): return kslot(l // 3) + 4 * (l % 3)
    def stream_load(reg, t):
        a(f"buffer_load_dwordx4 {vr(reg,4)}, v{vSA}, {srd(STR)}, s{sOff} offen offset:{128*t} {pol}")
        if t == 2: a(f"s_add_u32 s{sOff}, s{sOff}, {STRIDE}")
    def issue(l):
        stream_load(kreg(l), l % 3); vq.append(f"k{l}")
    a(f"s_add_u32 s{STR}, s{pK}, s{sT0}"); a(f"s_addc_u32 s{STR+1}, s{pK+1}, 0")
    for l in range(min(early, nb)): issue(l)
    a(f"s_load_dword s{sNon}, {sp(pWS)}, {EPOCH}")
    if dbg: a(f"v_mov_b32 v{vST}, 0")
    stamp(0)
    a(f"v_mov_b32 v{vOPA}, 0"); a(f"s_mov_b32 s{sU2}, {OP}")
    masks()
    a(f"s_mov_b32 s{sPh}, 0")
    for g in range(8):
        m = 0x0101010101010101 << g
        a(f"s_mov_b32 s{sMask+2*g}, 0x{m & 0xffffffff:08x}")
        a(f"s_mov_b32 s{sMask+2*g+1}, 0x{m >> 32:08x}")
    for r in range(4): a(f"s_mov_b32 s{sSel+r}, 0x{0x07060500 | r:08x}")
    a(f"s_mov_b32 s{sSelG}, 0x0c0c0400")
    a(f"s_mov_b32 s{sPkSel}, 0x07060302")
    for r in range(1, 4):
        m = 0xffff << (16 * r)
        a(f"s_mov_b32 s{sRow+2*(r-1)}, 0x{m & 0xffffffff:08x}"); a(f"s_mov_b32 s{sRow+2*(r-1)+1}, 0x{m >> 32:08x}")
    ws_srd()
    a(f"s_and_b32 s{sT0}, s2, 7"); a(f"s_lshr_b32 s{sT1}, s2, 3")
    a(f"s_lshl_b32 s{sT2}, s{sT1}, 3"); a(f"s_add_u32 s{sRI}, s{sT2}, s{sT0}"); a(f"s_mov_b32 s{sRole}, 0")
    a(f"s_lshr_b32 s{sT2}, s{sT1}, 2"); a(f"s_lshl_b32 s{sT2}, s{sT2}, 3"); a(f"s_add_u32 s{sT2}, s{sT2}, s{sT0}"); a(f"s_lshl_b32 s{sT2}, s{sT2}, 2")
    a(f"s_and_b32 s{sT3}, s{sT1}, 3"); a(f"s_add_u32 s{sOH}, s{sT2}, s{sT3}")
    a(f"s_cmp_lt_u32 s{sT1}, 16"); a("s_cbranch_scc1 L_roled")
    a(f"s_sub_u32 s{sT2}, s{sT1}, 16"); a(f"s_mul_i32 s{sT3}, s{sT0}, 12"); a(f"s_add_u32 s{sRI}, s{sT3}, s{sT2}"); a(f"s_mov_b32 s{sRole}, 1")
    a(f"s_cmp_lt_u32 s{sT1}, 28"); a("s_cbranch_scc1 L_roled")
    a(f"s_sub_u32 s{sT2}, s{sT1}, 28"); a(f"s_lshl_b32 s{sT2}, s{sT2}, 3"); a(f"s_add_u32 s{sRI}, s{sT2}, s{sT0}"); a(f"s_mov_b32 s{sRole}, 2")
    a.label("L_roled")
    a(f"v_mov_b32 v{vZ}, 0"); a(f"v_mov_b32 v{vFL}, 0"); a(f"s_mov_b32 s{sGI}, 0"); a(f"s_mov_b32 s{sPrv}, 0")
    for l in range(nb, early):
        wait_for(f"k{l-nb}"); issue(l)
    a("s_barrier")
    for l in range(early, 3 * PK):
        if pace and l >= nb: wait_for(f"k{l-nb}")
        issue(l)
    stamp(16)
    a("s_waitcnt lgkmcnt(0)")
    a(f"s_add_u32 s{sNon}, s{sNon}, 0x9e3779b9")
    a(f"v_mov_b32 v{vN}, s{sNon}")
    a("s_barrier")
    a(f"ds_read_b32 v{T[1]}, v{vZ} offset:{L_CTL + 8}"); a("s_waitcnt lgkmcnt(0)"); a(f"v_readfirstlane_b32 s{sLoc}, v{T[1]}")
    def progress():
        if not ctl: return
        n = newlab()
        a(f"s_add_u32 s{sGI}, s{sGI}, 1")
        a(f"s_cmp_lg_u32 s{sW}, 0"); a(f"s_cbranch_scc1 L_pg{n}")
        a(f"v_mov_b32 v{T[5]}, s{sGI}"); a(f"ds_write_b32 v{vZ}, v{T[5]} offset:{L_CTL}")
        a.label(f"L_pg{n}")
    def flag_read():
        if ctl or wmix: a(f"ds_read_b32 v{vFL}, v{vZ} offset:{L_CTL + 4}")
    def load_q():
        a(f"v_and_b32 v{T[0]}, 7, v{vL}"); a(f"v_lshlrev_b32 v{T[0]}, 4, v{T[0]}")
        a(f"s_mul_i32 s{sT0}, s{sPh}, 384"); a(f"v_add_u32 v{T[0]}, s{sT0}, v{T[0]}")
        for t in range(3): a(f"ds_read_b128 {vr(vQ+4*t,4)}, v{T[0]} offset:{L_Q + 128*t}")
    load_q()

    a.label("L_kcode")
    vSC = T[6]
    def score_addr():
        a(f"v_lshlrev_b32 v{vSC}, 2, v{vL}")
        a(f"s_lshl_b32 s{sT0}, s{sW}, 12"); a(f"v_add_u32 v{vSC}, s{sT0}, v{vSC}")
    def kinit():
        score_addr()
        a(f"v_mov_b32 v{vMX}, 0xff800000"); a(f"v_mov_b32 v{vLS}, 0")
        a("s_waitcnt lgkmcnt(0)")
    def kpart(reg, g, t):
        acc = T[t]
        for i in range(4):
            src2 = "0" if i == 0 else f"v{acc}"
            a(f"v_dot2_f32_bf16 v{acc}, v{reg+i}, v{vQ+4*t+i}, {src2}")
        if t == 2:
            a0 = T[0]
            a(f"v_add_f32 v{a0}, v{a0}, v{T[1]}")
            a(f"v_add_f32 v{a0}, v{a0}, v{T[2]}")
            for m in DPP4[:3]: dpp("v_add_f32", a0, m)
            a(f"v_cndmask_b32 v{vC}, v{vC}, v{a0}, {sp(sMask+2*g)}")
    SCALE = f32hex(192 ** -0.5)
    def kfinish():
        t, u, w_ = T[0], T[1], T[2]
        rne(t, vC)
        a(f"v_mul_f32 v{t}, {SCALE}, v{t}")
        rne(t, t)
        a(f"ds_write_b32 v{vSC}, v{t} offset:{L_SC}")
        a(f"v_add_u32 v{vSC}, 256, v{vSC}")
        a(f"v_max_f32 v{u}, v{vMX}, v{t}")
        a(f"v_sub_f32 v{w_}, v{vMX}, v{u}"); a(f"v_sub_f32 v{t}, v{t}, v{u}")
        a(f"v_mul_f32 v{w_}, {f32hex(LOG2E)}, v{w_}"); a(f"v_mul_f32 v{t}, {f32hex(LOG2E)}, v{t}")
        a(f"v_exp_f32 v{w_}, v{w_}"); a(f"v_exp_f32 v{t}, v{t}")
        a(f"v_mov_b32 v{vMX}, v{u}")
        a(f"v_fma_f32 v{vLS}, v{vLS}, v{w_}, v{t}")
    kinit()
    stamp(3)
    nxt = 3 * PK
    early_left = nb
    for l in range(48):
        while nxt <= l:
            issue(nxt); nxt += 1
        wait_for(f"k{l}")
        while nxt <= l + nb:
            issue(nxt); nxt += 1
        kpart(kreg(l), (l // 3) % 8, l % 3)
        if early_left > 0 and nxt < 48 + nb and kreg(nxt) == kreg(l):
            issue(nxt); nxt += 1; early_left -= 1
        if l % 24 == 23:
            kfinish(); progress()
    assert nxt == 48 + nb, nxt
    flag_read()
    a(f"s_mov_b32 s{sIt}, 2")
    def switch_to_V():
        n = newlab()
        a(f"s_cmp_eq_u32 s{sIt}, {NIT-1}")
        a(f"s_cbranch_scc0 L_nosw{n}")
        a(f"s_mul_i32 s{sT0}, s{sHead}, {HB}")
        a(f"s_add_u32 s{STR}, s{pV}, s{sT0}"); a(f"s_addc_u32 s{STR+1}, s{pV+1}, 0")
        a(f"s_mul_i32 s{sOff}, s{sWI}, 3072")
        a.label(f"L_nosw{n}")
    def switch_to_nextK():
        n = newlab()
        a(f"s_cmp_eq_u32 s{sIt}, {NIT-1}")
        a(f"s_cbranch_scc0 L_nosw{n}")
        if nph > 1:
            a(f"s_add_u32 s{sT0}, s{sHead}, {H}")
            a(f"s_mul_i32 s{sT0}, s{sT0}, {HB}")
            a(f"s_add_u32 s{STR}, s{pK}, s{sT0}"); a(f"s_addc_u32 s{STR+1}, s{pK+1}, 0")
            a(f"s_mul_i32 s{sOff}, s{sWI}, 3072")
            a(f"s_cmp_eq_u32 s{sPh}, {nph-1}")
            a(f"s_cselect_b32 s{STR+2}, 0, {HB}")
            a(f"s_cselect_b32 s{STR}, s{pK}, s{STR}"); a(f"s_cselect_b32 s{STR+1}, s{pK+1}, s{STR+1}")
        else:
            a(f"s_mov_b32 s{STR+2}, 0")
        a.label(f"L_nosw{n}")
    def ring_load(l):
        stream_load(RING + 12 * ((l // 3) % 8) + 4 * (l % 3), l % 3)
    def controlled_loop(tag, part, switch):
        d = nx_ - nb
        if ctl or wmix:
            a("s_waitcnt lgkmcnt(0)"); a(f"v_readfirstlane_b32 s{sBst}, v{vFL}")
            if wmix:
                a(f"s_lshr_b32 s{sT0}, {wmix}, s{sW}"); a(f"s_and_b32 s{sT0}, s{sT0}, 1"); a(f"s_or_b32 s{sBst}, s{sBst}, s{sT0}")
            if not lastb:
                a(f"s_cmp_eq_u32 s{sIt}, {NIT-1}"); a(f"s_cselect_b32 s{sBst}, 0, s{sBst}")
            a(f"s_cmp_eq_u32 s{sBst}, 1"); a(f"s_cbranch_scc1 L_{tag}boost")
            a(f"s_cmp_eq_u32 s{sPrv}, 0"); a(f"s_cbranch_scc1 L_{tag}n0")
            for l in range(d):
                a(f"s_waitcnt vmcnt({nx_ - 1 - l})"); part(l)
            a(f"s_branch L_{tag}n1")
            a.label(f"L_{tag}n0")
        for l in range(d):
            a(f"s_waitcnt vmcnt({nb - 1})"); ring_load(l + nb); part(l)
        if ctl or wmix: a.label(f"L_{tag}n1")
        for l in range(d, 24):
            a(f"s_waitcnt vmcnt({nb - 1})")
            if l + nb == 24: switch()
            ring_load(l + nb)
            if l == 12: flag_read()
            part(l)
        if ctl or wmix:
            a(f"s_mov_b32 s{sPrv}, 0"); a(f"s_branch L_{tag}next")
            a.label(f"L_{tag}boost")
            a(f"s_cmp_eq_u32 s{sPrv}, 0"); a(f"s_cbranch_scc0 L_{tag}b0")
            for l in range(nb, nx_): ring_load(l)
            a.label(f"L_{tag}b0")
            for l in range(24):
                a(f"s_waitcnt vmcnt({nx_ - 1})")
                if lastb and l + nx_ == 24: switch()
                ring_load(l + nx_)
                if l == 12: flag_read()
                part(l)
            a(f"s_mov_b32 s{sPrv}, 1")
            a.label(f"L_{tag}next")
    def deepen():
        n = newlab()
        if lastb:
            a(f"s_cmp_eq_u32 s{sPrv}, 1"); a(f"s_cbranch_scc1 L_dp{n}")
        for l in range(nb, nx_): ring_load(l)
        a(f"s_mov_b32 s{sPrv}, 1")
        if lastb: a.label(f"L_dp{n}")
    assert tb or not lastb
    a.label("L_kloop")
    controlled_loop("k", lambda l: kpart(RING + 12 * (l // 3) + 4 * (l % 3), l // 3, l % 3), switch_to_V)
    kfinish(); progress()
    a(f"s_add_u32 s{sIt}, s{sIt}, 1")
    a(f"s_cmp_lt_u32 s{sIt}, {NIT}")
    a("s_cbranch_scc1 L_kloop")
    stamp(4)

    if tb:
        deepen()
    a(f"v_mov_b32 v{T[2]}, v{vMX}")
    allreduce("v_max_f32", vMX, T[0])
    a(f"v_sub_f32 v{T[2]}, v{T[2]}, v{vMX}"); a(f"v_mul_f32 v{T[2]}, {f32hex(LOG2E)}, v{T[2]}"); a(f"v_exp_f32 v{T[2]}, v{T[2]}")
    a(f"v_mul_f32 v{vLS}, v{vLS}, v{T[2]}")
    allreduce("v_add_f32", vLS, T[0])
    MLQ = vA
    a(f"v_mov_b32 v{MLQ}, v{vMX}"); a(f"v_mov_b32 v{MLQ+1}, v{vLS}"); a(f"v_mov_b32 v{MLQ+2}, 0"); a(f"v_mov_b32 v{MLQ+3}, 0")
    tag4(MLQ)
    a(f"s_lshl_b32 s{sT0}, s{sHead}, 11"); a(f"s_lshl_b32 s{sT1}, s{sWI}, 4"); a(f"s_add_u32 s{sT0}, s{sT0}, s{sT1}"); a(f"s_add_u32 s{sT0}, s{sT0}, {ML}")
    a(f"v_mov_b32 v{T[0]}, 0")
    set_exec(1)
    pub_store(vr(MLQ,4), T[0], sT0)
    set_exec(-1)
    stamp(5)
    for i in range(12): a(f"v_mov_b32 v{vACC+i}, 0")
    score_addr()
    a("s_waitcnt lgkmcnt(0)")
    a(f"ds_read_b32 v{vPN}, v{vSC} offset:{L_SC}")
    def vpart(l):
        g, t = l // 3, l % 3
        if t == 0:
            a(f"v_mov_b32_dpp v{vBC}, v{vP} row_newbcast:{g} row_mask:0xf bank_mask:0x3")
            a(f"v_mov_b32_dpp v{vBC}, v{vP} row_newbcast:{8+g} row_mask:0xf bank_mask:0xc")
            a_operand(vBC)
        a(f"v_mfma_f32_16x16x32_bf16 {vr(vACC+4*t,4)}, {vr(vA,4)}, {ring(g,t)}, {vr(vACC+4*t,4)}")
    def next_p():
        a("s_waitcnt lgkmcnt(0)")
        a(f"v_sub_f32 v{vP}, v{vPN}, v{vMX}")
        a(f"v_add_u32 v{vSC}, 256, v{vSC}")
        a(f"ds_read_b32 v{vPN}, v{vSC} offset:{L_SC}")
        a(f"v_mul_f32 v{vP}, {f32hex(LOG2E)}, v{vP}")
        a(f"v_exp_f32 v{vP}, v{vP}")
        a(f"v_cvt_pk_bf16_f32 v{vP}, v{vP}, v{vP}")
    a(f"s_mov_b32 s{sIt}, 0")
    if nph > 1:
        a(f"s_cmp_lg_u32 s{sPh}, {nph-1 if wphase is None else wphase}"); a("s_cbranch_scc1 L_vloop")
    a(f"s_cmp_eq_u32 s{sRole}, 1"); a("s_cbranch_scc1 L_wF")
    a(f"s_cmp_eq_u32 s{sRole}, 2"); a("s_cbranch_scc1 L_wR")
    a(f"s_mul_i32 s{sT0}, s{sOH}, 48"); a(f"s_mul_i32 s{sT1}, s{sW}, 12"); a(f"s_add_u32 s{sT0}, s{sT0}, s{sT1}")
    a(f"v_lshrrev_b32 v{T[0]}, 4, v{vL}"); a(f"v_add_u32 v{T[0]}, s{sT0}, v{T[0]}")
    a(f"v_mul_u32_u24 v{T[0]}, 1280, v{T[0]}")
    a(f"v_and_b32 v{T[1]}, 15, v{vL}"); a(f"v_lshlrev_b32 v{T[1]}, 4, v{T[1]}"); a(f"v_add_u32 v{T[0]}, v{T[0]}, v{T[1]}")
    a(f"v_mov_b32 v{T[1]}, s{pWO+1}")
    a(f"v_add_co_u32 v{WA}, vcc, s{pWO}, v{T[0]}"); a(f"v_addc_co_u32 v{WA+1}, vcc, 0, v{T[1]}, vcc")
    a(f"v_add_co_u32 v{WB}, vcc, 10240, v{WA}"); a(f"v_addc_co_u32 v{WB+1}, vcc, 0, v{WA+1}, vcc")
    a(f"s_mov_b32 s{sInc}, 256"); a(f"s_mov_b32 s{sInc4}, 4096")
    a("s_branch L_wdone")
    a.label("L_wF")
    a(f"v_lshrrev_b32 v{T[0]}, 2, v{vL}"); a(f"s_mul_i32 s{sT0}, s{sW}, 160"); a(f"v_add_u32 v{T[0]}, s{sT0}, v{T[0]}")
    a(f"v_mul_u32_u24 v{T[0]}, 3072, v{T[0]}")
    a(f"v_and_b32 v{T[1]}, 1, v{vL}"); a(f"v_lshlrev_b32 v{T[1]}, 4, v{T[1]}"); a(f"v_add_u32 v{T[0]}, v{T[0]}, v{T[1]}")
    a(f"s_lshl_b32 s{sT0}, s{sRI}, 5"); a(f"v_add_u32 v{T[0]}, s{sT0}, v{T[0]}")
    a(f"v_mov_b32 v{T[2]}, s{pWG}"); a(f"v_mov_b32 v{T[3]}, s{pWG+1}")
    a(f"v_mov_b32 v{T[4]}, s{pWU}"); a(f"v_mov_b32 v{T[5]}, s{pWU+1}")
    a(f"v_and_b32 v{T[1]}, 2, v{vL}"); a(f"v_cmp_ne_u32 vcc, 0, v{T[1]}")
    a(f"v_cndmask_b32 v{T[2]}, v{T[2]}, v{T[4]}, vcc"); a(f"v_cndmask_b32 v{T[3]}, v{T[3]}, v{T[5]}, vcc")
    a(f"v_add_co_u32 v{WA}, vcc, v{T[2]}, v{T[0]}"); a(f"v_addc_co_u32 v{WA+1}, vcc, 0, v{T[3]}, vcc")
    a(f"s_lshl_b32 s{sT0}, s{sRI}, 4"); a(f"s_lshl_b32 s{sT1}, s{sW}, 2"); a(f"s_add_u32 s{sT0}, s{sT0}, s{sT1}")
    a(f"v_lshrrev_b32 v{T[0]}, 4, v{vL}"); a(f"v_add_u32 v{T[0]}, s{sT0}, v{T[0]}")
    a(f"v_mul_u32_u24 v{T[0]}, 1280, v{T[0]}")
    a(f"v_and_b32 v{T[1]}, 15, v{vL}"); a(f"v_lshlrev_b32 v{T[1]}, 4, v{T[1]}"); a(f"v_add_u32 v{T[0]}, v{T[0]}, v{T[1]}")
    a(f"v_mov_b32 v{T[1]}, s{pWD+1}")
    a(f"v_add_co_u32 v{WB}, vcc, s{pWD}, v{T[0]}"); a(f"v_addc_co_u32 v{WB+1}, vcc, 0, v{T[1]}, vcc")
    a(f"s_mov_b32 s{sInc}, {16*3072}"); a(f"s_mov_b32 s{sInc4}, {16*3072}")
    a("s_branch L_wdone")
    a.label("L_wR")
    a(f"v_mov_b32 v{WA}, s{pWO}"); a(f"v_mov_b32 v{WA+1}, s{pWO+1}"); a(f"v_mov_b32 v{WB}, s{pWO}"); a(f"v_mov_b32 v{WB+1}, s{pWO+1}")
    a(f"s_mov_b32 s{sInc}, 0"); a(f"s_mov_b32 s{sInc4}, 0")
    a.label("L_wdone")
    def wload(k):
        if k < 10:
            a(f"global_load_dwordx4 {vr(W + 4*k, 4)}, {vr(WA,2)}, off {wpol}")
            if k < 9:
                a(f"v_add_co_u32 v{WA}, vcc, s{sInc4 if k == 4 else sInc}, v{WA}"); a(f"v_addc_co_u32 v{WA+1}, vcc, 0, v{WA+1}, vcc")
        else:
            a(f"global_load_dwordx4 {vr(W + 4*k, 4)}, {vr(WB,2)}, off offset:{256*(k-10)} {wpol}")
        vq.append(f"w{k}")
    vq[:] = [f"v{l}" for l in range(nx_ if tb else nb)] + ["ml"]
    for it in range(2):
        next_p()
        for l in range(24):
            n = 24 * it + l
            wait_for(f"v{n}")
            if not (tb and n + nb < nx_):
                ring_load(n + nb); vq.append(f"v{n+nb}")
            if n % 3 == 0 and n // 3 < 15: wload(n // 3)
            vpart(l)
        progress()
    flag_read()
    a(f"s_mov_b32 s{sIt}, 2"); a(f"s_mov_b32 s{sPrv}, 0")
    a.label("L_vloop")
    MLR = vX
    def ml_issue():
        a(f"s_lshl_b32 s{sT0}, s{sHead}, 11"); a(f"s_add_u32 s{sT0}, s{sT0}, {ML}")
        a(f"v_min_u32 v{T[1]}, {NWH-1}, v{vL}"); a(f"v_lshlrev_b32 v{T[1]}, 4, v{T[1]}")
        a(f"buffer_load_dwordx4 {vr(MLR,4)}, v{T[1]}, {srd(WSR)}, s{sT0} offen sc1")
        if NWH > 64:
            a(f"buffer_load_dwordx4 {vr(MLR+4,4)}, v{T[1]}, {srd(WSR)}, s{sT0} offen offset:1024 sc1")
    def ml_check():
        check4(MLR, T[0], T[2], True)
        if NWH > 64: check4(MLR + 4, T[0], T[2], False)
    a(f"s_cmp_eq_u32 s{sIt}, {NIT-2}"); a("s_cbranch_scc0 L_vh1")
    ml_issue()
    if codepf:
        a(f"s_getpc_b64 {sp(58)}")
        a.label("L_pc2")
        a(f"s_lshr_b32 s{sT3}, s2, 3"); a(f"s_lshl_b32 s{sT3}, s{sT3}, 9")
        a(f"v_and_b32 v{T[1]}, 7, v{vL}"); a(f"v_lshlrev_b32 v{T[1]}, 6, v{T[1]}"); a(f"v_add_u32 v{T[1]}, s{sT3}, v{T[1]}")
        a(f"v_add_u32 v{T[1]}, L_tailcode-L_pc2, v{T[1]}")
        a(f"v_min_u32 v{T[1]}, L_codeend-L_pc2-4, v{T[1]}")
        a(f"global_load_dword v{T[2]}, v{T[1]}, {sp(58)}")
    a.label("L_vh1")
    a(f"s_cmp_eq_u32 s{sIt}, {NIT-1}"); a("s_cbranch_scc0 L_vh2")
    a.label("L_tailcode")
    ml_check()
    a(f"s_cmp_eq_u64 {sp(sBad)}, 0"); a("s_cbranch_scc1 L_mlok")
    poll(ml_issue, ml_check)
    a.label("L_mlok")
    mm, ll = MLR, MLR + 1
    if NWH > 64: a(f"v_max_f32 v{T[0]}, v{mm}, v{MLR+4}")
    else: a(f"v_mov_b32 v{T[0]}, v{mm}")
    a(f"v_and_b32 v{T[0]}, 0xffffff00, v{T[0]}")
    allreduce("v_max_f32", T[0], T[1])
    a(f"v_and_b32 v{mm}, 0xffffff00, v{mm}"); a(f"v_and_b32 v{ll}, 0xffffff00, v{ll}")
    a(f"v_sub_f32 v{T[2]}, v{mm}, v{T[0]}"); a(f"v_mul_f32 v{T[2]}, {f32hex(LOG2E)}, v{T[2]}"); a(f"v_exp_f32 v{T[2]}, v{T[2]}")
    a(f"v_mul_f32 v{T[2]}, v{T[2]}, v{ll}")
    if NWH > 64:
        a(f"v_and_b32 v{MLR+4}, 0xffffff00, v{MLR+4}"); a(f"v_and_b32 v{MLR+5}, 0xffffff00, v{MLR+5}")
        a(f"v_sub_f32 v{T[3]}, v{MLR+4}, v{T[0]}"); a(f"v_mul_f32 v{T[3]}, {f32hex(LOG2E)}, v{T[3]}"); a(f"v_exp_f32 v{T[3]}, v{T[3]}")
        a(f"v_fmac_f32 v{T[2]}, v{T[3]}, v{MLR+5}")
    elif NWH < 64:
        a(f"v_cmp_gt_u32 vcc, {NWH}, v{vL}"); a(f"v_cndmask_b32 v{T[2]}, 0, v{T[2]}, vcc")
    allreduce("v_add_f32", T[2], T[1])
    a(f"v_sub_f32 v{T[3]}, v{vMX}, v{T[0]}"); a(f"v_mul_f32 v{T[3]}, {f32hex(LOG2E)}, v{T[3]}"); a(f"v_exp_f32 v{T[3]}, v{T[3]}")
    a(f"v_rcp_f32 v{T[2]}, v{T[2]}")
    a(f"v_mul_f32 v{vAL}, v{T[3]}, v{T[2]}")
    red_addr()
    a(f"v_mul_u32_u24 v{T[1]}, 43691, v{vL}"); a(f"v_lshrrev_b32 v{T[1]}, 19, v{T[1]}")
    a(f"v_mul_u32_u24 v{T[2]}, 12, v{T[1]}"); a(f"v_sub_u32 v{T[2]}, v{vL}, v{T[2]}")
    a(f"v_mul_u32_u24 v{T[1]}, {WPH*192}, v{T[1]}"); a(f"v_lshlrev_b32 v{T[2]}, 4, v{T[2]}"); a(f"v_add_u32 v{vOPA}, v{T[1]}, v{T[2]}")
    a(f"s_mul_i32 s{sT0}, s{sHead}, {4*WPH*192}"); a(f"s_mul_i32 s{sT1}, s{sJ}, 192"); a(f"s_add_u32 s{sT0}, s{sT0}, s{sT1}"); a(f"s_add_u32 s{sU2}, s{sT0}, {OP}")
    P = vQ
    if nph > 1:
        a(f"s_cmp_lg_u32 s{sPh}, {nph-1}"); a("s_cbranch_scc1 L_vh2")
    a(f"v_lshrrev_b32 v{T[0]}, 5, v{vL}"); a(f"v_lshlrev_b32 v{T[0]}, 8, v{T[0]}")
    a(f"v_and_b32 v{T[1]}, 7, v{vL}"); a(f"v_lshlrev_b32 v{T[1]}, 5, v{T[1]}"); a(f"v_add_u32 v{T[0]}, v{T[0]}, v{T[1]}")
    a(f"v_and_b32 v{T[1]}, 16, v{vL}"); a(f"v_add_u32 v{T[0]}, v{T[0]}, v{T[1]}")
    a(f"s_mul_i32 s{sT0}, s{sW}, 2560"); a(f"v_add_u32 v{P}, s{sT0}, v{T[0]}")
    a(f"s_mov_b32 s{sT0}, {128*128}"); a(f"s_cmp_eq_u32 s{sRole}, 1"); a(f"s_cselect_b32 s{sT0}, {96*128}, s{sT0}")
    a(f"v_lshrrev_b32 v{T[1]}, 3, v0"); a(f"v_mul_u32_u24 v{T[1]}, s{sT0}, v{T[1]}")
    a(f"v_and_b32 v{T[2]}, 7, v0"); a(f"v_lshlrev_b32 v{T[2]}, 4, v{T[2]}"); a(f"v_add_u32 v{P+1}, v{T[1]}, v{T[2]}")
    for i in range(20): a(f"v_mov_b32 v{vX+i}, 0")
    a.label("L_vh2")
    next_p()
    controlled_loop("v", vpart, switch_to_nextK)
    progress()
    a(f"s_add_u32 s{sIt}, s{sIt}, 1")
    a(f"s_cmp_lt_u32 s{sIt}, {NIT}")
    a("s_cbranch_scc1 L_vloop")

    stamp(6)
    for i in range(12): a(f"v_mul_f32 v{vACC+i}, v{vACC+i}, v{vAL}")
    if nph > 1:
        a(f"s_cmp_eq_u32 s{sPh}, {nph-1}"); a("s_cbranch_scc1 L_lastphase")
        if tb: deepen()
        def lds_wait_ge(off, sreg):
            n = newlab()
            a(f"s_mov_b32 s{sSpin}, {spin}")
            a.label(f"L_lw{n}")
            a(f"ds_read_b32 v{T[1]}, v{vZ} offset:{L_CTL + off}"); a("s_waitcnt lgkmcnt(0)"); a(f"v_readfirstlane_b32 s{sT0}, v{T[1]}")
            a(f"s_cmp_ge_u32 s{sT0}, s{sreg}"); a(f"s_cbranch_scc1 L_lk{n}")
            a(f"s_sub_u32 s{sSpin}, s{sSpin}, 1"); a(f"s_cmp_eq_u32 s{sSpin}, 0"); a("s_cbranch_scc1 L_abort")
            a(f"s_branch L_lw{n}")
            a.label(f"L_lk{n}")
        lds_wait_ge(12, sPh)
        set_exec(USEFUL)
        for t in range(3): a(f"ds_write_b128 v{vRA}, {vr(vACC+4*t,4)} offset:{L_REDH + 256*t}")
        set_exec(-1)
        a(f"s_add_u32 s{sPh}, s{sPh}, 1"); a(f"s_add_u32 s{sHead}, s{sHead}, {H}")
        a(f"s_lshl_b32 s{sT1}, s{sW}, 2"); a(f"v_mov_b32 v{T[2]}, s{sT1}"); a(f"v_mov_b32 v{T[3]}, s{sPh}")
        a("s_waitcnt lgkmcnt(0)")
        a(f"ds_write_b32 v{T[2]}, v{T[3]} offset:{L_CTL + 16}")
        a(f"s_add_u32 s{sT2}, s{sPh}, 1")
        lds_wait_ge(32, sT2)
        load_q(); kinit()
        a(f"s_mov_b32 s{sIt}, 0")
        a("s_branch L_kloop")
        a.label("L_lastphase")
    red_write()
    a("s_waitcnt lgkmcnt(0)"); a("s_barrier")
    a(f"s_cmp_lg_u32 s{sW}, 0"); a("s_cbranch_scc1 L_pubdone")
    SB = RING + 36
    a(f"v_lshlrev_b32 v{T[0]}, 4, v{vL}")
    set_exec("0x0000ffffffffffff")
    for s in range(8): a(f"ds_read_b128 {vr(SB+4*s,4)}, v{T[0]} offset:{L_RED + 768*s}")
    a("s_waitcnt lgkmcnt(4)")
    sum_quads(SB, [SB + 4, SB + 8, SB + 12])
    a("s_waitcnt lgkmcnt(0)")
    sum_quads(SB + 16, [SB + 20, SB + 24, SB + 28])
    sum_quads(SB, [SB + 16])
    tag4(SB)
    if oploc: pub_store(vr(SB,4), vOPA, sU2)
    else: a(f"buffer_store_dwordx4 {vr(SB,4)}, v{vOPA}, {srd(WSR)}, s{sU2} offen sc1")
    if stage1:
        a(f"s_and_b32 s{sT0}, s{sNon}, 0xffffff00"); a(f"s_or_b32 s{sT0}, s{sT0}, 255"); a(f"v_mov_b32 v{T[1]}, s{sT0}")
        a(f"s_and_b32 s{sT0}, s2, 7"); a(f"s_lshl_b32 s{sT0}, s{sT0}, 7"); a(f"s_lshr_b32 s{sT1}, s2, 3"); a(f"s_lshl_b32 s{sT1}, s{sT1}, 2")
        a(f"s_add_u32 s{sT0}, s{sT0}, s{sT1}"); a(f"s_add_u32 s{sT0}, s{sT0}, {PROG}")
        set_exec(1)
        a(f"buffer_store_dword v{T[1]}, v{vZ}, {srd(WSR)}, s{sT0} offen")
    set_exec(-1)
    a.label("L_pubdone")
    def class_wait():
        if not stage1: return
        n = newlab()
        a(f"s_and_b32 s{sT0}, s{sNon}, 0xffffff00"); a(f"s_or_b32 s{sT0}, s{sT0}, 255"); a(f"v_mov_b32 v{T[1]}, s{sT0}")
        a(f"s_and_b32 s{sT0}, s2, 7"); a(f"s_lshl_b32 s{sT0}, s{sT0}, 7"); a(f"s_add_u32 s{sT0}, s{sT0}, {PROG}")
        a(f"v_and_b32 v{T[0]}, 31, v{vL}"); a(f"v_lshlrev_b32 v{T[0]}, 2, v{T[0]}")
        a(f"s_mov_b32 s{sSpin}, {stage1}")
        a.label(f"L_cw{n}")
        a(f"buffer_load_dword v{T[2]}, v{T[0]}, {srd(WSR)}, s{sT0} offen sc1")
        a(f"s_sub_u32 s{sSpin}, s{sSpin}, 1"); a(f"s_cmp_eq_u32 s{sSpin}, 0"); a(f"s_cbranch_scc1 L_cwd{n}")
        a("s_waitcnt vmcnt(0)")
        a(f"v_cmp_ne_u32 vcc, v{T[2]}, v{T[1]}"); a("s_cbranch_vccnz L_cw%d" % n)
        a.label(f"L_cwd{n}")
        a("s_waitcnt vmcnt(0)")
    a.label("L_tail")
    stamp(7)
    RB = RING + 60
    a(f"s_cmp_eq_u32 s{sRole}, 1"); a("s_cbranch_scc1 L_roleF")
    a(f"s_cmp_eq_u32 s{sRole}, 2"); a("s_cbranch_scc1 L_roleR")

    def rowproj(ngroups, wbase, srcs, dstbase):
        for gi in range(ngroups):
            a_operand(srcs[gi])
            for cb in range(5):
                a(f"v_mfma_f32_16x16x32_bf16 {vr(vX+4*cb,4)}, {vr(vA,4)}, {vr(wbase + 4*(5*gi+cb),4)}, {vr(vX+4*cb,4)}")
        set_exec(USEFUL)
        for cb in range(5): a(f"ds_write_b128 v{P}, {vr(vX+4*cb,4)} offset:{L_RED2 + 512*cb}")
        set_exec(-1)
        a(f"v_lshlrev_b32 v{T[0]}, 4, v0")
        a(f"s_lshl_b32 s{sT0}, s{sRI}, 7"); a(f"s_add_u32 s{sT0}, s{sT0}, {dstbase}")
        a("s_waitcnt lgkmcnt(0)"); a("s_barrier")
        n = newlab()
        a(f"v_cmp_gt_u32 vcc, 160, v0"); a(f"s_and_saveexec_b64 {sp(sE)}, vcc"); a(f"s_cbranch_execz L_rpd{n}")
        for s in range(4): a(f"ds_read_b128 {vr(vX+4*s,4)}, v{T[0]} offset:{L_RED2 + 2560*s}")
        a("s_waitcnt lgkmcnt(0)")
        sum_quads(vX, [vX + 4]); sum_quads(vX + 8, [vX + 12]); sum_quads(vX, [vX + 8])
        tag4(vX)
        a(f"buffer_store_dwordx4 {vr(vX,4)}, v{P+1}, {srd(WSR)}, s{sT0} offen sc1")
        a.label(f"L_rpd{n}")
        a(f"s_mov_b64 exec, {sp(sE)}")

    NL = 2 if WPH == 32 else 1
    a(f"s_mul_i32 s{sT0}, s{sOH}, {WPH*192}"); a(f"s_add_u32 s{sU}, s{sT0}, {OP}")
    a(f"s_mul_i32 s{sT1}, s{sW}, 48"); a(f"s_add_u32 s{sU}, s{sU}, s{sT1}")
    a(f"v_lshrrev_b32 v{T[3]}, 2, v{vL}"); a(f"v_and_b32 v{T[3]}, {min(WPH,16)-1}, v{T[3]}"); a(f"v_mul_u32_u24 v{T[3]}, 192, v{T[3]}")
    a(f"v_and_b32 v{T[4]}, 3, v{vL}"); a(f"v_min_u32 v{T[4]}, 2, v{T[4]}"); a(f"v_lshlrev_b32 v{T[4]}, 4, v{T[4]}"); a(f"v_add_u32 v{T[3]}, v{T[3]}, v{T[4]}")
    OB = [RB + 12, RB + 20]
    def o_iss(z):
        for k in range(NL):
            a(f"buffer_load_dwordx4 {vr(OB[z]+4*k,4)}, v{T[3]}, {srd(WSR)}, s{sU} offen offset:{3072*k} sc1")
    def o_chk(z):
        for k in range(NL): check4(OB[z] + 4*k, T[0], T[1], k == 0)
    def untag(b, n):
        assert not p2
        for i in range(n): a(f"v_and_b32 v{b+i}, 0xffffff00, v{b+i}")
    def o_st1(z):
        untag(OB[z], 4 * NL)
        if NL == 2:
            a(f"v_pk_add_f32 {vr(RB,2)}, {vr(OB[z],2)}, {vr(OB[z]+4,2)}"); a(f"v_pk_add_f32 {vr(RB+2,2)}, {vr(OB[z]+2,2)}, {vr(OB[z]+6,2)}")
            for i in range(4): dpp("v_add_f32", RB + i, "row_ror:4")
        else:
            for i in range(4): a(f"v_add_f32_dpp v{RB+i}, v{OB[z]+i}, v{OB[z]+i} row_ror:4 row_mask:0xf bank_mask:0xf")
    poll2(o_iss, o_chk, NL, o_st1)
    stamp(8)
    for i in range(4): dpp("v_add_f32", RB + i, "row_ror:8")
    o4 = [("v_add_f32", RB + i) for i in range(4)]
    swap_reduce(o4, T[0:4], "v_permlane16_swap_b32")
    if WPH >= 16: swap_reduce(o4, T[0:4], "v_permlane32_swap_b32")
    for g in range(1, 4): a(f"v_cndmask_b32 v{RB}, v{RB}, v{RB+g}, {sp(sRow+2*(g-1))}")
    a(f"v_cvt_pk_bf16_f32 v{RB}, v{RB}, v{RB}")
    for gi in range(3): a(f"v_mov_b32_dpp v{RB+8+gi}, v{RB} quad_perm:[{gi},{gi},{gi},{gi}] row_mask:0xf bank_mask:0xf")
    rowproj(3, W, [RB+8, RB+9, RB+10], ZZ)
    dump_stamps()
    a("s_branch L_end")

    a.label("L_roleF")
    HQ = RB
    PK = RB + 16
    class_wait()
    a(f"v_min_u32 v{T[5]}, 39, v{vL}"); a(f"s_mul_i32 s{sT0}, s{sW}, 40"); a(f"v_add_u32 v{T[5]}, s{sT0}, v{T[5]}"); a(f"v_lshlrev_b32 v{T[5]}, 4, v{T[5]}")
    a(f"s_and_b32 s{sU}, s2, 7"); a(f"s_lshl_b32 s{sU}, s{sU}, 12"); a(f"s_add_u32 s{sU}, s{sU}, {HH}")
    HB_ = [HQ, HQ + 4]
    def f_iss(z):
        a(f"buffer_load_dwordx4 {vr(HB_[z],4)}, v{T[5]}, {srd(WSR)}, s{sU} offen sc1")
    def f_chk(z):
        check4(HB_[z], T[0], T[1], True)
    def f_st1(z):
        a(f"v_perm_b32 v{PK}, v{HB_[z]+1}, v{HB_[z]}, s{sPkSel}"); a(f"v_perm_b32 v{PK+1}, v{HB_[z]+3}, v{HB_[z]+2}, s{sPkSel}")
        for i in range(4): a(f"v_and_b32 v{HQ+12+i}, 0xffff0000, v{HB_[z]+i}")
    FA = RING + 24
    FW = RB + 22
    DA = vACC
    def f_pre():
        a(f"s_lshl_b32 s{sT0}, s{sW}, 12"); a(f"s_add_u32 s{sT0}, s{sT0}, {L_SC}")
        a(f"v_lshlrev_b32 v{FW}, 6, v{vL}"); a(f"v_add_u32 v{FW}, s{sT0}, v{FW}")
        a(f"v_mov_b32 v{T[0]}, 0"); a(f"v_mov_b32 v{T[1]}, s{sT0}")
        a(f"ds_write_b32 v{T[1]}, v{T[0]} offset:2560")
        a(f"v_lshrrev_b32 v{FW+1}, 2, v{vL}"); a(f"v_lshlrev_b32 v{FW+1}, 4, v{FW+1}")
        a(f"v_and_b32 v{T[0]}, 3, v{vL}")
        a(f"v_mov_b32 v{T[1]}, 0x08000c04"); a(f"v_lshlrev_b32 v{T[0]}, 3, v{T[0]}"); a(f"v_lshrrev_b32 v{T[1]}, v{T[0]}, v{T[1]}"); a(f"v_and_b32 v{T[1]}, 0xff, v{T[1]}")
        a(f"v_add3_u32 v{FW+1}, v{FW+1}, v{T[1]}, s{sT0}")
        a(f"v_add_u32 v{FW+2}, 1024, v{FW+1}"); a(f"v_add_u32 v{FW+3}, 2048, v{FW+1}")
        a(f"v_lshrrev_b32 v{T[0]}, 4, v{vL}"); a(f"s_lshl_b32 s{sT0}, s{sW}, 2"); a(f"v_add_u32 v{T[0]}, s{sT0}, v{T[0]}"); a(f"v_lshlrev_b32 v{T[0]}, 7, v{T[0]}")
        a(f"v_and_b32 v{T[1]}, 3, v{vL}"); a(f"v_lshlrev_b32 v{T[1]}, 5, v{T[1]}"); a(f"v_add_u32 v{FW+4}, v{T[0]}, v{T[1]}")
        a(f"v_and_b32 v{T[0]}, 31, v{vL}"); a(f"v_lshlrev_b32 v{T[0]}, 2, v{T[0]}")
        a(f"v_lshrrev_b32 v{T[1]}, 5, v{vL}"); a(f"v_lshlrev_b32 v{T[1]}, 10, v{T[1]}"); a(f"v_add_u32 v{FW+5}, v{T[0]}, v{T[1]}")
        a(f"v_lshrrev_b32 v{T[0]}, 4, v{vL}"); a(f"s_lshl_b32 s{sT0}, s{sW}, 2"); a(f"v_add_u32 v{T[0]}, s{sT0}, v{T[0]}"); a(f"v_lshlrev_b32 v{FW+6}, 2, v{T[0]}")
        for i in range(8): a(f"v_mov_b32 v{DA+i}, 0")
        a(f"v_mov_b32 v{FW+7}, 0x3f803f80")
        a(f"v_cmp_gt_u32 {sp(sE)}, 40, v{vL}")
        a(f"s_lshl_b32 s{sT0}, s{sW}, 3"); a(f"v_mov_b32 v{PK+2}, s{sT0}")
    poll2(f_iss, f_chk, 1, f_st1, pre=f_pre)
    stamp(10)
    a(f"v_cndmask_b32 v{PK}, 0, v{PK}, {sp(sE)}"); a(f"v_cndmask_b32 v{PK+1}, 0, v{PK+1}, {sp(sE)}")
    t0, t1, t2, t3, t4 = T[0:5]
    a(f"v_dot2_f32_bf16 v{t0}, v{PK}, v{FW+7}, 0"); a(f"v_dot2_f32_bf16 v{t1}, v{PK}, v{PK}, 0")
    a(f"v_dot2_f32_bf16 v{t0}, v{PK+1}, v{FW+7}, v{t0}"); a(f"v_dot2_f32_bf16 v{t1}, v{PK+1}, v{PK+1}, v{t1}")
    assert t1 == t0 + 1 and t0 % 2 == 1
    allreduce_n([("v_add_f32", t0), ("v_add_f32", t1)], [t2, t3])
    SX = vQ + 4
    a(f"v_mov_b32 v{SX}, v{t0}"); a(f"v_mov_b32 v{SX+1}, v{t1}")
    set_exec(1)
    a(f"ds_write_b64 v{PK+2}, {vr(SX,2)} offset:{L_STAT}")
    set_exec(-1)
    a("s_waitcnt lgkmcnt(0)"); a("s_barrier")
    a(f"ds_read_b128 {vr(SX,4)}, v{vZ} offset:{L_STAT}"); a(f"ds_read_b128 {vr(SX+4,4)}, v{vZ} offset:{L_STAT+16}")
    a("s_waitcnt lgkmcnt(0)")
    pkadd(SX, SX, SX + 2); pkadd(SX + 4, SX + 4, SX + 6); pkadd(SX, SX, SX + 4)
    a(f"v_mov_b32 v{t0}, v{SX}"); a(f"v_mov_b32 v{t1}, v{SX+1}")
    ln_consts(t0, t1, t2)
    a(f"v_rcp_f32 v{t4}, v{t1}")
    O4 = HQ + 12
    for i in range(4): a(f"v_sub_f32 v{O4+i}, v{O4+i}, v{t0}")
    a(f"v_cvt_pk_bf16_f32 v{t2}, v{O4}, v{O4+1}"); a(f"v_cvt_pk_bf16_f32 v{t3}, v{O4+2}, v{O4+3}")
    a(f"v_lshlrev_b32 v{O4}, 16, v{t2}"); a(f"v_and_b32 v{O4+1}, 0xffff0000, v{t2}"); a(f"v_lshlrev_b32 v{O4+2}, 16, v{t3}"); a(f"v_and_b32 v{O4+3}, 0xffff0000, v{t3}")
    for i in range(4): a(f"v_mul_f32 v{O4+i}, v{O4+i}, v{t4}")
    a(f"v_cvt_pk_bf16_f32 v{t2}, v{O4}, v{O4+1}"); a(f"v_cvt_pk_bf16_f32 v{t3}, v{O4+2}, v{O4+3}")
    PR = FA
    for r_, (src, hi) in enumerate(((t2, 0), (t2, 1), (t3, 0), (t3, 1))):
        b = PR + 4 * r_
        a(f"v_mov_b32 v{b}, 0"); a(f"v_mov_b32 v{b+2}, 0")
        if hi:
            a(f"v_lshrrev_b32 v{b+1}, 16, v{src}"); a(f"v_and_b32 v{b+3}, 0xffff0000, v{src}")
        else:
            a(f"v_and_b32 v{b+1}, 0xffff, v{src}"); a(f"v_lshlrev_b32 v{b+3}, 16, v{src}")
    set_exec("0x000000ffffffffff")
    for r_ in range(4): a(f"ds_write_b128 v{FW}, {vr(PR+4*r_,4)} offset:{16*r_}")
    set_exec(-1)
    a("s_waitcnt lgkmcnt(0)")
    for k in range(10):
        base = FW + 1 + k // 4
        a(f"ds_read2_b32 {vr(FA+2*k,2)}, v{base} offset0:{(k%4)*64} offset1:{(k%4)*64+1}")
    DB = DA + 4
    for k in range(10):
        a(f"s_waitcnt lgkmcnt({9-k})")
        a(f"v_mfma_f32_4x4x4_16b_bf16 {vr(DA,4)}, {vr(FA+2*k,2)}, {vr(W+4*k,2)}, {vr(DA,4)}")
        a(f"v_mfma_f32_4x4x4_16b_bf16 {vr(DB,4)}, {vr(FA+2*k,2)}, {vr(W+4*k+2,2)}, {vr(DB,4)}")
    for m in ("row_ror:4", "row_ror:8"):
        for i in range(8): dpp("v_add_f32", DA + i, m)
    set_exec("0x000f000f000f000f")
    a(f"ds_write_b128 v{FW+4}, {vr(DA,4)} offset:{L_RED3}")
    a(f"ds_write_b128 v{FW+4}, {vr(DB,4)} offset:{L_RED3+16}")
    set_exec(-1)
    a("s_waitcnt lgkmcnt(0)"); a("s_barrier")
    HR = FA
    for s in range(8): a(f"ds_read_b32 v{HR+s}, v{FW+5} offset:{L_RED3 + 128*s}")
    a("s_waitcnt lgkmcnt(0)")
    for s in range(0, 8, 4): pkadd(HR + s, HR + s, HR + s + 2)
    pkadd(HR, HR, HR + 4)
    a(f"v_add_f32 v{HR}, v{HR}, v{HR+1}")
    a(f"v_mov_b32 v{T[0]}, v{HR}"); a(f"v_permlane32_swap_b32 v{T[0]}, v{HR}"); a(f"v_add_f32 v{HR}, v{HR}, v{T[0]}")
    rne(HR, HR)
    a(f"v_mov_b32 v{T[0]}, v{HR}"); a(f"v_permlane16_swap_b32 v{T[0]}, v{HR}")
    a(f"v_mul_f32 v{T[1]}, {f32hex(-LOG2E)}, v{T[0]}"); a(f"v_min_f32 v{T[1]}, 0x42fc0000, v{T[1]}"); a(f"v_exp_f32 v{T[1]}, v{T[1]}")
    a(f"v_add_f32 v{T[1]}, 1.0, v{T[1]}"); a(f"v_rcp_f32 v{T[2]}, v{T[1]}")
    a(f"v_mul_f32 v{T[3]}, v{T[0]}, v{T[2]}")
    rne(T[3], T[3])
    a(f"v_mul_f32 v{T[3]}, v{T[3]}, v{HR}")
    a(f"v_cvt_pk_bf16_f32 v{T[3]}, v{T[3]}, v{T[3]}")
    a(f"ds_bpermute_b32 v{HR+1}, v{FW+6}, v{T[3]}")
    a("s_waitcnt lgkmcnt(0)")
    stamp(11)
    rowproj(1, W + 40, [HR+1], YY)
    dump_stamps()
    a("s_branch L_end")

    a.label("L_roleR")
    if wb:
        a(f"s_cmp_ge_u32 s{sRI}, 24"); a("s_cbranch_scc0 L_nowb")
        a(f"s_cmp_lg_u32 s{sW}, 0"); a("s_cbranch_scc1 L_fin")
        class_wait()
        a("buffer_wbl2 sc1"); a("s_waitcnt vmcnt(0)")
        a("s_branch L_fin")
        a.label("L_nowb")
    a(f"s_cmp_ge_u32 s{sRI}, 20"); a("s_cbranch_scc1 L_fin")
    RS = RING + 24
    RS = RING + 40
    XS = RB
    WRr = RB + 8
    HV = RB + 16
    HPK = RB + 28
    HS = vQ + 4
    SIG = vQ + 8
    def reduce_parts(base, nsrc, nld, lds, pre=None):
        a(f"s_mul_i32 s{sU}, s{sRI}, {nsrc*128}"); a(f"s_add_u32 s{sU}, s{sU}, {base}")
        a(f"v_lshlrev_b32 v{T[3]}, 4, v0")
        PB = [RS + 4, RING]
        def iss(z):
            for k in range(nld):
                a(f"s_add_u32 s{sT1}, s{sU}, {4096*k}")
                a(f"buffer_load_dwordx4 {vr(PB[z]+4*k,4)}, v{T[3]}, {srd(WSR)}, s{sT1} offen sc1")
        def chk(z):
            for k in range(nld): check4(PB[z] + 4*k, T[0], T[1], k == 0)
        def st1(z):
            b = PB[z]
            untag(b, 4 * nld)
            a(f"v_pk_add_f32 {vr(RS,2)}, {vr(b,2)}, {vr(b+4,2)}"); a(f"v_pk_add_f32 {vr(RS+2,2)}, {vr(b+2,2)}, {vr(b+6,2)}")
            for k in range(2, nld): sum_quads(RS, [b + 4*k])
        def pre2():
            if pre: pre()
            a(f"v_and_b32 v{T[4]}, 7, v{vL}"); a(f"v_lshlrev_b32 v{T[4]}, 4, v{T[4]}")
            a(f"s_lshl_b32 s{sT0}, s{sW}, 7"); a(f"v_add_u32 v{T[5]}, s{sT0}, v{T[4]}")
        poll2(iss, chk, nld, st1, pre=pre2)
        RT = vACC
        for i in range(4): dpp("v_add_f32", RS + i, "row_ror:8")
        o4 = [("v_add_f32", RS + i) for i in range(4)]
        swap_reduce(o4, [RT + i for i in range(4)], "v_permlane16_swap_b32")
        swap_reduce(o4, [RT + i for i in range(4)], "v_permlane32_swap_b32")
        set_exec("0x00000000000000ff")
        a(f"ds_write_b128 v{T[5]}, {vr(RS,4)} offset:{lds}")
        set_exec(-1)
        a("s_waitcnt lgkmcnt(0)"); a("s_barrier")
        a(f"ds_read_b128 {vr(RS,4)}, v{T[4]} offset:{lds}")
        for s in range(1, 4): a(f"ds_read_b128 {vr(RT+4*(s-1),4)}, v{T[4]} offset:{lds + 128*s}")
        a("s_waitcnt lgkmcnt(0)")
        sum_quads(RS, [RT]); sum_quads(RT + 4, [RT + 8]); sum_quads(RS, [RT + 4])
    def r_pre1():
        a(f"v_and_b32 v{T[0]}, 7, v{vL}"); a(f"v_lshlrev_b32 v{T[0]}, 3, v{T[0]}"); a(f"s_lshl_b32 s{sT0}, s{sRI}, 6"); a(f"v_add_u32 v{T[0]}, s{sT0}, v{T[0]}")
        a(f"global_load_dwordx2 {vr(XS+4,2)}, v{T[0]}, {sp(pX)}")
        a(f"v_lshlrev_b32 v{T[1]}, 3, v{vL}"); a(f"v_add_u32 v{T[2]}, 1024, v{T[1]}"); a(f"v_min_u32 v{T[2]}, 1272, v{T[2]}")
        a(f"global_load_dwordx2 {vr(WRr,2)}, v{T[1]}, {sp(pWR)}")
        a(f"global_load_dwordx2 {vr(WRr+2,2)}, v{T[1]}, {sp(pWR)} offset:512")
        a(f"global_load_dwordx2 {vr(WRr+4,2)}, v{T[2]}, {sp(pWR)}")
        a(f"v_lshrrev_b32 v{SIG+2}, 3, v{vL}"); a(f"v_lshlrev_b32 v{SIG+2}, 12, v{SIG+2}")
        a(f"v_and_b32 v{SIG+3}, 7, v{vL}"); a(f"v_lshlrev_b32 v{SIG+3}, 4, v{SIG+3}"); a(f"v_add_u32 v{SIG+2}, v{SIG+2}, v{SIG+3}")
        a(f"s_lshl_b32 s{sU2}, s{sRI}, 7"); a(f"s_add_u32 s{sU2}, s{sU2}, {HH}")
        a(f"global_load_dword v{SIG}, v{T[0]}, {sp(pOUT)}")
    class_wait()
    reduce_parts(ZZ, 128, 4, L_RED3, pre=r_pre1)
    stamp(9)
    for h in range(2):
        a(f"v_lshlrev_b32 v{XS+2*h}, 16, v{XS+4+h}"); a(f"v_and_b32 v{XS+2*h+1}, 0xffff0000, v{XS+4+h}")
    a(f"v_cvt_pk_bf16_f32 v{RS}, v{RS}, v{RS+1}"); a(f"v_cvt_pk_bf16_f32 v{RS+2}, v{RS+2}, v{RS+3}")
    a(f"v_and_b32 v{RS+1}, 0xffff0000, v{RS}"); a(f"v_lshlrev_b32 v{RS}, 16, v{RS}"); a(f"v_and_b32 v{RS+3}, 0xffff0000, v{RS+2}"); a(f"v_lshlrev_b32 v{RS+2}, 16, v{RS+2}")
    pkadd(XS, XS, RS); pkadd(XS + 2, XS + 2, RS + 2)
    a(f"v_cvt_pk_bf16_f32 v{RS}, v{XS}, v{XS+1}"); a(f"v_cvt_pk_bf16_f32 v{RS+2}, v{XS+2}, v{XS+3}")
    a(f"v_and_b32 v{XS+1}, 0xffff0000, v{RS}"); a(f"v_lshlrev_b32 v{XS}, 16, v{RS}"); a(f"v_and_b32 v{XS+3}, 0xffff0000, v{RS+2}"); a(f"v_lshlrev_b32 v{XS+2}, 16, v{RS+2}")
    for i in range(4): a(f"v_perm_b32 v{RS+i}, v{XS+i}, v{vN}, s{sSel+i}")
    a(f"s_cmp_lg_u32 s{sW}, 0"); a("s_cbranch_scc1 L_rnopub")
    a(f"buffer_store_dwordx4 {vr(RS,4)}, v{SIG+2}, {srd(WSR)}, s{sU2} offen sc1")
    a.label("L_rnopub")
    a(f"v_lshlrev_b32 v{T[3]}, 4, v{vL}")
    a(f"v_add_u32 v{T[4]}, 2048, v{T[3]}"); a(f"v_min_u32 v{T[4]}, 2544, v{T[4]}")
    a(f"s_and_b32 s{sU}, s2, 7"); a(f"s_lshl_b32 s{sU}, s{sU}, 12"); a(f"s_add_u32 s{sU}, s{sU}, {HH}")
    def r_iss():
        a(f"buffer_load_dwordx4 {vr(HV,4)}, v{T[3]}, {srd(WSR)}, s{sU} offen sc1")
        a(f"buffer_load_dwordx4 {vr(HV+4,4)}, v{T[3]}, {srd(WSR)}, s{sU} offen offset:1024 sc1")
        a(f"buffer_load_dwordx4 {vr(HV+8,4)}, v{T[4]}, {srd(WSR)}, s{sU} offen sc1")
    def r_chk():
        for k in range(3): check4(HV + 4*k, T[0], T[1], k == 0)
    poll(r_iss, r_chk)
    stamp(10)
    for i in range(12): a(f"v_and_b32 v{HV+i}, 0xffff0000, v{HV+i}")
    a(f"v_cmp_gt_u32 vcc, 32, v{vL}")
    for i in range(8, 12): a(f"v_cndmask_b32 v{HV+i}, 0, v{HV+i}, vcc")
    for k in range(6): a(f"v_perm_b32 v{HPK+k}, v{HV+2*k+1}, v{HV+2*k}, s{sPkSel}")
    layernorm_full(HV, HPK, T[0:5], False)
    a(f"v_cmp_gt_u32 vcc, 32, v{vL}")
    a(f"v_cndmask_b32 v{WRr+4}, 0, v{WRr+4}, vcc"); a(f"v_cndmask_b32 v{WRr+5}, 0, v{WRr+5}, vcc")
    a(f"v_dot2_f32_bf16 v{T[0]}, v{HPK}, v{WRr}, 0")
    for k in range(1, 6): a(f"v_dot2_f32_bf16 v{T[0]}, v{HPK+k}, v{WRr+k}, v{T[0]}")
    allreduce("v_add_f32", T[0], T[1])
    rne(T[0], T[0])
    a(f"v_mul_f32 v{T[1]}, {f32hex(-LOG2E)}, v{T[0]}"); a(f"v_min_f32 v{T[1]}, 0x42fc0000, v{T[1]}"); a(f"v_exp_f32 v{T[1]}, v{T[1]}")
    a(f"v_add_f32 v{T[1]}, 1.0, v{T[1]}"); a(f"v_rcp_f32 v{T[2]}, v{T[1]}")
    rne(SIG, T[2])
    a(f"s_lshl_b32 s{sT0}, s{sRI}, 3"); a(f"s_lshr_b32 s{sT1}, s{sT0}, 6"); a(f"s_and_b32 s{sT0}, s{sT0}, 63")
    a(f"v_and_b32 v{T[0]}, 7, v{vL}"); a(f"v_add_u32 v{T[0]}, s{sT0}, v{T[0]}"); a(f"v_lshlrev_b32 v{T[0]}, 2, v{T[0]}")
    for i in range(4): a(f"v_mov_b32 v{HS+i}, v{HV+i}")
    a(f"s_cmp_eq_u32 s{sT1}, 0"); a("s_cbranch_scc1 L_hs")
    for i in range(4): a(f"v_mov_b32 v{HS+i}, v{HV+4+i}")
    a(f"s_cmp_eq_u32 s{sT1}, 1"); a("s_cbranch_scc1 L_hs")
    for i in range(4): a(f"v_mov_b32 v{HS+i}, v{HV+8+i}")
    a.label("L_hs")
    for i in range(4): a(f"ds_bpermute_b32 v{HS+i}, v{T[0]}, v{HS+i}")
    a("s_waitcnt lgkmcnt(0)")
    stamp(11)
    def r_pre2():
        a(f"v_lshlrev_b32 v{SIG+1}, 3, v{vL}"); a(f"s_lshl_b32 s{sT0}, s{sRI}, 6"); a(f"v_add_u32 v{SIG+1}, s{sT0}, v{SIG+1}")
    reduce_parts(YY, 96, 3, L_RED2, pre=r_pre2)
    stamp(12)
    def rne4(b):
        a(f"v_cvt_pk_bf16_f32 v{b}, v{b}, v{b+1}"); a(f"v_cvt_pk_bf16_f32 v{b+2}, v{b+2}, v{b+3}")
        a(f"v_and_b32 v{b+1}, 0xffff0000, v{b}"); a(f"v_lshlrev_b32 v{b}, 16, v{b}"); a(f"v_and_b32 v{b+3}, 0xffff0000, v{b+2}"); a(f"v_lshlrev_b32 v{b+2}, 16, v{b+2}")
    rne4(RS)
    for i in range(4): a(f"v_mul_f32 v{RS+i}, v{RS+i}, v{SIG}")
    rne4(RS)
    pkadd(RS, RS, HS); pkadd(RS + 2, RS + 2, HS + 2)
    rne4(RS)
    pkadd(RS, RS, XS); pkadd(RS + 2, RS + 2, XS + 2)
    a(f"v_cvt_pk_bf16_f32 v{RS}, v{RS}, v{RS+1}"); a(f"v_cvt_pk_bf16_f32 v{RS+1}, v{RS+2}, v{RS+3}")
    a(f"s_cmp_lg_u32 s{sW}, 0"); a("s_cbranch_scc1 L_fin")
    set_exec("0x00000000000000ff")
    a(f"global_store_dwordx2 v{SIG+1}, {vr(RS,2)}, {sp(pOUT)}" + (" sc1" if outwt else ""))
    a(f"s_cmp_lg_u32 s{sRI}, 0"); a("s_cbranch_scc1 L_fin")
    set_exec(1)
    a(f"v_mov_b32 v{T[1]}, 0")
    a(f"buffer_store_dword v{vN}, v{T[1]}, {srd(WSR)}, 0 offen offset:{EPOCH}" + (" sc1" if outwt else ""))
    a.label("L_fin")
    dump_stamps()
    a.label("L_abort")
    a.label("L_end")
    a("s_endpgm")
    a.label("L_codeend")
    body = a.text()
    tail = f""".section .rodata,"a"
.p2align 6
.amdhsa_kernel {NAME}
  .amdhsa_next_free_vgpr {NV}
  .amdhsa_next_free_sgpr 100
  .amdhsa_accum_offset {NV}
  .amdhsa_group_segment_fixed_size 0
  .amdhsa_kernarg_size 104
  .amdhsa_user_sgpr_count 2
  .amdhsa_user_sgpr_kernarg_segment_ptr 1
  .amdhsa_system_sgpr_workgroup_id_x 1
.end_amdhsa_kernel
"""
    return body + tail

if __name__ == "__main__":
    kw = json.loads(sys.argv[1]) if len(sys.argv) > 1 else {}
    sys.stdout.write(gen(**kw))
```

```python
import sys, json, struct
from asmlib import Asm

NAME = "sequential_preLN__mha_block_cached__moe_arch_mod__decode_kernel"
HEADER = """
;
"""

def f32hex(x): return "0x%08x" % struct.unpack("<I", struct.pack("<f", x))[0]

HB = 12582912
EPOCH = 0
QP = 0x1000
ML = 0x48000
OP = 0x60000
ZZ = 0x130000
HH = 0x1D0000
YY = 0x181000
CLS = 0x1C0000
TT = 0x1C4000
GT = 0x1C8000
GLOB = 0x1C2000
PROG = 0x1C1000
WS_SIZE = 0x200000
L_XN = 0
L_Q = 5120
L_RED = 6656
L_RED2 = 12800
L_RED3 = 23040
L_SC = 25088
L_STAT = 2304
L_CTL = 2048
L_REDH = 25088 + 16384 + 512
LDS_BYTES = 25088 + 16384 + 512 + 6144
LOG2E = 1.4426950408889634

def gen(H=8, PK=15, ctl=1, thr=16, local=1, pace=1, wpol="nt", qpol="nt", stage1=64, nb=5, nx_=7, early=5, p2=0, stag=3, tctl=0, oploc=1, wb=0, wphase=0, tb=1, lastb=1, pfearly=1, hprio=3, hsleep=4, sprio=0, fidx=0, fdefer=0, outwt=0, donewt=0, delta=20, cpmax=24, kp=5, thrF=None, thrR=None, wmix=0, xctl=0, thr_odd=None, cthr=5, clead=1, thr_lo=10, thr_hi=32, cmed=16, lds=LDS_BYTES, dbg=0, pol="nt", spin=1 << 19, codepf=1):
    nph = 32 // H
    WPH = 256 // H
    NWH = WPH * 4
    G = 4096 // NWH
    NIT = G // 8
    STRIDE = NWH * 3072
    assert 2 <= PK <= 15 and NIT >= 4 and nb <= 9 and nx_ <= 12
    a = Asm()

    vL, vSA, vN = 1, 2, 3
    vM = [4, 5, 6, 7]; vA = 8
    vQ = 12
    vACC = 24
    vC, vMX, vP, vPN, vBC = 36, 37, 38, 39, 40
    T = list(range(41, 48))
    RING = 48
    W = 144
    vX = 204
    vLS, vAL, vRA, vOPA, WA, WB = 224, 225, 226, 227, 228, 230
    vZ, vFL = 232, 233
    NV = 240
    vST = 240
    if dbg: NV = 248
    def ring(slot, t): b = RING + slot * 12 + 4 * t; return f"v[{b}:{b+3}]"
    def vr(b, n): return f"v[{b}:{b+n-1}]"
    sW = 3
    pX, pK, pV, pWQ, pWO, pBX, pWR, pWG, pWU, pWD, pOUT, pDBG, pWS = [4 + 2 * i for i in range(13)]
    STR, WSR, TMP = 32, 36, 40
    sOff, sIt, sHead, sWI, sPh, sNon, sRole, sRI = 44, 45, 46, 47, 48, 49, 50, 51
    sSel = 52
    sSelG = 56
    sT0, sT1, sT2, sT3 = 57, 58, 59, 60
    sInc = 61
    sMask = 62
    sSlot, sJ, sInc4, sSpin = 78, 79, 80, 81
    sE = 82
    sBad = 84
    sU, sU2 = 86, 87
    sRow = 90
    sLoc, sBst, sPrv, sGI, sOH = 30, 31, 97, 98, 99
    sPkSel = 96
    def sp(b): return f"s[{b}:{b+1}]"
    def srd(b): return f"s[{b}:{b+3}]"
    USEFUL = "0xFF00FF0000FF00FF"

    def stamp(k):
        if not dbg: return
        if dbg == 3 and k not in (0, 3, 4, 6, 7, 9, 10, 12, 15): return
        if dbg == 2 and k not in (0, 15): return
        if dbg == 4 and k not in (0, 3, 15): return
        a("s_memrealtime s[88:89]"); a("s_waitcnt lgkmcnt(0)"); a(f"v_writelane_b32 v{vST}, s88, {k}")
    def pstamp(base):
        if dbg != 4: return
        a("s_memrealtime s[88:89]"); a(f"s_lshl_b32 s43, s{sPh}, 2"); a(f"s_add_u32 s43, s43, {base}"); a("s_mov_b32 m0, s43"); a("s_waitcnt lgkmcnt(0)"); a("s_nop 3")
        a(f"v_writelane_b32 v{vST}, s88, m0")
    def dump_stamps(helper=False):
        if not dbg: return
        if dbg == 3:
            if helper: return
            n = newlab()
            stamp(15)
            a(f"s_cmp_lg_u32 s{sW}, 0"); a(f"s_cbranch_scc1 L_ds{n}")
            a("s_mov_b64 exec, -1")
            a(f"s_mov_b32 s40, s{pDBG}"); a(f"s_mov_b32 s41, s{pDBG+1}"); a("s_mov_b32 s42, 256"); a("s_mov_b32 s43, 0x20000")
            a(f"v_lshlrev_b32 v{vST+1}, 2, v{vL}")
            a(f"v_mov_b32 v{vST+2}, 0"); a(f"v_mov_b32 v{vST+3}, 0")
            for dst, src, inv in ((0,0,1),(1,3,0),(2,4,0),(3,4,1),(4,6,0),(5,6,1),(6,7,0),(7,9,0),(8,10,0),(9,12,0),(10,15,0)):
                a(f"v_readlane_b32 s88, v{vST}, {src}")
                if inv: a("s_not_b32 s88, s88")
                a("s_nop 3"); a(f"v_writelane_b32 v{vST+2}, s88, {dst}")
            a(f"v_readlane_b32 s89, v{vST}, 0")
            for dst, src in ((11,6),(12,4),(13,3)):
                a(f"v_readlane_b32 s88, v{vST}, {src}"); a("s_nop 3"); a("s_sub_u32 s88, s88, s89"); a("s_nop 3"); a(f"v_writelane_b32 v{vST+3}, s88, {dst}")
            a("s_mov_b64 exec, 0x7ff")
            a(f"buffer_atomic_umax v{vST+2}, v{vST+1}, s[40:43], 0 offen")
            a("s_mov_b64 exec, 0x3800")
            a(f"buffer_atomic_add v{vST+3}, v{vST+1}, s[40:43], 0 offen")
            a.label(f"L_ds{n}")
            return
        stamp(15)
        a("s_mov_b32 exec_lo, -1"); a("s_mov_b32 exec_hi, 0")
        if helper: a("s_add_u32 s88, s2, 1024")
        else: a(f"s_lshl_b32 s88, s2, 2"); a(f"s_add_u32 s88, s88, s{sW}")
        a("s_lshl_b32 s88, s88, 7"); a(f"s_add_u32 s88, s88, {WS_SIZE}")
        a(f"v_lshlrev_b32 v{vST+1}, 2, v{vL}")
        a(f"buffer_store_dword v{vST}, v{vST+1}, {srd(WSR)}, s88 offen")

    DPP4 = ("quad_perm:[1,0,3,2]", "quad_perm:[2,3,0,1]", "row_half_mirror", "row_mirror")
    def dpp(op, v, m): a(f"{op}_dpp v{v}, v{v}, v{v} {m} row_mask:0xf bank_mask:0xf")
    def swap_reduce(ops_vs, tmps, sw):
        for (op, v), t in zip(ops_vs, tmps): a(f"v_mov_b32 v{t}, v{v}")
        for (op, v), t in zip(ops_vs, tmps): a(f"{sw} v{t}, v{v}")
        for (op, v), t in zip(ops_vs, tmps): a(f"{op} v{v}, v{v}, v{t}")
    def allreduce_n(ops_vs, tmps):
        for m in DPP4:
            for op, v in ops_vs: dpp(op, v, m)
        swap_reduce(ops_vs, tmps, "v_permlane16_swap_b32")
        swap_reduce(ops_vs, tmps, "v_permlane32_swap_b32")
    def allreduce(op, v, t): allreduce_n([(op, v)], [t])
    def set_exec(val):
        if isinstance(val, str) and val.startswith("0x") and len(val) > 10:
            a(f"s_mov_b32 exec_lo, 0x{val[-8:]}"); a(f"s_mov_b32 exec_hi, 0x{val[2:-8]}")
        else:
            a(f"s_mov_b64 exec, {val}")
    def a_operand(src, dst=None):
        dst = vA if dst is None else dst
        for r in range(4): a(f"v_and_b32 v{dst+r}, v{src}, v{vM[r]}")
    def tag4(b):
        for r in range(4): a(f"v_perm_b32 v{b+r}, v{b+r}, v{vN}, s{sSel+r}")
    def check4(b, t0, t1, first):
        a(f"v_perm_b32 v{t0}, v{b+1}, v{b}, s{sSelG}")
        a(f"v_perm_b32 v{t1}, v{b+3}, v{b+2}, s{sSelG}")
        a(f"v_lshl_or_b32 v{t0}, v{t1}, 16, v{t0}")
        a(f"v_cmp_ne_u32 vcc, v{t0}, v{vN}")
        if first: a(f"s_mov_b64 {sp(sBad)}, vcc")
        else: a(f"s_or_b64 {sp(sBad)}, {sp(sBad)}, vcc")
    lab = [0]
    def newlab():
        lab[0] += 1; return lab[0]
    def poll(issue, check, pre=None, first_issued=False, first_wait=0):
        n = newlab()
        a(f"s_mov_b32 s{sSpin}, {spin}")
        if not first_issued: issue()
        if pre: pre()
        a(f"s_waitcnt vmcnt({first_wait})")
        a(f"s_branch L_pollchk{n}")
        a.label(f"L_poll{n}")
        a(f"s_sub_u32 s{sSpin}, s{sSpin}, 1")
        a(f"s_cmp_eq_u32 s{sSpin}, 0")
        a("s_cbranch_scc1 L_abort")
        issue()
        a("s_waitcnt vmcnt(0)")
        a.label(f"L_pollchk{n}")
        check()
        a(f"s_cmp_lg_u64 {sp(sBad)}, 0")
        a(f"s_cbranch_scc1 L_poll{n}")
    def poll2(issue, check, nld, stage1, pre=None):
        if not p2:
            poll(lambda: issue(0), lambda: check(0), pre=pre); stage1(0); return
        n = newlab()
        a(f"s_mov_b32 s{sSpin}, {spin}")
        issue(0)
        if pre: pre()
        if stag: a(f"s_sleep {stag}")
        issue(1)
        a.label(f"L_p2{n}")
        a(f"s_waitcnt vmcnt({nld})")
        check(0)
        a(f"s_cmp_eq_u64 {sp(sBad)}, 0"); a(f"s_cbranch_scc1 L_p2a{n}")
        issue(0)
        a(f"s_waitcnt vmcnt({nld})")
        check(1)
        a(f"s_cmp_eq_u64 {sp(sBad)}, 0"); a(f"s_cbranch_scc1 L_p2b{n}")
        issue(1)
        a(f"s_sub_u32 s{sSpin}, s{sSpin}, 1"); a(f"s_cmp_eq_u32 s{sSpin}, 0"); a("s_cbranch_scc1 L_abort")
        a(f"s_branch L_p2{n}")
        a.label(f"L_p2b{n}")
        stage1(1)
        a(f"s_branch L_p2j{n}")
        a.label(f"L_p2a{n}")
        stage1(0)
        a.label(f"L_p2j{n}")
    def pub_store(data, voff, soff):
        n = newlab()
        if local:
            a(f"s_cmp_eq_u32 s{sLoc}, 1"); a(f"s_cbranch_scc1 L_pl{n}")
        a(f"buffer_store_dwordx4 {data}, v{voff}, {srd(WSR)}, s{soff} offen sc1")
        if local:
            a(f"s_branch L_pd{n}")
            a.label(f"L_pl{n}")
            a(f"buffer_store_dwordx4 {data}, v{voff}, {srd(WSR)}, s{soff} offen")
            a.label(f"L_pd{n}")
    def rne(dst, src):
        a(f"v_cvt_pk_bf16_f32 v{dst}, v{src}, v{src}")
        a(f"v_lshlrev_b32 v{dst}, 16, v{dst}")
    def pkadd(d, x, y): a(f"v_pk_add_f32 {vr(d,2)}, {vr(x,2)}, {vr(y,2)}")
    def sum_quads(dst, srcs):
        for s in srcs:
            pkadd(dst, dst, s); pkadd(dst + 2, dst + 2, s + 2)

    def ln_consts(s1, s2, t):
        a(f"v_mul_f32 v{s1}, {f32hex(1.0/640)}, v{s1}")
        a(f"v_mul_f32 v{s2}, {f32hex(1.0/640)}, v{s2}")
        a(f"v_fma_f32 v{s2}, -v{s1}, v{s1}, v{s2}")
        a(f"v_max_f32 v{s2}, 0, v{s2}")
        rne(s2, s2)
        a(f"v_add_f32 v{s2}, {f32hex(1e-5)}, v{s2}")
        rne(s2, s2)
        rne(s1, s1)
        a(f"v_sqrt_f32 v{s2}, v{s2}")
        rne(s2, s2)

    def layernorm_full(val, pk, tmp, refine):
        t0, t1, t2, t3, t4 = tmp
        ONES = t4
        a(f"v_mov_b32 v{ONES}, 0x3f803f80")
        a(f"v_dot2_f32_bf16 v{t0}, v{pk}, v{ONES}, 0"); a(f"v_dot2_f32_bf16 v{t1}, v{pk}, v{pk}, 0")
        for i in range(1, 6):
            a(f"v_dot2_f32_bf16 v{t0}, v{pk+i}, v{ONES}, v{t0}"); a(f"v_dot2_f32_bf16 v{t1}, v{pk+i}, v{pk+i}, v{t1}")
        allreduce_n([("v_add_f32", t0), ("v_add_f32", t1)], [t2, t3])
        ln_consts(t0, t1, t2)
        a(f"v_rcp_f32 v{t4}, v{t1}")
        for i in range(0, 12, 2):
            a(f"v_sub_f32 v{val+i}, v{val+i}, v{t0}")
            a(f"v_sub_f32 v{val+i+1}, v{val+i+1}, v{t0}")
            a(f"v_cvt_pk_bf16_f32 v{t2}, v{val+i}, v{val+i+1}")
            a(f"v_lshlrev_b32 v{val+i}, 16, v{t2}")
            a(f"v_and_b32 v{val+i+1}, 0xffff0000, v{t2}")
            for k in (i, i + 1):
                if refine:
                    a(f"v_mul_f32 v{t2}, v{val+k}, v{t4}")
                    a(f"v_fma_f32 v{t3}, -v{t2}, v{t1}, v{val+k}")
                    a(f"v_fma_f32 v{val+k}, v{t3}, v{t4}, v{t2}")
                else:
                    a(f"v_mul_f32 v{val+k}, v{val+k}, v{t4}")
            a(f"v_cvt_pk_bf16_f32 v{pk + i//2}, v{val+i}, v{val+i+1}")
            a(f"v_lshlrev_b32 v{val+i}, 16, v{pk + i//2}")
            a(f"v_and_b32 v{val+i+1}, 0xffff0000, v{pk + i//2}")

    for ln in HEADER.strip("\n").split("\n"): a.lines.append(ln)
    a.lines.append(f"; @launch grid=(256,1,1) block=(320,1,1) lds={lds}")
    a.lines.append('.amdgcn_target "amdgcn-amd-amdhsa--gfx950"')
    a.lines += [".text", f".globl {NAME}", ".p2align 8", f".type {NAME},@function"]
    a.label(NAME)
    a("s_cmp_ge_u32 s2, 256")
    a("s_cbranch_scc1 L_end")
    a("s_load_dwordx16 s[4:19], s[0:1], 0")
    a("s_load_dwordx8 s[20:27], s[0:1], 64")
    a("s_load_dwordx2 s[28:29], s[0:1], 96")
    a(f"v_and_b32 v{vL}, 63, v0")
    a(f"v_lshrrev_b32 v{T[0]}, 6, v0")
    a(f"v_lshrrev_b32 v{T[2]}, 3, v{vL}")
    a(f"v_readfirstlane_b32 s{sW}, v{T[0]}")
    a(f"v_and_b32 v{T[3]}, 7, v{vL}")
    a(f"v_lshlrev_b32 v{T[4]}, 4, v{T[3]}")
    def masks():
        for r in range(4):
            a(f"v_mov_b32 v{vM[r]}, 0")
            a(f"v_mov_b32 v{T[5]}, 0xffff")
            a(f"v_cmp_eq_u32 vcc, {2*r}, v{T[3]}")
            a(f"v_cndmask_b32 v{vM[r]}, v{vM[r]}, v{T[5]}, vcc")
            a(f"v_mov_b32 v{T[5]}, 0xffff0000")
            a(f"v_cmp_eq_u32 vcc, {2*r+1}, v{T[3]}")
            a(f"v_cndmask_b32 v{vM[r]}, v{vM[r]}, v{T[5]}, vcc")
    def ws_srd():
        a(f"s_mov_b32 s{WSR}, s{pWS}"); a(f"s_mov_b32 s{WSR+1}, s{pWS+1}"); a(f"s_mov_b32 s{WSR+2}, {WS_SIZE * (2 if dbg else 1)}"); a(f"s_mov_b32 s{WSR+3}, 0x20000")
    vq = []
    def wait_for(name):
        if name not in vq: return
        idx = max(i for i, n in enumerate(vq) if n == name)
        n = len(vq) - 1 - idx
        a(f"s_waitcnt vmcnt({min(n, 63)})")
        del vq[:idx + 1]
    def red_addr():
        a(f"v_lshrrev_b32 v{T[0]}, 5, v{vL}")
        a(f"v_mul_u32_u24 v{vRA}, 768, v{T[0]}")
        a(f"v_and_b32 v{T[0]}, 7, v{vL}"); a(f"v_lshlrev_b32 v{T[0]}, 5, v{T[0]}"); a(f"v_add_u32 v{vRA}, v{vRA}, v{T[0]}")
        a(f"v_and_b32 v{T[0]}, 16, v{vL}"); a(f"v_add_u32 v{vRA}, v{vRA}, v{T[0]}")
        a(f"s_mul_i32 s{sT0}, s{sW}, 1536"); a(f"v_add_u32 v{vRA}, s{sT0}, v{vRA}")
    def red_write():
        set_exec(USEFUL)
        for t in range(3): a(f"ds_write_b128 v{vRA}, {vr(vACC+4*t,4)} offset:{L_RED + 256*t}")
        set_exec(-1)
    a(f"s_cmp_lg_u32 s{sW}, 4"); a("s_cbranch_scc1 L_stream")
    a("s_setprio 3")

    WD = RING
    XQ = 168
    XV = 176
    XR = 188
    a(f"s_and_b32 s{sT0}, s2, 31"); a(f"s_lshr_b32 s{sT1}, s2, 5")
    a(f"v_mul_u32_u24 v{T[6]}, 12288, v{T[2]}")
    a(f"s_mul_i32 s{sT2}, s{sT0}, 384")
    a(f"v_add3_u32 v{T[6]}, v{T[6]}, v{T[4]}, s{sT2}")
    a(f"s_mul_i32 s{sT3}, s{sT1}, {80*12288}")
    a(f"v_lshlrev_b32 v{T[1]}, 3, v{vL}")
    a(f"v_add_u32 v{T[5]}, 1024, v{T[1]}")
    a(f"v_min_u32 v{T[5]}, 1272, v{T[5]}")
    a(f"s_mov_b32 s{TMP+2}, 7864320"); a(f"s_mov_b32 s{TMP+3}, 0x20000")
    a("s_waitcnt lgkmcnt(0)")
    a(f"s_mov_b32 s{TMP}, s{pWQ}"); a(f"s_mov_b32 s{TMP+1}, s{pWQ+1}")
    a(f"global_load_dwordx2 {vr(XQ,2)}, v{T[1]}, {sp(pX)}")
    a(f"global_load_dwordx2 {vr(XQ+2,2)}, v{T[1]}, {sp(pX)} offset:512")
    a(f"global_load_dwordx2 {vr(XQ+4,2)}, v{T[5]}, {sp(pX)}")
    vq += ["x0", "x1", "x2"]
    for k in range(10):
        for t in range(3):
            a(f"buffer_load_dwordx4 {vr(WD + 12*k + 4*t, 4)}, v{T[6]}, {srd(TMP)}, s{sT3} offen offset:{128*t} {qpol}")
            vq.append(f"wq{k}")
        if k < 9: a(f"s_add_u32 s{sT3}, s{sT3}, {8*12288}")
    a("s_barrier")
    if codepf and pfearly:
        a(f"s_getpc_b64 {sp(58)}")
        a.label("L_pc")
        a(f"s_lshr_b32 s{sT3}, s2, 3"); a(f"s_lshl_b32 s{sT3}, s{sT3}, 9")
        a(f"v_and_b32 v{T[0]}, 7, v{vL}"); a(f"v_lshlrev_b32 v{T[0]}, 6, v{T[0]}"); a(f"v_add_u32 v{T[0]}, s{sT3}, v{T[0]}")
        a(f"v_add_u32 v{T[0]}, L_kcode-L_pc, v{T[0]}")
        a(f"v_min_u32 v{T[0]}, L_codeend-L_pc-4, v{T[0]}")
        a(f"global_load_dword v{vAL}, v{T[0]}, {sp(58)}")
        vq.append("pf")
    a(f"v_mov_b32 v{vZ}, 0")
    for o in list(range(0, 36, 4)) + ([48, 52, 56, 60] if fidx else []): a(f"ds_write_b32 v{vZ}, v{vZ} offset:{L_CTL + o}")
    a(f"s_load_dword s{sNon}, {sp(pWS)}, {EPOCH}")
    if dbg: a(f"v_mov_b32 v{vST}, 0")
    stamp(0)
    masks()
    ws_srd()
    a(f"s_and_b32 s{sSlot}, s2, {H-1}")
    wait_for("x2")
    stamp(18)
    CE = 198
    a("s_waitcnt lgkmcnt(0)")
    a(f"s_add_u32 s{sNon}, s{sNon}, 0x9e3779b9")
    a(f"v_mov_b32 v{vN}, s{sNon}")
    a(f"s_getreg_b32 s{sT0}, hwreg(HW_REG_XCC_ID, 0, 4)")
    a(f"s_and_b32 s{sRole}, s{sT0}, 1")
    a(f"s_and_b32 s{sT1}, s{sNon}, 0xfffffff0"); a(f"s_or_b32 s{sT0}, s{sT0}, s{sT1}")
    a(f"v_mov_b32 v{CE}, s{sT0}")
    a(f"s_and_b32 s{sU2}, s2, 7"); a(f"s_lshl_b32 s{sU2}, s{sU2}, 7")
    a(f"s_lshr_b32 s{sT1}, s2, 3"); a(f"s_lshl_b32 s{sT1}, s{sT1}, 2"); a(f"s_add_u32 s{sT1}, s{sT1}, s{sU2}"); a(f"s_add_u32 s{sT1}, s{sT1}, {CLS}")
    if local:
        set_exec(1)
        a(f"buffer_store_dword v{CE}, v{vZ}, {srd(WSR)}, s{sT1} offen")
        set_exec(-1)
        vq.append("cls_st")
    a(f"v_cmp_gt_u32 vcc, 32, v{vL}")
    a(f"v_cndmask_b32 v{XQ+4}, 0, v{XQ+4}, vcc"); a(f"v_cndmask_b32 v{XQ+5}, 0, v{XQ+5}, vcc")
    for k in range(6):
        a(f"v_lshlrev_b32 v{XV+2*k}, 16, v{XQ+k}")
        a(f"v_and_b32 v{XV+2*k+1}, 0xffff0000, v{XQ+k}")
    layernorm_full(XV, XQ, T[0:5], True)
    a(f"v_lshlrev_b32 v{T[0]}, 3, v{vL}")
    a(f"ds_write_b64 v{T[0]}, {vr(XQ,2)} offset:{L_XN}")
    a(f"ds_write_b64 v{T[0]}, {vr(XQ+2,2)} offset:{L_XN+512}")
    set_exec("0x00000000ffffffff")
    a(f"ds_write_b64 v{T[0]}, {vr(XQ+4,2)} offset:{L_XN+1024}")
    set_exec(-1)
    a(f"s_lshr_b32 s{sT1}, s2, 5"); a(f"s_mul_i32 s{sT1}, s{sT1}, 160")
    a(f"v_lshrrev_b32 v{T[0]}, 3, v{vL}"); a(f"v_lshlrev_b32 v{T[0]}, 1, v{T[0]}"); a(f"v_add_u32 v{T[0]}, s{sT1}, v{T[0]}")
    a("s_waitcnt lgkmcnt(0)")
    for k in range(10): a(f"ds_read_u16 v{XR+k}, v{T[0]} offset:{L_XN + 16*k}")
    for i in range(12): a(f"v_mov_b32 v{vACC+i}, 0")
    a("s_waitcnt lgkmcnt(0)")
    for k in range(10): a(f"v_lshl_or_b32 v{XR+k}, v{XR+k}, 16, v{XR+k}")
    stamp(1)
    def cls_issue():
        a(f"v_and_b32 v{T[5]}, 31, v{vL}"); a(f"v_lshlrev_b32 v{T[5]}, 2, v{T[5]}")
        a(f"s_add_u32 s{sT2}, s{sU2}, {CLS}")
        a(f"buffer_load_dword v{CE+1}, v{T[5]}, {srd(WSR)}, s{sT2} offen sc1")
    for k in range(10):
        a_operand(XR + k)
        if k == 8 and local:
            cls_issue(); vq.append("cls_ld")
        wait_for(f"wq{k}")
        for t in range(3):
            a(f"v_mfma_f32_16x16x32_bf16 {vr(vACC+4*t,4)}, {vr(vA,4)}, {vr(WD+12*k+4*t,4)}, {vr(vACC+4*t,4)}")
    a(f"v_lshrrev_b32 v{T[0]}, 5, v{vL}"); a(f"v_mul_u32_u24 v{vRA}, 768, v{T[0]}")
    a(f"v_and_b32 v{T[0]}, 7, v{vL}"); a(f"v_lshlrev_b32 v{T[0]}, 5, v{T[0]}"); a(f"v_add_u32 v{vRA}, v{vRA}, v{T[0]}")
    a(f"v_and_b32 v{T[0]}, 16, v{vL}"); a(f"v_add_u32 v{vRA}, v{vRA}, v{T[0]}")
    a(f"v_mul_u32_u24 v{T[0]}, 12, v{vL}")
    a(f"s_and_b32 s{sT0}, s2, 31"); a(f"s_lshr_b32 s{sT1}, s2, 5"); a(f"s_lshl_b32 s{sT0}, s{sT0}, 3"); a(f"s_add_u32 s{sT0}, s{sT0}, s{sT1}")
    a(f"s_lshl_b32 s{sT0}, s{sT0}, 10"); a(f"s_add_u32 s{sT0}, s{sT0}, {QP}")
    a(f"v_lshlrev_b32 v{T[1]}, 4, v{vL}")
    red_write()
    a("s_waitcnt lgkmcnt(0)")
    S3 = 200
    for s in range(2):
        for i in range(3): a(f"ds_read_b32 v{S3+4*s+i}, v{T[0]} offset:{L_RED + 768*s + 4*i}")
    a("s_waitcnt lgkmcnt(0)")
    pkadd(S3, S3, S3 + 4); a(f"v_add_f32 v{S3+2}, v{S3+2}, v{S3+6}")
    a(f"v_mov_b32 v{S3+3}, v{vN}")
    a(f"s_mov_b32 s{sLoc}, 0")
    if local:
        a(f"s_mov_b32 s{sSpin}, 8")
        a("s_waitcnt vmcnt(0)")
        a.label("L_clschk")
        a(f"v_cmp_ne_u32 vcc, v{CE+1}, v{CE}")
        a(f"s_cmp_eq_u64 vcc, 0"); a(f"s_cselect_b32 s{sLoc}, 1, 0"); a("s_cbranch_scc1 L_clsdone")
        a(f"s_sub_u32 s{sSpin}, s{sSpin}, 1"); a(f"s_cmp_eq_u32 s{sSpin}, 0"); a("s_cbranch_scc1 L_clsdone")
        cls_issue(); a("s_waitcnt vmcnt(0)"); a("s_branch L_clschk")
        a.label("L_clsdone")
    pub_store(vr(S3,4), T[1], sT0)
    a(f"v_mov_b32 v{T[2]}, s{sLoc}"); a(f"ds_write_b32 v{vZ}, v{T[2]} offset:{L_CTL + 8}")
    stamp(21)
    S4 = RING
    for p in range(nph):
        a(f"s_add_u32 s{sU}, s{sSlot}, {H*p}"); a(f"s_lshl_b32 s{sU}, s{sU}, 13"); a(f"s_add_u32 s{sU}, s{sU}, {QP}")
        def iss():
            for s in range(8):
                a(f"s_add_u32 s{sT1}, s{sU}, {1024*s}")
                a(f"buffer_load_dwordx4 {vr(S4+4*s,4)}, v{T[1]}, {srd(WSR)}, s{sT1} offen sc1")
        def chk():
            for s in range(8):
                a(f"v_cmp_ne_u32 vcc, v{S4+4*s+3}, v{vN}")
                a(f"s_mov_b64 {sp(sBad)}, vcc" if s == 0 else f"s_or_b64 {sp(sBad)}, {sp(sBad)}, vcc")
        poll(iss, chk)
        if p == 0: stamp(22)
        for s in range(1, 8):
            pkadd(S4, S4, S4 + 4*s); a(f"v_add_f32 v{S4+2}, v{S4+2}, v{S4+4*s+2}")
        a(f"v_cvt_pk_bf16_f32 v{S4}, v{S4}, v{S4+1}")
        a(f"v_cvt_pk_bf16_f32 v{S4+2}, v{S4+2}, v{S4+2}")
        a(f"v_mul_u32_u24 v{T[0]}, 6, v{vL}")
        a(f"ds_write_b16 v{T[0]}, v{S4} offset:{L_Q + 384*p}")
        a(f"ds_write_b16_d16_hi v{T[0]}, v{S4} offset:{L_Q + 384*p + 2}")
        a(f"ds_write_b16 v{T[0]}, v{S4+2} offset:{L_Q + 384*p + 4}")
        a("s_waitcnt lgkmcnt(0)")
        if nph > 1:
            a(f"v_mov_b32 v{T[0]}, {p+1}"); a(f"ds_write_b32 v{vZ}, v{T[0]} offset:{L_CTL + 32}"); a("s_waitcnt lgkmcnt(0)")
        if p == 0:
            a("s_barrier")
            if codepf and not pfearly:
                a(f"s_getpc_b64 {sp(58)}")
                a.label("L_pc")
                a(f"s_lshr_b32 s{sT3}, s2, 3"); a(f"s_lshl_b32 s{sT3}, s{sT3}, 9")
                a(f"v_and_b32 v{T[0]}, 7, v{vL}"); a(f"v_lshlrev_b32 v{T[0]}, 6, v{T[0]}"); a(f"v_add_u32 v{T[0]}, s{sT3}, v{T[0]}")
                a(f"v_add_u32 v{T[0]}, L_kcode-L_pc, v{T[0]}")
                a(f"v_min_u32 v{T[0]}, L_codeend-L_pc-4, v{T[0]}")
                a(f"global_load_dword v{vAL}, v{T[0]}, {sp(58)}")
    if ctl or nph > 1:
        NTOT = 2 * NIT * nph
        sPub = sPh
        HBUF = RING
        a(f"s_and_b32 s{sT0}, s{sNon}, 0xffffff00"); a(f"v_mov_b32 v{T[3]}, s{sT0}")
        a(f"s_add_u32 s{sU}, s{sU2}, {PROG}")
        a(f"v_lshlrev_b32 v{T[4]}, 2, v{vL}"); a(f"v_mov_b32 v{T[5]}, 0x800"); a(f"v_cmp_gt_u32 vcc, 32, v{vL}"); a(f"v_cndmask_b32 v{T[4]}, v{T[5]}, v{T[4]}, vcc")
        a(f"s_lshr_b32 s{sT1}, s2, 3"); a(f"s_lshl_b32 s{sT1}, s{sT1}, 2"); a(f"v_mov_b32 v{T[5]}, s{sT1}")
        sCN, sLead, sThr = sWI, sOff, sIt
        a(f"s_mov_b32 s{sCN}, 1"); a(f"s_cmp_lt_u32 s2, 8"); a(f"s_cselect_b32 s{sLead}, 1, 0")
        a(f"v_lshlrev_b32 v{vBC}, 8, v{vL}"); a(f"v_min_u32 v{vBC}, {7*256}, v{vBC}")
        a(f"s_and_b32 s{sT2}, s2, 7"); a(f"s_lshl_b32 s{sT2}, s{sT2}, 8"); a(f"v_mov_b32 v{vP}, s{sT2}")
        a(f"v_mov_b32 v{vPN}, 0x800")
        sA, sAp, sAn, sTau, sHave, sK, sLcp, sTn = 62, 63, 64, 65, 66, 67, 68, 70
        if tctl:
            a(f"s_mov_b32 s{sLcp}, 4"); a(f"s_mov_b32 s{sK}, 4"); a(f"s_mov_b32 s{sHave}, 0")
            a(f"s_mov_b32 s{sA}, 0"); a(f"s_mov_b32 s{sAp}, 0"); a(f"s_mov_b32 s{sAn}, 0"); a(f"s_mov_b32 s{sTau}, 0")
            a(f"s_and_b32 s{sT2}, s2, 7"); a(f"s_lshl_b32 s{sT2}, s{sT2}, 8")
            a(f"v_and_b32 v{vBC}, 31, v{vL}"); a(f"v_lshlrev_b32 v{vBC}, 3, v{vBC}"); a(f"v_add_u32 v{vBC}, s{sT2}, v{vBC}")
            a(f"s_lshr_b32 s{sT3}, s2, 3"); a(f"s_lshl_b32 s{sT3}, s{sT3}, 3"); a(f"s_add_u32 s{sT3}, s{sT3}, s{sT2}"); a(f"v_mov_b32 v{vP}, s{sT3}")
            a(f"v_min_u32 v{vPN}, 7, v{vL}"); a(f"v_lshlrev_b32 v{vPN}, 8, v{vPN}")
            a(f"v_mov_b32 v{vC}, s{sT2}")
        a(f"s_mov_b32 s{sGI}, 0"); a(f"s_mov_b32 s{sSpin}, {1 << 22}"); a(f"s_mov_b32 s{sPub}, 0")
        if nph > 1:
            for r in range(4): a(f"s_mov_b32 s{sSel+r}, 0x{0x07060500 | r:08x}")
            a(f"s_lshr_b32 s{sJ}, s2, {H.bit_length()-1}")
            a(f"v_mul_u32_u24 v{T[1]}, 43691, v{vL}"); a(f"v_lshrrev_b32 v{T[1]}, 19, v{T[1]}")
            a(f"v_mul_u32_u24 v{T[2]}, 12, v{T[1]}"); a(f"v_sub_u32 v{T[2]}, v{vL}, v{T[2]}")
            a(f"v_mul_u32_u24 v{T[1]}, {WPH*192}, v{T[1]}"); a(f"v_lshlrev_b32 v{T[2]}, 4, v{T[2]}"); a(f"v_add_u32 v{vOPA}, v{T[1]}, v{T[2]}")
            a(f"v_lshlrev_b32 v{vRA}, 4, v{vL}")
        if hprio != 3: a(f"s_setprio {hprio}")
        a.label("L_cspin")
        a(f"s_sleep {hsleep}")
        a(f"ds_read_b32 v{T[0]}, v{vZ} offset:{L_CTL}")
        if nph > 1: a(f"ds_read_b128 {vr(vA,4)}, v{vZ} offset:{L_CTL + 16}")
        a("s_waitcnt lgkmcnt(0)"); a(f"v_readfirstlane_b32 s{sT0}, v{T[0]}")
        a(f"s_sub_u32 s{sSpin}, s{sSpin}, 1"); a(f"s_cmp_eq_u32 s{sSpin}, 0"); a("s_cbranch_scc1 L_cdone")
        if nph > 1:
            a(f"v_min_u32 v{vA}, v{vA}, v{vA+1}"); a(f"v_min_u32 v{vA+2}, v{vA+2}, v{vA+3}"); a(f"v_min_u32 v{vA}, v{vA}, v{vA+2}")
            a(f"v_readfirstlane_b32 s{sT1}, v{vA}")
            a(f"s_cmp_gt_u32 s{sT1}, s{sPub}"); a("s_cbranch_scc0 L_cnopub")
            set_exec("0x0000ffffffffffff")
            for s_ in range(8): a(f"ds_read_b128 {vr(HBUF+4*s_,4)}, v{vRA} offset:{L_REDH + 768*s_}")
            a("s_waitcnt lgkmcnt(0)")
            a(f"s_add_u32 s{sT1}, s{sPub}, 1"); a(f"v_mov_b32 v{T[1]}, s{sT1}"); a(f"ds_write_b32 v{vZ}, v{T[1]} offset:{L_CTL + 12}")
            sum_quads(HBUF, [HBUF + 4*k for k in range(1, 8)])
            tag4(HBUF)
            a(f"s_mul_i32 s{sT2}, s{sPub}, {H}"); a(f"s_add_u32 s{sT2}, s{sT2}, s{sSlot}")
            a(f"s_mul_i32 s{sT2}, s{sT2}, {4*WPH*192}"); a(f"s_mul_i32 s{sT3}, s{sJ}, 192"); a(f"s_add_u32 s{sT2}, s{sT2}, s{sT3}"); a(f"s_add_u32 s{sT2}, s{sT2}, {OP}")
            pub_store(vr(HBUF,4), vOPA, sT2)
            set_exec(-1)
            a(f"s_mov_b32 s{sPub}, s{sT1}")
            a.label("L_cnopub")
        if ctl and tctl:
            a(f"s_cmp_eq_u32 s{sLead}, 0"); a("s_cbranch_scc1 L_tnolead")
            a(f"s_cmp_gt_u32 s{sLcp}, {cpmax}"); a("s_cbranch_scc1 L_tnolead")
            a(f"s_cmp_gt_u32 s{sLcp}, s{sGI}"); a("s_cbranch_scc1 L_tnolead")
            a(f"s_lshl_b32 s72, s{sLcp}, 9"); a(f"s_add_u32 s72, s72, {TT - 2048}")
            a(f"buffer_load_dwordx2 {vr(vA,2)}, v{vBC}, {srd(WSR)}, s72 offen sc1")
            a("s_waitcnt vmcnt(0)")
            a(f"v_cmp_eq_u32 vcc, v{vA+1}, v{vN}"); a("s_cmp_eq_u32 vcc_lo, -1"); a("s_cbranch_scc0 L_tnolead")
            a(f"v_readlane_b32 s73, v{vA}, 0"); a("s_nop 1")
            a(f"v_subrev_u32 v{vA}, s73, v{vA}")
            allreduce("v_add_u32", vA, vA + 2)
            a(f"v_readfirstlane_b32 s74, v{vA}"); a("s_nop 1")
            a("s_ashr_i32 s74, s74, 6"); a("s_add_u32 s73, s73, s74")
            a(f"v_mov_b32 v{vA}, s73"); a(f"v_mov_b32 v{vA+1}, v{vN}")
            a(f"s_lshl_b32 s72, s{sLcp}, 9"); a(f"s_add_u32 s72, s72, {GT - 2048}")
            set_exec(1)
            a(f"buffer_store_dwordx2 {vr(vA,2)}, v{vC}, {srd(WSR)}, s72 offen sc1")
            set_exec(-1)
            a(f"s_add_u32 s{sLcp}, s{sLcp}, 4")
            a.label("L_tnolead")
        if ctl:
            a(f"s_cmp_lg_u32 s{sT0}, s{sGI}"); a("s_cbranch_scc1 L_cchg")
            if xctl:
                a(f"s_cmp_eq_u32 s{sLead}, 0"); a("s_cbranch_scc1 L_cchk")
                a(f"buffer_load_dword v{T[1]}, v{T[4]}, {srd(WSR)}, s{sU} offen sc1")
                a("s_waitcnt vmcnt(0)")
                a(f"v_xor_b32 v{T[1]}, v{T[1]}, v{T[3]}")
                a("s_branch L_clead")
            else:
                a("s_branch L_cchk")
            a.label("L_cchg")
            a(f"s_mov_b32 s{sGI}, s{sT0}")
            if tctl:
                a(f"s_memrealtime {sp(sTn)}"); a("s_waitcnt lgkmcnt(0)")
                a(f"s_and_b32 s72, s{sGI}, 3"); a("s_cmp_eq_u32 s72, 0"); a("s_cbranch_scc0 L_tnocp")
                a(f"s_cmp_gt_u32 s{sGI}, {cpmax}"); a("s_cbranch_scc1 L_tnocp")
                a(f"s_lshl_b32 s72, s{sGI}, 9"); a(f"s_add_u32 s72, s72, {TT - 2048}")
                a(f"v_mov_b32 v{vA}, s{sTn}"); a(f"v_mov_b32 v{vA+1}, v{vN}")
                set_exec(1)
                a(f"buffer_store_dwordx2 {vr(vA,2)}, v{vP}, {srd(WSR)}, s72 offen")
                set_exec(-1)
                a.label("L_tnocp")
                a(f"s_cmp_gt_u32 s{sK}, {cpmax}"); a("s_cbranch_scc1 L_tnoget")
                a(f"s_cmp_le_u32 s{sGI}, s{sK}"); a("s_cbranch_scc1 L_tnoget")
                a(f"s_lshl_b32 s72, s{sK}, 9"); a(f"s_add_u32 s72, s72, {GT - 2048}")
                a(f"buffer_load_dwordx2 {vr(vA,2)}, v{vPN}, {srd(WSR)}, s72 offen sc1")
                a("s_waitcnt vmcnt(0)")
                a(f"v_cmp_eq_u32 vcc, v{vA+1}, v{vN}"); a("s_and_b32 s72, vcc_lo, 0xff"); a("s_cmp_eq_u32 s72, 0xff"); a("s_cbranch_scc0 L_tnoget")
                a(f"s_and_b32 s75, s2, 7"); a(f"v_readlane_b32 s73, v{vA}, 0"); a("s_nop 3"); a(f"v_readlane_b32 s75, v{vA}, s75"); a("s_nop 1")
                a(f"v_subrev_u32 v{vA}, s73, v{vA}")
                a(f"v_cmp_gt_u32 vcc, 8, v{vL}"); a(f"v_cndmask_b32 v{vA}, 0, v{vA}, vcc")
                allreduce("v_add_u32", vA, vA + 2)
                a(f"v_readfirstlane_b32 s74, v{vA}"); a("s_nop 1")
                a("s_ashr_i32 s74, s74, 3"); a("s_add_u32 s73, s73, s74")
                if tctl == 2:
                    a("s_sub_i32 s75, s75, s73"); a(f"s_mul_i32 s75, s75, {kp}"); a("s_ashr_i32 s75, s75, 6"); a(f"s_sub_i32 s{sTau}, 0, s75")
                    a(f"s_add_u32 s{sK}, s{sK}, 4")
                    a("s_branch L_tnoget")
                a(f"s_cmp_eq_u32 s{sK}, 4"); a("s_cbranch_scc1 L_tfirst")
                a(f"s_sub_u32 s{sTau}, s73, s{sAp}"); a(f"s_lshr_b32 s{sTau}, s{sTau}, 2"); a(f"s_mov_b32 s{sHave}, 1")
                a.label("L_tfirst")
                a(f"s_mov_b32 s{sAp}, s73"); a(f"s_mov_b32 s{sA}, s73"); a(f"s_mov_b32 s{sAn}, s{sK}"); a(f"s_add_u32 s{sK}, s{sK}, 4")
                a.label("L_tnoget")
                if tctl == 2: a("s_branch L_trank")
                a(f"s_cmp_eq_u32 s{sHave}, 0"); a("s_cbranch_scc1 L_trank")
                a(f"s_sub_u32 s72, s{sGI}, s{sAn}"); a(f"s_mul_i32 s72, s72, s{sTau}"); a(f"s_add_u32 s72, s72, s{sA}")
                a(f"s_sub_u32 s72, s{sTn}, s72")
                a(f"s_cmp_gt_i32 s72, {delta}"); a(f"s_cselect_b32 s72, 1, 0")
                a(f"v_mov_b32 v{T[0]}, s72"); a(f"ds_write_b32 v{vZ}, v{T[0]} offset:{L_CTL + 4}")
                a("s_branch L_cchk")
                a.label("L_trank")
            a(f"buffer_load_dword v{T[1]}, v{T[4]}, {srd(WSR)}, s{sU} offen sc1")
            a(f"v_or_b32 v{T[2]}, s{sGI}, v{T[3]}")
            set_exec(1)
            a(f"buffer_store_dword v{T[2]}, v{T[5]}, {srd(WSR)}, s{sU} offen")
            set_exec(-1)
            a("s_waitcnt vmcnt(1)")
            a(f"v_xor_b32 v{T[1]}, v{T[1]}, v{T[3]}")
            a(f"s_mov_b32 s{sThr}, {thr}")
            if thrF is not None:
                a(f"s_lshr_b32 s{sT3}, s2, 3"); a(f"s_sub_u32 s{sT3}, s{sT3}, 16"); a(f"s_cmp_lt_u32 s{sT3}, 12"); a(f"s_cselect_b32 s{sThr}, {thrF}, s{sThr}")
            if thrR is not None:
                a(f"s_lshr_b32 s{sT3}, s2, 3"); a(f"s_cmp_ge_u32 s{sT3}, 28"); a(f"s_cselect_b32 s{sThr}, {thrR}, s{sThr}")
            if thr_odd is not None:
                a(f"s_cmp_eq_u32 s{sRole}, 1"); a(f"s_cselect_b32 s{sThr}, {thr_odd}, s{sThr}")
            if tctl == 2:
                a(f"s_add_i32 s{sThr}, s{sThr}, s{sTau}"); a(f"s_max_i32 s{sThr}, s{sThr}, 3"); a(f"s_min_i32 s{sThr}, s{sThr}, 32")
            if xctl:
                a(f"v_readlane_b32 s{sT3}, v{T[1]}, 32")
                a("s_nop 1")
                a(f"s_cmp_eq_u32 s{sT3}, 2"); a(f"s_cselect_b32 s{sThr}, {thr_lo}, s{sThr}")
                a(f"s_cmp_eq_u32 s{sT3}, 0"); a(f"s_cselect_b32 s{sThr}, {thr_hi}, s{sThr}")
            a(f"v_cmp_le_u32 vcc, s{sGI}, v{T[1]}"); a(f"s_mov_b32 s{sT2}, vcc_lo")
            a(f"v_cmp_gt_u32 vcc, 256, v{T[1]}"); a(f"s_and_b32 s{sT2}, s{sT2}, vcc_lo")
            a(f"s_bcnt1_i32_b32 s{sT2}, s{sT2}")
            a(f"s_cmp_ge_u32 s{sT2}, s{sThr}"); a(f"s_cselect_b32 s{sT2}, 1, 0")
            if fidx:
                a(f"s_add_u32 s{sT3}, s{sGI}, 2"); a(f"s_and_b32 s{sT3}, s{sT3}, 3"); a(f"s_lshl_b32 s{sT3}, s{sT3}, 2")
                a(f"v_mov_b32 v{T[0]}, s{sT2}"); a(f"v_mov_b32 v{T[2]}, s{sT3}"); a(f"ds_write_b32 v{T[2]}, v{T[0]} offset:{L_CTL + 48}")
            else:
                a(f"v_mov_b32 v{T[0]}, s{sT2}"); a(f"ds_write_b32 v{vZ}, v{T[0]} offset:{L_CTL + 4}")
            if xctl:
                a(f"s_cmp_eq_u32 s{sLead}, 0"); a("s_cbranch_scc1 L_cchk")
                a.label("L_clead")
                a(f"v_cmp_le_u32 vcc, s{sCN}, v{T[1]}"); a(f"s_mov_b32 s{sT2}, vcc_lo")
                a(f"v_cmp_gt_u32 vcc, 256, v{T[1]}"); a(f"s_and_b32 s{sT2}, s{sT2}, vcc_lo")
                a(f"s_bcnt1_i32_b32 s{sT2}, s{sT2}")
                a(f"s_cmp_ge_u32 s{sT2}, {cmed}"); a("s_cbranch_scc0 L_cchk")
                a(f"s_mov_b32 s{sT2}, {GLOB}")
                a(f"buffer_load_dword v{T[1]}, v{vBC}, {srd(WSR)}, s{sT2} offen sc1")
                a(f"v_or_b32 v{T[2]}, s{sCN}, v{T[3]}")
                set_exec(1)
                a(f"buffer_store_dword v{T[2]}, v{vP}, {srd(WSR)}, s{sT2} offen sc1")
                set_exec(-1)
                a("s_waitcnt vmcnt(1)")
                a(f"v_xor_b32 v{T[1]}, v{T[1]}, v{T[3]}")
                a(f"v_cmp_le_u32 vcc, s{sCN}, v{T[1]}"); a(f"s_and_b32 s{sT2}, vcc_lo, 0xff")
                a(f"v_cmp_gt_u32 vcc, 256, v{T[1]}"); a(f"s_and_b32 s{sT2}, s{sT2}, vcc_lo")
                a(f"s_bcnt1_i32_b32 s{sT2}, s{sT2}")
                a(f"s_mov_b32 s{sT3}, 1")
                a(f"s_cmp_ge_u32 s{sT2}, {cthr}"); a(f"s_cselect_b32 s{sT3}, 2, s{sT3}")
                if clead >= 0:
                    a(f"s_cmp_le_u32 s{sT2}, {clead}"); a(f"s_cselect_b32 s{sT3}, 0, s{sT3}")
                a(f"v_or_b32 v{T[2]}, s{sT3}, v{T[3]}")
                set_exec(1)
                a(f"buffer_store_dword v{T[2]}, v{vPN}, {srd(WSR)}, s{sU} offen")
                set_exec(-1)
                a(f"s_add_u32 s{sCN}, s{sCN}, 1")
            a.label("L_cchk")
            a(f"s_cmp_lt_u32 s{sGI}, {NTOT - 2}"); a("s_cbranch_scc1 L_cspin")
        if nph > 1:
            a(f"s_cmp_lt_u32 s{sPub}, {nph - 1}"); a("s_cbranch_scc1 L_cspin")
        a.label("L_cdone")
        a("s_waitcnt vmcnt(0) lgkmcnt(0)")
    dump_stamps(True)
    a("s_endpgm")

    a.label("L_stream")
    if sprio: a(f"s_setprio {sprio}")
    vq[:] = []
    a(f"v_mul_u32_u24 v{vSA}, 384, v{T[2]}")
    a(f"v_add_u32 v{vSA}, v{vSA}, v{T[4]}")
    a(f"s_and_b32 s{sSlot}, s2, {H-1}")
    a(f"s_lshr_b32 s{sJ}, s2, {H.bit_length()-1}")
    a(f"s_lshl_b32 s{sWI}, s{sJ}, 2")
    a(f"s_add_u32 s{sWI}, s{sWI}, s{sW}")
    a(f"s_mov_b32 s{sHead}, s{sSlot}")
    a(f"s_mov_b32 s{sPh}, 0")
    a(f"s_mul_i32 s{sT0}, s{sHead}, {HB}")
    a(f"s_mul_i32 s{sOff}, s{sWI}, 3072")
    a(f"s_mov_b32 s{STR+2}, {HB}"); a(f"s_mov_b32 s{STR+3}, 0x20000")
    a("s_waitcnt lgkmcnt(0)")
    def kslot(g):
        if g < 8: return RING + 12 * ((g + 5) % 8)
        if g < 13 and g < PK: return W + 12 * (g - 8)
        if g == 13 and PK > 13: return vX
        if g == 14 and PK > 14: return vACC
        return RING + 12 * (g % 8)
    def kreg(l): return kslot(l // 3) + 4 * (l % 3)
    def stream_load(reg, t):
        a(f"buffer_load_dwordx4 {vr(reg,4)}, v{vSA}, {srd(STR)}, s{sOff} offen offset:{128*t} {pol}")
        if t == 2: a(f"s_add_u32 s{sOff}, s{sOff}, {STRIDE}")
    def issue(l):
        stream_load(kreg(l), l % 3); vq.append(f"k{l}")
    a(f"s_add_u32 s{STR}, s{pK}, s{sT0}"); a(f"s_addc_u32 s{STR+1}, s{pK+1}, 0")
    for l in range(min(early, nb)): issue(l)
    a(f"s_load_dword s{sNon}, {sp(pWS)}, {EPOCH}")
    if dbg: a(f"v_mov_b32 v{vST}, 0")
    stamp(0)
    a(f"v_mov_b32 v{vOPA}, 0"); a(f"s_mov_b32 s{sU2}, {OP}")
    masks()
    a(f"s_mov_b32 s{sPh}, 0")
    for g in range(8):
        m = 0x0101010101010101 << g
        a(f"s_mov_b32 s{sMask+2*g}, 0x{m & 0xffffffff:08x}")
        a(f"s_mov_b32 s{sMask+2*g+1}, 0x{m >> 32:08x}")
    for r in range(4): a(f"s_mov_b32 s{sSel+r}, 0x{0x07060500 | r:08x}")
    a(f"s_mov_b32 s{sSelG}, 0x0c0c0400")
    a(f"s_mov_b32 s{sPkSel}, 0x07060302")
    for r in range(1, 4):
        m = 0xffff << (16 * r)
        a(f"s_mov_b32 s{sRow+2*(r-1)}, 0x{m & 0xffffffff:08x}"); a(f"s_mov_b32 s{sRow+2*(r-1)+1}, 0x{m >> 32:08x}")
    ws_srd()
    a(f"s_and_b32 s{sT0}, s2, 7"); a(f"s_lshr_b32 s{sT1}, s2, 3")
    a(f"s_lshl_b32 s{sT2}, s{sT1}, 3"); a(f"s_add_u32 s{sRI}, s{sT2}, s{sT0}"); a(f"s_mov_b32 s{sRole}, 0")
    a(f"s_lshr_b32 s{sT2}, s{sT1}, 2"); a(f"s_lshl_b32 s{sT2}, s{sT2}, 3"); a(f"s_add_u32 s{sT2}, s{sT2}, s{sT0}"); a(f"s_lshl_b32 s{sT2}, s{sT2}, 2")
    a(f"s_and_b32 s{sT3}, s{sT1}, 3"); a(f"s_add_u32 s{sOH}, s{sT2}, s{sT3}")
    a(f"s_cmp_lt_u32 s{sT1}, 16"); a("s_cbranch_scc1 L_roled")
    a(f"s_sub_u32 s{sT2}, s{sT1}, 16"); a(f"s_mul_i32 s{sT3}, s{sT0}, 12"); a(f"s_add_u32 s{sRI}, s{sT3}, s{sT2}"); a(f"s_mov_b32 s{sRole}, 1")
    a(f"s_cmp_lt_u32 s{sT1}, 28"); a("s_cbranch_scc1 L_roled")
    a(f"s_sub_u32 s{sT2}, s{sT1}, 28"); a(f"s_lshl_b32 s{sT2}, s{sT2}, 3"); a(f"s_add_u32 s{sRI}, s{sT2}, s{sT0}"); a(f"s_mov_b32 s{sRole}, 2")
    a.label("L_roled")
    a(f"v_mov_b32 v{vZ}, 0"); a(f"v_mov_b32 v{vFL}, 0"); a(f"s_mov_b32 s{sGI}, 0"); a(f"s_mov_b32 s{sPrv}, 0")
    for l in range(nb, early):
        wait_for(f"k{l-nb}"); issue(l)
    a("s_barrier")
    for l in range(early, 3 * PK):
        if pace and l >= nb: wait_for(f"k{l-nb}")
        issue(l)
    stamp(16)
    a("s_waitcnt lgkmcnt(0)")
    a(f"s_add_u32 s{sNon}, s{sNon}, 0x9e3779b9")
    a(f"v_mov_b32 v{vN}, s{sNon}")
    a("s_barrier")
    a(f"ds_read_b32 v{T[1]}, v{vZ} offset:{L_CTL + 8}"); a("s_waitcnt lgkmcnt(0)"); a(f"v_readfirstlane_b32 s{sLoc}, v{T[1]}")
    def progress():
        if not ctl: return
        n = newlab()
        a(f"s_add_u32 s{sGI}, s{sGI}, 1")
        a(f"s_cmp_lg_u32 s{sW}, 0"); a(f"s_cbranch_scc1 L_pg{n}")
        a(f"v_mov_b32 v{T[5]}, s{sGI}"); a(f"ds_write_b32 v{vZ}, v{T[5]} offset:{L_CTL}")
        a.label(f"L_pg{n}")
    def flag_read(ahead=2):
        if fidx:
            a(f"s_add_u32 s{sT0}, s{sGI}, {ahead}"); a(f"s_and_b32 s{sT0}, s{sT0}, 3"); a(f"s_lshl_b32 s{sT0}, s{sT0}, 2")
            a(f"v_mov_b32 v{T[5]}, s{sT0}"); a(f"ds_read_b32 v{vFL}, v{T[5]} offset:{L_CTL + 48}")
        elif ctl or wmix: a(f"ds_read_b32 v{vFL}, v{vZ} offset:{L_CTL + 4}")
    def load_q():
        a(f"v_and_b32 v{T[0]}, 7, v{vL}"); a(f"v_lshlrev_b32 v{T[0]}, 4, v{T[0]}")
        a(f"s_mul_i32 s{sT0}, s{sPh}, 384"); a(f"v_add_u32 v{T[0]}, s{sT0}, v{T[0]}")
        for t in range(3): a(f"ds_read_b128 {vr(vQ+4*t,4)}, v{T[0]} offset:{L_Q + 128*t}")
    load_q()

    a.label("L_kcode")
    vSC = T[6]
    def score_addr():
        a(f"v_lshlrev_b32 v{vSC}, 2, v{vL}")
        a(f"s_lshl_b32 s{sT0}, s{sW}, 12"); a(f"v_add_u32 v{vSC}, s{sT0}, v{vSC}")
    def kinit():
        score_addr()
        a(f"v_mov_b32 v{vMX}, 0xff800000"); a(f"v_mov_b32 v{vLS}, 0")
        a("s_waitcnt lgkmcnt(0)")
    def kpart(reg, g, t):
        acc = T[t]
        for i in range(4):
            src2 = "0" if i == 0 else f"v{acc}"
            a(f"v_dot2_f32_bf16 v{acc}, v{reg+i}, v{vQ+4*t+i}, {src2}")
        if t == 2:
            a0 = T[0]
            a(f"v_add_f32 v{a0}, v{a0}, v{T[1]}")
            a(f"v_add_f32 v{a0}, v{a0}, v{T[2]}")
            for m in DPP4[:3]: dpp("v_add_f32", a0, m)
            a(f"v_cndmask_b32 v{vC}, v{vC}, v{a0}, {sp(sMask+2*g)}")
    SCALE = f32hex(192 ** -0.5)
    def kfinish():
        t, u, w_ = T[0], T[1], T[2]
        rne(t, vC)
        a(f"v_mul_f32 v{t}, {SCALE}, v{t}")
        rne(t, t)
        a(f"ds_write_b32 v{vSC}, v{t} offset:{L_SC}")
        a(f"v_add_u32 v{vSC}, 256, v{vSC}")
        a(f"v_max_f32 v{u}, v{vMX}, v{t}")
        a(f"v_sub_f32 v{w_}, v{vMX}, v{u}"); a(f"v_sub_f32 v{t}, v{t}, v{u}")
        a(f"v_mul_f32 v{w_}, {f32hex(LOG2E)}, v{w_}"); a(f"v_mul_f32 v{t}, {f32hex(LOG2E)}, v{t}")
        a(f"v_exp_f32 v{w_}, v{w_}"); a(f"v_exp_f32 v{t}, v{t}")
        a(f"v_mov_b32 v{vMX}, v{u}")
        a(f"v_fma_f32 v{vLS}, v{vLS}, v{w_}, v{t}")
    kinit()
    stamp(3)
    nxt = 3 * PK
    early_left = nb
    for l in range(48):
        while nxt <= l:
            issue(nxt); nxt += 1
        wait_for(f"k{l}")
        while nxt <= l + nb:
            issue(nxt); nxt += 1
        kpart(kreg(l), (l // 3) % 8, l % 3)
        if early_left > 0 and nxt < 48 + nb and kreg(nxt) == kreg(l):
            issue(nxt); nxt += 1; early_left -= 1
        if l % 24 == 23:
            kfinish(); progress()
    assert nxt == 48 + nb, nxt
    flag_read(1)
    a(f"s_mov_b32 s{sIt}, 2")
    def switch_to_V():
        n = newlab()
        a(f"s_cmp_eq_u32 s{sIt}, {NIT-1}")
        a(f"s_cbranch_scc0 L_nosw{n}")
        a(f"s_mul_i32 s{sT0}, s{sHead}, {HB}")
        a(f"s_add_u32 s{STR}, s{pV}, s{sT0}"); a(f"s_addc_u32 s{STR+1}, s{pV+1}, 0")
        a(f"s_mul_i32 s{sOff}, s{sWI}, 3072")
        a.label(f"L_nosw{n}")
    def switch_to_nextK():
        n = newlab()
        a(f"s_cmp_eq_u32 s{sIt}, {NIT-1}")
        a(f"s_cbranch_scc0 L_nosw{n}")
        if nph > 1:
            a(f"s_add_u32 s{sT0}, s{sHead}, {H}")
            a(f"s_mul_i32 s{sT0}, s{sT0}, {HB}")
            a(f"s_add_u32 s{STR}, s{pK}, s{sT0}"); a(f"s_addc_u32 s{STR+1}, s{pK+1}, 0")
            a(f"s_mul_i32 s{sOff}, s{sWI}, 3072")
            a(f"s_cmp_eq_u32 s{sPh}, {nph-1}")
            a(f"s_cselect_b32 s{STR+2}, 0, {HB}")
            a(f"s_cselect_b32 s{STR}, s{pK}, s{STR}"); a(f"s_cselect_b32 s{STR+1}, s{pK+1}, s{STR+1}")
        else:
            a(f"s_mov_b32 s{STR+2}, 0")
        a.label(f"L_nosw{n}")
    def ring_load(l):
        stream_load(RING + 12 * ((l // 3) % 8) + 4 * (l % 3), l % 3)
    def controlled_loop(tag, part, switch):
        d = nx_ - nb
        if ctl or wmix:
            a("s_waitcnt lgkmcnt(0)"); a(f"v_readfirstlane_b32 s{sBst}, v{vFL}")
            if wmix:
                a(f"s_lshr_b32 s{sT0}, {wmix}, s{sW}"); a(f"s_and_b32 s{sT0}, s{sT0}, 1"); a(f"s_or_b32 s{sBst}, s{sBst}, s{sT0}")
            if not lastb:
                a(f"s_cmp_eq_u32 s{sIt}, {NIT-1}"); a(f"s_cselect_b32 s{sBst}, 0, s{sBst}")
            a(f"s_cmp_eq_u32 s{sBst}, 1"); a(f"s_cbranch_scc1 L_{tag}boost")
            a(f"s_cmp_eq_u32 s{sPrv}, 0"); a(f"s_cbranch_scc1 L_{tag}n0")
            for l in range(d):
                a(f"s_waitcnt vmcnt({nx_ - 1 - l})"); part(l)
            a(f"s_branch L_{tag}n1")
            a.label(f"L_{tag}n0")
        for l in range(d):
            a(f"s_waitcnt vmcnt({nb - 1})"); ring_load(l + nb); part(l)
        if ctl or wmix: a.label(f"L_{tag}n1")
        for l in range(d, 24):
            a(f"s_waitcnt vmcnt({nb - 1})")
            if l + nb == 24: switch()
            ring_load(l + nb)
            if l == 12: flag_read()
            part(l)
        if ctl or wmix:
            a(f"s_mov_b32 s{sPrv}, 0"); a(f"s_branch L_{tag}next")
            a.label(f"L_{tag}boost")
            a(f"s_cmp_eq_u32 s{sPrv}, 0"); a(f"s_cbranch_scc0 L_{tag}b0")
            for l in range(nb, nx_): ring_load(l)
            a.label(f"L_{tag}b0")
            for l in range(24):
                a(f"s_waitcnt vmcnt({nx_ - 1})")
                if lastb and l + nx_ == 24: switch()
                ring_load(l + nx_)
                if l == 12: flag_read()
                part(l)
            a(f"s_mov_b32 s{sPrv}, 1")
            a.label(f"L_{tag}next")
    def deepen():
        n = newlab()
        if lastb:
            a(f"s_cmp_eq_u32 s{sPrv}, 1"); a(f"s_cbranch_scc1 L_dp{n}")
        for l in range(nb, nx_): ring_load(l)
        a(f"s_mov_b32 s{sPrv}, 1")
        if lastb: a.label(f"L_dp{n}")
    assert tb or not lastb
    a.label("L_kloop")
    controlled_loop("k", lambda l: kpart(RING + 12 * (l // 3) + 4 * (l % 3), l // 3, l % 3), switch_to_V)
    kfinish(); progress()
    a(f"s_add_u32 s{sIt}, s{sIt}, 1")
    a(f"s_cmp_lt_u32 s{sIt}, {NIT}")
    a("s_cbranch_scc1 L_kloop")
    stamp(4); pstamp(16)

    if tb:
        deepen()
    a(f"v_mov_b32 v{T[2]}, v{vMX}")
    allreduce("v_max_f32", vMX, T[0])
    a(f"v_sub_f32 v{T[2]}, v{T[2]}, v{vMX}"); a(f"v_mul_f32 v{T[2]}, {f32hex(LOG2E)}, v{T[2]}"); a(f"v_exp_f32 v{T[2]}, v{T[2]}")
    a(f"v_mul_f32 v{vLS}, v{vLS}, v{T[2]}")
    allreduce("v_add_f32", vLS, T[0])
    MLQ = vA
    a(f"v_mov_b32 v{MLQ}, v{vMX}"); a(f"v_mov_b32 v{MLQ+1}, v{vLS}"); a(f"v_mov_b32 v{MLQ+2}, 0"); a(f"v_mov_b32 v{MLQ+3}, 0")
    tag4(MLQ)
    a(f"s_lshl_b32 s{sT0}, s{sHead}, 11"); a(f"s_lshl_b32 s{sT1}, s{sWI}, 4"); a(f"s_add_u32 s{sT0}, s{sT0}, s{sT1}"); a(f"s_add_u32 s{sT0}, s{sT0}, {ML}")
    a(f"v_mov_b32 v{T[0]}, 0")
    set_exec(1)
    pub_store(vr(MLQ,4), T[0], sT0)
    set_exec(-1)
    stamp(5); pstamp(17)
    for i in range(12): a(f"v_mov_b32 v{vACC+i}, 0")
    score_addr()
    a("s_waitcnt lgkmcnt(0)")
    a(f"ds_read_b32 v{vPN}, v{vSC} offset:{L_SC}")
    def vpart(l):
        g, t = l // 3, l % 3
        if t == 0:
            a(f"v_mov_b32_dpp v{vBC}, v{vP} row_newbcast:{g} row_mask:0xf bank_mask:0x3")
            a(f"v_mov_b32_dpp v{vBC}, v{vP} row_newbcast:{8+g} row_mask:0xf bank_mask:0xc")
            a_operand(vBC)
        a(f"v_mfma_f32_16x16x32_bf16 {vr(vACC+4*t,4)}, {vr(vA,4)}, {ring(g,t)}, {vr(vACC+4*t,4)}")
    def next_p():
        a("s_waitcnt lgkmcnt(0)")
        a(f"v_sub_f32 v{vP}, v{vPN}, v{vMX}")
        a(f"v_add_u32 v{vSC}, 256, v{vSC}")
        a(f"ds_read_b32 v{vPN}, v{vSC} offset:{L_SC}")
        a(f"v_mul_f32 v{vP}, {f32hex(LOG2E)}, v{vP}")
        a(f"v_exp_f32 v{vP}, v{vP}")
        a(f"v_cvt_pk_bf16_f32 v{vP}, v{vP}, v{vP}")
    a(f"s_mov_b32 s{sIt}, 0")
    if nph > 1:
        a(f"s_cmp_lg_u32 s{sPh}, {nph-1 if wphase is None else wphase}"); a("s_cbranch_scc1 L_vloop")
    a(f"s_cmp_eq_u32 s{sRole}, 1"); a("s_cbranch_scc1 L_wF")
    a(f"s_cmp_eq_u32 s{sRole}, 2"); a("s_cbranch_scc1 L_wR")
    a(f"s_mul_i32 s{sT0}, s{sOH}, 48"); a(f"s_mul_i32 s{sT1}, s{sW}, 12"); a(f"s_add_u32 s{sT0}, s{sT0}, s{sT1}")
    a(f"v_lshrrev_b32 v{T[0]}, 4, v{vL}"); a(f"v_add_u32 v{T[0]}, s{sT0}, v{T[0]}")
    a(f"v_mul_u32_u24 v{T[0]}, 1280, v{T[0]}")
    a(f"v_and_b32 v{T[1]}, 15, v{vL}"); a(f"v_lshlrev_b32 v{T[1]}, 4, v{T[1]}"); a(f"v_add_u32 v{T[0]}, v{T[0]}, v{T[1]}")
    a(f"v_mov_b32 v{T[1]}, s{pWO+1}")
    a(f"v_add_co_u32 v{WA}, vcc, s{pWO}, v{T[0]}"); a(f"v_addc_co_u32 v{WA+1}, vcc, 0, v{T[1]}, vcc")
    a(f"v_add_co_u32 v{WB}, vcc, 10240, v{WA}"); a(f"v_addc_co_u32 v{WB+1}, vcc, 0, v{WA+1}, vcc")
    a(f"s_mov_b32 s{sInc}, 256"); a(f"s_mov_b32 s{sInc4}, 4096")
    a("s_branch L_wdone")
    def f_addr():
        a(f"v_lshrrev_b32 v{T[0]}, 2, v{vL}"); a(f"s_mul_i32 s{sT0}, s{sW}, 160"); a(f"v_add_u32 v{T[0]}, s{sT0}, v{T[0]}")
        a(f"v_mul_u32_u24 v{T[0]}, 3072, v{T[0]}")
        a(f"v_and_b32 v{T[1]}, 1, v{vL}"); a(f"v_lshlrev_b32 v{T[1]}, 4, v{T[1]}"); a(f"v_add_u32 v{T[0]}, v{T[0]}, v{T[1]}")
        a(f"s_lshl_b32 s{sT0}, s{sRI}, 5"); a(f"v_add_u32 v{T[0]}, s{sT0}, v{T[0]}")
        a(f"v_mov_b32 v{T[2]}, s{pWG}"); a(f"v_mov_b32 v{T[3]}, s{pWG+1}")
        a(f"v_mov_b32 v{T[4]}, s{pWU}"); a(f"v_mov_b32 v{T[5]}, s{pWU+1}")
        a(f"v_and_b32 v{T[1]}, 2, v{vL}"); a(f"v_cmp_ne_u32 vcc, 0, v{T[1]}")
        a(f"v_cndmask_b32 v{T[2]}, v{T[2]}, v{T[4]}, vcc"); a(f"v_cndmask_b32 v{T[3]}, v{T[3]}, v{T[5]}, vcc")
        a(f"v_add_co_u32 v{WA}, vcc, v{T[2]}, v{T[0]}"); a(f"v_addc_co_u32 v{WA+1}, vcc, 0, v{T[3]}, vcc")
        a(f"s_lshl_b32 s{sT0}, s{sRI}, 4"); a(f"s_lshl_b32 s{sT1}, s{sW}, 2"); a(f"s_add_u32 s{sT0}, s{sT0}, s{sT1}")
        a(f"v_lshrrev_b32 v{T[0]}, 4, v{vL}"); a(f"v_add_u32 v{T[0]}, s{sT0}, v{T[0]}")
        a(f"v_mul_u32_u24 v{T[0]}, 1280, v{T[0]}")
        a(f"v_and_b32 v{T[1]}, 15, v{vL}"); a(f"v_lshlrev_b32 v{T[1]}, 4, v{T[1]}"); a(f"v_add_u32 v{T[0]}, v{T[0]}, v{T[1]}")
        a(f"v_mov_b32 v{T[1]}, s{pWD+1}")
        a(f"v_add_co_u32 v{WB}, vcc, s{pWD}, v{T[0]}"); a(f"v_addc_co_u32 v{WB+1}, vcc, 0, v{T[1]}, vcc")
        a(f"s_mov_b32 s{sInc}, {16*3072}"); a(f"s_mov_b32 s{sInc4}, {16*3072}")

    a.label("L_wF")
    if not fdefer: f_addr()
    else:
        a(f"v_mov_b32 v{WA}, s{pWO}"); a(f"v_mov_b32 v{WA+1}, s{pWO+1}"); a(f"v_mov_b32 v{WB}, s{pWO}"); a(f"v_mov_b32 v{WB+1}, s{pWO+1}")
        a(f"s_mov_b32 s{sInc}, 0"); a(f"s_mov_b32 s{sInc4}, 0")
    a("s_branch L_wdone")
    a.label("L_wR")
    a(f"v_mov_b32 v{WA}, s{pWO}"); a(f"v_mov_b32 v{WA+1}, s{pWO+1}"); a(f"v_mov_b32 v{WB}, s{pWO}"); a(f"v_mov_b32 v{WB+1}, s{pWO+1}")
    a(f"s_mov_b32 s{sInc}, 0"); a(f"s_mov_b32 s{sInc4}, 0")
    a.label("L_wdone")
    def wload(k):
        if k < 10:
            a(f"global_load_dwordx4 {vr(W + 4*k, 4)}, {vr(WA,2)}, off {wpol}")
            if k < 9:
                a(f"v_add_co_u32 v{WA}, vcc, s{sInc4 if k == 4 else sInc}, v{WA}"); a(f"v_addc_co_u32 v{WA+1}, vcc, 0, v{WA+1}, vcc")
        else:
            a(f"global_load_dwordx4 {vr(W + 4*k, 4)}, {vr(WB,2)}, off offset:{256*(k-10)} {wpol}")
        vq.append(f"w{k}")
    vq[:] = [f"v{l}" for l in range(nx_ if tb else nb)] + ["ml"]
    for it in range(2):
        next_p()
        for l in range(24):
            n = 24 * it + l
            wait_for(f"v{n}")
            if not (tb and n + nb < nx_):
                ring_load(n + nb); vq.append(f"v{n+nb}")
            if n % 3 == 0 and n // 3 < 15: wload(n // 3)
            vpart(l)
        progress()
    flag_read(1)
    a(f"s_mov_b32 s{sIt}, 2"); a(f"s_mov_b32 s{sPrv}, 0")
    a.label("L_vloop")
    MLR = vX
    def ml_issue():
        a(f"s_lshl_b32 s{sT0}, s{sHead}, 11"); a(f"s_add_u32 s{sT0}, s{sT0}, {ML}")
        a(f"v_min_u32 v{T[1]}, {NWH-1}, v{vL}"); a(f"v_lshlrev_b32 v{T[1]}, 4, v{T[1]}")
        a(f"buffer_load_dwordx4 {vr(MLR,4)}, v{T[1]}, {srd(WSR)}, s{sT0} offen sc1")
        if NWH > 64:
            a(f"buffer_load_dwordx4 {vr(MLR+4,4)}, v{T[1]}, {srd(WSR)}, s{sT0} offen offset:1024 sc1")
    def ml_check():
        check4(MLR, T[0], T[2], True)
        if NWH > 64: check4(MLR + 4, T[0], T[2], False)
    a(f"s_cmp_eq_u32 s{sIt}, {NIT-2}"); a("s_cbranch_scc0 L_vh1")
    ml_issue()
    if codepf:
        a(f"s_getpc_b64 {sp(58)}")
        a.label("L_pc2")
        a(f"s_lshr_b32 s{sT3}, s2, 3"); a(f"s_lshl_b32 s{sT3}, s{sT3}, 9")
        a(f"v_and_b32 v{T[1]}, 7, v{vL}"); a(f"v_lshlrev_b32 v{T[1]}, 6, v{T[1]}"); a(f"v_add_u32 v{T[1]}, s{sT3}, v{T[1]}")
        a(f"v_add_u32 v{T[1]}, L_tailcode-L_pc2, v{T[1]}")
        a(f"v_min_u32 v{T[1]}, L_codeend-L_pc2-4, v{T[1]}")
        a(f"global_load_dword v{T[2]}, v{T[1]}, {sp(58)}")
    a.label("L_vh1")
    a(f"s_cmp_eq_u32 s{sIt}, {NIT-1}"); a("s_cbranch_scc0 L_vh2")
    a.label("L_tailcode")
    ml_check()
    a(f"s_cmp_eq_u64 {sp(sBad)}, 0"); a("s_cbranch_scc1 L_mlok")
    poll(ml_issue, ml_check)
    a.label("L_mlok")
    mm, ll = MLR, MLR + 1
    if NWH > 64: a(f"v_max_f32 v{T[0]}, v{mm}, v{MLR+4}")
    else: a(f"v_mov_b32 v{T[0]}, v{mm}")
    a(f"v_and_b32 v{T[0]}, 0xffffff00, v{T[0]}")
    allreduce("v_max_f32", T[0], T[1])
    a(f"v_and_b32 v{mm}, 0xffffff00, v{mm}"); a(f"v_and_b32 v{ll}, 0xffffff00, v{ll}")
    a(f"v_sub_f32 v{T[2]}, v{mm}, v{T[0]}"); a(f"v_mul_f32 v{T[2]}, {f32hex(LOG2E)}, v{T[2]}"); a(f"v_exp_f32 v{T[2]}, v{T[2]}")
    a(f"v_mul_f32 v{T[2]}, v{T[2]}, v{ll}")
    if NWH > 64:
        a(f"v_and_b32 v{MLR+4}, 0xffffff00, v{MLR+4}"); a(f"v_and_b32 v{MLR+5}, 0xffffff00, v{MLR+5}")
        a(f"v_sub_f32 v{T[3]}, v{MLR+4}, v{T[0]}"); a(f"v_mul_f32 v{T[3]}, {f32hex(LOG2E)}, v{T[3]}"); a(f"v_exp_f32 v{T[3]}, v{T[3]}")
        a(f"v_fmac_f32 v{T[2]}, v{T[3]}, v{MLR+5}")
    elif NWH < 64:
        a(f"v_cmp_gt_u32 vcc, {NWH}, v{vL}"); a(f"v_cndmask_b32 v{T[2]}, 0, v{T[2]}, vcc")
    allreduce("v_add_f32", T[2], T[1])
    a(f"v_sub_f32 v{T[3]}, v{vMX}, v{T[0]}"); a(f"v_mul_f32 v{T[3]}, {f32hex(LOG2E)}, v{T[3]}"); a(f"v_exp_f32 v{T[3]}, v{T[3]}")
    a(f"v_rcp_f32 v{T[2]}, v{T[2]}")
    a(f"v_mul_f32 v{vAL}, v{T[3]}, v{T[2]}")
    red_addr()
    a(f"v_mul_u32_u24 v{T[1]}, 43691, v{vL}"); a(f"v_lshrrev_b32 v{T[1]}, 19, v{T[1]}")
    a(f"v_mul_u32_u24 v{T[2]}, 12, v{T[1]}"); a(f"v_sub_u32 v{T[2]}, v{vL}, v{T[2]}")
    a(f"v_mul_u32_u24 v{T[1]}, {WPH*192}, v{T[1]}"); a(f"v_lshlrev_b32 v{T[2]}, 4, v{T[2]}"); a(f"v_add_u32 v{vOPA}, v{T[1]}, v{T[2]}")
    a(f"s_mul_i32 s{sT0}, s{sHead}, {4*WPH*192}"); a(f"s_mul_i32 s{sT1}, s{sJ}, 192"); a(f"s_add_u32 s{sT0}, s{sT0}, s{sT1}"); a(f"s_add_u32 s{sU2}, s{sT0}, {OP}")
    P = vQ
    if nph > 1:
        a(f"s_cmp_lg_u32 s{sPh}, {nph-1}"); a("s_cbranch_scc1 L_vh2")
    a(f"v_lshrrev_b32 v{T[0]}, 5, v{vL}"); a(f"v_lshlrev_b32 v{T[0]}, 8, v{T[0]}")
    a(f"v_and_b32 v{T[1]}, 7, v{vL}"); a(f"v_lshlrev_b32 v{T[1]}, 5, v{T[1]}"); a(f"v_add_u32 v{T[0]}, v{T[0]}, v{T[1]}")
    a(f"v_and_b32 v{T[1]}, 16, v{vL}"); a(f"v_add_u32 v{T[0]}, v{T[0]}, v{T[1]}")
    a(f"s_mul_i32 s{sT0}, s{sW}, 2560"); a(f"v_add_u32 v{P}, s{sT0}, v{T[0]}")
    a(f"s_mov_b32 s{sT0}, {128*128}"); a(f"s_cmp_eq_u32 s{sRole}, 1"); a(f"s_cselect_b32 s{sT0}, {96*128}, s{sT0}")
    a(f"v_lshrrev_b32 v{T[1]}, 3, v0"); a(f"v_mul_u32_u24 v{T[1]}, s{sT0}, v{T[1]}")
    a(f"v_and_b32 v{T[2]}, 7, v0"); a(f"v_lshlrev_b32 v{T[2]}, 4, v{T[2]}"); a(f"v_add_u32 v{P+1}, v{T[1]}, v{T[2]}")
    for i in range(20): a(f"v_mov_b32 v{vX+i}, 0")
    a.label("L_vh2")
    next_p()
    controlled_loop("v", vpart, switch_to_nextK)
    progress()
    a(f"s_add_u32 s{sIt}, s{sIt}, 1")
    a(f"s_cmp_lt_u32 s{sIt}, {NIT}")
    a("s_cbranch_scc1 L_vloop")

    stamp(6); pstamp(18)
    for i in range(12): a(f"v_mul_f32 v{vACC+i}, v{vACC+i}, v{vAL}")
    if nph > 1:
        a(f"s_cmp_eq_u32 s{sPh}, {nph-1}"); a("s_cbranch_scc1 L_lastphase")
        if tb: deepen()
        def lds_wait_ge(off, sreg):
            n = newlab()
            a(f"s_mov_b32 s{sSpin}, {spin}")
            a.label(f"L_lw{n}")
            a(f"ds_read_b32 v{T[1]}, v{vZ} offset:{L_CTL + off}"); a("s_waitcnt lgkmcnt(0)"); a(f"v_readfirstlane_b32 s{sT0}, v{T[1]}")
            a(f"s_cmp_ge_u32 s{sT0}, s{sreg}"); a(f"s_cbranch_scc1 L_lk{n}")
            a(f"s_sub_u32 s{sSpin}, s{sSpin}, 1"); a(f"s_cmp_eq_u32 s{sSpin}, 0"); a("s_cbranch_scc1 L_abort")
            a(f"s_branch L_lw{n}")
            a.label(f"L_lk{n}")
        lds_wait_ge(12, sPh)
        set_exec(USEFUL)
        for t in range(3): a(f"ds_write_b128 v{vRA}, {vr(vACC+4*t,4)} offset:{L_REDH + 256*t}")
        set_exec(-1)
        a(f"s_add_u32 s{sPh}, s{sPh}, 1"); a(f"s_add_u32 s{sHead}, s{sHead}, {H}")
        a(f"s_lshl_b32 s{sT1}, s{sW}, 2"); a(f"v_mov_b32 v{T[2]}, s{sT1}"); a(f"v_mov_b32 v{T[3]}, s{sPh}")
        a("s_waitcnt lgkmcnt(0)")
        a(f"ds_write_b32 v{T[2]}, v{T[3]} offset:{L_CTL + 16}")
        a(f"s_add_u32 s{sT2}, s{sPh}, 1")
        lds_wait_ge(32, sT2)
        load_q(); kinit()
        if dbg == 4:
            a(f"s_sub_u32 s{sPh}, s{sPh}, 1"); pstamp(19); a(f"s_add_u32 s{sPh}, s{sPh}, 1")
        a(f"s_mov_b32 s{sIt}, 0")
        a("s_branch L_kloop")
        a.label("L_lastphase")
    red_write()
    a("s_waitcnt lgkmcnt(0)"); a("s_barrier")
    a(f"s_cmp_lg_u32 s{sW}, 0"); a("s_cbranch_scc1 L_pubdone")
    SB = RING + 36
    a(f"v_lshlrev_b32 v{T[0]}, 4, v{vL}")
    set_exec("0x0000ffffffffffff")
    for s in range(8): a(f"ds_read_b128 {vr(SB+4*s,4)}, v{T[0]} offset:{L_RED + 768*s}")
    a("s_waitcnt lgkmcnt(4)")
    sum_quads(SB, [SB + 4, SB + 8, SB + 12])
    a("s_waitcnt lgkmcnt(0)")
    sum_quads(SB + 16, [SB + 20, SB + 24, SB + 28])
    sum_quads(SB, [SB + 16])
    tag4(SB)
    if oploc: pub_store(vr(SB,4), vOPA, sU2)
    else: a(f"buffer_store_dwordx4 {vr(SB,4)}, v{vOPA}, {srd(WSR)}, s{sU2} offen sc1")
    if stage1:
        a(f"s_and_b32 s{sT0}, s{sNon}, 0xffffff00"); a(f"s_or_b32 s{sT0}, s{sT0}, 255"); a(f"v_mov_b32 v{T[1]}, s{sT0}")
        a(f"s_and_b32 s{sT0}, s2, 7"); a(f"s_lshl_b32 s{sT0}, s{sT0}, 7"); a(f"s_lshr_b32 s{sT1}, s2, 3"); a(f"s_lshl_b32 s{sT1}, s{sT1}, 2")
        a(f"s_add_u32 s{sT0}, s{sT0}, s{sT1}"); a(f"s_add_u32 s{sT0}, s{sT0}, {PROG}")
        set_exec(1)
        a(f"buffer_store_dword v{T[1]}, v{vZ}, {srd(WSR)}, s{sT0} offen")
    set_exec(-1)
    a.label("L_pubdone")
    def class_wait():
        if not stage1: return
        n = newlab()
        a(f"s_and_b32 s{sT0}, s{sNon}, 0xffffff00"); a(f"s_or_b32 s{sT0}, s{sT0}, 255"); a(f"v_mov_b32 v{T[1]}, s{sT0}")
        a(f"s_and_b32 s{sT0}, s2, 7"); a(f"s_lshl_b32 s{sT0}, s{sT0}, 7"); a(f"s_add_u32 s{sT0}, s{sT0}, {PROG}")
        a(f"v_and_b32 v{T[0]}, 31, v{vL}"); a(f"v_lshlrev_b32 v{T[0]}, 2, v{T[0]}")
        a(f"s_mov_b32 s{sSpin}, {stage1}")
        a.label(f"L_cw{n}")
        a(f"buffer_load_dword v{T[2]}, v{T[0]}, {srd(WSR)}, s{sT0} offen sc1")
        a(f"s_sub_u32 s{sSpin}, s{sSpin}, 1"); a(f"s_cmp_eq_u32 s{sSpin}, 0"); a(f"s_cbranch_scc1 L_cwd{n}")
        a("s_waitcnt vmcnt(0)")
        a(f"v_cmp_ne_u32 vcc, v{T[2]}, v{T[1]}"); a("s_cbranch_vccnz L_cw%d" % n)
        a.label(f"L_cwd{n}")
        a("s_waitcnt vmcnt(0)")
    a.label("L_tail")
    stamp(7)
    RB = RING + 60
    a(f"s_cmp_eq_u32 s{sRole}, 1"); a("s_cbranch_scc1 L_roleF")
    a(f"s_cmp_eq_u32 s{sRole}, 2"); a("s_cbranch_scc1 L_roleR")

    def rowproj(ngroups, wbase, srcs, dstbase):
        for gi in range(ngroups):
            a_operand(srcs[gi])
            for cb in range(5):
                a(f"v_mfma_f32_16x16x32_bf16 {vr(vX+4*cb,4)}, {vr(vA,4)}, {vr(wbase + 4*(5*gi+cb),4)}, {vr(vX+4*cb,4)}")
        set_exec(USEFUL)
        for cb in range(5): a(f"ds_write_b128 v{P}, {vr(vX+4*cb,4)} offset:{L_RED2 + 512*cb}")
        set_exec(-1)
        a(f"v_lshlrev_b32 v{T[0]}, 4, v0")
        a(f"s_lshl_b32 s{sT0}, s{sRI}, 7"); a(f"s_add_u32 s{sT0}, s{sT0}, {dstbase}")
        a("s_waitcnt lgkmcnt(0)"); a("s_barrier")
        n = newlab()
        a(f"v_cmp_gt_u32 vcc, 160, v0"); a(f"s_and_saveexec_b64 {sp(sE)}, vcc"); a(f"s_cbranch_execz L_rpd{n}")
        for s in range(4): a(f"ds_read_b128 {vr(vX+4*s,4)}, v{T[0]} offset:{L_RED2 + 2560*s}")
        a("s_waitcnt lgkmcnt(0)")
        sum_quads(vX, [vX + 4]); sum_quads(vX + 8, [vX + 12]); sum_quads(vX, [vX + 8])
        tag4(vX)
        a(f"buffer_store_dwordx4 {vr(vX,4)}, v{P+1}, {srd(WSR)}, s{sT0} offen sc1")
        a.label(f"L_rpd{n}")
        a(f"s_mov_b64 exec, {sp(sE)}")

    NL = 2 if WPH == 32 else 1
    a(f"s_mul_i32 s{sT0}, s{sOH}, {WPH*192}"); a(f"s_add_u32 s{sU}, s{sT0}, {OP}")
    a(f"s_mul_i32 s{sT1}, s{sW}, 48"); a(f"s_add_u32 s{sU}, s{sU}, s{sT1}")
    a(f"v_lshrrev_b32 v{T[3]}, 2, v{vL}"); a(f"v_and_b32 v{T[3]}, {min(WPH,16)-1}, v{T[3]}"); a(f"v_mul_u32_u24 v{T[3]}, 192, v{T[3]}")
    a(f"v_and_b32 v{T[4]}, 3, v{vL}"); a(f"v_min_u32 v{T[4]}, 2, v{T[4]}"); a(f"v_lshlrev_b32 v{T[4]}, 4, v{T[4]}"); a(f"v_add_u32 v{T[3]}, v{T[3]}, v{T[4]}")
    OB = [RB + 12, RB + 20]
    def o_iss(z):
        for k in range(NL):
            a(f"buffer_load_dwordx4 {vr(OB[z]+4*k,4)}, v{T[3]}, {srd(WSR)}, s{sU} offen offset:{3072*k} sc1")
    def o_chk(z):
        for k in range(NL): check4(OB[z] + 4*k, T[0], T[1], k == 0)
    def untag(b, n):
        assert not p2
        for i in range(n): a(f"v_and_b32 v{b+i}, 0xffffff00, v{b+i}")
    def o_st1(z):
        untag(OB[z], 4 * NL)
        if NL == 2:
            a(f"v_pk_add_f32 {vr(RB,2)}, {vr(OB[z],2)}, {vr(OB[z]+4,2)}"); a(f"v_pk_add_f32 {vr(RB+2,2)}, {vr(OB[z]+2,2)}, {vr(OB[z]+6,2)}")
            for i in range(4): dpp("v_add_f32", RB + i, "row_ror:4")
        else:
            for i in range(4): a(f"v_add_f32_dpp v{RB+i}, v{OB[z]+i}, v{OB[z]+i} row_ror:4 row_mask:0xf bank_mask:0xf")
    poll2(o_iss, o_chk, NL, o_st1)
    stamp(8)
    for i in range(4): dpp("v_add_f32", RB + i, "row_ror:8")
    o4 = [("v_add_f32", RB + i) for i in range(4)]
    swap_reduce(o4, T[0:4], "v_permlane16_swap_b32")
    if WPH >= 16: swap_reduce(o4, T[0:4], "v_permlane32_swap_b32")
    for g in range(1, 4): a(f"v_cndmask_b32 v{RB}, v{RB}, v{RB+g}, {sp(sRow+2*(g-1))}")
    a(f"v_cvt_pk_bf16_f32 v{RB}, v{RB}, v{RB}")
    for gi in range(3): a(f"v_mov_b32_dpp v{RB+8+gi}, v{RB} quad_perm:[{gi},{gi},{gi},{gi}] row_mask:0xf bank_mask:0xf")
    rowproj(3, W, [RB+8, RB+9, RB+10], ZZ)
    dump_stamps()
    a("s_branch L_end")

    a.label("L_roleF")
    HQ = RB
    PK = RB + 16
    if fdefer:
        f_addr()
        for k in range(15): wload(k)
    class_wait()
    a(f"v_min_u32 v{T[5]}, 39, v{vL}"); a(f"s_mul_i32 s{sT0}, s{sW}, 40"); a(f"v_add_u32 v{T[5]}, s{sT0}, v{T[5]}"); a(f"v_lshlrev_b32 v{T[5]}, 4, v{T[5]}")
    a(f"s_and_b32 s{sU}, s2, 7"); a(f"s_lshl_b32 s{sU}, s{sU}, 12"); a(f"s_add_u32 s{sU}, s{sU}, {HH}")
    HB_ = [HQ, HQ + 4]
    def f_iss(z):
        a(f"buffer_load_dwordx4 {vr(HB_[z],4)}, v{T[5]}, {srd(WSR)}, s{sU} offen sc1")
    def f_chk(z):
        check4(HB_[z], T[0], T[1], True)
    def f_st1(z):
        a(f"v_perm_b32 v{PK}, v{HB_[z]+1}, v{HB_[z]}, s{sPkSel}"); a(f"v_perm_b32 v{PK+1}, v{HB_[z]+3}, v{HB_[z]+2}, s{sPkSel}")
        for i in range(4): a(f"v_and_b32 v{HQ+12+i}, 0xffff0000, v{HB_[z]+i}")
    FA = RING + 24
    FW = RB + 22
    DA = vACC
    def f_pre():
        a(f"s_lshl_b32 s{sT0}, s{sW}, 12"); a(f"s_add_u32 s{sT0}, s{sT0}, {L_SC}")
        a(f"v_lshlrev_b32 v{FW}, 6, v{vL}"); a(f"v_add_u32 v{FW}, s{sT0}, v{FW}")
        a(f"v_mov_b32 v{T[0]}, 0"); a(f"v_mov_b32 v{T[1]}, s{sT0}")
        a(f"ds_write_b32 v{T[1]}, v{T[0]} offset:2560")
        a(f"v_lshrrev_b32 v{FW+1}, 2, v{vL}"); a(f"v_lshlrev_b32 v{FW+1}, 4, v{FW+1}")
        a(f"v_and_b32 v{T[0]}, 3, v{vL}")
        a(f"v_mov_b32 v{T[1]}, 0x08000c04"); a(f"v_lshlrev_b32 v{T[0]}, 3, v{T[0]}"); a(f"v_lshrrev_b32 v{T[1]}, v{T[0]}, v{T[1]}"); a(f"v_and_b32 v{T[1]}, 0xff, v{T[1]}")
        a(f"v_add3_u32 v{FW+1}, v{FW+1}, v{T[1]}, s{sT0}")
        a(f"v_add_u32 v{FW+2}, 1024, v{FW+1}"); a(f"v_add_u32 v{FW+3}, 2048, v{FW+1}")
        a(f"v_lshrrev_b32 v{T[0]}, 4, v{vL}"); a(f"s_lshl_b32 s{sT0}, s{sW}, 2"); a(f"v_add_u32 v{T[0]}, s{sT0}, v{T[0]}"); a(f"v_lshlrev_b32 v{T[0]}, 7, v{T[0]}")
        a(f"v_and_b32 v{T[1]}, 3, v{vL}"); a(f"v_lshlrev_b32 v{T[1]}, 5, v{T[1]}"); a(f"v_add_u32 v{FW+4}, v{T[0]}, v{T[1]}")
        a(f"v_and_b32 v{T[0]}, 31, v{vL}"); a(f"v_lshlrev_b32 v{T[0]}, 2, v{T[0]}")
        a(f"v_lshrrev_b32 v{T[1]}, 5, v{vL}"); a(f"v_lshlrev_b32 v{T[1]}, 10, v{T[1]}"); a(f"v_add_u32 v{FW+5}, v{T[0]}, v{T[1]}")
        a(f"v_lshrrev_b32 v{T[0]}, 4, v{vL}"); a(f"s_lshl_b32 s{sT0}, s{sW}, 2"); a(f"v_add_u32 v{T[0]}, s{sT0}, v{T[0]}"); a(f"v_lshlrev_b32 v{FW+6}, 2, v{T[0]}")
        for i in range(8): a(f"v_mov_b32 v{DA+i}, 0")
        a(f"v_mov_b32 v{FW+7}, 0x3f803f80")
        a(f"v_cmp_gt_u32 {sp(sE)}, 40, v{vL}")
        a(f"s_lshl_b32 s{sT0}, s{sW}, 3"); a(f"v_mov_b32 v{PK+2}, s{sT0}")
    poll2(f_iss, f_chk, 1, f_st1, pre=f_pre)
    stamp(10)
    a(f"v_cndmask_b32 v{PK}, 0, v{PK}, {sp(sE)}"); a(f"v_cndmask_b32 v{PK+1}, 0, v{PK+1}, {sp(sE)}")
    t0, t1, t2, t3, t4 = T[0:5]
    a(f"v_dot2_f32_bf16 v{t0}, v{PK}, v{FW+7}, 0"); a(f"v_dot2_f32_bf16 v{t1}, v{PK}, v{PK}, 0")
    a(f"v_dot2_f32_bf16 v{t0}, v{PK+1}, v{FW+7}, v{t0}"); a(f"v_dot2_f32_bf16 v{t1}, v{PK+1}, v{PK+1}, v{t1}")
    assert t1 == t0 + 1 and t0 % 2 == 1
    allreduce_n([("v_add_f32", t0), ("v_add_f32", t1)], [t2, t3])
    SX = vQ + 4
    a(f"v_mov_b32 v{SX}, v{t0}"); a(f"v_mov_b32 v{SX+1}, v{t1}")
    set_exec(1)
    a(f"ds_write_b64 v{PK+2}, {vr(SX,2)} offset:{L_STAT}")
    set_exec(-1)
    a("s_waitcnt lgkmcnt(0)"); a("s_barrier")
    a(f"ds_read_b128 {vr(SX,4)}, v{vZ} offset:{L_STAT}"); a(f"ds_read_b128 {vr(SX+4,4)}, v{vZ} offset:{L_STAT+16}")
    a("s_waitcnt lgkmcnt(0)")
    pkadd(SX, SX, SX + 2); pkadd(SX + 4, SX + 4, SX + 6); pkadd(SX, SX, SX + 4)
    a(f"v_mov_b32 v{t0}, v{SX}"); a(f"v_mov_b32 v{t1}, v{SX+1}")
    ln_consts(t0, t1, t2)
    a(f"v_rcp_f32 v{t4}, v{t1}")
    O4 = HQ + 12
    for i in range(4): a(f"v_sub_f32 v{O4+i}, v{O4+i}, v{t0}")
    a(f"v_cvt_pk_bf16_f32 v{t2}, v{O4}, v{O4+1}"); a(f"v_cvt_pk_bf16_f32 v{t3}, v{O4+2}, v{O4+3}")
    a(f"v_lshlrev_b32 v{O4}, 16, v{t2}"); a(f"v_and_b32 v{O4+1}, 0xffff0000, v{t2}"); a(f"v_lshlrev_b32 v{O4+2}, 16, v{t3}"); a(f"v_and_b32 v{O4+3}, 0xffff0000, v{t3}")
    for i in range(4): a(f"v_mul_f32 v{O4+i}, v{O4+i}, v{t4}")
    a(f"v_cvt_pk_bf16_f32 v{t2}, v{O4}, v{O4+1}"); a(f"v_cvt_pk_bf16_f32 v{t3}, v{O4+2}, v{O4+3}")
    PR = FA
    for r_, (src, hi) in enumerate(((t2, 0), (t2, 1), (t3, 0), (t3, 1))):
        b = PR + 4 * r_
        a(f"v_mov_b32 v{b}, 0"); a(f"v_mov_b32 v{b+2}, 0")
        if hi:
            a(f"v_lshrrev_b32 v{b+1}, 16, v{src}"); a(f"v_and_b32 v{b+3}, 0xffff0000, v{src}")
        else:
            a(f"v_and_b32 v{b+1}, 0xffff, v{src}"); a(f"v_lshlrev_b32 v{b+3}, 16, v{src}")
    set_exec("0x000000ffffffffff")
    for r_ in range(4): a(f"ds_write_b128 v{FW}, {vr(PR+4*r_,4)} offset:{16*r_}")
    set_exec(-1)
    a("s_waitcnt lgkmcnt(0)")
    for k in range(10):
        base = FW + 1 + k // 4
        a(f"ds_read2_b32 {vr(FA+2*k,2)}, v{base} offset0:{(k%4)*64} offset1:{(k%4)*64+1}")
    DB = DA + 4
    for k in range(10):
        a(f"s_waitcnt lgkmcnt({9-k})")
        a(f"v_mfma_f32_4x4x4_16b_bf16 {vr(DA,4)}, {vr(FA+2*k,2)}, {vr(W+4*k,2)}, {vr(DA,4)}")
        a(f"v_mfma_f32_4x4x4_16b_bf16 {vr(DB,4)}, {vr(FA+2*k,2)}, {vr(W+4*k+2,2)}, {vr(DB,4)}")
    for m in ("row_ror:4", "row_ror:8"):
        for i in range(8): dpp("v_add_f32", DA + i, m)
    set_exec("0x000f000f000f000f")
    a(f"ds_write_b128 v{FW+4}, {vr(DA,4)} offset:{L_RED3}")
    a(f"ds_write_b128 v{FW+4}, {vr(DB,4)} offset:{L_RED3+16}")
    set_exec(-1)
    a("s_waitcnt lgkmcnt(0)"); a("s_barrier")
    HR = FA
    for s in range(8): a(f"ds_read_b32 v{HR+s}, v{FW+5} offset:{L_RED3 + 128*s}")
    a("s_waitcnt lgkmcnt(0)")
    for s in range(0, 8, 4): pkadd(HR + s, HR + s, HR + s + 2)
    pkadd(HR, HR, HR + 4)
    a(f"v_add_f32 v{HR}, v{HR}, v{HR+1}")
    a(f"v_mov_b32 v{T[0]}, v{HR}"); a(f"v_permlane32_swap_b32 v{T[0]}, v{HR}"); a(f"v_add_f32 v{HR}, v{HR}, v{T[0]}")
    rne(HR, HR)
    a(f"v_mov_b32 v{T[0]}, v{HR}"); a(f"v_permlane16_swap_b32 v{T[0]}, v{HR}")
    a(f"v_mul_f32 v{T[1]}, {f32hex(-LOG2E)}, v{T[0]}"); a(f"v_min_f32 v{T[1]}, 0x42fc0000, v{T[1]}"); a(f"v_exp_f32 v{T[1]}, v{T[1]}")
    a(f"v_add_f32 v{T[1]}, 1.0, v{T[1]}"); a(f"v_rcp_f32 v{T[2]}, v{T[1]}")
    a(f"v_mul_f32 v{T[3]}, v{T[0]}, v{T[2]}")
    rne(T[3], T[3])
    a(f"v_mul_f32 v{T[3]}, v{T[3]}, v{HR}")
    a(f"v_cvt_pk_bf16_f32 v{T[3]}, v{T[3]}, v{T[3]}")
    a(f"ds_bpermute_b32 v{HR+1}, v{FW+6}, v{T[3]}")
    a("s_waitcnt lgkmcnt(0)")
    stamp(11)
    rowproj(1, W + 40, [HR+1], YY)
    dump_stamps()
    a("s_branch L_end")

    a.label("L_roleR")
    if wb:
        a(f"s_cmp_ge_u32 s{sRI}, 24"); a("s_cbranch_scc0 L_nowb")
        a(f"s_cmp_lg_u32 s{sW}, 0"); a("s_cbranch_scc1 L_fin")
        class_wait()
        a("buffer_wbl2 sc1"); a("s_waitcnt vmcnt(0)")
        a("s_branch L_fin")
        a.label("L_nowb")
    a(f"s_cmp_ge_u32 s{sRI}, 20"); a("s_cbranch_scc1 L_fin")
    RS = RING + 24
    RS = RING + 40
    XS = RB
    WRr = RB + 8
    HV = RB + 16
    HPK = RB + 28
    HS = vQ + 4
    SIG = vQ + 8
    def reduce_parts(base, nsrc, nld, lds, pre=None):
        a(f"s_mul_i32 s{sU}, s{sRI}, {nsrc*128}"); a(f"s_add_u32 s{sU}, s{sU}, {base}")
        a(f"v_lshlrev_b32 v{T[3]}, 4, v0")
        PB = [RS + 4, RING]
        def iss(z):
            for k in range(nld):
                a(f"s_add_u32 s{sT1}, s{sU}, {4096*k}")
                a(f"buffer_load_dwordx4 {vr(PB[z]+4*k,4)}, v{T[3]}, {srd(WSR)}, s{sT1} offen sc1")
        def chk(z):
            for k in range(nld): check4(PB[z] + 4*k, T[0], T[1], k == 0)
        def st1(z):
            b = PB[z]
            untag(b, 4 * nld)
            a(f"v_pk_add_f32 {vr(RS,2)}, {vr(b,2)}, {vr(b+4,2)}"); a(f"v_pk_add_f32 {vr(RS+2,2)}, {vr(b+2,2)}, {vr(b+6,2)}")
            for k in range(2, nld): sum_quads(RS, [b + 4*k])
        def pre2():
            if pre: pre()
            a(f"v_and_b32 v{T[4]}, 7, v{vL}"); a(f"v_lshlrev_b32 v{T[4]}, 4, v{T[4]}")
            a(f"s_lshl_b32 s{sT0}, s{sW}, 7"); a(f"v_add_u32 v{T[5]}, s{sT0}, v{T[4]}")
        poll2(iss, chk, nld, st1, pre=pre2)
        RT = vACC
        for i in range(4): dpp("v_add_f32", RS + i, "row_ror:8")
        o4 = [("v_add_f32", RS + i) for i in range(4)]
        swap_reduce(o4, [RT + i for i in range(4)], "v_permlane16_swap_b32")
        swap_reduce(o4, [RT + i for i in range(4)], "v_permlane32_swap_b32")
        set_exec("0x00000000000000ff")
        a(f"ds_write_b128 v{T[5]}, {vr(RS,4)} offset:{lds}")
        set_exec(-1)
        a("s_waitcnt lgkmcnt(0)"); a("s_barrier")
        a(f"ds_read_b128 {vr(RS,4)}, v{T[4]} offset:{lds}")
        for s in range(1, 4): a(f"ds_read_b128 {vr(RT+4*(s-1),4)}, v{T[4]} offset:{lds + 128*s}")
        a("s_waitcnt lgkmcnt(0)")
        sum_quads(RS, [RT]); sum_quads(RT + 4, [RT + 8]); sum_quads(RS, [RT + 4])
    def r_pre1():
        a(f"v_and_b32 v{T[0]}, 7, v{vL}"); a(f"v_lshlrev_b32 v{T[0]}, 3, v{T[0]}"); a(f"s_lshl_b32 s{sT0}, s{sRI}, 6"); a(f"v_add_u32 v{T[0]}, s{sT0}, v{T[0]}")
        a(f"global_load_dwordx2 {vr(XS+4,2)}, v{T[0]}, {sp(pX)}")
        a(f"v_lshlrev_b32 v{T[1]}, 3, v{vL}"); a(f"v_add_u32 v{T[2]}, 1024, v{T[1]}"); a(f"v_min_u32 v{T[2]}, 1272, v{T[2]}")
        a(f"global_load_dwordx2 {vr(WRr,2)}, v{T[1]}, {sp(pWR)}")
        a(f"global_load_dwordx2 {vr(WRr+2,2)}, v{T[1]}, {sp(pWR)} offset:512")
        a(f"global_load_dwordx2 {vr(WRr+4,2)}, v{T[2]}, {sp(pWR)}")
        a(f"v_lshrrev_b32 v{SIG+2}, 3, v{vL}"); a(f"v_lshlrev_b32 v{SIG+2}, 12, v{SIG+2}")
        a(f"v_and_b32 v{SIG+3}, 7, v{vL}"); a(f"v_lshlrev_b32 v{SIG+3}, 4, v{SIG+3}"); a(f"v_add_u32 v{SIG+2}, v{SIG+2}, v{SIG+3}")
        a(f"s_lshl_b32 s{sU2}, s{sRI}, 7"); a(f"s_add_u32 s{sU2}, s{sU2}, {HH}")
        a(f"global_load_dword v{SIG}, v{T[0]}, {sp(pOUT)}")
    class_wait()
    reduce_parts(ZZ, 128, 4, L_RED3, pre=r_pre1)
    stamp(9)
    for h in range(2):
        a(f"v_lshlrev_b32 v{XS+2*h}, 16, v{XS+4+h}"); a(f"v_and_b32 v{XS+2*h+1}, 0xffff0000, v{XS+4+h}")
    a(f"v_cvt_pk_bf16_f32 v{RS}, v{RS}, v{RS+1}"); a(f"v_cvt_pk_bf16_f32 v{RS+2}, v{RS+2}, v{RS+3}")
    a(f"v_and_b32 v{RS+1}, 0xffff0000, v{RS}"); a(f"v_lshlrev_b32 v{RS}, 16, v{RS}"); a(f"v_and_b32 v{RS+3}, 0xffff0000, v{RS+2}"); a(f"v_lshlrev_b32 v{RS+2}, 16, v{RS+2}")
    pkadd(XS, XS, RS); pkadd(XS + 2, XS + 2, RS + 2)
    a(f"v_cvt_pk_bf16_f32 v{RS}, v{XS}, v{XS+1}"); a(f"v_cvt_pk_bf16_f32 v{RS+2}, v{XS+2}, v{XS+3}")
    a(f"v_and_b32 v{XS+1}, 0xffff0000, v{RS}"); a(f"v_lshlrev_b32 v{XS}, 16, v{RS}"); a(f"v_and_b32 v{XS+3}, 0xffff0000, v{RS+2}"); a(f"v_lshlrev_b32 v{XS+2}, 16, v{RS+2}")
    for i in range(4): a(f"v_perm_b32 v{RS+i}, v{XS+i}, v{vN}, s{sSel+i}")
    a(f"s_cmp_lg_u32 s{sW}, 0"); a("s_cbranch_scc1 L_rnopub")
    a(f"buffer_store_dwordx4 {vr(RS,4)}, v{SIG+2}, {srd(WSR)}, s{sU2} offen sc1")
    a.label("L_rnopub")
    a(f"v_lshlrev_b32 v{T[3]}, 4, v{vL}")
    a(f"v_add_u32 v{T[4]}, 2048, v{T[3]}"); a(f"v_min_u32 v{T[4]}, 2544, v{T[4]}")
    a(f"s_and_b32 s{sU}, s2, 7"); a(f"s_lshl_b32 s{sU}, s{sU}, 12"); a(f"s_add_u32 s{sU}, s{sU}, {HH}")
    def r_iss():
        a(f"buffer_load_dwordx4 {vr(HV,4)}, v{T[3]}, {srd(WSR)}, s{sU} offen sc1")
        a(f"buffer_load_dwordx4 {vr(HV+4,4)}, v{T[3]}, {srd(WSR)}, s{sU} offen offset:1024 sc1")
        a(f"buffer_load_dwordx4 {vr(HV+8,4)}, v{T[4]}, {srd(WSR)}, s{sU} offen sc1")
    def r_chk():
        for k in range(3): check4(HV + 4*k, T[0], T[1], k == 0)
    poll(r_iss, r_chk)
    stamp(10)
    for i in range(12): a(f"v_and_b32 v{HV+i}, 0xffff0000, v{HV+i}")
    a(f"v_cmp_gt_u32 vcc, 32, v{vL}")
    for i in range(8, 12): a(f"v_cndmask_b32 v{HV+i}, 0, v{HV+i}, vcc")
    for k in range(6): a(f"v_perm_b32 v{HPK+k}, v{HV+2*k+1}, v{HV+2*k}, s{sPkSel}")
    layernorm_full(HV, HPK, T[0:5], False)
    a(f"v_cmp_gt_u32 vcc, 32, v{vL}")
    a(f"v_cndmask_b32 v{WRr+4}, 0, v{WRr+4}, vcc"); a(f"v_cndmask_b32 v{WRr+5}, 0, v{WRr+5}, vcc")
    a(f"v_dot2_f32_bf16 v{T[0]}, v{HPK}, v{WRr}, 0")
    for k in range(1, 6): a(f"v_dot2_f32_bf16 v{T[0]}, v{HPK+k}, v{WRr+k}, v{T[0]}")
    allreduce("v_add_f32", T[0], T[1])
    rne(T[0], T[0])
    a(f"v_mul_f32 v{T[1]}, {f32hex(-LOG2E)}, v{T[0]}"); a(f"v_min_f32 v{T[1]}, 0x42fc0000, v{T[1]}"); a(f"v_exp_f32 v{T[1]}, v{T[1]}")
    a(f"v_add_f32 v{T[1]}, 1.0, v{T[1]}"); a(f"v_rcp_f32 v{T[2]}, v{T[1]}")
    rne(SIG, T[2])
    a(f"s_lshl_b32 s{sT0}, s{sRI}, 3"); a(f"s_lshr_b32 s{sT1}, s{sT0}, 6"); a(f"s_and_b32 s{sT0}, s{sT0}, 63")
    a(f"v_and_b32 v{T[0]}, 7, v{vL}"); a(f"v_add_u32 v{T[0]}, s{sT0}, v{T[0]}"); a(f"v_lshlrev_b32 v{T[0]}, 2, v{T[0]}")
    for i in range(4): a(f"v_mov_b32 v{HS+i}, v{HV+i}")
    a(f"s_cmp_eq_u32 s{sT1}, 0"); a("s_cbranch_scc1 L_hs")
    for i in range(4): a(f"v_mov_b32 v{HS+i}, v{HV+4+i}")
    a(f"s_cmp_eq_u32 s{sT1}, 1"); a("s_cbranch_scc1 L_hs")
    for i in range(4): a(f"v_mov_b32 v{HS+i}, v{HV+8+i}")
    a.label("L_hs")
    for i in range(4): a(f"ds_bpermute_b32 v{HS+i}, v{T[0]}, v{HS+i}")
    a("s_waitcnt lgkmcnt(0)")
    stamp(11)
    def r_pre2():
        a(f"v_lshlrev_b32 v{SIG+1}, 3, v{vL}"); a(f"s_lshl_b32 s{sT0}, s{sRI}, 6"); a(f"v_add_u32 v{SIG+1}, s{sT0}, v{SIG+1}")
    reduce_parts(YY, 96, 3, L_RED2, pre=r_pre2)
    stamp(12)
    def rne4(b):
        a(f"v_cvt_pk_bf16_f32 v{b}, v{b}, v{b+1}"); a(f"v_cvt_pk_bf16_f32 v{b+2}, v{b+2}, v{b+3}")
        a(f"v_and_b32 v{b+1}, 0xffff0000, v{b}"); a(f"v_lshlrev_b32 v{b}, 16, v{b}"); a(f"v_and_b32 v{b+3}, 0xffff0000, v{b+2}"); a(f"v_lshlrev_b32 v{b+2}, 16, v{b+2}")
    rne4(RS)
    for i in range(4): a(f"v_mul_f32 v{RS+i}, v{RS+i}, v{SIG}")
    rne4(RS)
    pkadd(RS, RS, HS); pkadd(RS + 2, RS + 2, HS + 2)
    rne4(RS)
    pkadd(RS, RS, XS); pkadd(RS + 2, RS + 2, XS + 2)
    a(f"v_cvt_pk_bf16_f32 v{RS}, v{RS}, v{RS+1}"); a(f"v_cvt_pk_bf16_f32 v{RS+1}, v{RS+2}, v{RS+3}")
    a(f"s_cmp_lg_u32 s{sW}, 0"); a("s_cbranch_scc1 L_fin")
    set_exec("0x00000000000000ff")
    a(f"global_store_dwordx2 v{SIG+1}, {vr(RS,2)}, {sp(pOUT)}" + (" sc1" if outwt else ""))
    a(f"s_cmp_lg_u32 s{sRI}, 0"); a("s_cbranch_scc1 L_fin")
    set_exec(1)
    a(f"v_mov_b32 v{T[1]}, 0")
    a(f"buffer_store_dword v{vN}, v{T[1]}, {srd(WSR)}, 0 offen offset:{EPOCH}" + (" sc1" if outwt else ""))
    a.label("L_fin")
    dump_stamps()
    a.label("L_abort")
    a.label("L_end")
    a("s_endpgm")
    a.label("L_codeend")
    body = a.text()
    tail = f""".section .rodata,"a"
.p2align 6
.amdhsa_kernel {NAME}
  .amdhsa_next_free_vgpr {NV}
  .amdhsa_next_free_sgpr 100
  .amdhsa_accum_offset {NV}
  .amdhsa_group_segment_fixed_size 0
  .amdhsa_kernarg_size 104
  .amdhsa_user_sgpr_count 2
  .amdhsa_user_sgpr_kernarg_segment_ptr 1
  .amdhsa_system_sgpr_workgroup_id_x 1
.end_amdhsa_kernel
"""
    return body + tail

if __name__ == "__main__":
    kw = json.loads(sys.argv[1]) if len(sys.argv) > 1 else {}
    sys.stdout.write(gen(**kw))
```
